```python
import torch

def _softmax(x, axis=-1):
    return torch.softmax(x, dim=axis)
def _gelu(x):
    return torch.nn.functional.gelu(x, approximate="tanh")
def _silu(x):
    return torch.nn.functional.silu(x)
def _sigmoid(x):
    return torch.sigmoid(x)
def _layernorm(x, axis=-1, eps=1e-5):
    m = x.mean(dim=axis, keepdim=True)
    v = x.var(dim=axis, keepdim=True, unbiased=False)
    return (x - m) / torch.sqrt(v + eps)
def _scatter_add(tgt, idx, src, axis=0):
    return tgt.clone().index_add_(axis, idx, src)
def _segment_sum(src, seg, n):
    out = torch.zeros((n,) + src.shape[1:], dtype=src.dtype)
    return out.index_add_(0, seg, src)
def _pad(x, pw):
    flat = tuple(v for pair in reversed(pw) for v in pair)
    return torch.nn.functional.pad(x, flat)

kernel_name = 'parallel_sum__ssm_conv_s4__mixer_token_mlp__prompt'

def setup_inputs():

    _w = (lambda a: (lambda t: t.to(torch.bfloat16) if t.is_floating_point() else t)(torch.as_tensor(a)))
    def _A_setup():
        B, L, D, N = 1, 2048, 640, 192
        A_re = -(lambda _x: torch.exp(torch.as_tensor(_x)))((lambda *s: torch.randn(*s, dtype=torch.bfloat16) * 6.4)(D, N))
        A_im = torch.pi * (lambda *s: torch.randn(*s, dtype=torch.bfloat16) * 0.05)(D, N)
        B_re = (lambda *s: torch.randn(*s, dtype=torch.bfloat16) * 0.1)(D, N)
        B_im = (lambda *s: torch.randn(*s, dtype=torch.bfloat16) * 0.1)(D, N)
        C_re = (lambda *s: torch.randn(*s, dtype=torch.bfloat16) * 0.1)(D, N)
        C_im = (lambda *s: torch.randn(*s, dtype=torch.bfloat16) * 0.1)(D, N)
        log_dt = (lambda *s: torch.randn(*s, dtype=torch.bfloat16) * 0.05)(D) * 0.5 - 4.0
        Dskip = (lambda *s: torch.randn(*s, dtype=torch.bfloat16) * 0.05)(D)
        return {
            "u": _w((lambda *s: torch.randn(*s, dtype=torch.bfloat16) * 0.05)(B, L, D)),
            "A_re": _w(A_re),
            "A_im": _w(A_im),
            "B_re": _w(B_re),
            "B_im": _w(B_im),
            "C_re": _w(C_re),
            "C_im": _w(C_im),
            "log_dt": _w(log_dt),
            "Dskip": _w(Dskip),
        }
    _A_in = _A_setup()

    def _B_setup():
        B, S, D, F = 1, 2048, 640, 1536
        return {
            "x": _w((lambda *s: torch.randn(*s, dtype=torch.bfloat16) * 0.05)(B, S, D)),
            "w1": _w((lambda *s: torch.randn(*s, dtype=torch.bfloat16) * 0.8)(S, F) * (S ** -0.5)),
            "b1": _w((lambda *s: torch.randn(*s, dtype=torch.bfloat16) * 0.2)(F) * 0.02),
            "w2": _w((lambda *s: torch.randn(*s, dtype=torch.bfloat16) * 0.2)(F, S) * (F ** -0.5)),
            "b2": _w((lambda *s: torch.randn(*s, dtype=torch.bfloat16) * 0.2)(S) * 0.02),
        }
    _B_in = _B_setup()

    return {
        "A_u": _A_in["u"],
        "A_A_re": _A_in["A_re"],
        "A_A_im": _A_in["A_im"],
        "A_B_re": _A_in["B_re"],
        "A_B_im": _A_in["B_im"],
        "A_C_re": _A_in["C_re"],
        "A_C_im": _A_in["C_im"],
        "A_log_dt": _A_in["log_dt"],
        "A_Dskip": _A_in["Dskip"],
        "B_x": _B_in["x"],
        "B_w1": _B_in["w1"],
        "B_b1": _B_in["b1"],
        "B_w2": _B_in["w2"],
        "B_b2": _B_in["b2"],
    }

def reference(A_u, A_A_re, A_A_im, A_B_re, A_B_im, A_C_re, A_C_im, A_log_dt, A_Dskip, B_x, B_w1, B_b1, B_w2, B_b2):
    def _A_ref(u, A_re, A_im, B_re, B_im, C_re, C_im, log_dt, Dskip):
        Bsz, L, D = u.shape
        dt = torch.exp(log_dt)[:, None]
        A = A_re + 1j * A_im
        Bc = B_re + 1j * B_im
        Cc = C_re + 1j * C_im
        logdA = dt * A
        dB = dt * Bc
        l = (lambda x, dt: x.to(dt))(torch.arange(L), A_re.dtype)
        P = torch.exp(logdA[:, :, None] * l[None, None, :])
        K = torch.einsum("dn,dnl,dn->dl", Cc, P, dB).real
        L2 = 2 * L
        Kp = _pad(K, ((0, 0), (0, L)))
        up = (lambda x, *d: x.permute(*d))(u, 0, 2, 1)
        up = _pad(up, ((0, 0), (0, 0), (0, L)))
        Kf = (lambda x, axes=(-2,-1): torch.fft.rfft2(x.float(), dim=axes))(Kp[:, None, :], axes=(-2, -1))
        Uf = (lambda x, axes=(-2,-1): torch.fft.rfft2(x.float(), dim=axes))(up[:, :, None, :], axes=(-2, -1))
        Yf = Uf * Kf[None, :, :, :]
        y = (lambda x, s, axes=(-2,-1): torch.fft.irfft2(x, s=s, dim=axes).to(torch.bfloat16))(Yf, (1, L2), axes=(-2, -1))[:, :, 0, :L]
        y = (lambda x, *d: x.permute(*d))(y, 0, 2, 1) + u * Dskip[None, None, :]
        return y

    def _B_ref(x, w1, b1, w2, b2):
        B, S, D = x.shape
        h = _layernorm(x, axis=-1)
        u = torch.einsum("bsd,sf->bdf", h, w1) + b1
        u = _gelu(u)
        y = torch.einsum("bdf,fs->bds", u, w2) + b2
        return (lambda x, *d: x.permute(*d))(y, 0, 2, 1)

    x = A_u
    xn = _layernorm(x, axis=-1)
    return x + _A_ref(xn, A_A_re, A_A_im, A_B_re, A_B_im, A_C_re, A_C_im, A_log_dt, A_Dskip) + _B_ref(xn, B_w1, B_b1, B_w2, B_b2)
```

```python
import re

TRANS = ("v_exp_f32", "v_log_f32", "v_rcp_f32", "v_rsq_f32", "v_sqrt_f32", "v_sin_f32", "v_cos_f32")

def _regs(tok):
    t = tok.strip()
    t = t.lstrip("-")
    if t.startswith("abs(") or t.startswith("neg("):
        t = t[4:-1]
    if t.startswith("|"):
        t = t.strip("|")
    m = re.fullmatch(r"([vsa])(\d+)", t)
    if m:
        return {(m.group(1), int(m.group(2)))}
    m = re.fullmatch(r"([vsa])\[(\d+):(\d+)\]", t)
    if m:
        return {(m.group(1), i) for i in range(int(m.group(2)), int(m.group(3)) + 1)}
    if t == "vcc":
        return {("s", 106), ("s", 107)}
    if t == "vcc_lo":
        return {("s", 106)}
    if t == "vcc_hi":
        return {("s", 107)}
    if t == "exec":
        return {("s", 126), ("s", 127)}
    if t == "m0":
        return {("s", 124)}
    return set()

class Ins:
    __slots__ = ("text", "op", "cls", "wr", "rd", "srcc", "ab", "dpp", "ws", "wide_store_data", "lds_m0", "passes")

def parse(text):
    i = Ins()
    i.text = text
    body = text.split(";")[0].strip()
    parts = body.split(None, 1)
    op = parts[0]
    i.op = op
    rest = parts[1] if len(parts) > 1 else ""
    ops, depth, cur = [], 0, ""
    for ch in rest:
        if ch in "[(":
            depth += 1
        if ch in "])":
            depth -= 1
        if ch == "," and depth == 0:
            ops.append(cur.strip()); cur = ""
        else:
            cur += ch
    if cur.strip():
        ops.append(cur.strip())
    mods = ""
    if ops:
        sp = ops[-1].split(None, 1)
        ops[-1] = sp[0]
        mods = sp[1] if len(sp) > 1 else ""
    R = [_regs(o) for o in ops]
    i.wr, i.rd, i.srcc, i.ab = set(), set(), set(), set()
    i.dpp = ("_dpp" in op) or bool(re.search(r"row_sh|row_ror|row_bcast|quad_perm|row_mirror|row_half_mirror|wave_", mods))
    i.ws = 1
    i.wide_store_data = set()
    i.lds_m0 = False
    i.passes = 0
    def un(l):
        s = set()
        for x in l:
            s |= x
        return s
    if op.startswith("v_mfma"):
        i.cls = "mfma"
        i.wr = R[0]; i.ab = R[1] | R[2]; i.srcc = R[3]; i.rd = i.ab | i.srcc
        i.passes = 4 if "16x16x32" in op else 8
    elif op.startswith("v_"):
        i.cls = "valu"
        if op.startswith("v_permlane") and "swap" in op:
            i.wr = R[0] | R[1]; i.rd = R[0] | R[1]
        elif op.startswith("v_cmp"):
            i.wr = R[0]; i.rd = un(R[1:])
        elif re.match(r"v_(add|sub|subrev)_co_u32", op):
            i.wr = R[0] | R[1]; i.rd = un(R[2:])
        elif re.match(r"v_(addc|subb)_co_u32", op):
            i.wr = R[0] | R[1]; i.rd = un(R[2:])
        elif op.startswith("v_fmac") or op.startswith("v_dot2c") or op.startswith("v_writelane"):
            i.wr = R[0]; i.rd = un(R)
        elif op == "v_nop":
            pass
        else:
            i.wr = R[0]; i.rd = un(R[1:])
            if i.dpp and "bound_ctrl" not in mods:
                i.rd |= R[0]
            if i.dpp and not re.search(r"row_mask:0xf", mods):
                i.rd |= R[0]
    elif op.startswith("buffer_") or op.startswith("global_"):
        i.cls = "vmem"
        lds = bool(re.search(r"\blds\b", mods)) or "_lds_" in op
        if lds:
            i.rd = un(R); i.lds_m0 = True; i.rd |= {("s", 124)}
        elif "_load" in op:
            i.wr = R[0]; i.rd = un(R[1:])
            if "d16" in op:
                i.rd |= R[0]
        else:
            i.rd = un(R)
            if "x4" in op or "x3" in op:
                i.wide_store_data = R[0] if op.startswith("buffer_") else R[1]
    elif op.startswith("ds_"):
        i.cls = "ds"
        if "addtid" in op:
            i.lds_m0 = True
        if op.startswith("ds_read") or "_rtn" in op or "permute" in op or "swizzle" in op:
            i.wr = R[0]; i.rd = un(R[1:])
            if "d16" in op:
                i.rd |= R[0]
        else:
            i.rd = un(R)
        if i.lds_m0:
            i.rd |= {("s", 124)}
    elif op.startswith("s_"):
        i.cls = "salu"
        if op == "s_nop":
            i.ws = int(ops[0], 0) + 1
        elif op.startswith("s_cmp") or op.startswith("s_cbranch") or op in ("s_branch", "s_waitcnt", "s_barrier", "s_endpgm", "s_sleep", "s_setprio", "s_bitcmp1_b32", "s_bitcmp0_b32"):
            i.rd = un(R)
        elif op.startswith("s_load") or op.startswith("s_mem"):
            i.cls = "smem"; i.wr = R[0]; i.rd = un(R[1:])
        else:
            i.wr = R[0] if R else set(); i.rd = un(R[1:])
            if "saveexec" in op:
                i.wr |= {("s", 126), ("s", 127)}
    else:
        raise ValueError("cannot parse: " + text)
    return i

def need(p, c):
    n = 0
    pv = {r for r in p.wr if r[0] in "va"}
    ps = {r for r in p.wr if r[0] == "s"}
    if p.cls == "valu":
        if c.cls == "mfma" and pv & c.rd:
            n = max(n, 2)
        if c.cls == "valu":
            if c.dpp and pv & c.rd:
                n = max(n, 2)
            if c.op.startswith("v_permlane") and pv & c.rd:
                n = max(n, 2)
            if (c.op.startswith("v_readlane") or c.op.startswith("v_readfirstlane")) and pv & c.rd:
                n = max(n, 1)
            if ps & c.rd:
                n = max(n, 4 if ("readlane" in c.op or "writelane" in c.op) else 2)
            if re.sub(r"_e(32|64)$", "", p.op) in TRANS and pv & (c.rd | c.wr):
                n = max(n, 1)
        if c.cls in ("vmem", "ds") and re.sub(r"_e(32|64)$", "", p.op) in TRANS and pv & c.rd:
            n = max(n, 1)
        if c.cls == "vmem" and ps & c.rd:
            n = max(n, 5)
        if c.cls in ("salu", "smem") and ps & c.rd:
            n = max(n, 1)
    if p.cls == "mfma":
        big = {4: 8, 8: 12}[p.passes]
        mid = {4: 6, 8: 10}[p.passes]
        war = {4: 3, 8: 7}[p.passes]
        if c.cls == "mfma":
            if p.wr & c.ab:
                n = max(n, big)
            if p.wr & c.srcc and not (p.wr == c.srcc and p.passes == c.passes):
                n = max(n, mid)
            if p.wr & c.wr and not (p.wr == c.srcc):
                n = max(n, mid)
        elif c.cls in ("valu", "vmem", "ds"):
            if p.wr & (c.rd | c.wr):
                n = max(n, big)
            if c.cls == "valu" and p.srcc & c.wr:
                n = max(n, war)
    if p.cls == "salu" and ("s", 124) in p.wr and c.lds_m0:
        n = max(n, 1)
    if p.wide_store_data and (p.wide_store_data & c.wr):
        n = max(n, 2)
    return n

class Asm:
    def __init__(self):
        self.lines = []
        self.window = []
        self.vm = []
        self.lg = []
        self.npad = 0
        self.ninst = 0

    def raw(self, text):
        self.lines.append(text)

    def comment(self, text):
        self.lines.append("    ; " + text)

    def label(self, name):
        self.lines.append(name + ":")

    def __call__(self, text, tag=None):
        i = parse(text)
        pad = 0
        dist = 0
        for p in reversed(self.window):
            r = need(p, i)
            if r > dist:
                pad = max(pad, r - dist)
            dist += p.ws
            if dist >= 12:
                break
        if pad:
            self.npad += pad
            nop = parse("s_nop %d" % (pad - 1))
            self.window.append(nop)
            self.lines.append("    s_nop %d" % (pad - 1))
        self.window.append(i)
        if len(self.window) > 16:
            self.window.pop(0)
        self.lines.append("    " + text)
        self.ninst += 1
        if i.cls == "vmem":
            self.vm.append(tag)
        if i.cls == "ds":
            self.lg.append(tag)
        return i

    def wait_vm(self, tag):
        idx = max((k for k, t in enumerate(self.vm) if t == tag), default=None)
        if idx is None:
            return
        n = len(self.vm) - 1 - idx
        n = min(n, 63)
        self("s_waitcnt vmcnt(%d)" % n)
        self.vm = self.vm[len(self.vm) - n:] if n else []

    def wait_lg(self, tag):
        idx = max((k for k, t in enumerate(self.lg) if t == tag), default=None)
        if idx is None:
            return
        n = len(self.lg) - 1 - idx
        n = min(n, 15)
        self("s_waitcnt lgkmcnt(%d)" % n)
        self.lg = self.lg[len(self.lg) - n:] if n else []

    def drain_vm(self):
        self("s_waitcnt vmcnt(0)"); self.vm = []

    def drain_lg(self):
        self("s_waitcnt lgkmcnt(0)"); self.lg = []

    def drain(self):
        self("s_waitcnt vmcnt(0) lgkmcnt(0)"); self.vm = []; self.lg = []

    def fence(self):
        self("s_nop 7"); self("s_nop 3")

    def reset_counts(self, vm=None, lg=None):
        self.vm = list(vm or []); self.lg = list(lg or [])

    def text(self):
        return "\n".join(self.lines) + "\n"

def v(n, c=1):
    return "v%d" % n if c == 1 else "v[%d:%d]" % (n, n + c - 1)

def s(n, c=1):
    return "s%d" % n if c == 1 else "s[%d:%d]" % (n, n + c - 1)
```

```python
import sys, struct
from asmlib import Asm, v, s

NAME = "parallel_sum__ssm_conv_s4__mixer_token_mlp__prompt"

def f32(x):
    return "0x%08x" % struct.unpack("<I", struct.pack("<f", x))[0]

class Cfg:
    ts = False
    spin = 2048
    depth1 = 2
    depth2 = 2
    out_pol = ""
    stop = 99

HB, XB, GB, YA = 0, 0x280000, 0x500000, 0x700000
FL = 0xA00000
HF, XF, GF, YF, EW = FL, FL + 0x10000, FL + 0x20000, FL + 0x40000, FL + 0x60000
TSO = 0xB00000
WS_BYTES = 0xC00000
S = 12576
RY = 3 * S
CNT = RY + 10240
WOFF = 49152
WSZ = 28672
LDS_BYTES = 163840
KB_OFF, ZP_OFF, U_OFF = 4160, 8256, 8480
TB_OFF = U_OFF + 16
sID, sWV, sX, sJ, sTAG = 2, 3, 4, 5, 6
pX, pARE, pAIM, pBRE, pBIM, pCRE, pCIM, pLDT, pDSK, pBX, pW1, pB1, pW2, pB2, pOUT, pDBG, pWS = [16 + 2 * i for i in range(17)]
rWS, rX, rW1, rW2, rOUT, rCODE = 52, 56, 60, 64, 68, 72
sDT, sFT, sDT2, sST, sWB = 76, 77, 78, 79, 80
sOW, sOWB, sOWE = 81, 82, 83
sOA, sOAB, sOAE = 84, 85, 86
sD = [87, 88, 89, 90]
sT0, sT1, sT2, sT3 = 8, 9, 10, 11
sCNT = 12
sROT1, sROT2 = 91, 92
sPOS, sCH, sRB = 93, 94, 95
sMASK = 13
vL, vTS = 0, 15

def gen(cfg):
    a = Asm()
    nts = [0]
    def stamp(idx):
        if not cfg.ts:
            return
        a("s_memrealtime s[98:99]")
        a("s_waitcnt lgkmcnt(0)"); a.lg = []
        a("v_writelane_b32 v%d, s98, %d" % (vTS, idx))

    def finish():
        if cfg.ts:
            a("s_lshl_b32 s%d, s%d, 3" % (sT0, sID))
            a("s_add_u32 s%d, s%d, s%d" % (sT0, sT0, sWV))
            a("s_lshl_b32 s%d, s%d, 8" % (sT0, sT0))
            a("s_add_u32 s%d, s%d, 0x%x" % (sT0, sT0, TSO))
            a("v_lshlrev_b32 v1, 2, v%d" % vL)
            a("buffer_store_dword v%d, v1, %s, s%d offen" % (vTS, s(rWS, 4), sT0))
        a("s_waitcnt vmcnt(0) lgkmcnt(0)")
        a("s_endpgm")

    def srd(r, p, nbytes):
        a("s_mov_b32 s%d, s%d" % (r, p))
        a("s_and_b32 s%d, s%d, 0xffff" % (r + 1, p + 1))
        a("s_mov_b32 s%d, 0x%x" % (r + 2, nbytes))
        a("s_mov_b32 s%d, 0x20000" % (r + 3))

    npoll = [0]
    def poll(voffs, soffs, vdata):
        n = npoll[0]; npoll[0] += 1
        a("s_mov_b32 s%d, %d" % (sCNT, cfg.spin))
        a.label("L_poll%d" % n)
        for k, (vo, so) in enumerate(zip(voffs, soffs)):
            a("buffer_load_dword v%d, v%d, %s, s%d offen sc1" % (vdata + k, vo, s(rWS, 4), so))
        a.drain_vm()
        a("v_cmp_ne_u32 vcc, s%d, v%d" % (sTAG, vdata))
        for k in range(1, len(voffs)):
            a("v_cmp_ne_u32 s[14:15], s%d, v%d" % (sTAG, vdata + k))
            a("s_or_b64 vcc, vcc, s[14:15]")
        a("s_cmp_eq_u64 vcc, 0")
        a("s_cbranch_scc1 L_pollok%d" % n)
        a("s_sub_u32 s%d, s%d, 1" % (sCNT, sCNT))
        a("s_cmp_eq_u32 s%d, 0" % sCNT)
        a("s_cbranch_scc1 L_pollok%d" % n)
        a("s_sleep 1")
        a("s_branch L_poll%d" % n)
        a.label("L_pollok%d" % n)

    def flag_store(soff, vtmp0, vtmp1):
        a("v_mov_b32 v%d, s%d" % (vtmp0, sTAG))
        a("v_mov_b32 v%d, 0" % vtmp1)
        a("s_mov_b64 exec, 1")
        a("buffer_store_dword v%d, v%d, %s, s%d offen sc1" % (vtmp0, vtmp1, s(rWS, 4), soff), tag="flag")
        a("s_mov_b64 exec, -1")

    nl = [0]
    def lds_arrive(off, vt0, vt1):
        a("v_mov_b32 v%d, %d" % (vt0, CNT + off))
        a("v_mov_b32 v%d, 1" % vt1)
        a("s_mov_b64 exec, 1")
        a("ds_add_u32 v%d, v%d" % (vt0, vt1))
        a("s_mov_b64 exec, -1")

    def lds_wait(off, target, vt0, vt1):
        n = nl[0]; nl[0] += 1
        a("v_mov_b32 v%d, %d" % (vt0, CNT + off))
        a("s_mov_b32 s%d, 0x%x" % (sCNT, cfg.spin * 64))
        a.label("L_lw%d" % n)
        a("ds_read_b32 v%d, v%d" % (vt1, vt0))
        a.drain_lg()
        a("v_readfirstlane_b32 s%d, v%d" % (sT0, vt1))
        a("s_cmp_ge_u32 s%d, %d" % (sT0, target))
        a("s_cbranch_scc1 L_lwok%d" % n)
        a("s_sub_u32 s%d, s%d, 1" % (sCNT, sCNT))
        a("s_cmp_lg_u32 s%d, 0" % sCNT)
        a("s_cbranch_scc1 L_lw%d" % n)
        a.label("L_lwok%d" % n)

    a.label(NAME + "_kernel")
    a("s_cmp_ge_u32 s2, 256")
    a("s_cbranch_scc1 L_exit")
    a("s_load_dwordx16 s[16:31], s[0:1], 0")
    a("s_load_dwordx16 s[32:47], s[0:1], 64")
    a("s_load_dwordx2 s[48:49], s[0:1], 128")
    a("s_getpc_b64 s[%d:%d]" % (rCODE, rCODE + 1))
    a.label("L_pc")
    a("v_lshrrev_b32 v1, 6, v0")
    a("v_and_b32 v0, 63, v0")
    if cfg.ts:
        a("v_mov_b32 v%d, 0" % vTS)
    a("v_readfirstlane_b32 s%d, v1" % sWV)
    a("s_and_b32 s%d, s2, 7" % sX)
    a("s_lshr_b32 s%d, s2, 3" % sJ)
    a("s_mov_b32 s%d, 0xffff0000" % sMASK)
    a("s_and_b32 s%d, s%d, 0xffff" % (rCODE + 1, rCODE + 1))
    a("s_mov_b32 s%d, L_code_end-L_pc" % (rCODE + 2))
    a("s_mov_b32 s%d, 0x20000" % (rCODE + 3))
    a("s_cmp_lg_u32 s%d, 7" % sWV)
    a("s_cbranch_scc1 L_nopf")
    a("s_lshl_b32 s%d, s%d, 7" % (sT0, sJ))
    a("v_lshlrev_b32 v1, 12, v0")
    a("buffer_load_dword v14, v1, %s, s%d offen" % (s(rCODE, 4), sT0))
    a.label("L_nopf")
    a.vm = []
    a("v_lshlrev_b32 v2, 4, v0")
    a("v_lshlrev_b32 v3, 2, v0")
    a("s_lshl_b32 s%d, s2, 3" % sT0)
    a("s_add_u32 s%d, s%d, s%d" % (sT0, sT0, sWV))
    a("s_mul_i32 s%d, s%d, 1280" % (sT0, sT0))
    a("s_waitcnt lgkmcnt(0)")
    srd(rX, pX, 2621440)
    a("buffer_load_dwordx4 v[16:19], v2, %s, s%d offen" % (s(rX, 4), sT0), tag="x")
    a("buffer_load_dword v20, v3, %s, s%d offen offset:1024" % (s(rX, 4), sT0), tag="x")
    a("s_add_u32 s14, s%d, 0x%x" % (pWS, EW))
    a("s_addc_u32 s15, s%d, 0" % (pWS + 1))
    a("s_load_dword s7, s[14:15], 0")
    srd(rWS, pWS, WS_BYTES)
    srd(rW1, pW1, 2048 * 3072)
    srd(rW2, pW2, 1536 * 4096)
    srd(rOUT, pOUT, 2621440)
    stamp(0)
    a("s_and_b32 s%d, s%d, 1" % (sT0, sX))
    a("s_lshr_b32 s%d, s%d, 1" % (sT1, sX))
    a("s_mul_i32 s%d, s%d, 13" % (sT2, sJ))
    a("s_lshr_b32 s%d, s%d, 6" % (sT2, sT2))
    a("s_mul_i32 s%d, s%d, 5" % (sT3, sT2))
    a("s_sub_u32 s%d, s%d, s%d" % (sT3, sJ, sT3))
    a("s_mul_i32 s%d, s%d, 5" % (sDT, sT0))
    a("s_add_u32 s%d, s%d, s%d" % (sDT, sDT, sT3))
    a("s_mul_i32 s%d, s%d, 6" % (sFT, sT1))
    a("s_add_u32 s%d, s%d, s%d" % (sFT, sFT, sT2))
    a("s_mul_i32 s%d, s%d, 3" % (sROT1, sT3))
    a("s_and_b32 s%d, s%d, 1" % (sT2, sT2))
    a("s_lshl_b32 s%d, s%d, 3" % (sT2, sT2))
    a("s_add_u32 s%d, s%d, s%d" % (sROT1, sROT1, sT2))
    a("s_and_b32 s%d, s%d, 15" % (sROT1, sROT1))
    a("s_and_b32 s%d, s%d, 3" % (sT2, sJ))
    a("s_lshr_b32 s%d, s%d, 2" % (sT3, sJ))
    a("s_lshl_b32 s%d, s%d, 2" % (sDT2, sT0))
    a("s_add_u32 s%d, s%d, s%d" % (sDT2, sDT2, sT2))
    a("s_lshl_b32 s%d, s%d, 3" % (sST, sT1))
    a("s_add_u32 s%d, s%d, s%d" % (sST, sST, sT3))
    a("s_mul_i32 s%d, s%d, 3" % (sROT2, sT2))
    a("s_and_b32 s%d, s%d, 1" % (sT3, sT3))
    a("s_mul_i32 s%d, s%d, 6" % (sT3, sT3))
    a("s_add_u32 s%d, s%d, s%d" % (sROT2, sROT2, sT3))
    a("s_sub_u32 s%d, s%d, 12" % (sT3, sROT2))
    a("s_cmp_ge_u32 s%d, 12" % sROT2)
    a("s_cselect_b32 s%d, s%d, s%d" % (sROT2, sT3, sROT2))
    a("s_cmp_ge_u32 s%d, 4" % sWV)
    a("s_cbranch_scc1 L_aux_pre")

    vTR = [2, 3, 4, 5]
    vFO, vDO, vPO, vPD = 6, 7, 8, 9
    ACC1, STG1, WREG1 = 16, 80, 112
    ACC2, STG2, WREG2 = 16, 96, 136

    def dma_voff(rowbytes, gemm1):
        a("v_lshrrev_b32 v10, 3, v0")
        a("v_and_b32 v11, 6, v10")
        a("v_and_b32 v12, 7, v0")
        a("v_xor_b32 v12, v12, v11")
        a("v_lshlrev_b32 v12, 4, v12")
        if gemm1:
            a("v_and_b32 v11, 4, v10")
            a("v_add_u32 v10, v10, v11")
        a("s_mov_b32 s%d, %d" % (sT0, rowbytes))
        a("v_mul_lo_u32 v10, v10, s%d" % sT0)
        a("v_add_u32 v%d, v10, v12" % vDO)

    def dma_step(srdreg, slot, consts, stepbytes, tag):
        for b in range(4):
            a("s_add_u32 m0, s%d, %d" % (sWB, slot * 4096 + b * 1024))
            if consts[b]:
                a("s_add_u32 s%d, s%d, %d" % (sT0, sOW, consts[b]))
                so = sT0
            else:
                so = sOW
            a("buffer_load_dwordx4 v%d, %s, s%d offen lds" % (vDO, s(srdreg, 4), so), tag=tag)
        a("s_add_u32 s%d, s%d, %d" % (sOW, sOW, stepbytes))
        a("s_cmp_ge_u32 s%d, s%d" % (sOW, sOWE))
        a("s_cselect_b32 s%d, s%d, s%d" % (sOW, sOWB, sOW))

    C1 = [(16 * (b & 1) + 4 * (b >> 1)) * 3072 for b in range(4)]
    C2 = [8 * b * 4096 for b in range(4)]

    def tr_step(slot, wreg, tag):
        for n in range(4):
            for e in range(2):
                a("ds_read_b64_tr_b16 %s, v%d offset:%d" % (v(wreg + 4 * n + 2 * e, 2), vTR[n], slot * 4096 + e * 2048), tag=tag)

    a("s_setprio 2")
    a("s_mul_i32 s%d, s%d, %d" % (sWB, sWV, WSZ))
    a("s_add_u32 s%d, s%d, %d" % (sWB, sWB, WOFF))
    dma_voff(3072, True)
    a("s_mul_i32 s%d, s%d, %d" % (sOWB, sWV, 512 * 3072))
    a("s_lshl_b32 s%d, s%d, 7" % (sT0, sFT))
    a("s_add_u32 s%d, s%d, s%d" % (sOWB, sOWB, sT0))
    a("s_add_u32 s%d, s%d, %d" % (sOWE, sOWB, 512 * 3072))
    a("s_mul_i32 s%d, s%d, %d" % (sT0, sROT1, 32 * 3072))
    a("s_add_u32 s%d, s%d, s%d" % (sOW, sOWB, sT0))
    a("s_cmp_ge_u32 s%d, 30" % sJ)
    a("s_cbranch_scc1 L_gpre_nog1")
    for i in range(cfg.depth1):
        dma_step(rW1, i % 7, C1, 32 * 3072, "w%d" % i)
    gemm_vm_after_pre = ["w%d" % i for i in range(cfg.depth1) for _ in range(4)]
    a("s_waitcnt vmcnt(%d)" % (4 * cfg.depth1))
    a("s_branch L_ln")
    a.label("L_gpre_nog1")
    a("s_waitcnt vmcnt(0)")
    a("s_branch L_ln")

    a.label("L_aux_pre")
    a.vm = ["x", "x"]
    vPA = [4, 5, 6, 7, 8]
    PRM0, PRM1, vLDT, vDSK = 84, 90, 96, 97
    a("s_sub_u32 s%d, s%d, 4" % (sT0, sWV))
    a("s_mul_i32 s%d, s%d, %d" % (sRB, sT0, S))
    a("s_lshr_b32 s%d, s%d, 1" % (sT1, sJ))
    a("s_mul_i32 s%d, s%d, 5" % (sT1, sT1))
    a("s_and_b32 s%d, s%d, 1" % (sT2, sJ))
    a("s_mul_i32 s%d, s%d, 3" % (sT2, sT2))
    a("s_add_u32 s%d, s%d, s%d" % (sT1, sT1, sT2))
    a("s_add_u32 s%d, s%d, s%d" % (sT1, sT1, sT0))
    a("s_min_u32 s%d, s%d, 79" % (sT1, sT1))
    a("s_and_b32 s%d, s%d, 35" % (sT2, sT1))
    a("s_and_b32 s%d, s%d, 12" % (sT3, sT1))
    a("s_lshl_b32 s%d, s%d, 1" % (sT3, sT3))
    a("s_or_b32 s%d, s%d, s%d" % (sT2, sT2, sT3))
    a("s_and_b32 s%d, s%d, 16" % (sT3, sT1))
    a("s_lshr_b32 s%d, s%d, 2" % (sT3, sT3))
    a("s_or_b32 s%d, s%d, s%d" % (sT2, sT2, sT3))
    a("s_cmp_ge_u32 s%d, 64" % sT1)
    a("s_cselect_b32 s%d, s%d, s%d" % (sT2, sT1, sT2))
    a("s_mul_i32 s%d, s%d, 80" % (sT3, sX))
    a("s_add_u32 s%d, s%d, s%d" % (sPOS, sT3, sT1))
    a("s_add_u32 s%d, s%d, s%d" % (sCH, sT3, sT2))
    a("s_mul_i32 s%d, s%d, 384" % (sT0, sCH))
    a("v_add_u32 v10, s%d, v3" % sT0)
    a("v_lshlrev_b32 v11, 1, v0")
    a("v_add_u32 v11, s%d, v11" % sT0)
    a("s_lshl_b32 s%d, s%d, 1" % (sT0, sCH))
    a("v_mov_b32 v12, s%d" % sT0)
    for k, p in enumerate([pARE, pAIM, pBRE, pBIM, pCRE, pCIM]):
        a("global_load_dword v%d, v10, %s" % (PRM0 + k, s(p, 2)), tag="p")
        a("global_load_ushort v%d, v11, %s offset:256" % (PRM1 + k, s(p, 2)), tag="p")
    a("global_load_ushort v%d, v12, %s" % (vLDT, s(pLDT, 2)), tag="p")
    a("global_load_ushort v%d, v12, %s" % (vDSK, s(pDSK, 2)), tag="p")
    a("v_lshrrev_b32 v10, 4, v0")
    a("v_and_b32 v11, 3, v0")
    a("v_bfe_u32 v12, v0, 2, 2")
    a("s_movk_i32 s%d, 704" % sT0)
    a("v_mul_lo_u32 v12, v12, s%d" % sT0)
    a("v_add_u32 v12, s%d, v12" % sRB)
    for q in range(5):
        a("v_add_u32 v21, %d, v10" % (4 * q))
        a("v_mul_u32_u24 v22, 13, v21")
        a("v_lshrrev_b32 v22, 6, v22")
        a("v_mul_u32_u24 v23, 5, v22")
        a("v_sub_u32 v21, v21, v23")
        a("v_lshrrev_b32 v23, 1, v21")
        a("v_lshlrev_b32 v23, 5, v23")
        a("v_and_b32 v24, 1, v21")
        a("v_lshl_add_u32 v23, v24, 2, v23")
        a("v_lshlrev_b32 v24, 3, v11")
        a("v_lshlrev_b32 v25, 2, v11")
        a("v_cmp_eq_u32 vcc, 4, v21")
        a("v_cndmask_b32 v24, v24, v25, vcc")
        a("v_add_u32 v23, v23, v24")
        a("v_mul_u32_u24 v22, 80, v22")
        a("v_add_u32 v23, v23, v22")
        a("v_lshl_add_u32 v%d, v23, 1, v12" % vPA[q])
    a("v_mov_b32 v21, %d" % CNT)
    a("v_mov_b32 v22, 0")
    a("v_mov_b32 v23, 0")
    a("ds_write_b64 v21, v[22:23]")
    a.wait_vm("x")
    aux_vm_after_pre = list(a.vm)

    a.label("L_ln")
    a.fence() if False else None
    XF32, DT_ = 24, 34
    for k in range(5):
        a("v_lshlrev_b32 v%d, 16, v%d" % (XF32 + 2 * k, 16 + k))
        a("v_and_b32 v%d, s%d, v%d" % (XF32 + 2 * k + 1, sMASK, 16 + k))
    stamp(1)
    def reduce2(r1, r2, s1, s2):
        for ctl in ["row_shr:1", "row_shr:2", "row_shr:4", "row_shr:8"]:
            for r in (r1, r2):
                a("v_add_f32_dpp v%d, v%d, v%d %s row_mask:0xf bank_mask:0xf bound_ctrl:0" % (r, r, r, ctl))
        for r in (r1, r2):
            a("v_add_f32_dpp v%d, v%d, v%d row_bcast:15 row_mask:0xa bank_mask:0xf" % (r, r, r))
        for r in (r1, r2):
            a("v_add_f32_dpp v%d, v%d, v%d row_bcast:31 row_mask:0xc bank_mask:0xf" % (r, r, r))
        a("v_readlane_b32 s%d, v%d, 63" % (s1, r1))
        a("v_readlane_b32 s%d, v%d, 63" % (s2, r2))

    def bfround(r):
        a("v_cvt_pk_bf16_f32 v%d, v%d, v%d" % (r, r, r))
        a("v_and_b32 v%d, s%d, v%d" % (r, sMASK, r))

    def ln_pass(shift, outp, keep):
        src = XF32
        if shift:
            a("v_readfirstlane_b32 s14, v%d" % XF32)
            for i in range(10):
                a("v_subrev_f32 v%d, s14, v%d" % (DT_ + i, XF32 + i))
            src = DT_
        a("v_pk_add_f32 v[44:45], %s, %s" % (v(src, 2), v(src + 2, 2)))
        a("v_pk_mul_f32 v[46:47], %s, %s" % (v(src, 2), v(src, 2)))
        a("v_pk_add_f32 v[48:49], %s, %s" % (v(src + 4, 2), v(src + 6, 2)))
        a("v_pk_fma_f32 v[46:47], %s, %s, v[46:47]" % (v(src + 2, 2), v(src + 2, 2)))
        a("v_pk_add_f32 v[44:45], v[44:45], %s" % v(src + 8, 2))
        a("v_pk_mul_f32 v[50:51], %s, %s" % (v(src + 4, 2), v(src + 4, 2)))
        a("v_pk_fma_f32 v[46:47], %s, %s, v[46:47]" % (v(src + 8, 2), v(src + 8, 2)))
        a("v_pk_add_f32 v[44:45], v[44:45], v[48:49]")
        a("v_pk_fma_f32 v[50:51], %s, %s, v[50:51]" % (v(src + 6, 2), v(src + 6, 2)))
        a("v_add_f32 v44, v44, v45")
        a("v_pk_add_f32 v[46:47], v[46:47], v[50:51]")
        a("v_add_f32 v46, v46, v47")
        reduce2(44, 46, sT0, sT1)
        a("v_mov_b32 v45, %s" % f32(1.0 / 640))
        a("v_mul_f32 v44, s%d, v45" % sT0)
        a("v_mul_f32 v46, s%d, v45" % sT1)
        a("v_fma_f32 v46, -v44, v44, v46")
        if shift:
            a("v_add_f32 v44, s14, v44")
        a("v_max_f32 v46, 0, v46")
        a("v_cvt_pk_bf16_f32 v47, v44, v46")
        a("v_and_b32 v46, s%d, v47" % sMASK)
        a("v_lshlrev_b32 v44, 16, v47")
        a("v_add_f32 v46, %s, v46" % f32(1e-5))
        for k in range(5):
            a("v_pk_add_f32 %s, %s, v[44:45] op_sel_hi:[1,0] neg_lo:[0,1] neg_hi:[0,1]" % (v(DT_ + 2 * k, 2), v(XF32 + 2 * k, 2)))
            if k == 0:
                a("v_cvt_pk_bf16_f32 v46, v46, v46")
            if k == 1:
                a("v_and_b32 v46, s%d, v46" % sMASK)
            if k == 2:
                a("v_sqrt_f32 v46, v46")
            if k == 4:
                a("v_cvt_pk_bf16_f32 v46, v46, v46")
        for k in range(5):
            a("v_cvt_pk_bf16_f32 v%d, v%d, v%d" % (48 + k, DT_ + 2 * k, DT_ + 2 * k + 1))
            if k == 0:
                a("v_and_b32 v46, s%d, v46" % sMASK)
            if k == 1:
                a("v_rcp_f32 v46, v46")
        for k in range(5):
            a("v_lshlrev_b32 v%d, 16, v%d" % (DT_ + 2 * k, 48 + k))
            a("v_and_b32 v%d, s%d, v%d" % (DT_ + 2 * k + 1, sMASK, 48 + k))
        for k in range(5):
            a("v_pk_mul_f32 %s, %s, v[46:47] op_sel_hi:[1,0]" % (v(DT_ + 2 * k, 2), v(DT_ + 2 * k, 2)))
        for k in range(5):
            a("v_cvt_pk_bf16_f32 v%d, v%d, v%d" % (outp + k, DT_ + 2 * k, DT_ + 2 * k + 1))
        if keep:
            for k in range(5):
                a("v_lshlrev_b32 v%d, 16, v%d" % (XF32 + 2 * k, outp + k))
                a("v_and_b32 v%d, s%d, v%d" % (XF32 + 2 * k + 1, sMASK, outp + k))

    a("s_mul_i32 s%d, s%d, 704" % (sT2, sWV))
    a("v_lshlrev_b32 v60, 4, v0")
    a("v_add_u32 v61, %d, v60" % (S - 640))
    a("v_cmp_gt_u32 vcc, 40, v0")
    a("v_cndmask_b32 v60, v61, v60, vcc")
    a("v_add_u32 v60, s%d, v60" % sT2)
    a("s_add_u32 s%d, s%d, %d" % (sT2, sT2, S + 384))
    a("v_lshlrev_b32 v61, 2, v0")
    a("v_add_u32 v61, s%d, v61" % sT2)
    ln_pass(True, 16, True)
    a("ds_write_b128 v60, v[16:19] offset:%d" % (2 * S))
    a("ds_write_b32 v61, v20 offset:%d" % (2 * S))
    ln_pass(False, 56 - 4, False)
    a("ds_write_b128 v60, v[52:55]")
    a("ds_write_b32 v61, v56")
    a("s_waitcnt lgkmcnt(0)"); a.lg = []
    a("s_add_u32 s%d, s7, 0x9E3779B9" % sTAG)
    a("s_barrier")
    stamp(2)
    a("s_cmp_ge_u32 s%d, 4" % sWV)
    a("s_cbranch_scc1 L_aux_main")

    a.vm = list(gemm_vm_after_pre)
    a("v_lshrrev_b32 v10, 2, v0")
    a("v_bfe_u32 v11, v0, 3, 2")
    a("v_lshlrev_b32 v10, 7, v10")
    a("v_and_b32 v12, 3, v0")
    a("v_lshl_add_u32 v10, v12, 3, v10")
    a("v_add_u32 v10, s%d, v10" % sWB)
    for n in range(4):
        a("v_xor_b32 v12, %d, v11" % n)
        a("v_lshl_add_u32 v%d, v12, 5, v10" % vTR[n])
    a("v_lshrrev_b32 v10, 4, v0")
    a("v_mul_u32_u24 v10, 10240, v10")
    a("v_and_b32 v11, 15, v0")
    a("v_lshl_add_u32 v%d, v11, 4, v10" % vFO)
    a("s_cmp_ge_u32 s%d, 30" % sJ)
    a("s_cbranch_scc1 L_g2_pre_nog1")
    D1 = cfg.depth1
    for i in range(16):
        if i + D1 < 16:
            k = i + D1
            if k >= 7:
                a.wait_lg("t%d" % (k - 7))
            dma_step(rW1, k % 7, C1, 32 * 3072, "w%d" % k)
        if i < 9:
            a.wait_vm("w%d" % i)
            tr_step(i % 7, WREG1 + 16 * i, "t%d" % i)
        elif i + D1 < 16:
            a.wait_vm("w%d" % i)
    stamp(3)
    a("s_mul_i32 s%d, s%d, %d" % (sOAB, sWV, 64 * 10240))
    a("s_lshl_b32 s%d, s%d, 10" % (sT0, sDT))
    a("s_add_u32 s%d, s%d, s%d" % (sOAB, sOAB, sT0))
    if HB:
        a("s_add_u32 s%d, s%d, 0x%x" % (sOAB, sOAB, HB))
    a("s_add_u32 s%d, s%d, %d" % (sOAE, sOAB, 64 * 10240))
    a("s_mul_i32 s%d, s%d, %d" % (sT0, sROT1, 4 * 10240))
    a("s_add_u32 s%d, s%d, s%d" % (sOA, sOAB, sT0))
    for di in range(4):
        a("s_xor_b32 s%d, s%d, %d" % (sD[di], sWV, di))
        a("s_lshl_b32 s%d, s%d, 8" % (sD[di], sD[di]))
    a("v_lshlrev_b32 v%d, 7, v0" % vPO)
    a("s_and_b32 s%d, s%d, 1" % (sT1, sX))
    a("s_lshl_b32 s%d, s%d, 2" % (sT1, sT1))
    a("s_add_u32 s%d, s%d, s%d" % (sT1, sT1, sWV))
    a("s_lshl_b32 s%d, s%d, 13" % (sT1, sT1))
    a("s_add_u32 s%d, s%d, 0x%x" % (sT1, sT1, HF))
    poll([vPO], [sT1], vPD)
    a.drain_lg()
    stamp(4)

    def adv_a(stepbytes):
        a("s_add_u32 s%d, s%d, %d" % (sOA, sOA, stepbytes))
        a("s_cmp_ge_u32 s%d, s%d" % (sOA, sOAE))
        a("s_cselect_b32 s%d, s%d, s%d" % (sOA, sOAB, sOA))

    def hload(n):
        di = n & 3
        a("s_add_u32 s%d, s%d, s%d" % (sT1, sOA, sD[di]))
        a("buffer_load_dwordx4 %s, v%d, %s, s%d offen sc1" % (v(STG1 + 4 * (n & 7), 4), vFO, s(rWS, 4), sT1), tag="h%d" % n)
        if di == 3:
            adv_a(4 * 10240)

    def w2_setup():
        dma_voff(4096, False)
        a("s_mul_i32 s%d, s%d, %d" % (sOWB, sWV, 384 * 4096))
        a("s_lshl_b32 s%d, s%d, 7" % (sT0, sST))
        a("s_add_u32 s%d, s%d, s%d" % (sOWB, sOWB, sT0))
        a("s_add_u32 s%d, s%d, %d" % (sOWE, sOWB, 384 * 4096))
        a("s_mul_i32 s%d, s%d, %d" % (sT0, sROT2, 32 * 4096))
        a("s_add_u32 s%d, s%d, s%d" % (sOW, sOWB, sT0))

    def slot2(i):
        return (i + 3) % 7

    for n in range(8):
        hload(n)
    w2_setup()
    BIAS = WREG1 + 16 * 7
    for i in range(16):
        wr = WREG1 + 16 * (i if i < 9 else i - 9)
        if i >= 9:
            a.wait_lg("t%d" % i)
        for di in range(4):
            n = 4 * i + di
            a.wait_vm("h%d" % n)
            for fi in range(4):
                acc = v(ACC1 + 16 * di + 4 * fi, 4)
                a("v_mfma_f32_16x16x32_bf16 %s, %s, %s, %s" % (acc, v(wr + 4 * fi, 4), v(STG1 + 4 * (n & 7), 4), acc if i else "0"))
            if n + 8 < 64:
                hload(n + 8)
        if i + 9 < 16:
            tr_step((i + 9) % 7, wr, "t%d" % (i + 9))
        if i == 8:
            a("v_lshrrev_b32 v10, 4, v0")
            a("v_lshlrev_b32 v10, 3, v10")
            a("s_lshl_b32 s%d, s%d, 7" % (sT0, sFT))
            a("v_add_u32 v10, s%d, v10" % sT0)
            for fi in range(4):
                a("global_load_dwordx2 %s, v10, %s offset:%d" % (v(BIAS + 2 * fi, 2), s(pB1, 2), 32 * fi), tag="bias")
        if i == 13:
            dma_step(rW2, slot2(0), C2, 32 * 4096, "u0")
        if i == 14:
            dma_step(rW2, slot2(1), C2, 32 * 4096, "u1")
    stamp(5)
    a("v_lshlrev_b32 v10, 4, v0")
    a("v_add_u32 v11, s%d, v10" % sWB)
    for i in range(1, 4):
        for q in range(4):
            a("ds_write_b128 v11, %s offset:%d" % (v(ACC1 + 16 * i + 4 * q, 4), (i - 1) * 4096 + q * 1024))
    for i in range(1, 4):
        a("s_xor_b32 s%d, s%d, %d" % (sT0, sWV, i))
        a("s_mul_i32 s%d, s%d, %d" % (sT0, sT0, WSZ))
        a("s_add_u32 s%d, s%d, %d" % (sT0, sT0, WOFF))
        a("v_add_u32 v%d, s%d, v10" % (STG1 + i, sT0))
    a.drain_lg()
    lds_arrive(0, 12, 13)
    lds_wait(0, 4, 12, 13)
    for i in range(1, 4):
        for q in range(4):
            a("ds_read_b128 %s, v%d offset:%d" % (v(ACC1 + 16 * i + 4 * q, 4), STG1 + i, (i - 1) * 4096 + q * 1024), tag="r%d" % i)
    a("s_or_b32 s%d, s%d, s%d" % (sT0, sID, sWV))
    a("s_cmp_lg_u32 s%d, 0" % sT0)
    a("s_cbranch_scc1 L_noE")
    a("s_mov_b32 s%d, 0x%x" % (sT0, EW))
    nvm = list(a.vm)
    flag_store(sT0, 12, 13)
    a("s_waitcnt vmcnt(0)")
    a.vm = nvm
    a.label("L_noE")
    a.wait_vm("bias")
    BF = STG1 + 8
    for k in range(8):
        a("v_lshlrev_b32 v%d, 16, v%d" % (BF + 2 * k, BIAS + k))
        a("v_and_b32 v%d, s%d, v%d" % (BF + 2 * k + 1, sMASK, BIAS + k))
    a.wait_lg("r2")
    for k in range(8):
        a("v_pk_add_f32 %s, %s, %s" % (v(ACC1 + 2 * k, 2), v(ACC1 + 2 * k, 2), v(ACC1 + 16 + 2 * k, 2)))
    a.wait_lg("r3")
    lds_arrive(4, 12, 13)
    for k in range(8):
        a("v_pk_add_f32 %s, %s, %s" % (v(ACC1 + 32 + 2 * k, 2), v(ACC1 + 32 + 2 * k, 2), v(ACC1 + 48 + 2 * k, 2)))
    for k in range(8):
        a("v_pk_add_f32 %s, %s, %s" % (v(ACC1 + 2 * k, 2), v(ACC1 + 2 * k, 2), v(ACC1 + 32 + 2 * k, 2)))
    U_, T_, P_ = ACC1, ACC1 + 16, ACC1 + 32
    def round_pairs(base, tmp, n):
        for k in range(n):
            a("v_cvt_pk_bf16_f32 v%d, v%d, v%d" % (tmp + k, base + 2 * k, base + 2 * k + 1))
        for k in range(n):
            a("v_lshlrev_b32 v%d, 16, v%d" % (base + 2 * k, tmp + k))
            a("v_and_b32 v%d, s%d, v%d" % (base + 2 * k + 1, sMASK, tmp + k))
    round_pairs(U_, P_, 8)
    for k in range(8):
        a("v_pk_add_f32 %s, %s, %s" % (v(U_ + 2 * k, 2), v(U_ + 2 * k, 2), v(BF + 2 * k, 2)))
    round_pairs(U_, P_, 8)
    import math
    c0 = -2.0 * math.sqrt(2.0 / math.pi) * math.log2(math.e)
    c1 = c0 * 0.044715
    a("v_mov_b32 v12, %s" % f32(c1))
    a("v_mov_b32 v13, %s" % f32(c0))
    for k in range(8):
        a("v_pk_mul_f32 %s, %s, %s" % (v(T_ + 2 * k, 2), v(U_ + 2 * k, 2), v(U_ + 2 * k, 2)))
    for k in range(8):
        a("v_pk_fma_f32 %s, %s, v[12:13], v[12:13] op_sel:[0,0,1] op_sel_hi:[1,0,1]" % (v(T_ + 2 * k, 2), v(T_ + 2 * k, 2)))
    for k in range(8):
        a("v_pk_mul_f32 %s, %s, %s" % (v(T_ + 2 * k, 2), v(T_ + 2 * k, 2), v(U_ + 2 * k, 2)))
    for k in range(16):
        a("v_exp_f32 v%d, v%d" % (T_ + k, T_ + k))
    for k in range(8):
        a("v_pk_add_f32 %s, %s, 1.0 op_sel_hi:[1,0]" % (v(T_ + 2 * k, 2), v(T_ + 2 * k, 2)))
    for k in range(16):
        a("v_rcp_f32 v%d, v%d" % (T_ + k, T_ + k))
    for k in range(8):
        a("v_pk_mul_f32 %s, %s, %s" % (v(T_ + 2 * k, 2), v(T_ + 2 * k, 2), v(U_ + 2 * k, 2)))
    for k in range(8):
        a("v_cvt_pk_bf16_f32 v%d, v%d, v%d" % (P_ + k, T_ + 2 * k, T_ + 2 * k + 1))
    a("s_mul_i32 s%d, s%d, %d" % (sT1, sFT, 8 * 10240))
    a("s_lshl_b32 s%d, s%d, 10" % (sT2, sDT))
    a("s_add_u32 s%d, s%d, s%d" % (sT1, sT1, sT2))
    a("s_add_u32 s%d, s%d, s%d" % (sT1, sT1, sD[0]))
    a("s_add_u32 s%d, s%d, 0x%x" % (sT1, sT1, GB))
    a("s_add_u32 s%d, s%d, %d" % (sT2, sT1, 4 * 10240))
    a("buffer_store_dwordx4 %s, v%d, %s, s%d offen sc1" % (v(P_, 4), vFO, s(rWS, 4), sT1), tag="gs")
    a("buffer_store_dwordx4 %s, v%d, %s, s%d offen sc1" % (v(P_ + 4, 4), vFO, s(rWS, 4), sT2), tag="gs")
    stamp(6)
    dma_step(rW2, slot2(2), C2, 32 * 4096, "u2")
    dma_step(rW2, slot2(3), C2, 32 * 4096, "u3")
    a("s_lshl_b32 s%d, s%d, 2" % (sT1, sDT))
    a("s_add_u32 s%d, s%d, s%d" % (sT1, sT1, sWV))
    a("s_mul_i32 s%d, s%d, 24" % (sT1, sT1))
    a("s_add_u32 s%d, s%d, s%d" % (sT1, sT1, sFT))
    a("s_lshl_b32 s%d, s%d, 7" % (sT1, sT1))
    a("s_add_u32 s%d, s%d, 0x%x" % (sT1, sT1, GF))
    a.wait_vm("gs")
    flag_store(sT1, 12, 13)
    stamp(7)
    lds_wait(4, 4, 12, 13)
    a("s_branch L_g2_pre")
    vm_join = list(a.vm)
    a.label("L_g2_pre_nog1")
    a.vm = []
    w2_setup()
    for i in range(4):
        dma_step(rW2, slot2(i), C2, 32 * 4096, "u%d" % i)
    a("s_waitcnt vmcnt(8)")
    a("v_mov_b32 v12, 0")
    a("buffer_load_dword v13, v12, %s, 0 offen" % s(rWS, 4))
    a.label("L_g2_pre")
    a.vm = vm_join
    a.lg = []
    a("s_lshl_b32 s%d, s%d, 5" % (sT0, sWV))
    for n in range(4):
        a("v_xor_b32 v%d, s%d, v%d" % (vTR[n], sT0, vTR[n]))
    tr_step(slot2(0), WREG2, "q0")
    tr_step(slot2(1), WREG2 + 16, "q1")
    D2 = cfg.depth2
    issued = 4
    for i in range(2, 12):
        while issued < 12 and issued < i + D2 + 1 and issued <= i + D2:
            k = issued
            if k >= 7:
                a.wait_lg("q%d" % (k - 7))
            dma_step(rW2, slot2(k), C2, 32 * 4096, "u%d" % k)
            issued += 1
        if i < 7:
            a.wait_vm("u%d" % i)
            tr_step(slot2(i), WREG2 + 16 * i, "q%d" % i)
        elif issued < 12:
            a.wait_vm("u%d" % i)
    stamp(8)
    a("s_mul_i32 s%d, s%d, %d" % (sOAB, sWV, 48 * 10240))
    a("s_mul_i32 s%d, s%d, 1280" % (sT0, sDT2))
    a("s_add_u32 s%d, s%d, s%d" % (sOAB, sOAB, sT0))
    a("s_add_u32 s%d, s%d, 0x%x" % (sOAB, sOAB, GB))
    a("s_add_u32 s%d, s%d, %d" % (sOAE, sOAB, 48 * 10240))
    a("s_mul_i32 s%d, s%d, %d" % (sT0, sROT2, 4 * 10240))
    a("s_add_u32 s%d, s%d, s%d" % (sOA, sOAB, sT0))
    a("v_lshrrev_b32 v10, 3, v0")
    a("v_min_u32 v10, 4, v10")
    a("v_mul_u32_u24 v10, 24, v10")
    a("v_and_b32 v11, 7, v0")
    a("v_min_u32 v11, 5, v11")
    a("v_add_lshl_u32 v%d, v10, v11, 7" % vPO)
    a("s_mul_i32 s%d, s%d, 120" % (sT1, sDT2))
    a("s_mul_i32 s%d, s%d, 6" % (sT2, sWV))
    a("s_add_u32 s%d, s%d, s%d" % (sT1, sT1, sT2))
    a("s_lshl_b32 s%d, s%d, 7" % (sT1, sT1))
    a("s_add_u32 s%d, s%d, 0x%x" % (sT1, sT1, GF))
    poll([vPO], [sT1], vPD)
    a.drain_lg()
    stamp(9)

    def gload(n):
        mi = n % 5
        a("buffer_load_dwordx4 %s, v%d, %s, s%d offen offset:%d sc1" % (v(STG2 + 4 * (n % 10), 4), vFO, s(rWS, 4), sOA, 256 * mi), tag="g%d" % n)
        if mi == 4:
            adv_a(4 * 10240)

    for n in range(10):
        gload(n)
    XR = WREG2 + 16 * 5
    vXO, vXO4, vB2 = 10, 11, 14
    for i in range(12):
        wr = WREG2 + 16 * (i if i < 7 else i - 7)
        if i >= 7:
            a.wait_lg("q%d" % i)
        for mi in range(5):
            n = 5 * i + mi
            a.wait_vm("g%d" % n)
            for ni in range(4):
                acc = v(ACC2 + 20 * ni + 4 * mi, 4)
                a("v_mfma_f32_16x16x32_bf16 %s, %s, %s, %s" % (acc, v(STG2 + 4 * (n % 10), 4), v(wr + 4 * ni, 4), acc if i else "0"))
            if n + 10 < 60:
                gload(n + 10)
        if i + 7 < 12:
            tr_step(slot2(i + 7), wr, "q%d" % (i + 7))
        if i == 6:
            a("v_and_b32 v12, 15, v0")
            a("v_lshrrev_b32 v13, 4, v0")
            a("v_mul_u32_u24 v%d, 1280, v12" % vXO)
            a("v_lshl_add_u32 v%d, v13, 3, v%d" % (vXO4, vXO))
            a("v_lshl_add_u32 v%d, v13, 4, v%d" % (vXO, vXO))
            a("s_lshl_b32 s%d, s%d, 2" % (sT2, sST))
            a("s_add_u32 s%d, s%d, s%d" % (sT2, sT2, sWV))
            a("s_lshl_b32 s%d, s%d, 4" % (sT2, sT2))
            a("s_mul_i32 s%d, s%d, 1280" % (sD[1], sT2))
            a("s_mul_i32 s%d, s%d, 160" % (sT3, sDT2))
            a("s_add_u32 s%d, s%d, s%d" % (sD[1], sD[1], sT3))
            a("buffer_load_dwordx4 %s, v%d, %s, s%d offen" % (v(XR, 4), vXO, s(rX, 4), sD[1]), tag="xt")
            a("buffer_load_dwordx4 %s, v%d, %s, s%d offen offset:64" % (v(XR + 4, 4), vXO, s(rX, 4), sD[1]), tag="xt")
            a("buffer_load_dwordx2 %s, v%d, %s, s%d offen offset:128" % (v(XR + 8, 2), vXO4, s(rX, 4), sD[1]), tag="xt")
            a("v_add_lshl_u32 v12, s%d, v12, 1" % sT2)
            a("global_load_ushort v%d, v12, %s" % (vB2, s(pB2, 2)), tag="xt")
    stamp(10)
    a("v_lshlrev_b32 v12, 4, v0")
    a("v_add_u32 v13, s%d, v12" % sWB)
    for i in range(1, 4):
        for q in range(5):
            a("ds_write_b128 v13, %s offset:%d" % (v(ACC2 + 20 * i + 4 * q, 4), (i - 1) * 5120 + q * 1024))
    for i in range(1, 4):
        a("s_xor_b32 s%d, s%d, %d" % (sT0, sWV, i))
        a("s_mul_i32 s%d, s%d, %d" % (sT0, sT0, WSZ))
        a("s_add_u32 s%d, s%d, %d" % (sT0, sT0, WOFF))
        a("v_add_u32 v%d, s%d, v12" % (STG2 + i, sT0))
    a("v_lshrrev_b32 v12, 2, v0")
    a("v_lshlrev_b32 v12, 7, v12")
    a("v_and_b32 v13, 3, v0")
    a("v_lshl_add_u32 v12, v13, 3, v12")
    a("s_lshl_b32 s%d, s%d, 5" % (sT0, sWV))
    a("s_add_u32 s%d, s%d, %d" % (sT0, sT0, RY))
    a("v_add_u32 v%d, s%d, v12" % (STG2, sT0))
    a.drain_lg()
    a("s_barrier")
    YR = XR + 12
    for i in range(1, 4):
        for q in range(5):
            a("ds_read_b128 %s, v%d offset:%d" % (v(ACC2 + 20 * i + 4 * q, 4), STG2 + i, (i - 1) * 5120 + q * 1024), tag="r%d" % i)
        if i == 1:
            for mi in range(5):
                a("ds_read_b64_tr_b16 %s, v%d offset:%d" % (v(YR + 2 * mi, 2), STG2, mi * 2048), tag="ya")
    TX, TY, TP = STG2 + 4, WREG2, WREG2 + 20
    a.wait_vm("xt")
    for k in range(10):
        a("v_lshlrev_b32 v%d, 16, v%d" % (TX + 2 * k, XR + k))
        a("v_and_b32 v%d, s%d, v%d" % (TX + 2 * k + 1, sMASK, XR + k))
    a("v_lshlrev_b32 v%d, 16, v%d" % (vB2, vB2))
    a.wait_lg("ya")
    for k in range(10):
        a("v_lshlrev_b32 v%d, 16, v%d" % (TY + 2 * k, YR + k))
        a("v_and_b32 v%d, s%d, v%d" % (TY + 2 * k + 1, sMASK, YR + k))
    for k in range(10):
        a("v_pk_add_f32 %s, %s, %s" % (v(ACC2 + 2 * k, 2), v(ACC2 + 2 * k, 2), v(ACC2 + 20 + 2 * k, 2)))
    for k in range(10):
        a("v_pk_add_f32 %s, %s, %s" % (v(TX + 2 * k, 2), v(TX + 2 * k, 2), v(TY + 2 * k, 2)))
    round_pairs(TX, TP, 10)
    a.wait_lg("r3")
    for k in range(10):
        a("v_pk_add_f32 %s, %s, %s" % (v(ACC2 + 40 + 2 * k, 2), v(ACC2 + 40 + 2 * k, 2), v(ACC2 + 60 + 2 * k, 2)))
    for k in range(10):
        a("v_pk_add_f32 %s, %s, %s" % (v(ACC2 + 2 * k, 2), v(ACC2 + 2 * k, 2), v(ACC2 + 40 + 2 * k, 2)))
    round_pairs(ACC2, TP, 10)
    for k in range(10):
        a("v_pk_add_f32 %s, %s, v[%d:%d] op_sel_hi:[1,0]" % (v(ACC2 + 2 * k, 2), v(ACC2 + 2 * k, 2), vB2, vB2 + 1))
    round_pairs(ACC2, TP, 10)
    for k in range(10):
        a("v_pk_add_f32 %s, %s, %s" % (v(ACC2 + 2 * k, 2), v(ACC2 + 2 * k, 2), v(TX + 2 * k, 2)))
    for k in range(10):
        a("v_cvt_pk_bf16_f32 v%d, v%d, v%d" % (TP + k, ACC2 + 2 * k, ACC2 + 2 * k + 1))
    pol = (" " + cfg.out_pol) if cfg.out_pol else ""
    a("buffer_store_dwordx4 %s, v%d, %s, s%d offen%s" % (v(TP, 4), vXO, s(rOUT, 4), sD[1], pol))
    a("buffer_store_dwordx4 %s, v%d, %s, s%d offen offset:64%s" % (v(TP + 4, 4), vXO, s(rOUT, 4), sD[1], pol))
    a("buffer_store_dwordx2 %s, v%d, %s, s%d offen offset:128%s" % (v(TP + 8, 2), vXO4, s(rOUT, 4), sD[1], pol))
    stamp(11)
    finish()

    a.label("L_aux_main")
    a.vm = list(aux_vm_after_pre); a.lg = []
    for q in range(5):
        a("ds_read_b64_tr_b16 %s, v%d" % (v(16 + 4 * q, 2), vPA[q]), tag="p%d" % q)
        a("ds_read_b64_tr_b16 %s, v%d offset:2816" % (v(18 + 4 * q, 2), vPA[q]), tag="p%d" % q)
    a("s_sub_u32 s%d, s%d, 4" % (sT0, sWV))
    a("s_lshr_b32 s%d, s%d, 1" % (sT1, sT0))
    a("s_and_b32 s%d, s%d, 1" % (sT0, sT0))
    a("s_mul_i32 s%d, s%d, 0x%x" % (sT2, sT1, XB))
    a("s_mul_i32 s%d, s%d, 10240" % (sT3, sID))
    a("s_add_u32 s%d, s%d, s%d" % (sT2, sT2, sT3))
    a("s_mul_i32 s%d, s%d, 5120" % (sT3, sT0))
    a("s_add_u32 s%d, s%d, s%d" % (sT2, sT2, sT3))
    a("s_add_u32 s%d, s%d, 4096" % (sT3, sT2))
    for q in range(5):
        a.wait_lg("p%d" % q)
        if q < 4:
            a("buffer_store_dwordx4 %s, v2, %s, s%d offen offset:%d sc1" % (v(16 + 4 * q, 4), s(rWS, 4), sT2, 1024 * q), tag="st")
        else:
            a("buffer_store_dwordx4 %s, v2, %s, s%d offen sc1" % (v(16 + 4 * q, 4), s(rWS, 4), sT3), tag="st")
    a("s_lshl_b32 s%d, s%d, 16" % (sT1, sT1))
    a("s_lshl_b32 s%d, s%d, 8" % (sT0, sT0))
    a("s_add_u32 s%d, s%d, s%d" % (sT0, sT0, sID))
    a("s_lshl_b32 s%d, s%d, 7" % (sT0, sT0))
    a("s_add_u32 s%d, s%d, s%d" % (sT1, sT1, sT0))
    a("s_add_u32 s%d, s%d, 0x%x" % (sT1, sT1, HF))
    F0 = 64
    a.wait_vm("p")
    for k in range(6):
        a("v_lshlrev_b32 v%d, 16, v%d" % (F0 + k, PRM0 + k))
        a("v_and_b32 v%d, s%d, v%d" % (F0 + 6 + k, sMASK, PRM0 + k))
        a("v_lshlrev_b32 v%d, 16, v%d" % (F0 + 12 + k, PRM1 + k))
    vDT, vDS = 82, 83
    a("v_lshlrev_b32 v%d, 16, v%d" % (vDT, vLDT))
    a("v_lshlrev_b32 v%d, 16, v%d" % (vDS, vDSK))
    a("v_mul_f32 v%d, %s, v%d" % (vDT, f32(math.log2(math.e)), vDT))
    a("v_exp_f32 v%d, v%d" % (vDT, vDT))
    bfround(vDT)
    a.drain_vm()
    flag_store(sT1, 12, 13)
    stamp(3)
    a("s_cmp_eq_u32 s%d, 7" % sWV)
    a("s_cbranch_scc1 L_w7")
    a("s_and_b32 s%d, s%d, 1" % (sT0, sJ))
    a("s_add_u32 s%d, s%d, s%d" % (sT0, sT0, sWV))
    a("s_cmp_ge_u32 s%d, 7" % sT0)
    a("s_cbranch_scc1 L_aux_done")

    E = {k: 84 + 2 * (k - 1) for k in range(1, 8)}
    P = {k: 98 + 2 * (k - 1) for k in range(1, 9)}
    Q, Q2 = 114, 116
    Y = [118, 120, 122, 124]
    TT = [126, 128, 130, 132]
    CV = list(range(134, 142))
    YFR, XFR, DK = 144, 160, 208
    vFA = 220
    cvi = [0]
    def cmul1(d, x, y):
        a("v_pk_mul_f32 %s, %s, %s op_sel:[0,0] op_sel_hi:[0,1]" % (v(d, 2), v(x, 2), v(y, 2)))
    def cmul2(d, x, y):
        a("v_pk_fma_f32 %s, %s, %s, %s op_sel:[1,1,0] op_sel_hi:[1,0,1] neg_lo:[1,0,0]" % (v(d, 2), v(x, 2), v(y, 2), v(d, 2)))
    def put(r, row, neg=False):
        c = CV[cvi[0] % 8]; cvi[0] += 1
        a("v_cvt_pk_bf16_f32 v%d, v%d, %sv%d" % (c, r, "-" if neg else "", r + 1))
        return ("w", c, row)
    def wr(c, row):
        a("ds_write_addtid_b32 v%d offset:%d" % (c, row * 288))
    def group(ops):
        for d, x, y, row, neg in ops:
            cmul1(d, x, y)
        for d, x, y, row, neg in ops:
            cmul2(d, x, y)
        pend = []
        for d, x, y, row, neg in ops:
            if row is not None:
                pend.append(put(d, row, neg))
        for _, c, row in pend:
            wr(c, row)

    a("s_mov_b32 m0, s%d" % sRB)
    a("v_and_b32 v1, 15, v0")
    a("v_mul_u32_u24 v1, 288, v1")
    a("v_and_b32 v%d, 48, v0" % vFA)
    a("v_add3_u32 v%d, v%d, v1, s%d" % (vFA, vFA, sRB))
    for k in range(12):
        a("v_mov_b32 v%d, 0" % (DK + k))
    a("v_mov_b32 v143, 0x3f80")
    a("s_mov_b32 s%d, 3" % sT3)
    a.label("L_kgen")
    a.lg = []
    a("v_pk_mul_f32 v[126:127], v[64:65], v[82:83] op_sel_hi:[1,0]")
    a("v_pk_mul_f32 v[128:129], v[66:67], v[82:83] op_sel_hi:[1,0]")
    a("v_mul_f32 v126, %s, v126" % f32(math.log2(math.e)))
    a("v_mul_f32 v127, 0.15915494, v127")
    cmul1(Y[0], 68, 128)
    anchors = [(E[1], 1.0), (Q, 8.0), (P[1], 128.0)]
    for idx, (d, k) in enumerate(anchors):
        m_, f_ = 134 + 2 * idx, 135 + 2 * idx
        if k == 1.0:
            a("v_exp_f32 v%d, v126" % m_)
            a("v_fract_f32 v%d, v127" % f_)
        else:
            a("v_mul_f32 v%d, %s, v126" % (m_, f32(k)))
            a("v_mul_f32 v%d, %s, v127" % (f_, f32(k)))
            a("v_exp_f32 v%d, v%d" % (m_, m_))
            a("v_fract_f32 v%d, v%d" % (f_, f_))
    cmul2(Y[0], 68, 128)
    for idx, (d, k) in enumerate(anchors):
        a("v_cos_f32 v%d, v%d" % (d, 135 + 2 * idx))
        a("v_sin_f32 v%d, v%d" % (d + 1, 135 + 2 * idx))
    for idx, (d, k) in enumerate(anchors):
        a("v_pk_mul_f32 %s, %s, %s op_sel_hi:[1,0]" % (v(d, 2), v(d, 2), v(134 + 2 * idx, 2)))
    for k in range(12):
        a("v_mov_b32 v%d, v%d" % (F0 + k, F0 + 6 + k))
    YR0 = 25
    wr(143, 0)
    p_ = [put(Y[0], YR0, True), put(E[1], 1), put(P[1], 8)]
    for _, c, row in p_:
        wr(c, row)
    group([(Y[1], Y[0], Q, YR0 + 1, True), (Q2, Q, Q, None, False), (E[2], E[1], E[1], 2, False), (P[2], P[1], P[1], 16, False)])
    group([(Y[2], Y[0], Q2, YR0 + 2, True), (Y[3], Y[1], Q2, YR0 + 3, True), (E[3], E[2], E[1], 3, False), (E[4], E[2], E[2], 4, False)])
    group([(Y[0], Y[2], Q2, YR0 + 4, True), (Y[1], Y[3], Q2, YR0 + 5, True), (E[5], E[4], E[1], 5, False), (E[6], E[4], E[2], 6, False)])
    group([(Y[2], Y[0], Q2, YR0 + 6, True), (Y[3], Y[1], Q2, YR0 + 7, True), (E[7], E[4], E[3], 7, False), (P[3], P[2], P[1], 20, False)])
    group([(Y[0], Y[2], Q2, YR0 + 8, True), (Y[1], Y[3], Q2, YR0 + 9, True), (TT[0], P[1], E[1], 9, False), (TT[1], P[1], E[2], 10, False)])
    group([(Y[2], Y[0], Q2, YR0 + 10, True), (Y[3], Y[1], Q2, YR0 + 11, True), (TT[0], P[1], E[3], 11, False), (TT[1], P[1], E[4], 12, False)])
    group([(Y[0], Y[2], Q2, YR0 + 12, True), (Y[1], Y[3], Q2, YR0 + 13, True), (TT[0], P[1], E[5], 13, False), (TT[1], P[1], E[6], 14, False)])
    group([(Y[2], Y[0], Q2, YR0 + 14, True), (Y[3], Y[1], Q2, YR0 + 15, True), (TT[0], P[1], E[7], 15, False), (P[4], P[2], P[2], 24, False)])
    for st in range(4):
        a("ds_read_b128 %s, v%d offset:%d" % (v(YFR + 4 * st, 4), vFA, YR0 * 288 + 64 * st), tag="yf")
    for st in range(4):
        a("ds_read_b128 %s, v%d offset:%d" % (v(XFR + 4 * st, 4), vFA, 64 * st), tag="x0")
    group([(TT[0], P[2], E[2], 17, False), (TT[1], P[2], E[4], 18, False), (TT[2], P[2], E[6], 19, False), (P[5], P[4], P[1], 26, False)])
    group([(TT[0], P[3], E[2], 21, False), (TT[1], P[3], E[4], 22, False), (TT[2], P[3], E[6], 23, False), (P[6], P[4], P[2], 28, False)])
    a.wait_lg("x0")
    for st in range(4):
        a("v_mfma_f32_16x16x32_bf16 %s, %s, %s, %s" % (v(DK, 4), v(XFR + 4 * st, 4), v(YFR + 4 * st, 4), v(DK, 4)))
    group([(P[7], P[4], P[3], 30, False), (P[8], P[4], P[4], 32, False), (TT[0], P[4], E[4], 25, False), (TT[1], P[5], E[4], 27, False)])
    group([(TT[0], P[6], E[4], 29, False), (TT[1], P[7], E[4], 31, False), (TT[2], P[8], P[1], 33, False), (TT[3], P[8], P[2], 34, False)])
    for st in range(4):
        a("ds_read_b128 %s, v%d offset:%d" % (v(XFR + 16 + 4 * st, 4), vFA, 16 * 288 + 64 * st), tag="x1")
    group([(TT[0], P[8], P[3], 35, False), (TT[1], P[8], P[4], 36, False), (TT[2], P[8], P[5], 37, False)])
    group([(TT[0], P[8], P[6], 38, False), (TT[1], P[8], P[7], 39, False), (TT[2], P[8], P[8], 40, False)])
    for st in range(4):
        a("ds_read_b128 %s, v%d offset:%d" % (v(XFR + 32 + 4 * st, 4), vFA, 32 * 288 + 64 * st), tag="x2")
    a.wait_lg("x1")
    for st in range(4):
        a("v_mfma_f32_16x16x32_bf16 %s, %s, %s, %s" % (v(DK + 4, 4), v(XFR + 16 + 4 * st, 4), v(YFR + 4 * st, 4), v(DK + 4, 4)))
    a.wait_lg("x2")
    for st in range(4):
        a("v_mfma_f32_16x16x32_bf16 %s, %s, %s, %s" % (v(DK + 8, 4), v(XFR + 32 + 4 * st, 4), v(YFR + 4 * st, 4), v(DK + 8, 4)))
    a("s_sub_u32 s%d, s%d, 1" % (sT3, sT3))
    a("s_cmp_lg_u32 s%d, 0" % sT3)
    a("s_cbranch_scc1 L_kgen")
    stamp(4)
    a("v_and_b32 v16, 15, v0")
    a("v_lshrrev_b32 v17, 4, v0")
    a("s_add_u32 s%d, s%d, %d" % (sT0, sRB, TB_OFF))
    a("v_lshrrev_b32 v18, 1, v17")
    a("v_lshlrev_b32 v18, 7, v18")
    a("v_and_b32 v19, 1, v17")
    a("v_lshl_add_u32 v18, v19, 2, v18")
    a("v_lshl_add_u32 v18, v16, 3, v18")
    a("v_lshl_add_u32 v18, v18, 2, s%d" % sT0)
    a("v_lshlrev_b32 v19, 2, v16")
    a("v_lshlrev_b32 v20, 1, v16")
    a("v_cmp_gt_u32 vcc, 2, v17")
    a("v_cndmask_b32 v19, v20, v19, vcc")
    a("v_lshl_add_u32 v19, v17, 6, v19")
    a("v_lshl_add_u32 v19, v19, 2, s%d" % sT0)
    a("v_mov_b32 v20, 128")
    a("v_cndmask_b32 v20, v20, 8, vcc")
    a("v_add_u32 v20, v19, v20")
    a("v_lshl_add_u32 v21, v17, 6, v16")
    a("v_lshl_add_u32 v21, v21, 2, s%d" % sT0)
    a("v_lshlrev_b32 v22, 4, v0")
    a("v_add_u32 v22, %d, v22" % ZP_OFF)
    a("v_mov_b32 v23, 4096")
    a("v_cmp_gt_u32 vcc, 15, v0")
    a("v_cndmask_b32 v22, v23, v22, vcc")
    a("v_add_u32 v22, s%d, v22" % sRB)
    for k in range(4):
        a("v_mov_b32 v%d, 0" % (24 + k))
    a("ds_write_b128 v22, v[24:27]")
    a("ds_write_b128 v18, %s" % v(DK, 4))
    a("ds_write_b64 v19, %s offset:1024" % v(DK + 4, 2))
    a("ds_write_b64 v20, %s offset:1024" % v(DK + 6, 2))
    for r in range(4):
        a("ds_write_b32 v21, v%d offset:%d" % (DK + 8 + r, 2048 + 64 * r))
    a("v_lshl_add_u32 v18, v0, 4, s%d" % sT0)
    a("v_lshl_add_u32 v19, v0, 3, s%d" % sT0)
    a("v_subrev_u32 v20, 4, v18")
    a("v_subrev_u32 v21, 4, v19")
    a("v_cmp_eq_u32 vcc, 0, v0")
    a("v_cndmask_b32 v21, v19, v21, vcc")
    a("ds_read_b128 v[28:31], v18", tag="s0")
    a("ds_read_b32 v32, v20", tag="s0")
    a("ds_read_b64 v[34:35], v19 offset:1024", tag="s1")
    a("ds_read_b32 v36, v19 offset:1032", tag="s1")
    a("ds_read_b32 v37, v21 offset:1024", tag="s1")
    a("ds_read_b64 v[38:39], v19 offset:1536", tag="s2")
    a("ds_read_b32 v40, v19 offset:1544", tag="s2")
    a("ds_read_b64 v[42:43], v19 offset:2048", tag="s3")
    a("ds_read_b32 v44, v19 offset:2056", tag="s3")
    a("v_lshlrev_b32 v22, 3, v0")
    a("v_sub_u32 v22, s%d, v22" % sRB)
    a("v_lshlrev_b32 v23, 4, v0")
    a("v_sub_u32 v23, s%d, v23" % sRB)
    a("v_lshlrev_b32 v24, 5, v0")
    a("v_sub_u32 v24, s%d, v24" % sRB)
    a("v_add_u32 v22, %d, v22" % (4096 - 512 - 8))
    a("v_add_u32 v23, %d, v23" % (4096 - 1024 - 16))
    a("v_add_u32 v24, %d, v24" % (4096 - 2048 - 32))
    def pk(d, lo, hi):
        a("v_cvt_pk_bf16_f32 v%d, v%d, v%d" % (d, lo, hi))
    a.wait_lg("s0")
    pk(48, 31, 30); pk(49, 29, 28); pk(50, 30, 29); pk(51, 28, 32)
    a("ds_write_b64 v22, v[48:49] offset:512")
    a("ds_write_b64 v22, v[50:51] offset:%d" % (512 + KB_OFF))
    a.wait_lg("s1")
    pk(52, 36, 35); pk(53, 34, 34); pk(54, 35, 34); pk(55, 34, 37)
    a("ds_write_b64 v22, v[52:53]")
    a("ds_write_b64 v22, v[54:55] offset:%d" % KB_OFF)
    a.wait_lg("s2")
    A_, B_, C_ = 38, 39, 40
    pk(56, C_, C_); pk(57, B_, B_); pk(58, B_, A_); pk(59, A_, A_)
    pk(60, C_, B_); pk(61, B_, B_); pk(62, A_, A_); pk(63, A_, A_)
    a("ds_write_b128 v23, v[56:59]")
    a("ds_write_b128 v23, v[60:63] offset:%d" % KB_OFF)
    a.wait_lg("s3")
    A_, B_, C_ = 42, 43, 44
    seqA = [(C_, C_), (C_, C_), (B_, B_), (B_, B_), (B_, B_), (B_, A_), (A_, A_), (A_, A_)]
    seqB = [(C_, C_), (C_, B_), (B_, B_), (B_, B_), (B_, B_), (A_, A_), (A_, A_), (A_, A_)]
    for k, (lo, hi) in enumerate(seqA):
        pk(64 + k, lo, hi)
    for k, (lo, hi) in enumerate(seqB):
        pk(72 + k, lo, hi)
    a("ds_write_b128 v24, v[64:67]")
    a("ds_write_b128 v24, v[68:71] offset:16")
    a("ds_write_b128 v24, v[72:75] offset:%d" % KB_OFF)
    a("ds_write_b128 v24, v[76:79] offset:%d" % (KB_OFF + 16))
    a("v_mov_b32 v221, v%d" % vDS)
    stamp(5)
    a("v_lshlrev_b32 v8, 7, v0")
    a("s_lshr_b32 s%d, s%d, 2" % (sT0, sX))
    a("s_lshl_b32 s%d, s%d, 15" % (sT0, sT0))
    a("s_add_u32 s%d, s%d, 0x%x" % (sD[0], sT0, XF))
    for k in range(1, 4):
        a("s_add_u32 s%d, s%d, %d" % (sD[k], sD[0], 8192 * k))
    poll([8, 8, 8, 8], sD, 16)
    stamp(6)
    a("v_mul_u32_u24 v8, 10240, v0")
    a("s_lshl_b32 s%d, s%d, 4" % (sT0, sPOS))
    a("s_add_u32 s%d, s%d, 0x%x" % (sT0, sT0, XB))
    for k in range(4):
        a("buffer_load_dwordx4 %s, v8, %s, s%d offen sc1" % (v(16 + 4 * k, 4), s(rWS, 4), sT0), tag="u%d" % k)
        if k < 3:
            a("s_add_u32 s%d, s%d, %d" % (sT0, sT0, 64 * 10240))
    a("v_add_u32 v9, s%d, v2" % sRB)
    vUA, vKA = 10, 11
    a("v_and_b32 v12, 15, v0")
    a("v_lshrrev_b32 v13, 4, v0")
    a("v_lshlrev_b32 v13, 1, v13")
    a("v_sub_u32 v12, v12, v13")
    a("v_lshlrev_b32 v12, 4, v12")
    a("s_add_u32 s%d, s%d, %d" % (sT1, sRB, U_OFF - 128))
    a("v_add_u32 v%d, s%d, v12" % (vUA, sT1))
    a("v_lshrrev_b32 v12, 1, v0")
    a("v_lshlrev_b32 v12, 2, v12")
    a("v_and_b32 v13, 1, v0")
    a("v_mul_u32_u24 v13, %d, v13" % KB_OFF)
    a("v_add_u32 v12, v12, v13")
    a("s_add_u32 s%d, s%d, %d" % (sT1, sRB, KB_OFF + 4092 - 128 - 768))
    a("v_sub_u32 v%d, s%d, v12" % (vKA, sT1))
    for g in range(1, 4):
        a("v_subrev_u32 v%d, %d, v%d" % (vKA + g, 1024 * g, vKA))
    for k in range(4):
        a.wait_vm("u%d" % k)
        a("ds_write_b128 v9, %s offset:%d" % (v(16 + 4 * k, 4), U_OFF + 1024 * k))
    stamp(7)
    AC, UF, KF = 16, 80, 144
    def uread(c, mu):
        a("ds_read_b128 %s, v%d offset:%d" % (v(UF + 4 * mu, 4), vUA, 128 * (1 - c) + 256 * mu), tag="U%d_%d" % (c, mu))
    def kread(idx):
        c, tau = idx >> 4, idx & 15
        o = 192 - 64 * (tau & 3) + 32 * (1 - c)
        r = KF + 4 * (idx & 3)
        a("ds_read2_b32 %s, v%d offset0:%d offset1:%d" % (v(r, 2), vKA + (tau >> 2), o, o + 1), tag="K%d" % idx)
        a("ds_read2_b32 %s, v%d offset0:%d offset1:%d" % (v(r + 2, 2), vKA + (tau >> 2), o + 2, o + 3), tag="K%d" % idx)
    kread(0)
    for mu in range(16):
        uread(0, mu)
        if mu == 7:
            a.wait_lg("U0_1")
    kread(1); kread(2)
    for idx in range(32):
        c, tau = idx >> 4, idx & 15
        a.wait_lg("K%d" % idx)
        if idx + 3 < 32:
            kread(idx + 3)
        order = list(range(16 - tau))
        if c == 1 and tau == 0:
            order = order[::-1]
        for mu in order:
            if tau == 0:
                a.wait_lg("U%d_%d" % (c, mu))
            acc = v(AC + 4 * (tau + mu), 4)
            a("v_mfma_f32_16x16x32_bf16 %s, %s, %s, %s" % (acc, v(KF + 4 * (idx & 3), 4), v(UF + 4 * mu, 4), acc if idx else "0"))
        if c == 0:
            uread(1, 15 - tau)
    stamp(8)
    a("v_and_b32 v8, 15, v0")
    a("v_lshlrev_b32 v8, 4, v8")
    a("v_lshrrev_b32 v9, 5, v0")
    a("v_lshl_add_u32 v8, v9, 11, v8")
    a("v_bfe_u32 v9, v0, 4, 1")
    a("v_lshl_add_u32 v10, v9, 3, v8")
    a("s_add_u32 s%d, s%d, %d" % (sT0, sRB, U_OFF))
    a("v_add_u32 v10, s%d, v10" % sT0)
    a("v_lshl_add_u32 v11, v9, 8, v8")
    XN = 80
    for m in range(8):
        a("ds_read_b64 %s, v10 offset:%d" % (v(XN + 2 * m, 2), 256 * m), tag="xn")
    for m in range(8):
        for r in range(4):
            a("v_permlane32_swap_b32 v%d, v%d" % (AC + 4 * m + r, AC + 32 + 4 * m + r))
    CY = 100
    for r in range(4):
        a("v_mov_b32 v%d, 0" % (CY + r))
        a("v_mov_b32 v%d, v%d" % (CY + 4 + r, AC + 32 + 28 + r))
    for r in range(4):
        a("v_permlane32_swap_b32 v%d, v%d" % (CY + r, CY + 4 + r))
    for m in range(8):
        for r in range(4):
            L_ = AC + 4 * m + r
            a("v_add_f32_dpp v%d, v%d, v%d row_shr:1 row_mask:0xf bank_mask:0xf bound_ctrl:0" % (L_, AC + 32 + 4 * m + r, L_))
    for m in range(8):
        for r in range(4):
            L_ = AC + 4 * m + r
            prev = (AC + 32 + 4 * (m - 1) + r) if m else (CY + r)
            a("v_add_f32_dpp v%d, v%d, v%d row_shl:15 row_mask:0xf bank_mask:0xf bound_ctrl:0" % (L_, prev, L_))
    a.wait_lg("xn")
    XD, TP2 = AC + 32, 108
    for k in range(16):
        a("v_lshlrev_b32 v%d, 16, v%d" % (XD + 2 * k, XN + k))
        a("v_and_b32 v%d, s%d, v%d" % (XD + 2 * k + 1, sMASK, XN + k))
    a("v_mov_b32 v220, v221")
    for k in range(16):
        a("v_pk_mul_f32 %s, %s, v[220:221]" % (v(XD + 2 * k, 2), v(XD + 2 * k, 2)))
    round_pairs(XD, TP2, 16)
    round_pairs(AC, TP2, 16)
    for k in range(16):
        a("v_pk_add_f32 %s, %s, %s" % (v(AC + 2 * k, 2), v(AC + 2 * k, 2), v(XD + 2 * k, 2)))
    for k in range(16):
        a("v_cvt_pk_bf16_f32 v%d, v%d, v%d" % (TP2 + k, AC + 2 * k, AC + 2 * k + 1))
    for mp in range(4):
        a("v_permlane16_swap_b32 v%d, v%d" % (TP2 + 4 * mp, TP2 + 4 * mp + 2))
        a("v_permlane16_swap_b32 v%d, v%d" % (TP2 + 4 * mp + 1, TP2 + 4 * mp + 3))
    a("s_lshl_b32 s%d, s%d, 12" % (sT0, sPOS))
    a("s_add_u32 s%d, s%d, 0x%x" % (sT0, sT0, YA))
    for mp in range(4):
        a("buffer_store_dwordx4 %s, v11, %s, s%d offen offset:%d sc1" % (v(TP2 + 4 * mp, 4), s(rWS, 4), sT0, 512 * mp))
    a("s_lshl_b32 s%d, s%d, 7" % (sT1, sPOS))
    a("s_add_u32 s%d, s%d, 0x%x" % (sT1, sT1, YF))
    a.drain_vm()
    flag_store(sT1, 12, 13)
    stamp(9)
    a.label("L_aux_done")
    finish()

    a.label("L_w7")
    a.vm = []; a.lg = []
    a("v_lshlrev_b32 v8, 7, v0")
    a("v_min_u32 v9, 15, v0")
    a("v_lshlrev_b32 v9, 7, v9")
    a("s_mul_i32 s%d, s%d, %d" % (sT0, sDT2, 80 * 128))
    a("s_add_u32 s%d, s%d, 0x%x" % (sD[0], sT0, YF))
    a("s_add_u32 s%d, s%d, %d" % (sD[1], sD[0], 64 * 128))
    a("s_sleep 64")
    poll([8, 9], [sD[0], sD[1]], 16)
    stamp(6)
    a("v_lshrrev_b32 v8, 3, v0")
    a("v_lshlrev_b32 v8, 12, v8")
    a("v_and_b32 v9, 7, v0")
    a("v_lshl_add_u32 v8, v9, 4, v8")
    a("s_mul_i32 s%d, s%d, %d" % (sT0, sDT2, 80 * 4096))
    a("s_lshl_b32 s%d, s%d, 7" % (sT1, sST))
    a("s_add_u32 s%d, s%d, s%d" % (sT0, sT0, sT1))
    a("s_add_u32 s%d, s%d, 0x%x" % (sT0, sT0, YA))
    for k in range(10):
        a("buffer_load_dwordx4 %s, v8, %s, s%d offen sc1" % (v(16 + 4 * k, 4), s(rWS, 4), sT0), tag="y%d" % k)
        if k < 9:
            a("s_add_u32 s%d, s%d, %d" % (sT0, sT0, 8 * 4096))
    for k in range(10):
        a.wait_vm("y%d" % k)
        a("ds_write_b128 v2, %s offset:%d" % (v(16 + 4 * k, 4), RY + 1024 * k))
    stamp(7)
    finish()
    a.label("L_exit")
    a("s_endpgm")
    a.label("L_code_end")
    return a

HEADER = open("cdna_kernels/%s.s.ref" % NAME).read().split("; Override launch")[0]

def full(cfg):
    a = gen(cfg)
    out = HEADER
    out += "; @launch grid=(256,1,1) block=(512,1,1) lds=%d\n" % LDS_BYTES
    out += '.amdgcn_target "amdgcn-amd-amdhsa--gfx950"\n.text\n.globl %s_kernel\n.p2align 8\n.type %s_kernel,@function\n' % (NAME, NAME)
    out += a.text()
    out += """.section .rodata,"a"
.p2align 6
.amdhsa_kernel %s_kernel
  .amdhsa_next_free_vgpr 256
  .amdhsa_next_free_sgpr 102
  .amdhsa_accum_offset 256
  .amdhsa_group_segment_fixed_size 0
  .amdhsa_kernarg_size 136
  .amdhsa_user_sgpr_count 2
  .amdhsa_user_sgpr_kernarg_segment_ptr 1
  .amdhsa_system_sgpr_workgroup_id_x 1
  .amdhsa_float_denorm_mode_32 3
.end_amdhsa_kernel
""" % NAME
    return out, a

if __name__ == "__main__":
    cfg = Cfg()
    outp = "cdna_kernels/%s.s" % NAME
    for arg in sys.argv[1:]:
        k, val = arg.split("=")
        if k == "out":
            outp = val
        else:
            cur = getattr(cfg, k)
            setattr(cfg, k, val if isinstance(cur, str) else (bool(int(val)) if isinstance(cur, bool) else int(val)))
    txt, a = full(cfg)
    open(outp, "w").write(txt)
    print("wrote", outp, "instr", a.ninst, "pad states", a.npad)
```

```python
import sys, struct
from asmlib import Asm, v, s

NAME = "parallel_sum__ssm_conv_s4__mixer_token_mlp__prompt"

def f32(x):
    return "0x%08x" % struct.unpack("<I", struct.pack("<f", x))[0]

class Cfg:
    ts = False
    spin = 2048
    depth1 = 2
    depth2 = 2
    out_pol = ""
    stop = 99
    dbg = False
    dbgw = 8
    nomfma = False
    apol = 'sc1'
    noadv = False
    noconv = False
    rotm1 = 8
    rotk1 = 1
    rotm2 = 6
    rotk2 = 1

HB, XB, GB, YA = 0, 0x280000, 0x500000, 0x700000
FL = 0xA00000
HF, XF, GF, YF, EW = FL, FL + 0x10000, FL + 0x20000, FL + 0x40000, FL + 0x60000
TSO = 0xB00000
WS_BYTES = 0xC00000
S = 12576
RY = 3 * S
CNT = RY + 10240
WOFF = 49152
WSZ = 28672
LDS_BYTES = 163840
KB_OFF, ZP_OFF, U_OFF = 4160, 8256, 8480
TB_OFF = U_OFF + 16
sID, sWV, sX, sJ, sTAG = 2, 3, 4, 5, 6
pX, pARE, pAIM, pBRE, pBIM, pCRE, pCIM, pLDT, pDSK, pBX, pW1, pB1, pW2, pB2, pOUT, pDBG, pWS = [16 + 2 * i for i in range(17)]
rWS, rX, rW1, rW2, rOUT, rCODE = 52, 56, 60, 64, 68, 72
sDT, sFT, sDT2, sST, sWB = 76, 77, 78, 79, 80
sOW, sOWB, sOWE = 81, 82, 83
sOA, sOAB, sOAE = 84, 85, 86
sD = [87, 88, 89, 90]
sT0, sT1, sT2, sT3 = 8, 9, 10, 11
sCNT = 12
sROT1, sROT2 = 91, 92
sPOS, sCH, sRB = 93, 94, 95
sMASK = 13
vL, vTS = 0, 15

def gen(cfg):
    a = Asm()
    nts = [0]
    def stamp(idx):
        if not cfg.ts:
            return
        a("s_memrealtime s[98:99]")
        a("s_waitcnt lgkmcnt(0)"); a.lg = []
        a("v_writelane_b32 v%d, s98, %d" % (vTS, idx))
        if idx in (0, 4, 5, 9, 10, 11):
            a("s_memtime s[98:99]")
            a("s_waitcnt lgkmcnt(0)")
            a("v_writelane_b32 v%d, s98, %d" % (vTS, 48 + idx))

    def finish():
        if cfg.ts:
            a("s_lshl_b32 s%d, s%d, 3" % (sT0, sID))
            a("s_add_u32 s%d, s%d, s%d" % (sT0, sT0, sWV))
            a("s_lshl_b32 s%d, s%d, 8" % (sT0, sT0))
            a("s_add_u32 s%d, s%d, 0x%x" % (sT0, sT0, TSO))
            a("v_lshlrev_b32 v1, 2, v%d" % vL)
            a("buffer_store_dword v%d, v1, %s, s%d offen" % (vTS, s(rWS, 4), sT0))
            if cfg.dbg:
                n = nts[0]; nts[0] += 1
                a("s_lshl_b32 s%d, s%d, 3" % (sT0, sID))
                a("s_add_u32 s%d, s%d, s%d" % (sT0, sT0, sWV))
                a("s_cmp_lg_u32 s%d, %d" % (sT0, cfg.dbgw))
                a("s_cbranch_scc1 L_nodbg%d" % n)
                a("v_readlane_b32 s%d, v%d, 0" % (sT0, vTS))
                a("v_subrev_u32 v2, s%d, v%d" % (sT0, vTS))
                a("s_mov_b64 exec, 0xffff")
                a("global_store_dword v1, v2, %s" % s(pDBG, 2))
                a.label("L_nodbg%d" % n)
        a("s_waitcnt vmcnt(0) lgkmcnt(0)")
        a("s_endpgm")

    def srd(r, p, nbytes):
        a("s_mov_b32 s%d, s%d" % (r, p))
        a("s_and_b32 s%d, s%d, 0xffff" % (r + 1, p + 1))
        a("s_mov_b32 s%d, 0x%x" % (r + 2, nbytes))
        a("s_mov_b32 s%d, 0x20000" % (r + 3))

    npoll = [0]
    def poll(voffs, soffs, vdata, sleep=4):
        n = npoll[0]; npoll[0] += 1
        a("s_mov_b32 s%d, %d" % (sCNT, cfg.spin))
        a.label("L_poll%d" % n)
        for k, (vo, so) in enumerate(zip(voffs, soffs)):
            a("buffer_load_dword v%d, v%d, %s, s%d offen sc1" % (vdata + k, vo, s(rWS, 4), so))
        a.drain_vm()
        a("v_cmp_ne_u32 vcc, s%d, v%d" % (sTAG, vdata))
        for k in range(1, len(voffs)):
            a("v_cmp_ne_u32 s[14:15], s%d, v%d" % (sTAG, vdata + k))
            a("s_or_b64 vcc, vcc, s[14:15]")
        a("s_cmp_eq_u64 vcc, 0")
        a("s_cbranch_scc1 L_pollok%d" % n)
        a("s_sub_u32 s%d, s%d, 1" % (sCNT, sCNT))
        a("s_cmp_eq_u32 s%d, 0" % sCNT)
        a("s_cbranch_scc1 L_pollok%d" % n)
        a("s_mov_b64 exec, vcc")
        a("s_sleep %d" % sleep)
        a("s_branch L_poll%d" % n)
        a.label("L_pollok%d" % n)
        a("s_mov_b64 exec, -1")

    def flag_store(soff, vtmp0, vtmp1):
        a("v_mov_b32 v%d, s%d" % (vtmp0, sTAG))
        a("v_mov_b32 v%d, 0" % vtmp1)
        a("s_mov_b64 exec, 1")
        a("buffer_store_dword v%d, v%d, %s, s%d offen sc1" % (vtmp0, vtmp1, s(rWS, 4), soff), tag="flag")
        a("s_mov_b64 exec, -1")

    nl = [0]
    def lds_arrive(off, vt0, vt1):
        a("v_mov_b32 v%d, %d" % (vt0, CNT + off))
        a("v_mov_b32 v%d, 1" % vt1)
        a("s_mov_b64 exec, 1")
        a("ds_add_u32 v%d, v%d" % (vt0, vt1))
        a("s_mov_b64 exec, -1")

    def lds_wait(off, target, vt0, vt1, sleep=0):
        n = nl[0]; nl[0] += 1
        a("v_mov_b32 v%d, %d" % (vt0, CNT + off))
        a("s_mov_b32 s%d, 0x%x" % (sCNT, cfg.spin * 64))
        a.label("L_lw%d" % n)
        a("ds_read_b32 v%d, v%d" % (vt1, vt0))
        a.drain_lg()
        a("v_readfirstlane_b32 s%d, v%d" % (sT0, vt1))
        a("s_cmp_ge_u32 s%d, %d" % (sT0, target))
        a("s_cbranch_scc1 L_lwok%d" % n)
        if sleep:
            a("s_sleep %d" % sleep)
        a("s_sub_u32 s%d, s%d, 1" % (sCNT, sCNT))
        a("s_cmp_lg_u32 s%d, 0" % sCNT)
        a("s_cbranch_scc1 L_lw%d" % n)
        a.label("L_lwok%d" % n)

    a.label(NAME + "_kernel")
    a("s_cmp_ge_u32 s2, 256")
    a("s_cbranch_scc1 L_exit")
    a("s_load_dwordx16 s[16:31], s[0:1], 0")
    a("s_load_dwordx16 s[32:47], s[0:1], 64")
    a("s_load_dwordx2 s[48:49], s[0:1], 128")
    a("s_getpc_b64 s[%d:%d]" % (rCODE, rCODE + 1))
    a.label("L_pc")
    a("v_lshrrev_b32 v1, 6, v0")
    a("v_and_b32 v0, 63, v0")
    if cfg.ts:
        a("v_mov_b32 v%d, 0" % vTS)
    a("v_readfirstlane_b32 s%d, v1" % sWV)
    a("s_and_b32 s%d, s2, 7" % sX)
    a("s_lshr_b32 s%d, s2, 3" % sJ)
    a("s_mov_b32 s%d, 0xffff0000" % sMASK)
    a("s_and_b32 s%d, s%d, 0xffff" % (rCODE + 1, rCODE + 1))
    a("s_mov_b32 s%d, L_code_end-L_pc" % (rCODE + 2))
    a("s_mov_b32 s%d, 0x20000" % (rCODE + 3))
    a("s_cmp_lg_u32 s%d, 7" % sWV)
    a("s_cbranch_scc1 L_nopf")
    a("s_lshl_b32 s%d, s%d, 7" % (sT0, sJ))
    a("v_lshlrev_b32 v1, 12, v0")
    a("buffer_load_dword v14, v1, %s, s%d offen" % (s(rCODE, 4), sT0))
    a.label("L_nopf")
    a.vm = []
    a("v_lshlrev_b32 v2, 4, v0")
    a("v_lshlrev_b32 v3, 2, v0")
    a("s_lshl_b32 s%d, s2, 3" % sT0)
    a("s_add_u32 s%d, s%d, s%d" % (sT0, sT0, sWV))
    a("s_mul_i32 s%d, s%d, 1280" % (sT0, sT0))
    a("s_waitcnt lgkmcnt(0)")
    srd(rX, pX, 2621440)
    a("buffer_load_dwordx4 v[16:19], v2, %s, s%d offen" % (s(rX, 4), sT0), tag="x")
    a("buffer_load_dword v20, v3, %s, s%d offen offset:1024" % (s(rX, 4), sT0), tag="x")
    a("s_add_u32 s14, s%d, 0x%x" % (pWS, EW))
    a("s_addc_u32 s15, s%d, 0" % (pWS + 1))
    a("s_load_dword s7, s[14:15], 0")
    srd(rWS, pWS, WS_BYTES)
    srd(rW1, pW1, 2048 * 3072)
    srd(rW2, pW2, 1536 * 4096)
    srd(rOUT, pOUT, 2621440)
    stamp(0)
    if cfg.ts:
        a("s_getreg_b32 s98, hwreg(HW_REG_XCC_ID)")
        a("v_writelane_b32 v%d, s98, 40" % vTS)
        a("s_getreg_b32 s98, hwreg(HW_REG_HW_ID)")
        a("v_writelane_b32 v%d, s98, 41" % vTS)
    a("s_and_b32 s%d, s%d, 1" % (sT0, sX))
    a("s_lshr_b32 s%d, s%d, 1" % (sT1, sX))
    a("s_mul_i32 s%d, s%d, 13" % (sT2, sJ))
    a("s_lshr_b32 s%d, s%d, 6" % (sT2, sT2))
    a("s_mul_i32 s%d, s%d, 5" % (sT3, sT2))
    a("s_sub_u32 s%d, s%d, s%d" % (sT3, sJ, sT3))
    a("s_mul_i32 s%d, s%d, 5" % (sDT, sT0))
    a("s_add_u32 s%d, s%d, s%d" % (sDT, sDT, sT3))
    a("s_mul_i32 s%d, s%d, 6" % (sFT, sT1))
    a("s_add_u32 s%d, s%d, s%d" % (sFT, sFT, sT2))
    a("s_mul_i32 s%d, s%d, 3" % (sROT1, sT3))
    a("s_and_b32 s%d, s%d, %d" % (sT2, sT2, cfg.rotk1))
    a("s_mul_i32 s%d, s%d, %d" % (sT2, sT2, cfg.rotm1))
    a("s_add_u32 s%d, s%d, s%d" % (sROT1, sROT1, sT2))
    a("s_and_b32 s%d, s%d, 15" % (sROT1, sROT1))
    a("s_and_b32 s%d, s%d, 3" % (sT2, sJ))
    a("s_lshr_b32 s%d, s%d, 2" % (sT3, sJ))
    a("s_lshl_b32 s%d, s%d, 2" % (sDT2, sT0))
    a("s_add_u32 s%d, s%d, s%d" % (sDT2, sDT2, sT2))
    a("s_lshl_b32 s%d, s%d, 3" % (sST, sT1))
    a("s_add_u32 s%d, s%d, s%d" % (sST, sST, sT3))
    a("s_mul_i32 s%d, s%d, 3" % (sROT2, sT2))
    a("s_and_b32 s%d, s%d, %d" % (sT3, sT3, cfg.rotk2))
    a("s_mul_i32 s%d, s%d, %d" % (sT3, sT3, cfg.rotm2))
    a("s_add_u32 s%d, s%d, s%d" % (sROT2, sROT2, sT3))
    a("s_sub_u32 s%d, s%d, 12" % (sT3, sROT2))
    a("s_cmp_ge_u32 s%d, 12" % sROT2)
    a("s_cselect_b32 s%d, s%d, s%d" % (sROT2, sT3, sROT2))
    a("s_cmp_ge_u32 s%d, 4" % sWV)
    a("s_cbranch_scc1 L_aux_pre")

    vTR = [2, 3, 4, 5]
    vFO, vDO, vPO, vPD = 6, 7, 8, 9
    ACC1, STG1, WREG1 = 16, 80, 112
    ACC2, STG2, WREG2 = 16, 96, 136

    def dma_voff(rowbytes, gemm1):
        a("v_lshrrev_b32 v10, 3, v0")
        a("v_and_b32 v11, 6, v10")
        a("v_and_b32 v12, 7, v0")
        a("v_xor_b32 v12, v12, v11")
        a("v_lshlrev_b32 v12, 4, v12")
        if gemm1:
            a("v_and_b32 v11, 4, v10")
            a("v_add_u32 v10, v10, v11")
        a("s_mov_b32 s%d, %d" % (sT0, rowbytes))
        a("v_mul_lo_u32 v10, v10, s%d" % sT0)
        a("v_add_u32 v%d, v10, v12" % vDO)

    def dma_step(srdreg, slot, consts, stepbytes, tag):
        for b in range(4):
            a("s_add_u32 m0, s%d, %d" % (sWB, slot * 4096 + b * 1024))
            if consts[b]:
                a("s_add_u32 s%d, s%d, %d" % (sT0, sOW, consts[b]))
                so = sT0
            else:
                so = sOW
            a("buffer_load_dwordx4 v%d, %s, s%d offen lds" % (vDO, s(srdreg, 4), so), tag=tag)
        a("s_add_u32 s%d, s%d, %d" % (sOW, sOW, stepbytes))
        a("s_cmp_ge_u32 s%d, s%d" % (sOW, sOWE))
        a("s_cselect_b32 s%d, s%d, s%d" % (sOW, sOWB, sOW))

    C1 = [(16 * (b & 1) + 4 * (b >> 1)) * 3072 for b in range(4)]
    C2 = [8 * b * 4096 for b in range(4)]

    def tr_step(slot, wreg, tag):
        for n in range(4):
            for e in range(2):
                a("ds_read_b64_tr_b16 %s, v%d offset:%d" % (v(wreg + 4 * n + 2 * e, 2), vTR[n], slot * 4096 + e * 2048), tag=tag)

    a("s_setprio 2")
    a("s_mul_i32 s%d, s%d, %d" % (sWB, sWV, WSZ))
    a("s_add_u32 s%d, s%d, %d" % (sWB, sWB, WOFF))
    dma_voff(3072, True)
    a("s_mul_i32 s%d, s%d, %d" % (sOWB, sWV, 512 * 3072))
    a("s_lshl_b32 s%d, s%d, 7" % (sT0, sFT))
    a("s_add_u32 s%d, s%d, s%d" % (sOWB, sOWB, sT0))
    a("s_add_u32 s%d, s%d, %d" % (sOWE, sOWB, 512 * 3072))
    a("s_mul_i32 s%d, s%d, %d" % (sT0, sROT1, 32 * 3072))
    a("s_add_u32 s%d, s%d, s%d" % (sOW, sOWB, sT0))
    a("s_cmp_ge_u32 s%d, 30" % sJ)
    a("s_cbranch_scc1 L_gpre_nog1")
    for i in range(cfg.depth1):
        dma_step(rW1, i % 7, C1, 32 * 3072, "w%d" % i)
    gemm_vm_after_pre = ["w%d" % i for i in range(cfg.depth1) for _ in range(4)]
    a("s_waitcnt vmcnt(%d)" % (4 * cfg.depth1))
    a("s_branch L_ln")
    a.label("L_gpre_nog1")
    a("s_waitcnt vmcnt(0)")
    a("s_branch L_ln")

    a.label("L_aux_pre")
    a.vm = ["x", "x"]
    vPA = [4, 5, 6, 7, 8]
    PRM0, PRM1, vLDT, vDSK = 84, 90, 96, 97
    a("s_sub_u32 s%d, s%d, 4" % (sT0, sWV))
    a("s_mul_i32 s%d, s%d, %d" % (sRB, sT0, S))
    a("s_lshr_b32 s%d, s%d, 1" % (sT1, sJ))
    a("s_mul_i32 s%d, s%d, 5" % (sT1, sT1))
    a("s_and_b32 s%d, s%d, 1" % (sT2, sJ))
    a("s_mul_i32 s%d, s%d, 3" % (sT2, sT2))
    a("s_add_u32 s%d, s%d, s%d" % (sT1, sT1, sT2))
    a("s_add_u32 s%d, s%d, s%d" % (sT1, sT1, sT0))
    a("s_min_u32 s%d, s%d, 79" % (sT1, sT1))
    a("s_and_b32 s%d, s%d, 35" % (sT2, sT1))
    a("s_and_b32 s%d, s%d, 12" % (sT3, sT1))
    a("s_lshl_b32 s%d, s%d, 1" % (sT3, sT3))
    a("s_or_b32 s%d, s%d, s%d" % (sT2, sT2, sT3))
    a("s_and_b32 s%d, s%d, 16" % (sT3, sT1))
    a("s_lshr_b32 s%d, s%d, 2" % (sT3, sT3))
    a("s_or_b32 s%d, s%d, s%d" % (sT2, sT2, sT3))
    a("s_cmp_ge_u32 s%d, 64" % sT1)
    a("s_cselect_b32 s%d, s%d, s%d" % (sT2, sT1, sT2))
    a("s_mul_i32 s%d, s%d, 80" % (sT3, sX))
    a("s_add_u32 s%d, s%d, s%d" % (sPOS, sT3, sT1))
    a("s_add_u32 s%d, s%d, s%d" % (sCH, sT3, sT2))
    a("s_mul_i32 s%d, s%d, 384" % (sT0, sCH))
    a("v_add_u32 v10, s%d, v3" % sT0)
    a("v_lshlrev_b32 v11, 1, v0")
    a("v_add_u32 v11, s%d, v11" % sT0)
    a("s_lshl_b32 s%d, s%d, 1" % (sT0, sCH))
    a("v_mov_b32 v12, s%d" % sT0)
    for k, p in enumerate([pARE, pAIM, pBRE, pBIM, pCRE, pCIM]):
        a("global_load_dword v%d, v10, %s" % (PRM0 + k, s(p, 2)), tag="p")
        a("global_load_ushort v%d, v11, %s offset:256" % (PRM1 + k, s(p, 2)), tag="p")
    a("global_load_ushort v%d, v12, %s" % (vLDT, s(pLDT, 2)), tag="p")
    a("global_load_ushort v%d, v12, %s" % (vDSK, s(pDSK, 2)), tag="p")
    a("v_lshrrev_b32 v10, 4, v0")
    a("v_and_b32 v11, 3, v0")
    a("v_bfe_u32 v12, v0, 2, 2")
    a("s_movk_i32 s%d, 704" % sT0)
    a("v_mul_lo_u32 v12, v12, s%d" % sT0)
    a("v_add_u32 v12, s%d, v12" % sRB)
    for q in range(5):
        a("v_add_u32 v21, %d, v10" % (4 * q))
        a("v_mul_u32_u24 v22, 13, v21")
        a("v_lshrrev_b32 v22, 6, v22")
        a("v_mul_u32_u24 v23, 5, v22")
        a("v_sub_u32 v21, v21, v23")
        a("v_lshrrev_b32 v23, 1, v21")
        a("v_lshlrev_b32 v23, 5, v23")
        a("v_and_b32 v24, 1, v21")
        a("v_lshl_add_u32 v23, v24, 2, v23")
        a("v_lshlrev_b32 v24, 3, v11")
        a("v_lshlrev_b32 v25, 2, v11")
        a("v_cmp_eq_u32 vcc, 4, v21")
        a("v_cndmask_b32 v24, v24, v25, vcc")
        a("v_add_u32 v23, v23, v24")
        a("v_mul_u32_u24 v22, 80, v22")
        a("v_add_u32 v23, v23, v22")
        a("v_lshl_add_u32 v%d, v23, 1, v12" % vPA[q])
    a("v_mov_b32 v21, %d" % CNT)
    for k in range(4):
        a("v_mov_b32 v%d, 0" % (24 + k))
    a("ds_write_b128 v21, v[24:27]")
    a("ds_write_b128 v21, v[24:27] offset:16")
    a.wait_vm("x")
    aux_vm_after_pre = list(a.vm)

    a.label("L_ln")
    a.fence() if False else None
    XF32, DT_ = 24, 34
    for k in range(5):
        a("v_lshlrev_b32 v%d, 16, v%d" % (XF32 + 2 * k, 16 + k))
        a("v_and_b32 v%d, s%d, v%d" % (XF32 + 2 * k + 1, sMASK, 16 + k))
    stamp(1)
    def reduce2(r1, r2, s1, s2):
        for ctl in ["row_shr:1", "row_shr:2", "row_shr:4", "row_shr:8"]:
            for r in (r1, r2):
                a("v_add_f32_dpp v%d, v%d, v%d %s row_mask:0xf bank_mask:0xf bound_ctrl:0" % (r, r, r, ctl))
        for r in (r1, r2):
            a("v_add_f32_dpp v%d, v%d, v%d row_bcast:15 row_mask:0xa bank_mask:0xf" % (r, r, r))
        for r in (r1, r2):
            a("v_add_f32_dpp v%d, v%d, v%d row_bcast:31 row_mask:0xc bank_mask:0xf" % (r, r, r))
        a("v_readlane_b32 s%d, v%d, 63" % (s1, r1))
        a("v_readlane_b32 s%d, v%d, 63" % (s2, r2))

    def bfround(r):
        a("v_cvt_pk_bf16_f32 v%d, v%d, v%d" % (r, r, r))
        a("v_and_b32 v%d, s%d, v%d" % (r, sMASK, r))

    def ln_pass(shift, outp, keep):
        src = XF32
        if shift:
            a("v_readfirstlane_b32 s14, v%d" % XF32)
            for i in range(10):
                a("v_subrev_f32 v%d, s14, v%d" % (DT_ + i, XF32 + i))
            src = DT_
        a("v_pk_add_f32 v[44:45], %s, %s" % (v(src, 2), v(src + 2, 2)))
        a("v_pk_mul_f32 v[46:47], %s, %s" % (v(src, 2), v(src, 2)))
        a("v_pk_add_f32 v[48:49], %s, %s" % (v(src + 4, 2), v(src + 6, 2)))
        a("v_pk_fma_f32 v[46:47], %s, %s, v[46:47]" % (v(src + 2, 2), v(src + 2, 2)))
        a("v_pk_add_f32 v[44:45], v[44:45], %s" % v(src + 8, 2))
        a("v_pk_mul_f32 v[50:51], %s, %s" % (v(src + 4, 2), v(src + 4, 2)))
        a("v_pk_fma_f32 v[46:47], %s, %s, v[46:47]" % (v(src + 8, 2), v(src + 8, 2)))
        a("v_pk_add_f32 v[44:45], v[44:45], v[48:49]")
        a("v_pk_fma_f32 v[50:51], %s, %s, v[50:51]" % (v(src + 6, 2), v(src + 6, 2)))
        a("v_add_f32 v44, v44, v45")
        a("v_pk_add_f32 v[46:47], v[46:47], v[50:51]")
        a("v_add_f32 v46, v46, v47")
        reduce2(44, 46, sT0, sT1)
        a("v_mov_b32 v45, %s" % f32(1.0 / 640))
        a("v_mul_f32 v44, s%d, v45" % sT0)
        a("v_mul_f32 v46, s%d, v45" % sT1)
        a("v_fma_f32 v46, -v44, v44, v46")
        if shift:
            a("v_add_f32 v44, s14, v44")
        a("v_max_f32 v46, 0, v46")
        a("v_cvt_pk_bf16_f32 v47, v44, v46")
        a("v_and_b32 v46, s%d, v47" % sMASK)
        a("v_lshlrev_b32 v44, 16, v47")
        a("v_add_f32 v46, %s, v46" % f32(1e-5))
        for k in range(5):
            a("v_pk_add_f32 %s, %s, v[44:45] op_sel_hi:[1,0] neg_lo:[0,1] neg_hi:[0,1]" % (v(DT_ + 2 * k, 2), v(XF32 + 2 * k, 2)))
            if k == 0:
                a("v_cvt_pk_bf16_f32 v46, v46, v46")
            if k == 1:
                a("v_and_b32 v46, s%d, v46" % sMASK)
            if k == 2:
                a("v_sqrt_f32 v46, v46")
            if k == 4:
                a("v_cvt_pk_bf16_f32 v46, v46, v46")
        for k in range(5):
            a("v_cvt_pk_bf16_f32 v%d, v%d, v%d" % (48 + k, DT_ + 2 * k, DT_ + 2 * k + 1))
            if k == 0:
                a("v_and_b32 v46, s%d, v46" % sMASK)
            if k == 1:
                a("v_rcp_f32 v46, v46")
        for k in range(5):
            a("v_lshlrev_b32 v%d, 16, v%d" % (DT_ + 2 * k, 48 + k))
            a("v_and_b32 v%d, s%d, v%d" % (DT_ + 2 * k + 1, sMASK, 48 + k))
        for k in range(5):
            a("v_pk_mul_f32 %s, %s, v[46:47] op_sel_hi:[1,0]" % (v(DT_ + 2 * k, 2), v(DT_ + 2 * k, 2)))
        for k in range(5):
            a("v_cvt_pk_bf16_f32 v%d, v%d, v%d" % (outp + k, DT_ + 2 * k, DT_ + 2 * k + 1))
        if keep:
            for k in range(5):
                a("v_lshlrev_b32 v%d, 16, v%d" % (XF32 + 2 * k, outp + k))
                a("v_and_b32 v%d, s%d, v%d" % (XF32 + 2 * k + 1, sMASK, outp + k))

    a("s_mul_i32 s%d, s%d, 704" % (sT2, sWV))
    a("v_lshlrev_b32 v60, 4, v0")
    a("v_add_u32 v61, %d, v60" % (S - 640))
    a("v_cmp_gt_u32 vcc, 40, v0")
    a("v_cndmask_b32 v60, v61, v60, vcc")
    a("v_add_u32 v60, s%d, v60" % sT2)
    a("s_add_u32 s%d, s%d, %d" % (sT2, sT2, S + 384))
    a("v_lshlrev_b32 v61, 2, v0")
    a("v_add_u32 v61, s%d, v61" % sT2)
    ln_pass(True, 16, True)
    a("ds_write_b128 v60, v[16:19] offset:%d" % (2 * S))
    a("ds_write_b32 v61, v20 offset:%d" % (2 * S))
    ln_pass(False, 56 - 4, False)
    a("ds_write_b128 v60, v[52:55]")
    a("ds_write_b32 v61, v56")
    a("s_waitcnt lgkmcnt(0)"); a.lg = []
    a("s_add_u32 s%d, s7, 0x9E3779B9" % sTAG)
    a("s_barrier")
    stamp(2)
    a("s_cmp_ge_u32 s%d, 4" % sWV)
    a("s_cbranch_scc1 L_aux_main")

    a.vm = list(gemm_vm_after_pre)
    a("v_lshrrev_b32 v10, 2, v0")
    a("v_bfe_u32 v11, v0, 3, 2")
    a("v_lshlrev_b32 v10, 7, v10")
    a("v_and_b32 v12, 3, v0")
    a("v_lshl_add_u32 v10, v12, 3, v10")
    a("v_add_u32 v10, s%d, v10" % sWB)
    for n in range(4):
        a("v_xor_b32 v12, %d, v11" % n)
        a("v_lshl_add_u32 v%d, v12, 5, v10" % vTR[n])
    a("v_lshrrev_b32 v10, 4, v0")
    a("v_mul_u32_u24 v10, 10240, v10")
    a("v_and_b32 v11, 15, v0")
    a("v_lshl_add_u32 v%d, v11, 4, v10" % vFO)
    a("s_cmp_ge_u32 s%d, 30" % sJ)
    a("s_cbranch_scc1 L_g2_pre_nog1")
    D1 = cfg.depth1
    for i in range(16):
        if i + D1 < 16:
            k = i + D1
            if k >= 7:
                a.wait_lg("t%d" % (k - 7))
            dma_step(rW1, k % 7, C1, 32 * 3072, "w%d" % k)
        if i < 9:
            a.wait_vm("w%d" % i)
            tr_step(i % 7, WREG1 + 16 * i, "t%d" % i)
        elif i + D1 < 16:
            a.wait_vm("w%d" % i)
        if i in (0, 2, 4, 6, 8, 10, 12):
            stamp(16 + i // 2)
    stamp(3)
    a("s_mul_i32 s%d, s%d, %d" % (sOAB, sWV, 64 * 10240))
    a("s_lshl_b32 s%d, s%d, 10" % (sT0, sDT))
    a("s_add_u32 s%d, s%d, s%d" % (sOAB, sOAB, sT0))
    if HB:
        a("s_add_u32 s%d, s%d, 0x%x" % (sOAB, sOAB, HB))
    a("s_add_u32 s%d, s%d, %d" % (sOAE, sOAB, 64 * 10240))
    a("s_mul_i32 s%d, s%d, %d" % (sT0, sROT1, 4 * 10240))
    a("s_add_u32 s%d, s%d, s%d" % (sOA, sOAB, sT0))
    for di in range(4):
        a("s_xor_b32 s%d, s%d, %d" % (sD[di], sWV, di))
        a("s_lshl_b32 s%d, s%d, 8" % (sD[di], sD[di]))
    def hpoll():
        a("v_lshlrev_b32 v%d, 7, v0" % vPO)
        a("s_lshl_b32 s%d, s%d, 13" % (sT1, sWV))
        a("s_add_u32 s%d, s%d, 0x%x" % (sT1, sT1, HF))
        poll([vPO], [sT1], vPD)
        lds_arrive(12, 12, 13)
    hpoll()
    a.drain_lg()
    stamp(4)

    def adv_a(stepbytes):
        if cfg.noadv:
            return
        a("s_add_u32 s%d, s%d, %d" % (sOA, sOA, stepbytes))
        a("s_cmp_ge_u32 s%d, s%d" % (sOA, sOAE))
        a("s_cselect_b32 s%d, s%d, s%d" % (sOA, sOAB, sOA))

    def hload(n):
        di = n & 3
        a("s_add_u32 s%d, s%d, s%d" % (sT1, sOA, sD[di]))
        a("buffer_load_dwordx4 %s, v%d, %s, s%d offen %s" % (v(STG1 + 4 * (n & 7), 4), vFO, s(rWS, 4), sT1, cfg.apol), tag="h%d" % n)
        if di == 3:
            adv_a(4 * 10240)

    def w2_setup():
        dma_voff(4096, False)
        a("s_mul_i32 s%d, s%d, %d" % (sOWB, sWV, 384 * 4096))
        a("s_lshl_b32 s%d, s%d, 7" % (sT0, sST))
        a("s_add_u32 s%d, s%d, s%d" % (sOWB, sOWB, sT0))
        a("s_add_u32 s%d, s%d, %d" % (sOWE, sOWB, 384 * 4096))
        a("s_mul_i32 s%d, s%d, %d" % (sT0, sROT2, 32 * 4096))
        a("s_add_u32 s%d, s%d, s%d" % (sOW, sOWB, sT0))

    def slot2(i):
        return (i + 3) % 7

    for n in range(8):
        hload(n)
    w2_setup()
    BIAS = WREG1 + 16 * 7
    for i in range(16):
        wr = WREG1 + 16 * (i if i < 9 else i - 9)
        if i >= 9:
            a.wait_lg("t%d" % i)
        for di in range(4):
            n = 4 * i + di
            a.wait_vm("h%d" % n)
            for fi in range(4):
                acc = v(ACC1 + 16 * di + 4 * fi, 4)
                if not cfg.nomfma or i == 0:
                    a("v_mfma_f32_16x16x32_bf16 %s, %s, %s, %s" % (acc, v(wr + 4 * fi, 4), v(STG1 + 4 * (n & 7), 4), acc if i else "0"))
            if n + 8 < 64:
                hload(n + 8)
        if i in (0, 3, 7, 11):
            stamp(24 + (i + 1) // 4)
        if i + 9 < 16:
            tr_step((i + 9) % 7, wr, "t%d" % (i + 9))
        if i == 8:
            a("v_lshrrev_b32 v10, 4, v0")
            a("v_lshlrev_b32 v10, 3, v10")
            a("s_lshl_b32 s%d, s%d, 7" % (sT0, sFT))
            a("v_add_u32 v10, s%d, v10" % sT0)
            for fi in range(4):
                a("global_load_dwordx2 %s, v10, %s offset:%d" % (v(BIAS + 2 * fi, 2), s(pB1, 2), 32 * fi), tag="bias")
        if i == 13:
            dma_step(rW2, slot2(0), C2, 32 * 4096, "u0")
        if i == 14:
            dma_step(rW2, slot2(1), C2, 32 * 4096, "u1")
    stamp(5)
    a("v_lshlrev_b32 v10, 4, v0")
    a("v_add_u32 v11, s%d, v10" % sWB)
    for i in range(1, 4):
        for q in range(4):
            a("ds_write_b128 v11, %s offset:%d" % (v(ACC1 + 16 * i + 4 * q, 4), (i - 1) * 4096 + q * 1024))
    for i in range(1, 4):
        a("s_xor_b32 s%d, s%d, %d" % (sT0, sWV, i))
        a("s_mul_i32 s%d, s%d, %d" % (sT0, sT0, WSZ))
        a("s_add_u32 s%d, s%d, %d" % (sT0, sT0, WOFF))
        a("v_add_u32 v%d, s%d, v10" % (STG1 + i, sT0))
    a.drain_lg()
    lds_arrive(0, 12, 13)
    lds_wait(0, 4, 12, 13)
    stamp(12)
    for i in range(1, 4):
        for q in range(4):
            a("ds_read_b128 %s, v%d offset:%d" % (v(ACC1 + 16 * i + 4 * q, 4), STG1 + i, (i - 1) * 4096 + q * 1024), tag="r%d" % i)
    a("s_or_b32 s%d, s%d, s%d" % (sT0, sID, sWV))
    a("s_cmp_lg_u32 s%d, 0" % sT0)
    a("s_cbranch_scc1 L_noE")
    a("s_mov_b32 s%d, 0x%x" % (sT0, EW))
    nvm = list(a.vm)
    flag_store(sT0, 12, 13)
    a("s_waitcnt vmcnt(0)")
    a.vm = nvm
    a.label("L_noE")
    a.wait_vm("bias")
    BF = STG1 + 8
    for k in range(8):
        a("v_lshlrev_b32 v%d, 16, v%d" % (BF + 2 * k, BIAS + k))
        a("v_and_b32 v%d, s%d, v%d" % (BF + 2 * k + 1, sMASK, BIAS + k))
    a.wait_lg("r2")
    for k in range(8):
        a("v_pk_add_f32 %s, %s, %s" % (v(ACC1 + 2 * k, 2), v(ACC1 + 2 * k, 2), v(ACC1 + 16 + 2 * k, 2)))
    a.wait_lg("r3")
    lds_arrive(4, 12, 13)
    for k in range(8):
        a("v_pk_add_f32 %s, %s, %s" % (v(ACC1 + 32 + 2 * k, 2), v(ACC1 + 32 + 2 * k, 2), v(ACC1 + 48 + 2 * k, 2)))
    for k in range(8):
        a("v_pk_add_f32 %s, %s, %s" % (v(ACC1 + 2 * k, 2), v(ACC1 + 2 * k, 2), v(ACC1 + 32 + 2 * k, 2)))
    U_, T_, P_ = ACC1, ACC1 + 16, ACC1 + 32
    def round_pairs(base, tmp, n):
        for k in range(n):
            a("v_cvt_pk_bf16_f32 v%d, v%d, v%d" % (tmp + k, base + 2 * k, base + 2 * k + 1))
        for k in range(n):
            a("v_lshlrev_b32 v%d, 16, v%d" % (base + 2 * k, tmp + k))
            a("v_and_b32 v%d, s%d, v%d" % (base + 2 * k + 1, sMASK, tmp + k))
    round_pairs(U_, P_, 8)
    for k in range(8):
        a("v_pk_add_f32 %s, %s, %s" % (v(U_ + 2 * k, 2), v(U_ + 2 * k, 2), v(BF + 2 * k, 2)))
    round_pairs(U_, P_, 8)
    import math
    c0 = -2.0 * math.sqrt(2.0 / math.pi) * math.log2(math.e)
    c1 = c0 * 0.044715
    a("v_mov_b32 v12, %s" % f32(c1))
    a("v_mov_b32 v13, %s" % f32(c0))
    for k in range(8):
        a("v_pk_mul_f32 %s, %s, %s" % (v(T_ + 2 * k, 2), v(U_ + 2 * k, 2), v(U_ + 2 * k, 2)))
    for k in range(8):
        a("v_pk_fma_f32 %s, %s, v[12:13], v[12:13] op_sel:[0,0,1] op_sel_hi:[1,0,1]" % (v(T_ + 2 * k, 2), v(T_ + 2 * k, 2)))
    for k in range(8):
        a("v_pk_mul_f32 %s, %s, %s" % (v(T_ + 2 * k, 2), v(T_ + 2 * k, 2), v(U_ + 2 * k, 2)))
    for k in range(16):
        a("v_exp_f32 v%d, v%d" % (T_ + k, T_ + k))
    for k in range(8):
        a("v_pk_add_f32 %s, %s, 1.0 op_sel_hi:[1,0]" % (v(T_ + 2 * k, 2), v(T_ + 2 * k, 2)))
    for k in range(16):
        a("v_rcp_f32 v%d, v%d" % (T_ + k, T_ + k))
    for k in range(8):
        a("v_pk_mul_f32 %s, %s, %s" % (v(T_ + 2 * k, 2), v(T_ + 2 * k, 2), v(U_ + 2 * k, 2)))
    for k in range(8):
        a("v_cvt_pk_bf16_f32 v%d, v%d, v%d" % (P_ + k, T_ + 2 * k, T_ + 2 * k + 1))
    a("s_mul_i32 s%d, s%d, %d" % (sT1, sFT, 8 * 10240))
    a("s_lshl_b32 s%d, s%d, 10" % (sT2, sDT))
    a("s_add_u32 s%d, s%d, s%d" % (sT1, sT1, sT2))
    a("s_add_u32 s%d, s%d, s%d" % (sT1, sT1, sD[0]))
    a("s_add_u32 s%d, s%d, 0x%x" % (sT1, sT1, GB))
    a("s_add_u32 s%d, s%d, %d" % (sT2, sT1, 4 * 10240))
    a("buffer_store_dwordx4 %s, v%d, %s, s%d offen sc1" % (v(P_, 4), vFO, s(rWS, 4), sT1), tag="gs")
    a("buffer_store_dwordx4 %s, v%d, %s, s%d offen sc1" % (v(P_ + 4, 4), vFO, s(rWS, 4), sT2), tag="gs")
    stamp(6)
    dma_step(rW2, slot2(2), C2, 32 * 4096, "u2")
    dma_step(rW2, slot2(3), C2, 32 * 4096, "u3")
    a("s_lshl_b32 s%d, s%d, 2" % (sT1, sDT))
    a("s_add_u32 s%d, s%d, s%d" % (sT1, sT1, sWV))
    a("s_mul_i32 s%d, s%d, 24" % (sT1, sT1))
    a("s_add_u32 s%d, s%d, s%d" % (sT1, sT1, sFT))
    a("s_lshl_b32 s%d, s%d, 7" % (sT1, sT1))
    a("s_add_u32 s%d, s%d, 0x%x" % (sT1, sT1, GF))
    a.wait_vm("gs")
    flag_store(sT1, 12, 13)
    stamp(7)
    lds_wait(4, 4, 12, 13)
    a("s_branch L_g2_pre")
    vm_join = list(a.vm)
    a.label("L_g2_pre_nog1")
    a.vm = []
    w2_setup()
    for i in range(4):
        dma_step(rW2, slot2(i), C2, 32 * 4096, "u%d" % i)
    hpoll()
    a.drain_lg()
    a.label("L_g2_pre")
    a.vm = vm_join
    a.lg = []
    a("s_lshl_b32 s%d, s%d, 5" % (sT0, sWV))
    for n in range(4):
        a("v_xor_b32 v%d, s%d, v%d" % (vTR[n], sT0, vTR[n]))
    tr_step(slot2(0), WREG2, "q0")
    tr_step(slot2(1), WREG2 + 16, "q1")
    D2 = cfg.depth2
    issued = 4
    for i in range(2, 12):
        while issued < 12 and issued < i + D2 + 1 and issued <= i + D2:
            k = issued
            if k >= 7:
                a.wait_lg("q%d" % (k - 7))
            dma_step(rW2, slot2(k), C2, 32 * 4096, "u%d" % k)
            issued += 1
        if i < 7:
            a.wait_vm("u%d" % i)
            tr_step(slot2(i), WREG2 + 16 * i, "q%d" % i)
        elif issued < 12:
            a.wait_vm("u%d" % i)
    stamp(8)
    a("s_mul_i32 s%d, s%d, %d" % (sOAB, sWV, 48 * 10240))
    a("s_mul_i32 s%d, s%d, 1280" % (sT0, sDT2))
    a("s_add_u32 s%d, s%d, s%d" % (sOAB, sOAB, sT0))
    a("s_add_u32 s%d, s%d, 0x%x" % (sOAB, sOAB, GB))
    a("s_add_u32 s%d, s%d, %d" % (sOAE, sOAB, 48 * 10240))
    a("s_mul_i32 s%d, s%d, %d" % (sT0, sROT2, 4 * 10240))
    a("s_add_u32 s%d, s%d, s%d" % (sOA, sOAB, sT0))
    a("v_lshrrev_b32 v10, 3, v0")
    a("v_min_u32 v10, 4, v10")
    a("v_mul_u32_u24 v10, 24, v10")
    a("v_and_b32 v11, 7, v0")
    a("v_min_u32 v11, 5, v11")
    a("v_add_lshl_u32 v%d, v10, v11, 7" % vPO)
    a("s_mul_i32 s%d, s%d, 120" % (sT1, sDT2))
    a("s_mul_i32 s%d, s%d, 6" % (sT2, sWV))
    a("s_add_u32 s%d, s%d, s%d" % (sT1, sT1, sT2))
    a("s_lshl_b32 s%d, s%d, 7" % (sT1, sT1))
    a("s_add_u32 s%d, s%d, 0x%x" % (sT1, sT1, GF))
    poll([vPO], [sT1], vPD)
    lds_arrive(16, 12, 13)
    a.drain_lg()
    stamp(9)

    def gload(n):
        mi = n % 5
        a("buffer_load_dwordx4 %s, v%d, %s, s%d offen offset:%d %s" % (v(STG2 + 4 * (n % 10), 4), vFO, s(rWS, 4), sOA, 256 * mi, cfg.apol), tag="g%d" % n)
        if mi == 4:
            adv_a(4 * 10240)

    for n in range(10):
        gload(n)
    XR = WREG2 + 16 * 5
    vXO, vXO4, vB2 = 10, 11, 14
    for i in range(12):
        wr = WREG2 + 16 * (i if i < 7 else i - 7)
        if i >= 7:
            a.wait_lg("q%d" % i)
        for mi in range(5):
            n = 5 * i + mi
            a.wait_vm("g%d" % n)
            for ni in range(4):
                acc = v(ACC2 + 20 * ni + 4 * mi, 4)
                if not cfg.nomfma or i == 0:
                    a("v_mfma_f32_16x16x32_bf16 %s, %s, %s, %s" % (acc, v(STG2 + 4 * (n % 10), 4), v(wr + 4 * ni, 4), acc if i else "0"))
            if n + 10 < 60:
                gload(n + 10)
        if i in (0, 2, 5, 8):
            stamp(28 + (i + 1) // 3)
        if i + 7 < 12:
            tr_step(slot2(i + 7), wr, "q%d" % (i + 7))
        if i == 6:
            a("v_and_b32 v12, 15, v0")
            a("v_lshrrev_b32 v13, 4, v0")
            a("v_mul_u32_u24 v%d, 1280, v12" % vXO)
            a("v_lshl_add_u32 v%d, v13, 3, v%d" % (vXO4, vXO))
            a("v_lshl_add_u32 v%d, v13, 4, v%d" % (vXO, vXO))
            a("s_lshl_b32 s%d, s%d, 2" % (sT2, sST))
            a("s_add_u32 s%d, s%d, s%d" % (sT2, sT2, sWV))
            a("s_lshl_b32 s%d, s%d, 4" % (sT2, sT2))
            a("s_mul_i32 s%d, s%d, 1280" % (sD[1], sT2))
            a("s_mul_i32 s%d, s%d, 160" % (sT3, sDT2))
            a("s_add_u32 s%d, s%d, s%d" % (sD[1], sD[1], sT3))
            a("buffer_load_dwordx4 %s, v%d, %s, s%d offen" % (v(XR, 4), vXO, s(rX, 4), sD[1]), tag="xt")
            a("buffer_load_dwordx4 %s, v%d, %s, s%d offen offset:64" % (v(XR + 4, 4), vXO, s(rX, 4), sD[1]), tag="xt")
            a("buffer_load_dwordx2 %s, v%d, %s, s%d offen offset:128" % (v(XR + 8, 2), vXO4, s(rX, 4), sD[1]), tag="xt")
            a("v_add_lshl_u32 v12, s%d, v12, 1" % sT2)
            a("global_load_ushort v%d, v12, %s" % (vB2, s(pB2, 2)), tag="xt")
    stamp(10)
    a("v_lshlrev_b32 v12, 4, v0")
    a("v_add_u32 v13, s%d, v12" % sWB)
    for i in range(1, 4):
        for q in range(5):
            a("ds_write_b128 v13, %s offset:%d" % (v(ACC2 + 20 * i + 4 * q, 4), (i - 1) * 5120 + q * 1024))
    for i in range(1, 4):
        a("s_xor_b32 s%d, s%d, %d" % (sT0, sWV, i))
        a("s_mul_i32 s%d, s%d, %d" % (sT0, sT0, WSZ))
        a("s_add_u32 s%d, s%d, %d" % (sT0, sT0, WOFF))
        a("v_add_u32 v%d, s%d, v12" % (STG2 + i, sT0))
    a("v_lshrrev_b32 v12, 2, v0")
    a("v_lshlrev_b32 v12, 7, v12")
    a("v_and_b32 v13, 3, v0")
    a("v_lshl_add_u32 v12, v13, 3, v12")
    a("s_lshl_b32 s%d, s%d, 5" % (sT0, sWV))
    a("s_add_u32 s%d, s%d, %d" % (sT0, sT0, RY))
    a("v_add_u32 v%d, s%d, v12" % (STG2, sT0))
    a.drain_lg()
    a("s_barrier")
    YR = XR + 12
    for i in range(1, 4):
        for q in range(5):
            a("ds_read_b128 %s, v%d offset:%d" % (v(ACC2 + 20 * i + 4 * q, 4), STG2 + i, (i - 1) * 5120 + q * 1024), tag="r%d" % i)
        if i == 1:
            for mi in range(5):
                a("ds_read_b64_tr_b16 %s, v%d offset:%d" % (v(YR + 2 * mi, 2), STG2, mi * 2048), tag="ya")
    TX, TY, TP = STG2 + 4, WREG2, WREG2 + 20
    a.wait_vm("xt")
    for k in range(10):
        a("v_lshlrev_b32 v%d, 16, v%d" % (TX + 2 * k, XR + k))
        a("v_and_b32 v%d, s%d, v%d" % (TX + 2 * k + 1, sMASK, XR + k))
    a("v_lshlrev_b32 v%d, 16, v%d" % (vB2, vB2))
    a.wait_lg("ya")
    for k in range(10):
        a("v_lshlrev_b32 v%d, 16, v%d" % (TY + 2 * k, YR + k))
        a("v_and_b32 v%d, s%d, v%d" % (TY + 2 * k + 1, sMASK, YR + k))
    for k in range(10):
        a("v_pk_add_f32 %s, %s, %s" % (v(ACC2 + 2 * k, 2), v(ACC2 + 2 * k, 2), v(ACC2 + 20 + 2 * k, 2)))
    for k in range(10):
        a("v_pk_add_f32 %s, %s, %s" % (v(TX + 2 * k, 2), v(TX + 2 * k, 2), v(TY + 2 * k, 2)))
    round_pairs(TX, TP, 10)
    a.wait_lg("r3")
    for k in range(10):
        a("v_pk_add_f32 %s, %s, %s" % (v(ACC2 + 40 + 2 * k, 2), v(ACC2 + 40 + 2 * k, 2), v(ACC2 + 60 + 2 * k, 2)))
    for k in range(10):
        a("v_pk_add_f32 %s, %s, %s" % (v(ACC2 + 2 * k, 2), v(ACC2 + 2 * k, 2), v(ACC2 + 40 + 2 * k, 2)))
    round_pairs(ACC2, TP, 10)
    for k in range(10):
        a("v_pk_add_f32 %s, %s, v[%d:%d] op_sel_hi:[1,0]" % (v(ACC2 + 2 * k, 2), v(ACC2 + 2 * k, 2), vB2, vB2 + 1))
    round_pairs(ACC2, TP, 10)
    for k in range(10):
        a("v_pk_add_f32 %s, %s, %s" % (v(ACC2 + 2 * k, 2), v(ACC2 + 2 * k, 2), v(TX + 2 * k, 2)))
    for k in range(10):
        a("v_cvt_pk_bf16_f32 v%d, v%d, v%d" % (TP + k, ACC2 + 2 * k, ACC2 + 2 * k + 1))
    pol = (" " + cfg.out_pol) if cfg.out_pol else ""
    a("buffer_store_dwordx4 %s, v%d, %s, s%d offen%s" % (v(TP, 4), vXO, s(rOUT, 4), sD[1], pol))
    a("buffer_store_dwordx4 %s, v%d, %s, s%d offen offset:64%s" % (v(TP + 4, 4), vXO, s(rOUT, 4), sD[1], pol))
    a("buffer_store_dwordx2 %s, v%d, %s, s%d offen offset:128%s" % (v(TP + 8, 2), vXO4, s(rOUT, 4), sD[1], pol))
    stamp(11)
    finish()

    a.label("L_aux_main")
    a.vm = list(aux_vm_after_pre); a.lg = []
    for q in range(5):
        a("ds_read_b64_tr_b16 %s, v%d" % (v(16 + 4 * q, 2), vPA[q]), tag="p%d" % q)
        a("ds_read_b64_tr_b16 %s, v%d offset:2816" % (v(18 + 4 * q, 2), vPA[q]), tag="p%d" % q)
    a("s_sub_u32 s%d, s%d, 4" % (sT0, sWV))
    a("s_lshr_b32 s%d, s%d, 1" % (sT1, sT0))
    a("s_and_b32 s%d, s%d, 1" % (sT0, sT0))
    a("s_mul_i32 s%d, s%d, 0x%x" % (sT2, sT1, XB))
    a("s_mul_i32 s%d, s%d, 10240" % (sT3, sID))
    a("s_add_u32 s%d, s%d, s%d" % (sT2, sT2, sT3))
    a("s_mul_i32 s%d, s%d, 5120" % (sT3, sT0))
    a("s_add_u32 s%d, s%d, s%d" % (sT2, sT2, sT3))
    a("s_add_u32 s%d, s%d, 4096" % (sT3, sT2))
    for q in range(5):
        a.wait_lg("p%d" % q)
        if q < 4:
            a("buffer_store_dwordx4 %s, v2, %s, s%d offen offset:%d sc1" % (v(16 + 4 * q, 4), s(rWS, 4), sT2, 1024 * q), tag="st")
        else:
            a("buffer_store_dwordx4 %s, v2, %s, s%d offen sc1" % (v(16 + 4 * q, 4), s(rWS, 4), sT3), tag="st")
    a("s_lshl_b32 s%d, s%d, 7" % (sT1, sID))
    a("s_add_u32 s%d, s%d, 0x%x" % (sT1, sT1, HF))
    F0 = 64
    a.wait_vm("p")
    for k in range(6):
        a("v_lshlrev_b32 v%d, 16, v%d" % (F0 + k, PRM0 + k))
        a("v_and_b32 v%d, s%d, v%d" % (F0 + 6 + k, sMASK, PRM0 + k))
        a("v_lshlrev_b32 v%d, 16, v%d" % (F0 + 12 + k, PRM1 + k))
    vDT, vDS = 82, 83
    a("v_lshlrev_b32 v%d, 16, v%d" % (vDT, vLDT))
    a("v_lshlrev_b32 v%d, 16, v%d" % (vDS, vDSK))
    a("v_mul_f32 v%d, %s, v%d" % (vDT, f32(math.log2(math.e)), vDT))
    a("v_exp_f32 v%d, v%d" % (vDT, vDT))
    bfround(vDT)
    a("v_mov_b32 v12, %d" % (CNT + 8))
    a("v_mov_b32 v13, 1")
    a.drain_vm()
    a("s_mov_b64 exec, 1")
    a("ds_add_rtn_u32 v13, v12, v13")
    a("s_mov_b64 exec, -1")
    a.drain_lg()
    a("v_readfirstlane_b32 s%d, v13" % sT0)
    a("s_cmp_lg_u32 s%d, 3" % sT0)
    a("s_cbranch_scc1 L_noflag")
    flag_store(sT1, 12, 13)
    a.label("L_noflag")
    a.vm = []
    stamp(3)
    a("s_cmp_eq_u32 s%d, 7" % sWV)
    a("s_cbranch_scc1 L_w7")
    a("s_and_b32 s%d, s%d, 1" % (sT0, sJ))
    a("s_add_u32 s%d, s%d, s%d" % (sT0, sT0, sWV))
    a("s_cmp_ge_u32 s%d, 7" % sT0)
    a("s_cbranch_scc1 L_aux_done")

    E = {k: 84 + 2 * (k - 1) for k in range(1, 8)}
    P = {k: 98 + 2 * (k - 1) for k in range(1, 9)}
    Q, Q2 = 114, 116
    Y = [118, 120, 122, 124]
    TT = [126, 128, 130, 132]
    CV = list(range(134, 142))
    YFR, XFR, DK = 144, 160, 208
    vFA = 220
    cvi = [0]
    def cmul1(d, x, y):
        a("v_pk_mul_f32 %s, %s, %s op_sel:[0,0] op_sel_hi:[0,1]" % (v(d, 2), v(x, 2), v(y, 2)))
    def cmul2(d, x, y):
        a("v_pk_fma_f32 %s, %s, %s, %s op_sel:[1,1,0] op_sel_hi:[1,0,1] neg_lo:[1,0,0]" % (v(d, 2), v(x, 2), v(y, 2), v(d, 2)))
    def put(r, row, neg=False):
        c = CV[cvi[0] % 8]; cvi[0] += 1
        a("v_cvt_pk_bf16_f32 v%d, v%d, %sv%d" % (c, r, "-" if neg else "", r + 1))
        return ("w", c, row)
    def wr(c, row):
        a("ds_write_addtid_b32 v%d offset:%d" % (c, row * 288))
    def group(ops):
        for d, x, y, row, neg in ops:
            cmul1(d, x, y)
        for d, x, y, row, neg in ops:
            cmul2(d, x, y)
        pend = []
        for d, x, y, row, neg in ops:
            if row is not None:
                pend.append(put(d, row, neg))
        for _, c, row in pend:
            wr(c, row)

    a("s_mov_b32 m0, s%d" % sRB)
    a("v_and_b32 v1, 15, v0")
    a("v_mul_u32_u24 v1, 288, v1")
    a("v_and_b32 v%d, 48, v0" % vFA)
    a("v_add3_u32 v%d, v%d, v1, s%d" % (vFA, vFA, sRB))
    for k in range(12):
        a("v_mov_b32 v%d, 0" % (DK + k))
    a("v_mov_b32 v143, 0x3f80")
    a("s_mov_b32 s%d, 3" % sT3)
    a.label("L_kgen")
    a.lg = []
    a("v_pk_mul_f32 v[126:127], v[64:65], v[82:83] op_sel_hi:[1,0]")
    a("v_pk_mul_f32 v[128:129], v[66:67], v[82:83] op_sel_hi:[1,0]")
    a("v_mul_f32 v126, %s, v126" % f32(math.log2(math.e)))
    a("v_mul_f32 v127, 0.15915494, v127")
    cmul1(Y[0], 68, 128)
    anchors = [(E[1], 1.0), (Q, 8.0), (P[1], 128.0)]
    for idx, (d, k) in enumerate(anchors):
        m_, f_ = 134 + 2 * idx, 135 + 2 * idx
        if k == 1.0:
            a("v_exp_f32 v%d, v126" % m_)
            a("v_fract_f32 v%d, v127" % f_)
        else:
            a("v_mul_f32 v%d, %s, v126" % (m_, f32(k)))
            a("v_mul_f32 v%d, %s, v127" % (f_, f32(k)))
            a("v_exp_f32 v%d, v%d" % (m_, m_))
            a("v_fract_f32 v%d, v%d" % (f_, f_))
    cmul2(Y[0], 68, 128)
    for idx, (d, k) in enumerate(anchors):
        a("v_cos_f32 v%d, v%d" % (d, 135 + 2 * idx))
        a("v_sin_f32 v%d, v%d" % (d + 1, 135 + 2 * idx))
    for idx, (d, k) in enumerate(anchors):
        a("v_pk_mul_f32 %s, %s, %s op_sel_hi:[1,0]" % (v(d, 2), v(d, 2), v(134 + 2 * idx, 2)))
    for k in range(12):
        a("v_mov_b32 v%d, v%d" % (F0 + k, F0 + 6 + k))
    YR0 = 25
    wr(143, 0)
    p_ = [put(Y[0], YR0, True), put(E[1], 1), put(P[1], 8)]
    for _, c, row in p_:
        wr(c, row)
    group([(Y[1], Y[0], Q, YR0 + 1, True), (Q2, Q, Q, None, False), (E[2], E[1], E[1], 2, False), (P[2], P[1], P[1], 16, False)])
    group([(Y[2], Y[0], Q2, YR0 + 2, True), (Y[3], Y[1], Q2, YR0 + 3, True), (E[3], E[2], E[1], 3, False), (E[4], E[2], E[2], 4, False)])
    group([(Y[0], Y[2], Q2, YR0 + 4, True), (Y[1], Y[3], Q2, YR0 + 5, True), (E[5], E[4], E[1], 5, False), (E[6], E[4], E[2], 6, False)])
    group([(Y[2], Y[0], Q2, YR0 + 6, True), (Y[3], Y[1], Q2, YR0 + 7, True), (E[7], E[4], E[3], 7, False), (P[3], P[2], P[1], 20, False)])
    group([(Y[0], Y[2], Q2, YR0 + 8, True), (Y[1], Y[3], Q2, YR0 + 9, True), (TT[0], P[1], E[1], 9, False), (TT[1], P[1], E[2], 10, False)])
    group([(Y[2], Y[0], Q2, YR0 + 10, True), (Y[3], Y[1], Q2, YR0 + 11, True), (TT[0], P[1], E[3], 11, False), (TT[1], P[1], E[4], 12, False)])
    group([(Y[0], Y[2], Q2, YR0 + 12, True), (Y[1], Y[3], Q2, YR0 + 13, True), (TT[0], P[1], E[5], 13, False), (TT[1], P[1], E[6], 14, False)])
    group([(Y[2], Y[0], Q2, YR0 + 14, True), (Y[3], Y[1], Q2, YR0 + 15, True), (TT[0], P[1], E[7], 15, False), (P[4], P[2], P[2], 24, False)])
    for st in range(4):
        a("ds_read_b128 %s, v%d offset:%d" % (v(YFR + 4 * st, 4), vFA, YR0 * 288 + 64 * st), tag="yf")
    for st in range(4):
        a("ds_read_b128 %s, v%d offset:%d" % (v(XFR + 4 * st, 4), vFA, 64 * st), tag="x0")
    group([(TT[0], P[2], E[2], 17, False), (TT[1], P[2], E[4], 18, False), (TT[2], P[2], E[6], 19, False), (P[5], P[4], P[1], 26, False)])
    group([(TT[0], P[3], E[2], 21, False), (TT[1], P[3], E[4], 22, False), (TT[2], P[3], E[6], 23, False), (P[6], P[4], P[2], 28, False)])
    a.wait_lg("x0")
    for st in range(4):
        a("v_mfma_f32_16x16x32_bf16 %s, %s, %s, %s" % (v(DK, 4), v(XFR + 4 * st, 4), v(YFR + 4 * st, 4), v(DK, 4)))
    group([(P[7], P[4], P[3], 30, False), (P[8], P[4], P[4], 32, False), (TT[0], P[4], E[4], 25, False), (TT[1], P[5], E[4], 27, False)])
    group([(TT[0], P[6], E[4], 29, False), (TT[1], P[7], E[4], 31, False), (TT[2], P[8], P[1], 33, False), (TT[3], P[8], P[2], 34, False)])
    for st in range(4):
        a("ds_read_b128 %s, v%d offset:%d" % (v(XFR + 16 + 4 * st, 4), vFA, 16 * 288 + 64 * st), tag="x1")
    group([(TT[0], P[8], P[3], 35, False), (TT[1], P[8], P[4], 36, False), (TT[2], P[8], P[5], 37, False)])
    group([(TT[0], P[8], P[6], 38, False), (TT[1], P[8], P[7], 39, False), (TT[2], P[8], P[8], 40, False)])
    for st in range(4):
        a("ds_read_b128 %s, v%d offset:%d" % (v(XFR + 32 + 4 * st, 4), vFA, 32 * 288 + 64 * st), tag="x2")
    a.wait_lg("x1")
    for st in range(4):
        a("v_mfma_f32_16x16x32_bf16 %s, %s, %s, %s" % (v(DK + 4, 4), v(XFR + 16 + 4 * st, 4), v(YFR + 4 * st, 4), v(DK + 4, 4)))
    a.wait_lg("x2")
    for st in range(4):
        a("v_mfma_f32_16x16x32_bf16 %s, %s, %s, %s" % (v(DK + 8, 4), v(XFR + 32 + 4 * st, 4), v(YFR + 4 * st, 4), v(DK + 8, 4)))
    a("s_sub_u32 s%d, s%d, 1" % (sT3, sT3))
    a("s_cmp_lg_u32 s%d, 0" % sT3)
    a("s_cbranch_scc1 L_kgen")
    stamp(4)
    a("v_and_b32 v16, 15, v0")
    a("v_lshrrev_b32 v17, 4, v0")
    a("s_add_u32 s%d, s%d, %d" % (sT0, sRB, TB_OFF))
    a("v_lshrrev_b32 v18, 1, v17")
    a("v_lshlrev_b32 v18, 7, v18")
    a("v_and_b32 v19, 1, v17")
    a("v_lshl_add_u32 v18, v19, 2, v18")
    a("v_lshl_add_u32 v18, v16, 3, v18")
    a("v_lshl_add_u32 v18, v18, 2, s%d" % sT0)
    a("v_lshlrev_b32 v19, 2, v16")
    a("v_lshlrev_b32 v20, 1, v16")
    a("v_cmp_gt_u32 vcc, 2, v17")
    a("v_cndmask_b32 v19, v20, v19, vcc")
    a("v_lshl_add_u32 v19, v17, 6, v19")
    a("v_lshl_add_u32 v19, v19, 2, s%d" % sT0)
    a("v_mov_b32 v20, 128")
    a("v_cndmask_b32 v20, v20, 8, vcc")
    a("v_add_u32 v20, v19, v20")
    a("v_lshl_add_u32 v21, v17, 6, v16")
    a("v_lshl_add_u32 v21, v21, 2, s%d" % sT0)
    a("v_lshlrev_b32 v22, 4, v0")
    a("v_add_u32 v22, %d, v22" % ZP_OFF)
    a("v_mov_b32 v23, 4096")
    a("v_cmp_gt_u32 vcc, 15, v0")
    a("v_cndmask_b32 v22, v23, v22, vcc")
    a("v_add_u32 v22, s%d, v22" % sRB)
    for k in range(4):
        a("v_mov_b32 v%d, 0" % (24 + k))
    a("ds_write_b128 v22, v[24:27]")
    a("ds_write_b128 v18, %s" % v(DK, 4))
    a("ds_write_b64 v19, %s offset:1024" % v(DK + 4, 2))
    a("ds_write_b64 v20, %s offset:1024" % v(DK + 6, 2))
    for r in range(4):
        a("ds_write_b32 v21, v%d offset:%d" % (DK + 8 + r, 2048 + 64 * r))
    a("v_lshl_add_u32 v18, v0, 4, s%d" % sT0)
    a("v_lshl_add_u32 v19, v0, 3, s%d" % sT0)
    a("v_subrev_u32 v20, 4, v18")
    a("v_subrev_u32 v21, 4, v19")
    a("v_cmp_eq_u32 vcc, 0, v0")
    a("v_cndmask_b32 v21, v19, v21, vcc")
    a("ds_read_b128 v[28:31], v18", tag="s0")
    a("ds_read_b32 v32, v20", tag="s0")
    a("ds_read_b64 v[34:35], v19 offset:1024", tag="s1")
    a("ds_read_b32 v36, v19 offset:1032", tag="s1")
    a("ds_read_b32 v37, v21 offset:1024", tag="s1")
    a("ds_read_b64 v[38:39], v19 offset:1536", tag="s2")
    a("ds_read_b32 v40, v19 offset:1544", tag="s2")
    a("ds_read_b64 v[42:43], v19 offset:2048", tag="s3")
    a("ds_read_b32 v44, v19 offset:2056", tag="s3")
    a("v_lshlrev_b32 v22, 3, v0")
    a("v_sub_u32 v22, s%d, v22" % sRB)
    a("v_lshlrev_b32 v23, 4, v0")
    a("v_sub_u32 v23, s%d, v23" % sRB)
    a("v_lshlrev_b32 v24, 5, v0")
    a("v_sub_u32 v24, s%d, v24" % sRB)
    a("v_add_u32 v22, %d, v22" % (4096 - 512 - 8))
    a("v_add_u32 v23, %d, v23" % (4096 - 1024 - 16))
    a("v_add_u32 v24, %d, v24" % (4096 - 2048 - 32))
    def pk(d, lo, hi):
        a("v_cvt_pk_bf16_f32 v%d, v%d, v%d" % (d, lo, hi))
    a.wait_lg("s0")
    pk(48, 31, 30); pk(49, 29, 28); pk(50, 30, 29); pk(51, 28, 32)
    a("ds_write_b64 v22, v[48:49] offset:512")
    a("ds_write_b64 v22, v[50:51] offset:%d" % (512 + KB_OFF))
    a.wait_lg("s1")
    pk(52, 36, 35); pk(53, 34, 34); pk(54, 35, 34); pk(55, 34, 37)
    a("ds_write_b64 v22, v[52:53]")
    a("ds_write_b64 v22, v[54:55] offset:%d" % KB_OFF)
    a.wait_lg("s2")
    A_, B_, C_ = 38, 39, 40
    pk(56, C_, C_); pk(57, B_, B_); pk(58, B_, A_); pk(59, A_, A_)
    pk(60, C_, B_); pk(61, B_, B_); pk(62, A_, A_); pk(63, A_, A_)
    a("ds_write_b128 v23, v[56:59]")
    a("ds_write_b128 v23, v[60:63] offset:%d" % KB_OFF)
    a.wait_lg("s3")
    A_, B_, C_ = 42, 43, 44
    seqA = [(C_, C_), (C_, C_), (B_, B_), (B_, B_), (B_, B_), (B_, A_), (A_, A_), (A_, A_)]
    seqB = [(C_, C_), (C_, B_), (B_, B_), (B_, B_), (B_, B_), (A_, A_), (A_, A_), (A_, A_)]
    for k, (lo, hi) in enumerate(seqA):
        pk(64 + k, lo, hi)
    for k, (lo, hi) in enumerate(seqB):
        pk(72 + k, lo, hi)
    a("ds_write_b128 v24, v[64:67]")
    a("ds_write_b128 v24, v[68:71] offset:16")
    a("ds_write_b128 v24, v[72:75] offset:%d" % KB_OFF)
    a("ds_write_b128 v24, v[76:79] offset:%d" % (KB_OFF + 16))
    a("v_mov_b32 v221, v%d" % vDS)
    stamp(5)
    lds_wait(12, 4, 8, 9, sleep=2)
    stamp(6)
    a("v_mul_u32_u24 v8, 10240, v0")
    a("s_lshl_b32 s%d, s%d, 4" % (sT0, sPOS))
    a("s_add_u32 s%d, s%d, 0x%x" % (sT0, sT0, XB))
    for k in range(4):
        a("buffer_load_dwordx4 %s, v8, %s, s%d offen sc1" % (v(16 + 4 * k, 4), s(rWS, 4), sT0), tag="u%d" % k)
        if k < 3:
            a("s_add_u32 s%d, s%d, %d" % (sT0, sT0, 64 * 10240))
    a("v_add_u32 v9, s%d, v2" % sRB)
    vUA, vKA = 10, 11
    a("v_and_b32 v12, 15, v0")
    a("v_lshrrev_b32 v13, 4, v0")
    a("v_lshlrev_b32 v13, 1, v13")
    a("v_sub_u32 v12, v12, v13")
    a("v_lshlrev_b32 v12, 4, v12")
    a("s_add_u32 s%d, s%d, %d" % (sT1, sRB, U_OFF - 128))
    a("v_add_u32 v%d, s%d, v12" % (vUA, sT1))
    a("v_lshrrev_b32 v12, 1, v0")
    a("v_lshlrev_b32 v12, 2, v12")
    a("v_and_b32 v13, 1, v0")
    a("v_mul_u32_u24 v13, %d, v13" % KB_OFF)
    a("v_add_u32 v12, v12, v13")
    a("s_add_u32 s%d, s%d, %d" % (sT1, sRB, KB_OFF + 4092 - 128 - 768))
    a("v_sub_u32 v%d, s%d, v12" % (vKA, sT1))
    for g in range(1, 4):
        a("v_subrev_u32 v%d, %d, v%d" % (vKA + g, 1024 * g, vKA))
    for k in range(4):
        a.wait_vm("u%d" % k)
        a("ds_write_b128 v9, %s offset:%d" % (v(16 + 4 * k, 4), U_OFF + 1024 * k))
    stamp(7)
    AC, UF, KF = 16, 80, 144
    def uread(c, mu):
        a("ds_read_b128 %s, v%d offset:%d" % (v(UF + 4 * mu, 4), vUA, 128 * (1 - c) + 256 * mu), tag="U%d_%d" % (c, mu))
    def kread(idx):
        c, tau = idx >> 4, idx & 15
        o = 192 - 64 * (tau & 3) + 32 * (1 - c)
        r = KF + 4 * (idx & 3)
        a("ds_read2_b32 %s, v%d offset0:%d offset1:%d" % (v(r, 2), vKA + (tau >> 2), o, o + 1), tag="K%d" % idx)
        a("ds_read2_b32 %s, v%d offset0:%d offset1:%d" % (v(r + 2, 2), vKA + (tau >> 2), o + 2, o + 3), tag="K%d" % idx)
    kread(0)
    for mu in range(16):
        uread(0, mu)
        if mu == 7:
            a.wait_lg("U0_1")
    kread(1); kread(2)
    for idx in range(32):
        c, tau = idx >> 4, idx & 15
        a.wait_lg("K%d" % idx)
        if idx + 3 < 32:
            kread(idx + 3)
        order = list(range(16 - tau))
        if c == 1 and tau == 0:
            order = order[::-1]
        for mu in order:
            if tau == 0:
                a.wait_lg("U%d_%d" % (c, mu))
            acc = v(AC + 4 * (tau + mu), 4)
            if not cfg.noconv or idx == 0:
                a("v_mfma_f32_16x16x32_bf16 %s, %s, %s, %s" % (acc, v(KF + 4 * (idx & 3), 4), v(UF + 4 * mu, 4), acc if idx else "0"))
        if c == 0:
            uread(1, 15 - tau)
    stamp(8)
    a("v_and_b32 v8, 15, v0")
    a("v_lshlrev_b32 v8, 4, v8")
    a("v_lshrrev_b32 v9, 5, v0")
    a("v_lshl_add_u32 v8, v9, 11, v8")
    a("v_bfe_u32 v9, v0, 4, 1")
    a("v_lshl_add_u32 v10, v9, 3, v8")
    a("s_add_u32 s%d, s%d, %d" % (sT0, sRB, U_OFF))
    a("v_add_u32 v10, s%d, v10" % sT0)
    a("v_lshl_add_u32 v11, v9, 8, v8")
    XN = 80
    for m in range(8):
        a("ds_read_b64 %s, v10 offset:%d" % (v(XN + 2 * m, 2), 256 * m), tag="xn")
    for m in range(8):
        for r in range(4):
            a("v_permlane32_swap_b32 v%d, v%d" % (AC + 4 * m + r, AC + 32 + 4 * m + r))
    CY = 100
    for r in range(4):
        a("v_mov_b32 v%d, 0" % (CY + r))
        a("v_mov_b32 v%d, v%d" % (CY + 4 + r, AC + 32 + 28 + r))
    for r in range(4):
        a("v_permlane32_swap_b32 v%d, v%d" % (CY + r, CY + 4 + r))
    for m in range(8):
        for r in range(4):
            L_ = AC + 4 * m + r
            a("v_add_f32_dpp v%d, v%d, v%d row_shr:1 row_mask:0xf bank_mask:0xf bound_ctrl:0" % (L_, AC + 32 + 4 * m + r, L_))
    for m in range(8):
        for r in range(4):
            L_ = AC + 4 * m + r
            prev = (AC + 32 + 4 * (m - 1) + r) if m else (CY + r)
            a("v_add_f32_dpp v%d, v%d, v%d row_shl:15 row_mask:0xf bank_mask:0xf bound_ctrl:0" % (L_, prev, L_))
    a.wait_lg("xn")
    XD, TP2 = AC + 32, 108
    for k in range(16):
        a("v_lshlrev_b32 v%d, 16, v%d" % (XD + 2 * k, XN + k))
        a("v_and_b32 v%d, s%d, v%d" % (XD + 2 * k + 1, sMASK, XN + k))
    a("v_mov_b32 v220, v221")
    for k in range(16):
        a("v_pk_mul_f32 %s, %s, v[220:221]" % (v(XD + 2 * k, 2), v(XD + 2 * k, 2)))
    round_pairs(XD, TP2, 16)
    round_pairs(AC, TP2, 16)
    for k in range(16):
        a("v_pk_add_f32 %s, %s, %s" % (v(AC + 2 * k, 2), v(AC + 2 * k, 2), v(XD + 2 * k, 2)))
    for k in range(16):
        a("v_cvt_pk_bf16_f32 v%d, v%d, v%d" % (TP2 + k, AC + 2 * k, AC + 2 * k + 1))
    for mp in range(4):
        a("v_permlane16_swap_b32 v%d, v%d" % (TP2 + 4 * mp, TP2 + 4 * mp + 2))
        a("v_permlane16_swap_b32 v%d, v%d" % (TP2 + 4 * mp + 1, TP2 + 4 * mp + 3))
    a("s_lshl_b32 s%d, s%d, 12" % (sT0, sPOS))
    a("s_add_u32 s%d, s%d, 0x%x" % (sT0, sT0, YA))
    for mp in range(4):
        a("buffer_store_dwordx4 %s, v11, %s, s%d offen offset:%d sc1" % (v(TP2 + 4 * mp, 4), s(rWS, 4), sT0, 512 * mp))
    a("s_lshl_b32 s%d, s%d, 7" % (sT1, sPOS))
    a("s_add_u32 s%d, s%d, 0x%x" % (sT1, sT1, YF))
    a.drain_vm()
    flag_store(sT1, 12, 13)
    stamp(9)
    a.label("L_aux_done")
    finish()

    a.label("L_w7")
    a.vm = []; a.lg = []
    a("v_lshlrev_b32 v8, 7, v0")
    a("v_min_u32 v9, 15, v0")
    a("v_lshlrev_b32 v9, 7, v9")
    a("s_mul_i32 s%d, s%d, %d" % (sT0, sDT2, 80 * 128))
    a("s_add_u32 s%d, s%d, 0x%x" % (sD[0], sT0, YF))
    a("s_add_u32 s%d, s%d, %d" % (sD[1], sD[0], 64 * 128))
    lds_wait(16, 1, 10, 11, sleep=8)
    poll([8, 9], [sD[0], sD[1]], 16)
    stamp(6)
    a("v_lshrrev_b32 v8, 3, v0")
    a("v_lshlrev_b32 v8, 12, v8")
    a("v_and_b32 v9, 7, v0")
    a("v_lshl_add_u32 v8, v9, 4, v8")
    a("s_mul_i32 s%d, s%d, %d" % (sT0, sDT2, 80 * 4096))
    a("s_lshl_b32 s%d, s%d, 7" % (sT1, sST))
    a("s_add_u32 s%d, s%d, s%d" % (sT0, sT0, sT1))
    a("s_add_u32 s%d, s%d, 0x%x" % (sT0, sT0, YA))
    for k in range(10):
        a("buffer_load_dwordx4 %s, v8, %s, s%d offen sc1" % (v(16 + 4 * k, 4), s(rWS, 4), sT0), tag="y%d" % k)
        if k < 9:
            a("s_add_u32 s%d, s%d, %d" % (sT0, sT0, 8 * 4096))
    for k in range(10):
        a.wait_vm("y%d" % k)
        a("ds_write_b128 v2, %s offset:%d" % (v(16 + 4 * k, 4), RY + 1024 * k))
    stamp(7)
    finish()
    a.label("L_exit")
    a("s_endpgm")
    a.label("L_code_end")
    return a

HEADER = open("cdna_kernels/%s.s.ref" % NAME).read().split("; Override launch")[0]

def full(cfg):
    a = gen(cfg)
    out = HEADER
    out += "; @launch grid=(256,1,1) block=(512,1,1) lds=%d\n" % LDS_BYTES
    out += '.amdgcn_target "amdgcn-amd-amdhsa--gfx950"\n.text\n.globl %s_kernel\n.p2align 8\n.type %s_kernel,@function\n' % (NAME, NAME)
    out += a.text()
    out += """.section .rodata,"a"
.p2align 6
.amdhsa_kernel %s_kernel
  .amdhsa_next_free_vgpr 256
  .amdhsa_next_free_sgpr 102
  .amdhsa_accum_offset 256
  .amdhsa_group_segment_fixed_size 0
  .amdhsa_kernarg_size 136
  .amdhsa_user_sgpr_count 2
  .amdhsa_user_sgpr_kernarg_segment_ptr 1
  .amdhsa_system_sgpr_workgroup_id_x 1
  .amdhsa_float_denorm_mode_32 3
.end_amdhsa_kernel
""" % NAME
    return out, a

if __name__ == "__main__":
    cfg = Cfg()
    outp = "cdna_kernels/%s.s" % NAME
    for arg in sys.argv[1:]:
        k, val = arg.split("=")
        if k == "out":
            outp = val
        else:
            cur = getattr(cfg, k)
            setattr(cfg, k, val if isinstance(cur, str) else (bool(int(val)) if isinstance(cur, bool) else int(val)))
    txt, a = full(cfg)
    open(outp, "w").write(txt)
    print("wrote", outp, "instr", a.ninst, "pad states", a.npad)
```

```python
import re

TRANS = ("v_exp_f32", "v_log_f32", "v_rcp_f32", "v_rsq_f32", "v_sqrt_f32", "v_sin_f32", "v_cos_f32")

def _regs(tok):
    t = tok.strip()
    t = t.lstrip("-")
    if t.startswith("abs(") or t.startswith("neg("):
        t = t[4:-1]
    if t.startswith("|"):
        t = t.strip("|")
    m = re.fullmatch(r"([vsa])(\d+)", t)
    if m:
        return {(m.group(1), int(m.group(2)))}
    m = re.fullmatch(r"([vsa])\[(\d+):(\d+)\]", t)
    if m:
        return {(m.group(1), i) for i in range(int(m.group(2)), int(m.group(3)) + 1)}
    if t == "vcc":
        return {("s", 106), ("s", 107)}
    if t == "vcc_lo":
        return {("s", 106)}
    if t == "vcc_hi":
        return {("s", 107)}
    if t == "exec":
        return {("s", 126), ("s", 127)}
    if t == "m0":
        return {("s", 124)}
    return set()

class Ins:
    __slots__ = ("text", "op", "cls", "wr", "rd", "srcc", "ab", "dpp", "ws", "wide_store_data", "lds_m0", "passes")

def parse(text):
    i = Ins()
    i.text = text
    body = text.split(";")[0].strip()
    parts = body.split(None, 1)
    op = parts[0]
    i.op = op
    rest = parts[1] if len(parts) > 1 else ""
    ops, depth, cur = [], 0, ""
    for ch in rest:
        if ch in "[(":
            depth += 1
        if ch in "])":
            depth -= 1
        if ch == "," and depth == 0:
            ops.append(cur.strip()); cur = ""
        else:
            cur += ch
    if cur.strip():
        ops.append(cur.strip())
    mods = ""
    if ops:
        sp = ops[-1].split(None, 1)
        ops[-1] = sp[0]
        mods = sp[1] if len(sp) > 1 else ""
    R = [_regs(o) for o in ops]
    i.wr, i.rd, i.srcc, i.ab = set(), set(), set(), set()
    i.dpp = ("_dpp" in op) or bool(re.search(r"row_sh|row_ror|row_bcast|quad_perm|row_mirror|row_half_mirror|wave_", mods))
    i.ws = 1
    i.wide_store_data = set()
    i.lds_m0 = False
    i.passes = 0
    def un(l):
        s = set()
        for x in l:
            s |= x
        return s
    if op.startswith("v_mfma"):
        i.cls = "mfma"
        i.wr = R[0]; i.ab = R[1] | R[2]; i.srcc = R[3]; i.rd = i.ab | i.srcc
        i.passes = 4 if "16x16x32" in op else 8
    elif op.startswith("v_"):
        i.cls = "valu"
        if op.startswith("v_permlane") and "swap" in op:
            i.wr = R[0] | R[1]; i.rd = R[0] | R[1]
        elif op.startswith("v_cmp"):
            i.wr = R[0]; i.rd = un(R[1:])
        elif re.match(r"v_(add|sub|subrev)_co_u32", op):
            i.wr = R[0] | R[1]; i.rd = un(R[2:])
        elif re.match(r"v_(addc|subb)_co_u32", op):
            i.wr = R[0] | R[1]; i.rd = un(R[2:])
        elif op.startswith("v_fmac") or op.startswith("v_dot2c") or op.startswith("v_writelane"):
            i.wr = R[0]; i.rd = un(R)
        elif op == "v_nop":
            pass
        else:
            i.wr = R[0]; i.rd = un(R[1:])
            if i.dpp and "bound_ctrl" not in mods:
                i.rd |= R[0]
            if i.dpp and not re.search(r"row_mask:0xf", mods):
                i.rd |= R[0]
    elif op.startswith("buffer_") or op.startswith("global_"):
        i.cls = "vmem"
        lds = bool(re.search(r"\blds\b", mods)) or "_lds_" in op
        if lds:
            i.rd = un(R); i.lds_m0 = True; i.rd |= {("s", 124)}
        elif "_load" in op:
            i.wr = R[0]; i.rd = un(R[1:])
            if "d16" in op:
                i.rd |= R[0]
        else:
            i.rd = un(R)
            if "x4" in op or "x3" in op:
                i.wide_store_data = R[0] if op.startswith("buffer_") else R[1]
    elif op.startswith("ds_"):
        i.cls = "ds"
        if "addtid" in op:
            i.lds_m0 = True
        if op.startswith("ds_read") or "_rtn" in op or "permute" in op or "swizzle" in op:
            i.wr = R[0]; i.rd = un(R[1:])
            if "d16" in op:
                i.rd |= R[0]
        else:
            i.rd = un(R)
        if i.lds_m0:
            i.rd |= {("s", 124)}
    elif op.startswith("s_"):
        i.cls = "salu"
        if op == "s_nop":
            i.ws = int(ops[0], 0) + 1
        elif op.startswith("s_cmp") or op.startswith("s_cbranch") or op in ("s_branch", "s_waitcnt", "s_barrier", "s_endpgm", "s_sleep", "s_setprio", "s_bitcmp1_b32", "s_bitcmp0_b32"):
            i.rd = un(R)
        elif op.startswith("s_load") or op.startswith("s_mem"):
            i.cls = "smem"; i.wr = R[0]; i.rd = un(R[1:])
        else:
            i.wr = R[0] if R else set(); i.rd = un(R[1:])
            if "saveexec" in op:
                i.wr |= {("s", 126), ("s", 127)}
    else:
        raise ValueError("cannot parse: " + text)
    return i

def need(p, c):
    n = 0
    pv = {r for r in p.wr if r[0] in "va"}
    ps = {r for r in p.wr if r[0] == "s"}
    if p.cls == "valu":
        if c.cls == "mfma" and pv & c.rd:
            n = max(n, 2)
        if c.cls == "valu":
            if c.dpp and pv & c.rd:
                n = max(n, 2)
            if c.op.startswith("v_permlane") and pv & c.rd:
                n = max(n, 2)
            if (c.op.startswith("v_readlane") or c.op.startswith("v_readfirstlane")) and pv & c.rd:
                n = max(n, 1)
            if ps & c.rd:
                n = max(n, 4 if ("readlane" in c.op or "writelane" in c.op) else 2)
            if re.sub(r"_e(32|64)$", "", p.op) in TRANS and pv & (c.rd | c.wr):
                n = max(n, 1)
        if c.cls in ("vmem", "ds") and re.sub(r"_e(32|64)$", "", p.op) in TRANS and pv & c.rd:
            n = max(n, 1)
        if c.cls == "vmem" and ps & c.rd:
            n = max(n, 5)
        if c.cls in ("salu", "smem") and ps & c.rd:
            n = max(n, 1)
    if p.cls == "mfma":
        big = {4: 8, 8: 12}[p.passes]
        mid = {4: 6, 8: 10}[p.passes]
        war = {4: 3, 8: 7}[p.passes]
        if c.cls == "mfma":
            if p.wr & c.ab:
                n = max(n, big)
            if p.wr & c.srcc and not (p.wr == c.srcc and p.passes == c.passes):
                n = max(n, mid)
            if p.wr & c.wr and not (p.wr == c.srcc):
                n = max(n, mid)
        elif c.cls in ("valu", "vmem", "ds"):
            if p.wr & (c.rd | c.wr):
                n = max(n, big)
            if c.cls == "valu" and p.srcc & c.wr:
                n = max(n, war)
    if p.cls == "salu" and ("s", 124) in p.wr and c.lds_m0:
        n = max(n, 1)
    if p.wide_store_data and (p.wide_store_data & c.wr):
        n = max(n, 2)
    return n

class Asm:
    def __init__(self):
        self.lines = []
        self.window = []
        self.vm = []
        self.lg = []
        self.npad = 0
        self.ninst = 0

    def raw(self, text):
        self.lines.append(text)

    def comment(self, text):
        self.lines.append("    ; " + text)

    def label(self, name):
        self.lines.append(name + ":")

    cap = None
    def capture(self, fn, *args):
        assert self.cap is None
        self.cap = []
        fn(*args)
        r, self.cap = self.cap, None
        return r

    def play(self, item):
        kind, x, tag = item
        if kind == "i":
            self(x, tag)
        else:
            getattr(self, kind)(x)

    def __call__(self, text, tag=None):
        if self.cap is not None:
            self.cap.append(("i", text, tag)); return
        i = parse(text)
        pad = 0
        dist = 0
        for p in reversed(self.window):
            r = need(p, i)
            if r > dist:
                pad = max(pad, r - dist)
            dist += p.ws
            if dist >= 12:
                break
        if pad:
            self.npad += pad
            nop = parse("s_nop %d" % (pad - 1))
            self.window.append(nop)
            self.lines.append("    s_nop %d" % (pad - 1))
        self.window.append(i)
        if len(self.window) > 16:
            self.window.pop(0)
        self.lines.append("    " + text)
        self.ninst += 1
        if i.cls == "vmem":
            self.vm.append(tag)
        if i.cls == "ds":
            self.lg.append(tag)
        return i

    def wait_vm(self, tag):
        if self.cap is not None:
            self.cap.append(("wait_vm", tag, None)); return
        idx = max((k for k, t in enumerate(self.vm) if t == tag), default=None)
        if idx is None:
            return
        n = len(self.vm) - 1 - idx
        n = min(n, 63)
        self("s_waitcnt vmcnt(%d)" % n)
        self.vm = self.vm[len(self.vm) - n:] if n else []

    def wait_lg(self, tag):
        if self.cap is not None:
            self.cap.append(("wait_lg", tag, None)); return
        idx = max((k for k, t in enumerate(self.lg) if t == tag), default=None)
        if idx is None:
            return
        n = len(self.lg) - 1 - idx
        n = min(n, 15)
        self("s_waitcnt lgkmcnt(%d)" % n)
        self.lg = self.lg[len(self.lg) - n:] if n else []

    def drain_vm(self):
        self("s_waitcnt vmcnt(0)"); self.vm = []

    def drain_lg(self):
        self("s_waitcnt lgkmcnt(0)"); self.lg = []

    def drain(self):
        self("s_waitcnt vmcnt(0) lgkmcnt(0)"); self.vm = []; self.lg = []

    def fence(self):
        self("s_nop 7"); self("s_nop 3")

    def reset_counts(self, vm=None, lg=None):
        self.vm = list(vm or []); self.lg = list(lg or [])

    def text(self):
        return "\n".join(self.lines) + "\n"

def v(n, c=1):
    return "v%d" % n if c == 1 else "v[%d:%d]" % (n, n + c - 1)

def s(n, c=1):
    return "s%d" % n if c == 1 else "s[%d:%d]" % (n, n + c - 1)
```

```python
import sys, struct, math
from asmlib import Asm, v, s

NAME = "parallel_sum__ssm_conv_s4__mixer_token_mlp__prompt"

def f32(x):
    return "0x%08x" % struct.unpack("<I", struct.pack("<f", x))[0]

class Cfg:
    ts = False
    spin = 2048
    depth1 = 2
    depth2 = 2
    out_pol = ""
    stop = 99
    xpol = ''
    ppol = ''
    tpol = ''
    t2pol = ''
    map8 = 1
    map1 = 8
    map2 = 8
    t2gap = 0
    late = 0
    fsh = 7
    touch1 = 0
    xtl = 1
    kprio = 1
    pre1 = 0
    touch2 = 0
    tdep = 1
    fillk = 2
    noload = 0
    xm1 = 2
    fm1 = 0
    xm2 = 3
    fm2 = 0
    nokw = 0
    nopk = 0
    cprio = 0
    eprio = 3
    lateb = 0
    nagg = 8
    wrot1 = 1
    wrot2 = 1
    prea = 0
    preb = 2
    prec = 0
    swz = 0
    fine = 1
    c8k = 13
    uprio = 3
    refresh = 0
    e1 = 2
    e0 = 2
    nt1 = 0
    nt2 = 0
    pause = 1
    psleep = 1
    asleep = 0
    badmap = False
    dbg = False
    dbgw = 8
    nomfma = False
    apol = 'sc1'
    noadv = False
    noconv = False
    rotm1 = 0
    rotk1 = 0
    rotm2 = 0
    rotk2 = 0
    nsh1 = 1
    sub1 = 2
    nsh2 = 1
    sub2 = 2
    rot3 = 0
    ysleep = 2

HB, XB, GB, YA = 0, 0x280000, 0x500000, 0x700000
FL = 0xA00000
HF, XF, GF, YF, EW = FL, FL + 0x10000, FL + 0x20000, FL + 0x40000, FL + 0x60000
MB, YC = FL + 0x80000, FL + 0x10000
TSO = 0xB00000
WS_BYTES = 0xC00000
S = 12576
RY = 3 * S
CNT = RY + 10240
BIA = CNT + 32
WOFF = 49152
WSZ = 28672
LDS_BYTES = 163840
KB_OFF, ZP_OFF, U_OFF = 4160, 8256, 8480
TB_OFF = U_OFF + 16
sID, sWV, sX, sJ, sTAG = 2, 3, 4, 5, 6
pX, pARE, pAIM, pBRE, pBIM, pCRE, pCIM, pLDT, pDSK, pBX, pW1, pB1, pW2, pB2, pOUT, pDBG, pWS = [16 + 2 * i for i in range(17)]
rWS, rX, rW1, rW2, rOUT, rCODE = 52, 56, 60, 64, 68, 72
rB = rCODE
sDT, sFT, sDT2, sST, sWB = 76, 77, 78, 79, 80
sOW, sOWB, sOWE = 81, 82, 83
sOA, sOAB, sOAE = 84, 85, 86
sD = [87, 88, 89, 90]
sT0, sT1, sT2, sT3 = 8, 9, 10, 11
sCNT = 12
sORD1, sORD2 = (50, 51), (91, 92)
sPOS, sCH, sRB = 93, 94, 95
sMASK = 13
vL, vTS = 0, 15

def gen(cfg):
    a = Asm()
    nts = [0]
    def stamp(idx):
        if not cfg.ts:
            return
        a("s_memrealtime s[98:99]")
        a("s_waitcnt lgkmcnt(0)"); a.lg = []
        a("v_writelane_b32 v%d, s98, %d" % (vTS, idx))
        if idx in (0, 4, 5, 9, 10, 11):
            a("s_memtime s[98:99]")
            a("s_waitcnt lgkmcnt(0)")
            a("v_writelane_b32 v%d, s98, %d" % (vTS, 48 + idx))

    def finish():
        if cfg.ts:
            a("s_lshl_b32 s%d, s%d, 3" % (sT0, sID))
            a("s_add_u32 s%d, s%d, s%d" % (sT0, sT0, sWV))
            a("s_lshl_b32 s%d, s%d, 8" % (sT0, sT0))
            a("s_add_u32 s%d, s%d, 0x%x" % (sT0, sT0, TSO))
            a("v_lshlrev_b32 v1, 2, v%d" % vL)
            a("buffer_store_dword v%d, v1, %s, s%d offen" % (vTS, s(rWS, 4), sT0))
            if cfg.dbg:
                n = nts[0]; nts[0] += 1
                a("s_lshl_b32 s%d, s%d, 3" % (sT0, sID))
                a("s_add_u32 s%d, s%d, s%d" % (sT0, sT0, sWV))
                a("s_cmp_lg_u32 s%d, %d" % (sT0, cfg.dbgw))
                a("s_cbranch_scc1 L_nodbg%d" % n)
                a("v_readlane_b32 s%d, v%d, 0" % (sT0, vTS))
                a("v_subrev_u32 v2, s%d, v%d" % (sT0, vTS))
                a("s_mov_b64 exec, 0xffff")
                a("global_store_dword v1, v2, %s" % s(pDBG, 2))
                a.label("L_nodbg%d" % n)
        a("s_waitcnt vmcnt(0) lgkmcnt(0)")
        a("s_endpgm")

    def srd(r, p, nbytes):
        a("s_mov_b32 s%d, s%d" % (r, p))
        a("s_and_b32 s%d, s%d, 0xffff" % (r + 1, p + 1))
        a("s_mov_b32 s%d, 0x%x" % (r + 2, nbytes))
        a("s_mov_b32 s%d, 0x20000" % (r + 3))

    npoll = [0]
    def poll(voffs, soffs, vdata, sleep=4, lanes=64):
        n = npoll[0]; npoll[0] += 1
        a("s_mov_b32 s%d, %d" % (sCNT, cfg.spin))
        if lanes < 64:
            a("s_mov_b64 exec, %d" % ((1 << lanes) - 1))
        a.label("L_poll%d" % n)
        for k, (vo, so) in enumerate(zip(voffs, soffs)):
            a("buffer_load_dword v%d, v%d, %s, s%d offen sc1" % (vdata + k, vo, s(rWS, 4), so))
        a.drain_vm()
        a("v_cmp_ne_u32 vcc, s%d, v%d" % (sTAG, vdata))
        for k in range(1, len(voffs)):
            a("v_cmp_ne_u32 s[14:15], s%d, v%d" % (sTAG, vdata + k))
            a("s_or_b64 vcc, vcc, s[14:15]")
        a("s_cmp_eq_u64 vcc, 0")
        a("s_cbranch_scc1 L_pollok%d" % n)
        a("s_sub_u32 s%d, s%d, 1" % (sCNT, sCNT))
        a("s_cmp_eq_u32 s%d, 0" % sCNT)
        a("s_cbranch_scc1 L_pollok%d" % n)
        a("s_mov_b64 exec, vcc")
        if sleep:
            a("s_sleep %d" % sleep)
        a("s_branch L_poll%d" % n)
        a.label("L_pollok%d" % n)
        a("s_mov_b64 exec, -1")

    def spoll(soff, sleep=1, target=None):
        n = npoll[0]; npoll[0] += 1
        a("s_add_u32 s14, s%d, s%d" % (pWS, soff))
        a("s_addc_u32 s15, s%d, 0" % (pWS + 1))
        a("s_mov_b32 s%d, %d" % (sCNT, cfg.spin * 2))
        a.label("L_sp%d" % n)
        a("s_load_dword s7, s[14:15], 0 glc")
        a("s_waitcnt lgkmcnt(0)"); a.lg = []
        if target is None:
            a("s_cmp_eq_u32 s7, s%d" % sTAG)
        else:
            a("s_cmp_eq_u32 s7, %d" % target)
        a("s_cbranch_scc1 L_spok%d" % n)
        if sleep:
            a("s_sleep %d" % sleep)
        a("s_sub_u32 s%d, s%d, 1" % (sCNT, sCNT))
        a("s_cmp_lg_u32 s%d, 0" % sCNT)
        a("s_cbranch_scc1 L_sp%d" % n)
        a.label("L_spok%d" % n)

    def group_ids(vdst, vtmp, sg, shift):
        if cfg.map2 == 8:
            a("v_and_b32 v%d, 24, v0" % vdst)
            a("v_lshlrev_b32 v%d, 3, v%d" % (vdst, vdst))
            a("v_and_b32 v%d, 7, v0" % vtmp)
            a("v_add_u32 v%d, v%d, v%d" % (vdst, vdst, vtmp))
            a("s_lshl_b32 s%d, s%d, 3" % (sT0, sg))
        else:
            a("v_and_b32 v%d, 28, v0" % vdst)
            a("v_lshlrev_b32 v%d, 3, v%d" % (vdst, vdst))
            a("v_and_b32 v%d, 3, v0" % vtmp)
            a("v_lshl_add_u32 v%d, v%d, 1, v%d" % (vdst, vtmp, vdst))
            a("s_and_b32 s%d, s%d, 3" % (sT0, sg))
            a("s_lshl_b32 s%d, s%d, 3" % (sT0, sT0))
            a("s_lshr_b32 s14, s%d, 2" % sg)
            a("s_add_u32 s%d, s%d, s14" % (sT0, sT0))
        a("v_add_lshl_u32 v%d, v%d, s%d, %d" % (vdst, vdst, sT0, shift))

    def group_add(voff, soff, vtmp):
        a("v_mov_b32 v%d, 1" % vtmp)
        a("s_mov_b64 exec, 0xffffffff")
        a("buffer_atomic_add v%d, v%d, %s, s%d offen sc1" % (vtmp, voff, s(rWS, 4), soff), tag="flag")
        a("s_mov_b64 exec, -1")

    def flag_store(soff, vtmp0, vtmp1):
        a("v_mov_b32 v%d, s%d" % (vtmp0, sTAG))
        a("v_mov_b32 v%d, 0" % vtmp1)
        a("s_mov_b64 exec, 1")
        a("buffer_store_dword v%d, v%d, %s, s%d offen sc1" % (vtmp0, vtmp1, s(rWS, 4), soff), tag="flag")
        a("s_mov_b64 exec, -1")

    nl = [0]
    def lds_arrive(off, vt0, vt1):
        a("v_mov_b32 v%d, %d" % (vt0, CNT + off))
        a("v_mov_b32 v%d, 1" % vt1)
        a("s_mov_b64 exec, 1")
        a("ds_add_u32 v%d, v%d" % (vt0, vt1))
        a("s_mov_b64 exec, -1")

    def lds_wait(off, target, vt0, vt1, sleep=0):
        n = nl[0]; nl[0] += 1
        a("v_mov_b32 v%d, %d" % (vt0, CNT + off))
        a("s_mov_b32 s%d, 0x%x" % (sCNT, cfg.spin * 64))
        a.label("L_lw%d" % n)
        a("ds_read_b32 v%d, v%d" % (vt1, vt0))
        a.drain_lg()
        a("v_readfirstlane_b32 s%d, v%d" % (sT0, vt1))
        a("s_cmp_ge_u32 s%d, %d" % (sT0, target))
        a("s_cbranch_scc1 L_lwok%d" % n)
        if sleep:
            a("s_sleep %d" % sleep)
        a("s_sub_u32 s%d, s%d, 1" % (sCNT, sCNT))
        a("s_cmp_lg_u32 s%d, 0" % sCNT)
        a("s_cbranch_scc1 L_lw%d" % n)
        a.label("L_lwok%d" % n)

    a.label(NAME + "_kernel")
    a("s_cmp_ge_u32 s2, 256")
    a("s_cbranch_scc1 L_exit")
    a("s_load_dwordx16 s[16:31], s[0:1], 0")
    a("s_load_dwordx16 s[32:47], s[0:1], 64")
    a("s_load_dwordx2 s[48:49], s[0:1], 128")
    a("s_getpc_b64 s[%d:%d]" % (rCODE, rCODE + 1))
    a.label("L_pc")
    a("v_lshrrev_b32 v1, 6, v0")
    a("v_and_b32 v0, 63, v0")
    if cfg.ts:
        a("v_mov_b32 v%d, 0" % vTS)
    a("v_readfirstlane_b32 s%d, v1" % sWV)
    if cfg.badmap:
        a("s_lshr_b32 s%d, s2, 5" % sX)
        a("s_and_b32 s%d, s2, 31" % sJ)
    else:
        a("s_and_b32 s%d, s2, 7" % sX)
        a("s_lshr_b32 s%d, s2, 3" % sJ)
    a("s_mov_b32 s%d, 0xffff0000" % sMASK)
    a("s_and_b32 s%d, s%d, 0xffff" % (rCODE + 1, rCODE + 1))
    a("s_mov_b32 s%d, L_code_end-L_pc" % (rCODE + 2))
    a("s_mov_b32 s%d, 0x20000" % (rCODE + 3))
    a("s_cmp_lg_u32 s%d, 7" % sWV)
    a("s_cbranch_scc1 L_nopf")
    a("s_lshl_b32 s%d, s%d, 7" % (sT0, sJ))
    a("v_lshlrev_b32 v1, 12, v0")
    a("buffer_load_dword v14, v1, %s, s%d offen" % (s(rCODE, 4), sT0))
    a("v_mov_b32 v21, %d" % CNT)
    for k in range(4):
        a("v_mov_b32 v%d, 0" % (24 + k))
    a("ds_write_b128 v21, v[24:27]")
    a("ds_write_b128 v21, v[24:27] offset:16")
    a.label("L_nopf")
    a.vm = []; a.lg = []
    a("v_lshlrev_b32 v2, 4, v0")
    a("v_lshlrev_b32 v3, 2, v0")
    a("v_mov_b32 v7, 0")
    a("v_mov_b32 v8, 0")
    nline = 3 if cfg.map1 == 8 else 6
    def tile_math():
        a("s_and_b32 s%d, s%d, 1" % (sT0, sX))
        a("s_lshr_b32 s%d, s%d, 1" % (sT1, sX))
        a("v_mul_u32_u24 v62, 3072, v0")
        a("s_mul_i32 s96, s%d, %d" % (sJ, 64 * 3072))
        if cfg.map1 == 8:
            a("s_mul_i32 s%d, s%d, 26" % (sT2, sJ))
            a("s_lshr_b32 s%d, s%d, 8" % (sT2, sT2))
            a("s_mul_i32 s%d, s%d, 10" % (sT3, sT2))
            a("s_sub_u32 s%d, s%d, s%d" % (sT3, sJ, sT3))
            a("s_mov_b32 s%d, s%d" % (sDT, sT3))
            a("s_mul_i32 s%d, s%d, 3" % (sFT, sX))
        else:
            a("s_mul_i32 s%d, s%d, 13" % (sT2, sJ))
            a("s_lshr_b32 s%d, s%d, 6" % (sT2, sT2))
            a("s_mul_i32 s%d, s%d, 5" % (sT3, sT2))
            a("s_sub_u32 s%d, s%d, s%d" % (sT3, sJ, sT3))
            a("s_mul_i32 s%d, s%d, 5" % (sDT, sT0))
            a("s_add_u32 s%d, s%d, s%d" % (sDT, sDT, sT3))
            a("s_mul_i32 s%d, s%d, 6" % (sFT, sT1))
        a("s_add_u32 s97, s%d, s%d" % (sFT, sWV))
        a("s_lshl_b32 s97, s97, 7")
        a("s_add_u32 s96, s96, s97")
        a("s_cmp_ge_u32 s%d, 3" % sWV)
        a("s_cselect_b32 s96, 0x7f000000, s96")
        a("s_add_u32 s%d, s%d, s%d" % (sFT, sFT, sT2))
        def order(n, nsh, sub, r):
            if nsh <= 1:
                return list(range(n))
            o = []
            g = nsh * sub
            for b in range(0, n, g):
                blk = list(range(b, min(b + g, n)))
                k = (r * sub) % len(blk) if len(blk) == g else (r * len(blk) // nsh) % len(blk)
                o += blk[k:] + blk[:k]
            return o
        def pack(o):
            o = o + [0] * (16 - len(o))
            return sum(x << (4 * i) for i, x in enumerate(o[:8])), sum(x << (4 * i) for i, x in enumerate(o[8:]))
        def sel_list(dst, sidx, orders):
            for r, o in enumerate(orders):
                lo, hi = pack(list(o))
                if r == 0:
                    a("s_mov_b32 s%d, 0x%x" % (dst[0], lo))
                    a("s_mov_b32 s%d, 0x%x" % (dst[1], hi))
                elif o != orders[0]:
                    a("s_cmp_eq_u32 s%d, %d" % (sidx, r))
                    a("s_cselect_b32 s%d, 0x%x, s%d" % (dst[0], lo, dst[0]))
                    a("s_cselect_b32 s%d, 0x%x, s%d" % (dst[1], hi, dst[1]))
        def sel_order(dst, sidx, nidx, n, nsh, sub):
            sel_list(dst, sidx, [order(n, nsh, sub, r % max(nsh, 1)) for r in range(nidx)])
        def rotl(n, k):
            return [(i + k) % n for i in range(n)]
        if cfg.wrot1:
            nd = 30 // nline
            a("s_mul_i32 s97, s%d, %d" % (sT3, -(-16 * 256 // nd)))
            a("s_lshr_b32 s97, s97, 8")
            a("s_mul_i32 s14, s%d, %d" % (sX, cfg.xm1))
            a("s_add_u32 s97, s97, s14")
            a("s_mul_i32 s14, s%d, %d" % (sT2, cfg.fm1))
            a("s_add_u32 s97, s97, s14")
            a("s_and_b32 s97, s97, 15")
            a("s_lshl_b32 s97, s97, 2")
            a("s_mov_b32 s100, 0x76543210")
            a("s_mov_b32 s101, 0xfedcba98")
            a("s_lshr_b64 s[%d:%d], s[100:101], s97" % sORD1)
            a("s_sub_u32 s97, 64, s97")
            a("s_lshl_b64 s[100:101], s[100:101], s97")
            a("s_or_b64 s[%d:%d], s[%d:%d], s[100:101]" % (sORD1 + sORD1))
        else:
            sel_order(sORD1, sT2, nline, 16, cfg.nsh1, cfg.sub1)
        if cfg.map2 == 8:
            a("s_and_b32 s%d, s%d, 7" % (sT2, sJ))
            a("s_lshr_b32 s%d, s%d, 3" % (sT3, sJ))
            a("s_mov_b32 s%d, s%d" % (sDT2, sT2))
            a("s_lshl_b32 s%d, s%d, 2" % (sST, sX))
        else:
            a("s_and_b32 s%d, s%d, 3" % (sT2, sJ))
            a("s_lshr_b32 s%d, s%d, 2" % (sT3, sJ))
            a("s_lshl_b32 s%d, s%d, 2" % (sDT2, sT0))
            a("s_add_u32 s%d, s%d, s%d" % (sDT2, sDT2, sT2))
            a("s_lshl_b32 s%d, s%d, 3" % (sST, sT1))
        a("s_add_u32 s%d, s%d, s%d" % (sST, sST, sT3))
        if cfg.wrot2:
            nd = 8 if cfg.map2 == 8 else 4
            a("s_mul_i32 s97, s%d, %d" % (sT2, 24 // nd))
            a("s_mul_i32 s14, s%d, %d" % (sX, cfg.xm2))
            a("s_add_u32 s97, s97, s14")
            a("s_mul_i32 s14, s%d, %d" % (sT3, cfg.fm2))
            a("s_add_u32 s97, s97, s14")
            a("s_lshr_b32 s97, s97, 1")
            a("s_mul_i32 s14, s97, 43")
            a("s_lshr_b32 s14, s14, 9")
            a("s_mul_i32 s14, s14, 12")
            a("s_sub_u32 s97, s97, s14")
            sel_list(sORD2, 97, [rotl(12, r) for r in range(12)])
        else:
            sel_order(sORD2, sT3, 4 if cfg.map2 == 8 else 8, 12, cfg.nsh2, cfg.sub2)
    def chan_math():
        a("s_and_b32 s%d, s%d, 3" % (sT0, sWV))
        a("s_cmp_eq_u32 s%d, 7" % sWV)
        a("s_cselect_b32 s%d, 0, s%d" % (sT0, sT0))
        a("s_mul_i32 s%d, s%d, %d" % (sRB, sT0, S))
        a("s_lshr_b32 s%d, s%d, 1" % (sT1, sJ))
        a("s_mul_i32 s%d, s%d, 5" % (sT1, sT1))
        a("s_and_b32 s%d, s%d, 1" % (sT2, sJ))
        a("s_mul_i32 s%d, s%d, 3" % (sT2, sT2))
        a("s_add_u32 s%d, s%d, s%d" % (sT1, sT1, sT2))
        a("s_add_u32 s%d, s%d, s%d" % (sT1, sT1, sT0))
        a("s_min_u32 s%d, s%d, 79" % (sT1, sT1))
        a("s_and_b32 s%d, s%d, 35" % (sT2, sT1))
        a("s_and_b32 s%d, s%d, 12" % (sT3, sT1))
        a("s_lshl_b32 s%d, s%d, 1" % (sT3, sT3))
        a("s_or_b32 s%d, s%d, s%d" % (sT2, sT2, sT3))
        a("s_and_b32 s%d, s%d, 16" % (sT3, sT1))
        a("s_lshr_b32 s%d, s%d, 2" % (sT3, sT3))
        a("s_or_b32 s%d, s%d, s%d" % (sT2, sT2, sT3))
        a("s_cmp_ge_u32 s%d, 64" % sT1)
        a("s_cselect_b32 s%d, s%d, s%d" % (sT2, sT1, sT2))
        a("s_mul_i32 s%d, s%d, 80" % (sT3, sX))
        a("s_add_u32 s%d, s%d, s%d" % (sPOS, sT3, sT1))
        a("s_add_u32 s%d, s%d, s%d" % (sCH, sT3, sT2))
        a("s_mul_i32 s%d, s%d, 384" % (sT0, sCH))
        a("v_add_u32 v10, s%d, v3" % sT0)
        a("v_lshlrev_b32 v11, 1, v0")
        a("v_add_u32 v11, s%d, v11" % sT0)
        a("s_lshl_b32 s%d, s%d, 1" % (sT0, sCH))
        a("v_mov_b32 v12, s%d" % sT0)
    for r, nb in ((rWS, WS_BYTES), (rW2, 1536 * 4096)):
        a("s_mov_b32 s%d, 0x%x" % (r + 2, nb))
        a("s_mov_b32 s%d, 0x20000" % (r + 3))
    a("s_cmp_ge_u32 s%d, 4" % sWV)
    a("s_cbranch_scc1 L_aux_pre")
    a("s_lshl_b32 s%d, s2, 2" % sT0)
    a("s_add_u32 s%d, s%d, s%d" % (sT0, sT0, sWV))
    a("s_mul_i32 s%d, s%d, 2560" % (sT0, sT0))
    for r, nb in ((rX, 2621440), (rW1, 2048 * 3072), (rOUT, 2621440)):
        a("s_mov_b32 s%d, 0x%x" % (r + 2, nb))
        a("s_mov_b32 s%d, 0x20000" % (r + 3))
    def srd_bases(lst):
        for r, p in lst:
            a("s_mov_b32 s%d, s%d" % (r, p))
            a("s_and_b32 s%d, s%d, 0xffff" % (r + 1, p + 1))
    def eload():
        a("s_add_u32 s14, s%d, 0x%x" % (pWS, EW))
        a("s_addc_u32 s15, s%d, 0" % (pWS + 1))
        a("s_load_dword s7, s[14:15], 0")
    def stamp0():
        stamp(0)
        if cfg.ts:
            a("s_getreg_b32 s98, hwreg(HW_REG_XCC_ID)")
            a("v_writelane_b32 v%d, s98, 40" % vTS)
            a("s_getreg_b32 s98, hwreg(HW_REG_HW_ID)")
            a("v_writelane_b32 v%d, s98, 41" % vTS)
    a("s_waitcnt lgkmcnt(0)")
    srd_bases([(rX, pX)])
    a("buffer_load_dwordx4 v[16:19], v2, %s, s%d offen %s" % (s(rX, 4), sT0, cfg.xpol), tag="x")
    a("buffer_load_dword v20, v3, %s, s%d offen offset:1024 %s" % (s(rX, 4), sT0, cfg.xpol), tag="x")
    a("buffer_load_dwordx4 v[64:67], v2, %s, s%d offen offset:1280 %s" % (s(rX, 4), sT0, cfg.xpol), tag="x")
    a("buffer_load_dword v68, v3, %s, s%d offen offset:2304 %s" % (s(rX, 4), sT0, cfg.xpol), tag="x")
    stamp0()
    eload()
    srd_bases([(rWS, pWS), (rW1, pW1), (rW2, pW2), (rOUT, pOUT)])
    tile_math()
    a("s_barrier")

    vTR = [2, 3, 4, 5]
    vFO, vDO, vPO, vPD = 6, 7, 8, 9
    ACC1, STG1, WREG1 = 16, 80, 112
    ACC2, STG2, WREG2, XR = 16, 96, 132, 244
    NR2 = 9

    def dma_voff(rowbytes, gemm1):
        a("v_lshrrev_b32 v10, 3, v0")
        if cfg.swz == 0:
            a("v_and_b32 v11, 6, v10")
        else:
            a("v_and_b32 v11, 2, v10")
            a("v_lshlrev_b32 v11, 1, v11")
        a("v_and_b32 v12, 7, v0")
        a("v_xor_b32 v12, v12, v11")
        a("v_lshlrev_b32 v12, 4, v12")
        if gemm1:
            a("v_and_b32 v11, 4, v10")
            a("v_add_u32 v10, v10, v11")
        a("s_mov_b32 s%d, %d" % (sT0, rowbytes))
        a("v_mul_lo_u32 v10, v10, s%d" % sT0)
        a("v_add_u32 v%d, v10, v12" % vDO)

    def setoff(dst, base, ordr, step, stepbytes):
        a("s_bfe_u32 s%d, s%d, 0x%x" % (dst, ordr[step >> 3], (4 << 16) | (4 * (step & 7))))
        a("s_mul_i32 s%d, s%d, %d" % (dst, dst, stepbytes))
        a("s_add_u32 s%d, s%d, s%d" % (dst, dst, base))

    def dma_step(srdreg, slot, consts, stepbytes, tag, pol=''):
        setoff(sOW, sOWB, sORD1 if srdreg == rW1 else sORD2, int(tag[1:]), stepbytes)
        for b in range(4):
            a("s_add_u32 m0, s%d, %d" % (sWB, slot * 4096 + b * 1024))
            if consts[b]:
                a("s_add_u32 s%d, s%d, %d" % (sT0, sOW, consts[b]))
                so = sT0
            else:
                so = sOW
            a("buffer_load_dwordx4 v%d, %s, s%d offen %s lds" % (vDO, s(srdreg, 4), so, pol), tag=tag)

    C1 = [(16 * (b & 1) + 4 * (b >> 1)) * 3072 for b in range(4)]
    C2 = [8 * b * 4096 for b in range(4)]

    def tr_step(slot, wreg, tag):
        for n in range(4):
            for e in range(2):
                a("ds_read_b64_tr_b16 %s, v%d offset:%d" % (v(wreg + 4 * n + 2 * e, 2), vTR[n], slot * 4096 + e * 2048), tag=tag)

    def touch_w1():
        a("buffer_load_dword v63, v62, %s, s96 offen %s" % (s(rW1, 4), cfg.tpol), tag="tch")
    def touch_w2s():
        a("v_lshrrev_b32 v8, 2, v0")
        a("v_lshlrev_b32 v8, 12, v8")
        a("v_and_b32 v9, 3, v0")
        a("v_lshl_add_u32 v8, v9, 7, v8")
        a("v_mov_b32 v9, 0x7f000000")
        a("v_cmp_gt_u32 vcc, 48, v0")
        a("v_cndmask_b32 v8, v9, v8, vcc")
        a("s_lshl_b32 s97, s%d, 2" % sJ)
        a("s_add_u32 s97, s97, s%d" % sWV)
        a("s_mul_i32 s97, s97, %d" % (12 * 4096))
        a("s_lshl_b32 s%d, s%d, 9" % (sT2, sX))
        a("s_add_u32 s97, s97, s%d" % sT2)
    def touch_w2i():
        a("buffer_load_dword v9, v8, %s, s97 offen %s" % (s(rW2, 4), cfg.t2pol), tag="tch")
    def touch_w1b():
        if nline == 6:
            a("buffer_load_dword v63, v62, %s, s96 offen offset:384 %s" % (s(rW1, 4), cfg.tpol), tag="tch")
    a("s_mov_b64 exec, 0xffffffff")
    srd(rB, pB1, 3072)
    a("s_lshl_b32 s%d, s%d, 7" % (sT0, sFT))
    a("s_mov_b32 m0, %d" % BIA)
    a("buffer_load_dword v3, %s, s%d offen lds" % (s(rB, 4), sT0), tag="b")
    srd(rB, pB2, 4096)
    a("s_lshl_b32 s%d, s%d, 7" % (sT0, sST))
    a("s_mov_b32 m0, %d" % (BIA + 128))
    a("buffer_load_dword v3, %s, s%d offen lds" % (s(rB, 4), sT0), tag="b")
    a("s_mov_b64 exec, -1")
    if cfg.touch1 == 1:
        touch_w1()
    if cfg.touch2 in (3, 4, 5, 7):
        touch_w2s()
    if cfg.touch2 == 4:
        touch_w2i()
    a("s_setprio 2")
    a("s_mul_i32 s%d, s%d, %d" % (sWB, sWV, WSZ))
    a("s_add_u32 s%d, s%d, %d" % (sWB, sWB, WOFF))
    dma_voff(3072, True)
    a("s_mul_i32 s%d, s%d, %d" % (sOWB, sWV, 512 * 3072))
    a("s_lshl_b32 s%d, s%d, 7" % (sT0, sFT))
    a("s_add_u32 s%d, s%d, s%d" % (sOWB, sOWB, sT0))
    a("s_cmp_ge_u32 s%d, 30" % sJ)
    a("s_cselect_b32 s%d, 0x7f000000, s%d" % (sOWB, sOWB))
    def dma1(k):
        dma_step(rW1, k % 7, C1, 32 * 3072, "w%d" % k, cfg.tpol if k < cfg.nt1 else '')
    for i in range(cfg.prea):
        dma1(i)
    SB, SS = WOFF + 16384, WSZ
    a("s_mul_i32 s%d, s%d, 1408" % (sT2, sWV))
    a("s_add_u32 s%d, s%d, %d" % (sT2, sT2, SB))
    a("v_add_u32 v61, %d, v2" % (SS - 640))
    a("v_cmp_gt_u32 vcc, 40, v0")
    a("v_cndmask_b32 v60, v61, v2, vcc")
    a("v_add_u32 v60, s%d, v60" % sT2)
    a("s_add_u32 s%d, s%d, %d" % (sT2, sT2, SS + 384))
    a("v_add_u32 v61, s%d, v3" % sT2)
    a.wait_vm("x")
    stamp(1)
    for i in range(cfg.prea, cfg.prea + cfg.preb):
        dma1(i)
    if cfg.touch2 == 3:
        touch_w2i()

    def bfround(r):
        a("v_cvt_pk_bf16_f32 v%d, v%d, v%d" % (r, r, r))
        a("v_and_b32 v%d, s%d, v%d" % (r, sMASK, r))

    def ln_token(o, sx0, s1, s2, row):
        L = []
        e = L.append
        XP, XF32, DT_, A, B, C, D, HP = 16 + o, 24 + o, 34 + o, 44 + o, 46 + o, 48 + o, 50 + o, 52 + o
        def unpack(dst, src):
            for k in range(5):
                e("v_lshlrev_b32 v%d, 16, v%d" % (dst + 2 * k, src + k))
                e("v_and_b32 v%d, s%d, v%d" % (dst + 2 * k + 1, sMASK, src + k))
        unpack(XF32, XP)
        for shift, outp in ((True, XP), (False, HP)):
            src = XF32
            if shift:
                e("v_readfirstlane_b32 s%d, v%d" % (sx0, XF32))
                for i in range(10):
                    e("v_subrev_f32 v%d, s%d, v%d" % (DT_ + i, sx0, XF32 + i))
                src = DT_
            e("v_pk_add_f32 %s, %s, %s" % (v(A, 2), v(src, 2), v(src + 2, 2)))
            e("v_pk_mul_f32 %s, %s, %s" % (v(B, 2), v(src, 2), v(src, 2)))
            e("v_pk_add_f32 %s, %s, %s" % (v(C, 2), v(src + 4, 2), v(src + 6, 2)))
            e("v_pk_fma_f32 %s, %s, %s, %s" % (v(B, 2), v(src + 2, 2), v(src + 2, 2), v(B, 2)))
            e("v_pk_add_f32 %s, %s, %s" % (v(A, 2), v(A, 2), v(src + 8, 2)))
            e("v_pk_mul_f32 %s, %s, %s" % (v(D, 2), v(src + 4, 2), v(src + 4, 2)))
            e("v_pk_fma_f32 %s, %s, %s, %s" % (v(B, 2), v(src + 8, 2), v(src + 8, 2), v(B, 2)))
            e("v_pk_add_f32 %s, %s, %s" % (v(A, 2), v(A, 2), v(C, 2)))
            e("v_pk_fma_f32 %s, %s, %s, %s" % (v(D, 2), v(src + 6, 2), v(src + 6, 2), v(D, 2)))
            e("v_add_f32 v%d, v%d, v%d" % (A, A, A + 1))
            e("v_pk_add_f32 %s, %s, %s" % (v(B, 2), v(B, 2), v(D, 2)))
            e("v_add_f32 v%d, v%d, v%d" % (B, B, B + 1))
            for ctl in ["row_shr:1", "row_shr:2", "row_shr:4", "row_shr:8"]:
                for r in (A, B):
                    e("v_add_f32_dpp v%d, v%d, v%d %s row_mask:0xf bank_mask:0xf bound_ctrl:0" % (r, r, r, ctl))
            for r in (A, B):
                e("v_add_f32_dpp v%d, v%d, v%d row_bcast:15 row_mask:0xa bank_mask:0xf" % (r, r, r))
            for r in (A, B):
                e("v_add_f32_dpp v%d, v%d, v%d row_bcast:31 row_mask:0xc bank_mask:0xf" % (r, r, r))
            e("v_readlane_b32 s%d, v%d, 63" % (s1, A))
            e("v_readlane_b32 s%d, v%d, 63" % (s2, B))
            e("v_mov_b32 v%d, %s" % (A + 1, f32(1.0 / 640)))
            e("v_mul_f32 v%d, s%d, v%d" % (A, s1, A + 1))
            e("v_mul_f32 v%d, s%d, v%d" % (B, s2, A + 1))
            e("v_fma_f32 v%d, -v%d, v%d, v%d" % (B, A, A, B))
            if shift:
                e("v_add_f32 v%d, s%d, v%d" % (A, sx0, A))
            e("v_max_f32 v%d, 0, v%d" % (B, B))
            e("v_cvt_pk_bf16_f32 v%d, v%d, v%d" % (B + 1, A, B))
            e("v_and_b32 v%d, s%d, v%d" % (B, sMASK, B + 1))
            e("v_lshlrev_b32 v%d, 16, v%d" % (A, B + 1))
            e("v_add_f32 v%d, %s, v%d" % (B, f32(1e-5), B))
            for k in range(5):
                e("v_pk_add_f32 %s, %s, %s op_sel_hi:[1,0] neg_lo:[0,1] neg_hi:[0,1]" % (v(DT_ + 2 * k, 2), v(XF32 + 2 * k, 2), v(A, 2)))
                if k == 0:
                    e("v_cvt_pk_bf16_f32 v%d, v%d, v%d" % (B, B, B))
                if k == 1:
                    e("v_and_b32 v%d, s%d, v%d" % (B, sMASK, B))
                if k == 2:
                    e("v_sqrt_f32 v%d, v%d" % (B, B))
                if k == 4:
                    e("v_cvt_pk_bf16_f32 v%d, v%d, v%d" % (B, B, B))
            for k in range(5):
                e("v_cvt_pk_bf16_f32 v%d, v%d, v%d" % (C + k, DT_ + 2 * k, DT_ + 2 * k + 1))
                if k == 0:
                    e("v_and_b32 v%d, s%d, v%d" % (B, sMASK, B))
                if k == 1:
                    e("v_rcp_f32 v%d, v%d" % (B, B))
            unpack(DT_, C)
            for k in range(5):
                e("v_pk_mul_f32 %s, %s, %s op_sel_hi:[1,0]" % (v(DT_ + 2 * k, 2), v(DT_ + 2 * k, 2), v(B, 2)))
            for k in range(5):
                e("v_cvt_pk_bf16_f32 v%d, v%d, v%d" % (outp + k, DT_ + 2 * k, DT_ + 2 * k + 1))
            off = (2 * SS if shift else 0) + 704 * row
            if shift:
                unpack(XF32, outp)
            e("ds_write_b128 v60, %s offset:%d" % (v(outp, 4), off))
            e("ds_write_b32 v61, v%d offset:%d" % (outp + 4, off))
        return L
    for i0, i1 in zip(ln_token(0, 14, sT0, sT1, 0), ln_token(48, 15, sT2, sT3, 1)):
        a(i0); a(i1)
    a("s_waitcnt lgkmcnt(0)"); a.lg = []
    if cfg.lateb:
        a("s_barrier")
    else:
        lds_arrive(8, 12, 13)
    a("s_add_u32 s%d, s7, 0x9E3779B9" % sTAG)
    if cfg.kprio:
        a("s_setprio 0")
    stamp(2)
    for i in range(cfg.prea + cfg.preb, cfg.prea + cfg.preb + cfg.prec):
        dma1(i)
    cfg.pre1 = cfg.prea + cfg.preb + cfg.prec

    a("v_lshrrev_b32 v10, 2, v0")
    if cfg.swz == 0:
        a("v_bfe_u32 v11, v0, 3, 2")
    else:
        a("v_bfe_u32 v11, v0, 3, 1")
        a("v_lshlrev_b32 v11, 1, v11")
    a("v_lshlrev_b32 v10, 7, v10")
    a("v_and_b32 v12, 3, v0")
    a("v_lshl_add_u32 v10, v12, 3, v10")
    a("v_add_u32 v10, s%d, v10" % sWB)
    for n in range(4):
        a("v_xor_b32 v12, %d, v11" % n)
        a("v_lshl_add_u32 v%d, v12, 5, v10" % vTR[n])
    a("v_lshrrev_b32 v10, 4, v0")
    a("v_mul_u32_u24 v10, 10240, v10")
    a("v_and_b32 v11, 15, v0")
    a("v_lshl_add_u32 v%d, v11, 4, v10" % vFO)
    a.wait_vm("b")
    a("v_lshrrev_b32 v10, 4, v0")
    a("v_lshlrev_b32 v10, 3, v10")
    for fi in range(4):
        a("ds_read_b64 %s, v10 offset:%d" % (v(STG1 + 2 * fi, 2), BIA + 32 * fi), tag="bias")
    a.wait_lg("bias")
    for k in range(8):
        a("v_lshlrev_b32 v%d, 16, v%d" % (ACC1 + 2 * k, STG1 + k))
        a("v_and_b32 v%d, s%d, v%d" % (ACC1 + 2 * k + 1, sMASK, STG1 + k))
    lds_wait(16, 1, 12, 13)
    stamp(14)
    if cfg.touch1:
        touch_w1b()
    if cfg.touch2 == 5:
        touch_w2i()
    a("s_cmp_ge_u32 s%d, 30" % sJ)
    a("s_cbranch_scc1 L_g2_pre_nog1")
    D1 = cfg.depth1
    issued = cfg.pre1
    for i in range(16):
        while issued < 16 and issued <= i + D1:
            k = issued
            if k >= 7:
                a.wait_lg("t%d" % (k - 7))
            dma1(k)
            issued += 1
        if i < 9:
            a.wait_vm("w%d" % i)
            tr_step(i % 7, WREG1 + 16 * i, "t%d" % i)
        elif issued < 16:
            a.wait_vm("w%d" % i)
        if i in (0, 8) and cfg.fine:
            stamp(16 + i // 2)
    if cfg.touch2 == 7:
        touch_w2i()
    stamp(3)
    a("s_mul_i32 s%d, s%d, %d" % (sOAB, sWV, 64 * 10240))
    a("s_lshl_b32 s%d, s%d, 10" % (sT0, sDT))
    a("s_add_u32 s%d, s%d, s%d" % (sOAB, sOAB, sT0))
    if HB:
        a("s_add_u32 s%d, s%d, 0x%x" % (sOAB, sOAB, HB))
    for di in range(4):
        a("s_xor_b32 s%d, s%d, %d" % (sD[di], sWV, di))
        a("s_lshl_b32 s%d, s%d, 8" % (sD[di], sD[di]))
    def hwait(sl):
        a("s_lshl_b32 s%d, s%d, 3" % (sT1, sID))
        a("s_add_u32 s%d, s%d, s%d" % (sT1, sT1, sWV))
        a("s_lshl_b32 s%d, s%d, 7" % (sT1, sT1))
        a("s_add_u32 s%d, s%d, 0x%x" % (sT1, sT1, MB))
        spoll(sT1, sl)
    hwait(cfg.psleep)
    a("s_setprio 2")
    stamp(4)

    def adv_a(stepbytes):
        if cfg.noadv:
            return
        a("s_add_u32 s%d, s%d, %d" % (sOA, sOA, stepbytes))
        a("s_cmp_ge_u32 s%d, s%d" % (sOA, sOAE))
        a("s_cselect_b32 s%d, s%d, s%d" % (sOA, sOAB, sOA))

    def DI(n):
        return ((n + 1) & 3) if n >= 60 else (n & 3)
    def hload(n):
        di = DI(n)
        if n & 3 == 0:
            setoff(sOA, sOAB, sORD1, n >> 2, 4 * 10240)
        a("s_add_u32 s%d, s%d, s%d" % (sT1, sOA, sD[di]))
        a("buffer_load_dwordx4 %s, v%d, %s, s%d offen %s" % (v(STG1 + 4 * (n & 7), 4), vFO, s(rWS, 4), sT1, cfg.apol), tag="h%d" % n)

    def w2_setup():
        dma_voff(4096, False)
        a("s_mul_i32 s%d, s%d, %d" % (sOWB, sWV, 384 * 4096))
        a("s_lshl_b32 s%d, s%d, 7" % (sT0, sST))
        a("s_add_u32 s%d, s%d, s%d" % (sOWB, sOWB, sT0))

    SL2 = {0: 3, 1: 4, 2: 5, 3: 6, 4: 3, 5: 4, 6: 5, 7: 6, 8: 0, 9: 1, 10: 2, 11: 3}
    def slot2(i):
        return SL2[i]
    def dma2(k):
        dma_step(rW2, slot2(k), C2, 32 * 4096, "u%d" % k, cfg.t2pol if k < cfg.nt2 else '')
    def tr2(k):
        tr_step(slot2(k), WREG2 + 16 * k, "q%d" % k)
    def tr_flip():
        a("s_lshl_b32 s%d, s%d, 5" % (sT0, sWV))
        for n in range(4):
            a("v_xor_b32 v%d, s%d, v%d" % (vTR[n], sT0, vTR[n]))

    vXO, vXO4, vB2 = 254, 255, 14
    sXO = 97
    def xt_setup():
        a("v_and_b32 v12, 15, v0")
        a("v_lshrrev_b32 v13, 4, v0")
        a("v_mul_u32_u24 v%d, 1280, v12" % vXO)
        a("v_lshl_add_u32 v%d, v13, 3, v%d" % (vXO4, vXO))
        a("v_lshl_add_u32 v%d, v13, 4, v%d" % (vXO, vXO))
        a("s_lshl_b32 s%d, s%d, 2" % (sT2, sST))
        a("s_add_u32 s%d, s%d, s%d" % (sT2, sT2, sWV))
        a("s_mul_i32 s%d, s%d, %d" % (sXO, sT2, 16 * 1280))
        a("s_mul_i32 s%d, s%d, 160" % (sT3, sDT2))
        a("s_add_u32 s%d, s%d, s%d" % (sXO, sXO, sT3))
    def xt_loads():
        a("buffer_load_dwordx4 %s, v%d, %s, s%d offen %s" % (v(XR, 4), vXO, s(rX, 4), sXO, cfg.xpol), tag="xt")
        a("buffer_load_dwordx4 %s, v%d, %s, s%d offen offset:64 %s" % (v(XR + 4, 4), vXO, s(rX, 4), sXO, cfg.xpol), tag="xt")
        a("buffer_load_dwordx2 %s, v%d, %s, s%d offen offset:128 %s" % (v(XR + 8, 2), vXO4, s(rX, 4), sXO, cfg.xpol), tag="xt")

    for n in range(8):
        hload(n)
    lds_arrive(12, 12, 13)
    w2_setup()
    sGS, sGC = sOWE, sOAE
    vEX = [WREG1 + 16 * 7 + k for k in range(4)]
    vC = WREG1 + 16 * 7 + 4
    c0 = -2.0 * math.sqrt(2.0 / math.pi) * math.log2(math.e)
    c1 = c0 * 0.044715
    def xwrite(i):
        for q in range(4):
            a("ds_write_b128 v%d, %s offset:%d" % (vEX[0], v(ACC1 + 16 * i + 4 * q, 4), (i - 1) * 4096 + q * 1024))
    fifo = []
    def fill(k):
        for _ in range(k):
            if fifo:
                a.play(fifo.pop(0))
    def need(tag):
        while any(it[2] == tag for it in fifo):
            fill(1)
    def setup8():
        tr_flip()
        a("v_lshlrev_b32 v10, 4, v0")
        a("v_add_u32 v%d, s%d, v10" % (vEX[0], sWB))
        for k in range(1, 4):
            a("s_xor_b32 s%d, s%d, %d" % (sT0, sWV, k))
            a("s_mul_i32 s%d, s%d, %d" % (sT0, sT0, WSZ))
            a("s_add_u32 s%d, s%d, %d" % (sT0, sT0, WOFF))
            a("v_add_u32 v%d, s%d, v10" % (vEX[k], sT0))
        a("v_mov_b32 v%d, %s" % (vC, f32(c1)))
        a("v_mov_b32 v%d, %s" % (vC + 1, f32(c0)))
    def setup10():
        a("s_mul_i32 s%d, s%d, %d" % (sGS, sFT, 8 * 10240))
        a("s_lshl_b32 s%d, s%d, 10" % (sT2, sDT))
        a("s_add_u32 s%d, s%d, s%d" % (sGS, sGS, sT2))
        a("s_add_u32 s%d, s%d, s%d" % (sGS, sGS, sD[0]))
        a("s_add_u32 s%d, s%d, 0x%x" % (sGS, sGS, GB))
        a("s_add_u32 s96, s%d, %d" % (sGS, 4 * 10240))
        a("s_lshl_b32 s%d, s%d, 2" % (sT2, sDT))
        a("s_add_u32 s%d, s%d, s%d" % (sT2, sT2, sWV))
        a("s_mul_i32 s%d, s%d, 52" % (sT2, sT2))
        a("s_lshr_b32 s%d, s%d, 8" % (sT2, sT2))
        group_ids(vPO, 13, sT2, 10)
        a("s_mul_i32 s%d, s%d, 43" % (sGC, sFT))
        a("s_lshr_b32 s%d, s%d, 8" % (sGC, sGC))
        a("s_lshl_b32 s%d, s%d, 7" % (sGC, sGC))
        a("s_add_u32 s%d, s%d, 0x%x" % (sGC, sGC, MB + 512))
    for i in range(16):
        wr = WREG1 + 16 * (i if i < 9 else i - 9)
        if i >= 9:
            need("t%d" % i)
            a.wait_lg("t%d" % i)
        for dd in range(4):
            n = 4 * i + dd
            di = DI(n)
            nxt = a.capture(hload, n + 8) if (n + 8 < 64 and not cfg.noload) else []
            a.wait_vm("h%d" % n)
            for fi in range(4):
                acc = v(ACC1 + 16 * di + 4 * fi, 4)
                if not cfg.nomfma or i == 0:
                    a("v_mfma_f32_16x16x32_bf16 %s, %s, %s, %s" % (acc, v(wr + 4 * fi, 4), v(STG1 + 4 * (n & 7), 4), acc if (i or di == 0) else "0"))
                if fi < 3:
                    k = cfg.fillk
                    while len(nxt) > 1 and k:
                        a.play(nxt.pop(0)); k -= 1
                    fill(k)
            for it in nxt:
                a.play(it)
            if not nxt:
                fill(cfg.fillk)
            if n == 55:
                fill(1000)
                for k in range(cfg.e0):
                    fifo += a.capture(dma2, k)
            if n >= 60 and n < 63:
                fifo += [None] * 0
            if n >= 61:
                xwrite(n - 60)
        if i in (0, 7) and cfg.fine:
            stamp(24 + (i + 1) // 4)
        if i + 9 < 16:
            fifo += a.capture(tr_step, (i + 9) % 7, wr, "t%d" % (i + 9))
        if i == 0:
            fifo += a.capture(setup10)
        if i == 7:
            fifo += a.capture(setup8)
        if i == 8:
            fifo += a.capture(xt_setup)
    fill(1000)
    stamp(5)
    a.drain_lg()
    lds_arrive(0, 12, 13)
    lds_wait(0, 4, 12, 13)
    stamp(12)
    for q in range(4):
        for i in range(1, 4):
            a("ds_read_b128 %s, v%d offset:%d" % (v(ACC1 + 16 * i + 4 * q, 4), vEX[i], (i - 1) * 4096 + q * 1024), tag="r%d" % q)
    for k in range(cfg.e0, cfg.e0 + cfg.e1):
        dma2(k)
    def op2(name, d, x, y, n):
        if cfg.nopk:
            for k in range(n):
                a("v_%s_f32 v%d, v%d, v%d" % (name, d + k, x + k, y + k))
        else:
            for k in range(0, n, 2):
                a("v_pk_%s_f32 %s, %s, %s" % (name, v(d + k, 2), v(x + k, 2), v(y + k, 2)))
    U_, T_, P_ = ACC1, ACC1 + 16, STG1
    for hf in range(2):
        o = 8 * hf
        a.wait_lg("r%d" % (2 * hf + 1))
        if hf == 1:
            lds_arrive(4, 12, 13)
        op2("add", U_ + o, U_ + o, ACC1 + 16 + o, 8)
        op2("add", ACC1 + 32 + o, ACC1 + 32 + o, ACC1 + 48 + o, 8)
        op2("add", U_ + o, U_ + o, ACC1 + 32 + o, 8)
        op2("mul", T_ + o, U_ + o, U_ + o, 8)
        if cfg.nopk:
            for k in range(8):
                a("v_fma_f32 v%d, v%d, v%d, v%d" % (T_ + o + k, T_ + o + k, vC, vC + 1))
        else:
            for k in range(0, 8, 2):
                a("v_pk_fma_f32 %s, %s, %s, %s op_sel:[0,0,1] op_sel_hi:[1,0,1]" % (v(T_ + o + k, 2), v(T_ + o + k, 2), v(vC, 2), v(vC, 2)))
        op2("mul", T_ + o, T_ + o, U_ + o, 8)
        for k in range(8):
            a("v_exp_f32 v%d, v%d" % (T_ + o + k, T_ + o + k))
        if cfg.nopk:
            for k in range(8):
                a("v_add_f32 v%d, 1.0, v%d" % (T_ + o + k, T_ + o + k))
        else:
            for k in range(0, 8, 2):
                a("v_pk_add_f32 %s, %s, 1.0 op_sel_hi:[1,0]" % (v(T_ + o + k, 2), v(T_ + o + k, 2)))
        for k in range(8):
            a("v_rcp_f32 v%d, v%d" % (T_ + o + k, T_ + o + k))
        op2("mul", T_ + o, T_ + o, U_ + o, 8)
        for k in range(4):
            a("v_cvt_pk_bf16_f32 v%d, v%d, v%d" % (P_ + 4 * hf + k, T_ + o + 2 * k, T_ + o + 2 * k + 1))
        a("buffer_store_dwordx4 %s, v%d, %s, s%d offen sc1" % (v(P_ + 4 * hf, 4), vFO, s(rWS, 4), 96 if hf else sGS), tag="gs")
    lds_arrive(28, 12, 13)
    stamp(6)
    ne = cfg.e0 + cfg.e1
    for k in range(ne, 4):
        dma2(k)
    if ne:
        a.wait_vm("u%d" % (ne - 1))
        for k in range(ne):
            tr2(k)
    lds_wait(4, 4, 12, 13)
    if ne >= 2:
        dma2(4); dma2(5)
    a.wait_vm("gs")
    group_add(vPO, sGC, 13)
    stamp(7)
    xt_loads()
    for k in range(ne, 4):
        a.wait_vm("u%d" % k); tr2(k)
    if ne < 2:
        a.wait_lg("q1"); dma2(4); dma2(5)
    dma2(8)
    a.wait_lg("q3")
    dma2(6); dma2(7)
    a.wait_vm("u4"); tr2(4)
    dma2(9)
    a.wait_vm("u5"); tr2(5)
    dma2(10)
    a.wait_lg("q4")
    dma2(11)
    a.wait_vm("u6"); tr2(6)
    vm_join = list(a.vm)
    a("s_branch L_g2_pre")
    a.label("L_g2_pre_nog1")
    a.vm = []; a.lg = []
    if cfg.nagg == 8:
        a("s_cmp_lg_u32 s%d, 31" % sJ)
        a("s_cbranch_scc1 L_noagg_h")
    a("v_lshlrev_b32 v%d, %d, v0" % (vPO, cfg.fsh))
    a("s_lshl_b32 s%d, s%d, %d" % (sT1, sWV, 6 + cfg.fsh))
    a("s_add_u32 s%d, s%d, 0x%x" % (sT1, sT1, HF))
    a("v_lshlrev_b32 v12, 13, v0")
    a("v_mov_b32 v13, s%d" % sTAG)
    a("s_lshl_b32 s%d, s%d, 3" % (sT2, sX))
    a("s_add_u32 s%d, s%d, s%d" % (sT2, sT2, sWV))
    a("s_lshl_b32 s%d, s%d, 7" % (sT2, sT2))
    a("s_add_u32 s%d, s%d, 0x%x" % (sT2, sT2, MB))
    if cfg.nagg == 16:
        a("s_and_b32 s%d, s%d, 1" % (sT3, sJ))
        a("s_lshl_b32 s%d, s%d, 17" % (sT3, sT3))
        a("s_add_u32 s%d, s%d, s%d" % (sT2, sT2, sT3))
    poll([vPO], [sT1], vPD, sleep=cfg.asleep)
    a("s_mov_b64 exec, 0x%x" % (0xffffffff if cfg.nagg == 8 else 0xffff))
    a("buffer_store_dword v13, v12, %s, s%d offen sc1" % (s(rWS, 4), sT2))
    a("s_mov_b64 exec, -1")
    stamp(13)
    a.label("L_noagg_h")
    a.vm = []
    if cfg.touch2 == 6:
        a("v_lshrrev_b32 v8, 2, v0")
        a("v_lshlrev_b32 v8, 12, v8")
        a("v_and_b32 v9, 3, v0")
        a("v_lshl_add_u32 v8, v9, 7, v8")
        a("s_mul_i32 s%d, s%d, 24" % (sT1, sWV))
        a("s_add_u32 s%d, s%d, s%d" % (sT1, sT1, sJ))
        a("s_sub_u32 s%d, s%d, 30" % (sT1, sT1))
        a("s_lshl_b32 s%d, s%d, 16" % (sT1, sT1))
        a("s_lshl_b32 s%d, s%d, 9" % (sT2, sX))
        a("s_add_u32 s%d, s%d, s%d" % (sT1, sT1, sT2))
        a("s_mov_b32 s%d, s%d" % (sT3, sT1))
        for k in range(12):
            a("buffer_load_dword v9, v8, %s, s%d offen %s" % (s(rW2, 4), sT3, cfg.t2pol), tag="tw%d" % k)
            a("s_add_u32 s%d, s%d, %d" % (sT3, sT3, 32 * 4096))
            if k == 3:
                hwait(2)
                lds_arrive(12, 12, 13)
            if k >= cfg.tdep:
                a.wait_vm("tw%d" % (k - cfg.tdep))
    else:
        hwait(4)
        lds_arrive(12, 12, 13)
        if cfg.touch2 == 7:
            lds_wait(12, 4, 12, 13, sleep=2)
            touch_w2s()
            touch_w2i()
    lds_wait(12, 4, 12, 13, sleep=2)
    a("s_setprio 2")
    xt_setup()
    xt_loads()
    w2_setup()
    tr_flip()
    for k in range(4):
        dma2(k)
        if k:
            a.wait_vm("u%d" % (k - 1))
    a.drain_vm()
    for k in range(4):
        tr2(k)
    a.drain_lg()
    for k in range(4, 11):
        dma2(k)
        a.wait_vm("u%d" % (k - 1))
    for k in range(4, 7):
        tr2(k)
    a.drain_lg()
    dma2(11)
    a.drain_vm()
    a.label("L_g2_pre")
    a.vm = list(vm_join); a.lg = []
    stamp(8)
    a("v_and_b32 v12, 15, v0")
    a("s_lshl_b32 s%d, s%d, 5" % (sT2, sWV))
    a("v_lshl_add_u32 v12, v12, 1, s%d" % sT2)
    a("ds_read_u16 v%d, v12 offset:%d" % (vB2, BIA + 128))
    a.drain_lg()
    a("v_lshlrev_b32 v%d, 16, v%d" % (vB2, vB2))
    for k in range(10):
        a("v_lshlrev_b32 v%d, 16, v%d" % (ACC2 + 2 * k, XR + k))
        a("v_and_b32 v%d, s%d, v%d" % (ACC2 + 2 * k + 1, sMASK, XR + k))
    for k in range(20):
        a("v_add_f32 v%d, v%d, v%d" % (ACC2 + k, vB2, ACC2 + k))
    a("s_mul_i32 s%d, s%d, %d" % (sOAB, sWV, 48 * 10240))
    a("s_mul_i32 s%d, s%d, 1280" % (sT0, sDT2))
    a("s_add_u32 s%d, s%d, s%d" % (sOAB, sOAB, sT0))
    a("s_add_u32 s%d, s%d, 0x%x" % (sOAB, sOAB, GB))
    a("s_lshl_b32 s%d, s%d, 3" % (sT1, sID))
    a("s_add_u32 s%d, s%d, s%d" % (sT1, sT1, sWV))
    a("s_lshl_b32 s%d, s%d, 7" % (sT1, sT1))
    a("s_add_u32 s%d, s%d, 0x%x" % (sT1, sT1, MB + 512))
    spoll(sT1, cfg.psleep, target=30)
    stamp(9)

    def gload(n):
        mi = n % 5
        if mi == 0:
            setoff(sOA, sOAB, sORD2, n // 5, 4 * 10240)
        a("buffer_load_dwordx4 %s, v%d, %s, s%d offen offset:%d %s" % (v(STG2 + 4 * (n % NR2), 4), vFO, s(rWS, 4), sOA, 256 * mi, cfg.apol), tag="g%d" % n)

    for n in range(NR2):
        gload(n)
    vE2 = [XR + k for k in range(5)]
    def setup6():
        a("v_lshlrev_b32 v12, 4, v0")
        a("v_add_u32 v%d, s%d, v12" % (vE2[0], sWB))
        for k in range(1, 4):
            a("s_xor_b32 s%d, s%d, %d" % (sT0, sWV, k))
            a("s_mul_i32 s%d, s%d, %d" % (sT0, sT0, WSZ))
            a("s_add_u32 s%d, s%d, %d" % (sT0, sT0, WOFF))
            a("v_add_u32 v%d, s%d, v12" % (vE2[k], sT0))
        a("v_lshrrev_b32 v12, 2, v0")
        a("v_lshlrev_b32 v12, 7, v12")
        a("v_and_b32 v13, 3, v0")
        a("v_lshl_add_u32 v12, v13, 3, v12")
        a("s_lshl_b32 s%d, s%d, 5" % (sT0, sWV))
        a("s_add_u32 s%d, s%d, %d" % (sT0, sT0, RY))
        a("v_add_u32 v%d, s%d, v12" % (vE2[4], sT0))
    setup6()
    for i in range(12):
        wr = WREG2 + 16 * (i if i < 7 else i - 7)
        if i >= 7:
            need("q%d" % i)
            a.wait_lg("q%d" % i)
        for mi in range(5):
            n = 5 * i + mi
            nxt = a.capture(gload, n + NR2) if (n + NR2 < 60 and not cfg.noload) else []
            a.wait_vm("g%d" % n)
            for x, ni in enumerate((1, 2, 3, 0) if i == 11 else range(4)):
                acc = v(ACC2 + 20 * ni + 4 * mi, 4)
                if not cfg.nomfma or i == 0:
                    a("v_mfma_f32_16x16x32_bf16 %s, %s, %s, %s" % (acc, v(STG2 + 4 * (n % NR2), 4), v(wr + 4 * ni, 4), acc if (i or ni == 0) else "0"))
                if x < 3:
                    k = cfg.fillk
                    while len(nxt) > 1 and k:
                        a.play(nxt.pop(0)); k -= 1
                    fill(k)
                if i == 11 and mi >= 2 and x < 3:
                    a("ds_write_b128 v%d, %s offset:%d" % (vE2[0], v(ACC2 + 20 * (x + 1) + 4 * (mi - 2), 4), x * 5120 + (mi - 2) * 1024))
            for it in nxt:
                a.play(it)
        if i in (0, 5) and cfg.fine:
            stamp(28 + (i + 1) // 3)
        if i + 7 < 12:
            fifo += a.capture(tr_step, slot2(i + 7), wr, "q%d" % (i + 7))
    fill(1000)
    stamp(10)
    for q in (3, 4):
        for k in range(1, 4):
            a("ds_write_b128 v%d, %s offset:%d" % (vE2[0], v(ACC2 + 20 * k + 4 * q, 4), (k - 1) * 5120 + q * 1024))
    a.drain_lg()
    a("s_barrier")
    YR, TY, TP = WREG2 + 40, WREG2, WREG2 + 20
    for mi in range(5):
        a("ds_read_b64_tr_b16 %s, v%d offset:%d" % (v(YR + 2 * mi, 2), vE2[4], mi * 2048), tag="ya")
    for q in range(5):
        for k in range(1, 4):
            a("ds_read_b128 %s, v%d offset:%d" % (v(ACC2 + 20 * k + 4 * q, 4), vE2[k], (k - 1) * 5120 + q * 1024), tag="r%d" % q)
    a.wait_lg("ya")
    for k in range(10):
        a("v_lshlrev_b32 v%d, 16, v%d" % (TY + 2 * k, YR + k))
        a("v_and_b32 v%d, s%d, v%d" % (TY + 2 * k + 1, sMASK, YR + k))
    def pk2(d, x, y, n):
        for k in range(0, n, 2):
            a("v_pk_add_f32 %s, %s, %s" % (v(d + k, 2), v(x + k, 2), v(y + k, 2)))
    pk2(ACC2, ACC2, TY, 20)
    pol = (" " + cfg.out_pol) if cfg.out_pol else ""
    for (o, n, last) in ((0, 8, 1), (8, 8, 3), (16, 4, 4)):
        a.wait_lg("r%d" % last)
        pk2(ACC2 + o, ACC2 + o, ACC2 + 20 + o, n)
        pk2(ACC2 + 40 + o, ACC2 + 40 + o, ACC2 + 60 + o, n)
        pk2(ACC2 + o, ACC2 + o, ACC2 + 40 + o, n)
        for k in range(n // 2):
            a("v_cvt_pk_bf16_f32 v%d, v%d, v%d" % (TP + o // 2 + k, ACC2 + o + 2 * k, ACC2 + o + 2 * k + 1))
        if n == 8:
            a("buffer_store_dwordx4 %s, v%d, %s, s%d offen offset:%d%s" % (v(TP + o // 2, 4), vXO, s(rOUT, 4), sXO, 8 * o, pol))
        else:
            a("buffer_store_dwordx2 %s, v%d, %s, s%d offen offset:128%s" % (v(TP + 8, 2), vXO4, s(rOUT, 4), sXO, pol))
    stamp(11)
    finish()

    a.label("L_aux_pre")
    a.vm = []; a.lg = []
    vPA = [4, 5, 6, 7, 8]
    PRM0, PRM1, vLDT, vDSK = 84, 90, 96, 97
    a("s_waitcnt lgkmcnt(0)")
    a("s_barrier")
    chan_math()
    srd_bases([(rWS, pWS)])
    stamp0()
    a("s_cmp_eq_u32 s%d, 7" % sWV)
    a("s_cbranch_scc1 L_w7")
    a("s_and_b32 s%d, s%d, 1" % (sT0, sJ))
    a("s_add_u32 s%d, s%d, s%d" % (sT0, sT0, sWV))
    a("s_cmp_ge_u32 s%d, 7" % sT0)
    a("s_cbranch_scc1 L_aux_done")
    for k, p in enumerate([pARE, pAIM, pBRE, pBIM, pCRE, pCIM]):
        a("global_load_dword v%d, v10, %s %s" % (PRM0 + k, s(p, 2), cfg.ppol), tag="p")
        a("global_load_ushort v%d, v11, %s offset:256 %s" % (PRM1 + k, s(p, 2), cfg.ppol), tag="p")
    a("global_load_ushort v%d, v12, %s" % (vLDT, s(pLDT, 2)), tag="p")
    a("global_load_ushort v%d, v12, %s" % (vDSK, s(pDSK, 2)), tag="p")
    F0 = 64
    a.wait_vm("p")
    for k in range(6):
        a("v_lshlrev_b32 v%d, 16, v%d" % (F0 + k, PRM0 + k))
        a("v_and_b32 v%d, s%d, v%d" % (F0 + 6 + k, sMASK, PRM0 + k))
        a("v_lshlrev_b32 v%d, 16, v%d" % (F0 + 12 + k, PRM1 + k))
    vDT, vDS = 82, 83
    a("v_lshlrev_b32 v%d, 16, v%d" % (vDT, vLDT))
    a("v_lshlrev_b32 v%d, 16, v%d" % (vDS, vDSK))
    a("v_mul_f32 v%d, %s, v%d" % (vDT, f32(math.log2(math.e)), vDT))
    a("v_exp_f32 v%d, v%d" % (vDT, vDT))
    bfround(vDT)
    if cfg.kprio:
        a("s_setprio 1")
    stamp(3)

    E = {k: 84 + 2 * (k - 1) for k in range(1, 8)}
    P = {k: 98 + 2 * (k - 1) for k in range(1, 9)}
    Q, Q2 = 114, 116
    Y = [118, 120, 122, 124]
    TT = [126, 128, 130, 132]
    CV = list(range(134, 142))
    YFR, XFR, DK = 144, 160, 208
    vFA = 220
    cvi = [0]
    def cmul1(d, x, y):
        a("v_pk_mul_f32 %s, %s, %s op_sel:[0,0] op_sel_hi:[0,1]" % (v(d, 2), v(x, 2), v(y, 2)))
    def cmul2(d, x, y):
        a("v_pk_fma_f32 %s, %s, %s, %s op_sel:[1,1,0] op_sel_hi:[1,0,1] neg_lo:[1,0,0]" % (v(d, 2), v(x, 2), v(y, 2), v(d, 2)))
    def put(r, row, neg=False):
        c = CV[cvi[0] % 8]; cvi[0] += 1
        a("v_cvt_pk_bf16_f32 v%d, v%d, %sv%d" % (c, r, "-" if neg else "", r + 1))
        return ("w", c, row)
    def wr(c, row):
        if not cfg.nokw:
            a("ds_write_addtid_b32 v%d offset:%d" % (c, row * 288))
    def group(ops):
        for d, x, y, row, neg in ops:
            cmul1(d, x, y)
        for d, x, y, row, neg in ops:
            cmul2(d, x, y)
        pend = []
        for d, x, y, row, neg in ops:
            if row is not None:
                pend.append(put(d, row, neg))
        for _, c, row in pend:
            wr(c, row)

    a("s_mov_b32 m0, s%d" % sRB)
    a("v_and_b32 v1, 15, v0")
    a("v_mul_u32_u24 v1, 288, v1")
    a("v_and_b32 v%d, 48, v0" % vFA)
    a("v_add3_u32 v%d, v%d, v1, s%d" % (vFA, vFA, sRB))
    for k in range(12):
        a("v_mov_b32 v%d, 0" % (DK + k))
    a("v_mov_b32 v143, 0x3f80")
    a("s_mov_b32 s%d, 3" % sT3)
    a.label("L_kgen")
    a.lg = []
    a("v_pk_mul_f32 v[126:127], v[64:65], v[82:83] op_sel_hi:[1,0]")
    a("v_pk_mul_f32 v[128:129], v[66:67], v[82:83] op_sel_hi:[1,0]")
    a("v_mul_f32 v126, %s, v126" % f32(math.log2(math.e)))
    a("v_mul_f32 v127, 0.15915494, v127")
    cmul1(Y[0], 68, 128)
    anchors = [(E[1], 1.0), (Q, 8.0), (P[1], 128.0)]
    for idx, (d, k) in enumerate(anchors):
        m_, f_ = 134 + 2 * idx, 135 + 2 * idx
        if k == 1.0:
            a("v_exp_f32 v%d, v126" % m_)
            a("v_fract_f32 v%d, v127" % f_)
        else:
            a("v_mul_f32 v%d, %s, v126" % (m_, f32(k)))
            a("v_mul_f32 v%d, %s, v127" % (f_, f32(k)))
            a("v_exp_f32 v%d, v%d" % (m_, m_))
            a("v_fract_f32 v%d, v%d" % (f_, f_))
    cmul2(Y[0], 68, 128)
    for idx, (d, k) in enumerate(anchors):
        a("v_cos_f32 v%d, v%d" % (d, 135 + 2 * idx))
        a("v_sin_f32 v%d, v%d" % (d + 1, 135 + 2 * idx))
    for idx, (d, k) in enumerate(anchors):
        a("v_pk_mul_f32 %s, %s, %s op_sel_hi:[1,0]" % (v(d, 2), v(d, 2), v(134 + 2 * idx, 2)))
    for k in range(12):
        a("v_mov_b32 v%d, v%d" % (F0 + k, F0 + 6 + k))
    YR0 = 25
    wr(143, 0)
    p_ = [put(Y[0], YR0, True), put(E[1], 1), put(P[1], 8)]
    for _, c, row in p_:
        wr(c, row)
    group([(Y[1], Y[0], Q, YR0 + 1, True), (Q2, Q, Q, None, False), (E[2], E[1], E[1], 2, False), (P[2], P[1], P[1], 16, False)])
    group([(Y[2], Y[0], Q2, YR0 + 2, True), (Y[3], Y[1], Q2, YR0 + 3, True), (E[3], E[2], E[1], 3, False), (E[4], E[2], E[2], 4, False)])
    group([(Y[0], Y[2], Q2, YR0 + 4, True), (Y[1], Y[3], Q2, YR0 + 5, True), (E[5], E[4], E[1], 5, False), (E[6], E[4], E[2], 6, False)])
    group([(Y[2], Y[0], Q2, YR0 + 6, True), (Y[3], Y[1], Q2, YR0 + 7, True), (E[7], E[4], E[3], 7, False), (P[3], P[2], P[1], 20, False)])
    group([(Y[0], Y[2], Q2, YR0 + 8, True), (Y[1], Y[3], Q2, YR0 + 9, True), (TT[0], P[1], E[1], 9, False), (TT[1], P[1], E[2], 10, False)])
    group([(Y[2], Y[0], Q2, YR0 + 10, True), (Y[3], Y[1], Q2, YR0 + 11, True), (TT[0], P[1], E[3], 11, False), (TT[1], P[1], E[4], 12, False)])
    group([(Y[0], Y[2], Q2, YR0 + 12, True), (Y[1], Y[3], Q2, YR0 + 13, True), (TT[0], P[1], E[5], 13, False), (TT[1], P[1], E[6], 14, False)])
    group([(Y[2], Y[0], Q2, YR0 + 14, True), (Y[3], Y[1], Q2, YR0 + 15, True), (TT[0], P[1], E[7], 15, False), (P[4], P[2], P[2], 24, False)])
    for st in range(4):
        a("ds_read_b128 %s, v%d offset:%d" % (v(YFR + 4 * st, 4), vFA, YR0 * 288 + 64 * st), tag="yf")
    for st in range(4):
        a("ds_read_b128 %s, v%d offset:%d" % (v(XFR + 4 * st, 4), vFA, 64 * st), tag="x0")
    group([(TT[0], P[2], E[2], 17, False), (TT[1], P[2], E[4], 18, False), (TT[2], P[2], E[6], 19, False), (P[5], P[4], P[1], 26, False)])
    group([(TT[0], P[3], E[2], 21, False), (TT[1], P[3], E[4], 22, False), (TT[2], P[3], E[6], 23, False), (P[6], P[4], P[2], 28, False)])
    a.wait_lg("x0")
    for st in range(4):
        a("v_mfma_f32_16x16x32_bf16 %s, %s, %s, %s" % (v(DK, 4), v(XFR + 4 * st, 4), v(YFR + 4 * st, 4), v(DK, 4)))
    group([(P[7], P[4], P[3], 30, False), (P[8], P[4], P[4], 32, False), (TT[0], P[4], E[4], 25, False), (TT[1], P[5], E[4], 27, False)])
    group([(TT[0], P[6], E[4], 29, False), (TT[1], P[7], E[4], 31, False), (TT[2], P[8], P[1], 33, False), (TT[3], P[8], P[2], 34, False)])
    for st in range(4):
        a("ds_read_b128 %s, v%d offset:%d" % (v(XFR + 16 + 4 * st, 4), vFA, 16 * 288 + 64 * st), tag="x1")
    group([(TT[0], P[8], P[3], 35, False), (TT[1], P[8], P[4], 36, False), (TT[2], P[8], P[5], 37, False)])
    group([(TT[0], P[8], P[6], 38, False), (TT[1], P[8], P[7], 39, False), (TT[2], P[8], P[8], 40, False)])
    for st in range(4):
        a("ds_read_b128 %s, v%d offset:%d" % (v(XFR + 32 + 4 * st, 4), vFA, 32 * 288 + 64 * st), tag="x2")
    a.wait_lg("x1")
    for st in range(4):
        a("v_mfma_f32_16x16x32_bf16 %s, %s, %s, %s" % (v(DK + 4, 4), v(XFR + 16 + 4 * st, 4), v(YFR + 4 * st, 4), v(DK + 4, 4)))
    a.wait_lg("x2")
    for st in range(4):
        a("v_mfma_f32_16x16x32_bf16 %s, %s, %s, %s" % (v(DK + 8, 4), v(XFR + 32 + 4 * st, 4), v(YFR + 4 * st, 4), v(DK + 8, 4)))
    a("s_sub_u32 s%d, s%d, 1" % (sT3, sT3))
    a("s_cmp_lg_u32 s%d, 0" % sT3)
    a("s_cbranch_scc1 L_kgen")
    a.drain_vm()
    stamp(4)
    a("v_and_b32 v16, 15, v0")
    a("v_lshrrev_b32 v17, 4, v0")
    a("s_add_u32 s%d, s%d, %d" % (sT0, sRB, TB_OFF))
    a("v_lshrrev_b32 v18, 1, v17")
    a("v_lshlrev_b32 v18, 7, v18")
    a("v_and_b32 v19, 1, v17")
    a("v_lshl_add_u32 v18, v19, 2, v18")
    a("v_lshl_add_u32 v18, v16, 3, v18")
    a("v_lshl_add_u32 v18, v18, 2, s%d" % sT0)
    a("v_lshlrev_b32 v19, 2, v16")
    a("v_lshlrev_b32 v20, 1, v16")
    a("v_cmp_gt_u32 vcc, 2, v17")
    a("v_cndmask_b32 v19, v20, v19, vcc")
    a("v_lshl_add_u32 v19, v17, 6, v19")
    a("v_lshl_add_u32 v19, v19, 2, s%d" % sT0)
    a("v_mov_b32 v20, 128")
    a("v_cndmask_b32 v20, v20, 8, vcc")
    a("v_add_u32 v20, v19, v20")
    a("v_lshl_add_u32 v21, v17, 6, v16")
    a("v_lshl_add_u32 v21, v21, 2, s%d" % sT0)
    a("v_lshlrev_b32 v22, 4, v0")
    a("v_add_u32 v22, %d, v22" % ZP_OFF)
    a("v_mov_b32 v23, 4096")
    a("v_cmp_gt_u32 vcc, 15, v0")
    a("v_cndmask_b32 v22, v23, v22, vcc")
    a("v_add_u32 v22, s%d, v22" % sRB)
    for k in range(4):
        a("v_mov_b32 v%d, 0" % (24 + k))
    a("ds_write_b128 v22, v[24:27]")
    a("ds_write_b128 v18, %s" % v(DK, 4))
    a("ds_write_b64 v19, %s offset:1024" % v(DK + 4, 2))
    a("ds_write_b64 v20, %s offset:1024" % v(DK + 6, 2))
    for r in range(4):
        a("ds_write_b32 v21, v%d offset:%d" % (DK + 8 + r, 2048 + 64 * r))
    a("v_lshl_add_u32 v18, v0, 4, s%d" % sT0)
    a("v_lshl_add_u32 v19, v0, 3, s%d" % sT0)
    a("v_subrev_u32 v20, 4, v18")
    a("v_subrev_u32 v21, 4, v19")
    a("v_cmp_eq_u32 vcc, 0, v0")
    a("v_cndmask_b32 v21, v19, v21, vcc")
    a("ds_read_b128 v[28:31], v18", tag="s0")
    a("ds_read_b32 v32, v20", tag="s0")
    a("ds_read_b64 v[34:35], v19 offset:1024", tag="s1")
    a("ds_read_b32 v36, v19 offset:1032", tag="s1")
    a("ds_read_b32 v37, v21 offset:1024", tag="s1")
    a("ds_read_b64 v[38:39], v19 offset:1536", tag="s2")
    a("ds_read_b32 v40, v19 offset:1544", tag="s2")
    a("ds_read_b64 v[42:43], v19 offset:2048", tag="s3")
    a("ds_read_b32 v44, v19 offset:2056", tag="s3")
    a("v_lshlrev_b32 v22, 3, v0")
    a("v_sub_u32 v22, s%d, v22" % sRB)
    a("v_lshlrev_b32 v23, 4, v0")
    a("v_sub_u32 v23, s%d, v23" % sRB)
    a("v_lshlrev_b32 v24, 5, v0")
    a("v_sub_u32 v24, s%d, v24" % sRB)
    a("v_add_u32 v22, %d, v22" % (4096 - 512 - 8))
    a("v_add_u32 v23, %d, v23" % (4096 - 1024 - 16))
    a("v_add_u32 v24, %d, v24" % (4096 - 2048 - 32))
    def pk(d, lo, hi):
        a("v_cvt_pk_bf16_f32 v%d, v%d, v%d" % (d, lo, hi))
    a("v_cndmask_b32 v33, 0, v%d, vcc" % vDS)
    a.wait_lg("s0")
    a("v_add_f32 v28, v28, v33")
    pk(48, 31, 30); pk(49, 29, 28); pk(50, 30, 29); pk(51, 28, 32)
    a("ds_write_b64 v22, v[48:49] offset:512")
    a("ds_write_b64 v22, v[50:51] offset:%d" % (512 + KB_OFF))
    a.wait_lg("s1")
    pk(52, 36, 35); pk(53, 34, 34); pk(54, 35, 34); pk(55, 34, 37)
    a("ds_write_b64 v22, v[52:53]")
    a("ds_write_b64 v22, v[54:55] offset:%d" % KB_OFF)
    a.wait_lg("s2")
    A_, B_, C_ = 38, 39, 40
    pk(56, C_, C_); pk(57, B_, B_); pk(58, B_, A_); pk(59, A_, A_)
    pk(60, C_, B_); pk(61, B_, B_); pk(62, A_, A_); pk(63, A_, A_)
    a("ds_write_b128 v23, v[56:59]")
    a("ds_write_b128 v23, v[60:63] offset:%d" % KB_OFF)
    a.wait_lg("s3")
    A_, B_, C_ = 42, 43, 44
    seqA = [(C_, C_), (C_, C_), (B_, B_), (B_, B_), (B_, B_), (B_, A_), (A_, A_), (A_, A_)]
    seqB = [(C_, C_), (C_, B_), (B_, B_), (B_, B_), (B_, B_), (A_, A_), (A_, A_), (A_, A_)]
    for k, (lo, hi) in enumerate(seqA):
        pk(64 + k, lo, hi)
    for k, (lo, hi) in enumerate(seqB):
        pk(72 + k, lo, hi)
    a("ds_write_b128 v24, v[64:67]")
    a("ds_write_b128 v24, v[68:71] offset:16")
    a("ds_write_b128 v24, v[72:75] offset:%d" % KB_OFF)
    a("ds_write_b128 v24, v[76:79] offset:%d" % (KB_OFF + 16))
    stamp(5)
    a.drain_lg()
    a("s_setprio 0")
    lds_arrive(20, 8, 9)
    vUA, vKA = 10, 11
    a("v_and_b32 v12, 15, v0")
    a("v_lshrrev_b32 v13, 4, v0")
    a("v_lshlrev_b32 v13, 1, v13")
    a("v_sub_u32 v12, v12, v13")
    a("v_lshlrev_b32 v12, 4, v12")
    a("s_add_u32 s%d, s%d, %d" % (sT1, sRB, U_OFF - 128))
    a("v_add_u32 v%d, s%d, v12" % (vUA, sT1))
    a("v_lshrrev_b32 v12, 1, v0")
    a("v_lshlrev_b32 v12, 2, v12")
    a("v_and_b32 v13, 1, v0")
    a("v_mul_u32_u24 v13, %d, v13" % KB_OFF)
    a("v_add_u32 v12, v12, v13")
    a("s_add_u32 s%d, s%d, %d" % (sT1, sRB, KB_OFF + 4092 - 128 - 768))
    a("v_sub_u32 v%d, s%d, v12" % (vKA, sT1))
    for g in range(1, 4):
        a("v_subrev_u32 v%d, %d, v%d" % (vKA + g, 1024 * g, vKA))
    AC, KF, UF, NU = 16, 80, 208, 8
    for idx in range(32):
        c, tau = idx >> 4, idx & 15
        o = 192 - 64 * (tau & 3) + 32 * (1 - c)
        r = KF + 4 * idx
        a("ds_read2_b32 %s, v%d offset0:%d offset1:%d" % (v(r, 2), vKA + (tau >> 2), o, o + 1))
        a("ds_read2_b32 %s, v%d offset0:%d offset1:%d" % (v(r + 2, 2), vKA + (tau >> 2), o + 2, o + 3))
    a("v_and_b32 v4, 15, v0")
    a("v_lshlrev_b32 v4, 4, v4")
    a("v_lshrrev_b32 v5, 5, v0")
    a("v_lshl_add_u32 v4, v5, 11, v4")
    a("v_bfe_u32 v5, v0, 4, 1")
    a("v_lshl_add_u32 v4, v5, 8, v4")
    group_ids(5, 6, sX, 7)
    a("v_mov_b32 v6, %d" % CNT)
    lds_wait(24, 1, 8, 9, sleep=1)
    stamp(7)
    if cfg.cprio:
        a("s_setprio %d" % cfg.cprio)
    seq = []
    for c in range(2):
        for q in range(8):
            seq += [(c, q), (c, 15 - q)]
    def uread(n):
        c, mu = seq[n]
        a("ds_read_b128 %s, v%d offset:%d" % (v(UF + 4 * (n % NU), 4), vUA, 128 * (1 - c) + 256 * mu), tag="U%d" % n)
    for n in range(NU - 2):
        uread(n)
    stubs = []
    for n in range(32):
        c, mu = seq[n]
        if n % 2 == 0:
            if cfg.pause and n:
                a.wait_lg("pz")
                a("v_cmp_ne_u32 vcc, v8, v9")
                a("s_cbranch_vccnz L_pz%d" % n)
                a.label("L_np%d" % n)
                stubs.append(n)
            if cfg.pause and n < 30:
                a("ds_read2_b32 v[8:9], v6 offset0:0 offset1:7", tag="pz")
            for k in (n + NU - 2, n + NU - 1):
                if k < 32:
                    uread(k)
        a.wait_lg("U%d" % n)
        for tau in range(16 - mu):
            acc = v(AC + 4 * (tau + mu), 4)
            if not cfg.noconv or n == 0:
                a("v_mfma_f32_16x16x32_bf16 %s, %s, %s, %s" % (acc, v(KF + 4 * (16 * c + tau), 4), v(UF + 4 * (n % NU), 4), acc if n else "0"))
    stamp(8)
    if cfg.eprio != cfg.cprio:
        a("s_setprio %d" % cfg.eprio)
    CY = 100
    for r in range(4):
        a("v_mov_b32 v%d, 0" % (CY + r))
    for m in range(8):
        for r in range(4):
            a("v_permlane32_swap_b32 v%d, v%d" % (AC + 4 * m + r, AC + 32 + 4 * m + r))
    for r in range(4):
        a("v_mov_b32 v%d, v%d" % (CY + 4 + r, AC + 32 + 28 + r))
    for m in range(8):
        for r in range(4):
            L_ = AC + 4 * m + r
            a("v_add_f32_dpp v%d, v%d, v%d row_shr:1 row_mask:0xf bank_mask:0xf bound_ctrl:0" % (L_, AC + 32 + 4 * m + r, L_))
        if m == 0:
            for r in range(4):
                a("v_permlane32_swap_b32 v%d, v%d" % (CY + r, CY + 4 + r))
    for m in range(8):
        for r in range(4):
            L_ = AC + 4 * m + r
            prev = (AC + 32 + 4 * (m - 1) + r) if m else (CY + r)
            a("v_add_f32_dpp v%d, v%d, v%d row_shl:15 row_mask:0xf bank_mask:0xf bound_ctrl:0" % (L_, prev, L_))
    TP2 = 108
    for k in range(16):
        a("v_cvt_pk_bf16_f32 v%d, v%d, v%d" % (TP2 + k, AC + 2 * k, AC + 2 * k + 1))
    for mp in range(4):
        a("v_permlane16_swap_b32 v%d, v%d" % (TP2 + 4 * mp, TP2 + 4 * mp + 2))
        a("v_permlane16_swap_b32 v%d, v%d" % (TP2 + 4 * mp + 1, TP2 + 4 * mp + 3))
    a("s_lshl_b32 s%d, s%d, 12" % (sT0, sPOS))
    a("s_add_u32 s%d, s%d, 0x%x" % (sT0, sT0, YA))
    for mp in range(4):
        a("buffer_store_dwordx4 %s, v4, %s, s%d offen offset:%d sc1" % (v(TP2 + 4 * mp, 4), s(rWS, 4), sT0, 512 * mp))
    a("s_mov_b32 s%d, 0x%x" % (sT1, YC))
    a.drain_vm()
    group_add(5, sT1, 13)
    stamp(9)
    a.label("L_aux_done")
    finish()
    for n in stubs:
        a.label("L_pz%d" % n)
        a("s_mov_b32 s%d, 0x%x" % (sCNT, cfg.spin * 64))
        a.label("L_pl%d" % n)
        a("s_sleep 1")
        a("ds_read2_b32 v[8:9], v6 offset0:0 offset1:7")
        a("s_sub_u32 s%d, s%d, 1" % (sCNT, sCNT))
        a("s_cbranch_scc1 L_np%d" % n)
        a.drain_lg()
        a("v_cmp_ne_u32 vcc, v8, v9")
        a("s_cbranch_vccnz L_pl%d" % n)
        a("s_branch L_np%d" % n)

    a.label("L_w7")
    a.vm = []; a.lg = []
    eload()
    srd_bases([(rW2, pW2)])
    tile_math()
    a("v_lshlrev_b32 v26, 7, v0")
    a("v_mov_b32 v27, 0")
    a("s_lshl_b32 s%d, s%d, 10" % (sT3, sID))
    a("s_add_u32 s%d, s%d, 0x%x" % (sT3, sT3, MB + 512))
    a("s_mov_b64 exec, 15")
    a("buffer_store_dword v27, v26, %s, s%d offen sc1" % (s(rWS, 4), sT3))
    a("s_lshl_b32 s%d, s%d, 7" % (sT3, sID))
    a("s_add_u32 s%d, s%d, 0x%x" % (sT3, sT3, YC))
    a("s_mov_b64 exec, 1")
    a("buffer_store_dword v27, v26, %s, s%d offen sc1" % (s(rWS, 4), sT3))
    a("s_mov_b64 exec, -1")
    a("v_lshrrev_b32 v10, 4, v0")
    a("v_and_b32 v11, 3, v0")
    a("v_bfe_u32 v12, v0, 2, 2")
    a("s_movk_i32 s%d, 704" % sT0)
    a("v_mul_lo_u32 v12, v12, s%d" % sT0)
    a("v_add_u32 v12, %d, v12" % SB)
    for q in range(5):
        a("v_add_u32 v21, %d, v10" % (4 * q))
        a("v_mul_u32_u24 v22, 13, v21")
        a("v_lshrrev_b32 v22, 6, v22")
        a("v_mul_u32_u24 v23, 5, v22")
        a("v_sub_u32 v21, v21, v23")
        a("v_lshrrev_b32 v23, 1, v21")
        a("v_lshlrev_b32 v23, 5, v23")
        a("v_and_b32 v24, 1, v21")
        a("v_lshl_add_u32 v23, v24, 2, v23")
        a("v_lshlrev_b32 v24, 3, v11")
        a("v_lshlrev_b32 v25, 2, v11")
        a("v_cmp_eq_u32 vcc, 4, v21")
        a("v_cndmask_b32 v24, v24, v25, vcc")
        a("v_add_u32 v23, v23, v24")
        a("v_mul_u32_u24 v22, 80, v22")
        a("v_add_u32 v23, v23, v22")
        a("v_lshl_add_u32 v%d, v23, 1, v12" % vPA[q])
    for q in range(5):
        a("v_add_u32 v%d, %d, v%d" % (100 + q, 2 * SS, vPA[q]))
    a("s_setprio 3")
    lds_wait(8, 4, 12, 13)
    a("s_add_u32 s%d, s7, 0x9E3779B9" % sTAG)
    stamp(2)
    a("s_mul_i32 s%d, s%d, 10240" % (sT0, sID))
    a("s_add_u32 s%d, s%d, 4096" % (sT1, sT0))
    a("s_add_u32 s%d, s%d, 8192" % (sT2, sT0))
    def prd(k):
        arr, hf, q = k // 10, (k // 5) & 1, k % 5
        r = 16 + 4 * k
        o = hf * SS
        va = 100 + q if arr else vPA[q]
        a("ds_read_b64_tr_b16 %s, v%d offset:%d" % (v(r, 2), va, o), tag="p%d" % k)
        a("ds_read_b64_tr_b16 %s, v%d offset:%d" % (v(r + 2, 2), va, o + 2816), tag="p%d" % k)
    for k in range(6):
        prd(k)
    for k in range(20):
        if k == 10:
            for q in range(3):
                a("s_add_u32 s%d, s%d, 0x%x" % ((sT0, sT1, sT2)[q], (sT0, sT1, sT2)[q], XB))
        a.wait_lg("p%d" % k)
        kk = k % 10
        a("buffer_store_dwordx4 %s, v2, %s, s%d offen offset:%d sc1" % (v(16 + 4 * k, 4), s(rWS, 4), (sT0, sT1, sT2)[kk >> 2], 1024 * (kk & 3)), tag="hs" if k < 10 else "xs")
        if k + 6 < 20:
            prd(k + 6)
        if k == 13:
            a.drain_lg()
            lds_arrive(16, 12, 13)
    a("s_lshl_b32 s%d, s%d, %d" % (sT3, sID, cfg.fsh))
    a("s_add_u32 s%d, s%d, 0x%x" % (sT3, sT3, HF))
    a.wait_vm("xs")
    flag_store(sT3, 12, 13)
    stamp(3)
    a("s_setprio %d" % cfg.uprio)
    lds_wait(12, 4, 10, 11, sleep=2)
    stamp(5)
    def touch_w2():
        sh = 2 if cfg.map2 == 8 else 3
        a("v_lshrrev_b32 v10, %d, v0" % sh)
        a("v_lshlrev_b32 v10, 12, v10")
        a("v_and_b32 v11, %d, v0" % ((1 << sh) - 1))
        a("v_lshl_add_u32 v10, v11, 7, v10")
        a("s_mul_i32 s%d, s%d, %d" % (sT1, sJ, 48 * 4096))
        if cfg.map2 == 8:
            a("s_lshl_b32 s%d, s%d, 9" % (sT2, sX))
        else:
            a("s_lshr_b32 s%d, s%d, 1" % (sT2, sX))
            a("s_lshl_b32 s%d, s%d, 10" % (sT2, sT2))
        a("s_add_u32 s%d, s%d, s%d" % (sT1, sT1, sT2))
        n = 3 if cfg.map2 == 8 else 6
        for k in range(n):
            a("buffer_load_dword v%d, v10, %s, s%d offen %s" % (100 + k, s(rW2, 4), sT1, cfg.t2pol))
            a("s_add_u32 s%d, s%d, %d" % (sT1, sT1, (64 >> sh) * 4096))
            if cfg.t2gap:
                a.drain_vm()
    if cfg.touch2 == 1 or cfg.refresh:
        sv = cfg.t2pol
        if cfg.refresh:
            cfg.t2pol = ''
        touch_w2()
        cfg.t2pol = sv
    a("s_cmp_lg_u32 s%d, 0" % sID)
    a("s_cbranch_scc1 L_noE")
    a("s_mov_b32 s%d, 0x%x" % (sT0, EW))
    flag_store(sT0, 12, 13)
    a.label("L_noE")
    if cfg.late:
        a("s_cmp_ge_u32 s%d, 30" % sJ)
        a("s_cbranch_scc1 L_w7_nl")
        lds_wait(28 if cfg.late == 1 else 0, 4 if cfg.late == 1 else 1, 10, 11, sleep=4)
        a.label("L_w7_nl")
    a("v_lshrrev_b32 v8, 2, v0")
    a("v_and_b32 v9, 3, v0")
    a("v_mul_u32_u24 v10, 10240, v8")
    a("v_lshl_add_u32 v10, v9, 4, v10")
    a("v_mul_u32_u24 v11, %d, v9" % S)
    a("v_lshl_add_u32 v11, v8, 4, v11")
    a("s_lshl_b32 s%d, s%d, 4" % (sT1, sPOS))
    a("s_add_u32 s%d, s%d, 0x%x" % (sT1, sT1, XB))
    a("s_and_b32 s%d, s%d, 1" % (sT3, sJ))
    a("s_cmp_eq_u32 s%d, 0" % sT3)
    a("s_mov_b32 s%d, 0x33333333" % sT2)
    a("s_cselect_b32 s14, 0x77777777, s%d" % sT2)
    a("s_mov_b32 s15, s14")
    a("s_mov_b64 exec, s[14:15]")
    for k in range(16):
        a("buffer_load_dwordx4 %s, v10, %s, s%d offen sc1" % (v(16 + 4 * k, 4), s(rWS, 4), sT1), tag="u%d" % k)
        if k < 15:
            a("s_add_u32 s%d, s%d, %d" % (sT1, sT1, 16 * 10240))
    a("s_mov_b64 exec, -1")
    lds_arrive_n = None
    a("v_mov_b32 v12, %d" % (CNT + 20))
    a("v_mov_b32 v13, s%d" % sT3)
    a("s_mov_b64 exec, 1")
    a("ds_add_u32 v12, v13")
    a("s_mov_b64 exec, -1")
    lds_wait(20, 3, 12, 13, sleep=2)
    a("s_mov_b64 exec, s[14:15]")
    for k in range(16):
        a.wait_vm("u%d" % k)
        a("ds_write_b128 v11, %s offset:%d" % (v(16 + 4 * k, 4), U_OFF + 256 * k))
    a("s_mov_b64 exec, -1")
    a.drain_lg()
    lds_arrive(24, 12, 13)
    stamp(9)
    a("s_lshl_b32 s%d, s%d, 7" % (sT1, sID))
    a("s_add_u32 s%d, s%d, 0x%x" % (sT1, sT1, YC))
    spoll(sT1, cfg.ysleep, target=80)
    stamp(6)
    a("v_lshrrev_b32 v8, 3, v0")
    a("v_lshlrev_b32 v8, 12, v8")
    a("v_and_b32 v9, 7, v0")
    a("v_lshl_add_u32 v8, v9, 4, v8")
    a("s_mul_i32 s%d, s%d, %d" % (sT0, sDT2, 80 * 4096))
    a("s_lshl_b32 s%d, s%d, 7" % (sT1, sST))
    a("s_add_u32 s%d, s%d, s%d" % (sT0, sT0, sT1))
    a("s_add_u32 s%d, s%d, 0x%x" % (sT0, sT0, YA))
    for k in range(10):
        a("buffer_load_dwordx4 %s, v8, %s, s%d offen sc1" % (v(16 + 4 * k, 4), s(rWS, 4), sT0), tag="y%d" % k)
        if k < 9:
            a("s_add_u32 s%d, s%d, %d" % (sT0, sT0, 8 * 4096))
    for k in range(10):
        a.wait_vm("y%d" % k)
        a("ds_write_b128 v2, %s offset:%d" % (v(16 + 4 * k, 4), RY + 1024 * k))
    stamp(7)
    finish()
    a.label("L_exit")
    a("s_endpgm")
    a.label("L_code_end")
    return a

HEADER = open("cdna_kernels/%s.s.ref" % NAME).read().split("; Override launch")[0]

def full(cfg):
    a = gen(cfg)
    out = HEADER
    out += "; @launch grid=(256,1,1) block=(512,1,1) lds=%d\n" % LDS_BYTES
    out += '.amdgcn_target "amdgcn-amd-amdhsa--gfx950"\n.text\n.globl %s_kernel\n.p2align 8\n.type %s_kernel,@function\n' % (NAME, NAME)
    out += a.text()
    out += """.section .rodata,"a"
.p2align 6
.amdhsa_kernel %s_kernel
  .amdhsa_next_free_vgpr 256
  .amdhsa_next_free_sgpr 102
  .amdhsa_accum_offset 256
  .amdhsa_group_segment_fixed_size 0
  .amdhsa_kernarg_size 136
  .amdhsa_user_sgpr_count 2
  .amdhsa_user_sgpr_kernarg_segment_ptr 1
  .amdhsa_system_sgpr_workgroup_id_x 1
  .amdhsa_float_denorm_mode_32 3
.end_amdhsa_kernel
""" % NAME
    return out, a

if __name__ == "__main__":
    cfg = Cfg()
    outp = "cdna_kernels/%s.s" % NAME
    for arg in sys.argv[1:]:
        k, val = arg.split("=")
        if k == "out":
            outp = val
        else:
            cur = getattr(cfg, k)
            setattr(cfg, k, val if isinstance(cur, str) else (bool(int(val)) if isinstance(cur, bool) else int(val)))
    txt, a = full(cfg)
    open(outp, "w").write(txt)
    print("wrote", outp, "instr", a.ninst, "pad states", a.npad)
```

```python
import sys, struct, math
from asmlib import Asm, v, s

NAME = "parallel_sum__ssm_conv_s4__mixer_token_mlp__prompt"

def f32(x):
    return "0x%08x" % struct.unpack("<I", struct.pack("<f", x))[0]

class Cfg:
    ts = False
    spin = 32768
    depth1 = 2
    depth2 = 2
    out_pol = ""
    stop = 99
    xpol = ''
    ppol = ''
    tpol = ''
    t2pol = ''
    map8 = 1
    map1 = 8
    map2 = 8
    t2gap = 0
    late = 0
    fsh = 7
    touch1 = 0
    xtl = 1
    kprio = 1
    pre1 = 0
    touch2 = 0
    tdep = 1
    pth = 1
    ln4 = 0
    w7mb = 1
    e0at = 55
    nr1 = 12
    nr2 = 16
    noxn = 0
    hold = 0
    fillk = 2
    noload = 0
    xm1 = 2
    fm1 = 0
    xm2 = 3
    fm2 = 0
    nokw = 0
    nopk = 0
    cprio = 0
    eprio = 3
    lateb = 0
    nagg = 8
    wrot1 = 1
    wrot2 = 1
    prea = 0
    preb = 1
    prec = 0
    swz = 0
    fine = 1
    c8k = 13
    uprio = 3
    refresh = 0
    e1 = 2
    e0 = 2
    nt1 = 0
    nt2 = 0
    pause = 1
    psleep = 1
    asleep = 0
    badmap = False
    dbg = False
    dbgw = 8
    nomfma = False
    apol = 'sc1'
    noadv = False
    noconv = False
    rotm1 = 0
    rotk1 = 0
    rotm2 = 0
    rotk2 = 0
    nsh1 = 1
    sub1 = 2
    nsh2 = 1
    sub2 = 2
    rot3 = 0
    ysleep = 2

HB, XB, GB, YA = 0, 0x280000, 0x500000, 0x700000
FL = 0xA00000
HF, XF, GF, YF, EW = FL, FL + 0x10000, FL + 0x20000, FL + 0x40000, FL + 0x60000
MB, YC = FL + 0x80000, FL + 0x10000
TSO = 0xB00000
WS_BYTES = 0xC00000
S = 12576
RY = 3 * S
CNT = RY + 10240
BIA = CNT + 32
WOFF = 49152
WSZ = 28672
LDS_BYTES = 163840
KB_OFF, ZP_OFF, U_OFF = 4160, 8256, 8480
TB_OFF = U_OFF + 16
sID, sWV, sX, sJ, sTAG = 2, 3, 4, 5, 6
pX, pARE, pAIM, pBRE, pBIM, pCRE, pCIM, pLDT, pDSK, pBX, pW1, pB1, pW2, pB2, pOUT, pDBG, pWS = [16 + 2 * i for i in range(17)]
rWS, rX, rW1, rW2, rOUT, rCODE = 52, 56, 60, 64, 68, 72
rB = rCODE
sDT, sFT, sDT2, sST, sWB = 76, 77, 78, 79, 80
sOW, sOWB, sOWE = 81, 82, 83
sOA, sOAB, sOAE = 84, 85, 86
sD = [87, 88, 89, 90]
sT0, sT1, sT2, sT3 = 8, 9, 10, 11
sCNT = 12
sORD1, sORD2 = (50, 51), (91, 92)
sPOS, sCH, sRB = 93, 94, 95
sMASK = 13
vL, vTS = 0, 15

def gen(cfg):
    a = Asm()
    nts = [0]
    def stamp(idx):
        if not cfg.ts:
            return
        a("s_memrealtime s[98:99]")
        a("s_waitcnt lgkmcnt(0)"); a.lg = []
        a("v_writelane_b32 v%d, s98, %d" % (vTS, idx))
        if idx in (0, 4, 5, 9, 10, 11):
            a("s_memtime s[98:99]")
            a("s_waitcnt lgkmcnt(0)")
            a("v_writelane_b32 v%d, s98, %d" % (vTS, 48 + idx))

    def finish():
        if cfg.ts:
            a("s_lshl_b32 s%d, s%d, 3" % (sT0, sID))
            a("s_add_u32 s%d, s%d, s%d" % (sT0, sT0, sWV))
            a("s_lshl_b32 s%d, s%d, 8" % (sT0, sT0))
            a("s_add_u32 s%d, s%d, 0x%x" % (sT0, sT0, TSO))
            a("v_lshlrev_b32 v1, 2, v%d" % vL)
            a("buffer_store_dword v%d, v1, %s, s%d offen" % (vTS, s(rWS, 4), sT0))
            if cfg.dbg:
                n = nts[0]; nts[0] += 1
                a("s_lshl_b32 s%d, s%d, 3" % (sT0, sID))
                a("s_add_u32 s%d, s%d, s%d" % (sT0, sT0, sWV))
                a("s_cmp_lg_u32 s%d, %d" % (sT0, cfg.dbgw))
                a("s_cbranch_scc1 L_nodbg%d" % n)
                a("v_readlane_b32 s%d, v%d, 0" % (sT0, vTS))
                a("v_subrev_u32 v2, s%d, v%d" % (sT0, vTS))
                a("s_mov_b64 exec, 0xffff")
                a("global_store_dword v1, v2, %s" % s(pDBG, 2))
                a.label("L_nodbg%d" % n)
        a("s_waitcnt vmcnt(0) lgkmcnt(0)")
        a("s_endpgm")

    def srd(r, p, nbytes):
        a("s_mov_b32 s%d, s%d" % (r, p))
        a("s_and_b32 s%d, s%d, 0xffff" % (r + 1, p + 1))
        a("s_mov_b32 s%d, 0x%x" % (r + 2, nbytes))
        a("s_mov_b32 s%d, 0x20000" % (r + 3))

    npoll = [0]
    def poll(voffs, soffs, vdata, sleep=4, lanes=64):
        n = npoll[0]; npoll[0] += 1
        a("s_mov_b32 s%d, %d" % (sCNT, cfg.spin))
        if lanes < 64:
            a("s_mov_b64 exec, %d" % ((1 << lanes) - 1))
        a.label("L_poll%d" % n)
        for k, (vo, so) in enumerate(zip(voffs, soffs)):
            a("buffer_load_dword v%d, v%d, %s, s%d offen sc1" % (vdata + k, vo, s(rWS, 4), so))
        a.drain_vm()
        a("v_cmp_ne_u32 vcc, s%d, v%d" % (sTAG, vdata))
        for k in range(1, len(voffs)):
            a("v_cmp_ne_u32 s[14:15], s%d, v%d" % (sTAG, vdata + k))
            a("s_or_b64 vcc, vcc, s[14:15]")
        a("s_cmp_eq_u64 vcc, 0")
        a("s_cbranch_scc1 L_pollok%d" % n)
        a("s_sub_u32 s%d, s%d, 1" % (sCNT, sCNT))
        a("s_cmp_eq_u32 s%d, 0" % sCNT)
        a("s_cbranch_scc1 L_pollok%d" % n)
        a("s_mov_b64 exec, vcc")
        if sleep:
            a("s_sleep %d" % sleep)
        a("s_branch L_poll%d" % n)
        a.label("L_pollok%d" % n)
        a("s_mov_b64 exec, -1")

    def spoll_pre(soff):
        a("s_add_u32 s14, s%d, s%d" % (pWS, soff))
        a("s_addc_u32 s15, s%d, 0" % (pWS + 1))
        a("s_load_dword s7, s[14:15], 0 glc")
    def spoll(soff, sleep=1, target=None, pre=False):
        n = npoll[0]; npoll[0] += 1
        if not pre:
            a("s_add_u32 s14, s%d, s%d" % (pWS, soff))
            a("s_addc_u32 s15, s%d, 0" % (pWS + 1))
        a("s_mov_b32 s%d, %d" % (sCNT, cfg.spin * 2))
        if pre:
            a("s_branch L_sq%d" % n)
        a.label("L_sp%d" % n)
        a("s_load_dword s7, s[14:15], 0 glc")
        a.label("L_sq%d" % n)
        a("s_waitcnt lgkmcnt(0)"); a.lg = []
        if target is None:
            a("s_cmp_eq_u32 s7, s%d" % sTAG)
        else:
            a("s_cmp_eq_u32 s7, %d" % target)
        a("s_cbranch_scc1 L_spok%d" % n)
        if sleep:
            a("s_sleep %d" % sleep)
        a("s_sub_u32 s%d, s%d, 1" % (sCNT, sCNT))
        a("s_cmp_lg_u32 s%d, 0" % sCNT)
        a("s_cbranch_scc1 L_sp%d" % n)
        a.label("L_spok%d" % n)

    def group_ids(vdst, vtmp, sg, shift):
        if cfg.map2 == 8:
            a("v_and_b32 v%d, 24, v0" % vdst)
            a("v_lshlrev_b32 v%d, 3, v%d" % (vdst, vdst))
            a("v_and_b32 v%d, 7, v0" % vtmp)
            a("v_add_u32 v%d, v%d, v%d" % (vdst, vdst, vtmp))
            a("s_lshl_b32 s%d, s%d, 3" % (sT0, sg))
        else:
            a("v_and_b32 v%d, 28, v0" % vdst)
            a("v_lshlrev_b32 v%d, 3, v%d" % (vdst, vdst))
            a("v_and_b32 v%d, 3, v0" % vtmp)
            a("v_lshl_add_u32 v%d, v%d, 1, v%d" % (vdst, vtmp, vdst))
            a("s_and_b32 s%d, s%d, 3" % (sT0, sg))
            a("s_lshl_b32 s%d, s%d, 3" % (sT0, sT0))
            a("s_lshr_b32 s14, s%d, 2" % sg)
            a("s_add_u32 s%d, s%d, s14" % (sT0, sT0))
        a("v_add_lshl_u32 v%d, v%d, s%d, %d" % (vdst, vdst, sT0, shift))

    def group_add(voff, soff, vtmp):
        a("v_mov_b32 v%d, 1" % vtmp)
        a("s_mov_b64 exec, 0xffffffff")
        a("buffer_atomic_add v%d, v%d, %s, s%d offen sc1" % (vtmp, voff, s(rWS, 4), soff), tag="flag")
        a("s_mov_b64 exec, -1")

    def flag_store(soff, vtmp0, vtmp1):
        a("v_mov_b32 v%d, s%d" % (vtmp0, sTAG))
        a("v_mov_b32 v%d, 0" % vtmp1)
        a("s_mov_b64 exec, 1")
        a("buffer_store_dword v%d, v%d, %s, s%d offen sc1" % (vtmp0, vtmp1, s(rWS, 4), soff), tag="flag")
        a("s_mov_b64 exec, -1")

    nl = [0]
    def lds_arrive(off, vt0, vt1):
        a("v_mov_b32 v%d, %d" % (vt0, CNT + off))
        a("v_mov_b32 v%d, 1" % vt1)
        a("s_mov_b64 exec, 1")
        a("ds_add_u32 v%d, v%d" % (vt0, vt1))
        a("s_mov_b64 exec, -1")

    def lds_wait(off, target, vt0, vt1, sleep=0):
        n = nl[0]; nl[0] += 1
        a("v_mov_b32 v%d, %d" % (vt0, CNT + off))
        a("s_mov_b32 s%d, 0x%x" % (sCNT, cfg.spin * 64))
        a.label("L_lw%d" % n)
        a("ds_read_b32 v%d, v%d" % (vt1, vt0))
        a.drain_lg()
        a("v_readfirstlane_b32 s%d, v%d" % (sT0, vt1))
        a("s_cmp_ge_u32 s%d, %d" % (sT0, target))
        a("s_cbranch_scc1 L_lwok%d" % n)
        if sleep:
            a("s_sleep %d" % sleep)
        a("s_sub_u32 s%d, s%d, 1" % (sCNT, sCNT))
        a("s_cmp_lg_u32 s%d, 0" % sCNT)
        a("s_cbranch_scc1 L_lw%d" % n)
        a.label("L_lwok%d" % n)

    a.label(NAME + "_kernel")
    a("s_cmp_ge_u32 s2, 256")
    a("s_cbranch_scc1 L_exit")
    if cfg.hold:
        a("s_memrealtime s[98:99]")
    a("s_load_dwordx16 s[16:31], s[0:1], 0")
    a("s_load_dwordx16 s[32:47], s[0:1], 64")
    a("s_load_dwordx2 s[48:49], s[0:1], 128")
    a("s_getpc_b64 s[%d:%d]" % (rCODE, rCODE + 1))
    a.label("L_pc")
    a("v_lshrrev_b32 v1, 6, v0")
    a("v_and_b32 v0, 63, v0")
    if cfg.ts:
        a("v_mov_b32 v%d, 0" % vTS)
    a("v_readfirstlane_b32 s%d, v1" % sWV)
    if cfg.badmap:
        a("s_lshr_b32 s%d, s2, 5" % sX)
        a("s_and_b32 s%d, s2, 31" % sJ)
    else:
        a("s_and_b32 s%d, s2, 7" % sX)
        a("s_lshr_b32 s%d, s2, 3" % sJ)
    a("s_mov_b32 s%d, 0xffff0000" % sMASK)
    a("s_and_b32 s%d, s%d, 0xffff" % (rCODE + 1, rCODE + 1))
    a("s_mov_b32 s%d, L_code_end-L_pc" % (rCODE + 2))
    a("s_mov_b32 s%d, 0x20000" % (rCODE + 3))
    a("s_cmp_lg_u32 s%d, 7" % sWV)
    a("s_cbranch_scc1 L_nopf")
    a("s_lshl_b32 s%d, s%d, 7" % (sT0, sJ))
    a("v_lshlrev_b32 v1, 12, v0")
    a("buffer_load_dword v14, v1, %s, s%d offen" % (s(rCODE, 4), sT0))
    a("v_mov_b32 v21, %d" % CNT)
    for k in range(4):
        a("v_mov_b32 v%d, 0" % (24 + k))
    a("ds_write_b128 v21, v[24:27]")
    a("ds_write_b128 v21, v[24:27] offset:16")
    a.label("L_nopf")
    a.vm = []; a.lg = []
    a("v_lshlrev_b32 v2, 4, v0")
    a("v_lshlrev_b32 v3, 2, v0")
    a("v_mov_b32 v7, 0")
    a("v_mov_b32 v8, 0")
    nline = 3 if cfg.map1 == 8 else 6
    def tile_math():
        a("s_and_b32 s%d, s%d, 1" % (sT0, sX))
        a("s_lshr_b32 s%d, s%d, 1" % (sT1, sX))
        a("v_mul_u32_u24 v62, 3072, v0")
        a("s_mul_i32 s96, s%d, %d" % (sJ, 64 * 3072))
        if cfg.map1 == 8:
            a("s_mul_i32 s%d, s%d, 26" % (sT2, sJ))
            a("s_lshr_b32 s%d, s%d, 8" % (sT2, sT2))
            a("s_mul_i32 s%d, s%d, 10" % (sT3, sT2))
            a("s_sub_u32 s%d, s%d, s%d" % (sT3, sJ, sT3))
            a("s_mov_b32 s%d, s%d" % (sDT, sT3))
            a("s_mul_i32 s%d, s%d, 3" % (sFT, sX))
        else:
            a("s_mul_i32 s%d, s%d, 13" % (sT2, sJ))
            a("s_lshr_b32 s%d, s%d, 6" % (sT2, sT2))
            a("s_mul_i32 s%d, s%d, 5" % (sT3, sT2))
            a("s_sub_u32 s%d, s%d, s%d" % (sT3, sJ, sT3))
            a("s_mul_i32 s%d, s%d, 5" % (sDT, sT0))
            a("s_add_u32 s%d, s%d, s%d" % (sDT, sDT, sT3))
            a("s_mul_i32 s%d, s%d, 6" % (sFT, sT1))
        a("s_add_u32 s97, s%d, s%d" % (sFT, sWV))
        a("s_lshl_b32 s97, s97, 7")
        a("s_add_u32 s96, s96, s97")
        a("s_cmp_ge_u32 s%d, 3" % sWV)
        a("s_cselect_b32 s96, 0x7f000000, s96")
        a("s_add_u32 s%d, s%d, s%d" % (sFT, sFT, sT2))
        def order(n, nsh, sub, r):
            if nsh <= 1:
                return list(range(n))
            o = []
            g = nsh * sub
            for b in range(0, n, g):
                blk = list(range(b, min(b + g, n)))
                k = (r * sub) % len(blk) if len(blk) == g else (r * len(blk) // nsh) % len(blk)
                o += blk[k:] + blk[:k]
            return o
        def pack(o):
            o = o + [0] * (16 - len(o))
            return sum(x << (4 * i) for i, x in enumerate(o[:8])), sum(x << (4 * i) for i, x in enumerate(o[8:]))
        def sel_list(dst, sidx, orders):
            for r, o in enumerate(orders):
                lo, hi = pack(list(o))
                if r == 0:
                    a("s_mov_b32 s%d, 0x%x" % (dst[0], lo))
                    a("s_mov_b32 s%d, 0x%x" % (dst[1], hi))
                elif o != orders[0]:
                    a("s_cmp_eq_u32 s%d, %d" % (sidx, r))
                    a("s_cselect_b32 s%d, 0x%x, s%d" % (dst[0], lo, dst[0]))
                    a("s_cselect_b32 s%d, 0x%x, s%d" % (dst[1], hi, dst[1]))
        def sel_order(dst, sidx, nidx, n, nsh, sub):
            sel_list(dst, sidx, [order(n, nsh, sub, r % max(nsh, 1)) for r in range(nidx)])
        def rotl(n, k):
            return [(i + k) % n for i in range(n)]
        if cfg.wrot1:
            nd = 30 // nline
            a("s_mul_i32 s97, s%d, %d" % (sT3, -(-16 * 256 // nd)))
            a("s_lshr_b32 s97, s97, 8")
            a("s_mul_i32 s14, s%d, %d" % (sX, cfg.xm1))
            a("s_add_u32 s97, s97, s14")
            a("s_mul_i32 s14, s%d, %d" % (sT2, cfg.fm1))
            a("s_add_u32 s97, s97, s14")
            a("s_and_b32 s97, s97, 15")
            a("s_lshl_b32 s97, s97, 2")
            a("s_mov_b32 s100, 0x76543210")
            a("s_mov_b32 s101, 0xfedcba98")
            a("s_lshr_b64 s[%d:%d], s[100:101], s97" % sORD1)
            a("s_sub_u32 s97, 64, s97")
            a("s_lshl_b64 s[100:101], s[100:101], s97")
            a("s_or_b64 s[%d:%d], s[%d:%d], s[100:101]" % (sORD1 + sORD1))
        else:
            sel_order(sORD1, sT2, nline, 16, cfg.nsh1, cfg.sub1)
        if cfg.map2 == 8:
            a("s_and_b32 s%d, s%d, 7" % (sT2, sJ))
            a("s_lshr_b32 s%d, s%d, 3" % (sT3, sJ))
            a("s_mov_b32 s%d, s%d" % (sDT2, sT2))
            a("s_lshl_b32 s%d, s%d, 2" % (sST, sX))
        else:
            a("s_and_b32 s%d, s%d, 3" % (sT2, sJ))
            a("s_lshr_b32 s%d, s%d, 2" % (sT3, sJ))
            a("s_lshl_b32 s%d, s%d, 2" % (sDT2, sT0))
            a("s_add_u32 s%d, s%d, s%d" % (sDT2, sDT2, sT2))
            a("s_lshl_b32 s%d, s%d, 3" % (sST, sT1))
        a("s_add_u32 s%d, s%d, s%d" % (sST, sST, sT3))
        if cfg.wrot2:
            nd = 8 if cfg.map2 == 8 else 4
            a("s_mul_i32 s97, s%d, %d" % (sT2, 24 // nd))
            a("s_mul_i32 s14, s%d, %d" % (sX, cfg.xm2))
            a("s_add_u32 s97, s97, s14")
            a("s_mul_i32 s14, s%d, %d" % (sT3, cfg.fm2))
            a("s_add_u32 s97, s97, s14")
            a("s_lshr_b32 s97, s97, 1")
            a("s_mul_i32 s14, s97, 43")
            a("s_lshr_b32 s14, s14, 9")
            a("s_mul_i32 s14, s14, 12")
            a("s_sub_u32 s97, s97, s14")
            sel_list(sORD2, 97, [rotl(12, r) for r in range(12)])
        else:
            sel_order(sORD2, sT3, 4 if cfg.map2 == 8 else 8, 12, cfg.nsh2, cfg.sub2)
    def chan_math():
        a("s_and_b32 s%d, s%d, 3" % (sT0, sWV))
        a("s_cmp_eq_u32 s%d, 7" % sWV)
        a("s_cselect_b32 s%d, 0, s%d" % (sT0, sT0))
        a("s_mul_i32 s%d, s%d, %d" % (sRB, sT0, S))
        a("s_lshr_b32 s%d, s%d, 1" % (sT1, sJ))
        a("s_mul_i32 s%d, s%d, 5" % (sT1, sT1))
        a("s_and_b32 s%d, s%d, 1" % (sT2, sJ))
        a("s_mul_i32 s%d, s%d, 3" % (sT2, sT2))
        a("s_add_u32 s%d, s%d, s%d" % (sT1, sT1, sT2))
        a("s_add_u32 s%d, s%d, s%d" % (sT1, sT1, sT0))
        a("s_min_u32 s%d, s%d, 79" % (sT1, sT1))
        a("s_and_b32 s%d, s%d, 35" % (sT2, sT1))
        a("s_and_b32 s%d, s%d, 12" % (sT3, sT1))
        a("s_lshl_b32 s%d, s%d, 1" % (sT3, sT3))
        a("s_or_b32 s%d, s%d, s%d" % (sT2, sT2, sT3))
        a("s_and_b32 s%d, s%d, 16" % (sT3, sT1))
        a("s_lshr_b32 s%d, s%d, 2" % (sT3, sT3))
        a("s_or_b32 s%d, s%d, s%d" % (sT2, sT2, sT3))
        a("s_cmp_ge_u32 s%d, 64" % sT1)
        a("s_cselect_b32 s%d, s%d, s%d" % (sT2, sT1, sT2))
        a("s_mul_i32 s%d, s%d, 80" % (sT3, sX))
        a("s_add_u32 s%d, s%d, s%d" % (sPOS, sT3, sT1))
        a("s_add_u32 s%d, s%d, s%d" % (sCH, sT3, sT2))
        a("s_mul_i32 s%d, s%d, 384" % (sT0, sCH))
        a("v_add_u32 v10, s%d, v3" % sT0)
        a("v_lshlrev_b32 v11, 1, v0")
        a("v_add_u32 v11, s%d, v11" % sT0)
        a("s_lshl_b32 s%d, s%d, 1" % (sT0, sCH))
        a("v_mov_b32 v12, s%d" % sT0)
    if cfg.ln4:
        chan_math()
    a("s_lshl_b32 s%d, s2, %d" % (sT0, 2 if cfg.ln4 else 3))
    a("s_add_u32 s%d, s%d, s%d" % (sT0, sT0, sWV))
    a("s_mul_i32 s%d, s%d, %d" % (sT0, sT0, 2560 if cfg.ln4 else 1280))
    for r, nb in ((rX, 2621440), (rWS, WS_BYTES), (rW1, 2048 * 3072), (rW2, 1536 * 4096), (rOUT, 2621440)):
        a("s_mov_b32 s%d, 0x%x" % (r + 2, nb))
        a("s_mov_b32 s%d, 0x20000" % (r + 3))
    def srd_bases(lst):
        for r, p in lst:
            a("s_mov_b32 s%d, s%d" % (r, p))
            a("s_and_b32 s%d, s%d, 0xffff" % (r + 1, p + 1))
    def eload():
        a("s_add_u32 s14, s%d, 0x%x" % (pWS, EW))
        a("s_addc_u32 s15, s%d, 0" % (pWS + 1))
        a("s_load_dword s7, s[14:15], 0")
    def stamp0():
        stamp(0)
        if cfg.ts:
            a("s_getreg_b32 s98, hwreg(HW_REG_XCC_ID)")
            a("v_writelane_b32 v%d, s98, 40" % vTS)
            a("s_getreg_b32 s98, hwreg(HW_REG_HW_ID)")
            a("v_writelane_b32 v%d, s98, 41" % vTS)
    SB, SS = WOFF + 16384, WSZ
    a("s_mul_i32 s%d, s%d, %d" % (sT2, sWV, 1408 if cfg.ln4 else 704))
    a("s_add_u32 s%d, s%d, %d" % (sT2, sT2, SB))
    a("v_add_u32 v61, %d, v2" % (SS - 640))
    a("v_cmp_gt_u32 vcc, 40, v0")
    a("v_cndmask_b32 v60, v61, v2, vcc")
    a("v_add_u32 v60, s%d, v60" % sT2)
    a("s_add_u32 s%d, s%d, %d" % (sT2, sT2, SS + 384))
    a("v_add_u32 v61, s%d, v3" % sT2)
    vPA = [4, 5, 6, 7, 8]
    PRM0, PRM1, vLDT, vDSK = 84, 90, 96, 97
    def param_loads():
        for k, p in enumerate([pARE, pAIM, pBRE, pBIM, pCRE, pCIM]):
            a("global_load_dword v%d, v10, %s %s" % (PRM0 + k, s(p, 2), cfg.ppol), tag="p")
            a("global_load_ushort v%d, v11, %s offset:256 %s" % (PRM1 + k, s(p, 2), cfg.ppol), tag="p")
        a("global_load_ushort v%d, v12, %s" % (vLDT, s(pLDT, 2)), tag="p")
        a("global_load_ushort v%d, v12, %s" % (vDSK, s(pDSK, 2)), tag="p")
    def x_loads():
        srd_bases([(rX, pX)])
        a("buffer_load_dwordx4 v[16:19], v2, %s, s%d offen %s" % (s(rX, 4), sT0, cfg.xpol), tag="x")
        a("buffer_load_dword v20, v3, %s, s%d offen offset:1024 %s" % (s(rX, 4), sT0, cfg.xpol), tag="x")
        if cfg.ln4:
            a("buffer_load_dwordx4 v[64:67], v2, %s, s%d offen offset:1280 %s" % (s(rX, 4), sT0, cfg.xpol), tag="x")
            a("buffer_load_dword v68, v3, %s, s%d offen offset:2304 %s" % (s(rX, 4), sT0, cfg.xpol), tag="x")
    def common_tail():
        stamp0()
        eload()
        srd_bases([(rWS, pWS), (rW1, pW1), (rW2, pW2), (rOUT, pOUT)])
    if cfg.ln4:
        a("s_cmp_ge_u32 s%d, 4" % sWV)
        a("s_waitcnt lgkmcnt(0)")
        a("s_cbranch_scc1 L_nox")
        x_loads()
        vm_x = list(a.vm)
        a.label("L_nox")
        a("s_cmp_lt_u32 s%d, 4" % sWV)
        a("s_barrier")
        a("s_cbranch_scc1 L_gemm_pre")
        a.vm = []
        a("s_cmp_eq_u32 s%d, 7" % sWV)
        a("s_cbranch_scc1 L_w7_pre")
        param_loads()
        aux_vm = list(a.vm)
        stamp0()
        srd_bases([(rWS, pWS)])
        a("s_branch L_aux_main")
        a.label("L_w7_pre")
        a.vm = []
        common_tail()
    else:
        a("s_waitcnt lgkmcnt(0)")
        x_loads()
        common_tail()
        vm_common = list(a.vm)
        a("s_cmp_lt_u32 s%d, 4" % sWV)
        a("s_cbranch_scc1 L_gemm_pre")
        chan_math()
        a("s_cmp_eq_u32 s%d, 7" % sWV)
        a("s_cbranch_scc1 L_w7_pre")
        param_loads()
        a.wait_vm("x")
        aux_vm = list(a.vm)
        a("s_branch L_ln")
        a.label("L_w7_pre")
        a.vm = list(vm_common)
    a("v_lshrrev_b32 v10, 4, v0")
    a("v_and_b32 v11, 3, v0")
    a("v_bfe_u32 v12, v0, 2, 2")
    a("s_movk_i32 s%d, 704" % sT0)
    a("v_mul_lo_u32 v12, v12, s%d" % sT0)
    a("v_add_u32 v12, %d, v12" % SB)
    for q in range(5):
        a("v_add_u32 v21, %d, v10" % (4 * q))
        a("v_mul_u32_u24 v22, 13, v21")
        a("v_lshrrev_b32 v22, 6, v22")
        a("v_mul_u32_u24 v23, 5, v22")
        a("v_sub_u32 v21, v21, v23")
        a("v_lshrrev_b32 v23, 1, v21")
        a("v_lshlrev_b32 v23, 5, v23")
        a("v_and_b32 v24, 1, v21")
        a("v_lshl_add_u32 v23, v24, 2, v23")
        a("v_lshlrev_b32 v24, 3, v11")
        a("v_lshlrev_b32 v25, 2, v11")
        a("v_cmp_eq_u32 vcc, 4, v21")
        a("v_cndmask_b32 v24, v24, v25, vcc")
        a("v_add_u32 v23, v23, v24")
        a("v_mul_u32_u24 v22, 80, v22")
        a("v_add_u32 v23, v23, v22")
        a("v_lshl_add_u32 v%d, v23, 1, v12" % vPA[q])
    if cfg.ln4:
        a("s_setprio 3")
        lds_wait(8, 4, 12, 13)
        a("s_add_u32 s%d, s7, 0x9E3779B9" % sTAG)
        a("s_branch L_pub")
        a.label("L_gemm_pre")
        a.vm = list(vm_x)
        srd_bases([(rX, pX)])
        common_tail()
    else:
        a.wait_vm("x")
        a("s_branch L_ln")
        a.label("L_gemm_pre")
        a.vm = list(vm_common)
    tile_math()

    vTR = [2, 3, 4, 5]
    vFO, vDO, vPO, vPD = 6, 7, 8, 9
    ACC1, STG1, WREG1 = 16, 80, 128
    ACC2, STG2, WREG2, XR = 16, 96, 160, 148
    NR1, NR2 = cfg.nr1, cfg.nr2

    def dma_voff(rowbytes, gemm1):
        a("v_lshrrev_b32 v10, 3, v0")
        if cfg.swz == 0:
            a("v_and_b32 v11, 6, v10")
        else:
            a("v_and_b32 v11, 2, v10")
            a("v_lshlrev_b32 v11, 1, v11")
        a("v_and_b32 v12, 7, v0")
        a("v_xor_b32 v12, v12, v11")
        a("v_lshlrev_b32 v12, 4, v12")
        if gemm1:
            a("v_and_b32 v11, 4, v10")
            a("v_add_u32 v10, v10, v11")
        a("s_mov_b32 s%d, %d" % (sT0, rowbytes))
        a("v_mul_lo_u32 v10, v10, s%d" % sT0)
        a("v_add_u32 v%d, v10, v12" % vDO)

    def setoff(dst, base, ordr, step, stepbytes):
        a("s_bfe_u32 s%d, s%d, 0x%x" % (dst, ordr[step >> 3], (4 << 16) | (4 * (step & 7))))
        a("s_mul_i32 s%d, s%d, %d" % (dst, dst, stepbytes))
        a("s_add_u32 s%d, s%d, s%d" % (dst, dst, base))

    def dma_step(srdreg, slot, consts, stepbytes, tag, pol=''):
        setoff(sOW, sOWB, sORD1 if srdreg == rW1 else sORD2, int(tag[1:]), stepbytes)
        for b in range(4):
            a("s_add_u32 m0, s%d, %d" % (sWB, slot * 4096 + b * 1024))
            if consts[b]:
                a("s_add_u32 s%d, s%d, %d" % (sT0, sOW, consts[b]))
                so = sT0
            else:
                so = sOW
            a("buffer_load_dwordx4 v%d, %s, s%d offen %s lds" % (vDO, s(srdreg, 4), so, pol), tag=tag)

    C1 = [(16 * (b & 1) + 4 * (b >> 1)) * 3072 for b in range(4)]
    C2 = [8 * b * 4096 for b in range(4)]

    def tr_step(slot, wreg, tag):
        for n in range(4):
            for e in range(2):
                a("ds_read_b64_tr_b16 %s, v%d offset:%d" % (v(wreg + 4 * n + 2 * e, 2), vTR[n], slot * 4096 + e * 2048), tag=tag)

    def touch_w1():
        a("buffer_load_dword v63, v62, %s, s96 offen %s" % (s(rW1, 4), cfg.tpol), tag="tch")
    def touch_w2s():
        a("v_lshrrev_b32 v8, 2, v0")
        a("v_lshlrev_b32 v8, 12, v8")
        a("v_and_b32 v9, 3, v0")
        a("v_lshl_add_u32 v8, v9, 7, v8")
        a("v_mov_b32 v9, 0x7f000000")
        a("v_cmp_gt_u32 vcc, 48, v0")
        a("v_cndmask_b32 v8, v9, v8, vcc")
        a("s_lshl_b32 s97, s%d, 2" % sJ)
        a("s_add_u32 s97, s97, s%d" % sWV)
        a("s_mul_i32 s97, s97, %d" % (12 * 4096))
        a("s_lshl_b32 s%d, s%d, 9" % (sT2, sX))
        a("s_add_u32 s97, s97, s%d" % sT2)
    def touch_w2i():
        a("buffer_load_dword v9, v8, %s, s97 offen %s" % (s(rW2, 4), cfg.t2pol), tag="tch")
    def touch_w1b():
        if nline == 6:
            a("buffer_load_dword v63, v62, %s, s96 offen offset:384 %s" % (s(rW1, 4), cfg.tpol), tag="tch")
    a("s_mov_b64 exec, 0xffffffff")
    srd(rB, pB1, 3072)
    a("s_lshl_b32 s%d, s%d, 7" % (sT0, sFT))
    a("s_mov_b32 m0, %d" % BIA)
    a("buffer_load_dword v3, %s, s%d offen lds" % (s(rB, 4), sT0), tag="b")
    srd(rB, pB2, 4096)
    a("s_lshl_b32 s%d, s%d, 7" % (sT0, sST))
    a("s_mov_b32 m0, %d" % (BIA + 128))
    a("buffer_load_dword v3, %s, s%d offen lds" % (s(rB, 4), sT0), tag="b")
    a("s_mov_b64 exec, -1")
    if cfg.touch1 == 1:
        touch_w1()
    if cfg.touch2 in (3, 4, 5, 7):
        touch_w2s()
    if cfg.touch2 == 4:
        touch_w2i()
    a("s_setprio 2")
    a("s_mul_i32 s%d, s%d, %d" % (sWB, sWV, WSZ))
    a("s_add_u32 s%d, s%d, %d" % (sWB, sWB, WOFF))
    dma_voff(3072, True)
    a("s_mul_i32 s%d, s%d, %d" % (sOWB, sWV, 512 * 3072))
    a("s_lshl_b32 s%d, s%d, 7" % (sT0, sFT))
    a("s_add_u32 s%d, s%d, s%d" % (sOWB, sOWB, sT0))
    a("s_cmp_ge_u32 s%d, 30" % sJ)
    a("s_cselect_b32 s%d, 0x7f000000, s%d" % (sOWB, sOWB))
    def dma1(k):
        dma_step(rW1, k % 7, C1, 32 * 3072, "w%d" % k, cfg.tpol if k < cfg.nt1 else '')
    for i in range(cfg.prea):
        dma1(i)
    a.wait_vm("x")
    for i in range(cfg.prea, cfg.prea + cfg.preb):
        dma1(i)
    gemm_vm = list(a.vm)
    a.label("L_ln")
    stamp(1)

    def bfround(r):
        a("v_cvt_pk_bf16_f32 v%d, v%d, v%d" % (r, r, r))
        a("v_and_b32 v%d, s%d, v%d" % (r, sMASK, r))

    def ln_token(o, sx0, s1, s2, row):
        L = []
        e = L.append
        XP, D_, A, B, C, E_, HP = 16 + o, 24 + o, 34 + o, 36 + o, 38 + o, 40 + o, 44 + o
        M, V, R1, R2 = 50 + o, 51 + o, 52 + o, 54 + o
        for k in range(5):
            e("v_lshlrev_b32 v%d, 16, v%d" % (D_ + 2 * k, XP + k))
            e("v_and_b32 v%d, s%d, v%d" % (D_ + 2 * k + 1, sMASK, XP + k))
        e("v_readfirstlane_b32 s%d, v%d" % (sx0, D_))
        e("v_mov_b32 v%d, %s" % (R2, f32(1.0 / 640)))
        e("v_mov_b32 v%d, s%d" % (A, sx0))
        for k in range(5):
            e("v_pk_add_f32 %s, %s, %s op_sel_hi:[1,0] neg_lo:[0,1] neg_hi:[0,1]" % (v(D_ + 2 * k, 2), v(D_ + 2 * k, 2), v(A, 2)))
        e("v_pk_mul_f32 %s, %s, %s" % (v(B, 2), v(D_, 2), v(D_, 2)))
        e("v_pk_add_f32 %s, %s, %s" % (v(A, 2), v(D_, 2), v(D_ + 2, 2)))
        e("v_pk_mul_f32 %s, %s, %s" % (v(E_, 2), v(D_ + 4, 2), v(D_ + 4, 2)))
        e("v_pk_add_f32 %s, %s, %s" % (v(C, 2), v(D_ + 4, 2), v(D_ + 6, 2)))
        e("v_pk_fma_f32 %s, %s, %s, %s" % (v(B, 2), v(D_ + 2, 2), v(D_ + 2, 2), v(B, 2)))
        e("v_pk_add_f32 %s, %s, %s" % (v(A, 2), v(A, 2), v(D_ + 8, 2)))
        e("v_pk_fma_f32 %s, %s, %s, %s" % (v(E_, 2), v(D_ + 6, 2), v(D_ + 6, 2), v(E_, 2)))
        e("v_pk_fma_f32 %s, %s, %s, %s" % (v(B, 2), v(D_ + 8, 2), v(D_ + 8, 2), v(B, 2)))
        e("v_pk_add_f32 %s, %s, %s" % (v(A, 2), v(A, 2), v(C, 2)))
        e("v_pk_add_f32 %s, %s, %s" % (v(B, 2), v(B, 2), v(E_, 2)))
        e("v_add_f32 v%d, v%d, v%d" % (A, A, A + 1))
        e("v_add_f32 v%d, v%d, v%d" % (B, B, B + 1))
        for ctl in ["row_shr:1", "row_shr:2", "row_shr:4", "row_shr:8"]:
            for r in (A, B):
                e("v_add_f32_dpp v%d, v%d, v%d %s row_mask:0xf bank_mask:0xf bound_ctrl:0" % (r, r, r, ctl))
        for r in (A, B):
            e("v_add_f32_dpp v%d, v%d, v%d row_bcast:15 row_mask:0xa bank_mask:0xf" % (r, r, r))
        for r in (A, B):
            e("v_add_f32_dpp v%d, v%d, v%d row_bcast:31 row_mask:0xc bank_mask:0xf" % (r, r, r))
        e("v_readlane_b32 s%d, v%d, 63" % (s1, A))
        e("v_readlane_b32 s%d, v%d, 63" % (s2, B))
        e("v_mul_f32 v%d, s%d, v%d" % (M, s1, R2))
        e("v_mul_f32 v%d, s%d, v%d" % (V, s2, R2))
        e("v_fma_f32 v%d, -v%d, v%d, v%d" % (V, M, M, V))
        e("v_add_f32 v%d, s%d, v%d" % (A, sx0, M))
        e("v_max_f32 v%d, 0, v%d" % (V, V))
        def rstd(dst, mean, var, mb):
            e("v_cvt_pk_bf16_f32 v%d, v%d, v%d" % (C, mean, var))
            e("v_and_b32 v%d, s%d, v%d" % (dst, sMASK, C))
            e("v_lshlrev_b32 v%d, 16, v%d" % (mb, C))
            e("v_add_f32 v%d, %s, v%d" % (dst, f32(1e-5), dst))
            e("v_cvt_pk_bf16_f32 v%d, v%d, v%d" % (dst, dst, dst))
            e("v_and_b32 v%d, s%d, v%d" % (dst, sMASK, dst))
            e("v_sqrt_f32 v%d, v%d" % (dst, dst))
            e("v_cvt_pk_bf16_f32 v%d, v%d, v%d" % (dst, dst, dst))
            e("v_and_b32 v%d, s%d, v%d" % (dst, sMASK, dst))
            e("v_rcp_f32 v%d, v%d" % (dst, dst))
        rstd(R1, A, V, B)
        e("v_sub_f32 v%d, s%d, v%d" % (B, sx0, B))
        e("v_mul_f32 v%d, v%d, v%d" % (V, V, R1))
        e("v_mul_f32 v%d, v%d, v%d" % (R1 + 1, B, R1))
        e("v_mul_f32 v%d, v%d, v%d" % (V, V, R1))
        e("v_fma_f32 v%d, v%d, v%d, v%d" % (A, M, R1, R1 + 1))
        n0 = len(L)
        rstd(R2, A, V, B)
        e("v_mul_f32 v%d, v%d, v%d" % (R2 + 1, B, R2))
        chain = L[n0:]; del L[n0:]
        body = []
        for k in range(5):
            body.append("v_pk_fma_f32 %s, %s, %s, %s op_sel:[0,0,1] op_sel_hi:[1,0,1]" % (v(D_ + 2 * k, 2), v(D_ + 2 * k, 2), v(R1, 2), v(R1, 2)))
        for k in range(5):
            body.append("v_cvt_pk_bf16_f32 v%d, v%d, v%d" % (XP + k, D_ + 2 * k, D_ + 2 * k + 1))
        body.append("ds_write_b128 v60, %s offset:%d" % (v(XP, 4), 2 * SS + 704 * row))
        body.append("ds_write_b32 v61, v%d offset:%d" % (XP + 4, 2 * SS + 704 * row))
        while chain or body:
            if chain: e(chain.pop(0))
            if body: e(body.pop(0))
        for k in range(5):
            e("v_pk_fma_f32 %s, %s, %s, %s op_sel:[0,0,1] op_sel_hi:[1,0,1] neg_lo:[0,0,1] neg_hi:[0,0,1]" % (v(D_ + 2 * k, 2), v(D_ + 2 * k, 2), v(R2, 2), v(R2, 2)))
        for k in range(5):
            e("v_cvt_pk_bf16_f32 v%d, v%d, v%d" % (HP + k, D_ + 2 * k, D_ + 2 * k + 1))
        e("ds_write_b128 v60, %s offset:%d" % (v(HP, 4), 704 * row))
        e("ds_write_b32 v61, v%d offset:%d" % (HP + 4, 704 * row))
        return L
    if cfg.ln4:
        for i0, i1 in zip(ln_token(0, 14, sT0, sT1, 0), ln_token(48, 15, sT2, sT3, 1)):
            a(i0); a(i1)
        a("s_waitcnt lgkmcnt(0)"); a.lg = []
        lds_arrive(8, 12, 13)
        a("s_add_u32 s%d, s7, 0x9E3779B9" % sTAG)
        a("s_branch L_not7")
        a.label("L_pub")
    else:
        for i0 in ln_token(0, 14, sT0, sT1, 0):
            a(i0)
        a("s_waitcnt lgkmcnt(0)"); a.lg = []
        a("s_add_u32 s%d, s7, 0x9E3779B9" % sTAG)
        a("s_cmp_lg_u32 s%d, 7" % sWV)
        a("s_barrier")
        a("s_cbranch_scc1 L_not7")
    a.vm = []; a.lg = []
    a("s_setprio 3")
    stamp(2)
    a("s_mul_i32 s%d, s%d, 10240" % (sT0, sID))
    a("s_add_u32 s%d, s%d, 4096" % (sT1, sT0))
    a("s_add_u32 s%d, s%d, 8192" % (sT2, sT0))
    def prd(k):
        arr, hf, q = k // 10, (k // 5) & 1, k % 5
        r = 16 + 4 * k
        o = hf * SS
        va = 100 + q if arr else vPA[q]
        a("ds_read_b64_tr_b16 %s, v%d offset:%d" % (v(r, 2), va, o), tag="p%d" % k)
        a("ds_read_b64_tr_b16 %s, v%d offset:%d" % (v(r + 2, 2), va, o + 2816), tag="p%d" % k)
    for k in range(6):
        prd(k)
    for q in range(5):
        a("v_add_u32 v%d, %d, v%d" % (100 + q, 2 * SS, vPA[q]))
    for k in range(20):
        if k == 10:
            for q in range(3):
                a("s_add_u32 s%d, s%d, 0x%x" % ((sT0, sT1, sT2)[q], (sT0, sT1, sT2)[q], XB))
        a.wait_lg("p%d" % k)
        kk = k % 10
        if k < 10 or not cfg.noxn:
            a("buffer_store_dwordx4 %s, v2, %s, s%d offen offset:%d sc1" % (v(16 + 4 * k, 4), s(rWS, 4), (sT0, sT1, sT2)[kk >> 2], 1024 * (kk & 3)), tag="hs" if k < 10 else "xs")
        if k + 6 < 20:
            prd(k + 6)
        if k == 13:
            a.drain_lg()
            lds_arrive(16, 12, 13)
    for k in range(4):
        a("v_mov_b32 v%d, 0" % (108 + k))
    a("s_lshl_b32 s%d, s%d, 10" % (sT3, sID))
    a("s_add_u32 s%d, s%d, 0x%x" % (sT3, sT3, MB + 512))
    a("s_mov_b64 exec, 0xffffffff")
    a("buffer_store_dwordx4 v[108:111], v2, %s, s%d offen sc1" % (s(rWS, 4), sT3))
    a("s_lshl_b32 s%d, s%d, 7" % (sT3, sID))
    a("s_add_u32 s%d, s%d, 0x%x" % (sT3, sT3, YC))
    a("s_mov_b64 exec, 0xff")
    a("buffer_store_dwordx4 v[108:111], v2, %s, s%d offen sc1" % (s(rWS, 4), sT3))
    a("s_mov_b64 exec, -1")
    a("s_lshl_b32 s%d, s%d, %d" % (sT3, sID, cfg.fsh))
    a("s_add_u32 s%d, s%d, 0x%x" % (sT3, sT3, HF))
    a.drain_vm()
    flag_store(sT3, 12, 13)
    stamp(3)
    a("s_branch L_w7")
    a.label("L_not7")
    a.lg = ["arr"]
    if not cfg.ln4:
        a("s_cmp_ge_u32 s%d, 4" % sWV)
        a("s_cbranch_scc1 L_aux_main")
    a.vm = list(gemm_vm)
    if cfg.kprio:
        a("s_setprio 0")
    stamp(2)
    for i in range(cfg.prea + cfg.preb, cfg.prea + cfg.preb + cfg.prec):
        dma1(i)
    cfg.pre1 = cfg.prea + cfg.preb + cfg.prec

    a("v_lshrrev_b32 v10, 2, v0")
    if cfg.swz == 0:
        a("v_bfe_u32 v11, v0, 3, 2")
    else:
        a("v_bfe_u32 v11, v0, 3, 1")
        a("v_lshlrev_b32 v11, 1, v11")
    a("v_lshlrev_b32 v10, 7, v10")
    a("v_and_b32 v12, 3, v0")
    a("v_lshl_add_u32 v10, v12, 3, v10")
    a("v_add_u32 v10, s%d, v10" % sWB)
    for n in range(4):
        a("v_xor_b32 v12, %d, v11" % n)
        a("v_lshl_add_u32 v%d, v12, 5, v10" % vTR[n])
    a("v_lshrrev_b32 v10, 4, v0")
    a("v_mul_u32_u24 v10, 10240, v10")
    a("v_and_b32 v11, 15, v0")
    a("v_lshl_add_u32 v%d, v11, 4, v10" % vFO)
    a.wait_vm("b")
    a("v_lshrrev_b32 v10, 4, v0")
    a("v_lshlrev_b32 v10, 3, v10")
    for fi in range(4):
        a("ds_read_b64 %s, v10 offset:%d" % (v(STG1 + 2 * fi, 2), BIA + 32 * fi), tag="bias")
    a.wait_lg("bias")
    for k in range(8):
        a("v_lshlrev_b32 v%d, 16, v%d" % (ACC1 + 2 * k, STG1 + k))
        a("v_and_b32 v%d, s%d, v%d" % (ACC1 + 2 * k + 1, sMASK, STG1 + k))
    lds_wait(16, 1, 12, 13)
    stamp(14)
    if cfg.touch1:
        touch_w1b()
    if cfg.touch2 == 5:
        touch_w2i()
    a("s_cmp_ge_u32 s%d, 30" % sJ)
    a("s_cbranch_scc1 L_g2_pre_nog1")
    a("s_mul_i32 s%d, s%d, %d" % (sOAB, sWV, 64 * 10240))
    a("s_lshl_b32 s%d, s%d, 10" % (sT0, sDT))
    a("s_add_u32 s%d, s%d, s%d" % (sOAB, sOAB, sT0))
    if HB:
        a("s_add_u32 s%d, s%d, 0x%x" % (sOAB, sOAB, HB))
    for di in range(4):
        a("s_xor_b32 s%d, s%d, %d" % (sD[di], sWV, di))
        a("s_lshl_b32 s%d, s%d, 8" % (sD[di], sD[di]))
    def mbox(extra):
        a("s_lshl_b32 s%d, s%d, 3" % (sT1, sID))
        a("s_add_u32 s%d, s%d, s%d" % (sT1, sT1, sWV))
        a("s_lshl_b32 s%d, s%d, 7" % (sT1, sT1))
        a("s_add_u32 s%d, s%d, 0x%x" % (sT1, sT1, MB + extra))
    D1 = cfg.depth1
    issued = cfg.pre1
    for i in range(15):
        while issued < 15 and issued <= i + D1:
            k = issued
            if k >= 7:
                a.wait_lg("t%d" % (k - 7))
            if k == 13:
                a.drain_lg()
                mbox(0)
                spoll_pre(sT1)
            dma1(k)
            issued += 1
        if i < 8:
            a.wait_vm("w%d" % i)
            tr_step(i % 7, WREG1 + 16 * i, "t%d" % i)
        elif issued < 15:
            a.wait_vm("w%d" % i)
        if i in (0, 8) and cfg.fine:
            stamp(16 + i // 2)
    if cfg.touch2 == 7:
        touch_w2i()
    stamp(3)
    def hwait(sl):
        a("s_lshl_b32 s%d, s%d, 3" % (sT1, sID))
        a("s_add_u32 s%d, s%d, s%d" % (sT1, sT1, sWV))
        a("s_lshl_b32 s%d, s%d, 7" % (sT1, sT1))
        a("s_add_u32 s%d, s%d, 0x%x" % (sT1, sT1, MB))
        spoll(sT1, sl)
    spoll(sT1, cfg.psleep, pre=True)
    a("s_setprio 2")
    stamp(4)

    def adv_a(stepbytes):
        if cfg.noadv:
            return
        a("s_add_u32 s%d, s%d, %d" % (sOA, sOA, stepbytes))
        a("s_cmp_ge_u32 s%d, s%d" % (sOA, sOAE))
        a("s_cselect_b32 s%d, s%d, s%d" % (sOA, sOAB, sOA))

    def DI(n):
        return ((n + 1) & 3) if n >= 60 else (n & 3)
    def hload(n):
        di = DI(n)
        if n & 3 == 0:
            setoff(sOA, sOAB, sORD1, n >> 2, 4 * 10240)
        a("s_add_u32 s%d, s%d, s%d" % (sT1, sOA, sD[di]))
        a("buffer_load_dwordx4 %s, v%d, %s, s%d offen %s" % (v(STG1 + 4 * (n % NR1), 4), vFO, s(rWS, 4), sT1, cfg.apol), tag="h%d" % n)

    def w2_setup():
        dma_voff(4096, False)
        a("s_mul_i32 s%d, s%d, %d" % (sOWB, sWV, 384 * 4096))
        a("s_lshl_b32 s%d, s%d, 7" % (sT0, sST))
        a("s_add_u32 s%d, s%d, s%d" % (sOWB, sOWB, sT0))

    SL2 = {0: 3, 1: 4, 2: 5, 3: 6, 4: 0, 5: 1, 6: 2, 7: 3, 8: 4, 9: 5, 10: 6, 11: 0}
    def slot2(i):
        return SL2[i]
    def dma2(k):
        dma_step(rW2, slot2(k), C2, 32 * 4096, "u%d" % k, cfg.t2pol if k < cfg.nt2 else '')
    def tr2(k):
        tr_step(slot2(k), WREG2 + 16 * k, "q%d" % k)
    def tr_flip():
        a("s_lshl_b32 s%d, s%d, 5" % (sT0, sWV))
        for n in range(4):
            a("v_xor_b32 v%d, s%d, v%d" % (vTR[n], sT0, vTR[n]))

    vXO, vXO4, vB2 = 9, 1, 14
    sXO = 97
    def xt_setup():
        a("v_and_b32 v12, 15, v0")
        a("v_lshrrev_b32 v13, 4, v0")
        a("v_mul_u32_u24 v%d, 1280, v12" % vXO)
        a("v_lshl_add_u32 v%d, v13, 3, v%d" % (vXO4, vXO))
        a("v_lshl_add_u32 v%d, v13, 4, v%d" % (vXO, vXO))
        a("s_lshl_b32 s%d, s%d, 2" % (sT2, sST))
        a("s_add_u32 s%d, s%d, s%d" % (sT2, sT2, sWV))
        a("s_mul_i32 s%d, s%d, %d" % (sXO, sT2, 16 * 1280))
        a("s_mul_i32 s%d, s%d, 160" % (sT3, sDT2))
        a("s_add_u32 s%d, s%d, s%d" % (sXO, sXO, sT3))
    def acc2_init():
        a("v_and_b32 v12, 15, v0")
        a("s_lshl_b32 s%d, s%d, 5" % (sT2, sWV))
        a("v_lshl_add_u32 v12, v12, 1, s%d" % sT2)
        a("ds_read_u16 v%d, v12 offset:%d" % (vB2, BIA + 128), tag="b2")
        for k in range(10):
            a("v_lshlrev_b32 v%d, 16, v%d" % (ACC2 + 2 * k, XR + k))
            a("v_and_b32 v%d, s%d, v%d" % (ACC2 + 2 * k + 1, sMASK, XR + k))
        a.wait_lg("b2")
        a("v_lshlrev_b32 v%d, 16, v%d" % (vB2, vB2))
        for k in range(20):
            a("v_add_f32 v%d, v%d, v%d" % (ACC2 + k, vB2, ACC2 + k))
    def xt_loads():
        a("buffer_load_dwordx4 %s, v%d, %s, s%d offen %s" % (v(XR, 4), vXO, s(rX, 4), sXO, cfg.xpol), tag="xt")
        a("buffer_load_dwordx4 %s, v%d, %s, s%d offen offset:64 %s" % (v(XR + 4, 4), vXO, s(rX, 4), sXO, cfg.xpol), tag="xt")
        a("buffer_load_dwordx2 %s, v%d, %s, s%d offen offset:128 %s" % (v(XR + 8, 2), vXO4, s(rX, 4), sXO, cfg.xpol), tag="xt")

    for n in range(NR1):
        hload(n)
    lds_arrive(12, 12, 13)
    sGS, sGC = sOWE, sOAE
    vEX = [WREG1 + k for k in range(4)]
    vC = WREG1 + 4
    c0 = -2.0 * math.sqrt(2.0 / math.pi) * math.log2(math.e)
    c1 = c0 * 0.044715
    def xwrite(i):
        for q in range(4):
            a("ds_write_b128 v%d, %s offset:%d" % (vEX[0], v(ACC1 + 16 * i + 4 * q, 4), (i - 1) * 4096 + q * 1024))
    fifo = []
    def fill(k):
        for _ in range(k):
            if fifo:
                a.play(fifo.pop(0))
    def need(tag):
        while any(it[2] == tag for it in fifo):
            fill(1)
    def setup8():
        tr_flip()
        a("v_lshlrev_b32 v10, 4, v0")
        a("v_add_u32 v%d, s%d, v10" % (vEX[0], sWB))
        for k in range(1, 4):
            a("s_xor_b32 s%d, s%d, %d" % (sT0, sWV, k))
            a("s_mul_i32 s%d, s%d, %d" % (sT0, sT0, WSZ))
            a("s_add_u32 s%d, s%d, %d" % (sT0, sT0, WOFF))
            a("v_add_u32 v%d, s%d, v10" % (vEX[k], sT0))
        a("v_mov_b32 v%d, %s" % (vC, f32(c1)))
        a("v_mov_b32 v%d, %s" % (vC + 1, f32(c0)))
    def setup10():
        a("s_mul_i32 s%d, s%d, %d" % (sGS, sFT, 8 * 10240))
        a("s_lshl_b32 s%d, s%d, 10" % (sT2, sDT))
        a("s_add_u32 s%d, s%d, s%d" % (sGS, sGS, sT2))
        a("s_add_u32 s%d, s%d, s%d" % (sGS, sGS, sD[0]))
        a("s_add_u32 s%d, s%d, 0x%x" % (sGS, sGS, GB))
        a("s_add_u32 s96, s%d, %d" % (sGS, 4 * 10240))
        a("s_lshl_b32 s%d, s%d, 2" % (sT2, sDT))
        a("s_add_u32 s%d, s%d, s%d" % (sT2, sT2, sWV))
        a("s_mul_i32 s%d, s%d, 52" % (sT2, sT2))
        a("s_lshr_b32 s%d, s%d, 8" % (sT2, sT2))
        group_ids(vPO, 13, sT2, 10)
        a("s_mul_i32 s%d, s%d, 43" % (sGC, sFT))
        a("s_lshr_b32 s%d, s%d, 8" % (sGC, sGC))
        a("s_lshl_b32 s%d, s%d, 7" % (sGC, sGC))
        a("s_add_u32 s%d, s%d, 0x%x" % (sGC, sGC, MB + 512))
    def refill(i, wr):
        a.wait_vm("w%d" % i)
        tr_step(i % 7, wr, "t%d" % i)
    def late15():
        a.wait_lg("t8")
        dma1(15)
        w2_setup()
    for i in range(16):
        wr = WREG1 + 16 * (i & 7)
        if i >= 8:
            need("t%d" % i)
            a.wait_lg("t%d" % i)
        for dd in range(4):
            n = 4 * i + dd
            di = DI(n)
            nxt = a.capture(hload, n + NR1) if (n + NR1 < 64 and not cfg.noload) else []
            a.wait_vm("h%d" % n)
            for fi in range(4):
                acc = v(ACC1 + 16 * di + 4 * fi, 4)
                if not cfg.nomfma or i == 0:
                    a("v_mfma_f32_16x16x32_bf16 %s, %s, %s, %s" % (acc, v(wr + 4 * fi, 4), v(STG1 + 4 * (n % NR1), 4), acc if (i or di == 0) else "0"))
                if fi < 3:
                    k = cfg.fillk
                    while len(nxt) > 1 and k:
                        a.play(nxt.pop(0)); k -= 1
                    fill(k)
            for it in nxt:
                a.play(it)
            if not nxt:
                fill(cfg.fillk)
            if n == cfg.e0at:
                fill(1000)
                for k in range(cfg.e0):
                    fifo += a.capture(dma2, k)
            if n >= 61:
                xwrite(n - 60)
        if i in (0, 7) and cfg.fine:
            stamp(24 + (i + 1) // 4)
        if i < 8:
            fifo += a.capture(refill, i + 8, wr)
        if i == 1:
            fifo += a.capture(late15)
        if i == 4:
            fifo += a.capture(setup10)
        if i == 8:
            fifo += a.capture(setup8)
        if i == 9:
            fifo += a.capture(xt_setup)
    fill(1000)
    stamp(5)
    a.drain_lg()
    lds_arrive(0, 12, 13)
    lds_wait(0, 4, 12, 13)
    stamp(12)
    for q in range(4):
        for i in range(1, 4):
            a("ds_read_b128 %s, v%d offset:%d" % (v(ACC1 + 16 * i + 4 * q, 4), vEX[i], (i - 1) * 4096 + q * 1024), tag="r%d" % q)
    for k in range(cfg.e0, cfg.e0 + cfg.e1):
        dma2(k)
    def op2(name, d, x, y, n):
        if cfg.nopk:
            for k in range(n):
                a("v_%s_f32 v%d, v%d, v%d" % (name, d + k, x + k, y + k))
        else:
            for k in range(0, n, 2):
                a("v_pk_%s_f32 %s, %s, %s" % (name, v(d + k, 2), v(x + k, 2), v(y + k, 2)))
    U_, T_, P_ = ACC1, ACC1 + 16, STG1
    for hf in range(2):
        o = 8 * hf
        a.wait_lg("r%d" % (2 * hf + 1))
        if hf == 1:
            lds_arrive(4, 12, 13)
        op2("add", U_ + o, U_ + o, ACC1 + 16 + o, 8)
        op2("add", ACC1 + 32 + o, ACC1 + 32 + o, ACC1 + 48 + o, 8)
        op2("add", U_ + o, U_ + o, ACC1 + 32 + o, 8)
        op2("mul", T_ + o, U_ + o, U_ + o, 8)
        if cfg.nopk:
            for k in range(8):
                a("v_fma_f32 v%d, v%d, v%d, v%d" % (T_ + o + k, T_ + o + k, vC, vC + 1))
        else:
            for k in range(0, 8, 2):
                a("v_pk_fma_f32 %s, %s, %s, %s op_sel:[0,0,1] op_sel_hi:[1,0,1]" % (v(T_ + o + k, 2), v(T_ + o + k, 2), v(vC, 2), v(vC, 2)))
        op2("mul", T_ + o, T_ + o, U_ + o, 8)
        for k in range(8):
            a("v_exp_f32 v%d, v%d" % (T_ + o + k, T_ + o + k))
        if cfg.nopk:
            for k in range(8):
                a("v_add_f32 v%d, 1.0, v%d" % (T_ + o + k, T_ + o + k))
        else:
            for k in range(0, 8, 2):
                a("v_pk_add_f32 %s, %s, 1.0 op_sel_hi:[1,0]" % (v(T_ + o + k, 2), v(T_ + o + k, 2)))
        for k in range(8):
            a("v_rcp_f32 v%d, v%d" % (T_ + o + k, T_ + o + k))
        op2("mul", T_ + o, T_ + o, U_ + o, 8)
        for k in range(4):
            a("v_cvt_pk_bf16_f32 v%d, v%d, v%d" % (P_ + 4 * hf + k, T_ + o + 2 * k, T_ + o + 2 * k + 1))
        a("buffer_store_dwordx4 %s, v%d, %s, s%d offen sc1" % (v(P_ + 4 * hf, 4), vFO, s(rWS, 4), 96 if hf else sGS), tag="gs")
    lds_arrive(28, 12, 13)
    stamp(6)
    ne = cfg.e0 + cfg.e1
    for k in range(ne, 4):
        dma2(k)
    lds_wait(4, 4, 12, 13)
    dma2(4); dma2(5)
    if ne:
        a.wait_vm("u%d" % (ne - 1))
        for k in range(ne):
            tr2(k)
    a.wait_vm("gs")
    group_add(vPO, sGC, 13)
    stamp(7)
    xt_loads()
    dma2(6)
    for k in range(ne, 4):
        a.wait_vm("u%d" % k); tr2(k)
    a.wait_lg("q0"); dma2(7)
    a.wait_vm("u4"); tr2(4)
    a.wait_lg("q1"); dma2(8)
    a.wait_vm("u5"); tr2(5)
    a.wait_lg("q2"); dma2(9)
    a.wait_vm("xt")
    acc2_init()
    a.drain_lg()
    mbox(512)
    spoll_pre(sT1)
    dma2(10); dma2(11)
    vm_join = list(a.vm)
    a("s_branch L_g2_pre")
    a.label("L_g2_pre_nog1")
    a.vm = []; a.lg = []
    if cfg.nagg == 8:
        a("s_cmp_lg_u32 s%d, 31" % sJ)
        a("s_cbranch_scc1 L_noagg_h")
    a("v_lshlrev_b32 v%d, %d, v0" % (vPO, cfg.fsh))
    a("s_lshl_b32 s%d, s%d, %d" % (sT1, sWV, 6 + cfg.fsh))
    a("s_add_u32 s%d, s%d, 0x%x" % (sT1, sT1, HF))
    a("v_lshlrev_b32 v12, 13, v0")
    a("v_mov_b32 v13, s%d" % sTAG)
    a("s_lshl_b32 s%d, s%d, 3" % (sT2, sX))
    a("s_add_u32 s%d, s%d, s%d" % (sT2, sT2, sWV))
    a("s_lshl_b32 s%d, s%d, 7" % (sT2, sT2))
    a("s_add_u32 s%d, s%d, 0x%x" % (sT2, sT2, MB))
    if cfg.nagg == 16:
        a("s_and_b32 s%d, s%d, 1" % (sT3, sJ))
        a("s_lshl_b32 s%d, s%d, 17" % (sT3, sT3))
        a("s_add_u32 s%d, s%d, s%d" % (sT2, sT2, sT3))
    poll([vPO], [sT1], vPD, sleep=cfg.asleep)
    a("s_mov_b64 exec, 0x%x" % (0xffffffff if cfg.nagg == 8 else 0xffff))
    a("buffer_store_dword v13, v12, %s, s%d offen sc1" % (s(rWS, 4), sT2))
    a("s_mov_b64 exec, -1")
    stamp(13)
    a.label("L_noagg_h")
    a.vm = []
    if cfg.touch2 == 6:
        a("v_lshrrev_b32 v8, 2, v0")
        a("v_lshlrev_b32 v8, 12, v8")
        a("v_and_b32 v9, 3, v0")
        a("v_lshl_add_u32 v8, v9, 7, v8")
        a("s_mul_i32 s%d, s%d, 24" % (sT1, sWV))
        a("s_add_u32 s%d, s%d, s%d" % (sT1, sT1, sJ))
        a("s_sub_u32 s%d, s%d, 30" % (sT1, sT1))
        a("s_lshl_b32 s%d, s%d, 16" % (sT1, sT1))
        a("s_lshl_b32 s%d, s%d, 9" % (sT2, sX))
        a("s_add_u32 s%d, s%d, s%d" % (sT1, sT1, sT2))
        a("s_mov_b32 s%d, s%d" % (sT3, sT1))
        for k in range(12):
            a("buffer_load_dword v9, v8, %s, s%d offen %s" % (s(rW2, 4), sT3, cfg.t2pol), tag="tw%d" % k)
            a("s_add_u32 s%d, s%d, %d" % (sT3, sT3, 32 * 4096))
            if k == 3:
                hwait(2)
                lds_arrive(12, 12, 13)
            if k >= cfg.tdep:
                a.wait_vm("tw%d" % (k - cfg.tdep))
    else:
        hwait(4)
        lds_arrive(12, 12, 13)
        if cfg.touch2 == 7:
            lds_wait(12, 4, 12, 13, sleep=2)
            touch_w2s()
            touch_w2i()
    lds_wait(12, 4, 12, 13, sleep=2)
    a("s_setprio 2")
    xt_setup()
    xt_loads()
    w2_setup()
    tr_flip()
    for k in range(7):
        dma2(k)
        if k:
            a.wait_vm("u%d" % (k - 1))
    for k in range(6):
        tr2(k)
    acc2_init()
    a.drain_lg()
    for k in range(7, 12):
        dma2(k)
        a.wait_vm("u%d" % (k - 1))
    a.drain_vm()
    mbox(512)
    spoll_pre(sT1)
    a.label("L_g2_pre")
    a.vm = list(vm_join); a.lg = []
    stamp(8)
    a("s_mul_i32 s%d, s%d, %d" % (sOAB, sWV, 48 * 10240))
    a("s_mul_i32 s%d, s%d, 1280" % (sT0, sDT2))
    a("s_add_u32 s%d, s%d, s%d" % (sOAB, sOAB, sT0))
    a("s_add_u32 s%d, s%d, 0x%x" % (sOAB, sOAB, GB))
    spoll(sT1, cfg.psleep, target=30, pre=True)
    stamp(9)

    def gload(n):
        mi = n % 5
        if mi == 0:
            setoff(sOA, sOAB, sORD2, n // 5, 4 * 10240)
        a("buffer_load_dwordx4 %s, v%d, %s, s%d offen offset:%d %s" % (v(STG2 + 4 * (n % NR2), 4), vFO, s(rWS, 4), sOA, 256 * mi, cfg.apol), tag="g%d" % n)

    for n in range(NR2):
        gload(n)
    vE2 = [8, 10, 11, 12, 13]
    def setup6():
        a("v_lshlrev_b32 v7, 4, v0")
        a("v_add_u32 v%d, s%d, v7" % (vE2[0], sWB))
        for k in range(1, 4):
            a("s_xor_b32 s%d, s%d, %d" % (sT0, sWV, k))
            a("s_mul_i32 s%d, s%d, %d" % (sT0, sT0, WSZ))
            a("s_add_u32 s%d, s%d, %d" % (sT0, sT0, WOFF))
            a("v_add_u32 v%d, s%d, v7" % (vE2[k], sT0))
        a("v_lshrrev_b32 v7, 2, v0")
        a("v_lshlrev_b32 v7, 7, v7")
        a("v_and_b32 v14, 3, v0")
        a("v_lshl_add_u32 v7, v14, 3, v7")
        a("s_lshl_b32 s%d, s%d, 5" % (sT0, sWV))
        a("s_add_u32 s%d, s%d, %d" % (sT0, sT0, RY))
        a("v_add_u32 v%d, s%d, v7" % (vE2[4], sT0))
    setup6()
    for i in range(12):
        wr = WREG2 + 16 * (i % 6)
        if i >= 6:
            need("q%d" % i)
            a.wait_lg("q%d" % i)
        for mi in range(5):
            n = 5 * i + mi
            nxt = a.capture(gload, n + NR2) if (n + NR2 < 60 and not cfg.noload) else []
            a.wait_vm("g%d" % n)
            for x, ni in enumerate((1, 2, 3, 0) if i == 11 else range(4)):
                acc = v(ACC2 + 20 * ni + 4 * mi, 4)
                if not cfg.nomfma or i == 0:
                    a("v_mfma_f32_16x16x32_bf16 %s, %s, %s, %s" % (acc, v(STG2 + 4 * (n % NR2), 4), v(wr + 4 * ni, 4), acc if (i or ni == 0) else "0"))
                if x < 3:
                    k = cfg.fillk
                    while len(nxt) > 1 and k:
                        a.play(nxt.pop(0)); k -= 1
                    fill(k)
                if i == 11 and mi >= 2 and x < 3:
                    a("ds_write_b128 v%d, %s offset:%d" % (vE2[0], v(ACC2 + 20 * (x + 1) + 4 * (mi - 2), 4), x * 5120 + (mi - 2) * 1024))
            for it in nxt:
                a.play(it)
        if i in (0, 5) and cfg.fine:
            stamp(28 + (i + 1) // 3)
        if i + 6 < 12:
            fifo += a.capture(tr_step, slot2(i + 6), wr, "q%d" % (i + 6))
    fill(1000)
    stamp(10)
    for q in (3, 4):
        for k in range(1, 4):
            a("ds_write_b128 v%d, %s offset:%d" % (vE2[0], v(ACC2 + 20 * k + 4 * q, 4), (k - 1) * 5120 + q * 1024))
    a.drain_lg()
    a("s_barrier")
    YR, TY, TP = WREG2 + 40, WREG2, WREG2 + 20
    for mi in range(5):
        a("ds_read_b64_tr_b16 %s, v%d offset:%d" % (v(YR + 2 * mi, 2), vE2[4], mi * 2048), tag="ya")
    for q in range(5):
        for k in range(1, 4):
            a("ds_read_b128 %s, v%d offset:%d" % (v(ACC2 + 20 * k + 4 * q, 4), vE2[k], (k - 1) * 5120 + q * 1024), tag="r%d" % q)
    a.wait_lg("ya")
    for k in range(10):
        a("v_lshlrev_b32 v%d, 16, v%d" % (TY + 2 * k, YR + k))
        a("v_and_b32 v%d, s%d, v%d" % (TY + 2 * k + 1, sMASK, YR + k))
    def pk2(d, x, y, n):
        for k in range(0, n, 2):
            a("v_pk_add_f32 %s, %s, %s" % (v(d + k, 2), v(x + k, 2), v(y + k, 2)))
    pk2(ACC2, ACC2, TY, 20)
    pol = (" " + cfg.out_pol) if cfg.out_pol else ""
    for (o, n, last) in ((0, 8, 1), (8, 8, 3), (16, 4, 4)):
        a.wait_lg("r%d" % last)
        pk2(ACC2 + o, ACC2 + o, ACC2 + 20 + o, n)
        pk2(ACC2 + 40 + o, ACC2 + 40 + o, ACC2 + 60 + o, n)
        pk2(ACC2 + o, ACC2 + o, ACC2 + 40 + o, n)
        for k in range(n // 2):
            a("v_cvt_pk_bf16_f32 v%d, v%d, v%d" % (TP + o // 2 + k, ACC2 + o + 2 * k, ACC2 + o + 2 * k + 1))
        if n == 8:
            a("buffer_store_dwordx4 %s, v%d, %s, s%d offen offset:%d%s" % (v(TP + o // 2, 4), vXO, s(rOUT, 4), sXO, 8 * o, pol))
        else:
            a("buffer_store_dwordx2 %s, v%d, %s, s%d offen offset:128%s" % (v(TP + 8, 2), vXO4, s(rOUT, 4), sXO, pol))
    stamp(11)
    if cfg.hold:
        a("s_waitcnt vmcnt(0)")
        a.label("L_hold")
        a("s_memrealtime s[100:101]")
        a("s_waitcnt lgkmcnt(0)")
        a("s_sub_u32 s100, s100, s98")
        a("s_cmp_lt_u32 s100, %d" % (cfg.hold * 100))
        a("s_cbranch_scc1 L_hold")
    finish()

    a.label("L_aux_main")
    a.vm = list(aux_vm); a.lg = []
    a("s_and_b32 s%d, s%d, 1" % (sT0, sJ))
    a("s_add_u32 s%d, s%d, s%d" % (sT0, sT0, sWV))
    a("s_cmp_ge_u32 s%d, 7" % sT0)
    a("s_cbranch_scc1 L_aux_done")
    F0 = 64
    a.wait_vm("p")
    for k in range(6):
        a("v_lshlrev_b32 v%d, 16, v%d" % (F0 + k, PRM0 + k))
        a("v_and_b32 v%d, s%d, v%d" % (F0 + 6 + k, sMASK, PRM0 + k))
        a("v_lshlrev_b32 v%d, 16, v%d" % (F0 + 12 + k, PRM1 + k))
    vDT, vDS = 82, 83
    a("v_lshlrev_b32 v%d, 16, v%d" % (vDT, vLDT))
    a("v_lshlrev_b32 v%d, 16, v%d" % (vDS, vDSK))
    a("v_mul_f32 v%d, %s, v%d" % (vDT, f32(math.log2(math.e)), vDT))
    a("v_exp_f32 v%d, v%d" % (vDT, vDT))
    bfround(vDT)
    if cfg.kprio:
        a("s_setprio 1")
    stamp(3)

    E = {k: 84 + 2 * (k - 1) for k in range(1, 8)}
    P = {k: 98 + 2 * (k - 1) for k in range(1, 9)}
    Q, Q2 = 114, 116
    Y = [118, 120, 122, 124]
    TT = [126, 128, 130, 132]
    CV = list(range(134, 142))
    YFR, XFR, DK = 144, 160, 208
    vFA = 220
    cvi = [0]
    def cmul1(d, x, y):
        a("v_pk_mul_f32 %s, %s, %s op_sel:[0,0] op_sel_hi:[0,1]" % (v(d, 2), v(x, 2), v(y, 2)))
    def cmul2(d, x, y):
        a("v_pk_fma_f32 %s, %s, %s, %s op_sel:[1,1,0] op_sel_hi:[1,0,1] neg_lo:[1,0,0]" % (v(d, 2), v(x, 2), v(y, 2), v(d, 2)))
    def put(r, row, neg=False):
        c = CV[cvi[0] % 8]; cvi[0] += 1
        a("v_cvt_pk_bf16_f32 v%d, v%d, %sv%d" % (c, r, "-" if neg else "", r + 1))
        return ("w", c, row)
    def wr(c, row):
        if not cfg.nokw:
            a("ds_write_addtid_b32 v%d offset:%d" % (c, row * 288))
    def group(ops):
        for d, x, y, row, neg in ops:
            cmul1(d, x, y)
        for d, x, y, row, neg in ops:
            cmul2(d, x, y)
        pend = []
        for d, x, y, row, neg in ops:
            if row is not None:
                pend.append(put(d, row, neg))
        for _, c, row in pend:
            wr(c, row)

    a("s_mov_b32 m0, s%d" % sRB)
    a("v_and_b32 v1, 15, v0")
    a("v_mul_u32_u24 v1, 288, v1")
    a("v_and_b32 v%d, 48, v0" % vFA)
    a("v_add3_u32 v%d, v%d, v1, s%d" % (vFA, vFA, sRB))
    for k in range(12):
        a("v_mov_b32 v%d, 0" % (DK + k))
    a("v_mov_b32 v143, 0x3f80")
    a("s_mov_b32 s%d, 3" % sT3)
    a.label("L_kgen")
    a.lg = []
    a("v_pk_mul_f32 v[126:127], v[64:65], v[82:83] op_sel_hi:[1,0]")
    a("v_pk_mul_f32 v[128:129], v[66:67], v[82:83] op_sel_hi:[1,0]")
    a("v_mul_f32 v126, %s, v126" % f32(math.log2(math.e)))
    a("v_mul_f32 v127, 0.15915494, v127")
    cmul1(Y[0], 68, 128)
    anchors = [(E[1], 1.0), (Q, 8.0), (P[1], 128.0)]
    for idx, (d, k) in enumerate(anchors):
        m_, f_ = 134 + 2 * idx, 135 + 2 * idx
        if k == 1.0:
            a("v_exp_f32 v%d, v126" % m_)
            a("v_fract_f32 v%d, v127" % f_)
        else:
            a("v_mul_f32 v%d, %s, v126" % (m_, f32(k)))
            a("v_mul_f32 v%d, %s, v127" % (f_, f32(k)))
            a("v_exp_f32 v%d, v%d" % (m_, m_))
            a("v_fract_f32 v%d, v%d" % (f_, f_))
    cmul2(Y[0], 68, 128)
    for idx, (d, k) in enumerate(anchors):
        a("v_cos_f32 v%d, v%d" % (d, 135 + 2 * idx))
        a("v_sin_f32 v%d, v%d" % (d + 1, 135 + 2 * idx))
    for idx, (d, k) in enumerate(anchors):
        a("v_pk_mul_f32 %s, %s, %s op_sel_hi:[1,0]" % (v(d, 2), v(d, 2), v(134 + 2 * idx, 2)))
    for k in range(12):
        a("v_mov_b32 v%d, v%d" % (F0 + k, F0 + 6 + k))
    YR0 = 25
    wr(143, 0)
    p_ = [put(Y[0], YR0, True), put(E[1], 1), put(P[1], 8)]
    for _, c, row in p_:
        wr(c, row)
    group([(Y[1], Y[0], Q, YR0 + 1, True), (Q2, Q, Q, None, False), (E[2], E[1], E[1], 2, False), (P[2], P[1], P[1], 16, False)])
    group([(Y[2], Y[0], Q2, YR0 + 2, True), (Y[3], Y[1], Q2, YR0 + 3, True), (E[3], E[2], E[1], 3, False), (E[4], E[2], E[2], 4, False)])
    group([(Y[0], Y[2], Q2, YR0 + 4, True), (Y[1], Y[3], Q2, YR0 + 5, True), (E[5], E[4], E[1], 5, False), (E[6], E[4], E[2], 6, False)])
    group([(Y[2], Y[0], Q2, YR0 + 6, True), (Y[3], Y[1], Q2, YR0 + 7, True), (E[7], E[4], E[3], 7, False), (P[3], P[2], P[1], 20, False)])
    group([(Y[0], Y[2], Q2, YR0 + 8, True), (Y[1], Y[3], Q2, YR0 + 9, True), (TT[0], P[1], E[1], 9, False), (TT[1], P[1], E[2], 10, False)])
    group([(Y[2], Y[0], Q2, YR0 + 10, True), (Y[3], Y[1], Q2, YR0 + 11, True), (TT[0], P[1], E[3], 11, False), (TT[1], P[1], E[4], 12, False)])
    group([(Y[0], Y[2], Q2, YR0 + 12, True), (Y[1], Y[3], Q2, YR0 + 13, True), (TT[0], P[1], E[5], 13, False), (TT[1], P[1], E[6], 14, False)])
    group([(Y[2], Y[0], Q2, YR0 + 14, True), (Y[3], Y[1], Q2, YR0 + 15, True), (TT[0], P[1], E[7], 15, False), (P[4], P[2], P[2], 24, False)])
    for st in range(4):
        a("ds_read_b128 %s, v%d offset:%d" % (v(YFR + 4 * st, 4), vFA, YR0 * 288 + 64 * st), tag="yf")
    for st in range(4):
        a("ds_read_b128 %s, v%d offset:%d" % (v(XFR + 4 * st, 4), vFA, 64 * st), tag="x0")
    group([(TT[0], P[2], E[2], 17, False), (TT[1], P[2], E[4], 18, False), (TT[2], P[2], E[6], 19, False), (P[5], P[4], P[1], 26, False)])
    group([(TT[0], P[3], E[2], 21, False), (TT[1], P[3], E[4], 22, False), (TT[2], P[3], E[6], 23, False), (P[6], P[4], P[2], 28, False)])
    a.wait_lg("x0")
    for st in range(4):
        a("v_mfma_f32_16x16x32_bf16 %s, %s, %s, %s" % (v(DK, 4), v(XFR + 4 * st, 4), v(YFR + 4 * st, 4), v(DK, 4)))
    group([(P[7], P[4], P[3], 30, False), (P[8], P[4], P[4], 32, False), (TT[0], P[4], E[4], 25, False), (TT[1], P[5], E[4], 27, False)])
    group([(TT[0], P[6], E[4], 29, False), (TT[1], P[7], E[4], 31, False), (TT[2], P[8], P[1], 33, False), (TT[3], P[8], P[2], 34, False)])
    for st in range(4):
        a("ds_read_b128 %s, v%d offset:%d" % (v(XFR + 16 + 4 * st, 4), vFA, 16 * 288 + 64 * st), tag="x1")
    group([(TT[0], P[8], P[3], 35, False), (TT[1], P[8], P[4], 36, False), (TT[2], P[8], P[5], 37, False)])
    group([(TT[0], P[8], P[6], 38, False), (TT[1], P[8], P[7], 39, False), (TT[2], P[8], P[8], 40, False)])
    for st in range(4):
        a("ds_read_b128 %s, v%d offset:%d" % (v(XFR + 32 + 4 * st, 4), vFA, 32 * 288 + 64 * st), tag="x2")
    a.wait_lg("x1")
    for st in range(4):
        a("v_mfma_f32_16x16x32_bf16 %s, %s, %s, %s" % (v(DK + 4, 4), v(XFR + 16 + 4 * st, 4), v(YFR + 4 * st, 4), v(DK + 4, 4)))
    a.wait_lg("x2")
    for st in range(4):
        a("v_mfma_f32_16x16x32_bf16 %s, %s, %s, %s" % (v(DK + 8, 4), v(XFR + 32 + 4 * st, 4), v(YFR + 4 * st, 4), v(DK + 8, 4)))
    a("s_sub_u32 s%d, s%d, 1" % (sT3, sT3))
    a("s_cmp_lg_u32 s%d, 0" % sT3)
    a("s_cbranch_scc1 L_kgen")
    a.drain_vm()
    stamp(4)
    a("v_and_b32 v16, 15, v0")
    a("v_lshrrev_b32 v17, 4, v0")
    a("s_add_u32 s%d, s%d, %d" % (sT0, sRB, TB_OFF))
    a("v_lshrrev_b32 v18, 1, v17")
    a("v_lshlrev_b32 v18, 7, v18")
    a("v_and_b32 v19, 1, v17")
    a("v_lshl_add_u32 v18, v19, 2, v18")
    a("v_lshl_add_u32 v18, v16, 3, v18")
    a("v_lshl_add_u32 v18, v18, 2, s%d" % sT0)
    a("v_lshlrev_b32 v19, 2, v16")
    a("v_lshlrev_b32 v20, 1, v16")
    a("v_cmp_gt_u32 vcc, 2, v17")
    a("v_cndmask_b32 v19, v20, v19, vcc")
    a("v_lshl_add_u32 v19, v17, 6, v19")
    a("v_lshl_add_u32 v19, v19, 2, s%d" % sT0)
    a("v_mov_b32 v20, 128")
    a("v_cndmask_b32 v20, v20, 8, vcc")
    a("v_add_u32 v20, v19, v20")
    a("v_lshl_add_u32 v21, v17, 6, v16")
    a("v_lshl_add_u32 v21, v21, 2, s%d" % sT0)
    a("v_lshlrev_b32 v22, 4, v0")
    a("v_add_u32 v22, %d, v22" % ZP_OFF)
    a("v_mov_b32 v23, 4096")
    a("v_cmp_gt_u32 vcc, 15, v0")
    a("v_cndmask_b32 v22, v23, v22, vcc")
    a("v_add_u32 v22, s%d, v22" % sRB)
    for k in range(4):
        a("v_mov_b32 v%d, 0" % (24 + k))
    a("ds_write_b128 v22, v[24:27]")
    a("ds_write_b128 v18, %s" % v(DK, 4))
    a("ds_write_b64 v19, %s offset:1024" % v(DK + 4, 2))
    a("ds_write_b64 v20, %s offset:1024" % v(DK + 6, 2))
    for r in range(4):
        a("ds_write_b32 v21, v%d offset:%d" % (DK + 8 + r, 2048 + 64 * r))
    a("v_lshl_add_u32 v18, v0, 4, s%d" % sT0)
    a("v_lshl_add_u32 v19, v0, 3, s%d" % sT0)
    a("v_subrev_u32 v20, 4, v18")
    a("v_subrev_u32 v21, 4, v19")
    a("v_cmp_eq_u32 vcc, 0, v0")
    a("v_cndmask_b32 v21, v19, v21, vcc")
    a("ds_read_b128 v[28:31], v18", tag="s0")
    a("ds_read_b32 v32, v20", tag="s0")
    a("ds_read_b64 v[34:35], v19 offset:1024", tag="s1")
    a("ds_read_b32 v36, v19 offset:1032", tag="s1")
    a("ds_read_b32 v37, v21 offset:1024", tag="s1")
    a("ds_read_b64 v[38:39], v19 offset:1536", tag="s2")
    a("ds_read_b32 v40, v19 offset:1544", tag="s2")
    a("ds_read_b64 v[42:43], v19 offset:2048", tag="s3")
    a("ds_read_b32 v44, v19 offset:2056", tag="s3")
    a("v_lshlrev_b32 v22, 3, v0")
    a("v_sub_u32 v22, s%d, v22" % sRB)
    a("v_lshlrev_b32 v23, 4, v0")
    a("v_sub_u32 v23, s%d, v23" % sRB)
    a("v_lshlrev_b32 v24, 5, v0")
    a("v_sub_u32 v24, s%d, v24" % sRB)
    a("v_add_u32 v22, %d, v22" % (4096 - 512 - 8))
    a("v_add_u32 v23, %d, v23" % (4096 - 1024 - 16))
    a("v_add_u32 v24, %d, v24" % (4096 - 2048 - 32))
    def pk(d, lo, hi):
        a("v_cvt_pk_bf16_f32 v%d, v%d, v%d" % (d, lo, hi))
    a("v_cndmask_b32 v33, 0, v%d, vcc" % vDS)
    a.wait_lg("s0")
    a("v_add_f32 v28, v28, v33")
    pk(48, 31, 30); pk(49, 29, 28); pk(50, 30, 29); pk(51, 28, 32)
    a("ds_write_b64 v22, v[48:49] offset:512")
    a("ds_write_b64 v22, v[50:51] offset:%d" % (512 + KB_OFF))
    a.wait_lg("s1")
    pk(52, 36, 35); pk(53, 34, 34); pk(54, 35, 34); pk(55, 34, 37)
    a("ds_write_b64 v22, v[52:53]")
    a("ds_write_b64 v22, v[54:55] offset:%d" % KB_OFF)
    a.wait_lg("s2")
    A_, B_, C_ = 38, 39, 40
    pk(56, C_, C_); pk(57, B_, B_); pk(58, B_, A_); pk(59, A_, A_)
    pk(60, C_, B_); pk(61, B_, B_); pk(62, A_, A_); pk(63, A_, A_)
    a("ds_write_b128 v23, v[56:59]")
    a("ds_write_b128 v23, v[60:63] offset:%d" % KB_OFF)
    a.wait_lg("s3")
    A_, B_, C_ = 42, 43, 44
    seqA = [(C_, C_), (C_, C_), (B_, B_), (B_, B_), (B_, B_), (B_, A_), (A_, A_), (A_, A_)]
    seqB = [(C_, C_), (C_, B_), (B_, B_), (B_, B_), (B_, B_), (A_, A_), (A_, A_), (A_, A_)]
    for k, (lo, hi) in enumerate(seqA):
        pk(64 + k, lo, hi)
    for k, (lo, hi) in enumerate(seqB):
        pk(72 + k, lo, hi)
    a("ds_write_b128 v24, v[64:67]")
    a("ds_write_b128 v24, v[68:71] offset:16")
    a("ds_write_b128 v24, v[72:75] offset:%d" % KB_OFF)
    a("ds_write_b128 v24, v[76:79] offset:%d" % (KB_OFF + 16))
    stamp(5)
    a.drain_lg()
    a("s_setprio 0")
    lds_arrive(20, 8, 9)
    vUA, vKA = 10, 11
    a("v_and_b32 v12, 15, v0")
    a("v_lshrrev_b32 v13, 4, v0")
    a("v_lshlrev_b32 v13, 1, v13")
    a("v_sub_u32 v12, v12, v13")
    a("v_lshlrev_b32 v12, 4, v12")
    a("s_add_u32 s%d, s%d, %d" % (sT1, sRB, U_OFF - 128))
    a("v_add_u32 v%d, s%d, v12" % (vUA, sT1))
    a("v_lshrrev_b32 v12, 1, v0")
    a("v_lshlrev_b32 v12, 2, v12")
    a("v_and_b32 v13, 1, v0")
    a("v_mul_u32_u24 v13, %d, v13" % KB_OFF)
    a("v_add_u32 v12, v12, v13")
    a("s_add_u32 s%d, s%d, %d" % (sT1, sRB, KB_OFF + 4092 - 128 - 768))
    a("v_sub_u32 v%d, s%d, v12" % (vKA, sT1))
    for g in range(1, 4):
        a("v_subrev_u32 v%d, %d, v%d" % (vKA + g, 1024 * g, vKA))
    AC, KF, UF, NU = 16, 80, 208, 8
    for idx in range(32):
        c, tau = idx >> 4, idx & 15
        o = 192 - 64 * (tau & 3) + 32 * (1 - c)
        r = KF + 4 * idx
        a("ds_read2_b32 %s, v%d offset0:%d offset1:%d" % (v(r, 2), vKA + (tau >> 2), o, o + 1))
        a("ds_read2_b32 %s, v%d offset0:%d offset1:%d" % (v(r + 2, 2), vKA + (tau >> 2), o + 2, o + 3))
    a("v_and_b32 v4, 15, v0")
    a("v_lshlrev_b32 v4, 4, v4")
    a("v_lshrrev_b32 v5, 5, v0")
    a("v_lshl_add_u32 v4, v5, 11, v4")
    a("v_bfe_u32 v5, v0, 4, 1")
    a("v_lshl_add_u32 v4, v5, 8, v4")
    group_ids(5, 6, sX, 7)
    a("v_mov_b32 v6, %d" % CNT)
    lds_wait(24, 1, 8, 9, sleep=1)
    stamp(7)
    if cfg.cprio:
        a("s_setprio %d" % cfg.cprio)
    seq = []
    for c in range(2):
        for q in range(8):
            seq += [(c, q), (c, 15 - q)]
    def uread(n):
        c, mu = seq[n]
        a("ds_read_b128 %s, v%d offset:%d" % (v(UF + 4 * (n % NU), 4), vUA, 128 * (1 - c) + 256 * mu), tag="U%d" % n)
    for n in range(NU - 2):
        uread(n)
    stubs = []
    for n in range(32):
        c, mu = seq[n]
        if n % 2 == 0:
            if cfg.pause and n:
                a.wait_lg("pz")
                if cfg.pth > 1:
                    a("v_sub_u32 v8, v8, v9")
                    a("v_cmp_le_u32 vcc, %d, v8" % cfg.pth)
                else:
                    a("v_cmp_ne_u32 vcc, v8, v9")
                a("s_cbranch_vccnz L_pz%d" % n)
                a.label("L_np%d" % n)
                stubs.append(n)
            if cfg.pause and n < 30:
                a("ds_read2_b32 v[8:9], v6 offset0:0 offset1:7", tag="pz")
            for k in (n + NU - 2, n + NU - 1):
                if k < 32:
                    uread(k)
        a.wait_lg("U%d" % n)
        for tau in range(16 - mu):
            acc = v(AC + 4 * (tau + mu), 4)
            if not cfg.noconv or n == 0:
                a("v_mfma_f32_16x16x32_bf16 %s, %s, %s, %s" % (acc, v(KF + 4 * (16 * c + tau), 4), v(UF + 4 * (n % NU), 4), acc if n else "0"))
    stamp(8)
    if cfg.eprio != cfg.cprio:
        a("s_setprio %d" % cfg.eprio)
    CY = 100
    for r in range(4):
        a("v_mov_b32 v%d, 0" % (CY + r))
    for m in range(8):
        for r in range(4):
            a("v_permlane32_swap_b32 v%d, v%d" % (AC + 4 * m + r, AC + 32 + 4 * m + r))
    for r in range(4):
        a("v_mov_b32 v%d, v%d" % (CY + 4 + r, AC + 32 + 28 + r))
    for m in range(8):
        for r in range(4):
            L_ = AC + 4 * m + r
            a("v_add_f32_dpp v%d, v%d, v%d row_shr:1 row_mask:0xf bank_mask:0xf bound_ctrl:0" % (L_, AC + 32 + 4 * m + r, L_))
        if m == 0:
            for r in range(4):
                a("v_permlane32_swap_b32 v%d, v%d" % (CY + r, CY + 4 + r))
    for m in range(8):
        for r in range(4):
            L_ = AC + 4 * m + r
            prev = (AC + 32 + 4 * (m - 1) + r) if m else (CY + r)
            a("v_add_f32_dpp v%d, v%d, v%d row_shl:15 row_mask:0xf bank_mask:0xf bound_ctrl:0" % (L_, prev, L_))
    TP2 = 108
    for k in range(16):
        a("v_cvt_pk_bf16_f32 v%d, v%d, v%d" % (TP2 + k, AC + 2 * k, AC + 2 * k + 1))
    for mp in range(4):
        a("v_permlane16_swap_b32 v%d, v%d" % (TP2 + 4 * mp, TP2 + 4 * mp + 2))
        a("v_permlane16_swap_b32 v%d, v%d" % (TP2 + 4 * mp + 1, TP2 + 4 * mp + 3))
    a("s_lshl_b32 s%d, s%d, 12" % (sT0, sPOS))
    a("s_add_u32 s%d, s%d, 0x%x" % (sT0, sT0, YA))
    for mp in range(4):
        a("buffer_store_dwordx4 %s, v4, %s, s%d offen offset:%d sc1" % (v(TP2 + 4 * mp, 4), s(rWS, 4), sT0, 512 * mp))
    a("s_mov_b32 s%d, 0x%x" % (sT1, YC))
    a.drain_vm()
    group_add(5, sT1, 13)
    stamp(9)
    a.label("L_aux_done")
    finish()
    for n in stubs:
        a.label("L_pz%d" % n)
        a("s_mov_b32 s%d, 0x%x" % (sCNT, cfg.spin * 64))
        a.label("L_pl%d" % n)
        a("s_sleep 1")
        a("ds_read2_b32 v[8:9], v6 offset0:0 offset1:7")
        a("s_sub_u32 s%d, s%d, 1" % (sCNT, sCNT))
        a("s_cbranch_scc1 L_np%d" % n)
        a.drain_lg()
        a("v_cmp_ne_u32 vcc, v8, v9")
        a("s_cbranch_vccnz L_pl%d" % n)
        a("s_branch L_np%d" % n)

    a.label("L_w7")
    a.vm = []; a.lg = []
    tile_math()
    a("s_setprio %d" % cfg.uprio)
    if cfg.w7mb:
        a("s_lshl_b32 s%d, s%d, 10" % (sT1, sID))
        a("s_add_u32 s%d, s%d, 0x%x" % (sT1, sT1, MB))
        a("s_add_u32 s14, s%d, s%d" % (pWS, sT1))
        a("s_addc_u32 s15, s%d, 0" % (pWS + 1))
        a("s_mov_b32 s%d, %d" % (sCNT, cfg.spin * 2))
        a.label("L_p4")
        for k in range(4):
            a("s_load_dword s%d, s[14:15], %d glc" % (sD[k], 128 * k))
        a("s_waitcnt lgkmcnt(0)"); a.lg = []
        for k in range(4):
            a("s_xor_b32 s%d, s%d, s%d" % (sD[k], sD[k], sTAG))
        a("s_or_b32 s%d, s%d, s%d" % (sD[0], sD[0], sD[1]))
        a("s_or_b32 s%d, s%d, s%d" % (sD[2], sD[2], sD[3]))
        a("s_or_b32 s%d, s%d, s%d" % (sD[0], sD[0], sD[2]))
        a("s_cbranch_scc0 L_p4ok")
        a("s_sleep 2")
        a("s_sub_u32 s%d, s%d, 1" % (sCNT, sCNT))
        a("s_cmp_lg_u32 s%d, 0" % sCNT)
        a("s_cbranch_scc1 L_p4")
        a.label("L_p4ok")
    else:
        lds_wait(12, 4, 10, 11, sleep=2)
    stamp(5)
    def touch_w2():
        sh = 2 if cfg.map2 == 8 else 3
        a("v_lshrrev_b32 v10, %d, v0" % sh)
        a("v_lshlrev_b32 v10, 12, v10")
        a("v_and_b32 v11, %d, v0" % ((1 << sh) - 1))
        a("v_lshl_add_u32 v10, v11, 7, v10")
        a("s_mul_i32 s%d, s%d, %d" % (sT1, sJ, 48 * 4096))
        if cfg.map2 == 8:
            a("s_lshl_b32 s%d, s%d, 9" % (sT2, sX))
        else:
            a("s_lshr_b32 s%d, s%d, 1" % (sT2, sX))
            a("s_lshl_b32 s%d, s%d, 10" % (sT2, sT2))
        a("s_add_u32 s%d, s%d, s%d" % (sT1, sT1, sT2))
        n = 3 if cfg.map2 == 8 else 6
        for k in range(n):
            a("buffer_load_dword v%d, v10, %s, s%d offen %s" % (100 + k, s(rW2, 4), sT1, cfg.t2pol))
            a("s_add_u32 s%d, s%d, %d" % (sT1, sT1, (64 >> sh) * 4096))
            if cfg.t2gap:
                a.drain_vm()
    if cfg.touch2 == 1 or cfg.refresh:
        sv = cfg.t2pol
        if cfg.refresh:
            cfg.t2pol = ''
        touch_w2()
        cfg.t2pol = sv
    a("s_cmp_lg_u32 s%d, 0" % sID)
    a("s_cbranch_scc1 L_noE")
    a("s_mov_b32 s%d, 0x%x" % (sT0, EW))
    flag_store(sT0, 12, 13)
    a.label("L_noE")
    if cfg.late:
        a("s_cmp_ge_u32 s%d, 30" % sJ)
        a("s_cbranch_scc1 L_w7_nl")
        lds_wait(28 if cfg.late == 1 else 0, 4 if cfg.late == 1 else 1, 10, 11, sleep=4)
        a.label("L_w7_nl")
    a("v_lshrrev_b32 v8, 2, v0")
    a("v_and_b32 v9, 3, v0")
    a("v_mul_u32_u24 v10, 10240, v8")
    a("v_lshl_add_u32 v10, v9, 4, v10")
    a("v_mul_u32_u24 v11, %d, v9" % S)
    a("v_lshl_add_u32 v11, v8, 4, v11")
    a("s_lshl_b32 s%d, s%d, 4" % (sT1, sPOS))
    a("s_add_u32 s%d, s%d, 0x%x" % (sT1, sT1, XB))
    a("s_and_b32 s%d, s%d, 1" % (sT3, sJ))
    a("s_cmp_eq_u32 s%d, 0" % sT3)
    a("s_mov_b32 s%d, 0x33333333" % sT2)
    a("s_cselect_b32 s14, 0x77777777, s%d" % sT2)
    a("s_mov_b32 s15, s14")
    a("s_mov_b64 exec, s[14:15]")
    for k in range(16):
        a("buffer_load_dwordx4 %s, v10, %s, s%d offen sc1" % (v(16 + 4 * k, 4), s(rWS, 4), sT1), tag="u%d" % k)
        if k < 15:
            a("s_add_u32 s%d, s%d, %d" % (sT1, sT1, 16 * 10240))
    a("s_mov_b64 exec, -1")
    lds_arrive_n = None
    a("v_mov_b32 v12, %d" % (CNT + 20))
    a("v_mov_b32 v13, s%d" % sT3)
    a("s_mov_b64 exec, 1")
    a("ds_add_u32 v12, v13")
    a("s_mov_b64 exec, -1")
    lds_wait(20, 3, 12, 13, sleep=2)
    a("s_mov_b64 exec, s[14:15]")
    for k in range(16):
        a.wait_vm("u%d" % k)
        a("ds_write_b128 v11, %s offset:%d" % (v(16 + 4 * k, 4), U_OFF + 256 * k))
    a("s_mov_b64 exec, -1")
    a.drain_lg()
    lds_arrive(24, 12, 13)
    stamp(9)
    a("s_lshl_b32 s%d, s%d, 7" % (sT1, sID))
    a("s_add_u32 s%d, s%d, 0x%x" % (sT1, sT1, YC))
    spoll(sT1, cfg.ysleep, target=80)
    stamp(6)
    a("v_lshrrev_b32 v8, 3, v0")
    a("v_lshlrev_b32 v8, 12, v8")
    a("v_and_b32 v9, 7, v0")
    a("v_lshl_add_u32 v8, v9, 4, v8")
    a("s_mul_i32 s%d, s%d, %d" % (sT0, sDT2, 80 * 4096))
    a("s_lshl_b32 s%d, s%d, 7" % (sT1, sST))
    a("s_add_u32 s%d, s%d, s%d" % (sT0, sT0, sT1))
    a("s_add_u32 s%d, s%d, 0x%x" % (sT0, sT0, YA))
    for k in range(10):
        a("buffer_load_dwordx4 %s, v8, %s, s%d offen sc1" % (v(16 + 4 * k, 4), s(rWS, 4), sT0), tag="y%d" % k)
        if k < 9:
            a("s_add_u32 s%d, s%d, %d" % (sT0, sT0, 8 * 4096))
    for k in range(10):
        a.wait_vm("y%d" % k)
        a("ds_write_b128 v2, %s offset:%d" % (v(16 + 4 * k, 4), RY + 1024 * k))
    stamp(7)
    finish()
    a.label("L_exit")
    a("s_endpgm")
    a.label("L_code_end")
    return a

HEADER = open("cdna_kernels/%s.s.ref" % NAME).read().split("; Override launch")[0]

def full(cfg):
    a = gen(cfg)
    out = HEADER
    out += "; @launch grid=(256,1,1) block=(512,1,1) lds=%d\n" % LDS_BYTES
    out += '.amdgcn_target "amdgcn-amd-amdhsa--gfx950"\n.text\n.globl %s_kernel\n.p2align 8\n.type %s_kernel,@function\n' % (NAME, NAME)
    out += a.text()
    out += """.section .rodata,"a"
.p2align 6
.amdhsa_kernel %s_kernel
  .amdhsa_next_free_vgpr 256
  .amdhsa_next_free_sgpr 102
  .amdhsa_accum_offset 256
  .amdhsa_group_segment_fixed_size 0
  .amdhsa_kernarg_size 136
  .amdhsa_user_sgpr_count 2
  .amdhsa_user_sgpr_kernarg_segment_ptr 1
  .amdhsa_system_sgpr_workgroup_id_x 1
  .amdhsa_float_denorm_mode_32 3
.end_amdhsa_kernel
""" % NAME
    return out, a

if __name__ == "__main__":
    cfg = Cfg()
    outp = "cdna_kernels/%s.s" % NAME
    for arg in sys.argv[1:]:
        k, val = arg.split("=")
        if k == "out":
            outp = val
        else:
            cur = getattr(cfg, k)
            setattr(cfg, k, val if isinstance(cur, str) else (bool(int(val)) if isinstance(cur, bool) else int(val)))
    txt, a = full(cfg)
    open(outp, "w").write(txt)
    print("wrote", outp, "instr", a.ninst, "pad states", a.npad)
```

```python
import re

TRANS = ("v_exp_f32", "v_log_f32", "v_rcp_f32", "v_rsq_f32", "v_sqrt_f32", "v_sin_f32", "v_cos_f32")

def _regs(tok):
    t = tok.strip()
    t = t.lstrip("-")
    if t.startswith("abs(") or t.startswith("neg("):
        t = t[4:-1]
    if t.startswith("|"):
        t = t.strip("|")
    m = re.fullmatch(r"([vsa])(\d+)", t)
    if m:
        return {(m.group(1), int(m.group(2)))}
    m = re.fullmatch(r"([vsa])\[(\d+):(\d+)\]", t)
    if m:
        return {(m.group(1), i) for i in range(int(m.group(2)), int(m.group(3)) + 1)}
    if t == "vcc":
        return {("s", 106), ("s", 107)}
    if t == "vcc_lo":
        return {("s", 106)}
    if t == "vcc_hi":
        return {("s", 107)}
    if t == "exec":
        return {("s", 126), ("s", 127)}
    if t == "m0":
        return {("s", 124)}
    return set()

class Ins:
    __slots__ = ("text", "op", "cls", "wr", "rd", "srcc", "ab", "dpp", "ws", "wide_store_data", "lds_m0", "passes")

def parse(text):
    i = Ins()
    i.text = text
    body = text.split(";")[0].strip()
    parts = body.split(None, 1)
    op = parts[0]
    i.op = op
    rest = parts[1] if len(parts) > 1 else ""
    ops, depth, cur = [], 0, ""
    for ch in rest:
        if ch in "[(":
            depth += 1
        if ch in "])":
            depth -= 1
        if ch == "," and depth == 0:
            ops.append(cur.strip()); cur = ""
        else:
            cur += ch
    if cur.strip():
        ops.append(cur.strip())
    mods = ""
    if ops:
        sp = ops[-1].split(None, 1)
        ops[-1] = sp[0]
        mods = sp[1] if len(sp) > 1 else ""
    R = [_regs(o) for o in ops]
    i.wr, i.rd, i.srcc, i.ab = set(), set(), set(), set()
    i.dpp = ("_dpp" in op) or bool(re.search(r"row_sh|row_ror|row_bcast|quad_perm|row_mirror|row_half_mirror|wave_", mods))
    i.ws = 1
    i.wide_store_data = set()
    i.lds_m0 = False
    i.passes = 0
    def un(l):
        s = set()
        for x in l:
            s |= x
        return s
    if op.startswith("v_mfma"):
        i.cls = "mfma"
        i.wr = R[0]; i.ab = R[1] | R[2]; i.srcc = R[3]; i.rd = i.ab | i.srcc
        i.passes = 4 if "16x16x32" in op else 8
    elif op.startswith("v_"):
        i.cls = "valu"
        if op.startswith("v_permlane") and "swap" in op:
            i.wr = R[0] | R[1]; i.rd = R[0] | R[1]
        elif op.startswith("v_cmp"):
            i.wr = R[0]; i.rd = un(R[1:])
        elif re.match(r"v_(add|sub|subrev)_co_u32", op):
            i.wr = R[0] | R[1]; i.rd = un(R[2:])
        elif re.match(r"v_(addc|subb)_co_u32", op):
            i.wr = R[0] | R[1]; i.rd = un(R[2:])
        elif op.startswith("v_fmac") or op.startswith("v_dot2c") or op.startswith("v_writelane"):
            i.wr = R[0]; i.rd = un(R)
        elif op == "v_nop":
            pass
        else:
            i.wr = R[0]; i.rd = un(R[1:])
            if i.dpp and "bound_ctrl" not in mods:
                i.rd |= R[0]
            if i.dpp and not re.search(r"row_mask:0xf", mods):
                i.rd |= R[0]
    elif op.startswith("buffer_") or op.startswith("global_"):
        i.cls = "vmem"
        lds = bool(re.search(r"\blds\b", mods)) or "_lds_" in op
        if lds:
            i.rd = un(R); i.lds_m0 = True; i.rd |= {("s", 124)}
        elif "_load" in op:
            i.wr = R[0]; i.rd = un(R[1:])
            if "d16" in op:
                i.rd |= R[0]
        else:
            i.rd = un(R)
            if "x4" in op or "x3" in op:
                i.wide_store_data = R[0] if op.startswith("buffer_") else R[1]
    elif op.startswith("ds_"):
        i.cls = "ds"
        if "addtid" in op:
            i.lds_m0 = True
        if op.startswith("ds_read") or "_rtn" in op or "permute" in op or "swizzle" in op:
            i.wr = R[0]; i.rd = un(R[1:])
            if "d16" in op:
                i.rd |= R[0]
        else:
            i.rd = un(R)
        if i.lds_m0:
            i.rd |= {("s", 124)}
    elif op.startswith("s_"):
        i.cls = "salu"
        if op == "s_nop":
            i.ws = int(ops[0], 0) + 1
        elif op.startswith("s_cmp") or op.startswith("s_cbranch") or op in ("s_branch", "s_waitcnt", "s_barrier", "s_endpgm", "s_sleep", "s_setprio", "s_bitcmp1_b32", "s_bitcmp0_b32"):
            i.rd = un(R)
        elif op.startswith("s_atomic"):
            i.cls = "smem"; i.rd = un(R)
        elif op.startswith("s_load") or op.startswith("s_mem"):
            i.cls = "smem"; i.wr = R[0]; i.rd = un(R[1:])
        else:
            i.wr = R[0] if R else set(); i.rd = un(R[1:])
            if "saveexec" in op:
                i.wr |= {("s", 126), ("s", 127)}
    else:
        raise ValueError("cannot parse: " + text)
    return i

def need(p, c):
    n = 0
    pv = {r for r in p.wr if r[0] in "va"}
    ps = {r for r in p.wr if r[0] == "s"}
    if p.cls == "valu":
        if c.cls == "mfma" and pv & c.rd:
            n = max(n, 2)
        if c.cls == "valu":
            if c.dpp and pv & c.rd:
                n = max(n, 2)
            if c.op.startswith("v_permlane") and pv & c.rd:
                n = max(n, 2)
            if (c.op.startswith("v_readlane") or c.op.startswith("v_readfirstlane")) and pv & c.rd:
                n = max(n, 1)
            if ps & c.rd:
                n = max(n, 4 if ("readlane" in c.op or "writelane" in c.op) else 2)
            if re.sub(r"_e(32|64)$", "", p.op) in TRANS and pv & (c.rd | c.wr):
                n = max(n, 1)
        if c.cls in ("vmem", "ds") and re.sub(r"_e(32|64)$", "", p.op) in TRANS and pv & c.rd:
            n = max(n, 1)
        if p.op.startswith("v_dot") and c.cls in ("valu", "mfma", "vmem", "ds") and pv & (c.rd | c.wr):
            n = max(n, 3)
        if c.cls == "vmem" and ps & c.rd:
            n = max(n, 5)
        if c.cls in ("salu", "smem") and ps & c.rd:
            n = max(n, 1)
    if p.cls == "mfma":
        big = {4: 8, 8: 12}[p.passes]
        mid = {4: 6, 8: 10}[p.passes]
        war = {4: 3, 8: 7}[p.passes]
        if c.cls == "mfma":
            if p.wr & c.ab:
                n = max(n, big)
            if p.wr & c.srcc and not (p.wr == c.srcc and p.passes == c.passes):
                n = max(n, mid)
            if p.wr & c.wr and not (p.wr == c.srcc):
                n = max(n, mid)
        elif c.cls in ("valu", "vmem", "ds"):
            if p.wr & (c.rd | c.wr):
                n = max(n, big)
            if c.cls == "valu" and p.srcc & c.wr:
                n = max(n, war)
    if p.cls == "salu" and ("s", 124) in p.wr and c.lds_m0:
        n = max(n, 1)
    if p.wide_store_data and (p.wide_store_data & c.wr):
        n = max(n, 2)
    return n

class Asm:
    def __init__(self):
        self.lines = []
        self.window = []
        self.vm = []
        self.lg = []
        self.npad = 0
        self.ninst = 0

    def raw(self, text):
        self.lines.append(text)

    def comment(self, text):
        self.lines.append("    ; " + text)

    def label(self, name):
        self.lines.append(name + ":")

    cap = None
    smem = False
    def capture(self, fn, *args):
        assert self.cap is None
        self.cap = []
        fn(*args)
        r, self.cap = self.cap, None
        return r

    def play(self, item):
        kind, x, tag = item
        if kind == "i":
            self(x, tag)
        else:
            getattr(self, kind)(x)

    def __call__(self, text, tag=None):
        if text == "s_mov_b64 exec, 0xffffffff":
            text = "s_mov_b32 exec_hi, 0"
        if self.cap is not None:
            self.cap.append(("i", text, tag)); return
        i = parse(text)
        pad = 0
        dist = 0
        for p in reversed(self.window):
            r = need(p, i)
            if r > dist:
                pad = max(pad, r - dist)
            dist += p.ws
            if dist >= 12:
                break
        if pad:
            self.npad += pad
            nop = parse("s_nop %d" % (pad - 1))
            self.window.append(nop)
            self.lines.append("    s_nop %d" % (pad - 1))
        self.window.append(i)
        if len(self.window) > 16:
            self.window.pop(0)
        self.lines.append("    " + text)
        self.ninst += 1
        if i.cls == "vmem":
            self.vm.append(tag)
        if i.cls == "ds":
            self.lg.append(tag)
        return i

    def wait_vm(self, tag):
        if self.cap is not None:
            self.cap.append(("wait_vm", tag, None)); return
        idx = max((k for k, t in enumerate(self.vm) if t == tag), default=None)
        if idx is None:
            return
        n = len(self.vm) - 1 - idx
        n = min(n, 63)
        self("s_waitcnt vmcnt(%d)" % n)
        self.vm = self.vm[len(self.vm) - n:] if n else []

    def wait_lg(self, tag):
        if self.cap is not None:
            self.cap.append(("wait_lg", tag, None)); return
        idx = max((k for k, t in enumerate(self.lg) if t == tag), default=None)
        if idx is None:
            return
        n = len(self.lg) - 1 - idx
        n = min(n, 15)
        if self.smem:
            n = 0; self.smem = False
        self("s_waitcnt lgkmcnt(%d)" % n)
        self.lg = self.lg[len(self.lg) - n:] if n else []

    def drain_vm(self):
        self("s_waitcnt vmcnt(0)"); self.vm = []

    def drain_lg(self):
        self("s_waitcnt lgkmcnt(0)"); self.lg = []; self.smem = False

    def drain(self):
        self("s_waitcnt vmcnt(0) lgkmcnt(0)"); self.vm = []; self.lg = []

    def fence(self):
        self("s_nop 7"); self("s_nop 3")

    def reset_counts(self, vm=None, lg=None):
        self.vm = list(vm or []); self.lg = list(lg or [])

    def text(self):
        return "\n".join(self.lines) + "\n"

def v(n, c=1):
    return "v%d" % n if c == 1 else "v[%d:%d]" % (n, n + c - 1)

def s(n, c=1):
    return "s%d" % n if c == 1 else "s[%d:%d]" % (n, n + c - 1)
```

```python
import sys, struct, math
from asmlib import Asm, v, s

NAME = "parallel_sum__ssm_conv_s4__mixer_token_mlp__prompt"

def f32(x):
    return "0x%08x" % struct.unpack("<I", struct.pack("<f", x))[0]

class Cfg:
    ts = False
    spin = 32768
    depth1 = 2
    depth2 = 2
    out_pol = ""
    stop = 99
    xpol = ''
    ppol = ''
    tpol = ''
    t2pol = ''
    map8 = 1
    map1 = 8
    map2 = 8
    t2gap = 0
    late = 0
    fsh = 7
    touch1 = 0
    xtl = 1
    kprio = 1
    pre1 = 0
    touch2 = 0
    tdep = 1
    P1 = 15
    pK = 1
    pP = 0
    pG = 2
    pW = 2
    ywg = 1
    stouch = 0
    ywait = 1
    ssig = 1
    pbal = 0
    pth = 1
    ln4 = 0
    w7mb = 1
    e0at = 55
    nr1 = 12
    nr2 = 16
    noxn = 0
    hold = 0
    fillk = 1
    noload = 0
    xm1 = 2
    fm1 = 0
    xm2 = 3
    fm2 = 0
    nokw = 0
    nopk = 0
    cprio = 0
    eprio = 0
    lateb = 0
    nagg = 8
    wrot1 = 1
    wrot2 = 1
    prea = 0
    preb = 1
    prec = 0
    swz = 0
    fine = 1
    c8k = 13
    uprio = 3
    refresh = 0
    e1 = 2
    e0 = 2
    nt1 = 0
    nt2 = 0
    pause = 1
    psleep = 1
    asleep = 0
    badmap = False
    dbg = False
    dbgw = 8
    nomfma = False
    apol = 'sc1'
    noadv = False
    noconv = False
    rotm1 = 0
    rotk1 = 0
    rotm2 = 0
    rotk2 = 0
    nsh1 = 1
    sub1 = 2
    nsh2 = 1
    sub2 = 2
    rot3 = 0
    ysleep = 2

HB, XB, GB, YA = 0, 0x280000, 0x500000, 0x700000
FL = 0xA00000
HF, XF, GF, YF, EW = FL, FL + 0x10000, FL + 0x20000, FL + 0x40000, FL + 0x60000
MB, YC = FL + 0x80000, FL + 0x10000
TSO = 0xB00000
WS_BYTES = 0xC00000
S = 12576
RY = 3 * S
CNT = RY + 10240
BIA = CNT + 32
WOFF = 49152
WSZ = 28672
LDS_BYTES = 163840
KB_OFF, ZP_OFF, U_OFF = 4160, 8256, 8480
TB_OFF = U_OFF + 16
sID, sWV, sX, sJ, sTAG = 2, 3, 4, 5, 6
pX, pARE, pAIM, pBRE, pBIM, pCRE, pCIM, pLDT, pDSK, pBX, pW1, pB1, pW2, pB2, pOUT, pDBG, pWS = [16 + 2 * i for i in range(17)]
rWS, rX, rW1, rW2, rOUT, rCODE = 52, 56, 60, 64, 68, 72
rB = rCODE
sDT, sFT, sDT2, sST, sWB = 76, 77, 78, 79, 80
sOW, sOWB, sOWE = 81, 82, 83
sOA, sOAB, sOAE = 84, 85, 86
sD = [87, 88, 89, 90]
sT0, sT1, sT2, sT3 = 8, 9, 10, 11
sCNT = 12
sORD1, sORD2 = (50, 51), (91, 92)
sPOS, sCH, sRB = 93, 94, 95
sMASK = 13
vL, vTS = 0, 15

def gen(cfg):
    a = Asm()
    nts = [0]
    def stamp(idx):
        if not cfg.ts:
            return
        a("s_memrealtime s[98:99]")
        a("s_waitcnt lgkmcnt(0)"); a.lg = []
        a("v_writelane_b32 v%d, s98, %d" % (vTS, idx))
        if idx in (0, 4, 5, 9, 10, 11):
            a("s_memtime s[98:99]")
            a("s_waitcnt lgkmcnt(0)")
            a("v_writelane_b32 v%d, s98, %d" % (vTS, 48 + idx))

    def finish():
        if cfg.ts:
            a("s_lshl_b32 s%d, s%d, 3" % (sT0, sID))
            a("s_add_u32 s%d, s%d, s%d" % (sT0, sT0, sWV))
            a("s_lshl_b32 s%d, s%d, 8" % (sT0, sT0))
            a("s_add_u32 s%d, s%d, 0x%x" % (sT0, sT0, TSO))
            a("v_lshlrev_b32 v1, 2, v%d" % vL)
            a("buffer_store_dword v%d, v1, %s, s%d offen" % (vTS, s(rWS, 4), sT0))
            if cfg.dbg:
                n = nts[0]; nts[0] += 1
                a("s_lshl_b32 s%d, s%d, 3" % (sT0, sID))
                a("s_add_u32 s%d, s%d, s%d" % (sT0, sT0, sWV))
                a("s_cmp_lg_u32 s%d, %d" % (sT0, cfg.dbgw))
                a("s_cbranch_scc1 L_nodbg%d" % n)
                a("v_readlane_b32 s%d, v%d, 0" % (sT0, vTS))
                a("v_subrev_u32 v2, s%d, v%d" % (sT0, vTS))
                a("s_mov_b64 exec, 0xffff")
                a("global_store_dword v1, v2, %s" % s(pDBG, 2))
                a.label("L_nodbg%d" % n)
        a("s_waitcnt vmcnt(0) lgkmcnt(0)")
        a("s_endpgm")

    def srd(r, p, nbytes):
        a("s_mov_b32 s%d, s%d" % (r, p))
        a("s_and_b32 s%d, s%d, 0xffff" % (r + 1, p + 1))
        a("s_mov_b32 s%d, 0x%x" % (r + 2, nbytes))
        a("s_mov_b32 s%d, 0x20000" % (r + 3))

    npoll = [0]
    def poll(voffs, soffs, vdata, sleep=4, lanes=64):
        n = npoll[0]; npoll[0] += 1
        a("s_mov_b32 s%d, %d" % (sCNT, cfg.spin))
        if lanes < 64:
            a("s_mov_b64 exec, %d" % ((1 << lanes) - 1))
        a.label("L_poll%d" % n)
        for k, (vo, so) in enumerate(zip(voffs, soffs)):
            a("buffer_load_dword v%d, v%d, %s, s%d offen sc1" % (vdata + k, vo, s(rWS, 4), so))
        a.drain_vm()
        a("v_cmp_ne_u32 vcc, s%d, v%d" % (sTAG, vdata))
        for k in range(1, len(voffs)):
            a("v_cmp_ne_u32 s[14:15], s%d, v%d" % (sTAG, vdata + k))
            a("s_or_b64 vcc, vcc, s[14:15]")
        a("s_cmp_eq_u64 vcc, 0")
        a("s_cbranch_scc1 L_pollok%d" % n)
        a("s_sub_u32 s%d, s%d, 1" % (sCNT, sCNT))
        a("s_cmp_eq_u32 s%d, 0" % sCNT)
        a("s_cbranch_scc1 L_pollok%d" % n)
        a("s_mov_b64 exec, vcc")
        if sleep:
            a("s_sleep %d" % sleep)
        a("s_branch L_poll%d" % n)
        a.label("L_pollok%d" % n)
        a("s_mov_b64 exec, -1")

    def spoll_pre(soff):
        a("s_add_u32 s14, s%d, s%d" % (pWS, soff))
        a("s_addc_u32 s15, s%d, 0" % (pWS + 1))
        a("s_load_dword s7, s[14:15], 0 glc")
    def spoll(soff, sleep=1, target=None, pre=False):
        n = npoll[0]; npoll[0] += 1
        if not pre:
            a("s_add_u32 s14, s%d, s%d" % (pWS, soff))
            a("s_addc_u32 s15, s%d, 0" % (pWS + 1))
        a("s_mov_b32 s%d, %d" % (sCNT, cfg.spin * 2))
        if pre:
            a("s_branch L_sq%d" % n)
        a.label("L_sp%d" % n)
        a("s_load_dword s7, s[14:15], 0 glc")
        a.label("L_sq%d" % n)
        a("s_waitcnt lgkmcnt(0)"); a.lg = []
        if target is None:
            a("s_cmp_eq_u32 s7, s%d" % sTAG)
        else:
            a("s_cmp_eq_u32 s7, %d" % target)
        a("s_cbranch_scc1 L_spok%d" % n)
        if sleep:
            a("s_sleep %d" % sleep)
        a("s_sub_u32 s%d, s%d, 1" % (sCNT, sCNT))
        a("s_cmp_lg_u32 s%d, 0" % sCNT)
        a("s_cbranch_scc1 L_sp%d" % n)
        a.label("L_spok%d" % n)

    def group_ids(vdst, vtmp, sg, shift):
        if cfg.map2 == 8:
            a("v_and_b32 v%d, 24, v0" % vdst)
            a("v_lshlrev_b32 v%d, 3, v%d" % (vdst, vdst))
            a("v_and_b32 v%d, 7, v0" % vtmp)
            a("v_add_u32 v%d, v%d, v%d" % (vdst, vdst, vtmp))
            a("s_lshl_b32 s%d, s%d, 3" % (sT0, sg))
        else:
            a("v_and_b32 v%d, 28, v0" % vdst)
            a("v_lshlrev_b32 v%d, 3, v%d" % (vdst, vdst))
            a("v_and_b32 v%d, 3, v0" % vtmp)
            a("v_lshl_add_u32 v%d, v%d, 1, v%d" % (vdst, vtmp, vdst))
            a("s_and_b32 s%d, s%d, 3" % (sT0, sg))
            a("s_lshl_b32 s%d, s%d, 3" % (sT0, sT0))
            a("s_lshr_b32 s14, s%d, 2" % sg)
            a("s_add_u32 s%d, s%d, s14" % (sT0, sT0))
        a("v_add_lshl_u32 v%d, v%d, s%d, %d" % (vdst, vdst, sT0, shift))

    def group_add(voff, soff, vtmp):
        a("v_mov_b32 v%d, 1" % vtmp)
        a("s_mov_b64 exec, 0xffffffff")
        a("buffer_atomic_add v%d, v%d, %s, s%d offen sc1" % (vtmp, voff, s(rWS, 4), soff), tag="flag")
        a("s_mov_b64 exec, -1")

    def sig8(soff, stride):
        a("s_add_u32 s14, s%d, s%d" % (pWS, soff))
        a("s_addc_u32 s15, s%d, 0" % (pWS + 1))
        a("s_mov_b32 s7, 1")
        for x in range(8):
            a("s_atomic_add s7, s[14:15], 0x%x" % (x * stride))

    def flag_store(soff, vtmp0, vtmp1):
        a("v_mov_b32 v%d, s%d" % (vtmp0, sTAG))
        a("v_mov_b32 v%d, 0" % vtmp1)
        a("s_mov_b64 exec, 1")
        a("buffer_store_dword v%d, v%d, %s, s%d offen sc1" % (vtmp0, vtmp1, s(rWS, 4), soff), tag="flag")
        a("s_mov_b64 exec, -1")

    nl = [0]
    def lds_arrive(off, vt0, vt1):
        a("v_mov_b32 v%d, %d" % (vt0, CNT + off))
        a("v_mov_b32 v%d, 1" % vt1)
        a("s_mov_b64 exec, 1")
        a("ds_add_u32 v%d, v%d" % (vt0, vt1))
        a("s_mov_b64 exec, -1")

    def lds_wait(off, target, vt0, vt1, sleep=0):
        n = nl[0]; nl[0] += 1
        a("v_mov_b32 v%d, %d" % (vt0, CNT + off))
        a("s_mov_b32 s%d, 0x%x" % (sCNT, cfg.spin * 64))
        a.label("L_lw%d" % n)
        a("ds_read_b32 v%d, v%d" % (vt1, vt0))
        a.drain_lg()
        a("v_readfirstlane_b32 s%d, v%d" % (sT0, vt1))
        a("s_cmp_ge_u32 s%d, %d" % (sT0, target))
        a("s_cbranch_scc1 L_lwok%d" % n)
        if sleep:
            a("s_sleep %d" % sleep)
        a("s_sub_u32 s%d, s%d, 1" % (sCNT, sCNT))
        a("s_cmp_lg_u32 s%d, 0" % sCNT)
        a("s_cbranch_scc1 L_lw%d" % n)
        a.label("L_lwok%d" % n)

    a.label(NAME + "_kernel")
    a("s_cmp_ge_u32 s2, 256")
    a("s_cbranch_scc1 L_exit")
    if cfg.hold:
        a("s_memrealtime s[98:99]")
    a("s_load_dwordx16 s[16:31], s[0:1], 0")
    a("s_load_dwordx16 s[32:47], s[0:1], 64")
    a("s_load_dwordx2 s[48:49], s[0:1], 128")
    a("s_getpc_b64 s[%d:%d]" % (rCODE, rCODE + 1))
    a.label("L_pc")
    a("v_lshrrev_b32 v1, 6, v0")
    a("v_and_b32 v0, 63, v0")
    if cfg.ts:
        a("v_mov_b32 v%d, 0" % vTS)
    a("v_readfirstlane_b32 s%d, v1" % sWV)
    if cfg.badmap:
        a("s_lshr_b32 s%d, s2, 5" % sX)
        a("s_and_b32 s%d, s2, 31" % sJ)
    else:
        a("s_and_b32 s%d, s2, 7" % sX)
        a("s_lshr_b32 s%d, s2, 3" % sJ)
    a("s_mov_b32 s%d, 0xffff0000" % sMASK)
    a("s_and_b32 s%d, s%d, 0xffff" % (rCODE + 1, rCODE + 1))
    a("s_mov_b32 s%d, L_code_end-L_pc" % (rCODE + 2))
    a("s_mov_b32 s%d, 0x20000" % (rCODE + 3))
    a("s_cmp_lg_u32 s%d, 7" % sWV)
    a("s_cbranch_scc1 L_nopf")
    a("s_lshl_b32 s%d, s%d, 7" % (sT0, sJ))
    a("v_lshlrev_b32 v1, 12, v0")
    a("buffer_load_dword v14, v1, %s, s%d offen" % (s(rCODE, 4), sT0))
    a("v_mov_b32 v21, %d" % CNT)
    for k in range(4):
        a("v_mov_b32 v%d, 0" % (24 + k))
    a("ds_write_b128 v21, v[24:27]")
    a("ds_write_b128 v21, v[24:27] offset:16")
    a.label("L_nopf")
    a.vm = []; a.lg = []
    a("v_lshlrev_b32 v2, 4, v0")
    a("v_lshlrev_b32 v3, 2, v0")
    a("v_mov_b32 v7, 0")
    a("v_mov_b32 v8, 0")
    nline = 3 if cfg.map1 == 8 else 6
    def tile_math():
        a("s_and_b32 s%d, s%d, 1" % (sT0, sX))
        a("s_lshr_b32 s%d, s%d, 1" % (sT1, sX))
        a("v_mul_u32_u24 v62, 3072, v0")
        a("s_mul_i32 s96, s%d, %d" % (sJ, 64 * 3072))
        if cfg.map1 == 8:
            a("s_mul_i32 s%d, s%d, 26" % (sT2, sJ))
            a("s_lshr_b32 s%d, s%d, 8" % (sT2, sT2))
            a("s_mul_i32 s%d, s%d, 10" % (sT3, sT2))
            a("s_sub_u32 s%d, s%d, s%d" % (sT3, sJ, sT3))
            a("s_mov_b32 s%d, s%d" % (sDT, sT3))
            a("s_mul_i32 s%d, s%d, 3" % (sFT, sX))
        else:
            a("s_mul_i32 s%d, s%d, 13" % (sT2, sJ))
            a("s_lshr_b32 s%d, s%d, 6" % (sT2, sT2))
            a("s_mul_i32 s%d, s%d, 5" % (sT3, sT2))
            a("s_sub_u32 s%d, s%d, s%d" % (sT3, sJ, sT3))
            a("s_mul_i32 s%d, s%d, 5" % (sDT, sT0))
            a("s_add_u32 s%d, s%d, s%d" % (sDT, sDT, sT3))
            a("s_mul_i32 s%d, s%d, 6" % (sFT, sT1))
        a("s_add_u32 s97, s%d, s%d" % (sFT, sWV))
        a("s_lshl_b32 s97, s97, 7")
        a("s_add_u32 s96, s96, s97")
        a("s_cmp_ge_u32 s%d, 3" % sWV)
        a("s_cselect_b32 s96, 0x7f000000, s96")
        a("s_add_u32 s%d, s%d, s%d" % (sFT, sFT, sT2))
        def order(n, nsh, sub, r):
            if nsh <= 1:
                return list(range(n))
            o = []
            g = nsh * sub
            for b in range(0, n, g):
                blk = list(range(b, min(b + g, n)))
                k = (r * sub) % len(blk) if len(blk) == g else (r * len(blk) // nsh) % len(blk)
                o += blk[k:] + blk[:k]
            return o
        def pack(o):
            o = o + [0] * (16 - len(o))
            return sum(x << (4 * i) for i, x in enumerate(o[:8])), sum(x << (4 * i) for i, x in enumerate(o[8:]))
        def sel_list(dst, sidx, orders):
            for r, o in enumerate(orders):
                lo, hi = pack(list(o))
                if r == 0:
                    a("s_mov_b32 s%d, 0x%x" % (dst[0], lo))
                    a("s_mov_b32 s%d, 0x%x" % (dst[1], hi))
                elif o != orders[0]:
                    a("s_cmp_eq_u32 s%d, %d" % (sidx, r))
                    a("s_cselect_b32 s%d, 0x%x, s%d" % (dst[0], lo, dst[0]))
                    a("s_cselect_b32 s%d, 0x%x, s%d" % (dst[1], hi, dst[1]))
        def sel_order(dst, sidx, nidx, n, nsh, sub):
            sel_list(dst, sidx, [order(n, nsh, sub, r % max(nsh, 1)) for r in range(nidx)])
        def rotl(n, k):
            return [(i + k) % n for i in range(n)]
        if cfg.wrot1:
            nd = 30 // nline
            a("s_mul_i32 s97, s%d, %d" % (sT3, -(-16 * 256 // nd)))
            a("s_lshr_b32 s97, s97, 8")
            a("s_mul_i32 s14, s%d, %d" % (sX, cfg.xm1))
            a("s_add_u32 s97, s97, s14")
            a("s_mul_i32 s14, s%d, %d" % (sT2, cfg.fm1))
            a("s_add_u32 s97, s97, s14")
            a("s_and_b32 s97, s97, 15")
            if cfg.nsh1 > 1:
                sel_order(sORD1, sT2, nline, 16, cfg.nsh1, cfg.sub1)
                a("s_mul_i32 s97, s97, 0x11111111")
                for r in sORD1:
                    a("s_xor_b32 s100, s%d, s97" % r)
                    a("s_and_b32 s100, s100, 0x88888888")
                    a("s_and_b32 s%d, s%d, 0x77777777" % (r, r))
                    a("s_and_b32 s101, s97, 0x77777777")
                    a("s_add_u32 s%d, s%d, s101" % (r, r))
                    a("s_xor_b32 s%d, s%d, s100" % (r, r))
            else:
                a("s_lshl_b32 s97, s97, 2")
                a("s_mov_b32 s100, 0x76543210")
                a("s_mov_b32 s101, 0xfedcba98")
                a("s_lshr_b64 s[%d:%d], s[100:101], s97" % sORD1)
                a("s_sub_u32 s97, 64, s97")
                a("s_lshl_b64 s[100:101], s[100:101], s97")
                a("s_or_b64 s[%d:%d], s[%d:%d], s[100:101]" % (sORD1 + sORD1))
        else:
            sel_order(sORD1, sT2, nline, 16, cfg.nsh1, cfg.sub1)
        if cfg.map2 == 8:
            a("s_and_b32 s%d, s%d, 7" % (sT2, sJ))
            a("s_lshr_b32 s%d, s%d, 3" % (sT3, sJ))
            a("s_mov_b32 s%d, s%d" % (sDT2, sT2))
            a("s_lshl_b32 s%d, s%d, 2" % (sST, sX))
        else:
            a("s_and_b32 s%d, s%d, 3" % (sT2, sJ))
            a("s_lshr_b32 s%d, s%d, 2" % (sT3, sJ))
            a("s_lshl_b32 s%d, s%d, 2" % (sDT2, sT0))
            a("s_add_u32 s%d, s%d, s%d" % (sDT2, sDT2, sT2))
            a("s_lshl_b32 s%d, s%d, 3" % (sST, sT1))
        a("s_add_u32 s%d, s%d, s%d" % (sST, sST, sT3))
        if cfg.wrot2:
            nd = 8 if cfg.map2 == 8 else 4
            a("s_mul_i32 s97, s%d, %d" % (sT2, 24 // nd))
            a("s_mul_i32 s14, s%d, %d" % (sX, cfg.xm2))
            a("s_add_u32 s97, s97, s14")
            a("s_mul_i32 s14, s%d, %d" % (sT3, cfg.fm2))
            a("s_add_u32 s97, s97, s14")
            a("s_lshr_b32 s97, s97, 1")
            a("s_mul_i32 s14, s97, 43")
            a("s_lshr_b32 s14, s14, 9")
            a("s_mul_i32 s14, s14, 12")
            a("s_sub_u32 s97, s97, s14")
            sel_list(sORD2, 97, [rotl(12, r) for r in range(12)])
        else:
            sel_order(sORD2, sT3, 4 if cfg.map2 == 8 else 8, 12, cfg.nsh2, cfg.sub2)
    def chan_math():
        a("s_and_b32 s%d, s%d, 3" % (sT0, sWV))
        a("s_cmp_eq_u32 s%d, 7" % sWV)
        a("s_cselect_b32 s%d, 0, s%d" % (sT0, sT0))
        a("s_mul_i32 s%d, s%d, %d" % (sRB, sT0, S))
        a("s_lshr_b32 s%d, s%d, 1" % (sT1, sJ))
        a("s_mul_i32 s%d, s%d, 5" % (sT1, sT1))
        a("s_and_b32 s%d, s%d, 1" % (sT2, sJ))
        a("s_mul_i32 s%d, s%d, 3" % (sT2, sT2))
        a("s_add_u32 s%d, s%d, s%d" % (sT1, sT1, sT2))
        a("s_add_u32 s%d, s%d, s%d" % (sT1, sT1, sT0))
        a("s_min_u32 s%d, s%d, 79" % (sT1, sT1))
        a("s_and_b32 s%d, s%d, 35" % (sT2, sT1))
        a("s_and_b32 s%d, s%d, 12" % (sT3, sT1))
        a("s_lshl_b32 s%d, s%d, 1" % (sT3, sT3))
        a("s_or_b32 s%d, s%d, s%d" % (sT2, sT2, sT3))
        a("s_and_b32 s%d, s%d, 16" % (sT3, sT1))
        a("s_lshr_b32 s%d, s%d, 2" % (sT3, sT3))
        a("s_or_b32 s%d, s%d, s%d" % (sT2, sT2, sT3))
        a("s_cmp_ge_u32 s%d, 64" % sT1)
        a("s_cselect_b32 s%d, s%d, s%d" % (sT2, sT1, sT2))
        a("s_mul_i32 s%d, s%d, 80" % (sT3, sX))
        a("s_add_u32 s%d, s%d, s%d" % (sPOS, sT3, sT1))
        a("s_add_u32 s%d, s%d, s%d" % (sCH, sT3, sT2))
        a("s_mul_i32 s%d, s%d, 384" % (sT0, sCH))
        a("v_add_u32 v10, s%d, v3" % sT0)
        a("v_lshlrev_b32 v11, 1, v0")
        a("v_add_u32 v11, s%d, v11" % sT0)
        a("s_lshl_b32 s%d, s%d, 1" % (sT0, sCH))
        a("v_mov_b32 v12, s%d" % sT0)
    if cfg.ln4:
        chan_math()
    a("s_lshl_b32 s%d, s2, %d" % (sT0, 2 if cfg.ln4 else 3))
    a("s_add_u32 s%d, s%d, s%d" % (sT0, sT0, sWV))
    a("s_mul_i32 s%d, s%d, %d" % (sT0, sT0, 2560 if cfg.ln4 else 1280))
    for r, nb in ((rX, 2621440), (rWS, WS_BYTES), (rW1, 2048 * 3072), (rW2, 1536 * 4096), (rOUT, 2621440)):
        a("s_mov_b32 s%d, 0x%x" % (r + 2, nb))
        a("s_mov_b32 s%d, 0x20000" % (r + 3))
    def srd_bases(lst):
        for r, p in lst:
            a("s_mov_b32 s%d, s%d" % (r, p))
            a("s_and_b32 s%d, s%d, 0xffff" % (r + 1, p + 1))
    def eload():
        a("s_add_u32 s14, s%d, 0x%x" % (pWS, EW))
        a("s_addc_u32 s15, s%d, 0" % (pWS + 1))
        a("s_load_dword s7, s[14:15], 0")
    def stamp0():
        stamp(0)
        if cfg.ts:
            a("s_getreg_b32 s98, hwreg(HW_REG_XCC_ID)")
            a("v_writelane_b32 v%d, s98, 40" % vTS)
            a("s_getreg_b32 s98, hwreg(HW_REG_HW_ID)")
            a("v_writelane_b32 v%d, s98, 41" % vTS)
    SB, SS = WOFF + 16384, WSZ
    a("s_mul_i32 s%d, s%d, %d" % (sT2, sWV, 1408 if cfg.ln4 else 704))
    a("s_add_u32 s%d, s%d, %d" % (sT2, sT2, SB))
    a("v_add_u32 v61, %d, v2" % (SS - 640))
    a("v_cmp_gt_u32 vcc, 40, v0")
    a("v_cndmask_b32 v60, v61, v2, vcc")
    a("v_add_u32 v60, s%d, v60" % sT2)
    a("s_add_u32 s%d, s%d, %d" % (sT2, sT2, SS + 384))
    a("v_add_u32 v61, s%d, v3" % sT2)
    vPA = [4, 5, 6, 7, 8]
    PRM0, PRM1, vLDT, vDSK = 84, 90, 96, 97
    def param_loads():
        for k, p in enumerate([pARE, pAIM, pBRE, pBIM, pCRE, pCIM]):
            a("global_load_dword v%d, v10, %s %s" % (PRM0 + k, s(p, 2), cfg.ppol), tag="p")
            a("global_load_ushort v%d, v11, %s offset:256 %s" % (PRM1 + k, s(p, 2), cfg.ppol), tag="p")
        a("global_load_ushort v%d, v12, %s" % (vLDT, s(pLDT, 2)), tag="p")
        a("global_load_ushort v%d, v12, %s" % (vDSK, s(pDSK, 2)), tag="p")
    def x_loads():
        srd_bases([(rX, pX)])
        a("buffer_load_dwordx4 v[16:19], v2, %s, s%d offen %s" % (s(rX, 4), sT0, cfg.xpol), tag="x")
        a("buffer_load_dword v20, v3, %s, s%d offen offset:1024 %s" % (s(rX, 4), sT0, cfg.xpol), tag="x")
        if cfg.ln4:
            a("buffer_load_dwordx4 v[64:67], v2, %s, s%d offen offset:1280 %s" % (s(rX, 4), sT0, cfg.xpol), tag="x")
            a("buffer_load_dword v68, v3, %s, s%d offen offset:2304 %s" % (s(rX, 4), sT0, cfg.xpol), tag="x")
    def common_tail():
        stamp0()
        eload()
        srd_bases([(rWS, pWS), (rW1, pW1), (rW2, pW2), (rOUT, pOUT)])
    if cfg.ln4:
        a("s_cmp_ge_u32 s%d, 4" % sWV)
        a("s_waitcnt lgkmcnt(0)")
        a("s_cbranch_scc1 L_nox")
        x_loads()
        vm_x = list(a.vm)
        a.label("L_nox")
        a("s_cmp_lt_u32 s%d, 4" % sWV)
        a("s_barrier")
        a("s_cbranch_scc1 L_gemm_pre")
        a.vm = []
        a("s_cmp_eq_u32 s%d, 7" % sWV)
        a("s_cbranch_scc1 L_w7_pre")
        param_loads()
        aux_vm = list(a.vm)
        stamp0()
        srd_bases([(rWS, pWS)])
        a("s_branch L_aux_main")
        a.label("L_w7_pre")
        a.vm = []
        common_tail()
    else:
        a("s_waitcnt lgkmcnt(0)")
        x_loads()
        common_tail()
        vm_common = list(a.vm)
        a("s_cmp_lt_u32 s%d, 4" % sWV)
        a("s_cbranch_scc1 L_gemm_pre")
        chan_math()
        a("s_cmp_eq_u32 s%d, 7" % sWV)
        a("s_cbranch_scc1 L_w7_pre")
        param_loads()
        a.wait_vm("x")
        aux_vm = list(a.vm)
        a("s_branch L_ln")
        a.label("L_w7_pre")
        a.vm = list(vm_common)
    a("v_lshrrev_b32 v10, 4, v0")
    a("v_and_b32 v11, 3, v0")
    a("v_bfe_u32 v12, v0, 2, 2")
    a("s_movk_i32 s%d, 704" % sT0)
    a("v_mul_lo_u32 v12, v12, s%d" % sT0)
    a("v_add_u32 v12, %d, v12" % SB)
    for q in range(5):
        a("v_add_u32 v21, %d, v10" % (4 * q))
        a("v_mul_u32_u24 v22, 13, v21")
        a("v_lshrrev_b32 v22, 6, v22")
        a("v_mul_u32_u24 v23, 5, v22")
        a("v_sub_u32 v21, v21, v23")
        a("v_lshrrev_b32 v23, 1, v21")
        a("v_lshlrev_b32 v23, 5, v23")
        a("v_and_b32 v24, 1, v21")
        a("v_lshl_add_u32 v23, v24, 2, v23")
        a("v_lshlrev_b32 v24, 3, v11")
        a("v_lshlrev_b32 v25, 2, v11")
        a("v_cmp_eq_u32 vcc, 4, v21")
        a("v_cndmask_b32 v24, v24, v25, vcc")
        a("v_add_u32 v23, v23, v24")
        a("v_mul_u32_u24 v22, 80, v22")
        a("v_add_u32 v23, v23, v22")
        a("v_lshl_add_u32 v%d, v23, 1, v12" % vPA[q])
    if cfg.ln4:
        a("s_setprio 3")
        lds_wait(8, 4, 12, 13)
        a("s_add_u32 s%d, s7, 0x9E3779B9" % sTAG)
        a("s_branch L_pub")
        a.label("L_gemm_pre")
        a.vm = list(vm_x)
        srd_bases([(rX, pX)])
        common_tail()
    else:
        a.wait_vm("x")
        a("s_branch L_ln")
        a.label("L_gemm_pre")
        a.vm = list(vm_common)
    tile_math()

    vTR = [2, 3, 4, 5]
    vFO, vDO, vPO, vPD = 6, 7, 8, 9
    ACC1, STG1, WREG1 = 16, 80, 128
    ACC2, STG2, WREG2, XR = 16, 96, 160, 148
    NR1, NR2 = cfg.nr1, cfg.nr2

    def dma_voff(rowbytes, gemm1):
        a("v_lshrrev_b32 v10, 3, v0")
        if cfg.swz == 0:
            a("v_and_b32 v11, 6, v10")
        else:
            a("v_and_b32 v11, 2, v10")
            a("v_lshlrev_b32 v11, 1, v11")
        a("v_and_b32 v12, 7, v0")
        a("v_xor_b32 v12, v12, v11")
        a("v_lshlrev_b32 v12, 4, v12")
        if gemm1:
            a("v_and_b32 v11, 4, v10")
            a("v_add_u32 v10, v10, v11")
        a("s_mov_b32 s%d, %d" % (sT0, rowbytes))
        a("v_mul_lo_u32 v10, v10, s%d" % sT0)
        a("v_add_u32 v%d, v10, v12" % vDO)

    def setoff(dst, base, ordr, step, stepbytes):
        a("s_bfe_u32 s%d, s%d, 0x%x" % (dst, ordr[step >> 3], (4 << 16) | (4 * (step & 7))))
        a("s_mul_i32 s%d, s%d, %d" % (dst, dst, stepbytes))
        a("s_add_u32 s%d, s%d, s%d" % (dst, dst, base))

    def dma_step(srdreg, slot, consts, stepbytes, tag, pol=''):
        setoff(sOW, sOWB, sORD1 if srdreg == rW1 else sORD2, int(tag[1:]), stepbytes)
        for b in range(4):
            a("s_add_u32 m0, s%d, %d" % (sWB, slot * 4096 + b * 1024))
            if consts[b]:
                a("s_add_u32 s%d, s%d, %d" % (sT0, sOW, consts[b]))
                so = sT0
            else:
                so = sOW
            a("buffer_load_dwordx4 v%d, %s, s%d offen %s lds" % (vDO, s(srdreg, 4), so, pol), tag=tag)

    C1 = [(16 * (b & 1) + 4 * (b >> 1)) * 3072 for b in range(4)]
    C2 = [8 * b * 4096 for b in range(4)]

    def tr_step(slot, wreg, tag):
        for n in range(4):
            for e in range(2):
                a("ds_read_b64_tr_b16 %s, v%d offset:%d" % (v(wreg + 4 * n + 2 * e, 2), vTR[n], slot * 4096 + e * 2048), tag=tag)

    def touch_w1():
        a("buffer_load_dword v63, v62, %s, s96 offen %s" % (s(rW1, 4), cfg.tpol), tag="tch")
    def touch_w2s():
        a("v_lshrrev_b32 v8, 2, v0")
        a("v_lshlrev_b32 v8, 12, v8")
        a("v_and_b32 v9, 3, v0")
        a("v_lshl_add_u32 v8, v9, 7, v8")
        a("v_mov_b32 v9, 0x7f000000")
        a("v_cmp_gt_u32 vcc, 48, v0")
        a("v_cndmask_b32 v8, v9, v8, vcc")
        a("s_lshl_b32 s97, s%d, 2" % sJ)
        a("s_add_u32 s97, s97, s%d" % sWV)
        a("s_mul_i32 s97, s97, %d" % (12 * 4096))
        a("s_lshl_b32 s%d, s%d, 9" % (sT2, sX))
        a("s_add_u32 s97, s97, s%d" % sT2)
    def touch_w2i():
        a("buffer_load_dword v9, v8, %s, s97 offen %s" % (s(rW2, 4), cfg.t2pol), tag="tch")
    def touch_w1b():
        if nline == 6:
            a("buffer_load_dword v63, v62, %s, s96 offen offset:384 %s" % (s(rW1, 4), cfg.tpol), tag="tch")
    a("s_mov_b64 exec, 0xffffffff")
    srd(rB, pB1, 3072)
    a("s_lshl_b32 s%d, s%d, 7" % (sT0, sFT))
    a("s_mov_b32 m0, %d" % BIA)
    a("buffer_load_dword v3, %s, s%d offen lds" % (s(rB, 4), sT0), tag="b")
    srd(rB, pB2, 4096)
    a("s_lshl_b32 s%d, s%d, 7" % (sT0, sST))
    a("s_mov_b32 m0, %d" % (BIA + 128))
    a("buffer_load_dword v3, %s, s%d offen lds" % (s(rB, 4), sT0), tag="b")
    a("s_mov_b64 exec, -1")
    if cfg.touch1 == 1:
        touch_w1()
    if cfg.touch2 in (3, 4, 5, 7):
        touch_w2s()
    if cfg.touch2 == 4:
        touch_w2i()
    a("s_setprio 2")
    a("s_mul_i32 s%d, s%d, %d" % (sWB, sWV, WSZ))
    a("s_add_u32 s%d, s%d, %d" % (sWB, sWB, WOFF))
    dma_voff(3072, True)
    a("s_mul_i32 s%d, s%d, %d" % (sOWB, sWV, 512 * 3072))
    a("s_lshl_b32 s%d, s%d, 7" % (sT0, sFT))
    a("s_add_u32 s%d, s%d, s%d" % (sOWB, sOWB, sT0))
    a("s_cmp_ge_u32 s%d, 30" % sJ)
    a("s_cselect_b32 s%d, 0x7f000000, s%d" % (sOWB, sOWB))
    def dma1(k):
        dma_step(rW1, k % 7, C1, 32 * 3072, "w%d" % k, cfg.tpol if k < cfg.nt1 else '')
    for i in range(cfg.prea):
        dma1(i)
    a.wait_vm("x")
    for i in range(cfg.prea, cfg.prea + cfg.preb):
        dma1(i)
    gemm_vm = list(a.vm)
    a.label("L_ln")
    stamp(1)

    def bfround(r):
        a("v_cvt_pk_bf16_f32 v%d, v%d, v%d" % (r, r, r))
        a("v_and_b32 v%d, s%d, v%d" % (r, sMASK, r))

    def ln_token(o, sx0, s1, s2, row):
        L = []
        e = L.append
        XP, D_, A, B, C, E_, HP = 16 + o, 24 + o, 34 + o, 36 + o, 38 + o, 40 + o, 44 + o
        M, V, R1, R2 = 50 + o, 51 + o, 52 + o, 54 + o
        for k in range(5):
            e("v_lshlrev_b32 v%d, 16, v%d" % (D_ + 2 * k, XP + k))
            e("v_and_b32 v%d, s%d, v%d" % (D_ + 2 * k + 1, sMASK, XP + k))
        e("v_readfirstlane_b32 s%d, v%d" % (sx0, D_))
        e("v_mov_b32 v%d, %s" % (R2, f32(1.0 / 640)))
        e("v_mov_b32 v%d, s%d" % (A, sx0))
        for k in range(5):
            e("v_pk_add_f32 %s, %s, %s op_sel_hi:[1,0] neg_lo:[0,1] neg_hi:[0,1]" % (v(D_ + 2 * k, 2), v(D_ + 2 * k, 2), v(A, 2)))
        e("v_pk_mul_f32 %s, %s, %s" % (v(B, 2), v(D_, 2), v(D_, 2)))
        e("v_pk_add_f32 %s, %s, %s" % (v(A, 2), v(D_, 2), v(D_ + 2, 2)))
        e("v_pk_mul_f32 %s, %s, %s" % (v(E_, 2), v(D_ + 4, 2), v(D_ + 4, 2)))
        e("v_pk_add_f32 %s, %s, %s" % (v(C, 2), v(D_ + 4, 2), v(D_ + 6, 2)))
        e("v_pk_fma_f32 %s, %s, %s, %s" % (v(B, 2), v(D_ + 2, 2), v(D_ + 2, 2), v(B, 2)))
        e("v_pk_add_f32 %s, %s, %s" % (v(A, 2), v(A, 2), v(D_ + 8, 2)))
        e("v_pk_fma_f32 %s, %s, %s, %s" % (v(E_, 2), v(D_ + 6, 2), v(D_ + 6, 2), v(E_, 2)))
        e("v_pk_fma_f32 %s, %s, %s, %s" % (v(B, 2), v(D_ + 8, 2), v(D_ + 8, 2), v(B, 2)))
        e("v_pk_add_f32 %s, %s, %s" % (v(A, 2), v(A, 2), v(C, 2)))
        e("v_pk_add_f32 %s, %s, %s" % (v(B, 2), v(B, 2), v(E_, 2)))
        e("v_add_f32 v%d, v%d, v%d" % (A, A, A + 1))
        e("v_add_f32 v%d, v%d, v%d" % (B, B, B + 1))
        for ctl in ["row_shr:1", "row_shr:2", "row_shr:4", "row_shr:8"]:
            for r in (A, B):
                e("v_add_f32_dpp v%d, v%d, v%d %s row_mask:0xf bank_mask:0xf bound_ctrl:0" % (r, r, r, ctl))
        for r in (A, B):
            e("v_add_f32_dpp v%d, v%d, v%d row_bcast:15 row_mask:0xa bank_mask:0xf" % (r, r, r))
        for r in (A, B):
            e("v_add_f32_dpp v%d, v%d, v%d row_bcast:31 row_mask:0xc bank_mask:0xf" % (r, r, r))
        e("v_readlane_b32 s%d, v%d, 63" % (s1, A))
        e("v_readlane_b32 s%d, v%d, 63" % (s2, B))
        e("v_mul_f32 v%d, s%d, v%d" % (M, s1, R2))
        e("v_mul_f32 v%d, s%d, v%d" % (V, s2, R2))
        e("v_fma_f32 v%d, -v%d, v%d, v%d" % (V, M, M, V))
        e("v_add_f32 v%d, s%d, v%d" % (A, sx0, M))
        e("v_max_f32 v%d, 0, v%d" % (V, V))
        def rstd(dst, mean, var, mb):
            e("v_cvt_pk_bf16_f32 v%d, v%d, v%d" % (C, mean, var))
            e("v_and_b32 v%d, s%d, v%d" % (dst, sMASK, C))
            e("v_lshlrev_b32 v%d, 16, v%d" % (mb, C))
            e("v_add_f32 v%d, %s, v%d" % (dst, f32(1e-5), dst))
            e("v_cvt_pk_bf16_f32 v%d, v%d, v%d" % (dst, dst, dst))
            e("v_and_b32 v%d, s%d, v%d" % (dst, sMASK, dst))
            e("v_sqrt_f32 v%d, v%d" % (dst, dst))
            e("v_cvt_pk_bf16_f32 v%d, v%d, v%d" % (dst, dst, dst))
            e("v_and_b32 v%d, s%d, v%d" % (dst, sMASK, dst))
            e("v_rcp_f32 v%d, v%d" % (dst, dst))
        rstd(R1, A, V, B)
        e("v_sub_f32 v%d, s%d, v%d" % (B, sx0, B))
        e("v_mul_f32 v%d, v%d, v%d" % (V, V, R1))
        e("v_mul_f32 v%d, v%d, v%d" % (R1 + 1, B, R1))
        e("v_mul_f32 v%d, v%d, v%d" % (V, V, R1))
        e("v_fma_f32 v%d, v%d, v%d, v%d" % (A, M, R1, R1 + 1))
        n0 = len(L)
        rstd(R2, A, V, B)
        e("v_mul_f32 v%d, v%d, v%d" % (R2 + 1, B, R2))
        chain = L[n0:]; del L[n0:]
        body = []
        for k in range(5):
            body.append("v_pk_fma_f32 %s, %s, %s, %s op_sel:[0,0,1] op_sel_hi:[1,0,1]" % (v(D_ + 2 * k, 2), v(D_ + 2 * k, 2), v(R1, 2), v(R1, 2)))
        for k in range(5):
            body.append("v_cvt_pk_bf16_f32 v%d, v%d, v%d" % (XP + k, D_ + 2 * k, D_ + 2 * k + 1))
        body.append("ds_write_b128 v60, %s offset:%d" % (v(XP, 4), 2 * SS + 704 * row))
        body.append("ds_write_b32 v61, v%d offset:%d" % (XP + 4, 2 * SS + 704 * row))
        while chain or body:
            if chain: e(chain.pop(0))
            if body: e(body.pop(0))
        for k in range(5):
            e("v_pk_fma_f32 %s, %s, %s, %s op_sel:[0,0,1] op_sel_hi:[1,0,1] neg_lo:[0,0,1] neg_hi:[0,0,1]" % (v(D_ + 2 * k, 2), v(D_ + 2 * k, 2), v(R2, 2), v(R2, 2)))
        for k in range(5):
            e("v_cvt_pk_bf16_f32 v%d, v%d, v%d" % (HP + k, D_ + 2 * k, D_ + 2 * k + 1))
        e("ds_write_b128 v60, %s offset:%d" % (v(HP, 4), 704 * row))
        e("ds_write_b32 v61, v%d offset:%d" % (HP + 4, 704 * row))
        return L
    if cfg.ln4:
        for i0, i1 in zip(ln_token(0, 14, sT0, sT1, 0), ln_token(48, 15, sT2, sT3, 1)):
            a(i0); a(i1)
        a("s_waitcnt lgkmcnt(0)"); a.lg = []
        lds_arrive(8, 12, 13)
        a("s_add_u32 s%d, s7, 0x9E3779B9" % sTAG)
        a("s_branch L_not7")
        a.label("L_pub")
    else:
        for i0 in ln_token(0, 14, sT0, sT1, 0):
            a(i0)
        a("s_waitcnt lgkmcnt(0)"); a.lg = []
        a("s_add_u32 s%d, s7, 0x9E3779B9" % sTAG)
        a("s_cmp_lg_u32 s%d, 7" % sWV)
        a("s_barrier")
        a("s_cbranch_scc1 L_not7")
    a.vm = []; a.lg = []
    a("s_setprio 3")
    stamp(2)
    a("s_mul_i32 s%d, s%d, 10240" % (sT0, sID))
    a("s_add_u32 s%d, s%d, 4096" % (sT1, sT0))
    a("s_add_u32 s%d, s%d, 8192" % (sT2, sT0))
    def prd(k):
        arr, hf, q = k // 10, (k // 5) & 1, k % 5
        r = 16 + 4 * k
        o = hf * SS
        va = 100 + q if arr else vPA[q]
        a("ds_read_b64_tr_b16 %s, v%d offset:%d" % (v(r, 2), va, o), tag="p%d" % k)
        a("ds_read_b64_tr_b16 %s, v%d offset:%d" % (v(r + 2, 2), va, o + 2816), tag="p%d" % k)
    for k in range(6):
        prd(k)
    for q in range(5):
        a("v_add_u32 v%d, %d, v%d" % (100 + q, 2 * SS, vPA[q]))
    for k in range(20):
        if k == 10:
            for q in range(3):
                a("s_add_u32 s%d, s%d, 0x%x" % ((sT0, sT1, sT2)[q], (sT0, sT1, sT2)[q], XB))
        a.wait_lg("p%d" % k)
        kk = k % 10
        if k < 10 or not cfg.noxn:
            a("buffer_store_dwordx4 %s, v2, %s, s%d offen offset:%d sc1" % (v(16 + 4 * k, 4), s(rWS, 4), (sT0, sT1, sT2)[kk >> 2], 1024 * (kk & 3)), tag="hs" if k < 10 else "xs")
        if k + 6 < 20:
            prd(k + 6)
        if k == 13:
            a.drain_lg()
            lds_arrive(16, 12, 13)
    if cfg.ssig:
        a("s_cmp_ge_u32 s%d, 64" % sID)
        a("s_cbranch_scc1 L_nozero")
    for k in range(4):
        a("v_mov_b32 v%d, 0" % (108 + k))
    a("s_lshl_b32 s%d, s%d, 10" % (sT3, sID))
    a("s_add_u32 s%d, s%d, 0x%x" % (sT3, sT3, MB + 512))
    a("s_mov_b64 exec, 0xffffffff")
    a("buffer_store_dwordx4 v[108:111], v2, %s, s%d offen sc1" % (s(rWS, 4), sT3))
    a("s_lshl_b32 s%d, s%d, 7" % (sT3, sID))
    a("s_add_u32 s%d, s%d, 0x%x" % (sT3, sT3, YC))
    a("s_mov_b64 exec, 0xff")
    a("buffer_store_dwordx4 v[108:111], v2, %s, s%d offen sc1" % (s(rWS, 4), sT3))
    a("s_mov_b64 exec, -1")
    a.label("L_nozero")
    a("s_lshl_b32 s%d, s%d, %d" % (sT3, sID, cfg.fsh))
    a("s_add_u32 s%d, s%d, 0x%x" % (sT3, sT3, HF))
    if cfg.ssig:
        a("s_add_u32 s14, s%d, s%d" % (pWS, sT3))
        a("s_addc_u32 s15, s%d, 0" % (pWS + 1))
        a("s_mov_b32 s7, s%d" % sTAG)
        a.drain_vm()
        a("s_atomic_swap s7, s[14:15], 0")
        a.drain_lg()
    else:
        a.drain_vm()
        flag_store(sT3, 12, 13)
    stamp(3)
    a("s_branch L_w7")
    a.label("L_not7")
    a.lg = ["arr"]
    if not cfg.ln4:
        a("s_cmp_ge_u32 s%d, 4" % sWV)
        a("s_cbranch_scc1 L_aux_main")
    a.vm = list(gemm_vm)
    a("s_setprio %d" % cfg.pP)
    stamp(2)
    for i in range(cfg.prea + cfg.preb, cfg.prea + cfg.preb + cfg.prec):
        dma1(i)
    cfg.pre1 = cfg.prea + cfg.preb + cfg.prec

    a("v_lshrrev_b32 v10, 2, v0")
    if cfg.swz == 0:
        a("v_bfe_u32 v11, v0, 3, 2")
    else:
        a("v_bfe_u32 v11, v0, 3, 1")
        a("v_lshlrev_b32 v11, 1, v11")
    a("v_lshlrev_b32 v10, 7, v10")
    a("v_and_b32 v12, 3, v0")
    a("v_lshl_add_u32 v10, v12, 3, v10")
    a("v_add_u32 v10, s%d, v10" % sWB)
    for n in range(4):
        a("v_xor_b32 v12, %d, v11" % n)
        a("v_lshl_add_u32 v%d, v12, 5, v10" % vTR[n])
    a("v_lshrrev_b32 v10, 4, v0")
    a("v_mul_u32_u24 v10, 10240, v10")
    a("v_and_b32 v11, 15, v0")
    a("v_lshl_add_u32 v%d, v11, 4, v10" % vFO)
    a.wait_vm("b")
    a("v_lshrrev_b32 v10, 4, v0")
    a("v_lshlrev_b32 v10, 3, v10")
    for fi in range(4):
        a("ds_read_b64 %s, v10 offset:%d" % (v(STG1 + 2 * fi, 2), BIA + 32 * fi), tag="bias")
    a.wait_lg("bias")
    for k in range(8):
        a("v_lshlrev_b32 v%d, 16, v%d" % (ACC1 + 2 * k, STG1 + k))
        a("v_and_b32 v%d, s%d, v%d" % (ACC1 + 2 * k + 1, sMASK, STG1 + k))
    lds_wait(16, 1, 12, 13)
    stamp(14)
    if cfg.touch1:
        touch_w1b()
    if cfg.touch2 == 5:
        touch_w2i()
    a("s_cmp_ge_u32 s%d, 30" % sJ)
    a("s_cbranch_scc1 L_g2_pre_nog1")
    a("s_mul_i32 s%d, s%d, %d" % (sOAB, sWV, 64 * 10240))
    a("s_lshl_b32 s%d, s%d, 10" % (sT0, sDT))
    a("s_add_u32 s%d, s%d, s%d" % (sOAB, sOAB, sT0))
    if HB:
        a("s_add_u32 s%d, s%d, 0x%x" % (sOAB, sOAB, HB))
    for di in range(4):
        a("s_xor_b32 s%d, s%d, %d" % (sD[di], sWV, di))
        a("s_lshl_b32 s%d, s%d, 8" % (sD[di], sD[di]))
    def mbox(extra):
        if cfg.ssig and extra:
            a("s_and_b32 s%d, s%d, 63" % (sT1, sID))
            a("s_lshl_b32 s%d, s%d, 3" % (sT1, sT1))
        else:
            a("s_lshl_b32 s%d, s%d, 3" % (sT1, sID))
        a("s_add_u32 s%d, s%d, s%d" % (sT1, sT1, sWV))
        a("s_lshl_b32 s%d, s%d, 7" % (sT1, sT1))
        a("s_add_u32 s%d, s%d, 0x%x" % (sT1, sT1, MB + extra))
    D1 = cfg.depth1
    issued = cfg.pre1
    P1 = cfg.P1
    polled = False
    for i in range(P1):
        while issued < P1 and issued <= i + D1:
            k = issued
            if k >= 7:
                a.wait_lg("t%d" % (k - 7))
            if k >= P1 - 2 and i >= 8 and not polled:
                a.drain_lg()
                mbox(0)
                spoll_pre(sT1)
                polled = True
            dma1(k)
            issued += 1
        if i < 8:
            a.wait_vm("w%d" % i)
            tr_step(i % 7, WREG1 + 16 * i, "t%d" % i)
        elif issued < P1:
            a.wait_vm("w%d" % i)
        if i in (0, 8) and cfg.fine:
            stamp(16 + i // 2)
    if not polled:
        mbox(0)
        spoll_pre(sT1)
    if cfg.touch2 == 7:
        touch_w2i()
    stamp(3)
    def hwait(sl):
        a("s_lshl_b32 s%d, s%d, 3" % (sT1, sID))
        a("s_add_u32 s%d, s%d, s%d" % (sT1, sT1, sWV))
        a("s_lshl_b32 s%d, s%d, 7" % (sT1, sT1))
        a("s_add_u32 s%d, s%d, 0x%x" % (sT1, sT1, MB))
        spoll(sT1, sl)
    spoll(sT1, cfg.psleep, pre=True)
    a("s_setprio %d" % cfg.pG)
    if cfg.pbal:
        a("s_and_b32 s%d, s%d, 1" % (sT2, sJ))
        a("s_add_u32 s%d, s%d, s%d" % (sT2, sT2, sWV))
        a("s_cmp_lt_u32 s%d, 3" % sT2)
        a("s_cbranch_scc1 L_pb")
        a("s_setprio 1")
        a.label("L_pb")
    stamp(4)

    def adv_a(stepbytes):
        if cfg.noadv:
            return
        a("s_add_u32 s%d, s%d, %d" % (sOA, sOA, stepbytes))
        a("s_cmp_ge_u32 s%d, s%d" % (sOA, sOAE))
        a("s_cselect_b32 s%d, s%d, s%d" % (sOA, sOAB, sOA))

    def DI(n):
        return ((n + 1) & 3) if n >= 60 else (n & 3)
    def hload(n):
        di = DI(n)
        if n & 3 == 0:
            setoff(sOA, sOAB, sORD1, n >> 2, 4 * 10240)
        a("s_add_u32 s%d, s%d, s%d" % (sT1, sOA, sD[di]))
        a("buffer_load_dwordx4 %s, v%d, %s, s%d offen %s" % (v(STG1 + 4 * (n % NR1), 4), vFO, s(rWS, 4), sT1, cfg.apol), tag="h%d" % n)

    def w2_setup():
        dma_voff(4096, False)
        a("s_mul_i32 s%d, s%d, %d" % (sOWB, sWV, 384 * 4096))
        a("s_lshl_b32 s%d, s%d, 7" % (sT0, sST))
        a("s_add_u32 s%d, s%d, s%d" % (sOWB, sOWB, sT0))

    SL2 = {0: 3, 1: 4, 2: 5, 3: 6, 4: 0, 5: 1, 6: 2, 7: 3, 8: 4, 9: 5, 10: 6, 11: 0}
    def slot2(i):
        return SL2[i]
    def dma2(k):
        dma_step(rW2, slot2(k), C2, 32 * 4096, "u%d" % k, cfg.t2pol if k < cfg.nt2 else '')
    def tr2(k):
        tr_step(slot2(k), WREG2 + 16 * k, "q%d" % k)
    def tr_flip():
        a("s_lshl_b32 s%d, s%d, 5" % (sT0, sWV))
        for n in range(4):
            a("v_xor_b32 v%d, s%d, v%d" % (vTR[n], sT0, vTR[n]))

    vXO, vXO4, vB2 = 9, 1, 14
    sXO = 97
    def xt_setup():
        a("v_and_b32 v12, 15, v0")
        a("v_lshrrev_b32 v13, 4, v0")
        a("v_mul_u32_u24 v%d, 1280, v12" % vXO)
        a("v_lshl_add_u32 v%d, v13, 3, v%d" % (vXO4, vXO))
        a("v_lshl_add_u32 v%d, v13, 4, v%d" % (vXO, vXO))
        a("s_lshl_b32 s%d, s%d, 2" % (sT2, sST))
        a("s_add_u32 s%d, s%d, s%d" % (sT2, sT2, sWV))
        a("s_mul_i32 s%d, s%d, %d" % (sXO, sT2, 16 * 1280))
        a("s_mul_i32 s%d, s%d, 160" % (sT3, sDT2))
        a("s_add_u32 s%d, s%d, s%d" % (sXO, sXO, sT3))
    def acc2_init():
        a("v_and_b32 v12, 15, v0")
        a("s_lshl_b32 s%d, s%d, 5" % (sT2, sWV))
        a("v_lshl_add_u32 v12, v12, 1, s%d" % sT2)
        a("ds_read_u16 v%d, v12 offset:%d" % (vB2, BIA + 128), tag="b2")
        for k in range(10):
            a("v_lshlrev_b32 v%d, 16, v%d" % (ACC2 + 2 * k, XR + k))
            a("v_and_b32 v%d, s%d, v%d" % (ACC2 + 2 * k + 1, sMASK, XR + k))
        a.wait_lg("b2")
        a("v_lshlrev_b32 v%d, 16, v%d" % (vB2, vB2))
        for k in range(20):
            a("v_add_f32 v%d, v%d, v%d" % (ACC2 + k, vB2, ACC2 + k))
    def xt_loads():
        a("buffer_load_dwordx4 %s, v%d, %s, s%d offen %s" % (v(XR, 4), vXO, s(rX, 4), sXO, cfg.xpol), tag="xt")
        a("buffer_load_dwordx4 %s, v%d, %s, s%d offen offset:64 %s" % (v(XR + 4, 4), vXO, s(rX, 4), sXO, cfg.xpol), tag="xt")
        a("buffer_load_dwordx2 %s, v%d, %s, s%d offen offset:128 %s" % (v(XR + 8, 2), vXO4, s(rX, 4), sXO, cfg.xpol), tag="xt")

    for n in range(NR1):
        hload(n)
    lds_arrive(12, 12, 13)
    sGS, sGC = sOWE, sOAE
    vEX = [WREG1 + k for k in range(4)]
    vC = WREG1 + 4
    c0 = -2.0 * math.sqrt(2.0 / math.pi) * math.log2(math.e)
    c1 = c0 * 0.044715
    def xwrite(i):
        for q in range(4):
            a("ds_write_b128 v%d, %s offset:%d" % (vEX[0], v(ACC1 + 16 * i + 4 * q, 4), (i - 1) * 4096 + q * 1024))
    fifo = []
    def fill(k):
        for _ in range(k):
            if fifo:
                a.play(fifo.pop(0))
    def need(tag):
        while any(it[2] == tag for it in fifo):
            fill(1)
    def setup8():
        tr_flip()
        a("v_lshlrev_b32 v10, 4, v0")
        a("v_add_u32 v%d, s%d, v10" % (vEX[0], sWB))
        for k in range(1, 4):
            a("s_xor_b32 s%d, s%d, %d" % (sT0, sWV, k))
            a("s_mul_i32 s%d, s%d, %d" % (sT0, sT0, WSZ))
            a("s_add_u32 s%d, s%d, %d" % (sT0, sT0, WOFF))
            a("v_add_u32 v%d, s%d, v10" % (vEX[k], sT0))
        a("v_mov_b32 v%d, %s" % (vC, f32(c1)))
        a("v_mov_b32 v%d, %s" % (vC + 1, f32(c0)))
    def setup10():
        a("s_mul_i32 s%d, s%d, %d" % (sGS, sFT, 8 * 10240))
        a("s_lshl_b32 s%d, s%d, 10" % (sT2, sDT))
        a("s_add_u32 s%d, s%d, s%d" % (sGS, sGS, sT2))
        a("s_add_u32 s%d, s%d, s%d" % (sGS, sGS, sD[0]))
        a("s_add_u32 s%d, s%d, 0x%x" % (sGS, sGS, GB))
        a("s_add_u32 s96, s%d, %d" % (sGS, 4 * 10240))
        a("s_lshl_b32 s%d, s%d, 2" % (sT2, sDT))
        a("s_add_u32 s%d, s%d, s%d" % (sT2, sT2, sWV))
        a("s_mul_i32 s%d, s%d, 52" % (sT2, sT2))
        a("s_lshr_b32 s%d, s%d, 8" % (sT2, sT2))
        if not cfg.ssig:
            group_ids(vPO, 13, sT2, 10)
        a("s_mul_i32 s%d, s%d, 43" % (sGC, sFT))
        a("s_lshr_b32 s%d, s%d, 8" % (sGC, sGC))
        a("s_lshl_b32 s%d, s%d, 7" % (sGC, sGC))
        a("s_add_u32 s%d, s%d, 0x%x" % (sGC, sGC, MB + 512))
        if cfg.ssig:
            a("s_lshl_b32 s%d, s%d, 13" % (sT2, sT2))
            a("s_add_u32 s%d, s%d, s%d" % (sGC, sGC, sT2))
    def refill(i, wr):
        a.wait_vm("w%d" % i)
        tr_step(i % 7, wr, "t%d" % i)
    def late15():
        a.wait_lg("t8")
        dma1(15)
        w2_setup()
    for i in range(16):
        wr = WREG1 + 16 * (i & 7)
        if i >= 8:
            need("t%d" % i)
            a.wait_lg("t%d" % i)
        for dd in range(4):
            n = 4 * i + dd
            di = DI(n)
            nxt = a.capture(hload, n + NR1) if (n + NR1 < 64 and not cfg.noload) else []
            a.wait_vm("h%d" % n)
            for fi in range(4):
                acc = v(ACC1 + 16 * di + 4 * fi, 4)
                if not cfg.nomfma or i == 0:
                    a("v_mfma_f32_16x16x32_bf16 %s, %s, %s, %s" % (acc, v(wr + 4 * fi, 4), v(STG1 + 4 * (n % NR1), 4), acc if (i or di == 0) else "0"))
                if fi < 3:
                    k = cfg.fillk
                    while len(nxt) > 1 and k:
                        a.play(nxt.pop(0)); k -= 1
                    fill(k)
            for it in nxt:
                a.play(it)
            if not nxt:
                fill(cfg.fillk)
            if n == cfg.e0at:
                fill(1000)
                for k in range(cfg.e0):
                    fifo += a.capture(dma2, k)
            if n >= 61:
                xwrite(n - 60)
        if i in (0, 7) and cfg.fine:
            stamp(24 + (i + 1) // 4)
        if i < 8:
            fifo += a.capture(refill, i + 8, wr)
        if P1 + i < 15:
            fifo += a.capture(dma1, P1 + i)
        if i == max(1, 15 - P1):
            fifo += a.capture(late15)
        if i == 10:
            fifo += a.capture(setup10)
        if i == 8:
            fifo += a.capture(setup8)
        if i == 9:
            fifo += a.capture(xt_setup)
    fill(1000)
    if cfg.pW != cfg.pG:
        a("s_setprio %d" % cfg.pW)
    stamp(5)
    a.drain_lg()
    lds_arrive(0, 12, 13)
    lds_wait(0, 4, 12, 13)
    stamp(12)
    for q in range(4):
        for i in range(1, 4):
            a("ds_read_b128 %s, v%d offset:%d" % (v(ACC1 + 16 * i + 4 * q, 4), vEX[i], (i - 1) * 4096 + q * 1024), tag="r%d" % q)
    for k in range(cfg.e0, cfg.e0 + cfg.e1):
        dma2(k)
    def op2(name, d, x, y, n):
        if cfg.nopk:
            for k in range(n):
                a("v_%s_f32 v%d, v%d, v%d" % (name, d + k, x + k, y + k))
        else:
            for k in range(0, n, 2):
                a("v_pk_%s_f32 %s, %s, %s" % (name, v(d + k, 2), v(x + k, 2), v(y + k, 2)))
    U_, T_, P_ = ACC1, ACC1 + 16, STG1
    for hf in range(2):
        o = 8 * hf
        a.wait_lg("r%d" % (2 * hf + 1))
        if hf == 1:
            lds_arrive(4, 12, 13)
        op2("add", U_ + o, U_ + o, ACC1 + 16 + o, 8)
        op2("add", ACC1 + 32 + o, ACC1 + 32 + o, ACC1 + 48 + o, 8)
        op2("add", U_ + o, U_ + o, ACC1 + 32 + o, 8)
        op2("mul", T_ + o, U_ + o, U_ + o, 8)
        if cfg.nopk:
            for k in range(8):
                a("v_fma_f32 v%d, v%d, v%d, v%d" % (T_ + o + k, T_ + o + k, vC, vC + 1))
        else:
            for k in range(0, 8, 2):
                a("v_pk_fma_f32 %s, %s, %s, %s op_sel:[0,0,1] op_sel_hi:[1,0,1]" % (v(T_ + o + k, 2), v(T_ + o + k, 2), v(vC, 2), v(vC, 2)))
        op2("mul", T_ + o, T_ + o, U_ + o, 8)
        for k in range(8):
            a("v_exp_f32 v%d, v%d" % (T_ + o + k, T_ + o + k))
        if cfg.nopk:
            for k in range(8):
                a("v_add_f32 v%d, 1.0, v%d" % (T_ + o + k, T_ + o + k))
        else:
            for k in range(0, 8, 2):
                a("v_pk_add_f32 %s, %s, 1.0 op_sel_hi:[1,0]" % (v(T_ + o + k, 2), v(T_ + o + k, 2)))
        for k in range(8):
            a("v_rcp_f32 v%d, v%d" % (T_ + o + k, T_ + o + k))
        op2("mul", T_ + o, T_ + o, U_ + o, 8)
        for k in range(4):
            a("v_cvt_pk_bf16_f32 v%d, v%d, v%d" % (P_ + 4 * hf + k, T_ + o + 2 * k, T_ + o + 2 * k + 1))
        a("buffer_store_dwordx4 %s, v%d, %s, s%d offen sc1" % (v(P_ + 4 * hf, 4), vFO, s(rWS, 4), 96 if hf else sGS), tag="gs")
    lds_arrive(28, 12, 13)
    stamp(6)
    ne = cfg.e0 + cfg.e1
    for k in range(ne, 4):
        dma2(k)
    lds_wait(4, 4, 12, 13)
    dma2(4); dma2(5)
    if ne:
        a.wait_vm("u%d" % (ne - 1))
        for k in range(ne):
            tr2(k)
    if cfg.ssig:
        a.drain_lg()
    a.wait_vm("gs")
    if cfg.ssig:
        sig8(sGC, 1024)
        a.smem = True
    else:
        group_add(vPO, sGC, 13)
    stamp(7)
    xt_loads()
    dma2(6)
    for k in range(ne, 4):
        a.wait_vm("u%d" % k); tr2(k)
    a.wait_lg("q0"); dma2(7)
    a.wait_vm("u4"); tr2(4)
    a.wait_lg("q1"); dma2(8)
    a.wait_vm("u5"); tr2(5)
    a.wait_lg("q2"); dma2(9)
    a.wait_vm("xt")
    acc2_init()
    a.drain_lg()
    mbox(512)
    spoll_pre(sT1)
    dma2(10); dma2(11)
    vm_join = list(a.vm)
    a("s_branch L_g2_pre")
    a.label("L_g2_pre_nog1")
    a.vm = []; a.lg = []
    if cfg.nagg == 8:
        a("s_cmp_lg_u32 s%d, 31" % sJ)
        a("s_cbranch_scc1 L_noagg_h")
    a("v_lshlrev_b32 v%d, %d, v0" % (vPO, cfg.fsh))
    a("s_lshl_b32 s%d, s%d, %d" % (sT1, sWV, 6 + cfg.fsh))
    a("s_add_u32 s%d, s%d, 0x%x" % (sT1, sT1, HF))
    a("v_lshlrev_b32 v12, 13, v0")
    a("v_mov_b32 v13, s%d" % sTAG)
    a("s_lshl_b32 s%d, s%d, 3" % (sT2, sX))
    a("s_add_u32 s%d, s%d, s%d" % (sT2, sT2, sWV))
    a("s_lshl_b32 s%d, s%d, 7" % (sT2, sT2))
    a("s_add_u32 s%d, s%d, 0x%x" % (sT2, sT2, MB))
    if cfg.nagg == 16:
        a("s_and_b32 s%d, s%d, 1" % (sT3, sJ))
        a("s_lshl_b32 s%d, s%d, 17" % (sT3, sT3))
        a("s_add_u32 s%d, s%d, s%d" % (sT2, sT2, sT3))
    poll([vPO], [sT1], vPD, sleep=cfg.asleep)
    a("s_mov_b64 exec, 0x%x" % (0xffffffff if cfg.nagg == 8 else 0xffff))
    a("buffer_store_dword v13, v12, %s, s%d offen sc1" % (s(rWS, 4), sT2))
    a("s_mov_b64 exec, -1")
    stamp(13)
    a.label("L_noagg_h")
    a.vm = []
    if cfg.touch2 == 6:
        a("v_lshrrev_b32 v8, 2, v0")
        a("v_lshlrev_b32 v8, 12, v8")
        a("v_and_b32 v9, 3, v0")
        a("v_lshl_add_u32 v8, v9, 7, v8")
        a("s_mul_i32 s%d, s%d, 24" % (sT1, sWV))
        a("s_add_u32 s%d, s%d, s%d" % (sT1, sT1, sJ))
        a("s_sub_u32 s%d, s%d, 30" % (sT1, sT1))
        a("s_lshl_b32 s%d, s%d, 16" % (sT1, sT1))
        a("s_lshl_b32 s%d, s%d, 9" % (sT2, sX))
        a("s_add_u32 s%d, s%d, s%d" % (sT1, sT1, sT2))
        a("s_mov_b32 s%d, s%d" % (sT3, sT1))
        for k in range(12):
            a("buffer_load_dword v9, v8, %s, s%d offen %s" % (s(rW2, 4), sT3, cfg.t2pol), tag="tw%d" % k)
            a("s_add_u32 s%d, s%d, %d" % (sT3, sT3, 32 * 4096))
            if k == 3:
                hwait(2)
                lds_arrive(12, 12, 13)
            if k >= cfg.tdep:
                a.wait_vm("tw%d" % (k - cfg.tdep))
    else:
        hwait(4)
        lds_arrive(12, 12, 13)
        if cfg.touch2 == 7:
            lds_wait(12, 4, 12, 13, sleep=2)
            touch_w2s()
            touch_w2i()
    lds_wait(12, 4, 12, 13, sleep=2)
    a("s_setprio 2")
    xt_setup()
    xt_loads()
    w2_setup()
    tr_flip()
    for k in range(7):
        dma2(k)
        if k:
            a.wait_vm("u%d" % (k - 1))
    for k in range(6):
        tr2(k)
    acc2_init()
    a.drain_lg()
    for k in range(7, 12):
        dma2(k)
        a.wait_vm("u%d" % (k - 1))
    a.drain_vm()
    mbox(512)
    spoll_pre(sT1)
    a.label("L_g2_pre")
    a.vm = list(vm_join); a.lg = []
    stamp(8)
    a("s_mul_i32 s%d, s%d, %d" % (sOAB, sWV, 48 * 10240))
    a("s_mul_i32 s%d, s%d, 1280" % (sT0, sDT2))
    a("s_add_u32 s%d, s%d, s%d" % (sOAB, sOAB, sT0))
    a("s_add_u32 s%d, s%d, 0x%x" % (sOAB, sOAB, GB))
    spoll(sT1, cfg.psleep, target=30, pre=True)
    if cfg.pW != cfg.pG:
        a("s_setprio %d" % cfg.pG)
    stamp(9)

    def gload(n):
        mi = n % 5
        if mi == 0:
            setoff(sOA, sOAB, sORD2, n // 5, 4 * 10240)
        a("buffer_load_dwordx4 %s, v%d, %s, s%d offen offset:%d %s" % (v(STG2 + 4 * (n % NR2), 4), vFO, s(rWS, 4), sOA, 256 * mi, cfg.apol), tag="g%d" % n)

    for n in range(NR2):
        gload(n)
    vE2 = [8, 10, 11, 12, 13]
    def setup6():
        a("v_lshlrev_b32 v7, 4, v0")
        a("v_add_u32 v%d, s%d, v7" % (vE2[0], sWB))
        for k in range(1, 4):
            a("s_xor_b32 s%d, s%d, %d" % (sT0, sWV, k))
            a("s_mul_i32 s%d, s%d, %d" % (sT0, sT0, WSZ))
            a("s_add_u32 s%d, s%d, %d" % (sT0, sT0, WOFF))
            a("v_add_u32 v%d, s%d, v7" % (vE2[k], sT0))
        a("v_lshrrev_b32 v7, 2, v0")
        a("v_lshlrev_b32 v7, 7, v7")
        a("v_and_b32 v14, 3, v0")
        a("v_lshl_add_u32 v7, v14, 3, v7")
        a("s_lshl_b32 s%d, s%d, 5" % (sT0, sWV))
        a("s_add_u32 s%d, s%d, %d" % (sT0, sT0, RY))
        a("v_add_u32 v%d, s%d, v7" % (vE2[4], sT0))
    setup6()
    for i in range(12):
        wr = WREG2 + 16 * (i % 6)
        if i >= 6:
            need("q%d" % i)
            a.wait_lg("q%d" % i)
        for mi in range(5):
            n = 5 * i + mi
            nxt = a.capture(gload, n + NR2) if (n + NR2 < 60 and not cfg.noload) else []
            a.wait_vm("g%d" % n)
            for x, ni in enumerate((1, 2, 3, 0) if i == 11 else range(4)):
                acc = v(ACC2 + 20 * ni + 4 * mi, 4)
                if not cfg.nomfma or i == 0:
                    a("v_mfma_f32_16x16x32_bf16 %s, %s, %s, %s" % (acc, v(STG2 + 4 * (n % NR2), 4), v(wr + 4 * ni, 4), acc if (i or ni == 0) else "0"))
                if x < 3:
                    k = cfg.fillk
                    while len(nxt) > 1 and k:
                        a.play(nxt.pop(0)); k -= 1
                    fill(k)
                if i == 11 and mi >= 2 and x < 3:
                    a("ds_write_b128 v%d, %s offset:%d" % (vE2[0], v(ACC2 + 20 * (x + 1) + 4 * (mi - 2), 4), x * 5120 + (mi - 2) * 1024))
            for it in nxt:
                a.play(it)
        if i in (0, 5) and cfg.fine:
            stamp(28 + (i + 1) // 3)
        if i + 6 < 12:
            fifo += a.capture(tr_step, slot2(i + 6), wr, "q%d" % (i + 6))
    fill(1000)
    stamp(10)
    for q in (3, 4):
        for k in range(1, 4):
            a("ds_write_b128 v%d, %s offset:%d" % (vE2[0], v(ACC2 + 20 * k + 4 * q, 4), (k - 1) * 5120 + q * 1024))
    a.drain_lg()
    a("s_barrier")
    YR, TY, TP = WREG2 + 40, WREG2, WREG2 + 20
    for mi in range(5):
        a("ds_read_b64_tr_b16 %s, v%d offset:%d" % (v(YR + 2 * mi, 2), vE2[4], mi * 2048), tag="ya")
    for q in range(5):
        for k in range(1, 4):
            a("ds_read_b128 %s, v%d offset:%d" % (v(ACC2 + 20 * k + 4 * q, 4), vE2[k], (k - 1) * 5120 + q * 1024), tag="r%d" % q)
    a.wait_lg("ya")
    for k in range(10):
        a("v_lshlrev_b32 v%d, 16, v%d" % (TY + 2 * k, YR + k))
        a("v_and_b32 v%d, s%d, v%d" % (TY + 2 * k + 1, sMASK, YR + k))
    def pk2(d, x, y, n):
        for k in range(0, n, 2):
            a("v_pk_add_f32 %s, %s, %s" % (v(d + k, 2), v(x + k, 2), v(y + k, 2)))
    pk2(ACC2, ACC2, TY, 20)
    pol = (" " + cfg.out_pol) if cfg.out_pol else ""
    for (o, n, last) in ((0, 8, 1), (8, 8, 3), (16, 4, 4)):
        a.wait_lg("r%d" % last)
        pk2(ACC2 + o, ACC2 + o, ACC2 + 20 + o, n)
        pk2(ACC2 + 40 + o, ACC2 + 40 + o, ACC2 + 60 + o, n)
        pk2(ACC2 + o, ACC2 + o, ACC2 + 40 + o, n)
        for k in range(n // 2):
            a("v_cvt_pk_bf16_f32 v%d, v%d, v%d" % (TP + o // 2 + k, ACC2 + o + 2 * k, ACC2 + o + 2 * k + 1))
        if n == 8:
            a("buffer_store_dwordx4 %s, v%d, %s, s%d offen offset:%d%s" % (v(TP + o // 2, 4), vXO, s(rOUT, 4), sXO, 8 * o, pol))
        else:
            a("buffer_store_dwordx2 %s, v%d, %s, s%d offen offset:128%s" % (v(TP + 8, 2), vXO4, s(rOUT, 4), sXO, pol))
    stamp(11)
    if cfg.hold:
        a("s_waitcnt vmcnt(0)")
        a.label("L_hold")
        a("s_memrealtime s[100:101]")
        a("s_waitcnt lgkmcnt(0)")
        a("s_sub_u32 s100, s100, s98")
        a("s_cmp_lt_u32 s100, %d" % (cfg.hold * 100))
        a("s_cbranch_scc1 L_hold")
    finish()

    a.label("L_aux_main")
    a.vm = list(aux_vm); a.lg = []
    a("s_and_b32 s%d, s%d, 1" % (sT0, sJ))
    a("s_add_u32 s%d, s%d, s%d" % (sT0, sT0, sWV))
    a("s_cmp_ge_u32 s%d, 7" % sT0)
    a("s_cbranch_scc1 %s" % ("L_w6" if cfg.stouch else "L_aux_done"))
    F0 = 64
    a.wait_vm("p")
    for k in range(6):
        a("v_lshlrev_b32 v%d, 16, v%d" % (F0 + k, PRM0 + k))
        a("v_and_b32 v%d, s%d, v%d" % (F0 + 6 + k, sMASK, PRM0 + k))
        a("v_lshlrev_b32 v%d, 16, v%d" % (F0 + 12 + k, PRM1 + k))
    vDT, vDS = 82, 83
    a("v_lshlrev_b32 v%d, 16, v%d" % (vDT, vLDT))
    a("v_lshlrev_b32 v%d, 16, v%d" % (vDS, vDSK))
    a("v_mul_f32 v%d, %s, v%d" % (vDT, f32(math.log2(math.e)), vDT))
    a("v_exp_f32 v%d, v%d" % (vDT, vDT))
    bfround(vDT)
    a("s_setprio %d" % cfg.pK)
    stamp(3)

    E = {k: 84 + 2 * (k - 1) for k in range(1, 8)}
    P = {k: 98 + 2 * (k - 1) for k in range(1, 9)}
    Q, Q2 = 114, 116
    Y = [118, 120, 122, 124]
    TT = [126, 128, 130, 132]
    CV = list(range(134, 142))
    YFR, XFR, DK = 144, 160, 208
    vFA = 220
    cvi = [0]
    def cmul1(d, x, y):
        a("v_pk_mul_f32 %s, %s, %s op_sel:[0,0] op_sel_hi:[0,1]" % (v(d, 2), v(x, 2), v(y, 2)))
    def cmul2(d, x, y):
        a("v_pk_fma_f32 %s, %s, %s, %s op_sel:[1,1,0] op_sel_hi:[1,0,1] neg_lo:[1,0,0]" % (v(d, 2), v(x, 2), v(y, 2), v(d, 2)))
    def put(r, row, neg=False):
        c = CV[cvi[0] % 8]; cvi[0] += 1
        a("v_cvt_pk_bf16_f32 v%d, v%d, %sv%d" % (c, r, "-" if neg else "", r + 1))
        return ("w", c, row)
    def wr(c, row):
        if not cfg.nokw:
            a("ds_write_addtid_b32 v%d offset:%d" % (c, row * 288))
    def group(ops):
        for d, x, y, row, neg in ops:
            cmul1(d, x, y)
        for d, x, y, row, neg in ops:
            cmul2(d, x, y)
        pend = []
        for d, x, y, row, neg in ops:
            if row is not None:
                pend.append(put(d, row, neg))
        for _, c, row in pend:
            wr(c, row)

    a("s_mov_b32 m0, s%d" % sRB)
    a("v_and_b32 v1, 15, v0")
    a("v_mul_u32_u24 v1, 288, v1")
    a("v_and_b32 v%d, 48, v0" % vFA)
    a("v_add3_u32 v%d, v%d, v1, s%d" % (vFA, vFA, sRB))
    for k in range(12):
        a("v_mov_b32 v%d, 0" % (DK + k))
    a("v_mov_b32 v143, 0x3f80")
    a("s_mov_b32 s%d, 3" % sT3)
    a.label("L_kgen")
    a.lg = []
    a("v_pk_mul_f32 v[126:127], v[64:65], v[82:83] op_sel_hi:[1,0]")
    a("v_pk_mul_f32 v[128:129], v[66:67], v[82:83] op_sel_hi:[1,0]")
    a("v_mul_f32 v126, %s, v126" % f32(math.log2(math.e)))
    a("v_mul_f32 v127, 0.15915494, v127")
    cmul1(Y[0], 68, 128)
    anchors = [(E[1], 1.0), (Q, 8.0), (P[1], 128.0)]
    for idx, (d, k) in enumerate(anchors):
        m_, f_ = 134 + 2 * idx, 135 + 2 * idx
        if k == 1.0:
            a("v_exp_f32 v%d, v126" % m_)
            a("v_fract_f32 v%d, v127" % f_)
        else:
            a("v_mul_f32 v%d, %s, v126" % (m_, f32(k)))
            a("v_mul_f32 v%d, %s, v127" % (f_, f32(k)))
            a("v_exp_f32 v%d, v%d" % (m_, m_))
            a("v_fract_f32 v%d, v%d" % (f_, f_))
    cmul2(Y[0], 68, 128)
    for idx, (d, k) in enumerate(anchors):
        a("v_cos_f32 v%d, v%d" % (d, 135 + 2 * idx))
        a("v_sin_f32 v%d, v%d" % (d + 1, 135 + 2 * idx))
    for idx, (d, k) in enumerate(anchors):
        a("v_pk_mul_f32 %s, %s, %s op_sel_hi:[1,0]" % (v(d, 2), v(d, 2), v(134 + 2 * idx, 2)))
    for k in range(12):
        a("v_mov_b32 v%d, v%d" % (F0 + k, F0 + 6 + k))
    YR0 = 25
    wr(143, 0)
    p_ = [put(Y[0], YR0, True), put(E[1], 1), put(P[1], 8)]
    for _, c, row in p_:
        wr(c, row)
    group([(Y[1], Y[0], Q, YR0 + 1, True), (Q2, Q, Q, None, False), (E[2], E[1], E[1], 2, False), (P[2], P[1], P[1], 16, False)])
    group([(Y[2], Y[0], Q2, YR0 + 2, True), (Y[3], Y[1], Q2, YR0 + 3, True), (E[3], E[2], E[1], 3, False), (E[4], E[2], E[2], 4, False)])
    group([(Y[0], Y[2], Q2, YR0 + 4, True), (Y[1], Y[3], Q2, YR0 + 5, True), (E[5], E[4], E[1], 5, False), (E[6], E[4], E[2], 6, False)])
    group([(Y[2], Y[0], Q2, YR0 + 6, True), (Y[3], Y[1], Q2, YR0 + 7, True), (E[7], E[4], E[3], 7, False), (P[3], P[2], P[1], 20, False)])
    group([(Y[0], Y[2], Q2, YR0 + 8, True), (Y[1], Y[3], Q2, YR0 + 9, True), (TT[0], P[1], E[1], 9, False), (TT[1], P[1], E[2], 10, False)])
    group([(Y[2], Y[0], Q2, YR0 + 10, True), (Y[3], Y[1], Q2, YR0 + 11, True), (TT[0], P[1], E[3], 11, False), (TT[1], P[1], E[4], 12, False)])
    group([(Y[0], Y[2], Q2, YR0 + 12, True), (Y[1], Y[3], Q2, YR0 + 13, True), (TT[0], P[1], E[5], 13, False), (TT[1], P[1], E[6], 14, False)])
    group([(Y[2], Y[0], Q2, YR0 + 14, True), (Y[3], Y[1], Q2, YR0 + 15, True), (TT[0], P[1], E[7], 15, False), (P[4], P[2], P[2], 24, False)])
    for st in range(4):
        a("ds_read_b128 %s, v%d offset:%d" % (v(YFR + 4 * st, 4), vFA, YR0 * 288 + 64 * st), tag="yf")
    for st in range(4):
        a("ds_read_b128 %s, v%d offset:%d" % (v(XFR + 4 * st, 4), vFA, 64 * st), tag="x0")
    group([(TT[0], P[2], E[2], 17, False), (TT[1], P[2], E[4], 18, False), (TT[2], P[2], E[6], 19, False), (P[5], P[4], P[1], 26, False)])
    group([(TT[0], P[3], E[2], 21, False), (TT[1], P[3], E[4], 22, False), (TT[2], P[3], E[6], 23, False), (P[6], P[4], P[2], 28, False)])
    a.wait_lg("x0")
    for st in range(4):
        a("v_mfma_f32_16x16x32_bf16 %s, %s, %s, %s" % (v(DK, 4), v(XFR + 4 * st, 4), v(YFR + 4 * st, 4), v(DK, 4)))
    group([(P[7], P[4], P[3], 30, False), (P[8], P[4], P[4], 32, False), (TT[0], P[4], E[4], 25, False), (TT[1], P[5], E[4], 27, False)])
    group([(TT[0], P[6], E[4], 29, False), (TT[1], P[7], E[4], 31, False), (TT[2], P[8], P[1], 33, False), (TT[3], P[8], P[2], 34, False)])
    for st in range(4):
        a("ds_read_b128 %s, v%d offset:%d" % (v(XFR + 16 + 4 * st, 4), vFA, 16 * 288 + 64 * st), tag="x1")
    group([(TT[0], P[8], P[3], 35, False), (TT[1], P[8], P[4], 36, False), (TT[2], P[8], P[5], 37, False)])
    group([(TT[0], P[8], P[6], 38, False), (TT[1], P[8], P[7], 39, False), (TT[2], P[8], P[8], 40, False)])
    for st in range(4):
        a("ds_read_b128 %s, v%d offset:%d" % (v(XFR + 32 + 4 * st, 4), vFA, 32 * 288 + 64 * st), tag="x2")
    a.wait_lg("x1")
    for st in range(4):
        a("v_mfma_f32_16x16x32_bf16 %s, %s, %s, %s" % (v(DK + 4, 4), v(XFR + 16 + 4 * st, 4), v(YFR + 4 * st, 4), v(DK + 4, 4)))
    a.wait_lg("x2")
    for st in range(4):
        a("v_mfma_f32_16x16x32_bf16 %s, %s, %s, %s" % (v(DK + 8, 4), v(XFR + 32 + 4 * st, 4), v(YFR + 4 * st, 4), v(DK + 8, 4)))
    a("s_sub_u32 s%d, s%d, 1" % (sT3, sT3))
    a("s_cmp_lg_u32 s%d, 0" % sT3)
    a("s_cbranch_scc1 L_kgen")
    a.drain_vm()
    stamp(4)
    a("v_and_b32 v16, 15, v0")
    a("v_lshrrev_b32 v17, 4, v0")
    a("s_add_u32 s%d, s%d, %d" % (sT0, sRB, TB_OFF))
    a("v_lshrrev_b32 v18, 1, v17")
    a("v_lshlrev_b32 v18, 7, v18")
    a("v_and_b32 v19, 1, v17")
    a("v_lshl_add_u32 v18, v19, 2, v18")
    a("v_lshl_add_u32 v18, v16, 3, v18")
    a("v_lshl_add_u32 v18, v18, 2, s%d" % sT0)
    a("v_lshlrev_b32 v19, 2, v16")
    a("v_lshlrev_b32 v20, 1, v16")
    a("v_cmp_gt_u32 vcc, 2, v17")
    a("v_cndmask_b32 v19, v20, v19, vcc")
    a("v_lshl_add_u32 v19, v17, 6, v19")
    a("v_lshl_add_u32 v19, v19, 2, s%d" % sT0)
    a("v_mov_b32 v20, 128")
    a("v_cndmask_b32 v20, v20, 8, vcc")
    a("v_add_u32 v20, v19, v20")
    a("v_lshl_add_u32 v21, v17, 6, v16")
    a("v_lshl_add_u32 v21, v21, 2, s%d" % sT0)
    a("v_lshlrev_b32 v22, 4, v0")
    a("v_add_u32 v22, %d, v22" % ZP_OFF)
    a("v_mov_b32 v23, 4096")
    a("v_cmp_gt_u32 vcc, 15, v0")
    a("v_cndmask_b32 v22, v23, v22, vcc")
    a("v_add_u32 v22, s%d, v22" % sRB)
    for k in range(4):
        a("v_mov_b32 v%d, 0" % (24 + k))
    a("ds_write_b128 v22, v[24:27]")
    a("ds_write_b128 v18, %s" % v(DK, 4))
    a("ds_write_b64 v19, %s offset:1024" % v(DK + 4, 2))
    a("ds_write_b64 v20, %s offset:1024" % v(DK + 6, 2))
    for r in range(4):
        a("ds_write_b32 v21, v%d offset:%d" % (DK + 8 + r, 2048 + 64 * r))
    a("v_lshl_add_u32 v18, v0, 4, s%d" % sT0)
    a("v_lshl_add_u32 v19, v0, 3, s%d" % sT0)
    a("v_subrev_u32 v20, 4, v18")
    a("v_subrev_u32 v21, 4, v19")
    a("v_cmp_eq_u32 vcc, 0, v0")
    a("v_cndmask_b32 v21, v19, v21, vcc")
    a("ds_read_b128 v[28:31], v18", tag="s0")
    a("ds_read_b32 v32, v20", tag="s0")
    a("ds_read_b64 v[34:35], v19 offset:1024", tag="s1")
    a("ds_read_b32 v36, v19 offset:1032", tag="s1")
    a("ds_read_b32 v37, v21 offset:1024", tag="s1")
    a("ds_read_b64 v[38:39], v19 offset:1536", tag="s2")
    a("ds_read_b32 v40, v19 offset:1544", tag="s2")
    a("ds_read_b64 v[42:43], v19 offset:2048", tag="s3")
    a("ds_read_b32 v44, v19 offset:2056", tag="s3")
    a("v_lshlrev_b32 v22, 3, v0")
    a("v_sub_u32 v22, s%d, v22" % sRB)
    a("v_lshlrev_b32 v23, 4, v0")
    a("v_sub_u32 v23, s%d, v23" % sRB)
    a("v_lshlrev_b32 v24, 5, v0")
    a("v_sub_u32 v24, s%d, v24" % sRB)
    a("v_add_u32 v22, %d, v22" % (4096 - 512 - 8))
    a("v_add_u32 v23, %d, v23" % (4096 - 1024 - 16))
    a("v_add_u32 v24, %d, v24" % (4096 - 2048 - 32))
    def pk(d, lo, hi):
        a("v_cvt_pk_bf16_f32 v%d, v%d, v%d" % (d, lo, hi))
    a("v_cndmask_b32 v33, 0, v%d, vcc" % vDS)
    a.wait_lg("s0")
    a("v_add_f32 v28, v28, v33")
    pk(48, 31, 30); pk(49, 29, 28); pk(50, 30, 29); pk(51, 28, 32)
    a("ds_write_b64 v22, v[48:49] offset:512")
    a("ds_write_b64 v22, v[50:51] offset:%d" % (512 + KB_OFF))
    a.wait_lg("s1")
    pk(52, 36, 35); pk(53, 34, 34); pk(54, 35, 34); pk(55, 34, 37)
    a("ds_write_b64 v22, v[52:53]")
    a("ds_write_b64 v22, v[54:55] offset:%d" % KB_OFF)
    a.wait_lg("s2")
    A_, B_, C_ = 38, 39, 40
    pk(56, C_, C_); pk(57, B_, B_); pk(58, B_, A_); pk(59, A_, A_)
    pk(60, C_, B_); pk(61, B_, B_); pk(62, A_, A_); pk(63, A_, A_)
    a("ds_write_b128 v23, v[56:59]")
    a("ds_write_b128 v23, v[60:63] offset:%d" % KB_OFF)
    a.wait_lg("s3")
    A_, B_, C_ = 42, 43, 44
    seqA = [(C_, C_), (C_, C_), (B_, B_), (B_, B_), (B_, B_), (B_, A_), (A_, A_), (A_, A_)]
    seqB = [(C_, C_), (C_, B_), (B_, B_), (B_, B_), (B_, B_), (A_, A_), (A_, A_), (A_, A_)]
    for k, (lo, hi) in enumerate(seqA):
        pk(64 + k, lo, hi)
    for k, (lo, hi) in enumerate(seqB):
        pk(72 + k, lo, hi)
    a("ds_write_b128 v24, v[64:67]")
    a("ds_write_b128 v24, v[68:71] offset:16")
    a("ds_write_b128 v24, v[72:75] offset:%d" % KB_OFF)
    a("ds_write_b128 v24, v[76:79] offset:%d" % (KB_OFF + 16))
    stamp(5)
    a.drain_lg()
    a("s_setprio 0")
    lds_arrive(20, 8, 9)
    vUA, vKA = 10, 11
    a("v_and_b32 v12, 15, v0")
    a("v_lshrrev_b32 v13, 4, v0")
    a("v_lshlrev_b32 v13, 1, v13")
    a("v_sub_u32 v12, v12, v13")
    a("v_lshlrev_b32 v12, 4, v12")
    a("s_add_u32 s%d, s%d, %d" % (sT1, sRB, U_OFF - 128))
    a("v_add_u32 v%d, s%d, v12" % (vUA, sT1))
    a("v_lshrrev_b32 v12, 1, v0")
    a("v_lshlrev_b32 v12, 2, v12")
    a("v_and_b32 v13, 1, v0")
    a("v_mul_u32_u24 v13, %d, v13" % KB_OFF)
    a("v_add_u32 v12, v12, v13")
    a("s_add_u32 s%d, s%d, %d" % (sT1, sRB, KB_OFF + 4092 - 128 - 768))
    a("v_sub_u32 v%d, s%d, v12" % (vKA, sT1))
    for g in range(1, 4):
        a("v_subrev_u32 v%d, %d, v%d" % (vKA + g, 1024 * g, vKA))
    AC, KF, UF, NU = 16, 80, 208, 8
    for idx in range(32):
        c, tau = idx >> 4, idx & 15
        o = 192 - 64 * (tau & 3) + 32 * (1 - c)
        r = KF + 4 * idx
        a("ds_read2_b32 %s, v%d offset0:%d offset1:%d" % (v(r, 2), vKA + (tau >> 2), o, o + 1))
        a("ds_read2_b32 %s, v%d offset0:%d offset1:%d" % (v(r + 2, 2), vKA + (tau >> 2), o + 2, o + 3))
    a("v_and_b32 v4, 15, v0")
    a("v_lshlrev_b32 v4, 4, v4")
    a("v_lshrrev_b32 v5, 5, v0")
    a("v_lshl_add_u32 v4, v5, 11, v4")
    a("v_bfe_u32 v5, v0, 4, 1")
    a("v_lshl_add_u32 v4, v5, 8, v4")
    group_ids(5, 6, sX, 7)
    a("v_mov_b32 v6, %d" % CNT)
    lds_wait(24, 1, 8, 9, sleep=1)
    stamp(7)
    if cfg.cprio:
        a("s_setprio %d" % cfg.cprio)
    seq = []
    for c in range(2):
        for q in range(8):
            seq += [(c, q), (c, 15 - q)]
    def uread(n):
        c, mu = seq[n]
        a("ds_read_b128 %s, v%d offset:%d" % (v(UF + 4 * (n % NU), 4), vUA, 128 * (1 - c) + 256 * mu), tag="U%d" % n)
    for n in range(NU - 2):
        uread(n)
    stubs = []
    for n in range(32):
        c, mu = seq[n]
        if n % 2 == 0:
            if cfg.pause and n:
                a.wait_lg("pz")
                if cfg.pth > 1:
                    a("v_sub_u32 v8, v8, v9")
                    a("v_cmp_le_u32 vcc, %d, v8" % cfg.pth)
                else:
                    a("v_cmp_ne_u32 vcc, v8, v9")
                a("s_cbranch_vccnz L_pz%d" % n)
                a.label("L_np%d" % n)
                stubs.append(n)
            if cfg.pause and n < 30:
                a("ds_read2_b32 v[8:9], v6 offset0:0 offset1:7", tag="pz")
            for k in (n + NU - 2, n + NU - 1):
                if k < 32:
                    uread(k)
        a.wait_lg("U%d" % n)
        for tau in range(16 - mu):
            acc = v(AC + 4 * (tau + mu), 4)
            if not cfg.noconv or n == 0:
                a("v_mfma_f32_16x16x32_bf16 %s, %s, %s, %s" % (acc, v(KF + 4 * (16 * c + tau), 4), v(UF + 4 * (n % NU), 4), acc if n else "0"))
    stamp(8)
    if cfg.eprio != cfg.cprio:
        a("s_setprio %d" % cfg.eprio)
    CY = 100
    for r in range(4):
        a("v_mov_b32 v%d, 0" % (CY + r))
    for m in range(8):
        for r in range(4):
            a("v_permlane32_swap_b32 v%d, v%d" % (AC + 4 * m + r, AC + 32 + 4 * m + r))
    for r in range(4):
        a("v_mov_b32 v%d, v%d" % (CY + 4 + r, AC + 32 + 28 + r))
    for m in range(8):
        for r in range(4):
            L_ = AC + 4 * m + r
            a("v_add_f32_dpp v%d, v%d, v%d row_shr:1 row_mask:0xf bank_mask:0xf bound_ctrl:0" % (L_, AC + 32 + 4 * m + r, L_))
        if m == 0:
            for r in range(4):
                a("v_permlane32_swap_b32 v%d, v%d" % (CY + r, CY + 4 + r))
    for m in range(8):
        for r in range(4):
            L_ = AC + 4 * m + r
            prev = (AC + 32 + 4 * (m - 1) + r) if m else (CY + r)
            a("v_add_f32_dpp v%d, v%d, v%d row_shl:15 row_mask:0xf bank_mask:0xf bound_ctrl:0" % (L_, prev, L_))
    TP2 = 108
    for k in range(16):
        a("v_cvt_pk_bf16_f32 v%d, v%d, v%d" % (TP2 + k, AC + 2 * k, AC + 2 * k + 1))
    for mp in range(4):
        a("v_permlane16_swap_b32 v%d, v%d" % (TP2 + 4 * mp, TP2 + 4 * mp + 2))
        a("v_permlane16_swap_b32 v%d, v%d" % (TP2 + 4 * mp + 1, TP2 + 4 * mp + 3))
    a("s_lshl_b32 s%d, s%d, 12" % (sT0, sPOS))
    a("s_add_u32 s%d, s%d, 0x%x" % (sT0, sT0, YA))
    for mp in range(4):
        a("buffer_store_dwordx4 %s, v4, %s, s%d offen offset:%d sc1" % (v(TP2 + 4 * mp, 4), s(rWS, 4), sT0, 512 * mp))
    if cfg.ssig:
        a("s_lshl_b32 s%d, s%d, 10" % (sT1, sX))
        a("s_add_u32 s%d, s%d, 0x%x" % (sT1, sT1, YC))
        if cfg.ywg:
            assert not cfg.ln4
            a("v_mov_b32 v12, %d" % (CNT + 8))
            a("v_mov_b32 v13, 1")
            a("s_and_b32 s%d, s%d, 1" % (sT2, sJ))
        a.drain_vm()
        if cfg.ywg:
            a("s_mov_b64 exec, 1")
            a("ds_add_rtn_u32 v13, v12, v13")
            a("s_mov_b64 exec, -1")
            a.drain_lg()
            a("v_readfirstlane_b32 s%d, v13" % sT0)
            a("s_add_u32 s%d, s%d, s%d" % (sT0, sT0, sT2))
            a("s_cmp_lg_u32 s%d, 2" % sT0)
            a("s_cbranch_scc1 L_aux_done")
        sig8(sT1, 128)
    else:
        a("s_mov_b32 s%d, 0x%x" % (sT1, YC))
        a.drain_vm()
        group_add(5, sT1, 13)
    stamp(9)
    a.label("L_aux_done")
    finish()
    for n in stubs:
        a.label("L_pz%d" % n)
        a("s_mov_b32 s%d, 0x%x" % (sCNT, cfg.spin * 64))
        a.label("L_pl%d" % n)
        a("s_sleep 1")
        a("ds_read2_b32 v[8:9], v6 offset0:0 offset1:7")
        a("s_sub_u32 s%d, s%d, 1" % (sCNT, sCNT))
        a("s_cbranch_scc1 L_np%d" % n)
        a.drain_lg()
        a("v_cmp_ne_u32 vcc, v8, v9")
        a("s_cbranch_vccnz L_pl%d" % n)
        a("s_branch L_np%d" % n)

    if cfg.stouch:
        a.label("L_w6")
        a("s_lshr_b32 s%d, s%d, 1" % (sT0, sJ))
        a("s_mul_i32 s%d, s%d, %d" % (sT0, sT0, 96 * 4096))
        a("s_lshl_b32 s%d, s%d, 9" % (sT1, sX))
        a("s_add_u32 s%d, s%d, s%d" % (sT0, sT0, sT1))
        a("s_add_u32 s14, s%d, s%d" % (pW2, sT0))
        a("s_addc_u32 s15, s%d, 0" % (pW2 + 1))
        a("s_mov_b32 s%d, 24" % sCNT)
        a.label("L_w6l")
        for r in range(4):
            for c in range(4):
                a("s_load_dword s%d, s[14:15], 0x%x" % (76 + (4 * r + c) % 8, r * 4096 + c * 128))
            if cfg.stouch == 2:
                a("s_waitcnt lgkmcnt(8)")
        a("s_add_u32 s14, s14, %d" % (4 * 4096))
        a("s_addc_u32 s15, s15, 0")
        a("s_sub_u32 s%d, s%d, 1" % (sCNT, sCNT))
        a("s_cmp_lg_u32 s%d, 0" % sCNT)
        a("s_cbranch_scc1 L_w6l")
        stamp(9)
        a("s_branch L_aux_done")
    a.label("L_w7")
    a.vm = []; a.lg = []
    tile_math()
    a("s_setprio %d" % cfg.uprio)
    if cfg.w7mb:
        a("s_lshl_b32 s%d, s%d, 10" % (sT1, sID))
        a("s_add_u32 s%d, s%d, 0x%x" % (sT1, sT1, MB))
        a("s_add_u32 s14, s%d, s%d" % (pWS, sT1))
        a("s_addc_u32 s15, s%d, 0" % (pWS + 1))
        a("s_mov_b32 s%d, %d" % (sCNT, cfg.spin * 2))
        a.label("L_p4")
        for k in range(4):
            a("s_load_dword s%d, s[14:15], %d glc" % (sD[k], 128 * k))
        a("s_waitcnt lgkmcnt(0)"); a.lg = []
        for k in range(4):
            a("s_xor_b32 s%d, s%d, s%d" % (sD[k], sD[k], sTAG))
        a("s_or_b32 s%d, s%d, s%d" % (sD[0], sD[0], sD[1]))
        a("s_or_b32 s%d, s%d, s%d" % (sD[2], sD[2], sD[3]))
        a("s_or_b32 s%d, s%d, s%d" % (sD[0], sD[0], sD[2]))
        a("s_cbranch_scc0 L_p4ok")
        a("s_sleep 2")
        a("s_sub_u32 s%d, s%d, 1" % (sCNT, sCNT))
        a("s_cmp_lg_u32 s%d, 0" % sCNT)
        a("s_cbranch_scc1 L_p4")
        a.label("L_p4ok")
    else:
        lds_wait(12, 4, 10, 11, sleep=2)
    stamp(5)
    def touch_w2():
        sh = 2 if cfg.map2 == 8 else 3
        a("v_lshrrev_b32 v10, %d, v0" % sh)
        a("v_lshlrev_b32 v10, 12, v10")
        a("v_and_b32 v11, %d, v0" % ((1 << sh) - 1))
        a("v_lshl_add_u32 v10, v11, 7, v10")
        a("s_mul_i32 s%d, s%d, %d" % (sT1, sJ, 48 * 4096))
        if cfg.map2 == 8:
            a("s_lshl_b32 s%d, s%d, 9" % (sT2, sX))
        else:
            a("s_lshr_b32 s%d, s%d, 1" % (sT2, sX))
            a("s_lshl_b32 s%d, s%d, 10" % (sT2, sT2))
        a("s_add_u32 s%d, s%d, s%d" % (sT1, sT1, sT2))
        n = 3 if cfg.map2 == 8 else 6
        for k in range(n):
            a("buffer_load_dword v%d, v10, %s, s%d offen %s" % (100 + k, s(rW2, 4), sT1, cfg.t2pol))
            a("s_add_u32 s%d, s%d, %d" % (sT1, sT1, (64 >> sh) * 4096))
            if cfg.t2gap:
                a.drain_vm()
    if cfg.touch2 == 1 or cfg.refresh:
        sv = cfg.t2pol
        if cfg.refresh:
            cfg.t2pol = ''
        touch_w2()
        cfg.t2pol = sv
    a("s_cmp_lg_u32 s%d, 0" % sID)
    a("s_cbranch_scc1 L_noE")
    a("s_mov_b32 s%d, 0x%x" % (sT0, EW))
    flag_store(sT0, 12, 13)
    a.label("L_noE")
    if cfg.late:
        a("s_cmp_ge_u32 s%d, 30" % sJ)
        a("s_cbranch_scc1 L_w7_nl")
        lds_wait(28 if cfg.late == 1 else 0, 4 if cfg.late == 1 else 1, 10, 11, sleep=4)
        a.label("L_w7_nl")
    a("v_lshrrev_b32 v8, 2, v0")
    a("v_and_b32 v9, 3, v0")
    a("v_mul_u32_u24 v10, 10240, v8")
    a("v_lshl_add_u32 v10, v9, 4, v10")
    a("v_mul_u32_u24 v11, %d, v9" % S)
    a("v_lshl_add_u32 v11, v8, 4, v11")
    a("s_lshl_b32 s%d, s%d, 4" % (sT1, sPOS))
    a("s_add_u32 s%d, s%d, 0x%x" % (sT1, sT1, XB))
    a("s_and_b32 s%d, s%d, 1" % (sT3, sJ))
    a("s_cmp_eq_u32 s%d, 0" % sT3)
    a("s_mov_b32 s%d, 0x33333333" % sT2)
    a("s_cselect_b32 s14, 0x77777777, s%d" % sT2)
    a("s_mov_b32 s15, s14")
    a("s_mov_b64 exec, s[14:15]")
    for k in range(16):
        a("buffer_load_dwordx4 %s, v10, %s, s%d offen sc1" % (v(16 + 4 * k, 4), s(rWS, 4), sT1), tag="u%d" % k)
        if k < 15:
            a("s_add_u32 s%d, s%d, %d" % (sT1, sT1, 16 * 10240))
    a("s_mov_b64 exec, -1")
    lds_arrive_n = None
    a("v_mov_b32 v12, %d" % (CNT + 20))
    a("v_mov_b32 v13, s%d" % sT3)
    a("s_mov_b64 exec, 1")
    a("ds_add_u32 v12, v13")
    a("s_mov_b64 exec, -1")
    lds_wait(20, 3, 12, 13, sleep=2)
    a("s_mov_b64 exec, s[14:15]")
    for k in range(16):
        a.wait_vm("u%d" % k)
        a("ds_write_b128 v11, %s offset:%d" % (v(16 + 4 * k, 4), U_OFF + 256 * k))
    a("s_mov_b64 exec, -1")
    a.drain_lg()
    lds_arrive(24, 12, 13)
    stamp(9)
    if cfg.ywait:
        a("s_cmp_ge_u32 s%d, 30" % sJ)
        a("s_cbranch_scc1 L_yw")
        lds_wait(28, 4, 10, 11, sleep=8)
        a.label("L_yw")
    if cfg.ssig:
        a("s_and_b32 s%d, s%d, 63" % (sT1, sID))
        a("s_lshl_b32 s%d, s%d, 7" % (sT1, sT1))
    else:
        a("s_lshl_b32 s%d, s%d, 7" % (sT1, sID))
    a("s_add_u32 s%d, s%d, 0x%x" % (sT1, sT1, YC))
    spoll(sT1, cfg.ysleep, target=32 if (cfg.ywg and cfg.ssig) else 80)
    stamp(6)
    a("v_lshrrev_b32 v8, 3, v0")
    a("v_lshlrev_b32 v8, 12, v8")
    a("v_and_b32 v9, 7, v0")
    a("v_lshl_add_u32 v8, v9, 4, v8")
    a("s_mul_i32 s%d, s%d, %d" % (sT0, sDT2, 80 * 4096))
    a("s_lshl_b32 s%d, s%d, 7" % (sT1, sST))
    a("s_add_u32 s%d, s%d, s%d" % (sT0, sT0, sT1))
    a("s_add_u32 s%d, s%d, 0x%x" % (sT0, sT0, YA))
    for k in range(10):
        a("buffer_load_dwordx4 %s, v8, %s, s%d offen sc1" % (v(16 + 4 * k, 4), s(rWS, 4), sT0), tag="y%d" % k)
        if k < 9:
            a("s_add_u32 s%d, s%d, %d" % (sT0, sT0, 8 * 4096))
    for k in range(10):
        a.wait_vm("y%d" % k)
        a("ds_write_b128 v2, %s offset:%d" % (v(16 + 4 * k, 4), RY + 1024 * k))
    stamp(7)
    finish()
    a.label("L_exit")
    a("s_endpgm")
    a.label("L_code_end")
    return a

HEADER = open("cdna_kernels/%s.s.ref" % NAME).read().split("; Override launch")[0]

def full(cfg):
    a = gen(cfg)
    out = HEADER
    out += "; @launch grid=(256,1,1) block=(512,1,1) lds=%d\n" % LDS_BYTES
    out += '.amdgcn_target "amdgcn-amd-amdhsa--gfx950"\n.text\n.globl %s_kernel\n.p2align 8\n.type %s_kernel,@function\n' % (NAME, NAME)
    out += a.text()
    out += """.section .rodata,"a"
.p2align 6
.amdhsa_kernel %s_kernel
  .amdhsa_next_free_vgpr 256
  .amdhsa_next_free_sgpr 102
  .amdhsa_accum_offset 256
  .amdhsa_group_segment_fixed_size 0
  .amdhsa_kernarg_size 136
  .amdhsa_user_sgpr_count 2
  .amdhsa_user_sgpr_kernarg_segment_ptr 1
  .amdhsa_system_sgpr_workgroup_id_x 1
  .amdhsa_float_denorm_mode_32 3
.end_amdhsa_kernel
""" % NAME
    return out, a

if __name__ == "__main__":
    cfg = Cfg()
    outp = "cdna_kernels/%s.s" % NAME
    for arg in sys.argv[1:]:
        k, val = arg.split("=")
        if k == "out":
            outp = val
        else:
            cur = getattr(cfg, k)
            setattr(cfg, k, val if isinstance(cur, str) else (bool(int(val)) if isinstance(cur, bool) else int(val)))
    txt, a = full(cfg)
    open(outp, "w").write(txt)
    print("wrote", outp, "instr", a.ninst, "pad states", a.npad)
```

```python
import sys, struct, math
from asmlib import Asm, v, s

NAME = "parallel_sum__ssm_conv_s4__mixer_token_mlp__prompt"

def f32(x):
    return "0x%08x" % struct.unpack("<I", struct.pack("<f", x))[0]

class Cfg:
    ts = False
    spin = 32768
    depth1 = 2
    depth2 = 2
    out_pol = ""
    stop = 99
    xpol = ''
    ppol = ''
    tpol = ''
    t2pol = ''
    map8 = 1
    map1 = 8
    map2 = 8
    t2gap = 0
    late = 0
    fsh = 7
    touch1 = 0
    xtl = 1
    kprio = 1
    pre1 = 0
    touch2 = 0
    tdep = 1
    exactln = 1
    xnlate = 0
    xnat = 2
    NT = 10
    helper = 0
    skip2 = 0
    skip1 = 0
    noya = 0
    fake = 0
    ysync = 0
    ng1 = 10
    P1 = 15
    pK = 1
    pP = 0
    pG = 2
    pW = 2
    ywg = 1
    stouch = 0
    ywait = 1
    ssig = 1
    pbal = 0
    pth = 1
    ln4 = 0
    w7mb = 1
    e0at = 55
    nr1 = 12
    nr2 = 16
    noxn = 0
    hold = 0
    hx = -1
    fillk = 1
    noload = 0
    xm1 = 2
    fm1 = 0
    xm2 = 3
    fm2 = 0
    nokw = 0
    nopk = 0
    cprio = 0
    eprio = 0
    lateb = 0
    nagg = 8
    wrot1 = 1
    wrot2 = 1
    prea = 0
    preb = 1
    prec = 0
    swz = 0
    fine = 1
    c8k = 13
    uprio = 3
    refresh = 0
    e1 = 2
    e0 = 2
    nt1 = 0
    nt2 = 0
    pause = 1
    psleep = 0
    asleep = 0
    badmap = False
    dbg = False
    dbgw = 8
    nomfma = False
    apol = 'sc1'
    noadv = False
    noconv = False
    rotm1 = 0
    rotk1 = 0
    rotm2 = 0
    rotk2 = 0
    nsh1 = 1
    sub1 = 2
    nsh2 = 1
    sub2 = 2
    rot3 = 0
    ysleep = 2

HB, XB, GB, YA = 0, 0x280000, 0x500000, 0x700000
FL = 0xA00000
HF, XF, GF, YF, EW = FL, FL + 0x10000, FL + 0x20000, FL + 0x40000, FL + 0x60000
XF2 = FL + 0x20000
MB, YC = FL + 0x80000, FL + 0x10000
TSO = 0xB00000
WS_BYTES = 0xC00000
S = 12576
RY = 3 * S
CNT = RY + 10240
BIA = CNT + 64
WOFF = 49152
WSZ = 28672
LDS_BYTES = 163840
KB_OFF, ZP_OFF, U_OFF = 4160, 8256, 8480
TB_OFF = U_OFF + 16
sID, sWV, sX, sJ, sTAG = 2, 3, 4, 5, 6
pX, pARE, pAIM, pBRE, pBIM, pCRE, pCIM, pLDT, pDSK, pBX, pW1, pB1, pW2, pB2, pOUT, pDBG, pWS = [16 + 2 * i for i in range(17)]
rWS, rX, rW1, rW2, rOUT, rCODE = 52, 56, 60, 64, 68, 72
rB = rCODE
sDT, sFT, sDT2, sST, sWB = 76, 77, 78, 79, 80
sOW, sOWB, sOWE = 81, 82, 83
sOA, sOAB, sOAE = 84, 85, 86
sD = [87, 88, 89, 90]
sT0, sT1, sT2, sT3 = 8, 9, 10, 11
sCNT = 12
sORD1, sORD2 = (50, 51), (91, 92)
sPOS, sCH, sRB = 93, 94, 95
sMASK = 13
vL, vTS = 0, 15

def gen(cfg):
    a = Asm()
    nts = [0]
    def stamp(idx):
        if cfg.hx == idx and cfg.hold and stamp.gemm:
            a("s_memrealtime s[100:101]")
            a("s_waitcnt lgkmcnt(0)"); a.lg = []
            a("s_sub_u32 s99, s100, s98")
        if not cfg.ts:
            return
        a("s_memrealtime s[98:99]")
        a("s_waitcnt lgkmcnt(0)"); a.lg = []
        a("v_writelane_b32 v%d, s98, %d" % (vTS, idx))
        if idx in (0, 4, 5, 9, 10, 11):
            a("s_memtime s[98:99]")
            a("s_waitcnt lgkmcnt(0)")
            a("v_writelane_b32 v%d, s98, %d" % (vTS, 48 + idx))

    stamp.gemm = True
    def finish():
        if cfg.ts:
            a("s_lshl_b32 s%d, s%d, 3" % (sT0, sID))
            a("s_add_u32 s%d, s%d, s%d" % (sT0, sT0, sWV))
            a("s_lshl_b32 s%d, s%d, 8" % (sT0, sT0))
            a("s_add_u32 s%d, s%d, 0x%x" % (sT0, sT0, TSO))
            a("v_lshlrev_b32 v1, 2, v%d" % vL)
            a("buffer_store_dword v%d, v1, %s, s%d offen" % (vTS, s(rWS, 4), sT0))
            if cfg.dbg:
                n = nts[0]; nts[0] += 1
                a("s_lshl_b32 s%d, s%d, 3" % (sT0, sID))
                a("s_add_u32 s%d, s%d, s%d" % (sT0, sT0, sWV))
                a("s_cmp_lg_u32 s%d, %d" % (sT0, cfg.dbgw))
                a("s_cbranch_scc1 L_nodbg%d" % n)
                a("v_readlane_b32 s%d, v%d, 0" % (sT0, vTS))
                a("v_subrev_u32 v2, s%d, v%d" % (sT0, vTS))
                a("s_mov_b64 exec, 0xffff")
                a("global_store_dword v1, v2, %s" % s(pDBG, 2))
                a.label("L_nodbg%d" % n)
        a("s_waitcnt vmcnt(0) lgkmcnt(0)")
        a("s_endpgm")

    def srd(r, p, nbytes):
        a("s_mov_b32 s%d, s%d" % (r, p))
        a("s_and_b32 s%d, s%d, 0xffff" % (r + 1, p + 1))
        a("s_mov_b32 s%d, 0x%x" % (r + 2, nbytes))
        a("s_mov_b32 s%d, 0x20000" % (r + 3))

    npoll = [0]
    def poll(voffs, soffs, vdata, sleep=4, lanes=64):
        n = npoll[0]; npoll[0] += 1
        a("s_mov_b32 s%d, %d" % (sCNT, cfg.spin))
        if lanes < 64:
            a("s_mov_b64 exec, %d" % ((1 << lanes) - 1))
        a.label("L_poll%d" % n)
        for k, (vo, so) in enumerate(zip(voffs, soffs)):
            a("buffer_load_dword v%d, v%d, %s, s%d offen sc1" % (vdata + k, vo, s(rWS, 4), so))
        a.drain_vm()
        a("v_cmp_ne_u32 vcc, s%d, v%d" % (sTAG, vdata))
        for k in range(1, len(voffs)):
            a("v_cmp_ne_u32 s[14:15], s%d, v%d" % (sTAG, vdata + k))
            a("s_or_b64 vcc, vcc, s[14:15]")
        a("s_cmp_eq_u64 vcc, 0")
        a("s_cbranch_scc1 L_pollok%d" % n)
        a("s_sub_u32 s%d, s%d, 1" % (sCNT, sCNT))
        a("s_cmp_eq_u32 s%d, 0" % sCNT)
        a("s_cbranch_scc1 L_pollok%d" % n)
        a("s_mov_b64 exec, vcc")
        if sleep:
            a("s_sleep %d" % sleep)
        a("s_branch L_poll%d" % n)
        a.label("L_pollok%d" % n)
        a("s_mov_b64 exec, -1")

    def spoll_pre(soff):
        a("s_add_u32 s14, s%d, s%d" % (pWS, soff))
        a("s_addc_u32 s15, s%d, 0" % (pWS + 1))
        a("s_load_dword s7, s[14:15], 0 glc")
    def spoll(soff, sleep=1, target=None, pre=False):
        n = npoll[0]; npoll[0] += 1
        if not pre:
            a("s_add_u32 s14, s%d, s%d" % (pWS, soff))
            a("s_addc_u32 s15, s%d, 0" % (pWS + 1))
        a("s_mov_b32 s%d, %d" % (sCNT, cfg.spin * 2))
        if pre:
            a("s_branch L_sq%d" % n)
        a.label("L_sp%d" % n)
        a("s_load_dword s7, s[14:15], 0 glc")
        a.label("L_sq%d" % n)
        a("s_waitcnt lgkmcnt(0)"); a.lg = []
        if target is None:
            a("s_cmp_eq_u32 s7, s%d" % sTAG)
        else:
            a("s_cmp_eq_u32 s7, %d" % target)
        a("s_cbranch_scc1 L_spok%d" % n)
        if sleep:
            a("s_sleep %d" % sleep)
        a("s_sub_u32 s%d, s%d, 1" % (sCNT, sCNT))
        a("s_cmp_lg_u32 s%d, 0" % sCNT)
        a("s_cbranch_scc1 L_sp%d" % n)
        a.label("L_spok%d" % n)

    def group_ids(vdst, vtmp, sg, shift):
        if cfg.map2 == 8:
            a("v_and_b32 v%d, 24, v0" % vdst)
            a("v_lshlrev_b32 v%d, 3, v%d" % (vdst, vdst))
            a("v_and_b32 v%d, 7, v0" % vtmp)
            a("v_add_u32 v%d, v%d, v%d" % (vdst, vdst, vtmp))
            a("s_lshl_b32 s%d, s%d, 3" % (sT0, sg))
        else:
            a("v_and_b32 v%d, 28, v0" % vdst)
            a("v_lshlrev_b32 v%d, 3, v%d" % (vdst, vdst))
            a("v_and_b32 v%d, 3, v0" % vtmp)
            a("v_lshl_add_u32 v%d, v%d, 1, v%d" % (vdst, vtmp, vdst))
            a("s_and_b32 s%d, s%d, 3" % (sT0, sg))
            a("s_lshl_b32 s%d, s%d, 3" % (sT0, sT0))
            a("s_lshr_b32 s14, s%d, 2" % sg)
            a("s_add_u32 s%d, s%d, s14" % (sT0, sT0))
        a("v_add_lshl_u32 v%d, v%d, s%d, %d" % (vdst, vdst, sT0, shift))

    def group_add(voff, soff, vtmp):
        a("v_mov_b32 v%d, 1" % vtmp)
        a("s_mov_b64 exec, 0xffffffff")
        a("buffer_atomic_add v%d, v%d, %s, s%d offen sc1" % (vtmp, voff, s(rWS, 4), soff), tag="flag")
        a("s_mov_b64 exec, -1")

    def sig8(soff, stride):
        a("s_add_u32 s14, s%d, s%d" % (pWS, soff))
        a("s_addc_u32 s15, s%d, 0" % (pWS + 1))
        a("s_mov_b32 s7, 1")
        for x in range(8):
            a("s_atomic_add s7, s[14:15], 0x%x" % (x * stride))

    def flag_store(soff, vtmp0, vtmp1):
        a("v_mov_b32 v%d, s%d" % (vtmp0, sTAG))
        a("v_mov_b32 v%d, 0" % vtmp1)
        a("s_mov_b64 exec, 1")
        a("buffer_store_dword v%d, v%d, %s, s%d offen sc1" % (vtmp0, vtmp1, s(rWS, 4), soff), tag="flag")
        a("s_mov_b64 exec, -1")

    nl = [0]
    def lds_arrive(off, vt0, vt1):
        a("v_mov_b32 v%d, %d" % (vt0, CNT + off))
        a("v_mov_b32 v%d, 1" % vt1)
        a("s_mov_b64 exec, 1")
        a("ds_add_u32 v%d, v%d" % (vt0, vt1))
        a("s_mov_b64 exec, -1")

    def lds_wait(off, target, vt0, vt1, sleep=0):
        n = nl[0]; nl[0] += 1
        a("v_mov_b32 v%d, %d" % (vt0, CNT + off))
        a("s_mov_b32 s%d, 0x%x" % (sCNT, cfg.spin * 64))
        a.label("L_lw%d" % n)
        a("ds_read_b32 v%d, v%d" % (vt1, vt0))
        a.drain_lg()
        a("v_readfirstlane_b32 s%d, v%d" % (sT0, vt1))
        a("s_cmp_ge_u32 s%d, %s" % (sT0, target))
        a("s_cbranch_scc1 L_lwok%d" % n)
        if sleep:
            a("s_sleep %d" % sleep)
        a("s_sub_u32 s%d, s%d, 1" % (sCNT, sCNT))
        a("s_cmp_lg_u32 s%d, 0" % sCNT)
        a("s_cbranch_scc1 L_lw%d" % n)
        a.label("L_lwok%d" % n)

    a.label(NAME + "_kernel")
    a("s_cmp_ge_u32 s2, 256")
    a("s_cbranch_scc1 L_exit")
    if cfg.hold:
        a("s_memrealtime s[98:99]")
    a("s_load_dwordx16 s[16:31], s[0:1], 0")
    a("s_load_dwordx16 s[32:47], s[0:1], 64")
    a("s_load_dwordx2 s[48:49], s[0:1], 128")
    a("s_getpc_b64 s[%d:%d]" % (rCODE, rCODE + 1))
    a.label("L_pc")
    a("v_lshrrev_b32 v1, 6, v0")
    a("v_and_b32 v0, 63, v0")
    if cfg.ts:
        a("v_mov_b32 v%d, 0" % vTS)
    a("v_readfirstlane_b32 s%d, v1" % sWV)
    if cfg.badmap:
        a("s_lshr_b32 s%d, s2, 5" % sX)
        a("s_and_b32 s%d, s2, 31" % sJ)
    else:
        a("s_and_b32 s%d, s2, 7" % sX)
        a("s_lshr_b32 s%d, s2, 3" % sJ)
    a("s_mov_b32 s%d, 0xffff0000" % sMASK)
    a("s_and_b32 s%d, s%d, 0xffff" % (rCODE + 1, rCODE + 1))
    a("s_mov_b32 s%d, L_code_end-L_pc" % (rCODE + 2))
    a("s_mov_b32 s%d, 0x20000" % (rCODE + 3))
    a("s_cmp_lg_u32 s%d, 7" % sWV)
    a("s_cbranch_scc1 L_nopf")
    a("s_lshl_b32 s%d, s%d, 7" % (sT0, sJ))
    a("v_lshlrev_b32 v1, 12, v0")
    a("buffer_load_dword v14, v1, %s, s%d offen" % (s(rCODE, 4), sT0))
    a("v_mov_b32 v21, %d" % CNT)
    for k in range(4):
        a("v_mov_b32 v%d, 0" % (24 + k))
    a("ds_write_b128 v21, v[24:27]")
    a("ds_write_b128 v21, v[24:27] offset:16")
    a("ds_write_b128 v21, v[24:27] offset:32")
    a.label("L_nopf")
    a.vm = []; a.lg = []
    a("v_lshlrev_b32 v2, 4, v0")
    a("v_lshlrev_b32 v3, 2, v0")
    a("v_mov_b32 v7, 0")
    a("v_mov_b32 v8, 0")
    nline = 3 if cfg.map1 == 8 else 6
    def tile_math():
        a("s_and_b32 s%d, s%d, 1" % (sT0, sX))
        a("s_lshr_b32 s%d, s%d, 1" % (sT1, sX))
        a("v_mul_u32_u24 v62, 3072, v0")
        a("s_mul_i32 s96, s%d, %d" % (sJ, 64 * 3072))
        if cfg.map1 == 8:
            a("s_mul_i32 s%d, s%d, 26" % (sT2, sJ))
            a("s_lshr_b32 s%d, s%d, 8" % (sT2, sT2))
            a("s_mul_i32 s%d, s%d, 10" % (sT3, sT2))
            a("s_sub_u32 s%d, s%d, s%d" % (sT3, sJ, sT3))
            a("s_mov_b32 s%d, s%d" % (sDT, sT3))
            a("s_mul_i32 s%d, s%d, 3" % (sFT, sX))
        else:
            a("s_mul_i32 s%d, s%d, 13" % (sT2, sJ))
            a("s_lshr_b32 s%d, s%d, 6" % (sT2, sT2))
            a("s_mul_i32 s%d, s%d, 5" % (sT3, sT2))
            a("s_sub_u32 s%d, s%d, s%d" % (sT3, sJ, sT3))
            a("s_mul_i32 s%d, s%d, 5" % (sDT, sT0))
            a("s_add_u32 s%d, s%d, s%d" % (sDT, sDT, sT3))
            a("s_mul_i32 s%d, s%d, 6" % (sFT, sT1))
        a("s_add_u32 s97, s%d, s%d" % (sFT, sWV))
        a("s_lshl_b32 s97, s97, 7")
        a("s_add_u32 s96, s96, s97")
        a("s_cmp_ge_u32 s%d, 3" % sWV)
        a("s_cselect_b32 s96, 0x7f000000, s96")
        a("s_add_u32 s%d, s%d, s%d" % (sFT, sFT, sT2))
        def order(n, nsh, sub, r):
            if nsh <= 1:
                return list(range(n))
            o = []
            g = nsh * sub
            for b in range(0, n, g):
                blk = list(range(b, min(b + g, n)))
                k = (r * sub) % len(blk) if len(blk) == g else (r * len(blk) // nsh) % len(blk)
                o += blk[k:] + blk[:k]
            return o
        def pack(o):
            o = o + [0] * (16 - len(o))
            return sum(x << (4 * i) for i, x in enumerate(o[:8])), sum(x << (4 * i) for i, x in enumerate(o[8:]))
        def sel_list(dst, sidx, orders):
            for r, o in enumerate(orders):
                lo, hi = pack(list(o))
                if r == 0:
                    a("s_mov_b32 s%d, 0x%x" % (dst[0], lo))
                    a("s_mov_b32 s%d, 0x%x" % (dst[1], hi))
                elif o != orders[0]:
                    a("s_cmp_eq_u32 s%d, %d" % (sidx, r))
                    a("s_cselect_b32 s%d, 0x%x, s%d" % (dst[0], lo, dst[0]))
                    a("s_cselect_b32 s%d, 0x%x, s%d" % (dst[1], hi, dst[1]))
        def sel_order(dst, sidx, nidx, n, nsh, sub):
            sel_list(dst, sidx, [order(n, nsh, sub, r % max(nsh, 1)) for r in range(nidx)])
        def rotl(n, k):
            return [(i + k) % n for i in range(n)]
        if cfg.wrot1:
            nd = 30 // nline
            if cfg.ng1 >= nd:
                a("s_mul_i32 s97, s%d, %d" % (sT3, -(-16 * 256 // nd)))
                a("s_lshr_b32 s97, s97, 8")
            else:
                tab = sum((((r % cfg.ng1) * 16) // cfg.ng1) << (4 * r) for r in range(nd))
                a("s_mov_b32 s100, 0x%x" % (tab & 0xffffffff))
                a("s_mov_b32 s101, 0x%x" % (tab >> 32))
                a("s_lshl_b32 s97, s%d, 2" % sT3)
                a("s_lshr_b64 s[100:101], s[100:101], s97")
                a("s_mov_b32 s97, s100")
            a("s_mul_i32 s14, s%d, %d" % (sX, cfg.xm1))
            a("s_add_u32 s97, s97, s14")
            a("s_mul_i32 s14, s%d, %d" % (sT2, cfg.fm1))
            a("s_add_u32 s97, s97, s14")
            a("s_and_b32 s97, s97, 15")
            if cfg.nsh1 > 1:
                sel_order(sORD1, sT2, nline, 16, cfg.nsh1, cfg.sub1)
                a("s_mul_i32 s97, s97, 0x11111111")
                for r in sORD1:
                    a("s_xor_b32 s100, s%d, s97" % r)
                    a("s_and_b32 s100, s100, 0x88888888")
                    a("s_and_b32 s%d, s%d, 0x77777777" % (r, r))
                    a("s_and_b32 s101, s97, 0x77777777")
                    a("s_add_u32 s%d, s%d, s101" % (r, r))
                    a("s_xor_b32 s%d, s%d, s100" % (r, r))
            else:
                a("s_lshl_b32 s97, s97, 2")
                a("s_mov_b32 s100, 0x76543210")
                a("s_mov_b32 s101, 0xfedcba98")
                a("s_lshr_b64 s[%d:%d], s[100:101], s97" % sORD1)
                a("s_sub_u32 s97, 64, s97")
                a("s_lshl_b64 s[100:101], s[100:101], s97")
                a("s_or_b64 s[%d:%d], s[%d:%d], s[100:101]" % (sORD1 + sORD1))
        else:
            sel_order(sORD1, sT2, nline, 16, cfg.nsh1, cfg.sub1)
        if cfg.map2 == 8:
            a("s_and_b32 s%d, s%d, 7" % (sT2, sJ))
            a("s_lshr_b32 s%d, s%d, 3" % (sT3, sJ))
            a("s_mov_b32 s%d, s%d" % (sDT2, sT2))
            a("s_lshl_b32 s%d, s%d, 2" % (sST, sX))
        else:
            a("s_and_b32 s%d, s%d, 3" % (sT2, sJ))
            a("s_lshr_b32 s%d, s%d, 2" % (sT3, sJ))
            a("s_lshl_b32 s%d, s%d, 2" % (sDT2, sT0))
            a("s_add_u32 s%d, s%d, s%d" % (sDT2, sDT2, sT2))
            a("s_lshl_b32 s%d, s%d, 3" % (sST, sT1))
        a("s_add_u32 s%d, s%d, s%d" % (sST, sST, sT3))
        if cfg.wrot2:
            nd = 8 if cfg.map2 == 8 else 4
            a("s_mul_i32 s97, s%d, %d" % (sT2, 24 // nd))
            a("s_mul_i32 s14, s%d, %d" % (sX, cfg.xm2))
            a("s_add_u32 s97, s97, s14")
            a("s_mul_i32 s14, s%d, %d" % (sT3, cfg.fm2))
            a("s_add_u32 s97, s97, s14")
            a("s_lshr_b32 s97, s97, 1")
            a("s_mul_i32 s14, s97, 43")
            a("s_lshr_b32 s14, s14, 9")
            a("s_mul_i32 s14, s14, 12")
            a("s_sub_u32 s97, s97, s14")
            sel_list(sORD2, 97, [rotl(12, r) for r in range(12)])
        else:
            sel_order(sORD2, sT3, 4 if cfg.map2 == 8 else 8, 12, cfg.nsh2, cfg.sub2)
    def chan_math():
        a("s_and_b32 s%d, s%d, 3" % (sT0, sWV))
        a("s_cmp_eq_u32 s%d, 7" % sWV)
        a("s_cselect_b32 s%d, 0, s%d" % (sT0, sT0))
        a("s_mul_i32 s%d, s%d, %d" % (sRB, sT0, S))
        a("s_lshr_b32 s%d, s%d, 1" % (sT1, sJ))
        a("s_mul_i32 s%d, s%d, 5" % (sT1, sT1))
        a("s_and_b32 s%d, s%d, 1" % (sT2, sJ))
        a("s_mul_i32 s%d, s%d, 3" % (sT2, sT2))
        a("s_add_u32 s%d, s%d, s%d" % (sT1, sT1, sT2))
        a("s_add_u32 s%d, s%d, s%d" % (sT1, sT1, sT0))
        a("s_min_u32 s%d, s%d, 79" % (sT1, sT1))
        a("s_and_b32 s%d, s%d, 35" % (sT2, sT1))
        a("s_and_b32 s%d, s%d, 12" % (sT3, sT1))
        a("s_lshl_b32 s%d, s%d, 1" % (sT3, sT3))
        a("s_or_b32 s%d, s%d, s%d" % (sT2, sT2, sT3))
        a("s_and_b32 s%d, s%d, 16" % (sT3, sT1))
        a("s_lshr_b32 s%d, s%d, 2" % (sT3, sT3))
        a("s_or_b32 s%d, s%d, s%d" % (sT2, sT2, sT3))
        a("s_cmp_ge_u32 s%d, 64" % sT1)
        a("s_cselect_b32 s%d, s%d, s%d" % (sT2, sT1, sT2))
        a("s_mul_i32 s%d, s%d, 80" % (sT3, sX))
        a("s_add_u32 s%d, s%d, s%d" % (sPOS, sT3, sT1))
        a("s_add_u32 s%d, s%d, s%d" % (sCH, sT3, sT2))
        a("s_mul_i32 s%d, s%d, 384" % (sT0, sCH))
        a("v_add_u32 v10, s%d, v3" % sT0)
        a("v_lshlrev_b32 v11, 1, v0")
        a("v_add_u32 v11, s%d, v11" % sT0)
        a("s_lshl_b32 s%d, s%d, 1" % (sT0, sCH))
        a("v_mov_b32 v12, s%d" % sT0)
    if cfg.ln4:
        chan_math()
    a("s_lshl_b32 s%d, s2, %d" % (sT0, 2 if cfg.ln4 else 3))
    a("s_add_u32 s%d, s%d, s%d" % (sT0, sT0, sWV))
    a("s_mul_i32 s%d, s%d, %d" % (sT0, sT0, 2560 if cfg.ln4 else 1280))
    for r, nb in ((rX, 2621440), (rWS, WS_BYTES), (rW1, 2048 * 3072), (rW2, 1536 * 4096), (rOUT, 2621440)):
        a("s_mov_b32 s%d, 0x%x" % (r + 2, nb))
        a("s_mov_b32 s%d, 0x20000" % (r + 3))
    def srd_bases(lst):
        for r, p in lst:
            a("s_mov_b32 s%d, s%d" % (r, p))
            a("s_and_b32 s%d, s%d, 0xffff" % (r + 1, p + 1))
    def eload():
        a("s_add_u32 s14, s%d, 0x%x" % (pWS, EW))
        a("s_addc_u32 s15, s%d, 0" % (pWS + 1))
        a("s_load_dword s7, s[14:15], 0")
    def stamp0():
        stamp(0)
        if cfg.ts:
            a("s_getreg_b32 s98, hwreg(HW_REG_XCC_ID)")
            a("v_writelane_b32 v%d, s98, 40" % vTS)
            a("s_getreg_b32 s98, hwreg(HW_REG_HW_ID)")
            a("v_writelane_b32 v%d, s98, 41" % vTS)
    SB, SS = WOFF + 16384, WSZ
    a("s_mul_i32 s%d, s%d, %d" % (sT2, sWV, 1408 if cfg.ln4 else 704))
    a("s_add_u32 s%d, s%d, %d" % (sT2, sT2, SB))
    a("v_add_u32 v61, %d, v2" % (SS - 640))
    a("v_cmp_gt_u32 vcc, 40, v0")
    a("v_cndmask_b32 v60, v61, v2, vcc")
    a("v_add_u32 v60, s%d, v60" % sT2)
    a("s_add_u32 s%d, s%d, %d" % (sT2, sT2, SS + 384))
    a("v_add_u32 v61, s%d, v3" % sT2)
    vPA = [4, 5, 6, 7, 8]
    PRM0, PRM1, vLDT, vDSK = 84, 90, 96, 97
    def param_loads():
        for k, p in enumerate([pARE, pAIM, pBRE, pBIM, pCRE, pCIM]):
            a("global_load_dword v%d, v10, %s %s" % (PRM0 + k, s(p, 2), cfg.ppol), tag="p")
            a("global_load_ushort v%d, v11, %s offset:256 %s" % (PRM1 + k, s(p, 2), cfg.ppol), tag="p")
        a("global_load_ushort v%d, v12, %s" % (vLDT, s(pLDT, 2)), tag="p")
        a("global_load_ushort v%d, v12, %s" % (vDSK, s(pDSK, 2)), tag="p")
    def x_loads():
        srd_bases([(rX, pX)])
        a("buffer_load_dwordx4 v[16:19], v2, %s, s%d offen %s" % (s(rX, 4), sT0, cfg.xpol), tag="x")
        a("buffer_load_dword v20, v3, %s, s%d offen offset:1024 %s" % (s(rX, 4), sT0, cfg.xpol), tag="x")
        if cfg.ln4:
            a("buffer_load_dwordx4 v[64:67], v2, %s, s%d offen offset:1280 %s" % (s(rX, 4), sT0, cfg.xpol), tag="x")
            a("buffer_load_dword v68, v3, %s, s%d offen offset:2304 %s" % (s(rX, 4), sT0, cfg.xpol), tag="x")
    def common_tail():
        stamp0()
        eload()
        srd_bases([(rWS, pWS), (rW1, pW1), (rW2, pW2), (rOUT, pOUT)])
    if cfg.ln4:
        a("s_cmp_ge_u32 s%d, 4" % sWV)
        a("s_waitcnt lgkmcnt(0)")
        a("s_cbranch_scc1 L_nox")
        x_loads()
        vm_x = list(a.vm)
        a.label("L_nox")
        a("s_cmp_lt_u32 s%d, 4" % sWV)
        a("s_barrier")
        a("s_cbranch_scc1 L_gemm_pre")
        a.vm = []
        a("s_cmp_eq_u32 s%d, 7" % sWV)
        a("s_cbranch_scc1 L_w7_pre")
        param_loads()
        aux_vm = list(a.vm)
        stamp0()
        srd_bases([(rWS, pWS)])
        a("s_branch L_aux_main")
        a.label("L_w7_pre")
        a.vm = []
        common_tail()
    else:
        a("s_waitcnt lgkmcnt(0)")
        if cfg.hold:
            a("s_mov_b32 s99, 0")
        x_loads()
        common_tail()
        vm_common = list(a.vm)
        a("s_cmp_lt_u32 s%d, 4" % sWV)
        a("s_cbranch_scc1 L_gemm_pre")
        chan_math()
        a("s_cmp_eq_u32 s%d, 7" % sWV)
        a("s_cbranch_scc1 L_w7_pre")
        param_loads()
        a.wait_vm("x")
        aux_vm = list(a.vm)
        a("s_branch L_ln")
        a.label("L_w7_pre")
        a.vm = list(vm_common)
    a("v_lshrrev_b32 v10, 4, v0")
    a("v_and_b32 v11, 3, v0")
    a("v_bfe_u32 v12, v0, 2, 2")
    a("s_movk_i32 s%d, 704" % sT0)
    a("v_mul_lo_u32 v12, v12, s%d" % sT0)
    a("v_add_u32 v12, %d, v12" % SB)
    for q in range(5):
        a("v_add_u32 v21, %d, v10" % (4 * q))
        a("v_mul_u32_u24 v22, 13, v21")
        a("v_lshrrev_b32 v22, 6, v22")
        a("v_mul_u32_u24 v23, 5, v22")
        a("v_sub_u32 v21, v21, v23")
        a("v_lshrrev_b32 v23, 1, v21")
        a("v_lshlrev_b32 v23, 5, v23")
        a("v_and_b32 v24, 1, v21")
        a("v_lshl_add_u32 v23, v24, 2, v23")
        a("v_lshlrev_b32 v24, 3, v11")
        a("v_lshlrev_b32 v25, 2, v11")
        a("v_cmp_eq_u32 vcc, 4, v21")
        a("v_cndmask_b32 v24, v24, v25, vcc")
        a("v_add_u32 v23, v23, v24")
        a("v_mul_u32_u24 v22, 80, v22")
        a("v_add_u32 v23, v23, v22")
        a("v_lshl_add_u32 v%d, v23, 1, v12" % vPA[q])
    if cfg.ln4:
        a("s_setprio 3")
        lds_wait(8, 4, 12, 13)
        a("s_add_u32 s%d, s7, 0x9E3779B9" % sTAG)
        a("s_branch L_pub")
        a.label("L_gemm_pre")
        a.vm = list(vm_x)
        srd_bases([(rX, pX)])
        common_tail()
    else:
        a.wait_vm("x")
        a("s_branch L_ln")
        a.label("L_gemm_pre")
        a.vm = list(vm_common)
    tile_math()

    vTR = [2, 3, 4, 5]
    vFO, vDO, vPO, vPD = 6, 7, 8, 9
    ACC1, STG1, WREG1 = 16, 80, 128
    ACC2, STG2, WREG2, XR = 16, 96, 160, 148
    NR1, NR2 = cfg.nr1, cfg.nr2

    def dma_voff(rowbytes, gemm1):
        a("v_lshrrev_b32 v10, 3, v0")
        if cfg.swz == 0:
            a("v_and_b32 v11, 6, v10")
        else:
            a("v_and_b32 v11, 2, v10")
            a("v_lshlrev_b32 v11, 1, v11")
        a("v_and_b32 v12, 7, v0")
        a("v_xor_b32 v12, v12, v11")
        a("v_lshlrev_b32 v12, 4, v12")
        if gemm1:
            a("v_and_b32 v11, 4, v10")
            a("v_add_u32 v10, v10, v11")
        a("s_mov_b32 s%d, %d" % (sT0, rowbytes))
        a("v_mul_lo_u32 v10, v10, s%d" % sT0)
        a("v_add_u32 v%d, v10, v12" % vDO)

    def setoff(dst, base, ordr, step, stepbytes):
        wd = 4
        if dst == sOA and ((cfg.fake & 1 and ordr == sORD1) or (cfg.fake & 2 and ordr == sORD2)):
            wd = 2
        a("s_bfe_u32 s%d, s%d, 0x%x" % (dst, ordr[step >> 3], (wd << 16) | (4 * (step & 7))))
        a("s_mul_i32 s%d, s%d, %d" % (dst, dst, stepbytes))
        a("s_add_u32 s%d, s%d, s%d" % (dst, dst, base))

    def dma_step(srdreg, slot, consts, stepbytes, tag, pol=''):
        setoff(sOW, sOWB, sORD1 if srdreg == rW1 else sORD2, int(tag[1:]), stepbytes)
        for b in range(4):
            a("s_add_u32 m0, s%d, %d" % (sWB, slot * 4096 + b * 1024))
            if consts[b]:
                a("s_add_u32 s%d, s%d, %d" % (sT0, sOW, consts[b]))
                so = sT0
            else:
                so = sOW
            a("buffer_load_dwordx4 v%d, %s, s%d offen %s lds" % (vDO, s(srdreg, 4), so, pol), tag=tag)

    C1 = [(16 * (b & 1) + 4 * (b >> 1)) * 3072 for b in range(4)]
    C2 = [8 * b * 4096 for b in range(4)]

    def tr_step(slot, wreg, tag):
        for n in range(4):
            for e in range(2):
                a("ds_read_b64_tr_b16 %s, v%d offset:%d" % (v(wreg + 4 * n + 2 * e, 2), vTR[n], slot * 4096 + e * 2048), tag=tag)

    def touch_w1():
        a("buffer_load_dword v63, v62, %s, s96 offen %s" % (s(rW1, 4), cfg.tpol), tag="tch")
    def touch_w2s():
        a("v_lshrrev_b32 v8, 2, v0")
        a("v_lshlrev_b32 v8, 12, v8")
        a("v_and_b32 v9, 3, v0")
        a("v_lshl_add_u32 v8, v9, 7, v8")
        a("v_mov_b32 v9, 0x7f000000")
        a("v_cmp_gt_u32 vcc, 48, v0")
        a("v_cndmask_b32 v8, v9, v8, vcc")
        a("s_lshl_b32 s97, s%d, 2" % sJ)
        a("s_add_u32 s97, s97, s%d" % sWV)
        a("s_mul_i32 s97, s97, %d" % (12 * 4096))
        a("s_lshl_b32 s%d, s%d, 9" % (sT2, sX))
        a("s_add_u32 s97, s97, s%d" % sT2)
    def touch_w2i():
        a("buffer_load_dword v9, v8, %s, s97 offen %s" % (s(rW2, 4), cfg.t2pol), tag="tch")
    def touch_w1b():
        if nline == 6:
            a("buffer_load_dword v63, v62, %s, s96 offen offset:384 %s" % (s(rW1, 4), cfg.tpol), tag="tch")
    a("s_mov_b64 exec, 0xffffffff")
    srd(rB, pB1, 3072)
    a("s_lshl_b32 s%d, s%d, 7" % (sT0, sFT))
    a("s_mov_b32 m0, %d" % BIA)
    a("buffer_load_dword v3, %s, s%d offen lds" % (s(rB, 4), sT0), tag="b")
    srd(rB, pB2, 4096)
    a("s_lshl_b32 s%d, s%d, 7" % (sT0, sST))
    a("s_mov_b32 m0, %d" % (BIA + 128))
    a("buffer_load_dword v3, %s, s%d offen lds" % (s(rB, 4), sT0), tag="b")
    a("s_mov_b64 exec, -1")
    if cfg.touch1 == 1:
        touch_w1()
    if cfg.touch2 in (3, 4, 5, 7):
        touch_w2s()
    if cfg.touch2 == 4:
        touch_w2i()
    a("s_setprio 2")
    a("s_mul_i32 s%d, s%d, %d" % (sWB, sWV, WSZ))
    a("s_add_u32 s%d, s%d, %d" % (sWB, sWB, WOFF))
    dma_voff(3072, True)
    a("s_mul_i32 s%d, s%d, %d" % (sOWB, sWV, 512 * 3072))
    a("s_lshl_b32 s%d, s%d, 7" % (sT0, sFT))
    a("s_add_u32 s%d, s%d, s%d" % (sOWB, sOWB, sT0))
    a("s_cmp_ge_u32 s%d, 30" % sJ)
    a("s_cselect_b32 s%d, 0x7f000000, s%d" % (sOWB, sOWB))
    def dma1(k):
        if 15 - cfg.skip1 <= k < 15:
            return
        dma_step(rW1, k % 7, C1, 32 * 3072, "w%d" % k, cfg.tpol if k < cfg.nt1 else '')
    for i in range(cfg.prea):
        dma1(i)
    a.wait_vm("x")
    for i in range(cfg.prea, cfg.prea + cfg.preb):
        dma1(i)
    gemm_vm = list(a.vm)
    a.label("L_ln")
    stamp(1)

    def bfround(r):
        a("v_cvt_pk_bf16_f32 v%d, v%d, v%d" % (r, r, r))
        a("v_and_b32 v%d, s%d, v%d" % (r, sMASK, r))

    def ln_token(o, sx0, s1, s2, row):
        L = []
        e = L.append
        XP, D_, A, B, C, E_, HP = 16 + o, 24 + o, 34 + o, 36 + o, 38 + o, 40 + o, 44 + o
        M, V, R1, R2 = 50 + o, 51 + o, 52 + o, 54 + o
        for k in range(5):
            e("v_lshlrev_b32 v%d, 16, v%d" % (D_ + 2 * k, XP + k))
            e("v_and_b32 v%d, s%d, v%d" % (D_ + 2 * k + 1, sMASK, XP + k))
        e("v_readfirstlane_b32 s%d, v%d" % (sx0, D_))
        e("v_mov_b32 v%d, %s" % (R2, f32(1.0 / 640)))
        e("v_mov_b32 v%d, s%d" % (A, sx0))
        for k in range(5):
            e("v_pk_add_f32 %s, %s, %s op_sel_hi:[1,0] neg_lo:[0,1] neg_hi:[0,1]" % (v(D_ + 2 * k, 2), v(D_ + 2 * k, 2), v(A, 2)))
        e("v_pk_mul_f32 %s, %s, %s" % (v(B, 2), v(D_, 2), v(D_, 2)))
        e("v_pk_add_f32 %s, %s, %s" % (v(A, 2), v(D_, 2), v(D_ + 2, 2)))
        e("v_pk_mul_f32 %s, %s, %s" % (v(E_, 2), v(D_ + 4, 2), v(D_ + 4, 2)))
        e("v_pk_add_f32 %s, %s, %s" % (v(C, 2), v(D_ + 4, 2), v(D_ + 6, 2)))
        e("v_pk_fma_f32 %s, %s, %s, %s" % (v(B, 2), v(D_ + 2, 2), v(D_ + 2, 2), v(B, 2)))
        e("v_pk_add_f32 %s, %s, %s" % (v(A, 2), v(A, 2), v(D_ + 8, 2)))
        e("v_pk_fma_f32 %s, %s, %s, %s" % (v(E_, 2), v(D_ + 6, 2), v(D_ + 6, 2), v(E_, 2)))
        e("v_pk_fma_f32 %s, %s, %s, %s" % (v(B, 2), v(D_ + 8, 2), v(D_ + 8, 2), v(B, 2)))
        e("v_pk_add_f32 %s, %s, %s" % (v(A, 2), v(A, 2), v(C, 2)))
        e("v_pk_add_f32 %s, %s, %s" % (v(B, 2), v(B, 2), v(E_, 2)))
        e("v_add_f32 v%d, v%d, v%d" % (A, A, A + 1))
        e("v_add_f32 v%d, v%d, v%d" % (B, B, B + 1))
        for ctl in ["row_shr:1", "row_shr:2", "row_shr:4", "row_shr:8"]:
            for r in (A, B):
                e("v_add_f32_dpp v%d, v%d, v%d %s row_mask:0xf bank_mask:0xf bound_ctrl:0" % (r, r, r, ctl))
        for r in (A, B):
            e("v_add_f32_dpp v%d, v%d, v%d row_bcast:15 row_mask:0xa bank_mask:0xf" % (r, r, r))
        for r in (A, B):
            e("v_add_f32_dpp v%d, v%d, v%d row_bcast:31 row_mask:0xc bank_mask:0xf" % (r, r, r))
        e("v_readlane_b32 s%d, v%d, 63" % (s1, A))
        e("v_readlane_b32 s%d, v%d, 63" % (s2, B))
        e("v_mul_f32 v%d, s%d, v%d" % (M, s1, R2))
        e("v_mul_f32 v%d, s%d, v%d" % (V, s2, R2))
        e("v_fma_f32 v%d, -v%d, v%d, v%d" % (V, M, M, V))
        e("v_add_f32 v%d, s%d, v%d" % (A, sx0, M))
        e("v_max_f32 v%d, 0, v%d" % (V, V))
        def rstd(dst, mean, var, mb):
            e("v_cvt_pk_bf16_f32 v%d, v%d, v%d" % (C, mean, var))
            e("v_and_b32 v%d, s%d, v%d" % (dst, sMASK, C))
            e("v_lshlrev_b32 v%d, 16, v%d" % (mb, C))
            e("v_add_f32 v%d, %s, v%d" % (dst, f32(1e-5), dst))
            e("v_cvt_pk_bf16_f32 v%d, v%d, v%d" % (dst, dst, dst))
            e("v_and_b32 v%d, s%d, v%d" % (dst, sMASK, dst))
            e("v_sqrt_f32 v%d, v%d" % (dst, dst))
            e("v_cvt_pk_bf16_f32 v%d, v%d, v%d" % (dst, dst, dst))
            e("v_and_b32 v%d, s%d, v%d" % (dst, sMASK, dst))
            e("v_rcp_f32 v%d, v%d" % (dst, dst))
        rstd(R1, A, V, B)
        e("v_sub_f32 v%d, s%d, v%d" % (B, sx0, B))
        e("v_mul_f32 v%d, v%d, v%d" % (V, V, R1))
        e("v_mul_f32 v%d, v%d, v%d" % (R1 + 1, B, R1))
        e("v_mul_f32 v%d, v%d, v%d" % (V, V, R1))
        e("v_fma_f32 v%d, v%d, v%d, v%d" % (A, M, R1, R1 + 1))
        n0 = len(L)
        rstd(R2, A, V, B)
        e("v_mul_f32 v%d, v%d, v%d" % (R2 + 1, B, R2))
        chain = L[n0:]; del L[n0:]
        body = []
        for k in range(5):
            body.append("v_pk_fma_f32 %s, %s, %s, %s op_sel:[0,0,1] op_sel_hi:[1,0,1]" % (v(D_ + 2 * k, 2), v(D_ + 2 * k, 2), v(R1, 2), v(R1, 2)))
        for k in range(5):
            body.append("v_cvt_pk_bf16_f32 v%d, v%d, v%d" % (XP + k, D_ + 2 * k, D_ + 2 * k + 1))
        body.append("ds_write_b128 v60, %s offset:%d" % (v(XP, 4), 2 * SS + 704 * row))
        body.append("ds_write_b32 v61, v%d offset:%d" % (XP + 4, 2 * SS + 704 * row))
        while chain or body:
            if chain: e(chain.pop(0))
            if body: e(body.pop(0))
        for k in range(5):
            e("v_pk_fma_f32 %s, %s, %s, %s op_sel:[0,0,1] op_sel_hi:[1,0,1] neg_lo:[0,0,1] neg_hi:[0,0,1]" % (v(D_ + 2 * k, 2), v(D_ + 2 * k, 2), v(R2, 2), v(R2, 2)))
        for k in range(5):
            e("v_cvt_pk_bf16_f32 v%d, v%d, v%d" % (HP + k, D_ + 2 * k, D_ + 2 * k + 1))
        e("ds_write_b128 v60, %s offset:%d" % (v(HP, 4), 704 * row))
        e("ds_write_b32 v61, v%d offset:%d" % (HP + 4, 704 * row))
        return L
    def ln_token_exact(o, sx0, s1, s2, row):
        L = []
        e = L.append
        XP, XF32, DT_, A, B, C, D, HP = 16 + o, 24 + o, 34 + o, 44 + o, 46 + o, 48 + o, 50 + o, 52 + o
        def unpack(dst, src):
            for k in range(5):
                e("v_lshlrev_b32 v%d, 16, v%d" % (dst + 2 * k, src + k))
                e("v_and_b32 v%d, s%d, v%d" % (dst + 2 * k + 1, sMASK, src + k))
        unpack(XF32, XP)
        for shift, outp in ((True, XP), (False, HP)):
            src = XF32
            if shift:
                e("v_readfirstlane_b32 s%d, v%d" % (sx0, XF32))
                for i in range(10):
                    e("v_subrev_f32 v%d, s%d, v%d" % (DT_ + i, sx0, XF32 + i))
                src = DT_
            e("v_pk_add_f32 %s, %s, %s" % (v(A, 2), v(src, 2), v(src + 2, 2)))
            e("v_pk_mul_f32 %s, %s, %s" % (v(B, 2), v(src, 2), v(src, 2)))
            e("v_pk_add_f32 %s, %s, %s" % (v(C, 2), v(src + 4, 2), v(src + 6, 2)))
            e("v_pk_fma_f32 %s, %s, %s, %s" % (v(B, 2), v(src + 2, 2), v(src + 2, 2), v(B, 2)))
            e("v_pk_add_f32 %s, %s, %s" % (v(A, 2), v(A, 2), v(src + 8, 2)))
            e("v_pk_mul_f32 %s, %s, %s" % (v(D, 2), v(src + 4, 2), v(src + 4, 2)))
            e("v_pk_fma_f32 %s, %s, %s, %s" % (v(B, 2), v(src + 8, 2), v(src + 8, 2), v(B, 2)))
            e("v_pk_add_f32 %s, %s, %s" % (v(A, 2), v(A, 2), v(C, 2)))
            e("v_pk_fma_f32 %s, %s, %s, %s" % (v(D, 2), v(src + 6, 2), v(src + 6, 2), v(D, 2)))
            e("v_add_f32 v%d, v%d, v%d" % (A, A, A + 1))
            e("v_pk_add_f32 %s, %s, %s" % (v(B, 2), v(B, 2), v(D, 2)))
            e("v_add_f32 v%d, v%d, v%d" % (B, B, B + 1))
            for ctl in ["row_shr:1", "row_shr:2", "row_shr:4", "row_shr:8"]:
                for r in (A, B):
                    e("v_add_f32_dpp v%d, v%d, v%d %s row_mask:0xf bank_mask:0xf bound_ctrl:0" % (r, r, r, ctl))
            for r in (A, B):
                e("v_add_f32_dpp v%d, v%d, v%d row_bcast:15 row_mask:0xa bank_mask:0xf" % (r, r, r))
            for r in (A, B):
                e("v_add_f32_dpp v%d, v%d, v%d row_bcast:31 row_mask:0xc bank_mask:0xf" % (r, r, r))
            e("v_readlane_b32 s%d, v%d, 63" % (s1, A))
            e("v_readlane_b32 s%d, v%d, 63" % (s2, B))
            e("v_mov_b32 v%d, %s" % (A + 1, f32(1.0 / 640)))
            e("v_mul_f32 v%d, s%d, v%d" % (A, s1, A + 1))
            e("v_mul_f32 v%d, s%d, v%d" % (B, s2, A + 1))
            e("v_fma_f32 v%d, -v%d, v%d, v%d" % (B, A, A, B))
            if shift:
                e("v_add_f32 v%d, s%d, v%d" % (A, sx0, A))
            e("v_max_f32 v%d, 0, v%d" % (B, B))
            e("v_cvt_pk_bf16_f32 v%d, v%d, v%d" % (B + 1, A, B))
            e("v_and_b32 v%d, s%d, v%d" % (B, sMASK, B + 1))
            e("v_lshlrev_b32 v%d, 16, v%d" % (A, B + 1))
            e("v_add_f32 v%d, %s, v%d" % (B, f32(1e-5), B))
            for k in range(5):
                e("v_pk_add_f32 %s, %s, %s op_sel_hi:[1,0] neg_lo:[0,1] neg_hi:[0,1]" % (v(DT_ + 2 * k, 2), v(XF32 + 2 * k, 2), v(A, 2)))
                if k == 0:
                    e("v_cvt_pk_bf16_f32 v%d, v%d, v%d" % (B, B, B))
                if k == 1:
                    e("v_and_b32 v%d, s%d, v%d" % (B, sMASK, B))
                if k == 2:
                    e("v_sqrt_f32 v%d, v%d" % (B, B))
                if k == 4:
                    e("v_cvt_pk_bf16_f32 v%d, v%d, v%d" % (B, B, B))
            for k in range(5):
                e("v_cvt_pk_bf16_f32 v%d, v%d, v%d" % (C + k, DT_ + 2 * k, DT_ + 2 * k + 1))
                if k == 0:
                    e("v_and_b32 v%d, s%d, v%d" % (B, sMASK, B))
                if k == 1:
                    e("v_rcp_f32 v%d, v%d" % (B, B))
            unpack(DT_, C)
            for k in range(5):
                e("v_pk_mul_f32 %s, %s, %s op_sel_hi:[1,0]" % (v(DT_ + 2 * k, 2), v(DT_ + 2 * k, 2), v(B, 2)))
            for k in range(5):
                e("v_cvt_pk_bf16_f32 v%d, v%d, v%d" % (outp + k, DT_ + 2 * k, DT_ + 2 * k + 1))
            off = (2 * SS if shift else 0) + 704 * row
            if shift:
                unpack(XF32, outp)
            e("ds_write_b128 v60, %s offset:%d" % (v(outp, 4), off))
            e("ds_write_b32 v61, v%d offset:%d" % (outp + 4, off))
        return L
    if cfg.exactln:
        ln_token = ln_token_exact
    if cfg.ln4:
        for i0, i1 in zip(ln_token(0, 14, sT0, sT1, 0), ln_token(48, 15, sT2, sT3, 1)):
            a(i0); a(i1)
        a("s_waitcnt lgkmcnt(0)"); a.lg = []
        lds_arrive(8, 12, 13)
        a("s_add_u32 s%d, s7, 0x9E3779B9" % sTAG)
        a("s_branch L_not7")
        a.label("L_pub")
    else:
        for i0 in ln_token(0, 14, sT0, sT1, 0):
            a(i0)
        a("s_waitcnt lgkmcnt(0)"); a.lg = []
        a("s_add_u32 s%d, s7, 0x9E3779B9" % sTAG)
        a("s_cmp_lg_u32 s%d, 7" % sWV)
        a("s_barrier")
        a("s_cbranch_scc1 L_not7")
    a.vm = []; a.lg = []
    a("s_setprio 3")
    stamp(2)
    a("s_mul_i32 s%d, s%d, 10240" % (sT0, sID))
    a("s_add_u32 s%d, s%d, 4096" % (sT1, sT0))
    a("s_add_u32 s%d, s%d, 8192" % (sT2, sT0))
    def prd(k):
        arr, hf, q = k // 10, (k // 5) & 1, k % 5
        r = 16 + 4 * k
        o = hf * SS
        va = 100 + q if arr else vPA[q]
        a("ds_read_b64_tr_b16 %s, v%d offset:%d" % (v(r, 2), va, o), tag="p%d" % k)
        a("ds_read_b64_tr_b16 %s, v%d offset:%d" % (v(r + 2, 2), va, o + 2816), tag="p%d" % k)
    for k in range(6):
        prd(k)
    for q in range(5):
        a("v_add_u32 v%d, %d, v%d" % (100 + q, 2 * SS, vPA[q]))
    for k in range(20):
        if k == 10:
            for q in range(3):
                a("s_add_u32 s%d, s%d, 0x%x" % ((sT0, sT1, sT2)[q], (sT0, sT1, sT2)[q], XB))
        a.wait_lg("p%d" % k)
        kk = k % 10
        if k < 10 or not (cfg.noxn or cfg.xnlate):
            a("buffer_store_dwordx4 %s, v2, %s, s%d offen offset:%d sc1" % (v(16 + 4 * k, 4), s(rWS, 4), (sT0, sT1, sT2)[kk >> 2], 1024 * (kk & 3)), tag="hs" if k < 10 else "xs")
        if k + 6 < 20:
            prd(k + 6)
        if k == 13:
            a.drain_lg()
            lds_arrive(16, 12, 13)
    if cfg.ssig:
        a("s_cmp_ge_u32 s%d, 64" % sID)
        a("s_cbranch_scc1 L_nozero")
    for k in range(4):
        a("v_mov_b32 v%d, 0" % (108 + k))
    a("s_lshl_b32 s%d, s%d, 10" % (sT3, sID))
    a("s_add_u32 s%d, s%d, 0x%x" % (sT3, sT3, MB + 512))
    a("s_mov_b64 exec, 0xffffffff")
    a("buffer_store_dwordx4 v[108:111], v2, %s, s%d offen sc1" % (s(rWS, 4), sT3))
    a("s_lshl_b32 s%d, s%d, 7" % (sT3, sID))
    a("s_add_u32 s%d, s%d, 0x%x" % (sT3, sT3, YC))
    a("s_mov_b64 exec, 0xff")
    a("buffer_store_dwordx4 v[108:111], v2, %s, s%d offen sc1" % (s(rWS, 4), sT3))
    a("s_mov_b64 exec, -1")
    a.label("L_nozero")
    a("s_lshl_b32 s%d, s%d, %d" % (sT3, sID, cfg.fsh))
    a("s_add_u32 s%d, s%d, 0x%x" % (sT3, sT3, HF))
    if cfg.ssig:
        a("s_add_u32 s14, s%d, s%d" % (pWS, sT3))
        a("s_addc_u32 s15, s%d, 0" % (pWS + 1))
        a("s_mov_b32 s7, s%d" % sTAG)
        a.drain_vm()
        a("s_atomic_swap s7, s[14:15], 0")
        a.drain_lg()
        if cfg.xnlate:
            if cfg.xnlate == 2:
                a("s_mov_b32 s%d, s%d" % (sT3, sT0))
                lds_wait(40, 1, 12, 13, sleep=2)
                a("s_mov_b32 s%d, s%d" % (sT0, sT3))
            for kk in range(10):
                a("buffer_store_dwordx4 %s, v2, %s, s%d offen offset:%d sc1" % (v(56 + 4 * kk, 4), s(rWS, 4), (sT0, sT1, sT2)[kk >> 2], 1024 * (kk & 3)))
            a("s_mov_b32 s7, s%d" % sTAG)
            a.drain_vm()
            a("s_atomic_swap s7, s[14:15], 0x%x" % (XF2 - HF))
            a.drain_lg()
    else:
        a.drain_vm()
        flag_store(sT3, 12, 13)
    stamp(3)
    a("s_branch L_w7")
    a.label("L_not7")
    a.lg = ["arr"]
    if not cfg.ln4:
        a("s_cmp_ge_u32 s%d, 4" % sWV)
        a("s_cbranch_scc1 L_aux_main")
    a.vm = list(gemm_vm)
    a("s_setprio %d" % cfg.pP)
    stamp(2)
    for i in range(cfg.prea + cfg.preb, cfg.prea + cfg.preb + cfg.prec):
        dma1(i)
    cfg.pre1 = cfg.prea + cfg.preb + cfg.prec

    a("v_lshrrev_b32 v10, 2, v0")
    if cfg.swz == 0:
        a("v_bfe_u32 v11, v0, 3, 2")
    else:
        a("v_bfe_u32 v11, v0, 3, 1")
        a("v_lshlrev_b32 v11, 1, v11")
    a("v_lshlrev_b32 v10, 7, v10")
    a("v_and_b32 v12, 3, v0")
    a("v_lshl_add_u32 v10, v12, 3, v10")
    a("v_add_u32 v10, s%d, v10" % sWB)
    for n in range(4):
        a("v_xor_b32 v12, %d, v11" % n)
        a("v_lshl_add_u32 v%d, v12, 5, v10" % vTR[n])
    a("v_lshrrev_b32 v10, 4, v0")
    a("v_mul_u32_u24 v10, 10240, v10")
    a("v_and_b32 v11, 15, v0")
    a("v_lshl_add_u32 v%d, v11, 4, v10" % vFO)
    a.wait_vm("b")
    a("v_lshrrev_b32 v10, 4, v0")
    a("v_lshlrev_b32 v10, 3, v10")
    for fi in range(4):
        a("ds_read_b64 %s, v10 offset:%d" % (v(STG1 + 2 * fi, 2), BIA + 32 * fi), tag="bias")
    a.wait_lg("bias")
    for k in range(8):
        a("v_lshlrev_b32 v%d, 16, v%d" % (ACC1 + 2 * k, STG1 + k))
        a("v_and_b32 v%d, s%d, v%d" % (ACC1 + 2 * k + 1, sMASK, STG1 + k))
    lds_wait(16, 1, 12, 13)
    stamp(14)
    if cfg.touch1:
        touch_w1b()
    if cfg.touch2 == 5:
        touch_w2i()
    a("s_cmp_ge_u32 s%d, 30" % sJ)
    a("s_cbranch_scc1 L_g2_pre_nog1")
    a("s_mul_i32 s%d, s%d, %d" % (sOAB, sWV, 64 * 10240))
    a("s_lshl_b32 s%d, s%d, 10" % (sT0, sDT))
    a("s_add_u32 s%d, s%d, s%d" % (sOAB, sOAB, sT0))
    if HB:
        a("s_add_u32 s%d, s%d, 0x%x" % (sOAB, sOAB, HB))
    for di in range(4):
        a("s_xor_b32 s%d, s%d, %d" % (sD[di], sWV, di))
        a("s_lshl_b32 s%d, s%d, 8" % (sD[di], sD[di]))
    def mbox(extra):
        if cfg.ssig and extra:
            a("s_and_b32 s%d, s%d, 63" % (sT1, sID))
            a("s_lshl_b32 s%d, s%d, 3" % (sT1, sT1))
        else:
            a("s_lshl_b32 s%d, s%d, 3" % (sT1, sID))
        a("s_add_u32 s%d, s%d, s%d" % (sT1, sT1, sWV))
        a("s_lshl_b32 s%d, s%d, 7" % (sT1, sT1))
        a("s_add_u32 s%d, s%d, 0x%x" % (sT1, sT1, MB + extra))
    D1 = cfg.depth1
    issued = cfg.pre1
    P1 = cfg.P1
    polled = False
    for i in range(P1):
        while issued < P1 and issued <= i + D1:
            k = issued
            if k >= 7:
                a.wait_lg("t%d" % (k - 7))
            if k >= P1 - 2 and i >= 8 and not polled:
                a.drain_lg()
                mbox(0)
                spoll_pre(sT1)
                polled = True
            dma1(k)
            issued += 1
        if i < 8:
            a.wait_vm("w%d" % i)
            tr_step(i % 7, WREG1 + 16 * i, "t%d" % i)
            if cfg.xnlate == 2 and i == cfg.xnat:
                lds_arrive(40, 12, 13)
        elif issued < P1:
            a.wait_vm("w%d" % i)
        if (i in (0, 8) and cfg.fine) or (cfg.fine == 2 and i in (2, 4, 6, 10)):
            stamp(16 + i // 2)
    if not polled:
        mbox(0)
        spoll_pre(sT1)
    if cfg.touch2 == 7:
        touch_w2i()
    stamp(3)
    def hwait(sl):
        a("s_lshl_b32 s%d, s%d, 3" % (sT1, sID))
        a("s_add_u32 s%d, s%d, s%d" % (sT1, sT1, sWV))
        a("s_lshl_b32 s%d, s%d, 7" % (sT1, sT1))
        a("s_add_u32 s%d, s%d, 0x%x" % (sT1, sT1, MB))
        spoll(sT1, sl)
    spoll(sT1, cfg.psleep, pre=True)
    a("s_setprio %d" % cfg.pG)
    if cfg.pbal:
        a("s_and_b32 s%d, s%d, 1" % (sT2, sJ))
        a("s_add_u32 s%d, s%d, s%d" % (sT2, sT2, sWV))
        a("s_cmp_lt_u32 s%d, 3" % sT2)
        a("s_cbranch_scc1 L_pb")
        a("s_setprio 1")
        a.label("L_pb")
    stamp(4)

    def adv_a(stepbytes):
        if cfg.noadv:
            return
        a("s_add_u32 s%d, s%d, %d" % (sOA, sOA, stepbytes))
        a("s_cmp_ge_u32 s%d, s%d" % (sOA, sOAE))
        a("s_cselect_b32 s%d, s%d, s%d" % (sOA, sOAB, sOA))

    def DI(n):
        return ((n + 1) & 3) if n >= 60 else (n & 3)
    def hload(n):
        di = DI(n)
        if n & 3 == 0:
            setoff(sOA, sOAB, sORD1, n >> 2, 4 * 10240)
        a("s_add_u32 s%d, s%d, s%d" % (sT1, sOA, sD[di]))
        a("buffer_load_dwordx4 %s, v%d, %s, s%d offen %s" % (v(STG1 + 4 * (n % NR1), 4), vFO, s(rWS, 4), sT1, cfg.apol), tag="h%d" % n)

    def w2_setup():
        dma_voff(4096, False)
        a("s_mul_i32 s%d, s%d, %d" % (sOWB, sWV, 384 * 4096))
        a("s_lshl_b32 s%d, s%d, 7" % (sT0, sST))
        a("s_add_u32 s%d, s%d, s%d" % (sOWB, sOWB, sT0))

    SL2 = {0: 3, 1: 4, 2: 5, 3: 6, 4: 0, 5: 1, 6: 2, 7: 3, 8: 4, 9: 5, 10: 6, 11: 0}
    def slot2(i):
        return SL2[i]
    def dma2(k):
        if k >= 12 - cfg.skip2:
            return
        dma_step(rW2, slot2(k), C2, 32 * 4096, "u%d" % k, cfg.t2pol if k < cfg.nt2 else '')
    def tr2(k):
        tr_step(slot2(k), WREG2 + 16 * k, "q%d" % k)
    def tr_flip():
        a("s_lshl_b32 s%d, s%d, 5" % (sT0, sWV))
        for n in range(4):
            a("v_xor_b32 v%d, s%d, v%d" % (vTR[n], sT0, vTR[n]))

    vXO, vXO4, vB2 = 9, 1, 14
    sXO = 97
    def xt_setup():
        a("v_and_b32 v12, 15, v0")
        a("v_lshrrev_b32 v13, 4, v0")
        a("v_mul_u32_u24 v%d, 1280, v12" % vXO)
        a("v_lshl_add_u32 v%d, v13, 3, v%d" % (vXO4, vXO))
        a("v_lshl_add_u32 v%d, v13, 4, v%d" % (vXO, vXO))
        a("s_lshl_b32 s%d, s%d, 2" % (sT2, sST))
        a("s_add_u32 s%d, s%d, s%d" % (sT2, sT2, sWV))
        a("s_mul_i32 s%d, s%d, %d" % (sXO, sT2, 16 * 1280))
        a("s_mul_i32 s%d, s%d, 160" % (sT3, sDT2))
        a("s_add_u32 s%d, s%d, s%d" % (sXO, sXO, sT3))
    def acc2_init():
        a("v_and_b32 v12, 15, v0")
        a("s_lshl_b32 s%d, s%d, 5" % (sT2, sWV))
        a("v_lshl_add_u32 v12, v12, 1, s%d" % sT2)
        a("ds_read_u16 v%d, v12 offset:%d" % (vB2, BIA + 128), tag="b2")
        for k in range(10):
            a("v_lshlrev_b32 v%d, 16, v%d" % (ACC2 + 2 * k, XR + k))
            a("v_and_b32 v%d, s%d, v%d" % (ACC2 + 2 * k + 1, sMASK, XR + k))
        a.wait_lg("b2")
        a("v_lshlrev_b32 v%d, 16, v%d" % (vB2, vB2))
        for k in range(20):
            a("v_add_f32 v%d, v%d, v%d" % (ACC2 + k, vB2, ACC2 + k))
    def xt_loads():
        a("buffer_load_dwordx4 %s, v%d, %s, s%d offen %s" % (v(XR, 4), vXO, s(rX, 4), sXO, cfg.xpol), tag="xt")
        a("buffer_load_dwordx4 %s, v%d, %s, s%d offen offset:64 %s" % (v(XR + 4, 4), vXO, s(rX, 4), sXO, cfg.xpol), tag="xt")
        a("buffer_load_dwordx2 %s, v%d, %s, s%d offen offset:128 %s" % (v(XR + 8, 2), vXO4, s(rX, 4), sXO, cfg.xpol), tag="xt")

    for n in range(NR1):
        hload(n)
    lds_arrive(12, 12, 13)
    sGS, sGC = sOWE, sOAE
    vEX = [WREG1 + k for k in range(4)]
    vC = WREG1 + 4
    c0 = -2.0 * math.sqrt(2.0 / math.pi) * math.log2(math.e)
    c1 = c0 * 0.044715
    def xwrite(i):
        for q in range(4):
            a("ds_write_b128 v%d, %s offset:%d" % (vEX[0], v(ACC1 + 16 * i + 4 * q, 4), (i - 1) * 4096 + q * 1024))
    fifo = []
    def fill(k):
        for _ in range(k):
            if fifo:
                a.play(fifo.pop(0))
    def need(tag):
        while any(it[2] == tag for it in fifo):
            fill(1)
    def setup8():
        tr_flip()
        a("v_lshlrev_b32 v10, 4, v0")
        a("v_add_u32 v%d, s%d, v10" % (vEX[0], sWB))
        for k in range(1, 4):
            a("s_xor_b32 s%d, s%d, %d" % (sT0, sWV, k))
            a("s_mul_i32 s%d, s%d, %d" % (sT0, sT0, WSZ))
            a("s_add_u32 s%d, s%d, %d" % (sT0, sT0, WOFF))
            a("v_add_u32 v%d, s%d, v10" % (vEX[k], sT0))
        a("v_mov_b32 v%d, %s" % (vC, f32(c1)))
        a("v_mov_b32 v%d, %s" % (vC + 1, f32(c0)))
    def setup10():
        a("s_mul_i32 s%d, s%d, %d" % (sGS, sFT, 8 * 10240))
        a("s_lshl_b32 s%d, s%d, 10" % (sT2, sDT))
        a("s_add_u32 s%d, s%d, s%d" % (sGS, sGS, sT2))
        a("s_add_u32 s%d, s%d, s%d" % (sGS, sGS, sD[0]))
        a("s_add_u32 s%d, s%d, 0x%x" % (sGS, sGS, GB))
        a("s_add_u32 s96, s%d, %d" % (sGS, 4 * 10240))
        a("s_lshl_b32 s%d, s%d, 2" % (sT2, sDT))
        a("s_add_u32 s%d, s%d, s%d" % (sT2, sT2, sWV))
        a("s_mul_i32 s%d, s%d, 52" % (sT2, sT2))
        a("s_lshr_b32 s%d, s%d, 8" % (sT2, sT2))
        if not cfg.ssig:
            group_ids(vPO, 13, sT2, 10)
        a("s_mul_i32 s%d, s%d, 43" % (sGC, sFT))
        a("s_lshr_b32 s%d, s%d, 8" % (sGC, sGC))
        a("s_lshl_b32 s%d, s%d, 7" % (sGC, sGC))
        a("s_add_u32 s%d, s%d, 0x%x" % (sGC, sGC, MB + 512))
        if cfg.ssig:
            a("s_lshl_b32 s%d, s%d, 13" % (sT2, sT2))
            a("s_add_u32 s%d, s%d, s%d" % (sGC, sGC, sT2))
    def refill(i, wr):
        a.wait_vm("w%d" % i)
        tr_step(i % 7, wr, "t%d" % i)
    def late15():
        a.wait_lg("t8")
        dma1(15)
        w2_setup()
    for i in range(16):
        wr = WREG1 + 16 * (i & 7)
        if i >= 8:
            need("t%d" % i)
            a.wait_lg("t%d" % i)
        for dd in range(4):
            n = 4 * i + dd
            di = DI(n)
            nxt = a.capture(hload, n + NR1) if (n + NR1 < 64 and not cfg.noload) else []
            a.wait_vm("h%d" % n)
            for fi in range(4):
                acc = v(ACC1 + 16 * di + 4 * fi, 4)
                if not cfg.nomfma or i == 0:
                    a("v_mfma_f32_16x16x32_bf16 %s, %s, %s, %s" % (acc, v(wr + 4 * fi, 4), v(STG1 + 4 * (n % NR1), 4), acc if (i or di == 0) else "0"))
                if fi < 3:
                    k = cfg.fillk
                    while len(nxt) > 1 and k:
                        a.play(nxt.pop(0)); k -= 1
                    fill(k)
            for it in nxt:
                a.play(it)
            if not nxt:
                fill(cfg.fillk)
            if n == cfg.e0at:
                fill(1000)
                for k in range(cfg.e0):
                    fifo += a.capture(dma2, k)
            if n >= 61:
                xwrite(n - 60)
        if i in (0, 7) and cfg.fine:
            stamp(24 + (i + 1) // 4)
        if i < 8:
            fifo += a.capture(refill, i + 8, wr)
        if P1 + i < 15:
            fifo += a.capture(dma1, P1 + i)
        if i == max(1, 15 - P1):
            fifo += a.capture(late15)
        if i == 10:
            fifo += a.capture(setup10)
        if i == 8:
            fifo += a.capture(setup8)
        if i == 9:
            fifo += a.capture(xt_setup)
    fill(1000)
    if cfg.pW != cfg.pG:
        a("s_setprio %d" % cfg.pW)
    stamp(5)
    a.drain_lg()
    lds_arrive(0, 12, 13)
    lds_wait(0, 4, 12, 13)
    stamp(12)
    for q in range(4):
        for i in range(1, 4):
            a("ds_read_b128 %s, v%d offset:%d" % (v(ACC1 + 16 * i + 4 * q, 4), vEX[i], (i - 1) * 4096 + q * 1024), tag="r%d" % q)
    for k in range(cfg.e0, cfg.e0 + cfg.e1):
        dma2(k)
    def op2(name, d, x, y, n):
        if cfg.nopk:
            for k in range(n):
                a("v_%s_f32 v%d, v%d, v%d" % (name, d + k, x + k, y + k))
        else:
            for k in range(0, n, 2):
                a("v_pk_%s_f32 %s, %s, %s" % (name, v(d + k, 2), v(x + k, 2), v(y + k, 2)))
    U_, T_, P_ = ACC1, ACC1 + 16, STG1
    for hf in range(2):
        o = 8 * hf
        a.wait_lg("r%d" % (2 * hf + 1))
        if hf == 1:
            lds_arrive(4, 12, 13)
        op2("add", U_ + o, U_ + o, ACC1 + 16 + o, 8)
        op2("add", ACC1 + 32 + o, ACC1 + 32 + o, ACC1 + 48 + o, 8)
        op2("add", U_ + o, U_ + o, ACC1 + 32 + o, 8)
        op2("mul", T_ + o, U_ + o, U_ + o, 8)
        if cfg.nopk:
            for k in range(8):
                a("v_fma_f32 v%d, v%d, v%d, v%d" % (T_ + o + k, T_ + o + k, vC, vC + 1))
        else:
            for k in range(0, 8, 2):
                a("v_pk_fma_f32 %s, %s, %s, %s op_sel:[0,0,1] op_sel_hi:[1,0,1]" % (v(T_ + o + k, 2), v(T_ + o + k, 2), v(vC, 2), v(vC, 2)))
        op2("mul", T_ + o, T_ + o, U_ + o, 8)
        for k in range(8):
            a("v_exp_f32 v%d, v%d" % (T_ + o + k, T_ + o + k))
        if cfg.nopk:
            for k in range(8):
                a("v_add_f32 v%d, 1.0, v%d" % (T_ + o + k, T_ + o + k))
        else:
            for k in range(0, 8, 2):
                a("v_pk_add_f32 %s, %s, 1.0 op_sel_hi:[1,0]" % (v(T_ + o + k, 2), v(T_ + o + k, 2)))
        for k in range(8):
            a("v_rcp_f32 v%d, v%d" % (T_ + o + k, T_ + o + k))
        op2("mul", T_ + o, T_ + o, U_ + o, 8)
        for k in range(4):
            a("v_cvt_pk_bf16_f32 v%d, v%d, v%d" % (P_ + 4 * hf + k, T_ + o + 2 * k, T_ + o + 2 * k + 1))
        a("buffer_store_dwordx4 %s, v%d, %s, s%d offen sc1" % (v(P_ + 4 * hf, 4), vFO, s(rWS, 4), 96 if hf else sGS), tag="gs")
    lds_arrive(28, 12, 13)
    stamp(6)
    ne = cfg.e0 + cfg.e1
    for k in range(ne, 4):
        dma2(k)
    lds_wait(4, 4, 12, 13)
    dma2(4); dma2(5)
    if ne:
        a.wait_vm("u%d" % (ne - 1))
        for k in range(ne):
            tr2(k)
    if cfg.ssig:
        a.drain_lg()
    a.wait_vm("gs")
    if cfg.ssig:
        sig8(sGC, 1024)
        a.smem = True
    else:
        group_add(vPO, sGC, 13)
    stamp(7)
    xt_loads()
    dma2(6)
    for k in range(ne, 4):
        a.wait_vm("u%d" % k); tr2(k)
    a.wait_lg("q0"); dma2(7)
    a.wait_vm("u4"); tr2(4)
    a.wait_lg("q1"); dma2(8)
    a.wait_vm("u5"); tr2(5)
    a.wait_lg("q2"); dma2(9)
    a.wait_vm("xt")
    acc2_init()
    a.drain_lg()
    mbox(512)
    spoll_pre(sT1)
    dma2(10); dma2(11)
    vm_join = list(a.vm)
    a("s_branch L_g2_pre")
    a.label("L_g2_pre_nog1")
    a.vm = []; a.lg = []
    if cfg.xnlate == 2:
        lds_arrive(40, 12, 13)
    if cfg.nagg == 8:
        a("s_cmp_lg_u32 s%d, 31" % sJ)
        a("s_cbranch_scc1 L_noagg_h")
    a("v_lshlrev_b32 v%d, %d, v0" % (vPO, cfg.fsh))
    a("s_lshl_b32 s%d, s%d, %d" % (sT1, sWV, 6 + cfg.fsh))
    a("s_add_u32 s%d, s%d, 0x%x" % (sT1, sT1, HF))
    a("v_lshlrev_b32 v12, 13, v0")
    a("v_mov_b32 v13, s%d" % sTAG)
    a("s_lshl_b32 s%d, s%d, 3" % (sT2, sX))
    a("s_add_u32 s%d, s%d, s%d" % (sT2, sT2, sWV))
    a("s_lshl_b32 s%d, s%d, 7" % (sT2, sT2))
    a("s_add_u32 s%d, s%d, 0x%x" % (sT2, sT2, MB))
    if cfg.nagg == 16:
        a("s_and_b32 s%d, s%d, 1" % (sT3, sJ))
        a("s_lshl_b32 s%d, s%d, 17" % (sT3, sT3))
        a("s_add_u32 s%d, s%d, s%d" % (sT2, sT2, sT3))
    poll([vPO], [sT1], vPD, sleep=cfg.asleep)
    a("s_mov_b64 exec, 0x%x" % (0xffffffff if cfg.nagg == 8 else 0xffff))
    a("buffer_store_dword v13, v12, %s, s%d offen sc1" % (s(rWS, 4), sT2))
    a("s_mov_b64 exec, -1")
    stamp(13)
    if cfg.xnlate:
        a("s_add_u32 s%d, s%d, 0x%x" % (sT1, sT1, XF2 - HF))
        poll([vPO], [sT1], vPD, sleep=cfg.asleep)
        a("s_mov_b64 exec, 0x%x" % (0xffffffff if cfg.nagg == 8 else 0xffff))
        a("buffer_store_dword v13, v12, %s, s%d offen offset:64 sc1" % (s(rWS, 4), sT2))
        a("s_mov_b64 exec, -1")
    a.label("L_noagg_h")
    a.vm = []
    if cfg.touch2 == 6:
        a("v_lshrrev_b32 v8, 2, v0")
        a("v_lshlrev_b32 v8, 12, v8")
        a("v_and_b32 v9, 3, v0")
        a("v_lshl_add_u32 v8, v9, 7, v8")
        a("s_mul_i32 s%d, s%d, 24" % (sT1, sWV))
        a("s_add_u32 s%d, s%d, s%d" % (sT1, sT1, sJ))
        a("s_sub_u32 s%d, s%d, 30" % (sT1, sT1))
        a("s_lshl_b32 s%d, s%d, 16" % (sT1, sT1))
        a("s_lshl_b32 s%d, s%d, 9" % (sT2, sX))
        a("s_add_u32 s%d, s%d, s%d" % (sT1, sT1, sT2))
        a("s_mov_b32 s%d, s%d" % (sT3, sT1))
        for k in range(12):
            a("buffer_load_dword v9, v8, %s, s%d offen %s" % (s(rW2, 4), sT3, cfg.t2pol), tag="tw%d" % k)
            a("s_add_u32 s%d, s%d, %d" % (sT3, sT3, 32 * 4096))
            if k == 3:
                hwait(2)
                lds_arrive(12, 12, 13)
            if k >= cfg.tdep:
                a.wait_vm("tw%d" % (k - cfg.tdep))
    else:
        hwait(4)
        lds_arrive(12, 12, 13)
        if cfg.touch2 == 7:
            lds_wait(12, 4, 12, 13, sleep=2)
            touch_w2s()
            touch_w2i()
    lds_wait(12, 4, 12, 13, sleep=2)
    a("s_setprio 2")
    xt_setup()
    xt_loads()
    w2_setup()
    tr_flip()
    for k in range(7):
        dma2(k)
        if k:
            a.wait_vm("u%d" % (k - 1))
    for k in range(6):
        tr2(k)
    acc2_init()
    a.drain_lg()
    for k in range(7, 12):
        dma2(k)
        a.wait_vm("u%d" % (k - 1))
    a.drain_vm()
    mbox(512)
    spoll_pre(sT1)
    a.label("L_g2_pre")
    a.vm = list(vm_join); a.lg = []
    stamp(8)
    a("s_mul_i32 s%d, s%d, %d" % (sOAB, sWV, 48 * 10240))
    a("s_mul_i32 s%d, s%d, 1280" % (sT0, sDT2))
    a("s_add_u32 s%d, s%d, s%d" % (sOAB, sOAB, sT0))
    a("s_add_u32 s%d, s%d, 0x%x" % (sOAB, sOAB, GB))
    spoll(sT1, cfg.psleep, target=30, pre=True)
    if cfg.pW != cfg.pG:
        a("s_setprio %d" % cfg.pG)
    stamp(9)

    def gload(n):
        mi = n % 5
        if mi == 0:
            setoff(sOA, sOAB, sORD2, n // 5, 4 * 10240)
        a("buffer_load_dwordx4 %s, v%d, %s, s%d offen offset:%d %s" % (v(STG2 + 4 * (n % NR2), 4), vFO, s(rWS, 4), sOA, 256 * mi, cfg.apol), tag="g%d" % n)

    for n in range(NR2):
        gload(n)
    vE2 = [8, 10, 11, 12, 13]
    def setup6():
        a("v_lshlrev_b32 v7, 4, v0")
        a("v_add_u32 v%d, s%d, v7" % (vE2[0], sWB))
        for k in range(1, 4):
            a("s_xor_b32 s%d, s%d, %d" % (sT0, sWV, k))
            a("s_mul_i32 s%d, s%d, %d" % (sT0, sT0, WSZ))
            a("s_add_u32 s%d, s%d, %d" % (sT0, sT0, WOFF))
            a("v_add_u32 v%d, s%d, v7" % (vE2[k], sT0))
        a("v_lshrrev_b32 v7, 2, v0")
        a("v_lshlrev_b32 v7, 7, v7")
        a("v_and_b32 v14, 3, v0")
        a("v_lshl_add_u32 v7, v14, 3, v7")
        a("s_lshl_b32 s%d, s%d, 5" % (sT0, sWV))
        a("s_add_u32 s%d, s%d, %d" % (sT0, sT0, RY))
        a("v_add_u32 v%d, s%d, v7" % (vE2[4], sT0))
    setup6()
    for i in range(12):
        wr = WREG2 + 16 * (i % 6)
        if i >= 6:
            need("q%d" % i)
            a.wait_lg("q%d" % i)
        for mi in range(5):
            n = 5 * i + mi
            nxt = a.capture(gload, n + NR2) if (n + NR2 < 60 and not cfg.noload) else []
            a.wait_vm("g%d" % n)
            for x, ni in enumerate((1, 2, 3, 0) if i == 11 else range(4)):
                acc = v(ACC2 + 20 * ni + 4 * mi, 4)
                if not cfg.nomfma or i == 0:
                    a("v_mfma_f32_16x16x32_bf16 %s, %s, %s, %s" % (acc, v(STG2 + 4 * (n % NR2), 4), v(wr + 4 * ni, 4), acc if (i or ni == 0) else "0"))
                if x < 3:
                    k = cfg.fillk
                    while len(nxt) > 1 and k:
                        a.play(nxt.pop(0)); k -= 1
                    fill(k)
                if i == 11 and mi >= 2 and x < 3:
                    a("ds_write_b128 v%d, %s offset:%d" % (vE2[0], v(ACC2 + 20 * (x + 1) + 4 * (mi - 2), 4), x * 5120 + (mi - 2) * 1024))
            for it in nxt:
                a.play(it)
        if i in (0, 5) and cfg.fine:
            stamp(28 + (i + 1) // 3)
        if i + 6 < 12:
            fifo += a.capture(tr_step, slot2(i + 6), wr, "q%d" % (i + 6))
    fill(1000)
    stamp(10)
    for q in (3, 4):
        for k in range(1, 4):
            a("ds_write_b128 v%d, %s offset:%d" % (vE2[0], v(ACC2 + 20 * k + 4 * q, 4), (k - 1) * 5120 + q * 1024))
    a.drain_lg()
    a("s_barrier")
    YR, TY, TP = WREG2 + 40, WREG2, WREG2 + 20
    for mi in range(5):
        a("ds_read_b64_tr_b16 %s, v%d offset:%d" % (v(YR + 2 * mi, 2), vE2[4], mi * 2048), tag="ya")
    for q in range(5):
        for k in range(1, 4):
            a("ds_read_b128 %s, v%d offset:%d" % (v(ACC2 + 20 * k + 4 * q, 4), vE2[k], (k - 1) * 5120 + q * 1024), tag="r%d" % q)
    a.wait_lg("ya")
    for k in range(10):
        a("v_lshlrev_b32 v%d, 16, v%d" % (TY + 2 * k, YR + k))
        a("v_and_b32 v%d, s%d, v%d" % (TY + 2 * k + 1, sMASK, YR + k))
    def pk2(d, x, y, n):
        for k in range(0, n, 2):
            a("v_pk_add_f32 %s, %s, %s" % (v(d + k, 2), v(x + k, 2), v(y + k, 2)))
    pk2(ACC2, ACC2, TY, 20)
    pol = (" " + cfg.out_pol) if cfg.out_pol else ""
    for (o, n, last) in ((0, 8, 1), (8, 8, 3), (16, 4, 4)):
        a.wait_lg("r%d" % last)
        pk2(ACC2 + o, ACC2 + o, ACC2 + 20 + o, n)
        pk2(ACC2 + 40 + o, ACC2 + 40 + o, ACC2 + 60 + o, n)
        pk2(ACC2 + o, ACC2 + o, ACC2 + 40 + o, n)
        for k in range(n // 2):
            a("v_cvt_pk_bf16_f32 v%d, v%d, v%d" % (TP + o // 2 + k, ACC2 + o + 2 * k, ACC2 + o + 2 * k + 1))
        if n == 8:
            a("buffer_store_dwordx4 %s, v%d, %s, s%d offen offset:%d%s" % (v(TP + o // 2, 4), vXO, s(rOUT, 4), sXO, 8 * o, pol))
        else:
            a("buffer_store_dwordx2 %s, v%d, %s, s%d offen offset:128%s" % (v(TP + 8, 2), vXO4, s(rOUT, 4), sXO, pol))
    stamp(11)
    if cfg.hold:
        a("s_waitcnt vmcnt(0)")
        a.label("L_hold")
        a("s_memrealtime s[100:101]")
        a("s_waitcnt lgkmcnt(0)")
        a("s_sub_u32 s100, s100, s98")
        if cfg.hx >= 0:
            a("s_sub_u32 s100, s100, s99")
        a("s_cmp_lt_u32 s100, %d" % (cfg.hold * 100))
        a("s_cbranch_scc1 L_hold")
    finish()

    a.label("L_aux_main")
    a.vm = list(aux_vm); a.lg = []
    a("s_and_b32 s%d, s%d, 1" % (sT0, sJ))
    a("s_add_u32 s%d, s%d, s%d" % (sT0, sT0, sWV))
    a("s_cmp_ge_u32 s%d, 7" % sT0)
    a("s_cbranch_scc1 %s" % ("L_w6" if cfg.stouch else "L_aux_done"))
    F0 = 64
    a.wait_vm("p")
    for k in range(6):
        a("v_lshlrev_b32 v%d, 16, v%d" % (F0 + k, PRM0 + k))
        a("v_and_b32 v%d, s%d, v%d" % (F0 + 6 + k, sMASK, PRM0 + k))
        a("v_lshlrev_b32 v%d, 16, v%d" % (F0 + 12 + k, PRM1 + k))
    vDT, vDS = 82, 83
    a("v_lshlrev_b32 v%d, 16, v%d" % (vDT, vLDT))
    a("v_lshlrev_b32 v%d, 16, v%d" % (vDS, vDSK))
    a("v_mul_f32 v%d, %s, v%d" % (vDT, f32(math.log2(math.e)), vDT))
    a("v_exp_f32 v%d, v%d" % (vDT, vDT))
    bfround(vDT)
    a("s_setprio %d" % cfg.pK)
    stamp(3)

    E = {k: 84 + 2 * (k - 1) for k in range(1, 8)}
    P = {k: 98 + 2 * (k - 1) for k in range(1, 9)}
    Q, Q2 = 114, 116
    Y = [118, 120, 122, 124]
    TT = [126, 128, 130, 132]
    CV = list(range(134, 142))
    YFR, XFR, DK = 144, 160, 208
    vFA = 220
    cvi = [0]
    def cmul1(d, x, y):
        a("v_pk_mul_f32 %s, %s, %s op_sel:[0,0] op_sel_hi:[0,1]" % (v(d, 2), v(x, 2), v(y, 2)))
    def cmul2(d, x, y):
        a("v_pk_fma_f32 %s, %s, %s, %s op_sel:[1,1,0] op_sel_hi:[1,0,1] neg_lo:[1,0,0]" % (v(d, 2), v(x, 2), v(y, 2), v(d, 2)))
    def put(r, row, neg=False):
        c = CV[cvi[0] % 8]; cvi[0] += 1
        a("v_cvt_pk_bf16_f32 v%d, v%d, %sv%d" % (c, r, "-" if neg else "", r + 1))
        return ("w", c, row)
    def wr(c, row):
        if not cfg.nokw:
            a("ds_write_addtid_b32 v%d offset:%d" % (c, row * 288))
    def group(ops):
        for d, x, y, row, neg in ops:
            cmul1(d, x, y)
        for d, x, y, row, neg in ops:
            cmul2(d, x, y)
        pend = []
        for d, x, y, row, neg in ops:
            if row is not None:
                pend.append(put(d, row, neg))
        for _, c, row in pend:
            wr(c, row)

    a("s_mov_b32 m0, s%d" % sRB)
    a("v_and_b32 v1, 15, v0")
    a("v_mul_u32_u24 v1, 288, v1")
    a("v_and_b32 v%d, 48, v0" % vFA)
    a("v_add3_u32 v%d, v%d, v1, s%d" % (vFA, vFA, sRB))
    for k in range(12):
        a("v_mov_b32 v%d, 0" % (DK + k))
    a("v_mov_b32 v143, 0x3f80")
    a("s_mov_b32 s%d, 3" % sT3)
    a.label("L_kgen")
    a.lg = []
    a("v_pk_mul_f32 v[126:127], v[64:65], v[82:83] op_sel_hi:[1,0]")
    a("v_pk_mul_f32 v[128:129], v[66:67], v[82:83] op_sel_hi:[1,0]")
    a("v_mul_f32 v126, %s, v126" % f32(math.log2(math.e)))
    a("v_mul_f32 v127, 0.15915494, v127")
    cmul1(Y[0], 68, 128)
    anchors = [(E[1], 1.0), (Q, 8.0), (P[1], 128.0)]
    for idx, (d, k) in enumerate(anchors):
        m_, f_ = 134 + 2 * idx, 135 + 2 * idx
        if k == 1.0:
            a("v_exp_f32 v%d, v126" % m_)
            a("v_fract_f32 v%d, v127" % f_)
        else:
            a("v_mul_f32 v%d, %s, v126" % (m_, f32(k)))
            a("v_mul_f32 v%d, %s, v127" % (f_, f32(k)))
            a("v_exp_f32 v%d, v%d" % (m_, m_))
            a("v_fract_f32 v%d, v%d" % (f_, f_))
    cmul2(Y[0], 68, 128)
    for idx, (d, k) in enumerate(anchors):
        a("v_cos_f32 v%d, v%d" % (d, 135 + 2 * idx))
        a("v_sin_f32 v%d, v%d" % (d + 1, 135 + 2 * idx))
    for idx, (d, k) in enumerate(anchors):
        a("v_pk_mul_f32 %s, %s, %s op_sel_hi:[1,0]" % (v(d, 2), v(d, 2), v(134 + 2 * idx, 2)))
    for k in range(12):
        a("v_mov_b32 v%d, v%d" % (F0 + k, F0 + 6 + k))
    YR0 = 25
    wr(143, 0)
    p_ = [put(Y[0], YR0, True), put(E[1], 1), put(P[1], 8)]
    for _, c, row in p_:
        wr(c, row)
    group([(Y[1], Y[0], Q, YR0 + 1, True), (Q2, Q, Q, None, False), (E[2], E[1], E[1], 2, False), (P[2], P[1], P[1], 16, False)])
    group([(Y[2], Y[0], Q2, YR0 + 2, True), (Y[3], Y[1], Q2, YR0 + 3, True), (E[3], E[2], E[1], 3, False), (E[4], E[2], E[2], 4, False)])
    group([(Y[0], Y[2], Q2, YR0 + 4, True), (Y[1], Y[3], Q2, YR0 + 5, True), (E[5], E[4], E[1], 5, False), (E[6], E[4], E[2], 6, False)])
    group([(Y[2], Y[0], Q2, YR0 + 6, True), (Y[3], Y[1], Q2, YR0 + 7, True), (E[7], E[4], E[3], 7, False), (P[3], P[2], P[1], 20, False)])
    group([(Y[0], Y[2], Q2, YR0 + 8, True), (Y[1], Y[3], Q2, YR0 + 9, True), (TT[0], P[1], E[1], 9, False), (TT[1], P[1], E[2], 10, False)])
    group([(Y[2], Y[0], Q2, YR0 + 10, True), (Y[3], Y[1], Q2, YR0 + 11, True), (TT[0], P[1], E[3], 11, False), (TT[1], P[1], E[4], 12, False)])
    group([(Y[0], Y[2], Q2, YR0 + 12, True), (Y[1], Y[3], Q2, YR0 + 13, True), (TT[0], P[1], E[5], 13, False), (TT[1], P[1], E[6], 14, False)])
    group([(Y[2], Y[0], Q2, YR0 + 14, True), (Y[3], Y[1], Q2, YR0 + 15, True), (TT[0], P[1], E[7], 15, False), (P[4], P[2], P[2], 24, False)])
    for st in range(4):
        a("ds_read_b128 %s, v%d offset:%d" % (v(YFR + 4 * st, 4), vFA, YR0 * 288 + 64 * st), tag="yf")
    for st in range(4):
        a("ds_read_b128 %s, v%d offset:%d" % (v(XFR + 4 * st, 4), vFA, 64 * st), tag="x0")
    group([(TT[0], P[2], E[2], 17, False), (TT[1], P[2], E[4], 18, False), (TT[2], P[2], E[6], 19, False), (P[5], P[4], P[1], 26, False)])
    group([(TT[0], P[3], E[2], 21, False), (TT[1], P[3], E[4], 22, False), (TT[2], P[3], E[6], 23, False), (P[6], P[4], P[2], 28, False)])
    a.wait_lg("x0")
    for st in range(4):
        a("v_mfma_f32_16x16x32_bf16 %s, %s, %s, %s" % (v(DK, 4), v(XFR + 4 * st, 4), v(YFR + 4 * st, 4), v(DK, 4)))
    group([(P[7], P[4], P[3], 30, False), (P[8], P[4], P[4], 32, False), (TT[0], P[4], E[4], 25, False), (TT[1], P[5], E[4], 27, False)])
    group([(TT[0], P[6], E[4], 29, False), (TT[1], P[7], E[4], 31, False), (TT[2], P[8], P[1], 33, False), (TT[3], P[8], P[2], 34, False)])
    for st in range(4):
        a("ds_read_b128 %s, v%d offset:%d" % (v(XFR + 16 + 4 * st, 4), vFA, 16 * 288 + 64 * st), tag="x1")
    group([(TT[0], P[8], P[3], 35, False), (TT[1], P[8], P[4], 36, False), (TT[2], P[8], P[5], 37, False)])
    group([(TT[0], P[8], P[6], 38, False), (TT[1], P[8], P[7], 39, False), (TT[2], P[8], P[8], 40, False)])
    for st in range(4):
        a("ds_read_b128 %s, v%d offset:%d" % (v(XFR + 32 + 4 * st, 4), vFA, 32 * 288 + 64 * st), tag="x2")
    a.wait_lg("x1")
    for st in range(4):
        a("v_mfma_f32_16x16x32_bf16 %s, %s, %s, %s" % (v(DK + 4, 4), v(XFR + 16 + 4 * st, 4), v(YFR + 4 * st, 4), v(DK + 4, 4)))
    a.wait_lg("x2")
    for st in range(4):
        a("v_mfma_f32_16x16x32_bf16 %s, %s, %s, %s" % (v(DK + 8, 4), v(XFR + 32 + 4 * st, 4), v(YFR + 4 * st, 4), v(DK + 8, 4)))
    a("s_sub_u32 s%d, s%d, 1" % (sT3, sT3))
    a("s_cmp_lg_u32 s%d, 0" % sT3)
    a("s_cbranch_scc1 L_kgen")
    a.drain_vm()
    stamp(4)
    a("v_and_b32 v16, 15, v0")
    a("v_lshrrev_b32 v17, 4, v0")
    a("s_add_u32 s%d, s%d, %d" % (sT0, sRB, TB_OFF))
    a("v_lshrrev_b32 v18, 1, v17")
    a("v_lshlrev_b32 v18, 7, v18")
    a("v_and_b32 v19, 1, v17")
    a("v_lshl_add_u32 v18, v19, 2, v18")
    a("v_lshl_add_u32 v18, v16, 3, v18")
    a("v_lshl_add_u32 v18, v18, 2, s%d" % sT0)
    a("v_lshlrev_b32 v19, 2, v16")
    a("v_lshlrev_b32 v20, 1, v16")
    a("v_cmp_gt_u32 vcc, 2, v17")
    a("v_cndmask_b32 v19, v20, v19, vcc")
    a("v_lshl_add_u32 v19, v17, 6, v19")
    a("v_lshl_add_u32 v19, v19, 2, s%d" % sT0)
    a("v_mov_b32 v20, 128")
    a("v_cndmask_b32 v20, v20, 8, vcc")
    a("v_add_u32 v20, v19, v20")
    a("v_lshl_add_u32 v21, v17, 6, v16")
    a("v_lshl_add_u32 v21, v21, 2, s%d" % sT0)
    a("v_lshlrev_b32 v22, 4, v0")
    a("v_add_u32 v22, %d, v22" % ZP_OFF)
    a("v_mov_b32 v23, 4096")
    a("v_cmp_gt_u32 vcc, 15, v0")
    a("v_cndmask_b32 v22, v23, v22, vcc")
    a("v_add_u32 v22, s%d, v22" % sRB)
    for k in range(4):
        a("v_mov_b32 v%d, 0" % (24 + k))
    a("ds_write_b128 v22, v[24:27]")
    a("ds_write_b128 v18, %s" % v(DK, 4))
    a("ds_write_b64 v19, %s offset:1024" % v(DK + 4, 2))
    a("ds_write_b64 v20, %s offset:1024" % v(DK + 6, 2))
    for r in range(4):
        a("ds_write_b32 v21, v%d offset:%d" % (DK + 8 + r, 2048 + 64 * r))
    a("v_lshl_add_u32 v18, v0, 4, s%d" % sT0)
    a("v_lshl_add_u32 v19, v0, 3, s%d" % sT0)
    a("v_subrev_u32 v20, 4, v18")
    a("v_subrev_u32 v21, 4, v19")
    a("v_cmp_eq_u32 vcc, 0, v0")
    a("v_cndmask_b32 v21, v19, v21, vcc")
    a("ds_read_b128 v[28:31], v18", tag="s0")
    a("ds_read_b32 v32, v20", tag="s0")
    a("ds_read_b64 v[34:35], v19 offset:1024", tag="s1")
    a("ds_read_b32 v36, v19 offset:1032", tag="s1")
    a("ds_read_b32 v37, v21 offset:1024", tag="s1")
    a("ds_read_b64 v[38:39], v19 offset:1536", tag="s2")
    a("ds_read_b32 v40, v19 offset:1544", tag="s2")
    a("ds_read_b64 v[42:43], v19 offset:2048", tag="s3")
    a("ds_read_b32 v44, v19 offset:2056", tag="s3")
    a("v_lshlrev_b32 v22, 3, v0")
    a("v_sub_u32 v22, s%d, v22" % sRB)
    a("v_lshlrev_b32 v23, 4, v0")
    a("v_sub_u32 v23, s%d, v23" % sRB)
    a("v_lshlrev_b32 v24, 5, v0")
    a("v_sub_u32 v24, s%d, v24" % sRB)
    a("v_add_u32 v22, %d, v22" % (4096 - 512 - 8))
    a("v_add_u32 v23, %d, v23" % (4096 - 1024 - 16))
    a("v_add_u32 v24, %d, v24" % (4096 - 2048 - 32))
    def pk(d, lo, hi):
        a("v_cvt_pk_bf16_f32 v%d, v%d, v%d" % (d, lo, hi))
    a("v_cndmask_b32 v33, 0, v%d, vcc" % vDS)
    a.wait_lg("s0")
    a("v_add_f32 v28, v28, v33")
    pk(48, 31, 30); pk(49, 29, 28); pk(50, 30, 29); pk(51, 28, 32)
    a("ds_write_b64 v22, v[48:49] offset:512")
    a("ds_write_b64 v22, v[50:51] offset:%d" % (512 + KB_OFF))
    a.wait_lg("s1")
    pk(52, 36, 35); pk(53, 34, 34); pk(54, 35, 34); pk(55, 34, 37)
    a("ds_write_b64 v22, v[52:53]")
    a("ds_write_b64 v22, v[54:55] offset:%d" % KB_OFF)
    a.wait_lg("s2")
    A_, B_, C_ = 38, 39, 40
    pk(56, C_, C_); pk(57, B_, B_); pk(58, B_, A_); pk(59, A_, A_)
    pk(60, C_, B_); pk(61, B_, B_); pk(62, A_, A_); pk(63, A_, A_)
    a("ds_write_b128 v23, v[56:59]")
    a("ds_write_b128 v23, v[60:63] offset:%d" % KB_OFF)
    a.wait_lg("s3")
    A_, B_, C_ = 42, 43, 44
    seqA = [(C_, C_), (C_, C_), (B_, B_), (B_, B_), (B_, B_), (B_, A_), (A_, A_), (A_, A_)]
    seqB = [(C_, C_), (C_, B_), (B_, B_), (B_, B_), (B_, B_), (A_, A_), (A_, A_), (A_, A_)]
    for k, (lo, hi) in enumerate(seqA):
        pk(64 + k, lo, hi)
    for k, (lo, hi) in enumerate(seqB):
        pk(72 + k, lo, hi)
    a("ds_write_b128 v24, v[64:67]")
    a("ds_write_b128 v24, v[68:71] offset:16")
    a("ds_write_b128 v24, v[72:75] offset:%d" % KB_OFF)
    a("ds_write_b128 v24, v[76:79] offset:%d" % (KB_OFF + 16))
    stamp(5)
    a("s_setprio 0")
    if not cfg.helper:
        a.drain_lg()
        lds_arrive(20, 8, 9)
    vUA, vKA = 10, 11
    def conv_addr(sb):
        a("v_and_b32 v12, 15, v0")
        a("v_lshrrev_b32 v13, 4, v0")
        a("v_lshlrev_b32 v13, 1, v13")
        a("v_sub_u32 v12, v12, v13")
        a("v_lshlrev_b32 v12, 4, v12")
        a("s_add_u32 s%d, s%d, %d" % (sT1, sb, U_OFF - 128))
        a("v_add_u32 v%d, s%d, v12" % (vUA, sT1))
        a("v_lshrrev_b32 v12, 1, v0")
        a("v_lshlrev_b32 v12, 2, v12")
        a("v_and_b32 v13, 1, v0")
        a("v_mul_u32_u24 v13, %d, v13" % KB_OFF)
        a("v_add_u32 v12, v12, v13")
        a("s_add_u32 s%d, s%d, %d" % (sT1, sb, KB_OFF + 4092 - 128 - 768))
        a("v_sub_u32 v%d, s%d, v12" % (vKA, sT1))
        for g in range(1, 4):
            a("v_subrev_u32 v%d, %d, v%d" % (vKA + g, 1024 * g, vKA))
    conv_addr(sRB)
    AC, KF, UF, NU = 16, 80, 208, 8
    NT = cfg.NT if cfg.helper else 16
    NH = 16 - NT
    for idx in range(32):
        c, tau = idx >> 4, idx & 15
        if tau >= NT:
            continue
        o = 192 - 64 * (tau & 3) + 32 * (1 - c)
        r = KF + 4 * idx
        a("ds_read2_b32 %s, v%d offset0:%d offset1:%d" % (v(r, 2), vKA + (tau >> 2), o, o + 1))
        a("ds_read2_b32 %s, v%d offset0:%d offset1:%d" % (v(r + 2, 2), vKA + (tau >> 2), o + 2, o + 3))
    a("v_and_b32 v4, 15, v0")
    a("v_lshlrev_b32 v4, 4, v4")
    a("v_lshrrev_b32 v5, 5, v0")
    a("v_lshl_add_u32 v4, v5, 11, v4")
    a("v_bfe_u32 v5, v0, 4, 1")
    a("v_lshl_add_u32 v4, v5, 8, v4")
    group_ids(5, 6, sX, 7)
    a("v_mov_b32 v6, %d" % CNT)
    if cfg.helper:
        a.drain_lg()
        lds_arrive(20, 8, 9)
    lds_wait(24, 1, 8, 9, sleep=1)
    stamp(7)
    if cfg.cprio:
        a("s_setprio %d" % cfg.cprio)
    seq = []
    for c in range(2):
        if cfg.helper and c == 0:
            seq += [(0, 0), (0, NT)]
            rest = [m for m in range(1, 16) if m != NT]
            while rest:
                seq += [(0, rest.pop(0)), (0, rest.pop())]
        else:
            for q in range(8):
                seq += [(c, q), (c, 15 - q)]
    def uread(n):
        c, mu = seq[n]
        a("ds_read_b128 %s, v%d offset:%d" % (v(UF + 4 * (n % NU), 4), vUA, 128 * (1 - c) + 256 * mu), tag="U%d" % n)
    for n in range(NU - 2):
        uread(n)
    stubs = []
    for n in range(32):
        c, mu = seq[n]
        if n % 2 == 0:
            if cfg.pause and n:
                a.wait_lg("pz")
                if cfg.pth > 1:
                    a("v_sub_u32 v8, v8, v9")
                    a("v_cmp_le_u32 vcc, %d, v8" % cfg.pth)
                else:
                    a("v_cmp_ne_u32 vcc, v8, v9")
                a("s_cbranch_vccnz L_pz%d" % n)
                a.label("L_np%d" % n)
                stubs.append(n)
            if cfg.pause and n < 30:
                a("ds_read2_b32 v[8:9], v6 offset0:0 offset1:7", tag="pz")
            for k in (n + NU - 2, n + NU - 1):
                if k < 32:
                    uread(k)
        a.wait_lg("U%d" % n)
        for tau in range(min(NT, 16 - mu)):
            acc = v(AC + 4 * (tau + mu), 4)
            first = n == 0 or (cfg.helper and n == 1)
            if not cfg.noconv or first:
                a("v_mfma_f32_16x16x32_bf16 %s, %s, %s, %s" % (acc, v(KF + 4 * (16 * c + tau), 4), v(UF + 4 * (n % NU), 4), "0" if first else acc))
    stamp(8)
    if cfg.helper:
        a("s_sub_u32 s%d, s%d, 3" % (sT3, sWV))
        lds_wait(36, "s%d" % sT3, 8, 9, sleep=1)
        a("v_add_u32 v8, s%d, v2" % sRB)
        for q in range(NH):
            a("ds_read_b128 %s, v8 offset:%d" % (v(UF + 4 * q, 4), 1024 * q), tag="hp%d" % q)
        for q in range(NH):
            a.wait_lg("hp%d" % q)
            for r in range(4):
                a("v_add_f32 v%d, v%d, v%d" % (AC + 4 * (NT + q) + r, AC + 4 * (NT + q) + r, UF + 4 * q + r))
    if cfg.eprio != cfg.cprio:
        a("s_setprio %d" % cfg.eprio)
    CY = 100
    for r in range(4):
        a("v_mov_b32 v%d, 0" % (CY + r))
    for m in range(8):
        for r in range(4):
            a("v_permlane32_swap_b32 v%d, v%d" % (AC + 4 * m + r, AC + 32 + 4 * m + r))
    for r in range(4):
        a("v_mov_b32 v%d, v%d" % (CY + 4 + r, AC + 32 + 28 + r))
    for m in range(8):
        for r in range(4):
            L_ = AC + 4 * m + r
            a("v_add_f32_dpp v%d, v%d, v%d row_shr:1 row_mask:0xf bank_mask:0xf bound_ctrl:0" % (L_, AC + 32 + 4 * m + r, L_))
        if m == 0:
            for r in range(4):
                a("v_permlane32_swap_b32 v%d, v%d" % (CY + r, CY + 4 + r))
    for m in range(8):
        for r in range(4):
            L_ = AC + 4 * m + r
            prev = (AC + 32 + 4 * (m - 1) + r) if m else (CY + r)
            a("v_add_f32_dpp v%d, v%d, v%d row_shl:15 row_mask:0xf bank_mask:0xf bound_ctrl:0" % (L_, prev, L_))
    TP2 = 108
    for k in range(16):
        a("v_cvt_pk_bf16_f32 v%d, v%d, v%d" % (TP2 + k, AC + 2 * k, AC + 2 * k + 1))
    for mp in range(4):
        a("v_permlane16_swap_b32 v%d, v%d" % (TP2 + 4 * mp, TP2 + 4 * mp + 2))
        a("v_permlane16_swap_b32 v%d, v%d" % (TP2 + 4 * mp + 1, TP2 + 4 * mp + 3))
    if cfg.ysync:
        a("s_and_b32 s%d, s%d, 1" % (sT2, sJ))
        a("s_add_u32 s%d, s%d, 2" % (sT2, sT2))
        a("v_mov_b32 v12, %d" % (CNT + 32))
        a("v_mov_b32 v13, s%d" % sT2)
        a("s_mov_b64 exec, 1")
        a("ds_add_u32 v12, v13")
        a("s_mov_b64 exec, -1")
        lds_wait(32, 6, 12, 13, sleep=1)
    a("s_lshl_b32 s%d, s%d, 12" % (sT0, sPOS))
    a("s_add_u32 s%d, s%d, 0x%x" % (sT0, sT0, YA))
    for mp in range(4):
        a("buffer_store_dwordx4 %s, v4, %s, s%d offen offset:%d sc1" % (v(TP2 + 4 * mp, 4), s(rWS, 4), sT0, 512 * mp))
    if cfg.ssig:
        a("s_lshl_b32 s%d, s%d, 10" % (sT1, sX))
        a("s_add_u32 s%d, s%d, 0x%x" % (sT1, sT1, YC))
        if cfg.ywg:
            assert not cfg.ln4
            a("v_mov_b32 v12, %d" % (CNT + 8))
            a("v_mov_b32 v13, 1")
            a("s_and_b32 s%d, s%d, 1" % (sT2, sJ))
        a.drain_vm()
        if cfg.ywg:
            a("s_mov_b64 exec, 1")
            a("ds_add_rtn_u32 v13, v12, v13")
            a("s_mov_b64 exec, -1")
            a.drain_lg()
            a("v_readfirstlane_b32 s%d, v13" % sT0)
            a("s_add_u32 s%d, s%d, s%d" % (sT0, sT0, sT2))
            a("s_cmp_lg_u32 s%d, 2" % sT0)
            a("s_cbranch_scc1 L_aux_done")
        sig8(sT1, 128)
    else:
        a("s_mov_b32 s%d, 0x%x" % (sT1, YC))
        a.drain_vm()
        group_add(5, sT1, 13)
    stamp(9)
    a.label("L_aux_done")
    finish()
    def emit_stubs(lst):
        for n in lst:
            a.label("L_pz%d" % n)
            a("s_mov_b32 s%d, 0x%x" % (sCNT, cfg.spin * 64))
            a.label("L_pl%d" % n)
            a("s_sleep 1")
            a("ds_read2_b32 v[8:9], v6 offset0:0 offset1:7")
            a("s_sub_u32 s%d, s%d, 1" % (sCNT, sCNT))
            a("s_cbranch_scc1 L_np%d" % n)
            a.drain_lg()
            a("v_cmp_ne_u32 vcc, v8, v9")
            a("s_cbranch_vccnz L_pl%d" % n)
            a("s_branch L_np%d" % n)
    emit_stubs(stubs)
    hstubs = []
    if cfg.stouch:
        a.label("L_w6")
        a("s_lshr_b32 s%d, s%d, 1" % (sT0, sJ))
        a("s_mul_i32 s%d, s%d, %d" % (sT0, sT0, 96 * 4096))
        a("s_lshl_b32 s%d, s%d, 9" % (sT1, sX))
        a("s_add_u32 s%d, s%d, s%d" % (sT0, sT0, sT1))
        a("s_add_u32 s14, s%d, s%d" % (pW2, sT0))
        a("s_addc_u32 s15, s%d, 0" % (pW2 + 1))
        a("s_mov_b32 s%d, 24" % sCNT)
        a.label("L_w6l")
        for r in range(4):
            for c in range(4):
                a("s_load_dword s%d, s[14:15], 0x%x" % (76 + (4 * r + c) % 8, r * 4096 + c * 128))
            if cfg.stouch == 2:
                a("s_waitcnt lgkmcnt(8)")
        a("s_add_u32 s14, s14, %d" % (4 * 4096))
        a("s_addc_u32 s15, s15, 0")
        a("s_sub_u32 s%d, s%d, 1" % (sCNT, sCNT))
        a("s_cmp_lg_u32 s%d, 0" % sCNT)
        a("s_cbranch_scc1 L_w6l")
        stamp(9)
        a("s_branch L_aux_done")
    a.label("L_w7")
    a.vm = []; a.lg = []
    tile_math()
    a("s_setprio %d" % cfg.uprio)
    if cfg.w7mb:
        a("s_lshl_b32 s%d, s%d, 10" % (sT1, sID))
        a("s_add_u32 s%d, s%d, 0x%x" % (sT1, sT1, MB))
        a("s_add_u32 s14, s%d, s%d" % (pWS, sT1))
        a("s_addc_u32 s15, s%d, 0" % (pWS + 1))
        a("s_mov_b32 s%d, %d" % (sCNT, cfg.spin * 2))
        a.label("L_p4")
        for k in range(4):
            a("s_load_dword s%d, s[14:15], %d glc" % (sD[k], 128 * k + (64 if cfg.xnlate else 0)))
        a("s_waitcnt lgkmcnt(0)"); a.lg = []
        for k in range(4):
            a("s_xor_b32 s%d, s%d, s%d" % (sD[k], sD[k], sTAG))
        a("s_or_b32 s%d, s%d, s%d" % (sD[0], sD[0], sD[1]))
        a("s_or_b32 s%d, s%d, s%d" % (sD[2], sD[2], sD[3]))
        a("s_or_b32 s%d, s%d, s%d" % (sD[0], sD[0], sD[2]))
        a("s_cbranch_scc0 L_p4ok")
        a("s_sleep 2")
        a("s_sub_u32 s%d, s%d, 1" % (sCNT, sCNT))
        a("s_cmp_lg_u32 s%d, 0" % sCNT)
        a("s_cbranch_scc1 L_p4")
        a.label("L_p4ok")
    else:
        lds_wait(12, 4, 10, 11, sleep=2)
    stamp(5)
    def touch_w2():
        sh = 2 if cfg.map2 == 8 else 3
        a("v_lshrrev_b32 v10, %d, v0" % sh)
        a("v_lshlrev_b32 v10, 12, v10")
        a("v_and_b32 v11, %d, v0" % ((1 << sh) - 1))
        a("v_lshl_add_u32 v10, v11, 7, v10")
        a("s_mul_i32 s%d, s%d, %d" % (sT1, sJ, 48 * 4096))
        if cfg.map2 == 8:
            a("s_lshl_b32 s%d, s%d, 9" % (sT2, sX))
        else:
            a("s_lshr_b32 s%d, s%d, 1" % (sT2, sX))
            a("s_lshl_b32 s%d, s%d, 10" % (sT2, sT2))
        a("s_add_u32 s%d, s%d, s%d" % (sT1, sT1, sT2))
        n = 3 if cfg.map2 == 8 else 6
        for k in range(n):
            a("buffer_load_dword v%d, v10, %s, s%d offen %s" % (100 + k, s(rW2, 4), sT1, cfg.t2pol))
            a("s_add_u32 s%d, s%d, %d" % (sT1, sT1, (64 >> sh) * 4096))
            if cfg.t2gap:
                a.drain_vm()
    if cfg.touch2 == 1 or cfg.refresh:
        sv = cfg.t2pol
        if cfg.refresh:
            cfg.t2pol = ''
        touch_w2()
        cfg.t2pol = sv
    a("s_cmp_lg_u32 s%d, 0" % sID)
    a("s_cbranch_scc1 L_noE")
    a("s_mov_b32 s%d, 0x%x" % (sT0, EW))
    flag_store(sT0, 12, 13)
    a.label("L_noE")
    if cfg.late:
        a("s_cmp_ge_u32 s%d, 30" % sJ)
        a("s_cbranch_scc1 L_w7_nl")
        lds_wait(28 if cfg.late == 1 else 0, 4 if cfg.late == 1 else 1, 10, 11, sleep=4)
        a.label("L_w7_nl")
    a("v_lshrrev_b32 v8, 2, v0")
    a("v_and_b32 v9, 3, v0")
    a("v_mul_u32_u24 v10, 10240, v8")
    a("v_lshl_add_u32 v10, v9, 4, v10")
    a("v_mul_u32_u24 v11, %d, v9" % S)
    a("v_lshl_add_u32 v11, v8, 4, v11")
    a("s_lshl_b32 s%d, s%d, 4" % (sT1, sPOS))
    a("s_add_u32 s%d, s%d, 0x%x" % (sT1, sT1, XB))
    a("s_and_b32 s%d, s%d, 1" % (sT3, sJ))
    a("s_cmp_eq_u32 s%d, 0" % sT3)
    a("s_mov_b32 s%d, 0x33333333" % sT2)
    a("s_cselect_b32 s14, 0x77777777, s%d" % sT2)
    a("s_mov_b32 s15, s14")
    a("s_mov_b64 exec, s[14:15]")
    for k in range(16):
        a("buffer_load_dwordx4 %s, v10, %s, s%d offen sc1" % (v(16 + 4 * k, 4), s(rWS, 4), sT1), tag="u%d" % k)
        if k < 15:
            a("s_add_u32 s%d, s%d, %d" % (sT1, sT1, 16 * 10240))
    a("s_mov_b64 exec, -1")
    lds_arrive_n = None
    a("v_mov_b32 v12, %d" % (CNT + 20))
    a("v_mov_b32 v13, s%d" % sT3)
    a("s_mov_b64 exec, 1")
    a("ds_add_u32 v12, v13")
    a("s_mov_b64 exec, -1")
    lds_wait(20, 3, 12, 13, sleep=2)
    a("s_mov_b64 exec, s[14:15]")
    for k in range(16):
        a.wait_vm("u%d" % k)
        a("ds_write_b128 v11, %s offset:%d" % (v(16 + 4 * k, 4), U_OFF + 256 * k))
    a("s_mov_b64 exec, -1")
    a.drain_lg()
    lds_arrive(24, 12, 13)
    stamp(9)
    if cfg.helper:
        a("s_setprio %d" % cfg.cprio)
        assert NH <= 6
        a("s_mov_b32 s%d, 0" % sRB)
        a("v_mov_b32 v6, %d" % CNT)
        conv_addr(sRB)
        hseq = []
        for c in range(2):
            rest = list(range(NH))
            while rest:
                hseq.append((c, rest.pop(0)))
                if rest:
                    hseq.append((c, rest.pop()))
        def hregs(ch):
            b = ch & 1
            return 16 + 24 * b, 64 + 96 * b, 112 + 96 * b
        def hreads(ch):
            HA, HK, HU = hregs(ch)
            if ch:
                for r in (vUA, vKA + 2, vKA + 3):
                    a("v_add_u32 v%d, %d, v%d" % (r, S, r))
            for c in range(2):
                for tau in range(NT, 16):
                    o = 192 - 64 * (tau & 3) + 32 * (1 - c)
                    r = HK + 4 * (NH * c + tau - NT)
                    a("ds_read2_b32 %s, v%d offset0:%d offset1:%d" % (v(r, 2), vKA + (tau >> 2), o, o + 1), tag="h%d" % ch)
                    a("ds_read2_b32 %s, v%d offset0:%d offset1:%d" % (v(r + 2, 2), vKA + (tau >> 2), o + 2, o + 3), tag="h%d" % ch)
            for n, (cc, mu) in enumerate(hseq):
                a("ds_read_b128 %s, v%d offset:%d" % (v(HU + 4 * n, 4), vUA, 128 * (1 - cc) + 256 * mu), tag="h%d" % ch)
        hreads(0)
        for ch in range(3):
            HA, HK, HU = hregs(ch)
            a.drain_lg()
            if ch:
                lds_arrive(36, 8, 9)
            if ch == 2:
                a("s_bitcmp1_b32 s%d, 0" % sJ)
                a("s_cbranch_scc1 L_hdone")
            hf_ = a.capture(hreads, ch + 1) if ch < 2 else []
            cnt = 0
            for n, (c, mu) in enumerate(hseq):
                if n % 4 == 0 and cfg.pause:
                    if n:
                        a.wait_lg("pz")
                        a("v_cmp_ne_u32 vcc, v8, v9")
                        a("s_cbranch_vccnz L_pz%d" % (100 + 20 * ch + n))
                        a.label("L_np%d" % (100 + 20 * ch + n))
                        hstubs.append(100 + 20 * ch + n)
                    if n + 4 < len(hseq):
                        a("ds_read2_b32 v[8:9], v6 offset0:0 offset1:7", tag="pz")
                for tau in range(NT, 16 - mu):
                    acc = v(HA + 4 * (tau + mu - NT), 4)
                    a("v_mfma_f32_16x16x32_bf16 %s, %s, %s, %s" % (acc, v(HK + 4 * (NH * c + tau - NT), 4), v(HU + 4 * n, 4), acc if n else "0"))
                    if hf_:
                        a.play(hf_.pop(0))
            for it in hf_:
                a.play(it)
            for q in range(NH):
                a("ds_write_b128 v2, %s offset:%d" % (v(HA + 4 * q, 4), ch * S + 1024 * q))
        a.drain_lg()
        lds_arrive(36, 8, 9)
        a.label("L_hdone")
        a.drain_lg()
        a("s_setprio %d" % cfg.uprio)
        stamp(8)
    if cfg.ywait:
        a("s_cmp_ge_u32 s%d, 30" % sJ)
        a("s_cbranch_scc1 L_yw")
        lds_wait(28, 4, 10, 11, sleep=8)
        a.label("L_yw")
    if cfg.ssig:
        a("s_and_b32 s%d, s%d, 63" % (sT1, sID))
        a("s_lshl_b32 s%d, s%d, 7" % (sT1, sT1))
    else:
        a("s_lshl_b32 s%d, s%d, 7" % (sT1, sID))
    a("s_add_u32 s%d, s%d, 0x%x" % (sT1, sT1, YC))
    if not cfg.noya:
        spoll(sT1, cfg.ysleep, target=32 if (cfg.ywg and cfg.ssig) else 80)
    stamp(6)
    a("v_lshrrev_b32 v8, 3, v0")
    a("v_lshlrev_b32 v8, 12, v8")
    a("v_and_b32 v9, 7, v0")
    a("v_lshl_add_u32 v8, v9, 4, v8")
    a("s_mul_i32 s%d, s%d, %d" % (sT0, sDT2, 80 * 4096))
    a("s_lshl_b32 s%d, s%d, 7" % (sT1, sST))
    a("s_add_u32 s%d, s%d, s%d" % (sT0, sT0, sT1))
    a("s_add_u32 s%d, s%d, 0x%x" % (sT0, sT0, YA))
    for k in range(10):
        a("buffer_load_dwordx4 %s, v8, %s, s%d offen sc1" % (v(16 + 4 * k, 4), s(rWS, 4), sT0), tag="y%d" % k)
        if k < 9:
            a("s_add_u32 s%d, s%d, %d" % (sT0, sT0, 8 * 4096))
    for k in range(10):
        a.wait_vm("y%d" % k)
        a("ds_write_b128 v2, %s offset:%d" % (v(16 + 4 * k, 4), RY + 1024 * k))
    stamp(7)
    finish()
    emit_stubs(hstubs)
    a.label("L_exit")
    a("s_endpgm")
    a.label("L_code_end")
    return a

HEADER = open("cdna_kernels/%s.s.ref" % NAME).read().split("; Override launch")[0]

DOC = """;
;            MFMA-fragment-blocked layout [token/8][channel][8]; waves 0-3 pre-load their w1 slice
"""

def full(cfg):
    a = gen(cfg)
    out = HEADER
    out += "; @launch grid=(256,1,1) block=(512,1,1) lds=%d\n" % LDS_BYTES
    out += DOC
    out += '.amdgcn_target "amdgcn-amd-amdhsa--gfx950"\n.text\n.globl %s_kernel\n.p2align 8\n.type %s_kernel,@function\n' % (NAME, NAME)
    out += a.text()
    out += """.section .rodata,"a"
.p2align 6
.amdhsa_kernel %s_kernel
  .amdhsa_next_free_vgpr 256
  .amdhsa_next_free_sgpr 102
  .amdhsa_accum_offset 256
  .amdhsa_group_segment_fixed_size 0
  .amdhsa_kernarg_size 136
  .amdhsa_user_sgpr_count 2
  .amdhsa_user_sgpr_kernarg_segment_ptr 1
  .amdhsa_system_sgpr_workgroup_id_x 1
  .amdhsa_float_denorm_mode_32 3
.end_amdhsa_kernel
""" % NAME
    return out, a

if __name__ == "__main__":
    cfg = Cfg()
    outp = "cdna_kernels/%s.s" % NAME
    for arg in sys.argv[1:]:
        k, val = arg.split("=")
        if k == "out":
            outp = val
        else:
            cur = getattr(cfg, k)
            setattr(cfg, k, val if isinstance(cur, str) else (bool(int(val)) if isinstance(cur, bool) else int(val)))
    txt, a = full(cfg)
    open(outp, "w").write(txt)
    print("wrote", outp, "instr", a.ninst, "pad states", a.npad)
```

```python
import sys, struct, math
from asmlib import Asm, v, s

NAME = "parallel_sum__ssm_conv_s4__mixer_token_mlp__prompt"

def f32(x):
    return "0x%08x" % struct.unpack("<I", struct.pack("<f", x))[0]

class Cfg:
    ts = False
    spin = 32768
    depth1 = 2
    depth2 = 2
    out_pol = ""
    stop = 99
    xpol = ''
    ppol = ''
    tpol = ''
    t2pol = ''
    map8 = 1
    map1 = 8
    map2 = 8
    t2gap = 0
    late = 0
    fsh = 7
    touch1 = 0
    xtl = 1
    kprio = 1
    pre1 = 0
    touch2 = 0
    tdep = 1
    p4s = 0
    sepu = 1
    kg2 = 3
    tprio = 3
    t7 = 0
    keepk = 0
    c16k = 9
    nox = 1
    stsh = 5
    exactln = 0
    xnlate = 0
    xnat = 2
    NT = 10
    helper = 0
    skip2 = 0
    skip1 = 0
    noya = 0
    fake = 0
    ysync = 0
    ng1 = 10
    P1 = 15
    pK = 0
    pP = 3
    pG = 2
    pW = 2
    ywg = 1
    stouch = 0
    ywait = 1
    ssig = 1
    pbal = 0
    pth = 3
    ln4 = 1
    w7mb = 1
    e0at = 55
    nr1 = 12
    nr2 = 16
    noxn = 0
    hold = 0
    hx = -1
    fillk = 1
    noload = 0
    xm1 = 2
    fm1 = 0
    xm2 = 3
    fm2 = 0
    nokw = 0
    nopk = 0
    cprio = 0
    eprio = 3
    lateb = 0
    nagg = 8
    wrot1 = 1
    wrot2 = 1
    prea = 0
    preb = 1
    prec = 0
    swz = 0
    fine = 1
    c8k = 13
    uprio = 3
    refresh = 0
    e1 = 2
    e0 = 2
    nt1 = 0
    nt2 = 0
    pause = 1
    psleep = 0
    asleep = 0
    badmap = False
    dbg = False
    dbgw = 8
    nomfma = False
    apol = 'sc1'
    noadv = False
    noconv = False
    rotm1 = 0
    rotk1 = 0
    rotm2 = 0
    rotk2 = 0
    nsh1 = 1
    sub1 = 2
    nsh2 = 1
    sub2 = 2
    rot3 = 0
    ysleep = 2

HB, XB, GB, YA = 0, 0x280000, 0x500000, 0x700000
FL = 0xA00000
HF, XF, GF, YF, EW = FL, FL + 0x10000, FL + 0x20000, FL + 0x40000, FL + 0x60000
XF2 = FL + 0x20000
ST = FL + 0x40000
MB, YC = FL + 0x80000, FL + 0x10000
TSO = 0xB00000
WS_BYTES = 0xC00000
S = 12576
RY = 3 * S
CNT = RY + 10240
STA = CNT + 64
BIA = CNT + 96
WOFF = 49152
WSZ = 28672
LDS_BYTES = 163840
KB_OFF, ZP_OFF, U_OFF = 4160, 8256, 8480
TB_OFF = U_OFF + 16
sID, sWV, sX, sJ, sTAG = 2, 3, 4, 5, 6
pX, pARE, pAIM, pBRE, pBIM, pCRE, pCIM, pLDT, pDSK, pBX, pW1, pB1, pW2, pB2, pOUT, pDBG, pWS = [16 + 2 * i for i in range(17)]
rWS, rX, rW1, rW2, rOUT, rCODE = 52, 56, 60, 64, 68, 72
rB = rCODE
sDT, sFT, sDT2, sST, sWB = 76, 77, 78, 79, 80
sOW, sOWB, sOWE = 81, 82, 83
sOA, sOAB, sOAE = 84, 85, 86
sD = [87, 88, 89, 90]
sT0, sT1, sT2, sT3 = 8, 9, 10, 11
sCNT = 12
sORD1, sORD2 = (50, 51), (91, 92)
sPOS, sCH, sRB = 93, 94, 95
sMASK = 13
vL, vTS = 0, 15

def gen(cfg):
    a = Asm()
    nts = [0]
    def stamp(idx):
        if cfg.hx == idx and cfg.hold and stamp.gemm:
            a("s_memrealtime s[100:101]")
            a("s_waitcnt lgkmcnt(0)"); a.lg = []
            a("s_sub_u32 s99, s100, s98")
        if not cfg.ts:
            return
        a("s_memrealtime s[98:99]")
        a("s_waitcnt lgkmcnt(0)"); a.lg = []
        a("v_writelane_b32 v%d, s98, %d" % (vTS, idx))
        if idx in (0, 4, 5, 9, 10, 11):
            a("s_memtime s[98:99]")
            a("s_waitcnt lgkmcnt(0)")
            a("v_writelane_b32 v%d, s98, %d" % (vTS, 48 + idx))

    stamp.gemm = True
    def finish():
        if cfg.ts:
            a("s_lshl_b32 s%d, s%d, 3" % (sT0, sID))
            a("s_add_u32 s%d, s%d, s%d" % (sT0, sT0, sWV))
            a("s_lshl_b32 s%d, s%d, 8" % (sT0, sT0))
            a("s_add_u32 s%d, s%d, 0x%x" % (sT0, sT0, TSO))
            a("v_lshlrev_b32 v1, 2, v%d" % vL)
            a("buffer_store_dword v%d, v1, %s, s%d offen" % (vTS, s(rWS, 4), sT0))
            if cfg.dbg:
                n = nts[0]; nts[0] += 1
                a("s_lshl_b32 s%d, s%d, 3" % (sT0, sID))
                a("s_add_u32 s%d, s%d, s%d" % (sT0, sT0, sWV))
                a("s_cmp_lg_u32 s%d, %d" % (sT0, cfg.dbgw))
                a("s_cbranch_scc1 L_nodbg%d" % n)
                a("v_readlane_b32 s%d, v%d, 0" % (sT0, vTS))
                a("v_subrev_u32 v2, s%d, v%d" % (sT0, vTS))
                a("s_mov_b64 exec, 0xffff")
                a("global_store_dword v1, v2, %s" % s(pDBG, 2))
                a.label("L_nodbg%d" % n)
        a("s_waitcnt vmcnt(0) lgkmcnt(0)")
        a("s_endpgm")

    def srd(r, p, nbytes):
        a("s_mov_b32 s%d, s%d" % (r, p))
        a("s_and_b32 s%d, s%d, 0xffff" % (r + 1, p + 1))
        a("s_mov_b32 s%d, 0x%x" % (r + 2, nbytes))
        a("s_mov_b32 s%d, 0x20000" % (r + 3))

    npoll = [0]
    def poll(voffs, soffs, vdata, sleep=4, lanes=64):
        n = npoll[0]; npoll[0] += 1
        a("s_mov_b32 s%d, %d" % (sCNT, cfg.spin))
        if lanes < 64:
            a("s_mov_b64 exec, %d" % ((1 << lanes) - 1))
        a.label("L_poll%d" % n)
        for k, (vo, so) in enumerate(zip(voffs, soffs)):
            a("buffer_load_dword v%d, v%d, %s, s%d offen sc1" % (vdata + k, vo, s(rWS, 4), so))
        a.drain_vm()
        a("v_cmp_ne_u32 vcc, s%d, v%d" % (sTAG, vdata))
        for k in range(1, len(voffs)):
            a("v_cmp_ne_u32 s[14:15], s%d, v%d" % (sTAG, vdata + k))
            a("s_or_b64 vcc, vcc, s[14:15]")
        a("s_cmp_eq_u64 vcc, 0")
        a("s_cbranch_scc1 L_pollok%d" % n)
        a("s_sub_u32 s%d, s%d, 1" % (sCNT, sCNT))
        a("s_cmp_eq_u32 s%d, 0" % sCNT)
        a("s_cbranch_scc1 L_pollok%d" % n)
        a("s_mov_b64 exec, vcc")
        if sleep:
            a("s_sleep %d" % sleep)
        a("s_branch L_poll%d" % n)
        a.label("L_pollok%d" % n)
        a("s_mov_b64 exec, -1")

    def spoll_pre(soff):
        a("s_add_u32 s14, s%d, s%d" % (pWS, soff))
        a("s_addc_u32 s15, s%d, 0" % (pWS + 1))
        a("s_load_dword s7, s[14:15], 0 glc")
    def spoll(soff, sleep=1, target=None, pre=False):
        n = npoll[0]; npoll[0] += 1
        if not pre:
            a("s_add_u32 s14, s%d, s%d" % (pWS, soff))
            a("s_addc_u32 s15, s%d, 0" % (pWS + 1))
        a("s_mov_b32 s%d, %d" % (sCNT, cfg.spin * 2))
        if pre:
            a("s_branch L_sq%d" % n)
        a.label("L_sp%d" % n)
        a("s_load_dword s7, s[14:15], 0 glc")
        a.label("L_sq%d" % n)
        a("s_waitcnt lgkmcnt(0)"); a.lg = []
        if target is None:
            a("s_cmp_eq_u32 s7, s%d" % sTAG)
        else:
            a("s_cmp_eq_u32 s7, %d" % target)
        a("s_cbranch_scc1 L_spok%d" % n)
        if sleep:
            a("s_sleep %d" % sleep)
        a("s_sub_u32 s%d, s%d, 1" % (sCNT, sCNT))
        a("s_cmp_lg_u32 s%d, 0" % sCNT)
        a("s_cbranch_scc1 L_sp%d" % n)
        a.label("L_spok%d" % n)

    def group_ids(vdst, vtmp, sg, shift):
        if cfg.map2 == 8:
            a("v_and_b32 v%d, 24, v0" % vdst)
            a("v_lshlrev_b32 v%d, 3, v%d" % (vdst, vdst))
            a("v_and_b32 v%d, 7, v0" % vtmp)
            a("v_add_u32 v%d, v%d, v%d" % (vdst, vdst, vtmp))
            a("s_lshl_b32 s%d, s%d, 3" % (sT0, sg))
        else:
            a("v_and_b32 v%d, 28, v0" % vdst)
            a("v_lshlrev_b32 v%d, 3, v%d" % (vdst, vdst))
            a("v_and_b32 v%d, 3, v0" % vtmp)
            a("v_lshl_add_u32 v%d, v%d, 1, v%d" % (vdst, vtmp, vdst))
            a("s_and_b32 s%d, s%d, 3" % (sT0, sg))
            a("s_lshl_b32 s%d, s%d, 3" % (sT0, sT0))
            a("s_lshr_b32 s14, s%d, 2" % sg)
            a("s_add_u32 s%d, s%d, s14" % (sT0, sT0))
        a("v_add_lshl_u32 v%d, v%d, s%d, %d" % (vdst, vdst, sT0, shift))

    def group_add(voff, soff, vtmp):
        a("v_mov_b32 v%d, 1" % vtmp)
        a("s_mov_b64 exec, 0xffffffff")
        a("buffer_atomic_add v%d, v%d, %s, s%d offen sc1" % (vtmp, voff, s(rWS, 4), soff), tag="flag")
        a("s_mov_b64 exec, -1")

    def sig8(soff, stride):
        a("s_add_u32 s14, s%d, s%d" % (pWS, soff))
        a("s_addc_u32 s15, s%d, 0" % (pWS + 1))
        a("s_mov_b32 s7, 1")
        for x in range(8):
            a("s_atomic_add s7, s[14:15], 0x%x" % (x * stride))

    def flag_store(soff, vtmp0, vtmp1):
        a("v_mov_b32 v%d, s%d" % (vtmp0, sTAG))
        a("v_mov_b32 v%d, 0" % vtmp1)
        a("s_mov_b64 exec, 1")
        a("buffer_store_dword v%d, v%d, %s, s%d offen sc1" % (vtmp0, vtmp1, s(rWS, 4), soff), tag="flag")
        a("s_mov_b64 exec, -1")

    nl = [0]
    def lds_arrive(off, vt0, vt1):
        a("v_mov_b32 v%d, %d" % (vt0, CNT + off))
        a("v_mov_b32 v%d, 1" % vt1)
        a("s_mov_b64 exec, 1")
        a("ds_add_u32 v%d, v%d" % (vt0, vt1))
        a("s_mov_b64 exec, -1")

    def lds_wait(off, target, vt0, vt1, sleep=0):
        n = nl[0]; nl[0] += 1
        a("v_mov_b32 v%d, %d" % (vt0, CNT + off))
        a("s_mov_b32 s%d, 0x%x" % (sCNT, cfg.spin * 64))
        a.label("L_lw%d" % n)
        a("ds_read_b32 v%d, v%d" % (vt1, vt0))
        a.drain_lg()
        a("v_readfirstlane_b32 s%d, v%d" % (sT0, vt1))
        a("s_cmp_ge_u32 s%d, %s" % (sT0, target))
        a("s_cbranch_scc1 L_lwok%d" % n)
        if sleep:
            a("s_sleep %d" % sleep)
        a("s_sub_u32 s%d, s%d, 1" % (sCNT, sCNT))
        a("s_cmp_lg_u32 s%d, 0" % sCNT)
        a("s_cbranch_scc1 L_lw%d" % n)
        a.label("L_lwok%d" % n)

    a.label(NAME + "_kernel")
    a("s_cmp_ge_u32 s2, 256")
    a("s_cbranch_scc1 L_exit")
    if cfg.hold:
        a("s_memrealtime s[98:99]")
    a("s_load_dwordx16 s[16:31], s[0:1], 0")
    a("s_load_dwordx16 s[32:47], s[0:1], 64")
    a("s_load_dwordx2 s[48:49], s[0:1], 128")
    a("s_getpc_b64 s[%d:%d]" % (rCODE, rCODE + 1))
    a.label("L_pc")
    a("v_lshrrev_b32 v1, 6, v0")
    a("v_and_b32 v0, 63, v0")
    if cfg.ts:
        a("v_mov_b32 v%d, 0" % vTS)
    a("v_readfirstlane_b32 s%d, v1" % sWV)
    if cfg.badmap:
        a("s_lshr_b32 s%d, s2, 5" % sX)
        a("s_and_b32 s%d, s2, 31" % sJ)
    else:
        a("s_and_b32 s%d, s2, 7" % sX)
        a("s_lshr_b32 s%d, s2, 3" % sJ)
    a("s_mov_b32 s%d, 0xffff0000" % sMASK)
    a("s_and_b32 s%d, s%d, 0xffff" % (rCODE + 1, rCODE + 1))
    a("s_mov_b32 s%d, L_code_end-L_pc" % (rCODE + 2))
    a("s_mov_b32 s%d, 0x20000" % (rCODE + 3))
    a("s_cmp_lg_u32 s%d, 7" % sWV)
    a("s_cbranch_scc1 L_nopf")
    a("s_lshl_b32 s%d, s%d, 7" % (sT0, sJ))
    a("v_lshlrev_b32 v1, 12, v0")
    a("buffer_load_dword v14, v1, %s, s%d offen" % (s(rCODE, 4), sT0))
    a("v_mov_b32 v21, %d" % CNT)
    for k in range(4):
        a("v_mov_b32 v%d, 0" % (24 + k))
    a("ds_write_b128 v21, v[24:27]")
    a("ds_write_b128 v21, v[24:27] offset:16")
    a("ds_write_b128 v21, v[24:27] offset:32")
    a("ds_write_b128 v21, v[24:27] offset:48")
    a.label("L_nopf")
    a.vm = []; a.lg = []
    a("v_lshlrev_b32 v2, 4, v0")
    a("v_lshlrev_b32 v3, 2, v0")
    a("v_mov_b32 v7, 0")
    a("v_mov_b32 v8, 0")
    nline = 3 if cfg.map1 == 8 else 6
    def tile_math():
        a("s_and_b32 s%d, s%d, 1" % (sT0, sX))
        a("s_lshr_b32 s%d, s%d, 1" % (sT1, sX))
        a("v_mul_u32_u24 v62, 3072, v0")
        a("s_mul_i32 s96, s%d, %d" % (sJ, 64 * 3072))
        if cfg.map1 == 8:
            a("s_mul_i32 s%d, s%d, 26" % (sT2, sJ))
            a("s_lshr_b32 s%d, s%d, 8" % (sT2, sT2))
            a("s_mul_i32 s%d, s%d, 10" % (sT3, sT2))
            a("s_sub_u32 s%d, s%d, s%d" % (sT3, sJ, sT3))
            a("s_mov_b32 s%d, s%d" % (sDT, sT3))
            a("s_mul_i32 s%d, s%d, 3" % (sFT, sX))
        else:
            a("s_mul_i32 s%d, s%d, 13" % (sT2, sJ))
            a("s_lshr_b32 s%d, s%d, 6" % (sT2, sT2))
            a("s_mul_i32 s%d, s%d, 5" % (sT3, sT2))
            a("s_sub_u32 s%d, s%d, s%d" % (sT3, sJ, sT3))
            a("s_mul_i32 s%d, s%d, 5" % (sDT, sT0))
            a("s_add_u32 s%d, s%d, s%d" % (sDT, sDT, sT3))
            a("s_mul_i32 s%d, s%d, 6" % (sFT, sT1))
        a("s_add_u32 s97, s%d, s%d" % (sFT, sWV))
        a("s_lshl_b32 s97, s97, 7")
        a("s_add_u32 s96, s96, s97")
        a("s_cmp_ge_u32 s%d, 3" % sWV)
        a("s_cselect_b32 s96, 0x7f000000, s96")
        a("s_add_u32 s%d, s%d, s%d" % (sFT, sFT, sT2))
        def order(n, nsh, sub, r):
            if nsh <= 1:
                return list(range(n))
            o = []
            g = nsh * sub
            for b in range(0, n, g):
                blk = list(range(b, min(b + g, n)))
                k = (r * sub) % len(blk) if len(blk) == g else (r * len(blk) // nsh) % len(blk)
                o += blk[k:] + blk[:k]
            return o
        def pack(o):
            o = o + [0] * (16 - len(o))
            return sum(x << (4 * i) for i, x in enumerate(o[:8])), sum(x << (4 * i) for i, x in enumerate(o[8:]))
        def sel_list(dst, sidx, orders):
            for r, o in enumerate(orders):
                lo, hi = pack(list(o))
                if r == 0:
                    a("s_mov_b32 s%d, 0x%x" % (dst[0], lo))
                    a("s_mov_b32 s%d, 0x%x" % (dst[1], hi))
                elif o != orders[0]:
                    a("s_cmp_eq_u32 s%d, %d" % (sidx, r))
                    a("s_cselect_b32 s%d, 0x%x, s%d" % (dst[0], lo, dst[0]))
                    a("s_cselect_b32 s%d, 0x%x, s%d" % (dst[1], hi, dst[1]))
        def sel_order(dst, sidx, nidx, n, nsh, sub):
            sel_list(dst, sidx, [order(n, nsh, sub, r % max(nsh, 1)) for r in range(nidx)])
        def rotl(n, k):
            return [(i + k) % n for i in range(n)]
        if cfg.wrot1:
            nd = 30 // nline
            if cfg.ng1 >= nd:
                a("s_mul_i32 s97, s%d, %d" % (sT3, -(-16 * 256 // nd)))
                a("s_lshr_b32 s97, s97, 8")
            else:
                tab = sum((((r % cfg.ng1) * 16) // cfg.ng1) << (4 * r) for r in range(nd))
                a("s_mov_b32 s100, 0x%x" % (tab & 0xffffffff))
                a("s_mov_b32 s101, 0x%x" % (tab >> 32))
                a("s_lshl_b32 s97, s%d, 2" % sT3)
                a("s_lshr_b64 s[100:101], s[100:101], s97")
                a("s_mov_b32 s97, s100")
            a("s_mul_i32 s14, s%d, %d" % (sX, cfg.xm1))
            a("s_add_u32 s97, s97, s14")
            a("s_mul_i32 s14, s%d, %d" % (sT2, cfg.fm1))
            a("s_add_u32 s97, s97, s14")
            a("s_and_b32 s97, s97, 15")
            if cfg.nsh1 > 1:
                sel_order(sORD1, sT2, nline, 16, cfg.nsh1, cfg.sub1)
                a("s_mul_i32 s97, s97, 0x11111111")
                for r in sORD1:
                    a("s_xor_b32 s100, s%d, s97" % r)
                    a("s_and_b32 s100, s100, 0x88888888")
                    a("s_and_b32 s%d, s%d, 0x77777777" % (r, r))
                    a("s_and_b32 s101, s97, 0x77777777")
                    a("s_add_u32 s%d, s%d, s101" % (r, r))
                    a("s_xor_b32 s%d, s%d, s100" % (r, r))
            else:
                a("s_lshl_b32 s97, s97, 2")
                a("s_mov_b32 s100, 0x76543210")
                a("s_mov_b32 s101, 0xfedcba98")
                a("s_lshr_b64 s[%d:%d], s[100:101], s97" % sORD1)
                a("s_sub_u32 s97, 64, s97")
                a("s_lshl_b64 s[100:101], s[100:101], s97")
                a("s_or_b64 s[%d:%d], s[%d:%d], s[100:101]" % (sORD1 + sORD1))
        else:
            sel_order(sORD1, sT2, nline, 16, cfg.nsh1, cfg.sub1)
        if cfg.map2 == 8:
            a("s_and_b32 s%d, s%d, 7" % (sT2, sJ))
            a("s_lshr_b32 s%d, s%d, 3" % (sT3, sJ))
            a("s_mov_b32 s%d, s%d" % (sDT2, sT2))
            a("s_lshl_b32 s%d, s%d, 2" % (sST, sX))
        else:
            a("s_and_b32 s%d, s%d, 3" % (sT2, sJ))
            a("s_lshr_b32 s%d, s%d, 2" % (sT3, sJ))
            a("s_lshl_b32 s%d, s%d, 2" % (sDT2, sT0))
            a("s_add_u32 s%d, s%d, s%d" % (sDT2, sDT2, sT2))
            a("s_lshl_b32 s%d, s%d, 3" % (sST, sT1))
        a("s_add_u32 s%d, s%d, s%d" % (sST, sST, sT3))
        if cfg.wrot2:
            nd = 8 if cfg.map2 == 8 else 4
            a("s_mul_i32 s97, s%d, %d" % (sT2, 24 // nd))
            a("s_mul_i32 s14, s%d, %d" % (sX, cfg.xm2))
            a("s_add_u32 s97, s97, s14")
            a("s_mul_i32 s14, s%d, %d" % (sT3, cfg.fm2))
            a("s_add_u32 s97, s97, s14")
            a("s_lshr_b32 s97, s97, 1")
            a("s_mul_i32 s14, s97, 43")
            a("s_lshr_b32 s14, s14, 9")
            a("s_mul_i32 s14, s14, 12")
            a("s_sub_u32 s97, s97, s14")
            sel_list(sORD2, 97, [rotl(12, r) for r in range(12)])
        else:
            sel_order(sORD2, sT3, 4 if cfg.map2 == 8 else 8, 12, cfg.nsh2, cfg.sub2)
    def chan_math():
        a("s_and_b32 s%d, s%d, 3" % (sT0, sWV))
        a("s_cmp_eq_u32 s%d, 7" % sWV)
        a("s_cselect_b32 s%d, 0, s%d" % (sT0, sT0))
        a("s_mul_i32 s%d, s%d, %d" % (sRB, sT0, S))
        a("s_lshr_b32 s%d, s%d, 1" % (sT1, sJ))
        a("s_mul_i32 s%d, s%d, 5" % (sT1, sT1))
        a("s_and_b32 s%d, s%d, 1" % (sT2, sJ))
        a("s_mul_i32 s%d, s%d, 3" % (sT2, sT2))
        a("s_add_u32 s%d, s%d, s%d" % (sT1, sT1, sT2))
        a("s_add_u32 s%d, s%d, s%d" % (sT1, sT1, sT0))
        a("s_min_u32 s%d, s%d, 79" % (sT1, sT1))
        a("s_and_b32 s%d, s%d, 35" % (sT2, sT1))
        a("s_and_b32 s%d, s%d, 12" % (sT3, sT1))
        a("s_lshl_b32 s%d, s%d, 1" % (sT3, sT3))
        a("s_or_b32 s%d, s%d, s%d" % (sT2, sT2, sT3))
        a("s_and_b32 s%d, s%d, 16" % (sT3, sT1))
        a("s_lshr_b32 s%d, s%d, 2" % (sT3, sT3))
        a("s_or_b32 s%d, s%d, s%d" % (sT2, sT2, sT3))
        a("s_cmp_ge_u32 s%d, 64" % sT1)
        a("s_cselect_b32 s%d, s%d, s%d" % (sT2, sT1, sT2))
        a("s_mul_i32 s%d, s%d, 80" % (sT3, sX))
        a("s_add_u32 s%d, s%d, s%d" % (sPOS, sT3, sT1))
        a("s_add_u32 s%d, s%d, s%d" % (sCH, sT3, sT2))
        a("s_mul_i32 s%d, s%d, 384" % (sT0, sCH))
        a("v_add_u32 v10, s%d, v3" % sT0)
        a("v_lshlrev_b32 v11, 1, v0")
        a("v_add_u32 v11, s%d, v11" % sT0)
        a("s_lshl_b32 s%d, s%d, 1" % (sT0, sCH))
        a("v_mov_b32 v12, s%d" % sT0)
    if cfg.ln4:
        chan_math()
    a("s_lshl_b32 s%d, s2, %d" % (sT0, 2 if cfg.ln4 else 3))
    a("s_add_u32 s%d, s%d, s%d" % (sT0, sT0, sWV))
    a("s_mul_i32 s%d, s%d, %d" % (sT0, sT0, 2560 if cfg.ln4 else 1280))
    for r, nb in ((rX, 2621440), (rWS, WS_BYTES), (rW1, 2048 * 3072), (rW2, 1536 * 4096), (rOUT, 2621440)):
        a("s_mov_b32 s%d, 0x%x" % (r + 2, nb))
        a("s_mov_b32 s%d, 0x20000" % (r + 3))
    def srd_bases(lst):
        for r, p in lst:
            a("s_mov_b32 s%d, s%d" % (r, p))
            a("s_and_b32 s%d, s%d, 0xffff" % (r + 1, p + 1))
    def eload():
        a("s_add_u32 s14, s%d, 0x%x" % (pWS, EW))
        a("s_addc_u32 s15, s%d, 0" % (pWS + 1))
        a("s_load_dword s7, s[14:15], 0")
    def stamp0():
        stamp(0)
        if cfg.ts:
            a("s_getreg_b32 s98, hwreg(HW_REG_XCC_ID)")
            a("v_writelane_b32 v%d, s98, 40" % vTS)
            a("s_getreg_b32 s98, hwreg(HW_REG_HW_ID)")
            a("v_writelane_b32 v%d, s98, 41" % vTS)
    SB, SS = WOFF + 16384, WSZ
    a("s_mul_i32 s%d, s%d, %d" % (sT2, sWV, 1408 if cfg.ln4 else 704))
    a("s_add_u32 s%d, s%d, %d" % (sT2, sT2, SB))
    a("v_add_u32 v61, %d, v2" % (SS - 640))
    a("v_cmp_gt_u32 vcc, 40, v0")
    a("v_cndmask_b32 v60, v61, v2, vcc")
    a("v_add_u32 v60, s%d, v60" % sT2)
    a("s_add_u32 s%d, s%d, %d" % (sT2, sT2, SS + 384))
    a("v_add_u32 v61, s%d, v3" % sT2)
    if cfg.nox:
        assert not cfg.xnlate
        a("s_lshl_b32 s%d, s%d, %d" % (sT2, sWV, 3 if cfg.ln4 else 2))
        a("s_add_u32 s%d, s%d, %d" % (sT2, sT2, STA))
        a("v_mov_b32 v59, s%d" % sT2)
    vPA = [4, 5, 6, 7, 8]
    PRM0, PRM1, vLDT, vDSK = 84, 90, 96, 97
    def param_loads():
        for k, p in enumerate([pARE, pAIM, pBRE, pBIM, pCRE, pCIM]):
            a("global_load_dword v%d, v10, %s %s" % (PRM0 + k, s(p, 2), cfg.ppol), tag="p")
            a("global_load_ushort v%d, v11, %s offset:256 %s" % (PRM1 + k, s(p, 2), cfg.ppol), tag="p")
        a("global_load_ushort v%d, v12, %s" % (vLDT, s(pLDT, 2)), tag="p")
        a("global_load_ushort v%d, v12, %s" % (vDSK, s(pDSK, 2)), tag="p")
    def x_loads():
        srd_bases([(rX, pX)])
        a("buffer_load_dwordx4 v[16:19], v2, %s, s%d offen %s" % (s(rX, 4), sT0, cfg.xpol), tag="x")
        a("buffer_load_dword v20, v3, %s, s%d offen offset:1024 %s" % (s(rX, 4), sT0, cfg.xpol), tag="x")
        if cfg.ln4:
            a("buffer_load_dwordx4 v[64:67], v2, %s, s%d offen offset:1280 %s" % (s(rX, 4), sT0, cfg.xpol), tag="x")
            a("buffer_load_dword v68, v3, %s, s%d offen offset:2304 %s" % (s(rX, 4), sT0, cfg.xpol), tag="x")
    def common_tail():
        stamp0()
        eload()
        srd_bases([(rWS, pWS), (rW1, pW1), (rW2, pW2), (rOUT, pOUT)])
    if cfg.ln4:
        a("s_cmp_ge_u32 s%d, 4" % sWV)
        a("s_waitcnt lgkmcnt(0)")
        a("s_cbranch_scc1 L_nox")
        x_loads()
        vm_x = list(a.vm)
        a.label("L_nox")
        a("s_cmp_lt_u32 s%d, 4" % sWV)
        a("s_barrier")
        a("s_cbranch_scc1 L_gemm_pre")
        a.vm = []
        a("s_cmp_eq_u32 s%d, 7" % sWV)
        a("s_cbranch_scc1 L_w7_pre")
        param_loads()
        aux_vm = list(a.vm)
        stamp0()
        srd_bases([(rWS, pWS)])
        a("s_branch L_aux_main")
        a.label("L_w7_pre")
        a.vm = []
        common_tail()
    else:
        a("s_waitcnt lgkmcnt(0)")
        if cfg.hold:
            a("s_mov_b32 s99, 0")
        x_loads()
        common_tail()
        vm_common = list(a.vm)
        a("s_cmp_lt_u32 s%d, 4" % sWV)
        a("s_cbranch_scc1 L_gemm_pre")
        chan_math()
        a("s_cmp_eq_u32 s%d, 7" % sWV)
        a("s_cbranch_scc1 L_w7_pre")
        param_loads()
        a.wait_vm("x")
        aux_vm = list(a.vm)
        a("s_branch L_ln")
        a.label("L_w7_pre")
        a.vm = list(vm_common)
    a("v_lshrrev_b32 v10, 4, v0")
    a("v_and_b32 v11, 3, v0")
    a("v_bfe_u32 v12, v0, 2, 2")
    a("s_movk_i32 s%d, 704" % sT0)
    a("v_mul_lo_u32 v12, v12, s%d" % sT0)
    a("v_add_u32 v12, %d, v12" % SB)
    for q in range(5):
        a("v_add_u32 v21, %d, v10" % (4 * q))
        a("v_mul_u32_u24 v22, 13, v21")
        a("v_lshrrev_b32 v22, 6, v22")
        a("v_mul_u32_u24 v23, 5, v22")
        a("v_sub_u32 v21, v21, v23")
        a("v_lshrrev_b32 v23, 1, v21")
        a("v_lshlrev_b32 v23, 5, v23")
        a("v_and_b32 v24, 1, v21")
        a("v_lshl_add_u32 v23, v24, 2, v23")
        a("v_lshlrev_b32 v24, 3, v11")
        a("v_lshlrev_b32 v25, 2, v11")
        a("v_cmp_eq_u32 vcc, 4, v21")
        a("v_cndmask_b32 v24, v24, v25, vcc")
        a("v_add_u32 v23, v23, v24")
        a("v_mul_u32_u24 v22, 80, v22")
        a("v_add_u32 v23, v23, v22")
        a("v_lshl_add_u32 v%d, v23, 1, v12" % vPA[q])
    if cfg.ln4:
        a("s_setprio 3")
        lds_wait(8, 4, 12, 13)
        a("s_add_u32 s%d, s7, 0x9E3779B9" % sTAG)
        a("s_branch L_pub")
        a.label("L_gemm_pre")
        a.vm = list(vm_x)
        srd_bases([(rX, pX)])
        common_tail()
    else:
        a.wait_vm("x")
        a("s_branch L_ln")
        a.label("L_gemm_pre")
        a.vm = list(vm_common)
    tile_math()

    vTR = [2, 3, 4, 5]
    vFO, vDO, vPO, vPD = 6, 7, 8, 9
    ACC1, STG1, WREG1 = 16, 80, 128
    ACC2, STG2, WREG2, XR = 16, 96, 160, 148
    NR1, NR2 = cfg.nr1, cfg.nr2

    def dma_voff(rowbytes, gemm1):
        a("v_lshrrev_b32 v10, 3, v0")
        if cfg.swz == 0:
            a("v_and_b32 v11, 6, v10")
        else:
            a("v_and_b32 v11, 2, v10")
            a("v_lshlrev_b32 v11, 1, v11")
        a("v_and_b32 v12, 7, v0")
        a("v_xor_b32 v12, v12, v11")
        a("v_lshlrev_b32 v12, 4, v12")
        if gemm1:
            a("v_and_b32 v11, 4, v10")
            a("v_add_u32 v10, v10, v11")
        a("s_mov_b32 s%d, %d" % (sT0, rowbytes))
        a("v_mul_lo_u32 v10, v10, s%d" % sT0)
        a("v_add_u32 v%d, v10, v12" % vDO)

    def setoff(dst, base, ordr, step, stepbytes):
        wd = 4
        if dst == sOA and ((cfg.fake & 1 and ordr == sORD1) or (cfg.fake & 2 and ordr == sORD2)):
            wd = 2
        a("s_bfe_u32 s%d, s%d, 0x%x" % (dst, ordr[step >> 3], (wd << 16) | (4 * (step & 7))))
        a("s_mul_i32 s%d, s%d, %d" % (dst, dst, stepbytes))
        a("s_add_u32 s%d, s%d, s%d" % (dst, dst, base))

    def dma_step(srdreg, slot, consts, stepbytes, tag, pol=''):
        setoff(sOW, sOWB, sORD1 if srdreg == rW1 else sORD2, int(tag[1:]), stepbytes)
        for b in range(4):
            a("s_add_u32 m0, s%d, %d" % (sWB, slot * 4096 + b * 1024))
            if consts[b]:
                a("s_add_u32 s%d, s%d, %d" % (sT0, sOW, consts[b]))
                so = sT0
            else:
                so = sOW
            a("buffer_load_dwordx4 v%d, %s, s%d offen %s lds" % (vDO, s(srdreg, 4), so, pol), tag=tag)

    C1 = [(16 * (b & 1) + 4 * (b >> 1)) * 3072 for b in range(4)]
    C2 = [8 * b * 4096 for b in range(4)]

    def tr_step(slot, wreg, tag):
        for n in range(4):
            for e in range(2):
                a("ds_read_b64_tr_b16 %s, v%d offset:%d" % (v(wreg + 4 * n + 2 * e, 2), vTR[n], slot * 4096 + e * 2048), tag=tag)

    def touch_w1():
        a("buffer_load_dword v63, v62, %s, s96 offen %s" % (s(rW1, 4), cfg.tpol), tag="tch")
    def touch_w2s():
        a("v_lshrrev_b32 v8, 2, v0")
        a("v_lshlrev_b32 v8, 12, v8")
        a("v_and_b32 v9, 3, v0")
        a("v_lshl_add_u32 v8, v9, 7, v8")
        a("v_mov_b32 v9, 0x7f000000")
        a("v_cmp_gt_u32 vcc, 48, v0")
        a("v_cndmask_b32 v8, v9, v8, vcc")
        a("s_lshl_b32 s97, s%d, 2" % sJ)
        a("s_add_u32 s97, s97, s%d" % sWV)
        a("s_mul_i32 s97, s97, %d" % (12 * 4096))
        a("s_lshl_b32 s%d, s%d, 9" % (sT2, sX))
        a("s_add_u32 s97, s97, s%d" % sT2)
    def touch_w2i():
        a("buffer_load_dword v9, v8, %s, s97 offen %s" % (s(rW2, 4), cfg.t2pol), tag="tch")
    def touch_w1b():
        if nline == 6:
            a("buffer_load_dword v63, v62, %s, s96 offen offset:384 %s" % (s(rW1, 4), cfg.tpol), tag="tch")
    a("s_mov_b64 exec, 0xffffffff")
    srd(rB, pB1, 3072)
    a("s_lshl_b32 s%d, s%d, 7" % (sT0, sFT))
    a("s_mov_b32 m0, %d" % BIA)
    a("buffer_load_dword v3, %s, s%d offen lds" % (s(rB, 4), sT0), tag="b")
    srd(rB, pB2, 4096)
    a("s_lshl_b32 s%d, s%d, 7" % (sT0, sST))
    a("s_mov_b32 m0, %d" % (BIA + 128))
    a("buffer_load_dword v3, %s, s%d offen lds" % (s(rB, 4), sT0), tag="b")
    a("s_mov_b64 exec, -1")
    if cfg.touch1 == 1:
        touch_w1()
    if cfg.touch2 in (3, 4, 5, 7):
        touch_w2s()
    if cfg.touch2 == 4:
        touch_w2i()
    a("s_setprio 2")
    a("s_mul_i32 s%d, s%d, %d" % (sWB, sWV, WSZ))
    a("s_add_u32 s%d, s%d, %d" % (sWB, sWB, WOFF))
    dma_voff(3072, True)
    a("s_mul_i32 s%d, s%d, %d" % (sOWB, sWV, 512 * 3072))
    a("s_lshl_b32 s%d, s%d, 7" % (sT0, sFT))
    a("s_add_u32 s%d, s%d, s%d" % (sOWB, sOWB, sT0))
    a("s_cmp_ge_u32 s%d, 30" % sJ)
    a("s_cselect_b32 s%d, 0x7f000000, s%d" % (sOWB, sOWB))
    def dma1(k):
        if 15 - cfg.skip1 <= k < 15:
            return
        dma_step(rW1, k % 7, C1, 32 * 3072, "w%d" % k, cfg.tpol if k < cfg.nt1 else '')
    for i in range(cfg.prea):
        dma1(i)
    a.wait_vm("x")
    for i in range(cfg.prea, cfg.prea + cfg.preb):
        dma1(i)
    gemm_vm = list(a.vm)
    a.label("L_ln")
    stamp(1)

    def bfround(r):
        a("v_cvt_pk_bf16_f32 v%d, v%d, v%d" % (r, r, r))
        a("v_and_b32 v%d, s%d, v%d" % (r, sMASK, r))

    def ln_token(o, sx0, s1, s2, row):
        L = []
        e = L.append
        XP, D_, A, B, C, E_, HP = 16 + o, 24 + o, 34 + o, 36 + o, 38 + o, 40 + o, 44 + o
        M, V, R1, R2 = 50 + o, 51 + o, 52 + o, 54 + o
        for k in range(5):
            e("v_lshlrev_b32 v%d, 16, v%d" % (D_ + 2 * k, XP + k))
            e("v_and_b32 v%d, s%d, v%d" % (D_ + 2 * k + 1, sMASK, XP + k))
        e("v_readfirstlane_b32 s%d, v%d" % (sx0, D_))
        e("v_mov_b32 v%d, %s" % (R2, f32(1.0 / 640)))
        e("v_mov_b32 v%d, s%d" % (A, sx0))
        for k in range(5):
            e("v_pk_add_f32 %s, %s, %s op_sel_hi:[1,0] neg_lo:[0,1] neg_hi:[0,1]" % (v(D_ + 2 * k, 2), v(D_ + 2 * k, 2), v(A, 2)))
        e("v_pk_mul_f32 %s, %s, %s" % (v(B, 2), v(D_, 2), v(D_, 2)))
        e("v_pk_add_f32 %s, %s, %s" % (v(A, 2), v(D_, 2), v(D_ + 2, 2)))
        e("v_pk_mul_f32 %s, %s, %s" % (v(E_, 2), v(D_ + 4, 2), v(D_ + 4, 2)))
        e("v_pk_add_f32 %s, %s, %s" % (v(C, 2), v(D_ + 4, 2), v(D_ + 6, 2)))
        e("v_pk_fma_f32 %s, %s, %s, %s" % (v(B, 2), v(D_ + 2, 2), v(D_ + 2, 2), v(B, 2)))
        e("v_pk_add_f32 %s, %s, %s" % (v(A, 2), v(A, 2), v(D_ + 8, 2)))
        e("v_pk_fma_f32 %s, %s, %s, %s" % (v(E_, 2), v(D_ + 6, 2), v(D_ + 6, 2), v(E_, 2)))
        e("v_pk_fma_f32 %s, %s, %s, %s" % (v(B, 2), v(D_ + 8, 2), v(D_ + 8, 2), v(B, 2)))
        e("v_pk_add_f32 %s, %s, %s" % (v(A, 2), v(A, 2), v(C, 2)))
        e("v_pk_add_f32 %s, %s, %s" % (v(B, 2), v(B, 2), v(E_, 2)))
        e("v_add_f32 v%d, v%d, v%d" % (A, A, A + 1))
        e("v_add_f32 v%d, v%d, v%d" % (B, B, B + 1))
        for ctl in ["row_shr:1", "row_shr:2", "row_shr:4", "row_shr:8"]:
            for r in (A, B):
                e("v_add_f32_dpp v%d, v%d, v%d %s row_mask:0xf bank_mask:0xf bound_ctrl:0" % (r, r, r, ctl))
        for r in (A, B):
            e("v_add_f32_dpp v%d, v%d, v%d row_bcast:15 row_mask:0xa bank_mask:0xf" % (r, r, r))
        for r in (A, B):
            e("v_add_f32_dpp v%d, v%d, v%d row_bcast:31 row_mask:0xc bank_mask:0xf" % (r, r, r))
        e("v_readlane_b32 s%d, v%d, 63" % (s1, A))
        e("v_readlane_b32 s%d, v%d, 63" % (s2, B))
        e("v_mul_f32 v%d, s%d, v%d" % (M, s1, R2))
        e("v_mul_f32 v%d, s%d, v%d" % (V, s2, R2))
        e("v_fma_f32 v%d, -v%d, v%d, v%d" % (V, M, M, V))
        e("v_add_f32 v%d, s%d, v%d" % (A, sx0, M))
        e("v_max_f32 v%d, 0, v%d" % (V, V))
        def rstd(dst, mean, var, mb):
            e("v_cvt_pk_bf16_f32 v%d, v%d, v%d" % (C, mean, var))
            e("v_and_b32 v%d, s%d, v%d" % (dst, sMASK, C))
            e("v_lshlrev_b32 v%d, 16, v%d" % (mb, C))
            e("v_add_f32 v%d, %s, v%d" % (dst, f32(1e-5), dst))
            e("v_cvt_pk_bf16_f32 v%d, v%d, v%d" % (dst, dst, dst))
            e("v_and_b32 v%d, s%d, v%d" % (dst, sMASK, dst))
            e("v_sqrt_f32 v%d, v%d" % (dst, dst))
            e("v_cvt_pk_bf16_f32 v%d, v%d, v%d" % (dst, dst, dst))
            e("v_and_b32 v%d, s%d, v%d" % (dst, sMASK, dst))
            if cfg.nox and dst == R2:
                e("v_lshrrev_b32 v%d, 16, v%d" % (C, mb))
                e("v_or_b32 v%d, v%d, v%d" % (C, C, dst))
                e("ds_write_b32 v59, v%d offset:%d" % (C, 4 * row))
            e("v_rcp_f32 v%d, v%d" % (dst, dst))
        rstd(R1, A, V, B)
        e("v_sub_f32 v%d, s%d, v%d" % (B, sx0, B))
        e("v_mul_f32 v%d, v%d, v%d" % (V, V, R1))
        e("v_mul_f32 v%d, v%d, v%d" % (R1 + 1, B, R1))
        e("v_mul_f32 v%d, v%d, v%d" % (V, V, R1))
        e("v_fma_f32 v%d, v%d, v%d, v%d" % (A, M, R1, R1 + 1))
        n0 = len(L)
        rstd(R2, A, V, B)
        e("v_mul_f32 v%d, v%d, v%d" % (R2 + 1, B, R2))
        chain = L[n0:]; del L[n0:]
        body = []
        for k in range(5):
            body.append("v_pk_fma_f32 %s, %s, %s, %s op_sel:[0,0,1] op_sel_hi:[1,0,1]" % (v(D_ + 2 * k, 2), v(D_ + 2 * k, 2), v(R1, 2), v(R1, 2)))
        if not cfg.nox:
            for k in range(5):
                body.append("v_cvt_pk_bf16_f32 v%d, v%d, v%d" % (XP + k, D_ + 2 * k, D_ + 2 * k + 1))
            body.append("ds_write_b128 v60, %s offset:%d" % (v(XP, 4), 2 * SS + 704 * row))
            body.append("ds_write_b32 v61, v%d offset:%d" % (XP + 4, 2 * SS + 704 * row))
        while chain or body:
            if chain: e(chain.pop(0))
            if body: e(body.pop(0))
        for k in range(5):
            e("v_pk_fma_f32 %s, %s, %s, %s op_sel:[0,0,1] op_sel_hi:[1,0,1] neg_lo:[0,0,1] neg_hi:[0,0,1]" % (v(D_ + 2 * k, 2), v(D_ + 2 * k, 2), v(R2, 2), v(R2, 2)))
        for k in range(5):
            e("v_cvt_pk_bf16_f32 v%d, v%d, v%d" % (HP + k, D_ + 2 * k, D_ + 2 * k + 1))
        e("ds_write_b128 v60, %s offset:%d" % (v(HP, 4), 704 * row))
        e("ds_write_b32 v61, v%d offset:%d" % (HP + 4, 704 * row))
        return L
    def ln_token_exact(o, sx0, s1, s2, row):
        L = []
        e = L.append
        XP, XF32, DT_, A, B, C, D, HP = 16 + o, 24 + o, 34 + o, 44 + o, 46 + o, 48 + o, 50 + o, 52 + o
        def unpack(dst, src):
            for k in range(5):
                e("v_lshlrev_b32 v%d, 16, v%d" % (dst + 2 * k, src + k))
                e("v_and_b32 v%d, s%d, v%d" % (dst + 2 * k + 1, sMASK, src + k))
        unpack(XF32, XP)
        for shift, outp in ((True, XP), (False, HP)):
            src = XF32
            if shift:
                e("v_readfirstlane_b32 s%d, v%d" % (sx0, XF32))
                for i in range(10):
                    e("v_subrev_f32 v%d, s%d, v%d" % (DT_ + i, sx0, XF32 + i))
                src = DT_
            e("v_pk_add_f32 %s, %s, %s" % (v(A, 2), v(src, 2), v(src + 2, 2)))
            e("v_pk_mul_f32 %s, %s, %s" % (v(B, 2), v(src, 2), v(src, 2)))
            e("v_pk_add_f32 %s, %s, %s" % (v(C, 2), v(src + 4, 2), v(src + 6, 2)))
            e("v_pk_fma_f32 %s, %s, %s, %s" % (v(B, 2), v(src + 2, 2), v(src + 2, 2), v(B, 2)))
            e("v_pk_add_f32 %s, %s, %s" % (v(A, 2), v(A, 2), v(src + 8, 2)))
            e("v_pk_mul_f32 %s, %s, %s" % (v(D, 2), v(src + 4, 2), v(src + 4, 2)))
            e("v_pk_fma_f32 %s, %s, %s, %s" % (v(B, 2), v(src + 8, 2), v(src + 8, 2), v(B, 2)))
            e("v_pk_add_f32 %s, %s, %s" % (v(A, 2), v(A, 2), v(C, 2)))
            e("v_pk_fma_f32 %s, %s, %s, %s" % (v(D, 2), v(src + 6, 2), v(src + 6, 2), v(D, 2)))
            e("v_add_f32 v%d, v%d, v%d" % (A, A, A + 1))
            e("v_pk_add_f32 %s, %s, %s" % (v(B, 2), v(B, 2), v(D, 2)))
            e("v_add_f32 v%d, v%d, v%d" % (B, B, B + 1))
            for ctl in ["row_shr:1", "row_shr:2", "row_shr:4", "row_shr:8"]:
                for r in (A, B):
                    e("v_add_f32_dpp v%d, v%d, v%d %s row_mask:0xf bank_mask:0xf bound_ctrl:0" % (r, r, r, ctl))
            for r in (A, B):
                e("v_add_f32_dpp v%d, v%d, v%d row_bcast:15 row_mask:0xa bank_mask:0xf" % (r, r, r))
            for r in (A, B):
                e("v_add_f32_dpp v%d, v%d, v%d row_bcast:31 row_mask:0xc bank_mask:0xf" % (r, r, r))
            e("v_readlane_b32 s%d, v%d, 63" % (s1, A))
            e("v_readlane_b32 s%d, v%d, 63" % (s2, B))
            e("v_mov_b32 v%d, %s" % (A + 1, f32(1.0 / 640)))
            e("v_mul_f32 v%d, s%d, v%d" % (A, s1, A + 1))
            e("v_mul_f32 v%d, s%d, v%d" % (B, s2, A + 1))
            e("v_fma_f32 v%d, -v%d, v%d, v%d" % (B, A, A, B))
            if shift:
                e("v_add_f32 v%d, s%d, v%d" % (A, sx0, A))
            e("v_max_f32 v%d, 0, v%d" % (B, B))
            e("v_cvt_pk_bf16_f32 v%d, v%d, v%d" % (B + 1, A, B))
            e("v_and_b32 v%d, s%d, v%d" % (B, sMASK, B + 1))
            e("v_lshlrev_b32 v%d, 16, v%d" % (A, B + 1))
            e("v_add_f32 v%d, %s, v%d" % (B, f32(1e-5), B))
            for k in range(5):
                e("v_pk_add_f32 %s, %s, %s op_sel_hi:[1,0] neg_lo:[0,1] neg_hi:[0,1]" % (v(DT_ + 2 * k, 2), v(XF32 + 2 * k, 2), v(A, 2)))
                if k == 0:
                    e("v_cvt_pk_bf16_f32 v%d, v%d, v%d" % (B, B, B))
                if k == 1:
                    e("v_and_b32 v%d, s%d, v%d" % (B, sMASK, B))
                if k == 2:
                    e("v_sqrt_f32 v%d, v%d" % (B, B))
                if k == 4:
                    e("v_cvt_pk_bf16_f32 v%d, v%d, v%d" % (B, B, B))
            for k in range(5):
                e("v_cvt_pk_bf16_f32 v%d, v%d, v%d" % (C + k, DT_ + 2 * k, DT_ + 2 * k + 1))
                if k == 0:
                    e("v_and_b32 v%d, s%d, v%d" % (B, sMASK, B))
                if k == 1:
                    if cfg.nox and not shift:
                        e("v_lshrrev_b32 v%d, 16, v%d" % (A + 1, A))
                        e("v_or_b32 v%d, v%d, v%d" % (A + 1, A + 1, B))
                    e("v_rcp_f32 v%d, v%d" % (B, B))
                if k == 2 and cfg.nox and not shift:
                    e("ds_write_b32 v59, v%d offset:%d" % (A + 1, 4 * row))
            unpack(DT_, C)
            for k in range(5):
                e("v_pk_mul_f32 %s, %s, %s op_sel_hi:[1,0]" % (v(DT_ + 2 * k, 2), v(DT_ + 2 * k, 2), v(B, 2)))
            for k in range(5):
                e("v_cvt_pk_bf16_f32 v%d, v%d, v%d" % (outp + k, DT_ + 2 * k, DT_ + 2 * k + 1))
            off = (2 * SS if shift else 0) + 704 * row
            if shift:
                unpack(XF32, outp)
            if not (cfg.nox and shift):
                e("ds_write_b128 v60, %s offset:%d" % (v(outp, 4), off))
                e("ds_write_b32 v61, v%d offset:%d" % (outp + 4, off))
        return L
    if cfg.exactln:
        ln_token = ln_token_exact
    if cfg.ln4:
        for i0, i1 in zip(ln_token(0, 14, sT0, sT1, 0), ln_token(48, 15, sT2, sT3, 1)):
            a(i0); a(i1)
        a("s_waitcnt lgkmcnt(0)"); a.lg = []
        lds_arrive(8, 12, 13)
        a("s_add_u32 s%d, s7, 0x9E3779B9" % sTAG)
        a("s_branch L_not7")
        a.label("L_pub")
    else:
        for i0 in ln_token(0, 14, sT0, sT1, 0):
            a(i0)
        a("s_waitcnt lgkmcnt(0)"); a.lg = []
        a("s_add_u32 s%d, s7, 0x9E3779B9" % sTAG)
        a("s_cmp_lg_u32 s%d, 7" % sWV)
        a("s_barrier")
        a("s_cbranch_scc1 L_not7")
    a.vm = []; a.lg = []
    a("s_setprio 3")
    stamp(2)
    a("s_mul_i32 s%d, s%d, 10240" % (sT0, sID))
    a("s_add_u32 s%d, s%d, 4096" % (sT1, sT0))
    a("s_add_u32 s%d, s%d, 8192" % (sT2, sT0))
    def prd(k):
        arr, hf, q = k // 10, (k // 5) & 1, k % 5
        r = 16 + 4 * k
        o = hf * SS
        va = 100 + q if arr else vPA[q]
        a("ds_read_b64_tr_b16 %s, v%d offset:%d" % (v(r, 2), va, o), tag="p%d" % k)
        a("ds_read_b64_tr_b16 %s, v%d offset:%d" % (v(r + 2, 2), va, o + 2816), tag="p%d" % k)
    NP = 10 if cfg.nox else 20
    for k in range(6):
        prd(k)
    if cfg.nox:
        a("v_and_b32 v100, 16, v2")
        a("ds_read_b128 v[104:107], v100 offset:%d" % STA, tag="sta")
    else:
        for q in range(5):
            a("v_add_u32 v%d, %d, v%d" % (100 + q, 2 * SS, vPA[q]))
    for k in range(NP):
        if k == 10:
            for q in range(3):
                a("s_add_u32 s%d, s%d, 0x%x" % ((sT0, sT1, sT2)[q], (sT0, sT1, sT2)[q], XB))
        a.wait_lg("p%d" % k)
        kk = k % 10
        if k < 10 or not (cfg.noxn or cfg.xnlate):
            a("buffer_store_dwordx4 %s, v2, %s, s%d offen offset:%d sc1" % (v(16 + 4 * k, 4), s(rWS, 4), (sT0, sT1, sT2)[kk >> 2], 1024 * (kk & 3)), tag="hs" if k < 10 else "xs")
        if k + 6 < NP:
            prd(k + 6)
        if k == (cfg.c16k if cfg.nox else 13):
            a.drain_lg()
            lds_arrive(16, 12, 13)
    if cfg.nox:
        a("s_lshl_b32 s%d, s%d, %d" % (sT3, sID, cfg.stsh))
        a("s_add_u32 s%d, s%d, 0x%x" % (sT3, sT3, ST))
        a("s_mov_b64 exec, %d" % ((1 << (1 << (cfg.stsh - 4))) - 1))
        a("buffer_store_dwordx4 v[104:107], v2, %s, s%d offen sc1" % (s(rWS, 4), sT3))
        a("s_mov_b64 exec, -1")
    if cfg.ssig:
        a("s_cmp_ge_u32 s%d, 64" % sID)
        a("s_cbranch_scc1 L_nozero")
    for k in range(4):
        a("v_mov_b32 v%d, 0" % (108 + k))
    a("s_lshl_b32 s%d, s%d, 10" % (sT3, sID))
    a("s_add_u32 s%d, s%d, 0x%x" % (sT3, sT3, MB + 512))
    a("s_mov_b64 exec, 0xffffffff")
    a("buffer_store_dwordx4 v[108:111], v2, %s, s%d offen sc1" % (s(rWS, 4), sT3))
    a("s_lshl_b32 s%d, s%d, 7" % (sT3, sID))
    a("s_add_u32 s%d, s%d, 0x%x" % (sT3, sT3, YC))
    a("s_mov_b64 exec, 0xff")
    a("buffer_store_dwordx4 v[108:111], v2, %s, s%d offen sc1" % (s(rWS, 4), sT3))
    a("s_mov_b64 exec, -1")
    a.label("L_nozero")
    a("s_lshl_b32 s%d, s%d, %d" % (sT3, sID, cfg.fsh))
    a("s_add_u32 s%d, s%d, 0x%x" % (sT3, sT3, HF))
    if cfg.ssig:
        a("s_add_u32 s14, s%d, s%d" % (pWS, sT3))
        a("s_addc_u32 s15, s%d, 0" % (pWS + 1))
        a("s_mov_b32 s7, s%d" % sTAG)
        a.drain_vm()
        a("s_atomic_swap s7, s[14:15], 0")
        a.drain_lg()
        if cfg.xnlate:
            if cfg.xnlate == 2:
                a("s_mov_b32 s%d, s%d" % (sT3, sT0))
                lds_wait(40, 1, 12, 13, sleep=2)
                a("s_mov_b32 s%d, s%d" % (sT0, sT3))
            for kk in range(10):
                a("buffer_store_dwordx4 %s, v2, %s, s%d offen offset:%d sc1" % (v(56 + 4 * kk, 4), s(rWS, 4), (sT0, sT1, sT2)[kk >> 2], 1024 * (kk & 3)))
            a("s_mov_b32 s7, s%d" % sTAG)
            a.drain_vm()
            a("s_atomic_swap s7, s[14:15], 0x%x" % (XF2 - HF))
            a.drain_lg()
    else:
        a.drain_vm()
        flag_store(sT3, 12, 13)
    stamp(3)
    a("s_branch L_w7")
    a.label("L_not7")
    a.lg = ["arr"]
    if not cfg.ln4:
        a("s_cmp_ge_u32 s%d, 4" % sWV)
        a("s_cbranch_scc1 L_aux_main")
    a.vm = list(gemm_vm)
    a("s_setprio %d" % cfg.pP)
    stamp(2)
    for i in range(cfg.prea + cfg.preb, cfg.prea + cfg.preb + cfg.prec):
        dma1(i)
    cfg.pre1 = cfg.prea + cfg.preb + cfg.prec

    a("v_lshrrev_b32 v10, 2, v0")
    if cfg.swz == 0:
        a("v_bfe_u32 v11, v0, 3, 2")
    else:
        a("v_bfe_u32 v11, v0, 3, 1")
        a("v_lshlrev_b32 v11, 1, v11")
    a("v_lshlrev_b32 v10, 7, v10")
    a("v_and_b32 v12, 3, v0")
    a("v_lshl_add_u32 v10, v12, 3, v10")
    a("v_add_u32 v10, s%d, v10" % sWB)
    for n in range(4):
        a("v_xor_b32 v12, %d, v11" % n)
        a("v_lshl_add_u32 v%d, v12, 5, v10" % vTR[n])
    a("v_lshrrev_b32 v10, 4, v0")
    a("v_mul_u32_u24 v10, 10240, v10")
    a("v_and_b32 v11, 15, v0")
    a("v_lshl_add_u32 v%d, v11, 4, v10" % vFO)
    a.wait_vm("b")
    a("v_lshrrev_b32 v10, 4, v0")
    a("v_lshlrev_b32 v10, 3, v10")
    for fi in range(4):
        a("ds_read_b64 %s, v10 offset:%d" % (v(STG1 + 2 * fi, 2), BIA + 32 * fi), tag="bias")
    a.wait_lg("bias")
    for k in range(8):
        a("v_lshlrev_b32 v%d, 16, v%d" % (ACC1 + 2 * k, STG1 + k))
        a("v_and_b32 v%d, s%d, v%d" % (ACC1 + 2 * k + 1, sMASK, STG1 + k))
    lds_wait(16, 1, 12, 13)
    stamp(14)
    if cfg.touch1:
        touch_w1b()
    if cfg.touch2 == 5:
        touch_w2i()
    a("s_cmp_ge_u32 s%d, 30" % sJ)
    a("s_cbranch_scc1 L_g2_pre_nog1")
    a("s_mul_i32 s%d, s%d, %d" % (sOAB, sWV, 64 * 10240))
    a("s_lshl_b32 s%d, s%d, 10" % (sT0, sDT))
    a("s_add_u32 s%d, s%d, s%d" % (sOAB, sOAB, sT0))
    if HB:
        a("s_add_u32 s%d, s%d, 0x%x" % (sOAB, sOAB, HB))
    for di in range(4):
        a("s_xor_b32 s%d, s%d, %d" % (sD[di], sWV, di))
        a("s_lshl_b32 s%d, s%d, 8" % (sD[di], sD[di]))
    def mbox(extra):
        if cfg.ssig and extra:
            a("s_and_b32 s%d, s%d, 63" % (sT1, sID))
            a("s_lshl_b32 s%d, s%d, 3" % (sT1, sT1))
        else:
            a("s_lshl_b32 s%d, s%d, 3" % (sT1, sID))
        a("s_add_u32 s%d, s%d, s%d" % (sT1, sT1, sWV))
        a("s_lshl_b32 s%d, s%d, 7" % (sT1, sT1))
        a("s_add_u32 s%d, s%d, 0x%x" % (sT1, sT1, MB + extra))
    D1 = cfg.depth1
    issued = cfg.pre1
    P1 = cfg.P1
    polled = False
    for i in range(P1):
        while issued < P1 and issued <= i + D1:
            k = issued
            if k >= 7:
                a.wait_lg("t%d" % (k - 7))
            if k >= P1 - 2 and i >= 8 and not polled:
                a.drain_lg()
                mbox(0)
                spoll_pre(sT1)
                polled = True
            dma1(k)
            issued += 1
        if i < 8:
            a.wait_vm("w%d" % i)
            tr_step(i % 7, WREG1 + 16 * i, "t%d" % i)
            if cfg.xnlate == 2 and i == cfg.xnat:
                lds_arrive(40, 12, 13)
        elif issued < P1:
            a.wait_vm("w%d" % i)
        if (i in (0, 8) and cfg.fine) or (cfg.fine == 2 and i in (2, 4, 6, 10)):
            stamp(16 + i // 2)
    if not polled:
        mbox(0)
        spoll_pre(sT1)
    if cfg.touch2 == 7:
        touch_w2i()
    stamp(3)
    def hwait(sl):
        a("s_lshl_b32 s%d, s%d, 3" % (sT1, sID))
        a("s_add_u32 s%d, s%d, s%d" % (sT1, sT1, sWV))
        a("s_lshl_b32 s%d, s%d, 7" % (sT1, sT1))
        a("s_add_u32 s%d, s%d, 0x%x" % (sT1, sT1, MB))
        spoll(sT1, sl)
    spoll(sT1, cfg.psleep, pre=True)
    a("s_setprio %d" % cfg.pG)
    if cfg.pbal:
        a("s_and_b32 s%d, s%d, 1" % (sT2, sJ))
        a("s_add_u32 s%d, s%d, s%d" % (sT2, sT2, sWV))
        a("s_cmp_lt_u32 s%d, 3" % sT2)
        a("s_cbranch_scc1 L_pb")
        a("s_setprio 1")
        a.label("L_pb")
    stamp(4)

    def adv_a(stepbytes):
        if cfg.noadv:
            return
        a("s_add_u32 s%d, s%d, %d" % (sOA, sOA, stepbytes))
        a("s_cmp_ge_u32 s%d, s%d" % (sOA, sOAE))
        a("s_cselect_b32 s%d, s%d, s%d" % (sOA, sOAB, sOA))

    def DI(n):
        return ((n + 1) & 3) if n >= 60 else (n & 3)
    def hload(n):
        di = DI(n)
        if n & 3 == 0:
            setoff(sOA, sOAB, sORD1, n >> 2, 4 * 10240)
        a("s_add_u32 s%d, s%d, s%d" % (sT1, sOA, sD[di]))
        a("buffer_load_dwordx4 %s, v%d, %s, s%d offen %s" % (v(STG1 + 4 * (n % NR1), 4), vFO, s(rWS, 4), sT1, cfg.apol), tag="h%d" % n)

    def w2_setup():
        dma_voff(4096, False)
        a("s_mul_i32 s%d, s%d, %d" % (sOWB, sWV, 384 * 4096))
        a("s_lshl_b32 s%d, s%d, 7" % (sT0, sST))
        a("s_add_u32 s%d, s%d, s%d" % (sOWB, sOWB, sT0))

    SL2 = {0: 3, 1: 4, 2: 5, 3: 6, 4: 0, 5: 1, 6: 2, 7: 3, 8: 4, 9: 5, 10: 6, 11: 0}
    def slot2(i):
        return SL2[i]
    def dma2(k):
        if k >= 12 - cfg.skip2:
            return
        dma_step(rW2, slot2(k), C2, 32 * 4096, "u%d" % k, cfg.t2pol if k < cfg.nt2 else '')
    def tr2(k):
        tr_step(slot2(k), WREG2 + 16 * k, "q%d" % k)
    def tr_flip():
        a("s_lshl_b32 s%d, s%d, 5" % (sT0, sWV))
        for n in range(4):
            a("v_xor_b32 v%d, s%d, v%d" % (vTR[n], sT0, vTR[n]))

    vXO, vXO4, vB2 = 9, 1, 14
    sXO = 97
    def xt_setup():
        a("v_and_b32 v12, 15, v0")
        a("v_lshrrev_b32 v13, 4, v0")
        a("v_mul_u32_u24 v%d, 1280, v12" % vXO)
        a("v_lshl_add_u32 v%d, v13, 3, v%d" % (vXO4, vXO))
        a("v_lshl_add_u32 v%d, v13, 4, v%d" % (vXO, vXO))
        a("s_lshl_b32 s%d, s%d, 2" % (sT2, sST))
        a("s_add_u32 s%d, s%d, s%d" % (sT2, sT2, sWV))
        a("s_mul_i32 s%d, s%d, %d" % (sXO, sT2, 16 * 1280))
        a("s_mul_i32 s%d, s%d, 160" % (sT3, sDT2))
        a("s_add_u32 s%d, s%d, s%d" % (sXO, sXO, sT3))
    def acc2_init():
        a("v_and_b32 v12, 15, v0")
        a("s_lshl_b32 s%d, s%d, 5" % (sT2, sWV))
        a("v_lshl_add_u32 v12, v12, 1, s%d" % sT2)
        a("ds_read_u16 v%d, v12 offset:%d" % (vB2, BIA + 128), tag="b2")
        for k in range(10):
            a("v_lshlrev_b32 v%d, 16, v%d" % (ACC2 + 2 * k, XR + k))
            a("v_and_b32 v%d, s%d, v%d" % (ACC2 + 2 * k + 1, sMASK, XR + k))
        a.wait_lg("b2")
        a("v_lshlrev_b32 v%d, 16, v%d" % (vB2, vB2))
        for k in range(20):
            a("v_add_f32 v%d, v%d, v%d" % (ACC2 + k, vB2, ACC2 + k))
    def xt_loads():
        a("buffer_load_dwordx4 %s, v%d, %s, s%d offen %s" % (v(XR, 4), vXO, s(rX, 4), sXO, cfg.xpol), tag="xt")
        a("buffer_load_dwordx4 %s, v%d, %s, s%d offen offset:64 %s" % (v(XR + 4, 4), vXO, s(rX, 4), sXO, cfg.xpol), tag="xt")
        a("buffer_load_dwordx2 %s, v%d, %s, s%d offen offset:128 %s" % (v(XR + 8, 2), vXO4, s(rX, 4), sXO, cfg.xpol), tag="xt")

    for n in range(NR1):
        hload(n)
    lds_arrive(12, 12, 13)
    sGS, sGC = sOWE, sOAE
    vEX = [WREG1 + k for k in range(4)]
    vC = WREG1 + 4
    c0 = -2.0 * math.sqrt(2.0 / math.pi) * math.log2(math.e)
    c1 = c0 * 0.044715
    def xwrite(i):
        for q in range(4):
            a("ds_write_b128 v%d, %s offset:%d" % (vEX[0], v(ACC1 + 16 * i + 4 * q, 4), (i - 1) * 4096 + q * 1024))
    fifo = []
    def fill(k):
        for _ in range(k):
            if fifo:
                a.play(fifo.pop(0))
    def need(tag):
        while any(it[2] == tag for it in fifo):
            fill(1)
    def setup8():
        tr_flip()
        a("v_lshlrev_b32 v10, 4, v0")
        a("v_add_u32 v%d, s%d, v10" % (vEX[0], sWB))
        for k in range(1, 4):
            a("s_xor_b32 s%d, s%d, %d" % (sT0, sWV, k))
            a("s_mul_i32 s%d, s%d, %d" % (sT0, sT0, WSZ))
            a("s_add_u32 s%d, s%d, %d" % (sT0, sT0, WOFF))
            a("v_add_u32 v%d, s%d, v10" % (vEX[k], sT0))
        a("v_mov_b32 v%d, %s" % (vC, f32(c1)))
        a("v_mov_b32 v%d, %s" % (vC + 1, f32(c0)))
    def setup10():
        a("s_mul_i32 s%d, s%d, %d" % (sGS, sFT, 8 * 10240))
        a("s_lshl_b32 s%d, s%d, 10" % (sT2, sDT))
        a("s_add_u32 s%d, s%d, s%d" % (sGS, sGS, sT2))
        a("s_add_u32 s%d, s%d, s%d" % (sGS, sGS, sD[0]))
        a("s_add_u32 s%d, s%d, 0x%x" % (sGS, sGS, GB))
        a("s_add_u32 s96, s%d, %d" % (sGS, 4 * 10240))
        a("s_lshl_b32 s%d, s%d, 2" % (sT2, sDT))
        a("s_add_u32 s%d, s%d, s%d" % (sT2, sT2, sWV))
        a("s_mul_i32 s%d, s%d, 52" % (sT2, sT2))
        a("s_lshr_b32 s%d, s%d, 8" % (sT2, sT2))
        if not cfg.ssig:
            group_ids(vPO, 13, sT2, 10)
        a("s_mul_i32 s%d, s%d, 43" % (sGC, sFT))
        a("s_lshr_b32 s%d, s%d, 8" % (sGC, sGC))
        a("s_lshl_b32 s%d, s%d, 7" % (sGC, sGC))
        a("s_add_u32 s%d, s%d, 0x%x" % (sGC, sGC, MB + 512))
        if cfg.ssig:
            a("s_lshl_b32 s%d, s%d, 13" % (sT2, sT2))
            a("s_add_u32 s%d, s%d, s%d" % (sGC, sGC, sT2))
    def refill(i, wr):
        a.wait_vm("w%d" % i)
        tr_step(i % 7, wr, "t%d" % i)
    def late15():
        a.wait_lg("t8")
        dma1(15)
        w2_setup()
    for i in range(16):
        wr = WREG1 + 16 * (i & 7)
        if i >= 8:
            need("t%d" % i)
            a.wait_lg("t%d" % i)
        for dd in range(4):
            n = 4 * i + dd
            di = DI(n)
            nxt = a.capture(hload, n + NR1) if (n + NR1 < 64 and not cfg.noload) else []
            a.wait_vm("h%d" % n)
            for fi in range(4):
                acc = v(ACC1 + 16 * di + 4 * fi, 4)
                if not cfg.nomfma or i == 0:
                    a("v_mfma_f32_16x16x32_bf16 %s, %s, %s, %s" % (acc, v(wr + 4 * fi, 4), v(STG1 + 4 * (n % NR1), 4), acc if (i or di == 0) else "0"))
                if fi < 3:
                    k = cfg.fillk
                    while len(nxt) > 1 and k:
                        a.play(nxt.pop(0)); k -= 1
                    fill(k)
            for it in nxt:
                a.play(it)
            if not nxt:
                fill(cfg.fillk)
            if n == cfg.e0at:
                fill(1000)
                for k in range(cfg.e0):
                    fifo += a.capture(dma2, k)
            if n >= 61:
                xwrite(n - 60)
        if i in (0, 7) and cfg.fine:
            stamp(24 + (i + 1) // 4)
        if i < 8:
            fifo += a.capture(refill, i + 8, wr)
        if P1 + i < 15:
            fifo += a.capture(dma1, P1 + i)
        if i == max(1, 15 - P1):
            fifo += a.capture(late15)
        if i == 10:
            fifo += a.capture(setup10)
        if i == 8:
            fifo += a.capture(setup8)
        if i == 9:
            fifo += a.capture(xt_setup)
    fill(1000)
    if cfg.pW != cfg.pG:
        a("s_setprio %d" % cfg.pW)
    stamp(5)
    a.drain_lg()
    lds_arrive(0, 12, 13)
    lds_wait(0, 4, 12, 13)
    stamp(12)
    for q in range(4):
        for i in range(1, 4):
            a("ds_read_b128 %s, v%d offset:%d" % (v(ACC1 + 16 * i + 4 * q, 4), vEX[i], (i - 1) * 4096 + q * 1024), tag="r%d" % q)
    for k in range(cfg.e0, cfg.e0 + cfg.e1):
        dma2(k)
    def op2(name, d, x, y, n):
        if cfg.nopk:
            for k in range(n):
                a("v_%s_f32 v%d, v%d, v%d" % (name, d + k, x + k, y + k))
        else:
            for k in range(0, n, 2):
                a("v_pk_%s_f32 %s, %s, %s" % (name, v(d + k, 2), v(x + k, 2), v(y + k, 2)))
    U_, T_, P_ = ACC1, ACC1 + 16, STG1
    for hf in range(2):
        o = 8 * hf
        a.wait_lg("r%d" % (2 * hf + 1))
        if hf == 1:
            lds_arrive(4, 12, 13)
        op2("add", U_ + o, U_ + o, ACC1 + 16 + o, 8)
        op2("add", ACC1 + 32 + o, ACC1 + 32 + o, ACC1 + 48 + o, 8)
        op2("add", U_ + o, U_ + o, ACC1 + 32 + o, 8)
        op2("mul", T_ + o, U_ + o, U_ + o, 8)
        if cfg.nopk:
            for k in range(8):
                a("v_fma_f32 v%d, v%d, v%d, v%d" % (T_ + o + k, T_ + o + k, vC, vC + 1))
        else:
            for k in range(0, 8, 2):
                a("v_pk_fma_f32 %s, %s, %s, %s op_sel:[0,0,1] op_sel_hi:[1,0,1]" % (v(T_ + o + k, 2), v(T_ + o + k, 2), v(vC, 2), v(vC, 2)))
        op2("mul", T_ + o, T_ + o, U_ + o, 8)
        for k in range(8):
            a("v_exp_f32 v%d, v%d" % (T_ + o + k, T_ + o + k))
        if cfg.nopk:
            for k in range(8):
                a("v_add_f32 v%d, 1.0, v%d" % (T_ + o + k, T_ + o + k))
        else:
            for k in range(0, 8, 2):
                a("v_pk_add_f32 %s, %s, 1.0 op_sel_hi:[1,0]" % (v(T_ + o + k, 2), v(T_ + o + k, 2)))
        for k in range(8):
            a("v_rcp_f32 v%d, v%d" % (T_ + o + k, T_ + o + k))
        op2("mul", T_ + o, T_ + o, U_ + o, 8)
        for k in range(4):
            a("v_cvt_pk_bf16_f32 v%d, v%d, v%d" % (P_ + 4 * hf + k, T_ + o + 2 * k, T_ + o + 2 * k + 1))
        a("buffer_store_dwordx4 %s, v%d, %s, s%d offen sc1" % (v(P_ + 4 * hf, 4), vFO, s(rWS, 4), 96 if hf else sGS), tag="gs")
    lds_arrive(28, 12, 13)
    stamp(6)
    ne = cfg.e0 + cfg.e1
    for k in range(ne, 4):
        dma2(k)
    lds_wait(4, 4, 12, 13)
    dma2(4); dma2(5)
    if ne:
        a.wait_vm("u%d" % (ne - 1))
        for k in range(ne):
            tr2(k)
    if cfg.ssig:
        a.drain_lg()
    a.wait_vm("gs")
    if cfg.ssig:
        sig8(sGC, 1024)
        a.smem = True
    else:
        group_add(vPO, sGC, 13)
    stamp(7)
    xt_loads()
    dma2(6)
    for k in range(ne, 4):
        a.wait_vm("u%d" % k); tr2(k)
    a.wait_lg("q0"); dma2(7)
    a.wait_vm("u4"); tr2(4)
    a.wait_lg("q1"); dma2(8)
    a.wait_vm("u5"); tr2(5)
    a.wait_lg("q2"); dma2(9)
    a.wait_vm("xt")
    acc2_init()
    a.drain_lg()
    mbox(512)
    spoll_pre(sT1)
    dma2(10); dma2(11)
    vm_join = list(a.vm)
    a("s_branch L_g2_pre")
    a.label("L_g2_pre_nog1")
    a.vm = []; a.lg = []
    if cfg.xnlate == 2:
        lds_arrive(40, 12, 13)
    if cfg.nagg == 8:
        a("s_cmp_lg_u32 s%d, 31" % sJ)
        a("s_cbranch_scc1 L_noagg_h")
    a("v_lshlrev_b32 v%d, %d, v0" % (vPO, cfg.fsh))
    a("s_lshl_b32 s%d, s%d, %d" % (sT1, sWV, 6 + cfg.fsh))
    a("s_add_u32 s%d, s%d, 0x%x" % (sT1, sT1, HF))
    a("v_lshlrev_b32 v12, 13, v0")
    a("v_mov_b32 v13, s%d" % sTAG)
    a("s_lshl_b32 s%d, s%d, 3" % (sT2, sX))
    a("s_add_u32 s%d, s%d, s%d" % (sT2, sT2, sWV))
    a("s_lshl_b32 s%d, s%d, 7" % (sT2, sT2))
    a("s_add_u32 s%d, s%d, 0x%x" % (sT2, sT2, MB))
    if cfg.nagg == 16:
        a("s_and_b32 s%d, s%d, 1" % (sT3, sJ))
        a("s_lshl_b32 s%d, s%d, 17" % (sT3, sT3))
        a("s_add_u32 s%d, s%d, s%d" % (sT2, sT2, sT3))
    poll([vPO], [sT1], vPD, sleep=cfg.asleep)
    a("s_mov_b64 exec, 0x%x" % (0xffffffff if cfg.nagg == 8 else 0xffff))
    a("buffer_store_dword v13, v12, %s, s%d offen sc1" % (s(rWS, 4), sT2))
    a("s_mov_b64 exec, -1")
    stamp(13)
    if cfg.xnlate:
        a("s_add_u32 s%d, s%d, 0x%x" % (sT1, sT1, XF2 - HF))
        poll([vPO], [sT1], vPD, sleep=cfg.asleep)
        a("s_mov_b64 exec, 0x%x" % (0xffffffff if cfg.nagg == 8 else 0xffff))
        a("buffer_store_dword v13, v12, %s, s%d offen offset:64 sc1" % (s(rWS, 4), sT2))
        a("s_mov_b64 exec, -1")
    a.label("L_noagg_h")
    a.vm = []
    if cfg.touch2 == 6:
        a("v_lshrrev_b32 v8, 2, v0")
        a("v_lshlrev_b32 v8, 12, v8")
        a("v_and_b32 v9, 3, v0")
        a("v_lshl_add_u32 v8, v9, 7, v8")
        a("s_mul_i32 s%d, s%d, 24" % (sT1, sWV))
        a("s_add_u32 s%d, s%d, s%d" % (sT1, sT1, sJ))
        a("s_sub_u32 s%d, s%d, 30" % (sT1, sT1))
        a("s_lshl_b32 s%d, s%d, 16" % (sT1, sT1))
        a("s_lshl_b32 s%d, s%d, 9" % (sT2, sX))
        a("s_add_u32 s%d, s%d, s%d" % (sT1, sT1, sT2))
        a("s_mov_b32 s%d, s%d" % (sT3, sT1))
        for k in range(12):
            a("buffer_load_dword v9, v8, %s, s%d offen %s" % (s(rW2, 4), sT3, cfg.t2pol), tag="tw%d" % k)
            a("s_add_u32 s%d, s%d, %d" % (sT3, sT3, 32 * 4096))
            if k == 3:
                hwait(2)
                lds_arrive(12, 12, 13)
            if k >= cfg.tdep:
                a.wait_vm("tw%d" % (k - cfg.tdep))
    else:
        hwait(4)
        lds_arrive(12, 12, 13)
        if cfg.touch2 == 7:
            lds_wait(12, 4, 12, 13, sleep=2)
            touch_w2s()
            touch_w2i()
    lds_wait(12, 4, 12, 13, sleep=2)
    a("s_setprio 2")
    xt_setup()
    xt_loads()
    w2_setup()
    tr_flip()
    for k in range(7):
        dma2(k)
        if k:
            a.wait_vm("u%d" % (k - 1))
    for k in range(6):
        tr2(k)
    acc2_init()
    a.drain_lg()
    for k in range(7, 12):
        dma2(k)
        a.wait_vm("u%d" % (k - 1))
    a.drain_vm()
    mbox(512)
    spoll_pre(sT1)
    a.label("L_g2_pre")
    a.vm = list(vm_join); a.lg = []
    stamp(8)
    a("s_mul_i32 s%d, s%d, %d" % (sOAB, sWV, 48 * 10240))
    a("s_mul_i32 s%d, s%d, 1280" % (sT0, sDT2))
    a("s_add_u32 s%d, s%d, s%d" % (sOAB, sOAB, sT0))
    a("s_add_u32 s%d, s%d, 0x%x" % (sOAB, sOAB, GB))
    spoll(sT1, cfg.psleep, target=30, pre=True)
    if cfg.pW != cfg.pG:
        a("s_setprio %d" % cfg.pG)
    stamp(9)

    def gload(n):
        mi = n % 5
        if mi == 0:
            setoff(sOA, sOAB, sORD2, n // 5, 4 * 10240)
        a("buffer_load_dwordx4 %s, v%d, %s, s%d offen offset:%d %s" % (v(STG2 + 4 * (n % NR2), 4), vFO, s(rWS, 4), sOA, 256 * mi, cfg.apol), tag="g%d" % n)

    for n in range(NR2):
        gload(n)
    vE2 = [8, 10, 11, 12, 13]
    def setup6():
        a("v_lshlrev_b32 v7, 4, v0")
        a("v_add_u32 v%d, s%d, v7" % (vE2[0], sWB))
        for k in range(1, 4):
            a("s_xor_b32 s%d, s%d, %d" % (sT0, sWV, k))
            a("s_mul_i32 s%d, s%d, %d" % (sT0, sT0, WSZ))
            a("s_add_u32 s%d, s%d, %d" % (sT0, sT0, WOFF))
            a("v_add_u32 v%d, s%d, v7" % (vE2[k], sT0))
        a("v_lshrrev_b32 v7, 2, v0")
        a("v_lshlrev_b32 v7, 7, v7")
        a("v_and_b32 v14, 3, v0")
        a("v_lshl_add_u32 v7, v14, 3, v7")
        a("s_lshl_b32 s%d, s%d, 5" % (sT0, sWV))
        a("s_add_u32 s%d, s%d, %d" % (sT0, sT0, RY))
        a("v_add_u32 v%d, s%d, v7" % (vE2[4], sT0))
    setup6()
    for i in range(12):
        wr = WREG2 + 16 * (i % 6)
        if i >= 6:
            need("q%d" % i)
            a.wait_lg("q%d" % i)
        for mi in range(5):
            n = 5 * i + mi
            nxt = a.capture(gload, n + NR2) if (n + NR2 < 60 and not cfg.noload) else []
            a.wait_vm("g%d" % n)
            for x, ni in enumerate((1, 2, 3, 0) if i == 11 else range(4)):
                acc = v(ACC2 + 20 * ni + 4 * mi, 4)
                if not cfg.nomfma or i == 0:
                    a("v_mfma_f32_16x16x32_bf16 %s, %s, %s, %s" % (acc, v(STG2 + 4 * (n % NR2), 4), v(wr + 4 * ni, 4), acc if (i or ni == 0) else "0"))
                if x < 3:
                    k = cfg.fillk
                    while len(nxt) > 1 and k:
                        a.play(nxt.pop(0)); k -= 1
                    fill(k)
                if i == 11 and mi >= 2 and x < 3:
                    a("ds_write_b128 v%d, %s offset:%d" % (vE2[0], v(ACC2 + 20 * (x + 1) + 4 * (mi - 2), 4), x * 5120 + (mi - 2) * 1024))
            for it in nxt:
                a.play(it)
        if i in (0, 5) and cfg.fine:
            stamp(28 + (i + 1) // 3)
        if i + 6 < 12:
            fifo += a.capture(tr_step, slot2(i + 6), wr, "q%d" % (i + 6))
    fill(1000)
    stamp(10)
    for q in (3, 4):
        for k in range(1, 4):
            a("ds_write_b128 v%d, %s offset:%d" % (vE2[0], v(ACC2 + 20 * k + 4 * q, 4), (k - 1) * 5120 + q * 1024))
    a.drain_lg()
    a("s_barrier")
    YR, TY, TP = WREG2 + 40, WREG2, WREG2 + 20
    for mi in range(5):
        a("ds_read_b64_tr_b16 %s, v%d offset:%d" % (v(YR + 2 * mi, 2), vE2[4], mi * 2048), tag="ya")
    for q in range(5):
        for k in range(1, 4):
            a("ds_read_b128 %s, v%d offset:%d" % (v(ACC2 + 20 * k + 4 * q, 4), vE2[k], (k - 1) * 5120 + q * 1024), tag="r%d" % q)
    a.wait_lg("ya")
    for k in range(10):
        a("v_lshlrev_b32 v%d, 16, v%d" % (TY + 2 * k, YR + k))
        a("v_and_b32 v%d, s%d, v%d" % (TY + 2 * k + 1, sMASK, YR + k))
    def pk2(d, x, y, n):
        for k in range(0, n, 2):
            a("v_pk_add_f32 %s, %s, %s" % (v(d + k, 2), v(x + k, 2), v(y + k, 2)))
    pk2(ACC2, ACC2, TY, 20)
    pol = (" " + cfg.out_pol) if cfg.out_pol else ""
    for (o, n, last) in ((0, 8, 1), (8, 8, 3), (16, 4, 4)):
        a.wait_lg("r%d" % last)
        pk2(ACC2 + o, ACC2 + o, ACC2 + 20 + o, n)
        pk2(ACC2 + 40 + o, ACC2 + 40 + o, ACC2 + 60 + o, n)
        pk2(ACC2 + o, ACC2 + o, ACC2 + 40 + o, n)
        for k in range(n // 2):
            a("v_cvt_pk_bf16_f32 v%d, v%d, v%d" % (TP + o // 2 + k, ACC2 + o + 2 * k, ACC2 + o + 2 * k + 1))
        if n == 8:
            a("buffer_store_dwordx4 %s, v%d, %s, s%d offen offset:%d%s" % (v(TP + o // 2, 4), vXO, s(rOUT, 4), sXO, 8 * o, pol))
        else:
            a("buffer_store_dwordx2 %s, v%d, %s, s%d offen offset:128%s" % (v(TP + 8, 2), vXO4, s(rOUT, 4), sXO, pol))
    stamp(11)
    if cfg.hold:
        a("s_waitcnt vmcnt(0)")
        a.label("L_hold")
        a("s_memrealtime s[100:101]")
        a("s_waitcnt lgkmcnt(0)")
        a("s_sub_u32 s100, s100, s98")
        if cfg.hx >= 0:
            a("s_sub_u32 s100, s100, s99")
        a("s_cmp_lt_u32 s100, %d" % (cfg.hold * 100))
        a("s_cbranch_scc1 L_hold")
    finish()

    a.label("L_aux_main")
    a.vm = list(aux_vm); a.lg = []
    a("s_and_b32 s%d, s%d, 1" % (sT0, sJ))
    a("s_add_u32 s%d, s%d, s%d" % (sT0, sT0, sWV))
    a("s_cmp_ge_u32 s%d, 7" % sT0)
    a("s_cbranch_scc1 %s" % ("L_w6" if cfg.stouch else "L_aux_done"))
    F0 = 64
    a.wait_vm("p")
    for k in range(6):
        a("v_lshlrev_b32 v%d, 16, v%d" % (F0 + k, PRM0 + k))
        a("v_and_b32 v%d, s%d, v%d" % (F0 + 6 + k, sMASK, PRM0 + k))
        a("v_lshlrev_b32 v%d, 16, v%d" % (F0 + 12 + k, PRM1 + k))
    vDT, vDS = 82, 83
    a("v_lshlrev_b32 v%d, 16, v%d" % (vDT, vLDT))
    a("v_lshlrev_b32 v%d, 16, v%d" % (vDS, vDSK))
    a("v_mul_f32 v%d, %s, v%d" % (vDT, f32(math.log2(math.e)), vDT))
    a("v_exp_f32 v%d, v%d" % (vDT, vDT))
    bfround(vDT)
    a("s_setprio %d" % cfg.pK)
    stamp(3)

    E = {k: 84 + 2 * (k - 1) for k in range(1, 8)}
    P = {k: 98 + 2 * (k - 1) for k in range(1, 9)}
    Q, Q2 = 114, 116
    Y = [118, 120, 122, 124]
    TT = [126, 128, 130, 132]
    CV = list(range(134, 142))
    YFR, XFR, DK = 144, 160, 208
    vFA = 220
    cvi = [0]
    def cmul1(d, x, y):
        a("v_pk_mul_f32 %s, %s, %s op_sel:[0,0] op_sel_hi:[0,1]" % (v(d, 2), v(x, 2), v(y, 2)))
    def cmul2(d, x, y):
        a("v_pk_fma_f32 %s, %s, %s, %s op_sel:[1,1,0] op_sel_hi:[1,0,1] neg_lo:[1,0,0]" % (v(d, 2), v(x, 2), v(y, 2), v(d, 2)))
    if cfg.kg2 == 3:
        CV = list(range(16, 64)) + list(range(224, 233))
    def put(r, row, neg=False):
        c = CV[cvi[0] % len(CV)]; cvi[0] += 1
        a("v_cvt_pk_bf16_f32 v%d, v%d, %sv%d" % (c, r, "-" if neg else "", r + 1))
        return ("w", c, row)
    def wr(c, row):
        if not cfg.nokw:
            a("ds_write_addtid_b32 v%d offset:%d" % (c, row * 288))
    def group(ops):
        for d, x, y, row, neg in ops:
            cmul1(d, x, y)
        for d, x, y, row, neg in ops:
            cmul2(d, x, y)
        pend = []
        for d, x, y, row, neg in ops:
            if row is not None:
                pend.append(put(d, row, neg))
        for _, c, row in pend:
            wr(c, row)

    a("s_mov_b32 m0, s%d" % sRB)
    a("v_and_b32 v1, 15, v0")
    a("v_mul_u32_u24 v1, 288, v1")
    a("v_and_b32 v%d, 48, v0" % vFA)
    a("v_add3_u32 v%d, v%d, v1, s%d" % (vFA, vFA, sRB))
    for k in range(12):
        a("v_mov_b32 v%d, 0" % (DK + k))
    a("v_mov_b32 v143, 0x3f80")
    if cfg.kg2 in (1, 2):
        YR0 = 25
        pend = []
        def drip(n):
            for _ in range(n):
                if pend:
                    a.play(pend.pop(0))
        def out(r, row, neg=False):
            def f():
                _, c, _r = put(r, row, neg)
                f.c = c
            it = a.capture(f)
            return it, a.capture(wr, f.c, row)
        def grp(ops):
            for d, x, y, row, neg in ops:
                cmul1(d, x, y); drip(1)
            for d, x, y, row, neg in ops:
                cmul2(d, x, y); drip(1)
            drip(100)
            cv, wrs = [], []
            for d, x, y, row, neg in ops:
                if row is not None:
                    c_, w_ = out(d, row, neg)
                    cv += c_; wrs += w_
            seq_ = cv[:1]
            for k in range(len(wrs)):
                seq_ += cv[k + 1:k + 2] + [wrs[k]]
            pend.extend(seq_)
        T2 = TT + [224, 226, 228, 230]
        AN = 232
        late = []
        def dl(n):
            for _ in range(n):
                if late:
                    a.play(late.pop(0))
        def mf(dk, xo, tag):
            a.wait_lg(tag)
            for st in range(4):
                a("v_mfma_f32_16x16x32_bf16 %s, %s, %s, %s" % (v(dk, 4), v(XFR + xo + 4 * st, 4), v(YFR + 4 * st, 4), v(dk, 4)))
        if cfg.kg2 == 2:
            a("s_mov_b32 s%d, 3" % sT3)
            a.label("L_kgen")
            a.lg = []
        for rd in range(3 if cfg.kg2 == 1 else 1):
            Fp = F0 + 6 * rd
            a("v_pk_mul_f32 %s, %s, v[82:83] op_sel_hi:[1,0]" % (v(AN, 2), v(Fp, 2)))
            a("v_pk_mul_f32 %s, %s, v[82:83] op_sel_hi:[1,0]" % (v(AN + 2, 2), v(Fp + 2, 2)))
            a("v_mul_f32 v%d, %s, v%d" % (AN, f32(math.log2(math.e)), AN))
            a("v_mul_f32 v%d, 0.15915494, v%d" % (AN + 1, AN + 1))
            cmul1(Y[0], Fp + 4, AN + 2)
            anchors = [(E[1], 1.0), (Q, 8.0), (P[1], 128.0)]
            for idx, (d, k) in enumerate(anchors):
                m_, f_ = AN + 4 + 2 * idx, AN + 5 + 2 * idx
                if k == 1.0:
                    a("v_exp_f32 v%d, v%d" % (m_, AN))
                    a("v_fract_f32 v%d, v%d" % (f_, AN + 1))
                else:
                    a("v_mul_f32 v%d, %s, v%d" % (m_, f32(k), AN))
                    a("v_mul_f32 v%d, %s, v%d" % (f_, f32(k), AN + 1))
                    a("v_exp_f32 v%d, v%d" % (m_, m_))
                    a("v_fract_f32 v%d, v%d" % (f_, f_))
                dl(1)
            cmul2(Y[0], Fp + 4, AN + 2)
            for idx, (d, k) in enumerate(anchors):
                a("v_cos_f32 v%d, v%d" % (d, AN + 5 + 2 * idx)); dl(1)
                a("v_sin_f32 v%d, v%d" % (d + 1, AN + 5 + 2 * idx)); dl(1)
            dl(100)
            for idx, (d, k) in enumerate(anchors):
                a("v_pk_mul_f32 %s, %s, %s op_sel_hi:[1,0]" % (v(d, 2), v(d, 2), v(AN + 4 + 2 * idx, 2)))
            pend.extend(a.capture(wr, 143, 0))
            for r_, row, neg in ((Y[0], YR0, True), (E[1], 1, False), (P[1], 8, False)):
                c_, w_ = out(r_, row, neg)
                pend.extend(c_ + w_)
            grp([(Y[1], Y[0], Q, YR0 + 1, True), (Q2, Q, Q, None, False), (E[2], E[1], E[1], 2, False), (P[2], P[1], P[1], 16, False)])
            grp([(Y[2], Y[0], Q2, YR0 + 2, True), (Y[3], Y[1], Q2, YR0 + 3, True), (E[3], E[2], E[1], 3, False), (E[4], E[2], E[2], 4, False)])
            grp([(Y[0], Y[2], Q2, YR0 + 4, True), (Y[1], Y[3], Q2, YR0 + 5, True), (E[5], E[4], E[1], 5, False), (E[6], E[4], E[2], 6, False)])
            grp([(Y[2], Y[0], Q2, YR0 + 6, True), (Y[3], Y[1], Q2, YR0 + 7, True), (E[7], E[4], E[3], 7, False), (P[3], P[2], P[1], 20, False)])
            grp([(Y[0], Y[2], Q2, YR0 + 8, True), (Y[1], Y[3], Q2, YR0 + 9, True), (T2[0], P[1], E[1], 9, False), (T2[1], P[1], E[2], 10, False)])
            grp([(Y[2], Y[0], Q2, YR0 + 10, True), (Y[3], Y[1], Q2, YR0 + 11, True), (T2[2], P[1], E[3], 11, False), (T2[3], P[1], E[4], 12, False)])
            grp([(Y[0], Y[2], Q2, YR0 + 12, True), (Y[1], Y[3], Q2, YR0 + 13, True), (T2[0], P[1], E[5], 13, False), (T2[1], P[1], E[6], 14, False)])
            grp([(Y[2], Y[0], Q2, YR0 + 14, True), (Y[3], Y[1], Q2, YR0 + 15, True), (T2[2], P[1], E[7], 15, False), (P[4], P[2], P[2], 24, False)])
            def rdf(dst, row0, tag):
                for st in range(4):
                    a("ds_read_b128 %s, v%d offset:%d" % (v(dst + 4 * st, 4), vFA, row0 * 288 + 64 * st), tag=tag)
            pend.extend(a.capture(rdf, YFR, YR0, "yf") + a.capture(rdf, XFR, 0, "x0"))
            grp([(T2[4], P[2], E[2], 17, False), (T2[5], P[2], E[4], 18, False), (T2[6], P[2], E[6], 19, False), (P[5], P[4], P[1], 26, False)])
            grp([(T2[0], P[3], E[2], 21, False), (T2[1], P[3], E[4], 22, False), (T2[2], P[3], E[6], 23, False), (P[6], P[4], P[2], 28, False)])
            grp([(P[7], P[4], P[3], 30, False), (P[8], P[4], P[4], 32, False), (T2[4], P[4], E[4], 25, False), (T2[5], P[5], E[4], 27, False)])
            grp([(T2[0], P[6], E[4], 29, False), (T2[1], P[7], E[4], 31, False), (T2[2], P[8], P[1], 33, False), (T2[3], P[8], P[2], 34, False)])
            pend.extend(a.capture(rdf, XFR + 16, 16, "x1"))
            grp([(T2[4], P[8], P[3], 35, False), (T2[5], P[8], P[4], 36, False), (T2[6], P[8], P[5], 37, False)])
            grp([(T2[0], P[8], P[6], 38, False), (T2[1], P[8], P[7], 39, False), (T2[2], P[8], P[8], 40, False)])
            m0_ = a.capture(mf, DK, 0, "x0")
            while pend or m0_:
                drip(1)
                if m0_:
                    a.play(m0_.pop(0))
            rdf(XFR + 32, 32, "x2")
            late.extend(a.capture(mf, DK + 4, 16, "x1") + a.capture(mf, DK + 8, 32, "x2"))
        if cfg.kg2 == 2:
            for k in range(12):
                a("v_mov_b32 v%d, v%d" % (F0 + k, F0 + 6 + k))
                if k % 2:
                    dl(1)
        dl(100)
        if cfg.kg2 == 2:
            a("s_sub_u32 s%d, s%d, 1" % (sT3, sT3))
            a("s_cmp_lg_u32 s%d, 0" % sT3)
            a("s_cbranch_scc1 L_kgen")
    else:
        a("s_mov_b32 s%d, 3" % sT3)
        a.label("L_kgen")
        a.lg = []
        def round_body():
            a("v_pk_mul_f32 v[126:127], v[64:65], v[82:83] op_sel_hi:[1,0]")
            a("v_pk_mul_f32 v[128:129], v[66:67], v[82:83] op_sel_hi:[1,0]")
            a("v_mul_f32 v126, %s, v126" % f32(math.log2(math.e)))
            a("v_mul_f32 v127, 0.15915494, v127")
            cmul1(Y[0], 68, 128)
            anchors = [(E[1], 1.0), (Q, 8.0), (P[1], 128.0)]
            for idx, (d, k) in enumerate(anchors):
                m_, f_ = 134 + 2 * idx, 135 + 2 * idx
                if k == 1.0:
                    a("v_exp_f32 v%d, v126" % m_)
                    a("v_fract_f32 v%d, v127" % f_)
                else:
                    a("v_mul_f32 v%d, %s, v126" % (m_, f32(k)))
                    a("v_mul_f32 v%d, %s, v127" % (f_, f32(k)))
                    a("v_exp_f32 v%d, v%d" % (m_, m_))
                    a("v_fract_f32 v%d, v%d" % (f_, f_))
            cmul2(Y[0], 68, 128)
            for idx, (d, k) in enumerate(anchors):
                a("v_cos_f32 v%d, v%d" % (d, 135 + 2 * idx))
                a("v_sin_f32 v%d, v%d" % (d + 1, 135 + 2 * idx))
            for idx, (d, k) in enumerate(anchors):
                a("v_pk_mul_f32 %s, %s, %s op_sel_hi:[1,0]" % (v(d, 2), v(d, 2), v(134 + 2 * idx, 2)))
            for k in range(12):
                a("v_mov_b32 v%d, v%d" % (F0 + k, F0 + 6 + k))
            YR0 = 25
            wr(143, 0)
            p_ = [put(Y[0], YR0, True), put(E[1], 1), put(P[1], 8)]
            for _, c, row in p_:
                wr(c, row)
            group([(Y[1], Y[0], Q, YR0 + 1, True), (Q2, Q, Q, None, False), (E[2], E[1], E[1], 2, False), (P[2], P[1], P[1], 16, False)])
            group([(Y[2], Y[0], Q2, YR0 + 2, True), (Y[3], Y[1], Q2, YR0 + 3, True), (E[3], E[2], E[1], 3, False), (E[4], E[2], E[2], 4, False)])
            group([(Y[0], Y[2], Q2, YR0 + 4, True), (Y[1], Y[3], Q2, YR0 + 5, True), (E[5], E[4], E[1], 5, False), (E[6], E[4], E[2], 6, False)])
            group([(Y[2], Y[0], Q2, YR0 + 6, True), (Y[3], Y[1], Q2, YR0 + 7, True), (E[7], E[4], E[3], 7, False), (P[3], P[2], P[1], 20, False)])
            group([(Y[0], Y[2], Q2, YR0 + 8, True), (Y[1], Y[3], Q2, YR0 + 9, True), (TT[0], P[1], E[1], 9, False), (TT[1], P[1], E[2], 10, False)])
            group([(Y[2], Y[0], Q2, YR0 + 10, True), (Y[3], Y[1], Q2, YR0 + 11, True), (TT[0], P[1], E[3], 11, False), (TT[1], P[1], E[4], 12, False)])
            group([(Y[0], Y[2], Q2, YR0 + 12, True), (Y[1], Y[3], Q2, YR0 + 13, True), (TT[0], P[1], E[5], 13, False), (TT[1], P[1], E[6], 14, False)])
            group([(Y[2], Y[0], Q2, YR0 + 14, True), (Y[3], Y[1], Q2, YR0 + 15, True), (TT[0], P[1], E[7], 15, False), (P[4], P[2], P[2], 24, False)])
            for st in range(4):
                a("ds_read_b128 %s, v%d offset:%d" % (v(YFR + 4 * st, 4), vFA, YR0 * 288 + 64 * st), tag="yf")
            for st in range(4):
                a("ds_read_b128 %s, v%d offset:%d" % (v(XFR + 4 * st, 4), vFA, 64 * st), tag="x0")
            group([(TT[0], P[2], E[2], 17, False), (TT[1], P[2], E[4], 18, False), (TT[2], P[2], E[6], 19, False), (P[5], P[4], P[1], 26, False)])
            group([(TT[0], P[3], E[2], 21, False), (TT[1], P[3], E[4], 22, False), (TT[2], P[3], E[6], 23, False), (P[6], P[4], P[2], 28, False)])
            a.wait_lg("x0")
            for st in range(4):
                a("v_mfma_f32_16x16x32_bf16 %s, %s, %s, %s" % (v(DK, 4), v(XFR + 4 * st, 4), v(YFR + 4 * st, 4), v(DK, 4)))
            group([(P[7], P[4], P[3], 30, False), (P[8], P[4], P[4], 32, False), (TT[0], P[4], E[4], 25, False), (TT[1], P[5], E[4], 27, False)])
            group([(TT[0], P[6], E[4], 29, False), (TT[1], P[7], E[4], 31, False), (TT[2], P[8], P[1], 33, False), (TT[3], P[8], P[2], 34, False)])
            for st in range(4):
                a("ds_read_b128 %s, v%d offset:%d" % (v(XFR + 16 + 4 * st, 4), vFA, 16 * 288 + 64 * st), tag="x1")
            group([(TT[0], P[8], P[3], 35, False), (TT[1], P[8], P[4], 36, False), (TT[2], P[8], P[5], 37, False)])
            group([(TT[0], P[8], P[6], 38, False), (TT[1], P[8], P[7], 39, False), (TT[2], P[8], P[8], 40, False)])
            for st in range(4):
                a("ds_read_b128 %s, v%d offset:%d" % (v(XFR + 32 + 4 * st, 4), vFA, 32 * 288 + 64 * st), tag="x2")
            a.wait_lg("x1")
            for st in range(4):
                a("v_mfma_f32_16x16x32_bf16 %s, %s, %s, %s" % (v(DK + 4, 4), v(XFR + 16 + 4 * st, 4), v(YFR + 4 * st, 4), v(DK + 4, 4)))
            a.wait_lg("x2")
            for st in range(4):
                a("v_mfma_f32_16x16x32_bf16 %s, %s, %s, %s" % (v(DK + 8, 4), v(XFR + 32 + 4 * st, 4), v(YFR + 4 * st, 4), v(DK + 8, 4)))
        items = a.capture(round_body)
        if cfg.kg2 == 3:
            isv = lambda it: it[0] == "i" and it[1].startswith("v_") and not it[1].startswith("v_mfma")
            vv = [it for it in items if isv(it)]
            oo = [it for it in items if not isv(it)]
            if cfg.sepu:
                import re as _re
                sets = {0: [], 1: [], 2: [], 3: []}
                seenY = False
                for it in oo:
                    if it[0] == "i" and it[1].startswith("ds_read") and it[2] == "yf":
                        seenY = True
                    if it[0] == "i" and it[1].startswith("ds_write_addtid"):
                        row = int(_re.search(r"offset:(\d+)", it[1]).group(1)) // 288
                        if row >= 25 and not seenY:
                            k, r16 = 0, row - 25
                        else:
                            k, r16 = 1 + row // 16, row % 16
                        sets[k].append(("i", _re.sub(r"offset:\d+", "offset:%d" % (r16 * 288), it[1]), None))
                oo = []
                for k, (dst, tg) in enumerate(((YFR, "yf"), (XFR, "x0"), (XFR + 16, "x1"), (XFR + 32, "x2"))):
                    oo += sets[k]
                    if k >= 2:
                        oo.append(("wait_lg", ("x0", "x1")[k - 2], None))
                        for st in range(4):
                            dk = DK + 4 * (k - 2)
                            oo.append(("i", "v_mfma_f32_16x16x32_bf16 %s, %s, %s, %s" % (v(dk, 4), v(XFR + 16 * (k - 2) + 4 * st, 4), v(YFR + 4 * st, 4), v(dk, 4)), None))
                    for st in range(4):
                        oo.append(("i", "ds_read_b128 %s, v%d offset:%d" % (v(dst + 4 * st, 4), vFA, 64 * st), tg))
                oo.append(("wait_lg", "x2", None))
                for st in range(4):
                    oo.append(("i", "v_mfma_f32_16x16x32_bf16 %s, %s, %s, %s" % (v(DK + 8, 4), v(XFR + 32 + 4 * st, 4), v(YFR + 4 * st, 4), v(DK + 8, 4)), None))
            items = vv + oo
        for it in items:
            a.play(it)
        a("s_sub_u32 s%d, s%d, 1" % (sT3, sT3))
        a("s_cmp_lg_u32 s%d, 0" % sT3)
        a("s_cbranch_scc1 L_kgen")
    a.drain_vm()
    stamp(4)
    a("v_and_b32 v16, 15, v0")
    a("v_lshrrev_b32 v17, 4, v0")
    a("s_add_u32 s%d, s%d, %d" % (sT0, sRB, 4624 if cfg.sepu else TB_OFF))
    a("v_lshrrev_b32 v18, 1, v17")
    a("v_lshlrev_b32 v18, 7, v18")
    a("v_and_b32 v19, 1, v17")
    a("v_lshl_add_u32 v18, v19, 2, v18")
    a("v_lshl_add_u32 v18, v16, 3, v18")
    a("v_lshl_add_u32 v18, v18, 2, s%d" % sT0)
    a("v_lshlrev_b32 v19, 2, v16")
    a("v_lshlrev_b32 v20, 1, v16")
    a("v_cmp_gt_u32 vcc, 2, v17")
    a("v_cndmask_b32 v19, v20, v19, vcc")
    a("v_lshl_add_u32 v19, v17, 6, v19")
    a("v_lshl_add_u32 v19, v19, 2, s%d" % sT0)
    a("v_mov_b32 v20, 128")
    a("v_cndmask_b32 v20, v20, 8, vcc")
    a("v_add_u32 v20, v19, v20")
    a("v_lshl_add_u32 v21, v17, 6, v16")
    a("v_lshl_add_u32 v21, v21, 2, s%d" % sT0)
    a("v_lshlrev_b32 v22, 4, v0")
    a("v_add_u32 v22, %d, v22" % ZP_OFF)
    a("v_mov_b32 v23, 4096")
    a("v_cmp_gt_u32 vcc, %d, v0" % (14 if cfg.sepu else 15))
    a("v_cndmask_b32 v22, v23, v22, vcc")
    if cfg.sepu:
        a("v_mov_b32 v23, 4608")
        a("v_cmp_eq_u32 vcc, 14, v0")
        a("v_cndmask_b32 v22, v22, v23, vcc")
    a("v_add_u32 v22, s%d, v22" % sRB)
    for k in range(4):
        a("v_mov_b32 v%d, 0" % (24 + k))
    a("ds_write_b128 v22, v[24:27]")
    a("ds_write_b128 v18, %s" % v(DK, 4))
    a("ds_write_b64 v19, %s offset:1024" % v(DK + 4, 2))
    a("ds_write_b64 v20, %s offset:1024" % v(DK + 6, 2))
    for r in range(4):
        a("ds_write_b32 v21, v%d offset:%d" % (DK + 8 + r, 2048 + 64 * r))
    a("v_lshl_add_u32 v18, v0, 4, s%d" % sT0)
    a("v_lshl_add_u32 v19, v0, 3, s%d" % sT0)
    a("v_subrev_u32 v20, 4, v18")
    a("v_subrev_u32 v21, 4, v19")
    a("v_cmp_eq_u32 vcc, 0, v0")
    a("v_cndmask_b32 v21, v19, v21, vcc")
    a("ds_read_b128 v[28:31], v18", tag="s0")
    a("ds_read_b32 v32, v20", tag="s0")
    a("ds_read_b64 v[34:35], v19 offset:1024", tag="s1")
    a("ds_read_b32 v36, v19 offset:1032", tag="s1")
    a("ds_read_b32 v37, v21 offset:1024", tag="s1")
    a("ds_read_b64 v[38:39], v19 offset:1536", tag="s2")
    a("ds_read_b32 v40, v19 offset:1544", tag="s2")
    a("ds_read_b64 v[42:43], v19 offset:2048", tag="s3")
    a("ds_read_b32 v44, v19 offset:2056", tag="s3")
    a("v_lshlrev_b32 v22, 3, v0")
    a("v_sub_u32 v22, s%d, v22" % sRB)
    a("v_lshlrev_b32 v23, 4, v0")
    a("v_sub_u32 v23, s%d, v23" % sRB)
    a("v_lshlrev_b32 v24, 5, v0")
    a("v_sub_u32 v24, s%d, v24" % sRB)
    a("v_add_u32 v22, %d, v22" % (4096 - 512 - 8))
    a("v_add_u32 v23, %d, v23" % (4096 - 1024 - 16))
    a("v_add_u32 v24, %d, v24" % (4096 - 2048 - 32))
    def pk(d, lo, hi):
        a("v_cvt_pk_bf16_f32 v%d, v%d, v%d" % (d, lo, hi))
    a("v_cndmask_b32 v33, 0, v%d, vcc" % vDS)
    a.wait_lg("s0")
    a("v_add_f32 v28, v28, v33")
    pk(48, 31, 30); pk(49, 29, 28); pk(50, 30, 29); pk(51, 28, 32)
    a("ds_write_b64 v22, v[48:49] offset:512")
    a("ds_write_b64 v22, v[50:51] offset:%d" % (512 + KB_OFF))
    a.wait_lg("s1")
    pk(52, 36, 35); pk(53, 34, 34); pk(54, 35, 34); pk(55, 34, 37)
    a("ds_write_b64 v22, v[52:53]")
    a("ds_write_b64 v22, v[54:55] offset:%d" % KB_OFF)
    a.wait_lg("s2")
    A_, B_, C_ = 38, 39, 40
    pk(56, C_, C_); pk(57, B_, B_); pk(58, B_, A_); pk(59, A_, A_)
    pk(60, C_, B_); pk(61, B_, B_); pk(62, A_, A_); pk(63, A_, A_)
    a("ds_write_b128 v23, v[56:59]")
    a("ds_write_b128 v23, v[60:63] offset:%d" % KB_OFF)
    a.wait_lg("s3")
    A_, B_, C_ = 42, 43, 44
    seqA = [(C_, C_), (C_, C_), (B_, B_), (B_, B_), (B_, B_), (B_, A_), (A_, A_), (A_, A_)]
    seqB = [(C_, C_), (C_, B_), (B_, B_), (B_, B_), (B_, B_), (A_, A_), (A_, A_), (A_, A_)]
    for k, (lo, hi) in enumerate(seqA):
        pk(64 + k, lo, hi)
    for k, (lo, hi) in enumerate(seqB):
        pk(72 + k, lo, hi)
    a("ds_write_b128 v24, v[64:67]")
    a("ds_write_b128 v24, v[68:71] offset:16")
    a("ds_write_b128 v24, v[72:75] offset:%d" % KB_OFF)
    a("ds_write_b128 v24, v[76:79] offset:%d" % (KB_OFF + 16))
    stamp(5)
    if not cfg.keepk:
        a("s_setprio 0")
    if not cfg.helper and not cfg.sepu:
        a.drain_lg()
        lds_arrive(20, 8, 9)
    vUA, vKA = 10, 11
    def conv_addr(sb):
        a("v_and_b32 v12, 15, v0")
        a("v_lshrrev_b32 v13, 4, v0")
        a("v_lshlrev_b32 v13, 1, v13")
        a("v_sub_u32 v12, v12, v13")
        a("v_lshlrev_b32 v12, 4, v12")
        a("s_add_u32 s%d, s%d, %d" % (sT1, sb, U_OFF - 128))
        a("v_add_u32 v%d, s%d, v12" % (vUA, sT1))
        a("v_lshrrev_b32 v12, 1, v0")
        a("v_lshlrev_b32 v12, 2, v12")
        a("v_and_b32 v13, 1, v0")
        a("v_mul_u32_u24 v13, %d, v13" % KB_OFF)
        a("v_add_u32 v12, v12, v13")
        a("s_add_u32 s%d, s%d, %d" % (sT1, sb, KB_OFF + 4092 - 128 - 768))
        a("v_sub_u32 v%d, s%d, v12" % (vKA, sT1))
        for g in range(1, 4):
            a("v_subrev_u32 v%d, %d, v%d" % (vKA + g, 1024 * g, vKA))
    conv_addr(sRB)
    AC, KF, UF, NU = 16, 80, 208, 8
    NT = cfg.NT if cfg.helper else 16
    NH = 16 - NT
    for idx in range(32):
        c, tau = idx >> 4, idx & 15
        if tau >= NT:
            continue
        o = 192 - 64 * (tau & 3) + 32 * (1 - c)
        r = KF + 4 * idx
        a("ds_read2_b32 %s, v%d offset0:%d offset1:%d" % (v(r, 2), vKA + (tau >> 2), o, o + 1))
        a("ds_read2_b32 %s, v%d offset0:%d offset1:%d" % (v(r + 2, 2), vKA + (tau >> 2), o + 2, o + 3))
    a("v_and_b32 v4, 15, v0")
    a("v_lshlrev_b32 v4, 4, v4")
    a("v_lshrrev_b32 v5, 5, v0")
    a("v_lshl_add_u32 v4, v5, 11, v4")
    a("v_bfe_u32 v5, v0, 4, 1")
    a("v_lshl_add_u32 v4, v5, 8, v4")
    group_ids(5, 6, sX, 7)
    a("v_mov_b32 v6, %d" % CNT)
    if cfg.helper:
        a.drain_lg()
        lds_arrive(20, 8, 9)
    if cfg.nox and not cfg.t7:
        if cfg.tprio:
            a("s_setprio %d" % cfg.tprio)
        lds_wait(48, 1, 8, 9, sleep=1)
        a("v_lshlrev_b32 v9, 5, v0")
        for k in range(4):
            a("ds_read_b128 %s, v9 offset:%d" % (v(AC + 8 * k, 4), RY + 2048 * k), tag="x%d" % k)
            a("ds_read_b128 %s, v9 offset:%d" % (v(AC + 8 * k + 4, 4), RY + 2048 * k + 16), tag="x%d" % k)
        for k in range(4):
            a.wait_lg("x%d" % k)
            for q in range(8 * k, 8 * k + 8):
                a("v_lshlrev_b32 v%d, 16, v%d" % (AC + 32 + q, AC + q))
                a("v_and_b32 v%d, s%d, v%d" % (AC + q, sMASK, AC + q))
    lds_wait(24, 1, 8, 9, sleep=1)
    if cfg.nox and not cfg.t7:
        a("v_add_u32 v8, s%d, v2" % sRB)
        for k in range(4):
            a("ds_read_b128 %s, v8 offset:%d" % (v(UF + 4 * k, 4), U_OFF + 1024 * k), tag="x%d" % k)
        TH = UF + 16
        for k in range(4):
            H_ = UF + 4 * k
            a.wait_lg("x%d" % k)
            for q in range(4):
                a("v_lshlrev_b32 v%d, 16, v%d" % (TH + 2 * q, H_ + q))
                a("v_and_b32 v%d, s%d, v%d" % (TH + 2 * q + 1, sMASK, H_ + q))
            for q in range(8):
                a("v_fmac_f32 v%d, v%d, v%d" % (AC + 32 + 8 * k + q, TH + q, AC + 8 * k + q))
            for q in range(4):
                a("v_cvt_pk_bf16_f32 v%d, v%d, v%d" % (AC + 8 * k + q, AC + 32 + 8 * k + 2 * q, AC + 32 + 8 * k + 2 * q + 1))
            a("ds_write_b128 v8, %s offset:%d" % (v(AC + 8 * k, 4), U_OFF + 1024 * k))
        lds_arrive(44, 8, 9)
    stamp(7)
    if cfg.cprio or cfg.keepk or cfg.tprio:
        a("s_setprio %d" % cfg.cprio)
    seq = []
    for c in range(2):
        if cfg.helper and c == 0:
            seq += [(0, 0), (0, NT)]
            rest = [m for m in range(1, 16) if m != NT]
            while rest:
                seq += [(0, rest.pop(0)), (0, rest.pop())]
        else:
            for q in range(8):
                seq += [(c, q), (c, 15 - q)]
    def uread(n):
        c, mu = seq[n]
        a("ds_read_b128 %s, v%d offset:%d" % (v(UF + 4 * (n % NU), 4), vUA, 128 * (1 - c) + 256 * mu), tag="U%d" % n)
    for n in range(NU - 2):
        uread(n)
    stubs = []
    for n in range(32):
        c, mu = seq[n]
        if n % 2 == 0:
            if cfg.pause and n:
                a.wait_lg("pz")
                if cfg.pth > 1:
                    a("v_sub_u32 v8, v8, v9")
                    a("v_cmp_le_u32 vcc, %d, v8" % cfg.pth)
                else:
                    a("v_cmp_ne_u32 vcc, v8, v9")
                a("s_cbranch_vccnz L_pz%d" % n)
                a.label("L_np%d" % n)
                stubs.append(n)
            if cfg.pause and n < 30:
                a("ds_read2_b32 v[8:9], v6 offset0:0 offset1:7", tag="pz")
            for k in (n + NU - 2, n + NU - 1):
                if k < 32:
                    uread(k)
        a.wait_lg("U%d" % n)
        for tau in range(min(NT, 16 - mu)):
            acc = v(AC + 4 * (tau + mu), 4)
            first = n == 0 or (cfg.helper and n == 1)
            if not cfg.noconv or first:
                a("v_mfma_f32_16x16x32_bf16 %s, %s, %s, %s" % (acc, v(KF + 4 * (16 * c + tau), 4), v(UF + 4 * (n % NU), 4), "0" if first else acc))
    stamp(8)
    if cfg.helper:
        a("s_sub_u32 s%d, s%d, 3" % (sT3, sWV))
        lds_wait(36, "s%d" % sT3, 8, 9, sleep=1)
        a("v_add_u32 v8, s%d, v2" % sRB)
        for q in range(NH):
            a("ds_read_b128 %s, v8 offset:%d" % (v(UF + 4 * q, 4), 1024 * q), tag="hp%d" % q)
        for q in range(NH):
            a.wait_lg("hp%d" % q)
            for r in range(4):
                a("v_add_f32 v%d, v%d, v%d" % (AC + 4 * (NT + q) + r, AC + 4 * (NT + q) + r, UF + 4 * q + r))
    if cfg.eprio != cfg.cprio:
        a("s_setprio %d" % cfg.eprio)
    CY = 100
    for r in range(4):
        a("v_mov_b32 v%d, 0" % (CY + r))
    for m in range(8):
        for r in range(4):
            a("v_permlane32_swap_b32 v%d, v%d" % (AC + 4 * m + r, AC + 32 + 4 * m + r))
    for r in range(4):
        a("v_mov_b32 v%d, v%d" % (CY + 4 + r, AC + 32 + 28 + r))
    for m in range(8):
        for r in range(4):
            L_ = AC + 4 * m + r
            a("v_add_f32_dpp v%d, v%d, v%d row_shr:1 row_mask:0xf bank_mask:0xf bound_ctrl:0" % (L_, AC + 32 + 4 * m + r, L_))
        if m == 0:
            for r in range(4):
                a("v_permlane32_swap_b32 v%d, v%d" % (CY + r, CY + 4 + r))
    for m in range(8):
        for r in range(4):
            L_ = AC + 4 * m + r
            prev = (AC + 32 + 4 * (m - 1) + r) if m else (CY + r)
            a("v_add_f32_dpp v%d, v%d, v%d row_shl:15 row_mask:0xf bank_mask:0xf bound_ctrl:0" % (L_, prev, L_))
    TP2 = 108
    for k in range(16):
        a("v_cvt_pk_bf16_f32 v%d, v%d, v%d" % (TP2 + k, AC + 2 * k, AC + 2 * k + 1))
    for mp in range(4):
        a("v_permlane16_swap_b32 v%d, v%d" % (TP2 + 4 * mp, TP2 + 4 * mp + 2))
        a("v_permlane16_swap_b32 v%d, v%d" % (TP2 + 4 * mp + 1, TP2 + 4 * mp + 3))
    if cfg.ysync:
        a("s_and_b32 s%d, s%d, 1" % (sT2, sJ))
        a("s_add_u32 s%d, s%d, 2" % (sT2, sT2))
        a("v_mov_b32 v12, %d" % (CNT + 32))
        a("v_mov_b32 v13, s%d" % sT2)
        a("s_mov_b64 exec, 1")
        a("ds_add_u32 v12, v13")
        a("s_mov_b64 exec, -1")
        lds_wait(32, 6, 12, 13, sleep=1)
    a("s_lshl_b32 s%d, s%d, 12" % (sT0, sPOS))
    a("s_add_u32 s%d, s%d, 0x%x" % (sT0, sT0, YA))
    for mp in range(4):
        a("buffer_store_dwordx4 %s, v4, %s, s%d offen offset:%d sc1" % (v(TP2 + 4 * mp, 4), s(rWS, 4), sT0, 512 * mp))
    if cfg.ssig:
        a("s_lshl_b32 s%d, s%d, 10" % (sT1, sX))
        a("s_add_u32 s%d, s%d, 0x%x" % (sT1, sT1, YC))
        if cfg.ywg:
            assert cfg.xnlate != 2
            a("v_mov_b32 v12, %d" % (CNT + 40))
            a("v_mov_b32 v13, 1")
            a("s_and_b32 s%d, s%d, 1" % (sT2, sJ))
        a.drain_vm()
        if cfg.ywg:
            a("s_mov_b64 exec, 1")
            a("ds_add_rtn_u32 v13, v12, v13")
            a("s_mov_b64 exec, -1")
            a.drain_lg()
            a("v_readfirstlane_b32 s%d, v13" % sT0)
            a("s_add_u32 s%d, s%d, s%d" % (sT0, sT0, sT2))
            a("s_cmp_lg_u32 s%d, 2" % sT0)
            a("s_cbranch_scc1 L_aux_done")
        sig8(sT1, 128)
    else:
        a("s_mov_b32 s%d, 0x%x" % (sT1, YC))
        a.drain_vm()
        group_add(5, sT1, 13)
    stamp(9)
    a.label("L_aux_done")
    finish()
    def emit_stubs(lst):
        for n in lst:
            a.label("L_pz%d" % n)
            a("s_mov_b32 s%d, 0x%x" % (sCNT, cfg.spin * 64))
            a.label("L_pl%d" % n)
            a("s_sleep 1")
            a("ds_read2_b32 v[8:9], v6 offset0:0 offset1:7")
            a("s_sub_u32 s%d, s%d, 1" % (sCNT, sCNT))
            a("s_cbranch_scc1 L_np%d" % n)
            a.drain_lg()
            a("v_cmp_ne_u32 vcc, v8, v9")
            a("s_cbranch_vccnz L_pl%d" % n)
            a("s_branch L_np%d" % n)
    emit_stubs(stubs)
    hstubs = []
    if cfg.stouch:
        a.label("L_w6")
        a("s_lshr_b32 s%d, s%d, 1" % (sT0, sJ))
        a("s_mul_i32 s%d, s%d, %d" % (sT0, sT0, 96 * 4096))
        a("s_lshl_b32 s%d, s%d, 9" % (sT1, sX))
        a("s_add_u32 s%d, s%d, s%d" % (sT0, sT0, sT1))
        a("s_add_u32 s14, s%d, s%d" % (pW2, sT0))
        a("s_addc_u32 s15, s%d, 0" % (pW2 + 1))
        a("s_mov_b32 s%d, 24" % sCNT)
        a.label("L_w6l")
        for r in range(4):
            for c in range(4):
                a("s_load_dword s%d, s[14:15], 0x%x" % (76 + (4 * r + c) % 8, r * 4096 + c * 128))
            if cfg.stouch == 2:
                a("s_waitcnt lgkmcnt(8)")
        a("s_add_u32 s14, s14, %d" % (4 * 4096))
        a("s_addc_u32 s15, s15, 0")
        a("s_sub_u32 s%d, s%d, 1" % (sCNT, sCNT))
        a("s_cmp_lg_u32 s%d, 0" % sCNT)
        a("s_cbranch_scc1 L_w6l")
        stamp(9)
        a("s_branch L_aux_done")
    a.label("L_w7")
    a.vm = []; a.lg = []
    tile_math()
    a("v_lshrrev_b32 v8, 2, v0")
    a("v_and_b32 v9, 3, v0")
    a("v_mul_u32_u24 v5, 10240, v8")
    a("v_lshl_add_u32 v5, v9, 4, v5")
    a("v_mul_u32_u24 v4, %d, v9" % S)
    a("v_lshl_add_u32 v4, v8, 4, v4")
    a("s_lshl_b32 s96, s%d, 4" % sPOS)
    a("s_add_u32 s96, s96, 0x%x" % (HB if cfg.nox else XB))
    a("v_lshrrev_b32 v7, 1, v0")
    a("v_lshlrev_b32 v7, %d, v7" % cfg.stsh)
    a("v_and_b32 v13, 16, v2")
    a("v_add_u32 v7, v7, v13")
    a("s_and_b32 s%d, s%d, 1" % (sT3, sJ))
    a("s_cmp_eq_u32 s%d, 0" % sT3)
    a("s_mov_b32 s%d, 0x33333333" % sT2)
    a("s_cselect_b32 s100, 0x77777777, s%d" % sT2)
    a("s_mov_b32 s101, s100")
    a("s_setprio %d" % cfg.uprio)
    if cfg.w7mb:
        a("s_lshl_b32 s%d, s%d, 10" % (sT1, sID))
        a("s_add_u32 s%d, s%d, 0x%x" % (sT1, sT1, MB))
        a("s_add_u32 s14, s%d, s%d" % (pWS, sT1))
        a("s_addc_u32 s15, s%d, 0" % (pWS + 1))
        a("s_mov_b32 s%d, %d" % (sCNT, cfg.spin * 2))
        a.label("L_p4")
        for k in range(4):
            a("s_load_dword s%d, s[14:15], %d glc" % (sD[k], 128 * k + (64 if cfg.xnlate else 0)))
        a("s_waitcnt lgkmcnt(0)"); a.lg = []
        for k in range(4):
            a("s_xor_b32 s%d, s%d, s%d" % (sD[k], sD[k], sTAG))
        a("s_or_b32 s%d, s%d, s%d" % (sD[0], sD[0], sD[1]))
        a("s_or_b32 s%d, s%d, s%d" % (sD[2], sD[2], sD[3]))
        a("s_or_b32 s%d, s%d, s%d" % (sD[0], sD[0], sD[2]))
        a("s_cbranch_scc0 L_p4ok")
        if cfg.p4s:
            a("s_sleep %d" % cfg.p4s)
        a("s_sub_u32 s%d, s%d, 1" % (sCNT, sCNT))
        a("s_cmp_lg_u32 s%d, 0" % sCNT)
        a("s_cbranch_scc1 L_p4")
        a.label("L_p4ok")
    else:
        lds_wait(12, 4, 10, 11, sleep=2)
    stamp(5)
    def touch_w2():
        sh = 2 if cfg.map2 == 8 else 3
        a("v_lshrrev_b32 v10, %d, v0" % sh)
        a("v_lshlrev_b32 v10, 12, v10")
        a("v_and_b32 v11, %d, v0" % ((1 << sh) - 1))
        a("v_lshl_add_u32 v10, v11, 7, v10")
        a("s_mul_i32 s%d, s%d, %d" % (sT1, sJ, 48 * 4096))
        if cfg.map2 == 8:
            a("s_lshl_b32 s%d, s%d, 9" % (sT2, sX))
        else:
            a("s_lshr_b32 s%d, s%d, 1" % (sT2, sX))
            a("s_lshl_b32 s%d, s%d, 10" % (sT2, sT2))
        a("s_add_u32 s%d, s%d, s%d" % (sT1, sT1, sT2))
        n = 3 if cfg.map2 == 8 else 6
        for k in range(n):
            a("buffer_load_dword v%d, v10, %s, s%d offen %s" % (100 + k, s(rW2, 4), sT1, cfg.t2pol))
            a("s_add_u32 s%d, s%d, %d" % (sT1, sT1, (64 >> sh) * 4096))
            if cfg.t2gap:
                a.drain_vm()
    if cfg.touch2 == 1 or cfg.refresh:
        sv = cfg.t2pol
        if cfg.refresh:
            cfg.t2pol = ''
        touch_w2()
        cfg.t2pol = sv
    if cfg.late:
        a("s_cmp_ge_u32 s%d, 30" % sJ)
        a("s_cbranch_scc1 L_w7_nl")
        lds_wait(28 if cfg.late == 1 else 0, 4 if cfg.late == 1 else 1, 10, 11, sleep=4)
        a.label("L_w7_nl")
    if cfg.nox:
        for k in range(8):
            a("s_mov_b32 s%d, 0x%x" % (sT2, ST + (32 << cfg.stsh) * k))
            a("buffer_load_dwordx4 %s, v7, %s, s%d offen sc1" % (v(80 + 4 * k, 4), s(rWS, 4), sT2), tag="st%d" % k)
    a("s_mov_b64 exec, s[100:101]")
    for k in range(16):
        a("buffer_load_dwordx4 %s, v5, %s, s96 offen sc1" % (v(16 + 4 * k, 4), s(rWS, 4)), tag="u%d" % k)
        if k < 15:
            a("s_add_u32 s96, s96, %d" % (16 * 10240))
    a("s_mov_b64 exec, -1")
    a("s_cmp_lg_u32 s%d, 0" % sID)
    a("s_cbranch_scc1 L_noE")
    a("s_add_u32 s14, s%d, 0x%x" % (pWS, EW))
    a("s_addc_u32 s15, s%d, 0" % (pWS + 1))
    a("s_mov_b32 s7, s%d" % sTAG)
    a("s_atomic_swap s7, s[14:15], 0")
    a("s_waitcnt lgkmcnt(0)")
    a.label("L_noE")
    if cfg.nox:
        for k in range(8):
            a.wait_vm("st%d" % k)
            a("ds_write_b128 v2, %s offset:%d" % (v(80 + 4 * k, 4), RY + 1024 * k))
        if not cfg.t7:
            lds_arrive(48, 12, 13)
        if cfg.t7:
            a("v_lshlrev_b32 v12, 5, v8")
            a("v_mov_b32 v13, 0x3f80")
            SR, TB_ = 112, 240
            def srd_(k):
                a("ds_read_b128 %s, v12 offset:%d" % (v(SR + 8 * k, 4), RY + 512 * k), tag="s%d" % k)
                a("ds_read_b128 %s, v12 offset:%d" % (v(SR + 8 * k + 4, 4), RY + 512 * k + 16), tag="s%d" % k)
            for k in range(6):
                srd_(k)
            for k in range(16):
                H_, S_, T_ = 16 + 4 * k, SR + 8 * k, TB_ + 8 * (k & 1)
                a.wait_vm("u%d" % k)
                for q in range(4):
                    a("v_lshl_or_b32 v%d, v%d, 16, v13" % (T_ + 2 * q, H_ + q))
                    a("v_and_or_b32 v%d, v%d, s%d, v13" % (T_ + 2 * q + 1, H_ + q, sMASK))
                a.wait_lg("s%d" % k)
                if k + 6 < 16:
                    srd_(k + 6)
                for q in range(8):
                    a("v_dot2_f32_bf16 v%d, v%d, v%d, 0" % (S_ + q, S_ + q, T_ + q))
                if k:
                    for q in range(4):
                        a("v_cvt_pk_bf16_f32 v%d, v%d, v%d" % (H_ - 4 + q, S_ - 8 + 2 * q, S_ - 8 + 2 * q + 1))
            for q in range(4):
                a("v_cvt_pk_bf16_f32 v%d, v%d, v%d" % (76 + q, SR + 120 + 2 * q, SR + 120 + 2 * q + 1))
    if not cfg.sepu:
        a("v_mov_b32 v12, %d" % (CNT + 20))
        a("v_mov_b32 v13, s%d" % sT3)
        a("s_mov_b64 exec, 1")
        a("ds_add_u32 v12, v13")
        a("s_mov_b64 exec, -1")
        lds_wait(20, 3, 12, 13, sleep=2)
    a("s_mov_b64 exec, s[100:101]")
    for k in range(16):
        a.wait_vm("u%d" % k)
        a("ds_write_b128 v4, %s offset:%d" % (v(16 + 4 * k, 4), U_OFF + 256 * k))
    a("s_mov_b64 exec, -1")
    a.drain_lg()
    lds_arrive(24, 12, 13)
    stamp(9)
    if cfg.nox and not cfg.t7:
        a("s_and_b32 s%d, s%d, 1" % (sT3, sJ))
        a("s_sub_u32 s%d, 3, s%d" % (sT3, sT3))
        lds_wait(44, "s%d" % sT3, 10, 11, sleep=2)
    if cfg.helper:
        a("s_setprio %d" % cfg.cprio)
        assert NH <= 6
        a("s_mov_b32 s%d, 0" % sRB)
        a("v_mov_b32 v6, %d" % CNT)
        conv_addr(sRB)
        hseq = []
        for c in range(2):
            rest = list(range(NH))
            while rest:
                hseq.append((c, rest.pop(0)))
                if rest:
                    hseq.append((c, rest.pop()))
        def hregs(ch):
            b = ch & 1
            return 16 + 24 * b, 64 + 96 * b, 112 + 96 * b
        def hreads(ch):
            HA, HK, HU = hregs(ch)
            if ch:
                for r in (vUA, vKA + 2, vKA + 3):
                    a("v_add_u32 v%d, %d, v%d" % (r, S, r))
            for c in range(2):
                for tau in range(NT, 16):
                    o = 192 - 64 * (tau & 3) + 32 * (1 - c)
                    r = HK + 4 * (NH * c + tau - NT)
                    a("ds_read2_b32 %s, v%d offset0:%d offset1:%d" % (v(r, 2), vKA + (tau >> 2), o, o + 1), tag="h%d" % ch)
                    a("ds_read2_b32 %s, v%d offset0:%d offset1:%d" % (v(r + 2, 2), vKA + (tau >> 2), o + 2, o + 3), tag="h%d" % ch)
            for n, (cc, mu) in enumerate(hseq):
                a("ds_read_b128 %s, v%d offset:%d" % (v(HU + 4 * n, 4), vUA, 128 * (1 - cc) + 256 * mu), tag="h%d" % ch)
        hreads(0)
        for ch in range(3):
            HA, HK, HU = hregs(ch)
            a.drain_lg()
            if ch:
                lds_arrive(36, 8, 9)
            if ch == 2:
                a("s_bitcmp1_b32 s%d, 0" % sJ)
                a("s_cbranch_scc1 L_hdone")
            hf_ = a.capture(hreads, ch + 1) if ch < 2 else []
            cnt = 0
            for n, (c, mu) in enumerate(hseq):
                if n % 4 == 0 and cfg.pause:
                    if n:
                        a.wait_lg("pz")
                        a("v_cmp_ne_u32 vcc, v8, v9")
                        a("s_cbranch_vccnz L_pz%d" % (100 + 20 * ch + n))
                        a.label("L_np%d" % (100 + 20 * ch + n))
                        hstubs.append(100 + 20 * ch + n)
                    if n + 4 < len(hseq):
                        a("ds_read2_b32 v[8:9], v6 offset0:0 offset1:7", tag="pz")
                for tau in range(NT, 16 - mu):
                    acc = v(HA + 4 * (tau + mu - NT), 4)
                    a("v_mfma_f32_16x16x32_bf16 %s, %s, %s, %s" % (acc, v(HK + 4 * (NH * c + tau - NT), 4), v(HU + 4 * n, 4), acc if n else "0"))
                    if hf_:
                        a.play(hf_.pop(0))
            for it in hf_:
                a.play(it)
            for q in range(NH):
                a("ds_write_b128 v2, %s offset:%d" % (v(HA + 4 * q, 4), ch * S + 1024 * q))
        a.drain_lg()
        lds_arrive(36, 8, 9)
        a.label("L_hdone")
        a.drain_lg()
        a("s_setprio %d" % cfg.uprio)
        stamp(8)
    if cfg.ywait:
        a("s_cmp_ge_u32 s%d, 30" % sJ)
        a("s_cbranch_scc1 L_yw")
        lds_wait(28, 4, 10, 11, sleep=8)
        a.label("L_yw")
    if cfg.ssig:
        a("s_and_b32 s%d, s%d, 63" % (sT1, sID))
        a("s_lshl_b32 s%d, s%d, 7" % (sT1, sT1))
    else:
        a("s_lshl_b32 s%d, s%d, 7" % (sT1, sID))
    a("s_add_u32 s%d, s%d, 0x%x" % (sT1, sT1, YC))
    if not cfg.noya:
        spoll(sT1, cfg.ysleep, target=32 if (cfg.ywg and cfg.ssig) else 80)
    stamp(6)
    a("v_lshrrev_b32 v8, 3, v0")
    a("v_lshlrev_b32 v8, 12, v8")
    a("v_and_b32 v9, 7, v0")
    a("v_lshl_add_u32 v8, v9, 4, v8")
    a("s_mul_i32 s%d, s%d, %d" % (sT0, sDT2, 80 * 4096))
    a("s_lshl_b32 s%d, s%d, 7" % (sT1, sST))
    a("s_add_u32 s%d, s%d, s%d" % (sT0, sT0, sT1))
    a("s_add_u32 s%d, s%d, 0x%x" % (sT0, sT0, YA))
    for k in range(10):
        a("buffer_load_dwordx4 %s, v8, %s, s%d offen sc1" % (v(16 + 4 * k, 4), s(rWS, 4), sT0), tag="y%d" % k)
        if k < 9:
            a("s_add_u32 s%d, s%d, %d" % (sT0, sT0, 8 * 4096))
    for k in range(10):
        a.wait_vm("y%d" % k)
        a("ds_write_b128 v2, %s offset:%d" % (v(16 + 4 * k, 4), RY + 1024 * k))
    stamp(7)
    finish()
    emit_stubs(hstubs)
    a.label("L_exit")
    a("s_endpgm")
    a.label("L_code_end")
    return a

HEADER = open("cdna_kernels/%s.s.ref" % NAME).read().split("; Override launch")[0]

DOC = """;
;            MFMA-fragment-blocked layout [token/8][channel][8] plus the per-token (mean, std) of the
"""

def full(cfg):
    a = gen(cfg)
    out = HEADER
    out += "; @launch grid=(256,1,1) block=(512,1,1) lds=%d\n" % LDS_BYTES
    out += DOC
    out += '.amdgcn_target "amdgcn-amd-amdhsa--gfx950"\n.text\n.globl %s_kernel\n.p2align 8\n.type %s_kernel,@function\n' % (NAME, NAME)
    out += a.text()
    out += """.section .rodata,"a"
.p2align 6
.amdhsa_kernel %s_kernel
  .amdhsa_next_free_vgpr 256
  .amdhsa_next_free_sgpr 102
  .amdhsa_accum_offset 256
  .amdhsa_group_segment_fixed_size 0
  .amdhsa_kernarg_size 136
  .amdhsa_user_sgpr_count 2
  .amdhsa_user_sgpr_kernarg_segment_ptr 1
  .amdhsa_system_sgpr_workgroup_id_x 1
  .amdhsa_float_denorm_mode_32 3
.end_amdhsa_kernel
""" % NAME
    return out, a

if __name__ == "__main__":
    cfg = Cfg()
    outp = "cdna_kernels/%s.s" % NAME
    for arg in sys.argv[1:]:
        k, val = arg.split("=")
        if k == "out":
            outp = val
        else:
            cur = getattr(cfg, k)
            setattr(cfg, k, val if isinstance(cur, str) else (bool(int(val)) if isinstance(cur, bool) else int(val)))
    txt, a = full(cfg)
    open(outp, "w").write(txt)
    print("wrote", outp, "instr", a.ninst, "pad states", a.npad)
```

```python
import sys, struct, math
from asmlib import Asm, v, s

NAME = "parallel_sum__ssm_conv_s4__mixer_token_mlp__prompt"

def f32(x):
    return "0x%08x" % struct.unpack("<I", struct.pack("<f", x))[0]

class Cfg:
    ts = False
    spin = 32768
    depth1 = 2
    depth2 = 2
    out_pol = ""
    stop = 99
    xpol = ''
    ppol = ''
    tpol = ''
    t2pol = ''
    map8 = 1
    map1 = 8
    map2 = 8
    t2gap = 0
    late = 0
    fsh = 7
    touch1 = 0
    xtl = 1
    kprio = 1
    pre1 = 0
    touch2 = 0
    tdep = 1
    warm = 0
    kf0 = 8
    fastp = 1
    xprio = 3
    kv3 = 1
    lateb2 = 2
    zc = 0
    dupc = 1
    p4s = 0
    sepu = 1
    kg2 = 3
    tprio = 3
    t7 = 0
    keepk = 0
    c16k = 9
    nox = 1
    stsh = 5
    exactln = 0
    xnlate = 0
    xnat = 2
    NT = 10
    helper = 0
    skip2 = 0
    skip1 = 0
    noya = 0
    fake = 0
    ysync = 0
    ng1 = 10
    P1 = 15
    pK = 0
    pP = 3
    pG = 2
    pW = 2
    ywg = 1
    stouch = 0
    ywait = 1
    ssig = 1
    pbal = 0
    pth = 3
    ln4 = 1
    w7mb = 1
    e0at = 55
    nr1 = 12
    nr2 = 16
    noxn = 0
    hold = 0
    hx = -1
    fillk = 1
    noload = 0
    xm1 = 2
    fm1 = 0
    xm2 = 3
    fm2 = 0
    nokw = 0
    nopk = 0
    cprio = 0
    eprio = 3
    lateb = 0
    nagg = 8
    wrot1 = 1
    wrot2 = 1
    prea = 0
    preb = 1
    prec = 1
    swz = 0
    fine = 1
    c8k = 13
    uprio = 3
    refresh = 0
    e1 = 2
    e0 = 2
    nt1 = 0
    nt2 = 0
    pause = 1
    psleep = 0
    asleep = 0
    badmap = False
    dbg = False
    dbgw = 8
    nomfma = False
    apol = 'sc1'
    noadv = False
    noconv = False
    rotm1 = 0
    rotk1 = 0
    rotm2 = 0
    rotk2 = 0
    nsh1 = 1
    sub1 = 2
    nsh2 = 1
    sub2 = 2
    rot3 = 0
    ysleep = 2

HB, XB, GB, YA = 0, 0x280000, 0x500000, 0x700000
FL = 0xA00000
HF, XF, GF, YF, EW = FL, FL + 0x10000, FL + 0x20000, FL + 0x40000, FL + 0x60000
XF2 = FL + 0x20000
ST = FL + 0x40000
MB, YC = FL + 0x80000, FL + 0x10000
TSO = 0xB00000
WS_BYTES = 0xC00000
S = 12576
RY = 3 * S
CNT = RY + 10240
STA = CNT + 64
BIA = CNT + 96
WOFF = 49152
WSZ = 28672
LDS_BYTES = 163840
KB_OFF, ZP_OFF, U_OFF = 4160, 8256, 8480
TB_OFF = U_OFF + 16
sID, sWV, sX, sJ, sTAG = 2, 3, 4, 5, 6
pX, pARE, pAIM, pBRE, pBIM, pCRE, pCIM, pLDT, pDSK, pBX, pW1, pB1, pW2, pB2, pOUT, pDBG, pWS = [16 + 2 * i for i in range(17)]
rWS, rX, rW1, rW2, rOUT, rCODE = 52, 56, 60, 64, 68, 72
rB = rCODE
sDT, sFT, sDT2, sST, sWB = 76, 77, 78, 79, 80
sOW, sOWB, sOWE = 81, 82, 83
sOA, sOAB, sOAE = 84, 85, 86
sD = [87, 88, 89, 90]
sT0, sT1, sT2, sT3 = 8, 9, 10, 11
sCNT = 12
sORD1, sORD2 = (50, 51), (91, 92)
sPOS, sCH, sRB = 93, 94, 95
sDRY = 99
sMASK = 13
vL, vTS = 0, 15

def gen(cfg):
    global sDRY
    sDRY = 95
    a = Asm()
    nts = [0]
    def stamp(idx):
        if cfg.hx == idx and cfg.hold and stamp.gemm:
            a("s_memrealtime s[100:101]")
            a("s_waitcnt lgkmcnt(0)"); a.lg = []
            a("s_sub_u32 s99, s100, s98")
        if not cfg.ts:
            return
        a("s_memrealtime s[98:99]")
        a("s_waitcnt lgkmcnt(0)"); a.lg = []
        a("v_writelane_b32 v%d, s98, %d" % (vTS, idx))
        if idx in (0, 4, 5, 9, 10, 11):
            a("s_memtime s[98:99]")
            a("s_waitcnt lgkmcnt(0)")
            a("v_writelane_b32 v%d, s98, %d" % (vTS, 48 + idx))

    stamp.gemm = True
    def finish():
        if cfg.ts:
            a("s_lshl_b32 s%d, s%d, 3" % (sT0, sID))
            a("s_add_u32 s%d, s%d, s%d" % (sT0, sT0, sWV))
            a("s_lshl_b32 s%d, s%d, 8" % (sT0, sT0))
            a("s_add_u32 s%d, s%d, 0x%x" % (sT0, sT0, TSO))
            a("v_lshlrev_b32 v1, 2, v%d" % vL)
            a("buffer_store_dword v%d, v1, %s, s%d offen" % (vTS, s(rWS, 4), sT0))
            if cfg.dbg:
                n = nts[0]; nts[0] += 1
                a("s_lshl_b32 s%d, s%d, 3" % (sT0, sID))
                a("s_add_u32 s%d, s%d, s%d" % (sT0, sT0, sWV))
                a("s_cmp_lg_u32 s%d, %d" % (sT0, cfg.dbgw))
                a("s_cbranch_scc1 L_nodbg%d" % n)
                a("v_readlane_b32 s%d, v%d, 0" % (sT0, vTS))
                a("v_subrev_u32 v2, s%d, v%d" % (sT0, vTS))
                a("s_mov_b64 exec, 0xffff")
                a("global_store_dword v1, v2, %s" % s(pDBG, 2))
                a.label("L_nodbg%d" % n)
        a("s_waitcnt vmcnt(0) lgkmcnt(0)")
        a("s_endpgm")

    def srd(r, p, nbytes):
        a("s_mov_b32 s%d, s%d" % (r, p))
        a("s_and_b32 s%d, s%d, 0xffff" % (r + 1, p + 1))
        a("s_mov_b32 s%d, 0x%x" % (r + 2, nbytes))
        a("s_mov_b32 s%d, 0x20000" % (r + 3))

    npoll = [0]
    def poll(voffs, soffs, vdata, sleep=4, lanes=64):
        n = npoll[0]; npoll[0] += 1
        a("s_mov_b32 s%d, %d" % (sCNT, cfg.spin))
        if lanes < 64:
            a("s_mov_b64 exec, %d" % ((1 << lanes) - 1))
        a.label("L_poll%d" % n)
        for k, (vo, so) in enumerate(zip(voffs, soffs)):
            a("buffer_load_dword v%d, v%d, %s, s%d offen sc1" % (vdata + k, vo, s(rWS, 4), so))
        a.drain_vm()
        a("v_cmp_ne_u32 vcc, s%d, v%d" % (sTAG, vdata))
        for k in range(1, len(voffs)):
            a("v_cmp_ne_u32 s[14:15], s%d, v%d" % (sTAG, vdata + k))
            a("s_or_b64 vcc, vcc, s[14:15]")
        a("s_cmp_eq_u64 vcc, 0")
        a("s_cbranch_scc1 L_pollok%d" % n)
        a("s_sub_u32 s%d, s%d, 1" % (sCNT, sCNT))
        a("s_cmp_eq_u32 s%d, 0" % sCNT)
        a("s_cbranch_scc1 L_pollok%d" % n)
        a("s_mov_b64 exec, vcc")
        if sleep:
            a("s_sleep %d" % sleep)
        a("s_branch L_poll%d" % n)
        a.label("L_pollok%d" % n)
        a("s_mov_b64 exec, -1")

    def spoll_pre(soff):
        a("s_add_u32 s14, s%d, s%d" % (pWS, soff))
        a("s_addc_u32 s15, s%d, 0" % (pWS + 1))
        a("s_load_dword s7, s[14:15], 0 glc")
    def spoll(soff, sleep=1, target=None, pre=False):
        n = npoll[0]; npoll[0] += 1
        if not pre:
            a("s_add_u32 s14, s%d, s%d" % (pWS, soff))
            a("s_addc_u32 s15, s%d, 0" % (pWS + 1))
        a("s_mov_b32 s%d, %d" % (sCNT, cfg.spin * 2))
        if pre:
            a("s_branch L_sq%d" % n)
        a.label("L_sp%d" % n)
        a("s_load_dword s7, s[14:15], 0 glc")
        a.label("L_sq%d" % n)
        a("s_waitcnt lgkmcnt(0)"); a.lg = []
        if target is None:
            a("s_cmp_eq_u32 s7, s%d" % sTAG)
        else:
            a("s_cmp_eq_u32 s7, %d" % target)
        a("s_cbranch_scc1 L_spok%d" % n)
        if sleep:
            a("s_sleep %d" % sleep)
        a("s_sub_u32 s%d, s%d, 1" % (sCNT, sCNT))
        a("s_cmp_lg_u32 s%d, 0" % sCNT)
        a("s_cbranch_scc1 L_sp%d" % n)
        a.label("L_spok%d" % n)

    def group_ids(vdst, vtmp, sg, shift):
        if cfg.map2 == 8:
            a("v_and_b32 v%d, 24, v0" % vdst)
            a("v_lshlrev_b32 v%d, 3, v%d" % (vdst, vdst))
            a("v_and_b32 v%d, 7, v0" % vtmp)
            a("v_add_u32 v%d, v%d, v%d" % (vdst, vdst, vtmp))
            a("s_lshl_b32 s%d, s%d, 3" % (sT0, sg))
        else:
            a("v_and_b32 v%d, 28, v0" % vdst)
            a("v_lshlrev_b32 v%d, 3, v%d" % (vdst, vdst))
            a("v_and_b32 v%d, 3, v0" % vtmp)
            a("v_lshl_add_u32 v%d, v%d, 1, v%d" % (vdst, vtmp, vdst))
            a("s_and_b32 s%d, s%d, 3" % (sT0, sg))
            a("s_lshl_b32 s%d, s%d, 3" % (sT0, sT0))
            a("s_lshr_b32 s14, s%d, 2" % sg)
            a("s_add_u32 s%d, s%d, s14" % (sT0, sT0))
        a("v_add_lshl_u32 v%d, v%d, s%d, %d" % (vdst, vdst, sT0, shift))

    def group_add(voff, soff, vtmp):
        a("v_mov_b32 v%d, 1" % vtmp)
        a("s_mov_b64 exec, 0xffffffff")
        a("buffer_atomic_add v%d, v%d, %s, s%d offen sc1" % (vtmp, voff, s(rWS, 4), soff), tag="flag")
        a("s_mov_b64 exec, -1")

    def sig8(soff, stride):
        a("s_add_u32 s14, s%d, s%d" % (pWS, soff))
        a("s_addc_u32 s15, s%d, 0" % (pWS + 1))
        a("s_mov_b32 s7, 1")
        for x in range(8):
            a("s_atomic_add s7, s[14:15], 0x%x" % (x * stride))

    ng = [0]
    def guard(fn, *args):
        if not cfg.warm:
            fn(*args); return
        n = ng[0]; ng[0] += 1
        a("s_cmp_lg_u32 s%d, 0" % sDRY)
        a("s_cbranch_scc1 L_gd%d" % n)
        fn(*args)
        a.label("L_gd%d" % n)
    def dry_exit(label):
        if cfg.warm:
            a("s_cmp_lg_u32 s%d, 0" % sDRY)
            a("s_cbranch_scc1 %s" % label)

    def flag_store(soff, vtmp0, vtmp1):
        a("v_mov_b32 v%d, s%d" % (vtmp0, sTAG))
        a("v_mov_b32 v%d, 0" % vtmp1)
        a("s_mov_b64 exec, 1")
        a("buffer_store_dword v%d, v%d, %s, s%d offen sc1" % (vtmp0, vtmp1, s(rWS, 4), soff), tag="flag")
        a("s_mov_b64 exec, -1")

    nl = [0]
    def lds_arrive(off, vt0, vt1):
        a("v_mov_b32 v%d, %d" % (vt0, CNT + off))
        a("v_mov_b32 v%d, 1" % vt1)
        a("s_mov_b64 exec, 1")
        a("ds_add_u32 v%d, v%d" % (vt0, vt1))
        a("s_mov_b64 exec, -1")

    def lds_wait(off, target, vt0, vt1, sleep=0):
        n = nl[0]; nl[0] += 1
        a("v_mov_b32 v%d, %d" % (vt0, CNT + off))
        a("s_mov_b32 s%d, 0x%x" % (sCNT, cfg.spin * 64))
        a.label("L_lw%d" % n)
        a("ds_read_b32 v%d, v%d" % (vt1, vt0))
        a.drain_lg()
        a("v_readfirstlane_b32 s%d, v%d" % (sT0, vt1))
        a("s_cmp_ge_u32 s%d, %s" % (sT0, target))
        a("s_cbranch_scc1 L_lwok%d" % n)
        if sleep:
            a("s_sleep %d" % sleep)
        a("s_sub_u32 s%d, s%d, 1" % (sCNT, sCNT))
        a("s_cmp_lg_u32 s%d, 0" % sCNT)
        a("s_cbranch_scc1 L_lw%d" % n)
        a.label("L_lwok%d" % n)

    a.label(NAME + "_kernel")
    a("s_cmp_ge_u32 s2, 256")
    a("s_cbranch_scc1 L_exit")
    if cfg.hold:
        a("s_memrealtime s[98:99]")
    a("s_load_dwordx16 s[16:31], s[0:1], 0")
    a("s_load_dwordx16 s[32:47], s[0:1], 64")
    a("s_load_dwordx2 s[48:49], s[0:1], 128")
    a("s_getpc_b64 s[%d:%d]" % (rCODE, rCODE + 1))
    a.label("L_pc")
    a("v_lshrrev_b32 v1, 6, v0")
    a("v_and_b32 v0, 63, v0")
    if cfg.ts:
        a("v_mov_b32 v%d, 0" % vTS)
    a("v_readfirstlane_b32 s%d, v1" % sWV)
    if cfg.badmap:
        a("s_lshr_b32 s%d, s2, 5" % sX)
        a("s_and_b32 s%d, s2, 31" % sJ)
    else:
        a("s_and_b32 s%d, s2, 7" % sX)
        a("s_lshr_b32 s%d, s2, 3" % sJ)
    a("s_mov_b32 s%d, 0xffff0000" % sMASK)
    a("s_and_b32 s%d, s%d, 0xffff" % (rCODE + 1, rCODE + 1))
    a("s_mov_b32 s%d, L_code_end-L_pc" % (rCODE + 2))
    a("s_mov_b32 s%d, 0x20000" % (rCODE + 3))
    a("s_cmp_lg_u32 s%d, 7" % sWV)
    a("s_cbranch_scc1 L_nopf")
    a("s_lshl_b32 s%d, s%d, 7" % (sT0, sJ))
    a("v_lshlrev_b32 v1, 12, v0")
    a("buffer_load_dword v14, v1, %s, s%d offen" % (s(rCODE, 4), sT0))
    a("v_mov_b32 v21, %d" % CNT)
    for k in range(4):
        a("v_mov_b32 v%d, 0" % (24 + k))
    a("ds_write_b128 v21, v[24:27]")
    a("ds_write_b128 v21, v[24:27] offset:16")
    a("ds_write_b128 v21, v[24:27] offset:32")
    a("ds_write_b128 v21, v[24:27] offset:48")
    a.label("L_nopf")
    a.vm = []; a.lg = []
    a("v_lshlrev_b32 v2, 4, v0")
    a("v_lshlrev_b32 v3, 2, v0")
    a("v_mov_b32 v7, 0")
    a("v_mov_b32 v8, 0")
    nline = 3 if cfg.map1 == 8 else 6
    def tile_math():
        a("s_and_b32 s%d, s%d, 1" % (sT0, sX))
        a("s_lshr_b32 s%d, s%d, 1" % (sT1, sX))
        a("v_mul_u32_u24 v62, 3072, v0")
        a("s_mul_i32 s96, s%d, %d" % (sJ, 64 * 3072))
        if cfg.map1 == 8:
            a("s_mul_i32 s%d, s%d, 26" % (sT2, sJ))
            a("s_lshr_b32 s%d, s%d, 8" % (sT2, sT2))
            a("s_mul_i32 s%d, s%d, 10" % (sT3, sT2))
            a("s_sub_u32 s%d, s%d, s%d" % (sT3, sJ, sT3))
            a("s_mov_b32 s%d, s%d" % (sDT, sT3))
            a("s_mul_i32 s%d, s%d, 3" % (sFT, sX))
        else:
            a("s_mul_i32 s%d, s%d, 13" % (sT2, sJ))
            a("s_lshr_b32 s%d, s%d, 6" % (sT2, sT2))
            a("s_mul_i32 s%d, s%d, 5" % (sT3, sT2))
            a("s_sub_u32 s%d, s%d, s%d" % (sT3, sJ, sT3))
            a("s_mul_i32 s%d, s%d, 5" % (sDT, sT0))
            a("s_add_u32 s%d, s%d, s%d" % (sDT, sDT, sT3))
            a("s_mul_i32 s%d, s%d, 6" % (sFT, sT1))
        a("s_add_u32 s97, s%d, s%d" % (sFT, sWV))
        a("s_lshl_b32 s97, s97, 7")
        a("s_add_u32 s96, s96, s97")
        a("s_cmp_ge_u32 s%d, 3" % sWV)
        a("s_cselect_b32 s96, 0x7f000000, s96")
        a("s_add_u32 s%d, s%d, s%d" % (sFT, sFT, sT2))
        def order(n, nsh, sub, r):
            if nsh <= 1:
                return list(range(n))
            o = []
            g = nsh * sub
            for b in range(0, n, g):
                blk = list(range(b, min(b + g, n)))
                k = (r * sub) % len(blk) if len(blk) == g else (r * len(blk) // nsh) % len(blk)
                o += blk[k:] + blk[:k]
            return o
        def pack(o):
            o = o + [0] * (16 - len(o))
            return sum(x << (4 * i) for i, x in enumerate(o[:8])), sum(x << (4 * i) for i, x in enumerate(o[8:]))
        def sel_list(dst, sidx, orders):
            for r, o in enumerate(orders):
                lo, hi = pack(list(o))
                if r == 0:
                    a("s_mov_b32 s%d, 0x%x" % (dst[0], lo))
                    a("s_mov_b32 s%d, 0x%x" % (dst[1], hi))
                elif o != orders[0]:
                    a("s_cmp_eq_u32 s%d, %d" % (sidx, r))
                    a("s_cselect_b32 s%d, 0x%x, s%d" % (dst[0], lo, dst[0]))
                    a("s_cselect_b32 s%d, 0x%x, s%d" % (dst[1], hi, dst[1]))
        def sel_order(dst, sidx, nidx, n, nsh, sub):
            sel_list(dst, sidx, [order(n, nsh, sub, r % max(nsh, 1)) for r in range(nidx)])
        def rotl(n, k):
            return [(i + k) % n for i in range(n)]
        if cfg.wrot1:
            nd = 30 // nline
            if cfg.ng1 >= nd:
                a("s_mul_i32 s97, s%d, %d" % (sT3, -(-16 * 256 // nd)))
                a("s_lshr_b32 s97, s97, 8")
            else:
                tab = sum((((r % cfg.ng1) * 16) // cfg.ng1) << (4 * r) for r in range(nd))
                a("s_mov_b32 s100, 0x%x" % (tab & 0xffffffff))
                a("s_mov_b32 s101, 0x%x" % (tab >> 32))
                a("s_lshl_b32 s97, s%d, 2" % sT3)
                a("s_lshr_b64 s[100:101], s[100:101], s97")
                a("s_mov_b32 s97, s100")
            a("s_mul_i32 s14, s%d, %d" % (sX, cfg.xm1))
            a("s_add_u32 s97, s97, s14")
            a("s_mul_i32 s14, s%d, %d" % (sT2, cfg.fm1))
            a("s_add_u32 s97, s97, s14")
            a("s_and_b32 s97, s97, 15")
            if cfg.nsh1 > 1:
                sel_order(sORD1, sT2, nline, 16, cfg.nsh1, cfg.sub1)
                a("s_mul_i32 s97, s97, 0x11111111")
                for r in sORD1:
                    a("s_xor_b32 s100, s%d, s97" % r)
                    a("s_and_b32 s100, s100, 0x88888888")
                    a("s_and_b32 s%d, s%d, 0x77777777" % (r, r))
                    a("s_and_b32 s101, s97, 0x77777777")
                    a("s_add_u32 s%d, s%d, s101" % (r, r))
                    a("s_xor_b32 s%d, s%d, s100" % (r, r))
            else:
                a("s_lshl_b32 s97, s97, 2")
                a("s_mov_b32 s100, 0x76543210")
                a("s_mov_b32 s101, 0xfedcba98")
                a("s_lshr_b64 s[%d:%d], s[100:101], s97" % sORD1)
                a("s_sub_u32 s97, 64, s97")
                a("s_lshl_b64 s[100:101], s[100:101], s97")
                a("s_or_b64 s[%d:%d], s[%d:%d], s[100:101]" % (sORD1 + sORD1))
        else:
            sel_order(sORD1, sT2, nline, 16, cfg.nsh1, cfg.sub1)
        if cfg.map2 == 8:
            a("s_and_b32 s%d, s%d, 7" % (sT2, sJ))
            a("s_lshr_b32 s%d, s%d, 3" % (sT3, sJ))
            a("s_mov_b32 s%d, s%d" % (sDT2, sT2))
            a("s_lshl_b32 s%d, s%d, 2" % (sST, sX))
        else:
            a("s_and_b32 s%d, s%d, 3" % (sT2, sJ))
            a("s_lshr_b32 s%d, s%d, 2" % (sT3, sJ))
            a("s_lshl_b32 s%d, s%d, 2" % (sDT2, sT0))
            a("s_add_u32 s%d, s%d, s%d" % (sDT2, sDT2, sT2))
            a("s_lshl_b32 s%d, s%d, 3" % (sST, sT1))
        a("s_add_u32 s%d, s%d, s%d" % (sST, sST, sT3))
        if cfg.wrot2:
            nd = 8 if cfg.map2 == 8 else 4
            a("s_mul_i32 s97, s%d, %d" % (sT2, 24 // nd))
            a("s_mul_i32 s14, s%d, %d" % (sX, cfg.xm2))
            a("s_add_u32 s97, s97, s14")
            a("s_mul_i32 s14, s%d, %d" % (sT3, cfg.fm2))
            a("s_add_u32 s97, s97, s14")
            a("s_lshr_b32 s97, s97, 1")
            a("s_mul_i32 s14, s97, 43")
            a("s_lshr_b32 s14, s14, 9")
            a("s_mul_i32 s14, s14, 12")
            a("s_sub_u32 s97, s97, s14")
            sel_list(sORD2, 97, [rotl(12, r) for r in range(12)])
        else:
            sel_order(sORD2, sT3, 4 if cfg.map2 == 8 else 8, 12, cfg.nsh2, cfg.sub2)
    def chan_math():
        a("s_and_b32 s%d, s%d, 3" % (sT0, sWV))
        a("s_cmp_eq_u32 s%d, 7" % sWV)
        a("s_cselect_b32 s%d, 0, s%d" % (sT0, sT0))
        a("s_mul_i32 s%d, s%d, %d" % (sRB, sT0, S))
        a("s_lshr_b32 s%d, s%d, 1" % (sT1, sJ))
        a("s_mul_i32 s%d, s%d, 5" % (sT1, sT1))
        a("s_and_b32 s%d, s%d, 1" % (sT2, sJ))
        a("s_mul_i32 s%d, s%d, 3" % (sT2, sT2))
        a("s_add_u32 s%d, s%d, s%d" % (sT1, sT1, sT2))
        a("s_add_u32 s%d, s%d, s%d" % (sT1, sT1, sT0))
        a("s_min_u32 s%d, s%d, 79" % (sT1, sT1))
        a("s_and_b32 s%d, s%d, 35" % (sT2, sT1))
        a("s_and_b32 s%d, s%d, 12" % (sT3, sT1))
        a("s_lshl_b32 s%d, s%d, 1" % (sT3, sT3))
        a("s_or_b32 s%d, s%d, s%d" % (sT2, sT2, sT3))
        a("s_and_b32 s%d, s%d, 16" % (sT3, sT1))
        a("s_lshr_b32 s%d, s%d, 2" % (sT3, sT3))
        a("s_or_b32 s%d, s%d, s%d" % (sT2, sT2, sT3))
        a("s_cmp_ge_u32 s%d, 64" % sT1)
        a("s_cselect_b32 s%d, s%d, s%d" % (sT2, sT1, sT2))
        a("s_mul_i32 s%d, s%d, 80" % (sT3, sX))
        a("s_add_u32 s%d, s%d, s%d" % (sPOS, sT3, sT1))
        a("s_add_u32 s%d, s%d, s%d" % (sCH, sT3, sT2))
        a("s_mul_i32 s%d, s%d, 384" % (sT0, sCH))
        a("v_add_u32 v10, s%d, v3" % sT0)
        a("v_lshlrev_b32 v11, 1, v0")
        a("v_add_u32 v11, s%d, v11" % sT0)
        a("s_lshl_b32 s%d, s%d, 1" % (sT0, sCH))
        a("v_mov_b32 v12, s%d" % sT0)
    if cfg.ln4:
        chan_math()
    a("s_lshl_b32 s%d, s2, %d" % (sT0, 2 if cfg.ln4 else 3))
    a("s_add_u32 s%d, s%d, s%d" % (sT0, sT0, sWV))
    a("s_mul_i32 s%d, s%d, %d" % (sT0, sT0, 2560 if cfg.ln4 else 1280))
    for r, nb in ((rX, 2621440), (rWS, WS_BYTES), (rW1, 2048 * 3072), (rW2, 1536 * 4096), (rOUT, 2621440)):
        a("s_mov_b32 s%d, 0x%x" % (r + 2, nb))
        a("s_mov_b32 s%d, 0x20000" % (r + 3))
    def srd_bases(lst):
        for r, p in lst:
            a("s_mov_b32 s%d, s%d" % (r, p))
            a("s_and_b32 s%d, s%d, 0xffff" % (r + 1, p + 1))
    def eload():
        a("s_add_u32 s14, s%d, 0x%x" % (pWS, EW))
        a("s_addc_u32 s15, s%d, 0" % (pWS + 1))
        a("s_load_dword s7, s[14:15], 0")
    def stamp0():
        stamp(0)
        if cfg.ts:
            a("s_getreg_b32 s98, hwreg(HW_REG_XCC_ID)")
            a("v_writelane_b32 v%d, s98, 40" % vTS)
            a("s_getreg_b32 s98, hwreg(HW_REG_HW_ID)")
            a("v_writelane_b32 v%d, s98, 41" % vTS)
    SB, SS = WOFF + 16384, WSZ
    a("s_mul_i32 s%d, s%d, %d" % (sT2, sWV, 1408 if cfg.ln4 else 704))
    a("s_add_u32 s%d, s%d, %d" % (sT2, sT2, SB))
    a("v_add_u32 v61, %d, v2" % (SS - 640))
    a("v_cmp_gt_u32 vcc, 40, v0")
    a("v_cndmask_b32 v60, v61, v2, vcc")
    a("v_add_u32 v60, s%d, v60" % sT2)
    a("s_add_u32 s%d, s%d, %d" % (sT2, sT2, SS + 384))
    a("v_add_u32 v61, s%d, v3" % sT2)
    if cfg.nox:
        assert not cfg.xnlate
        a("s_lshl_b32 s%d, s%d, %d" % (sT2, sWV, 3 if cfg.ln4 else 2))
        a("s_add_u32 s%d, s%d, %d" % (sT2, sT2, STA))
        a("v_mov_b32 v59, s%d" % sT2)
    vPA = [4, 5, 6, 7, 8]
    PRM0, PRM1, vLDT, vDSK = 84, 90, 96, 97
    def param_loads():
        for k, p in enumerate([pARE, pAIM, pBRE, pBIM, pCRE, pCIM]):
            a("global_load_dword v%d, v10, %s %s" % (PRM0 + k, s(p, 2), cfg.ppol), tag="p")
            a("global_load_ushort v%d, v11, %s offset:256 %s" % (PRM1 + k, s(p, 2), cfg.ppol), tag="p")
        a("global_load_ushort v%d, v12, %s" % (vLDT, s(pLDT, 2)), tag="p")
        a("global_load_ushort v%d, v12, %s" % (vDSK, s(pDSK, 2)), tag="p")
    def x_loads():
        srd_bases([(rX, pX)])
        a("buffer_load_dwordx4 v[16:19], v2, %s, s%d offen %s" % (s(rX, 4), sT0, cfg.xpol), tag="x")
        a("buffer_load_dword v20, v3, %s, s%d offen offset:1024 %s" % (s(rX, 4), sT0, cfg.xpol), tag="x")
        if cfg.ln4:
            a("buffer_load_dwordx4 v[64:67], v2, %s, s%d offen offset:1280 %s" % (s(rX, 4), sT0, cfg.xpol), tag="x")
            a("buffer_load_dword v68, v3, %s, s%d offen offset:2304 %s" % (s(rX, 4), sT0, cfg.xpol), tag="x")
    def common_tail():
        stamp0()
        eload()
        srd_bases([(rWS, pWS), (rW1, pW1), (rW2, pW2), (rOUT, pOUT)])
    if cfg.ln4:
        a("s_cmp_ge_u32 s%d, 4" % sWV)
        a("s_waitcnt lgkmcnt(0)")
        a("s_cbranch_scc1 L_nox")
        x_loads()
        vm_x = list(a.vm)
        a.label("L_nox")
        a("s_cmp_lt_u32 s%d, 4" % sWV)
        if not cfg.lateb2:
            a("s_barrier")
        a("s_cbranch_scc1 L_gemm_pre")
        a.vm = []
        a("s_cmp_eq_u32 s%d, 7" % sWV)
        a("s_cbranch_scc1 L_w7_pre")
        param_loads()
        aux_vm = list(a.vm)
        stamp0()
        srd_bases([(rWS, pWS)])
        if cfg.lateb2 == 2:
            a("s_barrier")
        a("s_branch L_aux_main")
        a.label("L_w7_pre")
        a.vm = []
        common_tail()
    else:
        a("s_waitcnt lgkmcnt(0)")
        if cfg.hold:
            a("s_mov_b32 s99, 0")
        x_loads()
        common_tail()
        vm_common = list(a.vm)
        a("s_cmp_lt_u32 s%d, 4" % sWV)
        a("s_cbranch_scc1 L_gemm_pre")
        chan_math()
        a("s_cmp_eq_u32 s%d, 7" % sWV)
        a("s_cbranch_scc1 L_w7_pre")
        param_loads()
        a.wait_vm("x")
        aux_vm = list(a.vm)
        a("s_branch L_ln")
        a.label("L_w7_pre")
        a.vm = list(vm_common)
    a("v_lshrrev_b32 v10, 4, v0")
    a("v_and_b32 v11, 3, v0")
    a("v_bfe_u32 v12, v0, 2, 2")
    a("s_movk_i32 s%d, 704" % sT0)
    a("v_mul_lo_u32 v12, v12, s%d" % sT0)
    a("v_add_u32 v12, %d, v12" % SB)
    for q in range(5):
        a("v_add_u32 v21, %d, v10" % (4 * q))
        a("v_mul_u32_u24 v22, 13, v21")
        a("v_lshrrev_b32 v22, 6, v22")
        a("v_mul_u32_u24 v23, 5, v22")
        a("v_sub_u32 v21, v21, v23")
        a("v_lshrrev_b32 v23, 1, v21")
        a("v_lshlrev_b32 v23, 5, v23")
        a("v_and_b32 v24, 1, v21")
        a("v_lshl_add_u32 v23, v24, 2, v23")
        a("v_lshlrev_b32 v24, 3, v11")
        a("v_lshlrev_b32 v25, 2, v11")
        a("v_cmp_eq_u32 vcc, 4, v21")
        a("v_cndmask_b32 v24, v24, v25, vcc")
        a("v_add_u32 v23, v23, v24")
        a("v_mul_u32_u24 v22, 80, v22")
        a("v_add_u32 v23, v23, v22")
        a("v_lshl_add_u32 v%d, v23, 1, v12" % vPA[q])
    if cfg.ln4:
        a("s_setprio 3")
        if cfg.lateb2:
            a("s_barrier")
        lds_wait(8, 4, 12, 13)
        a("s_add_u32 s%d, s7, 0x9E3779B9" % sTAG)
        a("s_branch L_pub")
        a.label("L_gemm_pre")
        a.vm = list(vm_x)
        srd_bases([(rX, pX)])
        common_tail()
    else:
        a.wait_vm("x")
        a("s_branch L_ln")
        a.label("L_gemm_pre")
        a.vm = list(vm_common)
    tile_math()

    vTR = [2, 3, 4, 5]
    vFO, vDO, vPO, vPD = 6, 7, 8, 9
    ACC1, STG1, WREG1 = 16, 80, 128
    ACC2, STG2, WREG2, XR = 16, 96, 160, 148
    NR1, NR2 = cfg.nr1, cfg.nr2

    def dma_voff(rowbytes, gemm1):
        a("v_lshrrev_b32 v10, 3, v0")
        if cfg.swz == 0:
            a("v_and_b32 v11, 6, v10")
        else:
            a("v_and_b32 v11, 2, v10")
            a("v_lshlrev_b32 v11, 1, v11")
        a("v_and_b32 v12, 7, v0")
        a("v_xor_b32 v12, v12, v11")
        a("v_lshlrev_b32 v12, 4, v12")
        if gemm1:
            a("v_and_b32 v11, 4, v10")
            a("v_add_u32 v10, v10, v11")
        a("s_mov_b32 s%d, %d" % (sT0, rowbytes))
        a("v_mul_lo_u32 v10, v10, s%d" % sT0)
        a("v_add_u32 v%d, v10, v12" % vDO)

    def setoff(dst, base, ordr, step, stepbytes):
        wd = 4
        if dst == sOA and ((cfg.fake & 1 and ordr == sORD1) or (cfg.fake & 2 and ordr == sORD2)):
            wd = 2
        a("s_bfe_u32 s%d, s%d, 0x%x" % (dst, ordr[step >> 3], (wd << 16) | (4 * (step & 7))))
        a("s_mul_i32 s%d, s%d, %d" % (dst, dst, stepbytes))
        a("s_add_u32 s%d, s%d, s%d" % (dst, dst, base))

    def dma_step(srdreg, slot, consts, stepbytes, tag, pol=''):
        setoff(sOW, sOWB, sORD1 if srdreg == rW1 else sORD2, int(tag[1:]), stepbytes)
        for b in range(4):
            a("s_add_u32 m0, s%d, %d" % (sWB, slot * 4096 + b * 1024))
            if consts[b]:
                a("s_add_u32 s%d, s%d, %d" % (sT0, sOW, consts[b]))
                so = sT0
            else:
                so = sOW
            a("buffer_load_dwordx4 v%d, %s, s%d offen %s lds" % (vDO, s(srdreg, 4), so, pol), tag=tag)

    C1 = [(16 * (b & 1) + 4 * (b >> 1)) * 3072 for b in range(4)]
    C2 = [8 * b * 4096 for b in range(4)]

    def tr_step(slot, wreg, tag):
        for n in range(4):
            for e in range(2):
                a("ds_read_b64_tr_b16 %s, v%d offset:%d" % (v(wreg + 4 * n + 2 * e, 2), vTR[n], slot * 4096 + e * 2048), tag=tag)

    def touch_w1():
        a("buffer_load_dword v63, v62, %s, s96 offen %s" % (s(rW1, 4), cfg.tpol), tag="tch")
    def touch_w2s():
        a("v_lshrrev_b32 v8, 2, v0")
        a("v_lshlrev_b32 v8, 12, v8")
        a("v_and_b32 v9, 3, v0")
        a("v_lshl_add_u32 v8, v9, 7, v8")
        a("v_mov_b32 v9, 0x7f000000")
        a("v_cmp_gt_u32 vcc, 48, v0")
        a("v_cndmask_b32 v8, v9, v8, vcc")
        a("s_lshl_b32 s97, s%d, 2" % sJ)
        a("s_add_u32 s97, s97, s%d" % sWV)
        a("s_mul_i32 s97, s97, %d" % (12 * 4096))
        a("s_lshl_b32 s%d, s%d, 9" % (sT2, sX))
        a("s_add_u32 s97, s97, s%d" % sT2)
    def touch_w2i():
        a("buffer_load_dword v9, v8, %s, s97 offen %s" % (s(rW2, 4), cfg.t2pol), tag="tch")
    def touch_w1b():
        if nline == 6:
            a("buffer_load_dword v63, v62, %s, s96 offen offset:384 %s" % (s(rW1, 4), cfg.tpol), tag="tch")
    a("s_mov_b64 exec, 0xffffffff")
    srd(rB, pB1, 3072)
    a("s_lshl_b32 s%d, s%d, 7" % (sT0, sFT))
    a("s_mov_b32 m0, %d" % BIA)
    a("buffer_load_dword v3, %s, s%d offen lds" % (s(rB, 4), sT0), tag="b")
    srd(rB, pB2, 4096)
    a("s_lshl_b32 s%d, s%d, 7" % (sT0, sST))
    a("s_mov_b32 m0, %d" % (BIA + 128))
    a("buffer_load_dword v3, %s, s%d offen lds" % (s(rB, 4), sT0), tag="b")
    a("s_mov_b64 exec, -1")
    if cfg.touch1 == 1:
        touch_w1()
    if cfg.touch2 in (3, 4, 5, 7):
        touch_w2s()
    if cfg.touch2 == 4:
        touch_w2i()
    a("s_setprio 2")
    a("s_mul_i32 s%d, s%d, %d" % (sWB, sWV, WSZ))
    a("s_add_u32 s%d, s%d, %d" % (sWB, sWB, WOFF))
    dma_voff(3072, True)
    a("s_mul_i32 s%d, s%d, %d" % (sOWB, sWV, 512 * 3072))
    a("s_lshl_b32 s%d, s%d, 7" % (sT0, sFT))
    a("s_add_u32 s%d, s%d, s%d" % (sOWB, sOWB, sT0))
    a("s_cmp_ge_u32 s%d, 30" % sJ)
    a("s_cselect_b32 s%d, 0x7f000000, s%d" % (sOWB, sOWB))
    def dma1(k):
        if 15 - cfg.skip1 <= k < 15:
            return
        dma_step(rW1, k % 7, C1, 32 * 3072, "w%d" % k, cfg.tpol if k < cfg.nt1 else '')
    for i in range(cfg.prea):
        dma1(i)
    if cfg.ln4 and cfg.lateb2:
        a("s_barrier")
    a.wait_vm("x")
    for i in range(cfg.prea, cfg.prea + cfg.preb):
        dma1(i)
    gemm_vm = list(a.vm)
    a.label("L_ln")
    stamp(1)

    def bfround(r):
        a("v_cvt_pk_bf16_f32 v%d, v%d, v%d" % (r, r, r))
        a("v_and_b32 v%d, s%d, v%d" % (r, sMASK, r))

    def ln_token(o, sx0, s1, s2, row):
        L = []
        e = L.append
        XP, D_, A, B, C, E_, HP = 16 + o, 24 + o, 34 + o, 36 + o, 38 + o, 40 + o, 44 + o
        M, V, R1, R2 = 50 + o, 51 + o, 52 + o, 54 + o
        for k in range(5):
            e("v_lshlrev_b32 v%d, 16, v%d" % (D_ + 2 * k, XP + k))
            e("v_and_b32 v%d, s%d, v%d" % (D_ + 2 * k + 1, sMASK, XP + k))
        e("v_readfirstlane_b32 s%d, v%d" % (sx0, D_))
        e("v_mov_b32 v%d, %s" % (R2, f32(1.0 / 640)))
        e("v_mov_b32 v%d, s%d" % (A, sx0))
        for k in range(5):
            e("v_pk_add_f32 %s, %s, %s op_sel_hi:[1,0] neg_lo:[0,1] neg_hi:[0,1]" % (v(D_ + 2 * k, 2), v(D_ + 2 * k, 2), v(A, 2)))
        e("v_pk_mul_f32 %s, %s, %s" % (v(B, 2), v(D_, 2), v(D_, 2)))
        e("v_pk_add_f32 %s, %s, %s" % (v(A, 2), v(D_, 2), v(D_ + 2, 2)))
        e("v_pk_mul_f32 %s, %s, %s" % (v(E_, 2), v(D_ + 4, 2), v(D_ + 4, 2)))
        e("v_pk_add_f32 %s, %s, %s" % (v(C, 2), v(D_ + 4, 2), v(D_ + 6, 2)))
        e("v_pk_fma_f32 %s, %s, %s, %s" % (v(B, 2), v(D_ + 2, 2), v(D_ + 2, 2), v(B, 2)))
        e("v_pk_add_f32 %s, %s, %s" % (v(A, 2), v(A, 2), v(D_ + 8, 2)))
        e("v_pk_fma_f32 %s, %s, %s, %s" % (v(E_, 2), v(D_ + 6, 2), v(D_ + 6, 2), v(E_, 2)))
        e("v_pk_fma_f32 %s, %s, %s, %s" % (v(B, 2), v(D_ + 8, 2), v(D_ + 8, 2), v(B, 2)))
        e("v_pk_add_f32 %s, %s, %s" % (v(A, 2), v(A, 2), v(C, 2)))
        e("v_pk_add_f32 %s, %s, %s" % (v(B, 2), v(B, 2), v(E_, 2)))
        e("v_add_f32 v%d, v%d, v%d" % (A, A, A + 1))
        e("v_add_f32 v%d, v%d, v%d" % (B, B, B + 1))
        for ctl in ["row_shr:1", "row_shr:2", "row_shr:4", "row_shr:8"]:
            for r in (A, B):
                e("v_add_f32_dpp v%d, v%d, v%d %s row_mask:0xf bank_mask:0xf bound_ctrl:0" % (r, r, r, ctl))
        for r in (A, B):
            e("v_add_f32_dpp v%d, v%d, v%d row_bcast:15 row_mask:0xa bank_mask:0xf" % (r, r, r))
        for r in (A, B):
            e("v_add_f32_dpp v%d, v%d, v%d row_bcast:31 row_mask:0xc bank_mask:0xf" % (r, r, r))
        e("v_readlane_b32 s%d, v%d, 63" % (s1, A))
        e("v_readlane_b32 s%d, v%d, 63" % (s2, B))
        e("v_mul_f32 v%d, s%d, v%d" % (M, s1, R2))
        e("v_mul_f32 v%d, s%d, v%d" % (V, s2, R2))
        e("v_fma_f32 v%d, -v%d, v%d, v%d" % (V, M, M, V))
        e("v_add_f32 v%d, s%d, v%d" % (A, sx0, M))
        e("v_max_f32 v%d, 0, v%d" % (V, V))
        def rstd(dst, mean, var, mb):
            e("v_cvt_pk_bf16_f32 v%d, v%d, v%d" % (C, mean, var))
            e("v_and_b32 v%d, s%d, v%d" % (dst, sMASK, C))
            e("v_lshlrev_b32 v%d, 16, v%d" % (mb, C))
            e("v_add_f32 v%d, %s, v%d" % (dst, f32(1e-5), dst))
            e("v_cvt_pk_bf16_f32 v%d, v%d, v%d" % (dst, dst, dst))
            e("v_and_b32 v%d, s%d, v%d" % (dst, sMASK, dst))
            e("v_sqrt_f32 v%d, v%d" % (dst, dst))
            e("v_cvt_pk_bf16_f32 v%d, v%d, v%d" % (dst, dst, dst))
            e("v_and_b32 v%d, s%d, v%d" % (dst, sMASK, dst))
            if cfg.nox and dst == R2:
                e("v_lshrrev_b32 v%d, 16, v%d" % (C, mb))
                e("v_or_b32 v%d, v%d, v%d" % (C, C, dst))
                e("ds_write_b32 v59, v%d offset:%d" % (C, 4 * row))
            e("v_rcp_f32 v%d, v%d" % (dst, dst))
        rstd(R1, A, V, B)
        e("v_sub_f32 v%d, s%d, v%d" % (B, sx0, B))
        e("v_mul_f32 v%d, v%d, v%d" % (V, V, R1))
        e("v_mul_f32 v%d, v%d, v%d" % (R1 + 1, B, R1))
        e("v_mul_f32 v%d, v%d, v%d" % (E_, B, R1))
        e("v_mul_f32 v%d, v%d, v%d" % (E_ + 1, B, R1))
        e("v_mul_f32 v%d, v%d, v%d" % (V, V, R1))
        e("v_fma_f32 v%d, v%d, v%d, v%d" % (A, M, R1, R1 + 1))
        n0 = len(L)
        rstd(R2, A, V, B)
        e("v_mul_f32 v%d, v%d, v%d" % (E_ + 2, B, R2))
        e("v_mul_f32 v%d, v%d, v%d" % (E_ + 3, B, R2))
        chain = L[n0:]; del L[n0:]
        body = []
        for k in range(5):
            body.append("v_pk_fma_f32 %s, %s, %s, %s op_sel_hi:[1,0,1]" % (v(D_ + 2 * k, 2), v(D_ + 2 * k, 2), v(R1, 2), v(E_, 2)))
        if not cfg.nox:
            for k in range(5):
                body.append("v_cvt_pk_bf16_f32 v%d, v%d, v%d" % (XP + k, D_ + 2 * k, D_ + 2 * k + 1))
            body.append("ds_write_b128 v60, %s offset:%d" % (v(XP, 4), 2 * SS + 704 * row))
            body.append("ds_write_b32 v61, v%d offset:%d" % (XP + 4, 2 * SS + 704 * row))
        while chain or body:
            if chain: e(chain.pop(0))
            if body: e(body.pop(0))
        for k in range(5):
            e("v_pk_fma_f32 %s, %s, %s, %s op_sel_hi:[1,0,1] neg_lo:[0,0,1] neg_hi:[0,0,1]" % (v(D_ + 2 * k, 2), v(D_ + 2 * k, 2), v(R2, 2), v(E_ + 2, 2)))
        for k in range(5):
            e("v_cvt_pk_bf16_f32 v%d, v%d, v%d" % (HP + k, D_ + 2 * k, D_ + 2 * k + 1))
        e("ds_write_b128 v60, %s offset:%d" % (v(HP, 4), 704 * row))
        e("ds_write_b32 v61, v%d offset:%d" % (HP + 4, 704 * row))
        return L
    def ln_token_exact(o, sx0, s1, s2, row):
        L = []
        e = L.append
        XP, XF32, DT_, A, B, C, D, HP = 16 + o, 24 + o, 34 + o, 44 + o, 46 + o, 48 + o, 50 + o, 52 + o
        def unpack(dst, src):
            for k in range(5):
                e("v_lshlrev_b32 v%d, 16, v%d" % (dst + 2 * k, src + k))
                e("v_and_b32 v%d, s%d, v%d" % (dst + 2 * k + 1, sMASK, src + k))
        unpack(XF32, XP)
        for shift, outp in ((True, XP), (False, HP)):
            src = XF32
            if shift:
                e("v_readfirstlane_b32 s%d, v%d" % (sx0, XF32))
                for i in range(10):
                    e("v_subrev_f32 v%d, s%d, v%d" % (DT_ + i, sx0, XF32 + i))
                src = DT_
            e("v_pk_add_f32 %s, %s, %s" % (v(A, 2), v(src, 2), v(src + 2, 2)))
            e("v_pk_mul_f32 %s, %s, %s" % (v(B, 2), v(src, 2), v(src, 2)))
            e("v_pk_add_f32 %s, %s, %s" % (v(C, 2), v(src + 4, 2), v(src + 6, 2)))
            e("v_pk_fma_f32 %s, %s, %s, %s" % (v(B, 2), v(src + 2, 2), v(src + 2, 2), v(B, 2)))
            e("v_pk_add_f32 %s, %s, %s" % (v(A, 2), v(A, 2), v(src + 8, 2)))
            e("v_pk_mul_f32 %s, %s, %s" % (v(D, 2), v(src + 4, 2), v(src + 4, 2)))
            e("v_pk_fma_f32 %s, %s, %s, %s" % (v(B, 2), v(src + 8, 2), v(src + 8, 2), v(B, 2)))
            e("v_pk_add_f32 %s, %s, %s" % (v(A, 2), v(A, 2), v(C, 2)))
            e("v_pk_fma_f32 %s, %s, %s, %s" % (v(D, 2), v(src + 6, 2), v(src + 6, 2), v(D, 2)))
            e("v_add_f32 v%d, v%d, v%d" % (A, A, A + 1))
            e("v_pk_add_f32 %s, %s, %s" % (v(B, 2), v(B, 2), v(D, 2)))
            e("v_add_f32 v%d, v%d, v%d" % (B, B, B + 1))
            for ctl in ["row_shr:1", "row_shr:2", "row_shr:4", "row_shr:8"]:
                for r in (A, B):
                    e("v_add_f32_dpp v%d, v%d, v%d %s row_mask:0xf bank_mask:0xf bound_ctrl:0" % (r, r, r, ctl))
            for r in (A, B):
                e("v_add_f32_dpp v%d, v%d, v%d row_bcast:15 row_mask:0xa bank_mask:0xf" % (r, r, r))
            for r in (A, B):
                e("v_add_f32_dpp v%d, v%d, v%d row_bcast:31 row_mask:0xc bank_mask:0xf" % (r, r, r))
            e("v_readlane_b32 s%d, v%d, 63" % (s1, A))
            e("v_readlane_b32 s%d, v%d, 63" % (s2, B))
            e("v_mov_b32 v%d, %s" % (A + 1, f32(1.0 / 640)))
            e("v_mul_f32 v%d, s%d, v%d" % (A, s1, A + 1))
            e("v_mul_f32 v%d, s%d, v%d" % (B, s2, A + 1))
            e("v_fma_f32 v%d, -v%d, v%d, v%d" % (B, A, A, B))
            if shift:
                e("v_add_f32 v%d, s%d, v%d" % (A, sx0, A))
            e("v_max_f32 v%d, 0, v%d" % (B, B))
            e("v_cvt_pk_bf16_f32 v%d, v%d, v%d" % (B + 1, A, B))
            e("v_and_b32 v%d, s%d, v%d" % (B, sMASK, B + 1))
            e("v_lshlrev_b32 v%d, 16, v%d" % (A, B + 1))
            e("v_add_f32 v%d, %s, v%d" % (B, f32(1e-5), B))
            for k in range(5):
                e("v_pk_add_f32 %s, %s, %s op_sel_hi:[1,0] neg_lo:[0,1] neg_hi:[0,1]" % (v(DT_ + 2 * k, 2), v(XF32 + 2 * k, 2), v(A, 2)))
                if k == 0:
                    e("v_cvt_pk_bf16_f32 v%d, v%d, v%d" % (B, B, B))
                if k == 1:
                    e("v_and_b32 v%d, s%d, v%d" % (B, sMASK, B))
                if k == 2:
                    e("v_sqrt_f32 v%d, v%d" % (B, B))
                if k == 4:
                    e("v_cvt_pk_bf16_f32 v%d, v%d, v%d" % (B, B, B))
            for k in range(5):
                e("v_cvt_pk_bf16_f32 v%d, v%d, v%d" % (C + k, DT_ + 2 * k, DT_ + 2 * k + 1))
                if k == 0:
                    e("v_and_b32 v%d, s%d, v%d" % (B, sMASK, B))
                if k == 1:
                    if cfg.nox and not shift:
                        e("v_lshrrev_b32 v%d, 16, v%d" % (A + 1, A))
                        e("v_or_b32 v%d, v%d, v%d" % (A + 1, A + 1, B))
                    e("v_rcp_f32 v%d, v%d" % (B, B))
                if k == 2 and cfg.nox and not shift:
                    e("ds_write_b32 v59, v%d offset:%d" % (A + 1, 4 * row))
            unpack(DT_, C)
            for k in range(5):
                e("v_pk_mul_f32 %s, %s, %s op_sel_hi:[1,0]" % (v(DT_ + 2 * k, 2), v(DT_ + 2 * k, 2), v(B, 2)))
            for k in range(5):
                e("v_cvt_pk_bf16_f32 v%d, v%d, v%d" % (outp + k, DT_ + 2 * k, DT_ + 2 * k + 1))
            off = (2 * SS if shift else 0) + 704 * row
            if shift:
                unpack(XF32, outp)
            if not (cfg.nox and shift):
                e("ds_write_b128 v60, %s offset:%d" % (v(outp, 4), off))
                e("ds_write_b32 v61, v%d offset:%d" % (outp + 4, off))
        return L
    if cfg.exactln:
        ln_token = ln_token_exact
    if cfg.ln4:
        for i0, i1 in zip(ln_token(0, 14, sT0, sT1, 0), ln_token(48, 15, sT2, sT3, 1)):
            a(i0); a(i1)
        a("s_waitcnt lgkmcnt(0)"); a.lg = []
        lds_arrive(8, 12, 13)
        a("s_add_u32 s%d, s7, 0x9E3779B9" % sTAG)
        a("s_branch L_not7")
        a.label("L_pub")
    else:
        for i0 in ln_token(0, 14, sT0, sT1, 0):
            a(i0)
        a("s_waitcnt lgkmcnt(0)"); a.lg = []
        a("s_add_u32 s%d, s7, 0x9E3779B9" % sTAG)
        a("s_cmp_lg_u32 s%d, 7" % sWV)
        a("s_barrier")
        a("s_cbranch_scc1 L_not7")
    a.vm = []; a.lg = []
    a("s_setprio 3")
    stamp(2)
    a("s_mul_i32 s%d, s%d, 10240" % (sT0, sID))
    a("s_add_u32 s%d, s%d, 4096" % (sT1, sT0))
    a("s_add_u32 s%d, s%d, 8192" % (sT2, sT0))
    def prd(k):
        arr, hf, q = k // 10, (k // 5) & 1, k % 5
        r = 16 + 4 * k
        o = hf * SS
        va = 100 + q if arr else vPA[q]
        a("ds_read_b64_tr_b16 %s, v%d offset:%d" % (v(r, 2), va, o), tag="p%d" % k)
        a("ds_read_b64_tr_b16 %s, v%d offset:%d" % (v(r + 2, 2), va, o + 2816), tag="p%d" % k)
    NP = 10 if cfg.nox else 20
    for k in range(6):
        prd(k)
    if cfg.nox:
        a("v_and_b32 v100, 16, v2")
        a("ds_read_b128 v[104:107], v100 offset:%d" % STA, tag="sta")
    else:
        for q in range(5):
            a("v_add_u32 v%d, %d, v%d" % (100 + q, 2 * SS, vPA[q]))
    for k in range(NP):
        if k == 10:
            for q in range(3):
                a("s_add_u32 s%d, s%d, 0x%x" % ((sT0, sT1, sT2)[q], (sT0, sT1, sT2)[q], XB))
        a.wait_lg("p%d" % k)
        kk = k % 10
        if k < 10 or not (cfg.noxn or cfg.xnlate):
            a("buffer_store_dwordx4 %s, v2, %s, s%d offen offset:%d sc1" % (v(16 + 4 * k, 4), s(rWS, 4), (sT0, sT1, sT2)[kk >> 2], 1024 * (kk & 3)), tag="hs" if k < 10 else "xs")
        if k + 6 < NP:
            prd(k + 6)
        if k == (cfg.c16k if cfg.nox else 13):
            a.drain_lg()
            lds_arrive(16, 12, 13)
    if cfg.nox:
        a("s_lshl_b32 s%d, s%d, %d" % (sT3, sID, cfg.stsh))
        a("s_add_u32 s%d, s%d, 0x%x" % (sT3, sT3, ST))
        a("s_mov_b64 exec, %d" % ((1 << (1 << (cfg.stsh - 4))) - 1))
        a("buffer_store_dwordx4 v[104:107], v2, %s, s%d offen sc1" % (s(rWS, 4), sT3))
        a("s_mov_b64 exec, -1")
    if cfg.ssig:
        a("s_cmp_ge_u32 s%d, 64" % sID)
        a("s_cbranch_scc1 L_nozero")
    for k in range(4):
        a("v_mov_b32 v%d, 0" % (108 + k))
    a("s_lshl_b32 s%d, s%d, 10" % (sT3, sID))
    a("s_add_u32 s%d, s%d, 0x%x" % (sT3, sT3, MB + 512))
    a("s_mov_b64 exec, 0xffffffff")
    a("buffer_store_dwordx4 v[108:111], v2, %s, s%d offen sc1" % (s(rWS, 4), sT3))
    a("s_lshl_b32 s%d, s%d, 7" % (sT3, sID))
    a("s_add_u32 s%d, s%d, 0x%x" % (sT3, sT3, YC))
    a("s_mov_b64 exec, 0xff")
    a("buffer_store_dwordx4 v[108:111], v2, %s, s%d offen sc1" % (s(rWS, 4), sT3))
    a("s_mov_b64 exec, -1")
    a.label("L_nozero")
    a("s_lshl_b32 s%d, s%d, %d" % (sT3, sID, cfg.fsh))
    a("s_add_u32 s%d, s%d, 0x%x" % (sT3, sT3, HF))
    if cfg.ssig:
        a("s_add_u32 s14, s%d, s%d" % (pWS, sT3))
        a("s_addc_u32 s15, s%d, 0" % (pWS + 1))
        a("s_mov_b32 s7, s%d" % sTAG)
        a.drain_vm()
        a("s_atomic_swap s7, s[14:15], 0")
        a.drain_lg()
        if cfg.xnlate:
            if cfg.xnlate == 2:
                a("s_mov_b32 s%d, s%d" % (sT3, sT0))
                lds_wait(40, 1, 12, 13, sleep=2)
                a("s_mov_b32 s%d, s%d" % (sT0, sT3))
            for kk in range(10):
                a("buffer_store_dwordx4 %s, v2, %s, s%d offen offset:%d sc1" % (v(56 + 4 * kk, 4), s(rWS, 4), (sT0, sT1, sT2)[kk >> 2], 1024 * (kk & 3)))
            a("s_mov_b32 s7, s%d" % sTAG)
            a.drain_vm()
            a("s_atomic_swap s7, s[14:15], 0x%x" % (XF2 - HF))
            a.drain_lg()
    else:
        a.drain_vm()
        flag_store(sT3, 12, 13)
    stamp(3)
    a("s_branch L_w7")
    a.label("L_not7")
    a.lg = ["arr"]
    if not cfg.ln4:
        a("s_cmp_ge_u32 s%d, 4" % sWV)
        a("s_cbranch_scc1 L_aux_main")
    a.vm = list(gemm_vm)
    a("s_setprio %d" % cfg.pP)
    stamp(2)
    for i in range(cfg.prea + cfg.preb, cfg.prea + cfg.preb + cfg.prec):
        dma1(i)
    cfg.pre1 = cfg.prea + cfg.preb + cfg.prec

    a("v_lshrrev_b32 v10, 2, v0")
    if cfg.swz == 0:
        a("v_bfe_u32 v11, v0, 3, 2")
    else:
        a("v_bfe_u32 v11, v0, 3, 1")
        a("v_lshlrev_b32 v11, 1, v11")
    a("v_lshlrev_b32 v10, 7, v10")
    a("v_and_b32 v12, 3, v0")
    a("v_lshl_add_u32 v10, v12, 3, v10")
    a("v_add_u32 v10, s%d, v10" % sWB)
    for n in range(4):
        a("v_xor_b32 v12, %d, v11" % n)
        a("v_lshl_add_u32 v%d, v12, 5, v10" % vTR[n])
    a("v_lshrrev_b32 v10, 4, v0")
    a("v_mul_u32_u24 v10, 10240, v10")
    a("v_and_b32 v11, 15, v0")
    a("v_lshl_add_u32 v%d, v11, 4, v10" % vFO)
    a.wait_vm("b")
    a("v_lshrrev_b32 v10, 4, v0")
    a("v_lshlrev_b32 v10, 3, v10")
    for fi in range(4):
        a("ds_read_b64 %s, v10 offset:%d" % (v(STG1 + 2 * fi, 2), BIA + 32 * fi), tag="bias")
    a.wait_lg("bias")
    for k in range(8):
        a("v_lshlrev_b32 v%d, 16, v%d" % (ACC1 + 2 * k, STG1 + k))
        a("v_and_b32 v%d, s%d, v%d" % (ACC1 + 2 * k + 1, sMASK, STG1 + k))
    if cfg.warm:
        assert not cfg.ts or True
        a("v_mov_b32 v9, 0")
        a("v_mov_b32 v1, 0")
        a("s_mov_b32 s%d, 1" % sDRY)
        a("s_mov_b64 exec, 0")
        a("s_branch L_ep1")
        a.label("L_dry_ret")
        a("s_mov_b64 exec, -1")
        a("s_mov_b32 s%d, 0" % sDRY)
        a("s_waitcnt lgkmcnt(0)"); a.lg = []
    lds_wait(16, 1, 12, 13)
    stamp(14)
    if cfg.touch1:
        touch_w1b()
    if cfg.touch2 == 5:
        touch_w2i()
    a("s_cmp_ge_u32 s%d, 30" % sJ)
    a("s_cbranch_scc1 L_g2_pre_nog1")
    a("s_mul_i32 s%d, s%d, %d" % (sOAB, sWV, 64 * 10240))
    a("s_lshl_b32 s%d, s%d, 10" % (sT0, sDT))
    a("s_add_u32 s%d, s%d, s%d" % (sOAB, sOAB, sT0))
    if HB:
        a("s_add_u32 s%d, s%d, 0x%x" % (sOAB, sOAB, HB))
    for di in range(4):
        a("s_xor_b32 s%d, s%d, %d" % (sD[di], sWV, di))
        a("s_lshl_b32 s%d, s%d, 8" % (sD[di], sD[di]))
    def mbox(extra):
        if cfg.ssig and extra:
            a("s_and_b32 s%d, s%d, 63" % (sT1, sID))
            a("s_lshl_b32 s%d, s%d, 3" % (sT1, sT1))
        else:
            a("s_lshl_b32 s%d, s%d, 3" % (sT1, sID))
        a("s_add_u32 s%d, s%d, s%d" % (sT1, sT1, sWV))
        a("s_lshl_b32 s%d, s%d, 7" % (sT1, sT1))
        a("s_add_u32 s%d, s%d, 0x%x" % (sT1, sT1, MB + extra))
    D1 = cfg.depth1
    issued = cfg.pre1
    P1 = cfg.P1
    polled = False
    for i in range(P1):
        while issued < P1 and issued <= i + D1:
            k = issued
            if k >= 7:
                a.wait_lg("t%d" % (k - 7))
            if k >= P1 - 2 and i >= 8 and not polled:
                a.drain_lg()
                mbox(0)
                spoll_pre(sT1)
                polled = True
            dma1(k)
            issued += 1
        if i < 8:
            a.wait_vm("w%d" % i)
            tr_step(i % 7, WREG1 + 16 * i, "t%d" % i)
            if cfg.xnlate == 2 and i == cfg.xnat:
                lds_arrive(40, 12, 13)
        elif issued < P1:
            a.wait_vm("w%d" % i)
        if (i in (0, 8) and cfg.fine) or (cfg.fine == 2 and i in (2, 4, 6, 10)):
            stamp(16 + i // 2)
    if not polled:
        mbox(0)
        spoll_pre(sT1)
    if cfg.touch2 == 7:
        touch_w2i()
    stamp(3)
    def hwait(sl):
        a("s_lshl_b32 s%d, s%d, 3" % (sT1, sID))
        a("s_add_u32 s%d, s%d, s%d" % (sT1, sT1, sWV))
        a("s_lshl_b32 s%d, s%d, 7" % (sT1, sT1))
        a("s_add_u32 s%d, s%d, 0x%x" % (sT1, sT1, MB))
        spoll(sT1, sl)
    spoll(sT1, cfg.psleep, pre=True)
    a("s_setprio %d" % cfg.pG)
    if cfg.pbal:
        a("s_and_b32 s%d, s%d, 1" % (sT2, sJ))
        a("s_add_u32 s%d, s%d, s%d" % (sT2, sT2, sWV))
        a("s_cmp_lt_u32 s%d, 3" % sT2)
        a("s_cbranch_scc1 L_pb")
        a("s_setprio 1")
        a.label("L_pb")
    stamp(4)

    def adv_a(stepbytes):
        if cfg.noadv:
            return
        a("s_add_u32 s%d, s%d, %d" % (sOA, sOA, stepbytes))
        a("s_cmp_ge_u32 s%d, s%d" % (sOA, sOAE))
        a("s_cselect_b32 s%d, s%d, s%d" % (sOA, sOAB, sOA))

    def DI(n):
        return ((n + 1) & 3) if n >= 60 else (n & 3)
    def hload(n):
        di = DI(n)
        if n & 3 == 0:
            setoff(sOA, sOAB, sORD1, n >> 2, 4 * 10240)
        a("s_add_u32 s%d, s%d, s%d" % (sT1, sOA, sD[di]))
        a("buffer_load_dwordx4 %s, v%d, %s, s%d offen %s" % (v(STG1 + 4 * (n % NR1), 4), vFO, s(rWS, 4), sT1, cfg.apol), tag="h%d" % n)

    def w2_setup():
        dma_voff(4096, False)
        a("s_mul_i32 s%d, s%d, %d" % (sOWB, sWV, 384 * 4096))
        a("s_lshl_b32 s%d, s%d, 7" % (sT0, sST))
        a("s_add_u32 s%d, s%d, s%d" % (sOWB, sOWB, sT0))

    SL2 = {0: 3, 1: 4, 2: 5, 3: 6, 4: 0, 5: 1, 6: 2, 7: 3, 8: 4, 9: 5, 10: 6, 11: 0}
    def slot2(i):
        return SL2[i]
    def dma2(k):
        if k >= 12 - cfg.skip2:
            return
        dma_step(rW2, slot2(k), C2, 32 * 4096, "u%d" % k, cfg.t2pol if k < cfg.nt2 else '')
    def tr2(k):
        tr_step(slot2(k), WREG2 + 16 * k, "q%d" % k)
    def tr_flip():
        a("s_lshl_b32 s%d, s%d, 5" % (sT0, sWV))
        for n in range(4):
            a("v_xor_b32 v%d, s%d, v%d" % (vTR[n], sT0, vTR[n]))

    vXO, vXO4, vB2 = 9, 1, 14
    sXO = 97
    def xt_setup():
        a("v_and_b32 v12, 15, v0")
        a("v_lshrrev_b32 v13, 4, v0")
        a("v_mul_u32_u24 v%d, 1280, v12" % vXO)
        a("v_lshl_add_u32 v%d, v13, 3, v%d" % (vXO4, vXO))
        a("v_lshl_add_u32 v%d, v13, 4, v%d" % (vXO, vXO))
        a("s_lshl_b32 s%d, s%d, 2" % (sT2, sST))
        a("s_add_u32 s%d, s%d, s%d" % (sT2, sT2, sWV))
        a("s_mul_i32 s%d, s%d, %d" % (sXO, sT2, 16 * 1280))
        a("s_mul_i32 s%d, s%d, 160" % (sT3, sDT2))
        a("s_add_u32 s%d, s%d, s%d" % (sXO, sXO, sT3))
    def acc2_init():
        a("v_and_b32 v12, 15, v0")
        a("s_lshl_b32 s%d, s%d, 5" % (sT2, sWV))
        a("v_lshl_add_u32 v12, v12, 1, s%d" % sT2)
        a("ds_read_u16 v%d, v12 offset:%d" % (vB2, BIA + 128), tag="b2")
        for k in range(10):
            a("v_lshlrev_b32 v%d, 16, v%d" % (ACC2 + 2 * k, XR + k))
            a("v_and_b32 v%d, s%d, v%d" % (ACC2 + 2 * k + 1, sMASK, XR + k))
        a.wait_lg("b2")
        a("v_lshlrev_b32 v%d, 16, v%d" % (vB2, vB2))
        for k in range(20):
            a("v_add_f32 v%d, v%d, v%d" % (ACC2 + k, vB2, ACC2 + k))
    def xt_loads():
        a("buffer_load_dwordx4 %s, v%d, %s, s%d offen %s" % (v(XR, 4), vXO, s(rX, 4), sXO, cfg.xpol), tag="xt")
        a("buffer_load_dwordx4 %s, v%d, %s, s%d offen offset:64 %s" % (v(XR + 4, 4), vXO, s(rX, 4), sXO, cfg.xpol), tag="xt")
        a("buffer_load_dwordx2 %s, v%d, %s, s%d offen offset:128 %s" % (v(XR + 8, 2), vXO4, s(rX, 4), sXO, cfg.xpol), tag="xt")

    for n in range(NR1):
        hload(n)
    lds_arrive(12, 12, 13)
    sGS, sGC = sOWE, sOAE
    vEX = [WREG1 + k for k in range(4)]
    vC = WREG1 + 4
    c0 = -2.0 * math.sqrt(2.0 / math.pi) * math.log2(math.e)
    c1 = c0 * 0.044715
    def xwrite(i):
        for q in range(4):
            a("ds_write_b128 v%d, %s offset:%d" % (vEX[0], v(ACC1 + 16 * i + 4 * q, 4), (i - 1) * 4096 + q * 1024))
    fifo = []
    def fill(k):
        for _ in range(k):
            if fifo:
                a.play(fifo.pop(0))
    def need(tag):
        while any(it[2] == tag for it in fifo):
            fill(1)
    def setup8():
        tr_flip()
        a("v_lshlrev_b32 v10, 4, v0")
        a("v_add_u32 v%d, s%d, v10" % (vEX[0], sWB))
        for k in range(1, 4):
            a("s_xor_b32 s%d, s%d, %d" % (sT0, sWV, k))
            a("s_mul_i32 s%d, s%d, %d" % (sT0, sT0, WSZ))
            a("s_add_u32 s%d, s%d, %d" % (sT0, sT0, WOFF))
            a("v_add_u32 v%d, s%d, v10" % (vEX[k], sT0))
        a("v_mov_b32 v%d, %s" % (vC, f32(c1)))
        a("v_mov_b32 v%d, %s" % (vC + 1, f32(c0 if not cfg.dupc else c1)))
        if cfg.dupc:
            a("v_mov_b32 v%d, %s" % (vC + 2, f32(c0)))
            a("v_mov_b32 v%d, %s" % (vC + 3, f32(c0)))
    def setup10():
        a("s_mul_i32 s%d, s%d, %d" % (sGS, sFT, 8 * 10240))
        a("s_lshl_b32 s%d, s%d, 10" % (sT2, sDT))
        a("s_add_u32 s%d, s%d, s%d" % (sGS, sGS, sT2))
        a("s_add_u32 s%d, s%d, s%d" % (sGS, sGS, sD[0]))
        a("s_add_u32 s%d, s%d, 0x%x" % (sGS, sGS, GB))
        a("s_add_u32 s96, s%d, %d" % (sGS, 4 * 10240))
        a("s_lshl_b32 s%d, s%d, 2" % (sT2, sDT))
        a("s_add_u32 s%d, s%d, s%d" % (sT2, sT2, sWV))
        a("s_mul_i32 s%d, s%d, 52" % (sT2, sT2))
        a("s_lshr_b32 s%d, s%d, 8" % (sT2, sT2))
        if not cfg.ssig:
            group_ids(vPO, 13, sT2, 10)
        a("s_mul_i32 s%d, s%d, 43" % (sGC, sFT))
        a("s_lshr_b32 s%d, s%d, 8" % (sGC, sGC))
        a("s_lshl_b32 s%d, s%d, 7" % (sGC, sGC))
        a("s_add_u32 s%d, s%d, 0x%x" % (sGC, sGC, MB + 512))
        if cfg.ssig:
            a("s_lshl_b32 s%d, s%d, 13" % (sT2, sT2))
            a("s_add_u32 s%d, s%d, s%d" % (sGC, sGC, sT2))
    def refill(i, wr):
        a.wait_vm("w%d" % i)
        tr_step(i % 7, wr, "t%d" % i)
    def late15():
        a.wait_lg("t8")
        dma1(15)
        w2_setup()
    for i in range(16):
        wr = WREG1 + 16 * (i & 7)
        if i >= 8:
            need("t%d" % i)
            a.wait_lg("t%d" % i)
        for dd in range(4):
            n = 4 * i + dd
            di = DI(n)
            nxt = a.capture(hload, n + NR1) if (n + NR1 < 64 and not cfg.noload) else []
            a.wait_vm("h%d" % n)
            for fi in range(4):
                acc = v(ACC1 + 16 * di + 4 * fi, 4)
                if not cfg.nomfma or i == 0:
                    a("v_mfma_f32_16x16x32_bf16 %s, %s, %s, %s" % (acc, v(wr + 4 * fi, 4), v(STG1 + 4 * (n % NR1), 4), acc if (i or di == 0) else "0"))
                if fi < 3:
                    k = cfg.fillk
                    while len(nxt) > 1 and k:
                        a.play(nxt.pop(0)); k -= 1
                    fill(k)
            for it in nxt:
                a.play(it)
            if not nxt:
                fill(cfg.fillk)
            if n == cfg.e0at:
                fill(1000)
                for k in range(cfg.e0):
                    fifo += a.capture(dma2, k)
            if n >= 61:
                xwrite(n - 60)
        if i in (0, 7) and cfg.fine:
            stamp(24 + (i + 1) // 4)
        if i < 8:
            fifo += a.capture(refill, i + 8, wr)
        if P1 + i < 15:
            fifo += a.capture(dma1, P1 + i)
        if i == max(1, 15 - P1):
            fifo += a.capture(late15)
        if i == 10:
            fifo += a.capture(setup10)
        if i == 8:
            fifo += a.capture(setup8)
        if i == 9:
            fifo += a.capture(xt_setup)
    fill(1000)
    if cfg.pW != cfg.pG:
        a("s_setprio %d" % cfg.pW)
    stamp(5)
    a.drain_lg()
    lds_arrive(0, 12, 13)
    lds_wait(0, 4, 12, 13)
    stamp(12)
    a.label("L_ep1")
    for q in range(4):
        for i in range(1, 4):
            a("ds_read_b128 %s, v%d offset:%d" % (v(ACC1 + 16 * i + 4 * q, 4), vEX[i], (i - 1) * 4096 + q * 1024), tag="r%d" % q)
    def _e1():
        for k in range(cfg.e0, cfg.e0 + cfg.e1):
            dma2(k)
    guard(_e1)
    def op2(name, d, x, y, n):
        if cfg.nopk:
            for k in range(n):
                a("v_%s_f32 v%d, v%d, v%d" % (name, d + k, x + k, y + k))
        else:
            for k in range(0, n, 2):
                a("v_pk_%s_f32 %s, %s, %s" % (name, v(d + k, 2), v(x + k, 2), v(y + k, 2)))
    U_, T_, P_ = ACC1, ACC1 + 16, STG1
    for hf in range(2):
        o = 8 * hf
        a.wait_lg("r%d" % (2 * hf + 1))
        if hf == 1:
            guard(lds_arrive, 4, 12, 13)
        op2("add", U_ + o, U_ + o, ACC1 + 16 + o, 8)
        op2("add", ACC1 + 32 + o, ACC1 + 32 + o, ACC1 + 48 + o, 8)
        op2("add", U_ + o, U_ + o, ACC1 + 32 + o, 8)
        op2("mul", T_ + o, U_ + o, U_ + o, 8)
        if cfg.nopk:
            for k in range(8):
                a("v_fma_f32 v%d, v%d, v%d, v%d" % (T_ + o + k, T_ + o + k, vC, vC + 1))
        else:
            for k in range(0, 8, 2):
                if cfg.dupc:
                    a("v_pk_fma_f32 %s, %s, %s, %s" % (v(T_ + o + k, 2), v(T_ + o + k, 2), v(vC, 2), v(vC + 2, 2)))
                else:
                    a("v_pk_fma_f32 %s, %s, %s, %s op_sel:[0,0,1] op_sel_hi:[1,0,1]" % (v(T_ + o + k, 2), v(T_ + o + k, 2), v(vC, 2), v(vC, 2)))
        op2("mul", T_ + o, T_ + o, U_ + o, 8)
        for k in range(8):
            a("v_exp_f32 v%d, v%d" % (T_ + o + k, T_ + o + k))
        if cfg.nopk:
            for k in range(8):
                a("v_add_f32 v%d, 1.0, v%d" % (T_ + o + k, T_ + o + k))
        else:
            for k in range(0, 8, 2):
                a("v_pk_add_f32 %s, %s, 1.0 op_sel_hi:[1,0]" % (v(T_ + o + k, 2), v(T_ + o + k, 2)))
        for k in range(8):
            a("v_rcp_f32 v%d, v%d" % (T_ + o + k, T_ + o + k))
        op2("mul", T_ + o, T_ + o, U_ + o, 8)
        for k in range(4):
            a("v_cvt_pk_bf16_f32 v%d, v%d, v%d" % (P_ + 4 * hf + k, T_ + o + 2 * k, T_ + o + 2 * k + 1))
        if hf == 1:
            dry_exit("L_ep2")
            a("buffer_store_dwordx4 %s, v%d, %s, s%d offen sc1" % (v(P_ + 4 * hf, 4), vFO, s(rWS, 4), 96), tag="gs")
        else:
            guard(lambda: a("buffer_store_dwordx4 %s, v%d, %s, s%d offen sc1" % (v(P_, 4), vFO, s(rWS, 4), sGS), tag="gs"))
    lds_arrive(28, 12, 13)
    stamp(6)
    ne = cfg.e0 + cfg.e1
    for k in range(ne, 4):
        dma2(k)
    lds_wait(4, 4, 12, 13)
    dma2(4); dma2(5)
    if ne:
        a.wait_vm("u%d" % (ne - 1))
        for k in range(ne):
            tr2(k)
    if cfg.ssig:
        a.drain_lg()
    a.wait_vm("gs")
    if cfg.ssig:
        sig8(sGC, 1024)
        a.smem = True
    else:
        group_add(vPO, sGC, 13)
    stamp(7)
    xt_loads()
    dma2(6)
    for k in range(ne, 4):
        a.wait_vm("u%d" % k); tr2(k)
    a.wait_lg("q0"); dma2(7)
    a.wait_vm("u4"); tr2(4)
    a.wait_lg("q1"); dma2(8)
    a.wait_vm("u5"); tr2(5)
    a.wait_lg("q2"); dma2(9)
    a.wait_vm("xt")
    acc2_init()
    a.drain_lg()
    mbox(512)
    spoll_pre(sT1)
    dma2(10); dma2(11)
    vm_join = list(a.vm)
    a("s_branch L_g2_pre")
    a.label("L_g2_pre_nog1")
    a.vm = []; a.lg = []
    if cfg.xnlate == 2:
        lds_arrive(40, 12, 13)
    if cfg.nagg == 8:
        a("s_cmp_lg_u32 s%d, 31" % sJ)
        a("s_cbranch_scc1 L_noagg_h")
    a("v_lshlrev_b32 v%d, %d, v0" % (vPO, cfg.fsh))
    a("s_lshl_b32 s%d, s%d, %d" % (sT1, sWV, 6 + cfg.fsh))
    a("s_add_u32 s%d, s%d, 0x%x" % (sT1, sT1, HF))
    a("v_lshlrev_b32 v12, 13, v0")
    a("v_mov_b32 v13, s%d" % sTAG)
    a("s_lshl_b32 s%d, s%d, 3" % (sT2, sX))
    a("s_add_u32 s%d, s%d, s%d" % (sT2, sT2, sWV))
    a("s_lshl_b32 s%d, s%d, 7" % (sT2, sT2))
    a("s_add_u32 s%d, s%d, 0x%x" % (sT2, sT2, MB))
    if cfg.nagg == 16:
        a("s_and_b32 s%d, s%d, 1" % (sT3, sJ))
        a("s_lshl_b32 s%d, s%d, 17" % (sT3, sT3))
        a("s_add_u32 s%d, s%d, s%d" % (sT2, sT2, sT3))
    poll([vPO], [sT1], vPD, sleep=cfg.asleep)
    a("s_mov_b64 exec, 0x%x" % (0xffffffff if cfg.nagg == 8 else 0xffff))
    a("buffer_store_dword v13, v12, %s, s%d offen sc1" % (s(rWS, 4), sT2))
    a("s_mov_b64 exec, -1")
    stamp(13)
    if cfg.xnlate:
        a("s_add_u32 s%d, s%d, 0x%x" % (sT1, sT1, XF2 - HF))
        poll([vPO], [sT1], vPD, sleep=cfg.asleep)
        a("s_mov_b64 exec, 0x%x" % (0xffffffff if cfg.nagg == 8 else 0xffff))
        a("buffer_store_dword v13, v12, %s, s%d offen offset:64 sc1" % (s(rWS, 4), sT2))
        a("s_mov_b64 exec, -1")
    a.label("L_noagg_h")
    a.vm = []
    if cfg.touch2 == 6:
        a("v_lshrrev_b32 v8, 2, v0")
        a("v_lshlrev_b32 v8, 12, v8")
        a("v_and_b32 v9, 3, v0")
        a("v_lshl_add_u32 v8, v9, 7, v8")
        a("s_mul_i32 s%d, s%d, 24" % (sT1, sWV))
        a("s_add_u32 s%d, s%d, s%d" % (sT1, sT1, sJ))
        a("s_sub_u32 s%d, s%d, 30" % (sT1, sT1))
        a("s_lshl_b32 s%d, s%d, 16" % (sT1, sT1))
        a("s_lshl_b32 s%d, s%d, 9" % (sT2, sX))
        a("s_add_u32 s%d, s%d, s%d" % (sT1, sT1, sT2))
        a("s_mov_b32 s%d, s%d" % (sT3, sT1))
        for k in range(12):
            a("buffer_load_dword v9, v8, %s, s%d offen %s" % (s(rW2, 4), sT3, cfg.t2pol), tag="tw%d" % k)
            a("s_add_u32 s%d, s%d, %d" % (sT3, sT3, 32 * 4096))
            if k == 3:
                hwait(2)
                lds_arrive(12, 12, 13)
            if k >= cfg.tdep:
                a.wait_vm("tw%d" % (k - cfg.tdep))
    else:
        hwait(4)
        lds_arrive(12, 12, 13)
        if cfg.touch2 == 7:
            lds_wait(12, 4, 12, 13, sleep=2)
            touch_w2s()
            touch_w2i()
    lds_wait(12, 4, 12, 13, sleep=2)
    a("s_setprio 2")
    xt_setup()
    xt_loads()
    w2_setup()
    tr_flip()
    for k in range(7):
        dma2(k)
        if k:
            a.wait_vm("u%d" % (k - 1))
    for k in range(6):
        tr2(k)
    acc2_init()
    a.drain_lg()
    for k in range(7, 12):
        dma2(k)
        a.wait_vm("u%d" % (k - 1))
    a.drain_vm()
    mbox(512)
    spoll_pre(sT1)
    a.label("L_g2_pre")
    a.vm = list(vm_join); a.lg = []
    stamp(8)
    a("s_mul_i32 s%d, s%d, %d" % (sOAB, sWV, 48 * 10240))
    a("s_mul_i32 s%d, s%d, 1280" % (sT0, sDT2))
    a("s_add_u32 s%d, s%d, s%d" % (sOAB, sOAB, sT0))
    a("s_add_u32 s%d, s%d, 0x%x" % (sOAB, sOAB, GB))
    spoll(sT1, cfg.psleep, target=30, pre=True)
    if cfg.pW != cfg.pG:
        a("s_setprio %d" % cfg.pG)
    stamp(9)

    def gload(n):
        mi = n % 5
        if mi == 0:
            setoff(sOA, sOAB, sORD2, n // 5, 4 * 10240)
        a("buffer_load_dwordx4 %s, v%d, %s, s%d offen offset:%d %s" % (v(STG2 + 4 * (n % NR2), 4), vFO, s(rWS, 4), sOA, 256 * mi, cfg.apol), tag="g%d" % n)

    for n in range(NR2):
        gload(n)
    vE2 = [8, 10, 11, 12, 13]
    def setup6():
        a("v_lshlrev_b32 v7, 4, v0")
        a("v_add_u32 v%d, s%d, v7" % (vE2[0], sWB))
        for k in range(1, 4):
            a("s_xor_b32 s%d, s%d, %d" % (sT0, sWV, k))
            a("s_mul_i32 s%d, s%d, %d" % (sT0, sT0, WSZ))
            a("s_add_u32 s%d, s%d, %d" % (sT0, sT0, WOFF))
            a("v_add_u32 v%d, s%d, v7" % (vE2[k], sT0))
        a("v_lshrrev_b32 v7, 2, v0")
        a("v_lshlrev_b32 v7, 7, v7")
        a("v_and_b32 v14, 3, v0")
        a("v_lshl_add_u32 v7, v14, 3, v7")
        a("s_lshl_b32 s%d, s%d, 5" % (sT0, sWV))
        a("s_add_u32 s%d, s%d, %d" % (sT0, sT0, RY))
        a("v_add_u32 v%d, s%d, v7" % (vE2[4], sT0))
    setup6()
    for i in range(12):
        wr = WREG2 + 16 * (i % 6)
        if i >= 6:
            need("q%d" % i)
            a.wait_lg("q%d" % i)
        for mi in range(5):
            n = 5 * i + mi
            nxt = a.capture(gload, n + NR2) if (n + NR2 < 60 and not cfg.noload) else []
            a.wait_vm("g%d" % n)
            for x, ni in enumerate((1, 2, 3, 0) if i == 11 else range(4)):
                acc = v(ACC2 + 20 * ni + 4 * mi, 4)
                if not cfg.nomfma or i == 0:
                    a("v_mfma_f32_16x16x32_bf16 %s, %s, %s, %s" % (acc, v(STG2 + 4 * (n % NR2), 4), v(wr + 4 * ni, 4), acc if (i or ni == 0) else "0"))
                if x < 3:
                    k = cfg.fillk
                    while len(nxt) > 1 and k:
                        a.play(nxt.pop(0)); k -= 1
                    fill(k)
                if i == 11 and mi >= 2 and x < 3:
                    a("ds_write_b128 v%d, %s offset:%d" % (vE2[0], v(ACC2 + 20 * (x + 1) + 4 * (mi - 2), 4), x * 5120 + (mi - 2) * 1024))
            for it in nxt:
                a.play(it)
        if i in (0, 5) and cfg.fine:
            stamp(28 + (i + 1) // 3)
        if i + 6 < 12:
            fifo += a.capture(tr_step, slot2(i + 6), wr, "q%d" % (i + 6))
    fill(1000)
    stamp(10)
    for q in (3, 4):
        for k in range(1, 4):
            a("ds_write_b128 v%d, %s offset:%d" % (vE2[0], v(ACC2 + 20 * k + 4 * q, 4), (k - 1) * 5120 + q * 1024))
    a.drain_lg()
    a("s_barrier")
    a.label("L_ep2")
    YR, TY, TP = WREG2 + 40, WREG2, WREG2 + 20
    def _ya():
        for mi in range(5):
            a("ds_read_b64_tr_b16 %s, v%d offset:%d" % (v(YR + 2 * mi, 2), vE2[4], mi * 2048), tag="ya")
    guard(_ya)
    for q in range(5):
        for k in range(1, 4):
            a("ds_read_b128 %s, v%d offset:%d" % (v(ACC2 + 20 * k + 4 * q, 4), vE2[k], (k - 1) * 5120 + q * 1024), tag="r%d" % q)
    a.wait_lg("ya")
    for k in range(10):
        a("v_lshlrev_b32 v%d, 16, v%d" % (TY + 2 * k, YR + k))
        a("v_and_b32 v%d, s%d, v%d" % (TY + 2 * k + 1, sMASK, YR + k))
    def pk2(d, x, y, n):
        for k in range(0, n, 2):
            a("v_pk_add_f32 %s, %s, %s" % (v(d + k, 2), v(x + k, 2), v(y + k, 2)))
    pk2(ACC2, ACC2, TY, 20)
    pol = (" " + cfg.out_pol) if cfg.out_pol else ""
    for (o, n, last) in ((0, 8, 1), (8, 8, 3), (16, 4, 4)):
        a.wait_lg("r%d" % last)
        pk2(ACC2 + o, ACC2 + o, ACC2 + 20 + o, n)
        pk2(ACC2 + 40 + o, ACC2 + 40 + o, ACC2 + 60 + o, n)
        pk2(ACC2 + o, ACC2 + o, ACC2 + 40 + o, n)
        for k in range(n // 2):
            a("v_cvt_pk_bf16_f32 v%d, v%d, v%d" % (TP + o // 2 + k, ACC2 + o + 2 * k, ACC2 + o + 2 * k + 1))
        if n == 8:
            guard(lambda: a("buffer_store_dwordx4 %s, v%d, %s, s%d offen offset:%d%s" % (v(TP + o // 2, 4), vXO, s(rOUT, 4), sXO, 8 * o, pol)))
        else:
            dry_exit("L_dry_ret")
            a("buffer_store_dwordx2 %s, v%d, %s, s%d offen offset:128%s" % (v(TP + 8, 2), vXO4, s(rOUT, 4), sXO, pol))
    stamp(11)
    if cfg.hold:
        a("s_waitcnt vmcnt(0)")
        a.label("L_hold")
        a("s_memrealtime s[100:101]")
        a("s_waitcnt lgkmcnt(0)")
        a("s_sub_u32 s100, s100, s98")
        if cfg.hx >= 0:
            a("s_sub_u32 s100, s100, s99")
        a("s_cmp_lt_u32 s100, %d" % (cfg.hold * 100))
        a("s_cbranch_scc1 L_hold")
    finish()

    a.label("L_aux_main")
    a.vm = list(aux_vm); a.lg = []
    a("s_and_b32 s%d, s%d, 1" % (sT0, sJ))
    a("s_add_u32 s%d, s%d, s%d" % (sT0, sT0, sWV))
    a("s_cmp_ge_u32 s%d, 7" % sT0)
    a("s_cbranch_scc1 %s" % ("L_w6" if cfg.stouch else "L_aux_done"))
    F0 = 64
    if cfg.ln4 and cfg.lateb2 == 1:
        a("s_barrier")
    a.wait_vm("p")
    for k in range(6):
        a("v_lshlrev_b32 v%d, 16, v%d" % (F0 + k, PRM0 + k))
        a("v_and_b32 v%d, s%d, v%d" % (F0 + 6 + k, sMASK, PRM0 + k))
        a("v_lshlrev_b32 v%d, 16, v%d" % (F0 + 12 + k, PRM1 + k))
    vDT, vDS = 82, 83
    a("v_lshlrev_b32 v%d, 16, v%d" % (vDT, vLDT))
    a("v_lshlrev_b32 v%d, 16, v%d" % (vDS, vDSK))
    a("v_mul_f32 v%d, %s, v%d" % (vDT, f32(math.log2(math.e)), vDT))
    a("v_exp_f32 v%d, v%d" % (vDT, vDT))
    bfround(vDT)
    a("s_setprio %d" % cfg.pK)
    stamp(3)

    E = {k: 84 + 2 * (k - 1) for k in range(1, 8)}
    P = {k: 98 + 2 * (k - 1) for k in range(1, 9)}
    Q, Q2 = 114, 116
    Y = [118, 120, 122, 124]
    TT = [126, 128, 130, 132]
    CV = list(range(134, 142))
    YFR, XFR, DK = 144, 160, 208
    vFA = 220
    if cfg.kv3:
        assert cfg.kg2 == 3 and cfg.sepu
        DK, vFA = 176, 188
    cvi = [0]
    def cmul1(d, x, y):
        a("v_pk_mul_f32 %s, %s, %s op_sel:[0,0] op_sel_hi:[0,1]" % (v(d, 2), v(x, 2), v(y, 2)))
    def cmul2(d, x, y):
        a("v_pk_fma_f32 %s, %s, %s, %s op_sel:[1,1,0] op_sel_hi:[1,0,1] neg_lo:[1,0,0]" % (v(d, 2), v(x, 2), v(y, 2), v(d, 2)))
    if cfg.kg2 == 3:
        CV = list(range(16, 64)) + list(range(224, 233))
        if cfg.kv3:
            CV = list(range(16, 64)) + list(range(189, 197))
    def put(r, row, neg=False):
        c = CV[cvi[0] % len(CV)]; cvi[0] += 1
        a("v_cvt_pk_bf16_f32 v%d, v%d, %sv%d" % (c, r, "-" if neg else "", r + 1))
        return ("w", c, row)
    def wr(c, row):
        if not cfg.nokw:
            a("ds_write_addtid_b32 v%d offset:%d" % (c, row * 288))
    def group(ops):
        for d, x, y, row, neg in ops:
            cmul1(d, x, y)
        for d, x, y, row, neg in ops:
            cmul2(d, x, y)
        pend = []
        for d, x, y, row, neg in ops:
            if row is not None:
                pend.append(put(d, row, neg))
        for _, c, row in pend:
            wr(c, row)

    a("s_mov_b32 m0, s%d" % sRB)
    a("v_and_b32 v1, 15, v0")
    a("v_mul_u32_u24 v1, 288, v1")
    a("v_and_b32 v%d, 48, v0" % vFA)
    a("v_add3_u32 v%d, v%d, v1, s%d" % (vFA, vFA, sRB))
    for k in range(12):
        a("v_mov_b32 v%d, 0" % (DK + k))
    a("v_mov_b32 v143, 0x3f80")
    if cfg.kg2 in (1, 2):
        YR0 = 25
        pend = []
        def drip(n):
            for _ in range(n):
                if pend:
                    a.play(pend.pop(0))
        def out(r, row, neg=False):
            def f():
                _, c, _r = put(r, row, neg)
                f.c = c
            it = a.capture(f)
            return it, a.capture(wr, f.c, row)
        def grp(ops):
            for d, x, y, row, neg in ops:
                cmul1(d, x, y); drip(1)
            for d, x, y, row, neg in ops:
                cmul2(d, x, y); drip(1)
            drip(100)
            cv, wrs = [], []
            for d, x, y, row, neg in ops:
                if row is not None:
                    c_, w_ = out(d, row, neg)
                    cv += c_; wrs += w_
            seq_ = cv[:1]
            for k in range(len(wrs)):
                seq_ += cv[k + 1:k + 2] + [wrs[k]]
            pend.extend(seq_)
        T2 = TT + [224, 226, 228, 230]
        AN = 232
        late = []
        def dl(n):
            for _ in range(n):
                if late:
                    a.play(late.pop(0))
        def mf(dk, xo, tag):
            a.wait_lg(tag)
            for st in range(4):
                a("v_mfma_f32_16x16x32_bf16 %s, %s, %s, %s" % (v(dk, 4), v(XFR + xo + 4 * st, 4), v(YFR + 4 * st, 4), v(dk, 4)))
        if cfg.kg2 == 2:
            a("s_mov_b32 s%d, 3" % sT3)
            a.label("L_kgen")
            a.lg = []
        for rd in range(3 if cfg.kg2 == 1 else 1):
            Fp = F0 + 6 * rd
            a("v_pk_mul_f32 %s, %s, v[82:83] op_sel_hi:[1,0]" % (v(AN, 2), v(Fp, 2)))
            a("v_pk_mul_f32 %s, %s, v[82:83] op_sel_hi:[1,0]" % (v(AN + 2, 2), v(Fp + 2, 2)))
            a("v_mul_f32 v%d, %s, v%d" % (AN, f32(math.log2(math.e)), AN))
            a("v_mul_f32 v%d, 0.15915494, v%d" % (AN + 1, AN + 1))
            cmul1(Y[0], Fp + 4, AN + 2)
            anchors = [(E[1], 1.0), (Q, 8.0), (P[1], 128.0)]
            for idx, (d, k) in enumerate(anchors):
                m_, f_ = AN + 4 + 2 * idx, AN + 5 + 2 * idx
                if k == 1.0:
                    a("v_exp_f32 v%d, v%d" % (m_, AN))
                    a("v_fract_f32 v%d, v%d" % (f_, AN + 1))
                else:
                    a("v_mul_f32 v%d, %s, v%d" % (m_, f32(k), AN))
                    a("v_mul_f32 v%d, %s, v%d" % (f_, f32(k), AN + 1))
                    a("v_exp_f32 v%d, v%d" % (m_, m_))
                    a("v_fract_f32 v%d, v%d" % (f_, f_))
                dl(1)
            cmul2(Y[0], Fp + 4, AN + 2)
            for idx, (d, k) in enumerate(anchors):
                a("v_cos_f32 v%d, v%d" % (d, AN + 5 + 2 * idx)); dl(1)
                a("v_sin_f32 v%d, v%d" % (d + 1, AN + 5 + 2 * idx)); dl(1)
            dl(100)
            for idx, (d, k) in enumerate(anchors):
                a("v_pk_mul_f32 %s, %s, %s op_sel_hi:[1,0]" % (v(d, 2), v(d, 2), v(AN + 4 + 2 * idx, 2)))
            pend.extend(a.capture(wr, 143, 0))
            for r_, row, neg in ((Y[0], YR0, True), (E[1], 1, False), (P[1], 8, False)):
                c_, w_ = out(r_, row, neg)
                pend.extend(c_ + w_)
            grp([(Y[1], Y[0], Q, YR0 + 1, True), (Q2, Q, Q, None, False), (E[2], E[1], E[1], 2, False), (P[2], P[1], P[1], 16, False)])
            grp([(Y[2], Y[0], Q2, YR0 + 2, True), (Y[3], Y[1], Q2, YR0 + 3, True), (E[3], E[2], E[1], 3, False), (E[4], E[2], E[2], 4, False)])
            grp([(Y[0], Y[2], Q2, YR0 + 4, True), (Y[1], Y[3], Q2, YR0 + 5, True), (E[5], E[4], E[1], 5, False), (E[6], E[4], E[2], 6, False)])
            grp([(Y[2], Y[0], Q2, YR0 + 6, True), (Y[3], Y[1], Q2, YR0 + 7, True), (E[7], E[4], E[3], 7, False), (P[3], P[2], P[1], 20, False)])
            grp([(Y[0], Y[2], Q2, YR0 + 8, True), (Y[1], Y[3], Q2, YR0 + 9, True), (T2[0], P[1], E[1], 9, False), (T2[1], P[1], E[2], 10, False)])
            grp([(Y[2], Y[0], Q2, YR0 + 10, True), (Y[3], Y[1], Q2, YR0 + 11, True), (T2[2], P[1], E[3], 11, False), (T2[3], P[1], E[4], 12, False)])
            grp([(Y[0], Y[2], Q2, YR0 + 12, True), (Y[1], Y[3], Q2, YR0 + 13, True), (T2[0], P[1], E[5], 13, False), (T2[1], P[1], E[6], 14, False)])
            grp([(Y[2], Y[0], Q2, YR0 + 14, True), (Y[3], Y[1], Q2, YR0 + 15, True), (T2[2], P[1], E[7], 15, False), (P[4], P[2], P[2], 24, False)])
            def rdf(dst, row0, tag):
                for st in range(4):
                    a("ds_read_b128 %s, v%d offset:%d" % (v(dst + 4 * st, 4), vFA, row0 * 288 + 64 * st), tag=tag)
            pend.extend(a.capture(rdf, YFR, YR0, "yf") + a.capture(rdf, XFR, 0, "x0"))
            grp([(T2[4], P[2], E[2], 17, False), (T2[5], P[2], E[4], 18, False), (T2[6], P[2], E[6], 19, False), (P[5], P[4], P[1], 26, False)])
            grp([(T2[0], P[3], E[2], 21, False), (T2[1], P[3], E[4], 22, False), (T2[2], P[3], E[6], 23, False), (P[6], P[4], P[2], 28, False)])
            grp([(P[7], P[4], P[3], 30, False), (P[8], P[4], P[4], 32, False), (T2[4], P[4], E[4], 25, False), (T2[5], P[5], E[4], 27, False)])
            grp([(T2[0], P[6], E[4], 29, False), (T2[1], P[7], E[4], 31, False), (T2[2], P[8], P[1], 33, False), (T2[3], P[8], P[2], 34, False)])
            pend.extend(a.capture(rdf, XFR + 16, 16, "x1"))
            grp([(T2[4], P[8], P[3], 35, False), (T2[5], P[8], P[4], 36, False), (T2[6], P[8], P[5], 37, False)])
            grp([(T2[0], P[8], P[6], 38, False), (T2[1], P[8], P[7], 39, False), (T2[2], P[8], P[8], 40, False)])
            m0_ = a.capture(mf, DK, 0, "x0")
            while pend or m0_:
                drip(1)
                if m0_:
                    a.play(m0_.pop(0))
            rdf(XFR + 32, 32, "x2")
            late.extend(a.capture(mf, DK + 4, 16, "x1") + a.capture(mf, DK + 8, 32, "x2"))
        if cfg.kg2 == 2:
            for k in range(12):
                a("v_mov_b32 v%d, v%d" % (F0 + k, F0 + 6 + k))
                if k % 2:
                    dl(1)
        dl(100)
        if cfg.kg2 == 2:
            a("s_sub_u32 s%d, s%d, 1" % (sT3, sT3))
            a("s_cmp_lg_u32 s%d, 0" % sT3)
            a("s_cbranch_scc1 L_kgen")
    else:
        a("s_mov_b32 s%d, 3" % sT3)
        a.label("L_kgen")
        a.lg = []
        def round_body():
            a("v_pk_mul_f32 v[126:127], v[64:65], v[82:83] op_sel_hi:[1,0]")
            a("v_pk_mul_f32 v[128:129], v[66:67], v[82:83] op_sel_hi:[1,0]")
            a("v_mul_f32 v126, %s, v126" % f32(math.log2(math.e)))
            a("v_mul_f32 v127, 0.15915494, v127")
            cmul1(Y[0], 68, 128)
            anchors = [(E[1], 1.0), (Q, 8.0), (P[1], 128.0)]
            for idx, (d, k) in enumerate(anchors):
                m_, f_ = 134 + 2 * idx, 135 + 2 * idx
                if k == 1.0:
                    a("v_exp_f32 v%d, v126" % m_)
                    a("v_fract_f32 v%d, v127" % f_)
                else:
                    a("v_mul_f32 v%d, %s, v126" % (m_, f32(k)))
                    a("v_mul_f32 v%d, %s, v127" % (f_, f32(k)))
                    a("v_exp_f32 v%d, v%d" % (m_, m_))
                    a("v_fract_f32 v%d, v%d" % (f_, f_))
            cmul2(Y[0], 68, 128)
            for idx, (d, k) in enumerate(anchors):
                a("v_cos_f32 v%d, v%d" % (d, 135 + 2 * idx))
                a("v_sin_f32 v%d, v%d" % (d + 1, 135 + 2 * idx))
            for idx, (d, k) in enumerate(anchors):
                a("v_pk_mul_f32 %s, %s, %s op_sel_hi:[1,0]" % (v(d, 2), v(d, 2), v(134 + 2 * idx, 2)))
            for k in range(12):
                a("v_mov_b32 v%d, v%d" % (F0 + k, F0 + 6 + k))
            YR0 = 25
            wr(143, 0)
            p_ = [put(Y[0], YR0, True), put(E[1], 1), put(P[1], 8)]
            for _, c, row in p_:
                wr(c, row)
            group([(Y[1], Y[0], Q, YR0 + 1, True), (Q2, Q, Q, None, False), (E[2], E[1], E[1], 2, False), (P[2], P[1], P[1], 16, False)])
            group([(Y[2], Y[0], Q2, YR0 + 2, True), (Y[3], Y[1], Q2, YR0 + 3, True), (E[3], E[2], E[1], 3, False), (E[4], E[2], E[2], 4, False)])
            group([(Y[0], Y[2], Q2, YR0 + 4, True), (Y[1], Y[3], Q2, YR0 + 5, True), (E[5], E[4], E[1], 5, False), (E[6], E[4], E[2], 6, False)])
            group([(Y[2], Y[0], Q2, YR0 + 6, True), (Y[3], Y[1], Q2, YR0 + 7, True), (E[7], E[4], E[3], 7, False), (P[3], P[2], P[1], 20, False)])
            group([(Y[0], Y[2], Q2, YR0 + 8, True), (Y[1], Y[3], Q2, YR0 + 9, True), (TT[0], P[1], E[1], 9, False), (TT[1], P[1], E[2], 10, False)])
            group([(Y[2], Y[0], Q2, YR0 + 10, True), (Y[3], Y[1], Q2, YR0 + 11, True), (TT[0], P[1], E[3], 11, False), (TT[1], P[1], E[4], 12, False)])
            group([(Y[0], Y[2], Q2, YR0 + 12, True), (Y[1], Y[3], Q2, YR0 + 13, True), (TT[0], P[1], E[5], 13, False), (TT[1], P[1], E[6], 14, False)])
            group([(Y[2], Y[0], Q2, YR0 + 14, True), (Y[3], Y[1], Q2, YR0 + 15, True), (TT[0], P[1], E[7], 15, False), (P[4], P[2], P[2], 24, False)])
            for st in range(4):
                a("ds_read_b128 %s, v%d offset:%d" % (v(YFR + 4 * st, 4), vFA, YR0 * 288 + 64 * st), tag="yf")
            for st in range(4):
                a("ds_read_b128 %s, v%d offset:%d" % (v(XFR + 4 * st, 4), vFA, 64 * st), tag="x0")
            group([(TT[0], P[2], E[2], 17, False), (TT[1], P[2], E[4], 18, False), (TT[2], P[2], E[6], 19, False), (P[5], P[4], P[1], 26, False)])
            group([(TT[0], P[3], E[2], 21, False), (TT[1], P[3], E[4], 22, False), (TT[2], P[3], E[6], 23, False), (P[6], P[4], P[2], 28, False)])
            a.wait_lg("x0")
            for st in range(4):
                a("v_mfma_f32_16x16x32_bf16 %s, %s, %s, %s" % (v(DK, 4), v(XFR + 4 * st, 4), v(YFR + 4 * st, 4), v(DK, 4)))
            group([(P[7], P[4], P[3], 30, False), (P[8], P[4], P[4], 32, False), (TT[0], P[4], E[4], 25, False), (TT[1], P[5], E[4], 27, False)])
            group([(TT[0], P[6], E[4], 29, False), (TT[1], P[7], E[4], 31, False), (TT[2], P[8], P[1], 33, False), (TT[3], P[8], P[2], 34, False)])
            for st in range(4):
                a("ds_read_b128 %s, v%d offset:%d" % (v(XFR + 16 + 4 * st, 4), vFA, 16 * 288 + 64 * st), tag="x1")
            group([(TT[0], P[8], P[3], 35, False), (TT[1], P[8], P[4], 36, False), (TT[2], P[8], P[5], 37, False)])
            group([(TT[0], P[8], P[6], 38, False), (TT[1], P[8], P[7], 39, False), (TT[2], P[8], P[8], 40, False)])
            for st in range(4):
                a("ds_read_b128 %s, v%d offset:%d" % (v(XFR + 32 + 4 * st, 4), vFA, 32 * 288 + 64 * st), tag="x2")
            a.wait_lg("x1")
            for st in range(4):
                a("v_mfma_f32_16x16x32_bf16 %s, %s, %s, %s" % (v(DK + 4, 4), v(XFR + 16 + 4 * st, 4), v(YFR + 4 * st, 4), v(DK + 4, 4)))
            a.wait_lg("x2")
            for st in range(4):
                a("v_mfma_f32_16x16x32_bf16 %s, %s, %s, %s" % (v(DK + 8, 4), v(XFR + 32 + 4 * st, 4), v(YFR + 4 * st, 4), v(DK + 8, 4)))
        items = a.capture(round_body)
        if cfg.kg2 == 3:
            isv = lambda it: it[0] == "i" and it[1].startswith("v_") and not it[1].startswith("v_mfma")
            vv = [it for it in items if isv(it)]
            oo = [it for it in items if not isv(it)]
            if cfg.sepu:
                import re as _re
                sets = {0: [], 1: [], 2: [], 3: []}
                seenY = False
                for it in oo:
                    if it[0] == "i" and it[1].startswith("ds_read") and it[2] == "yf":
                        seenY = True
                    if it[0] == "i" and it[1].startswith("ds_write_addtid"):
                        row = int(_re.search(r"offset:(\d+)", it[1]).group(1)) // 288
                        if row >= 25 and not seenY:
                            k, r16 = 0, row - 25
                        else:
                            k, r16 = 1 + row // 16, row % 16
                        sets[k].append(("i", _re.sub(r"offset:\d+", "offset:%d" % (r16 * 288), it[1]), None))
                oo = []
                XS = 0 if cfg.kv3 else 16
                for k, (dst, tg) in enumerate(((YFR, "yf"), (XFR, "x0"), (XFR + XS, "x1"), (XFR + 2 * XS, "x2"))):
                    oo += sets[k]
                    if k >= 2:
                        oo.append(("wait_lg", ("x0", "x1")[k - 2], None))
                        for st in range(4):
                            dk = DK + 4 * (k - 2)
                            oo.append(("i", "v_mfma_f32_16x16x32_bf16 %s, %s, %s, %s" % (v(dk, 4), v(XFR + XS * (k - 2) + 4 * st, 4), v(YFR + 4 * st, 4), v(dk, 4)), None))
                    for st in range(4):
                        oo.append(("i", "ds_read_b128 %s, v%d offset:%d" % (v(dst + 4 * st, 4), vFA, 64 * st), tg))
                oo.append(("wait_lg", "x2", None))
                for st in range(4):
                    oo.append(("i", "v_mfma_f32_16x16x32_bf16 %s, %s, %s, %s" % (v(DK + 8, 4), v(XFR + 2 * XS + 4 * st, 4), v(YFR + 4 * st, 4), v(DK + 8, 4)), None))
            items = vv + oo
        if cfg.kv3:
            for it in vv:
                a.play(it)
            a("s_cmp_lg_u32 s%d, 2" % sT3)
            a("s_cbranch_scc1 L_kL")
            for k, c in enumerate(CV):
                a("v_mov_b32 v%d, v%d" % (197 + k, c))
            a("s_mov_b32 s%d, 1" % sT3)
            a("s_branch L_kgen")
            a.label("L_kL")
            for it in oo:
                a.play(it)
            a("s_sub_u32 s%d, s%d, 1" % (sT3, sT3))
            a("s_cbranch_scc1 L_kend")
            a("s_cmp_lg_u32 s%d, 0" % sT3)
            a("s_cbranch_scc1 L_kgen")
            for k, c in enumerate(CV):
                a("v_mov_b32 v%d, v%d" % (c, 197 + k))
            a("s_branch L_kL")
            a.label("L_kend")
            a("s_nop 7")
        else:
            for it in items:
                a.play(it)
            a("s_sub_u32 s%d, s%d, 1" % (sT3, sT3))
            a("s_cmp_lg_u32 s%d, 0" % sT3)
            a("s_cbranch_scc1 L_kgen")
    a.drain_vm()
    if cfg.fastp:
        a("s_setprio %d" % cfg.xprio)
    stamp(4)
    a("v_and_b32 v16, 15, v0")
    a("v_lshrrev_b32 v17, 4, v0")
    a("s_add_u32 s%d, s%d, %d" % (sT0, sRB, 4624 if cfg.sepu else TB_OFF))
    a("v_lshrrev_b32 v18, 1, v17")
    a("v_lshlrev_b32 v18, 7, v18")
    a("v_and_b32 v19, 1, v17")
    a("v_lshl_add_u32 v18, v19, 2, v18")
    a("v_lshl_add_u32 v18, v16, 3, v18")
    a("v_lshl_add_u32 v18, v18, 2, s%d" % sT0)
    a("v_lshlrev_b32 v19, 2, v16")
    a("v_lshlrev_b32 v20, 1, v16")
    a("v_cmp_gt_u32 vcc, 2, v17")
    a("v_cndmask_b32 v19, v20, v19, vcc")
    a("v_lshl_add_u32 v19, v17, 6, v19")
    a("v_lshl_add_u32 v19, v19, 2, s%d" % sT0)
    a("v_mov_b32 v20, 128")
    a("v_cndmask_b32 v20, v20, 8, vcc")
    a("v_add_u32 v20, v19, v20")
    a("v_lshl_add_u32 v21, v17, 6, v16")
    a("v_lshl_add_u32 v21, v21, 2, s%d" % sT0)
    a("v_lshlrev_b32 v22, 4, v0")
    a("v_add_u32 v22, %d, v22" % ZP_OFF)
    a("v_mov_b32 v23, 4096")
    a("v_cmp_gt_u32 vcc, %d, v0" % (14 if cfg.sepu else 15))
    a("v_cndmask_b32 v22, v23, v22, vcc")
    if cfg.sepu:
        a("v_mov_b32 v23, 4608")
        a("v_cmp_eq_u32 vcc, 14, v0")
        a("v_cndmask_b32 v22, v22, v23, vcc")
    a("v_add_u32 v22, s%d, v22" % sRB)
    for k in range(4):
        a("v_mov_b32 v%d, 0" % (24 + k))
    a("ds_write_b128 v22, v[24:27]")
    a("ds_write_b128 v18, %s" % v(DK, 4))
    a("ds_write_b64 v19, %s offset:1024" % v(DK + 4, 2))
    a("ds_write_b64 v20, %s offset:1024" % v(DK + 6, 2))
    for r in range(4):
        a("ds_write_b32 v21, v%d offset:%d" % (DK + 8 + r, 2048 + 64 * r))
    a("v_lshl_add_u32 v18, v0, 4, s%d" % sT0)
    a("v_lshl_add_u32 v19, v0, 3, s%d" % sT0)
    a("v_subrev_u32 v20, 4, v18")
    a("v_subrev_u32 v21, 4, v19")
    a("v_cmp_eq_u32 vcc, 0, v0")
    a("v_cndmask_b32 v21, v19, v21, vcc")
    a("ds_read_b128 v[28:31], v18", tag="s0")
    a("ds_read_b32 v32, v20", tag="s0")
    a("ds_read_b64 v[34:35], v19 offset:1024", tag="s1")
    a("ds_read_b32 v36, v19 offset:1032", tag="s1")
    a("ds_read_b32 v37, v21 offset:1024", tag="s1")
    a("ds_read_b64 v[38:39], v19 offset:1536", tag="s2")
    a("ds_read_b32 v40, v19 offset:1544", tag="s2")
    a("ds_read_b64 v[42:43], v19 offset:2048", tag="s3")
    a("ds_read_b32 v44, v19 offset:2056", tag="s3")
    a("v_lshlrev_b32 v22, 3, v0")
    a("v_sub_u32 v22, s%d, v22" % sRB)
    a("v_lshlrev_b32 v23, 4, v0")
    a("v_sub_u32 v23, s%d, v23" % sRB)
    a("v_lshlrev_b32 v24, 5, v0")
    a("v_sub_u32 v24, s%d, v24" % sRB)
    a("v_add_u32 v22, %d, v22" % (4096 - 512 - 8))
    a("v_add_u32 v23, %d, v23" % (4096 - 1024 - 16))
    a("v_add_u32 v24, %d, v24" % (4096 - 2048 - 32))
    def pk(d, lo, hi):
        a("v_cvt_pk_bf16_f32 v%d, v%d, v%d" % (d, lo, hi))
    a("v_cndmask_b32 v33, 0, v%d, vcc" % vDS)
    a.wait_lg("s0")
    a("v_add_f32 v28, v28, v33")
    pk(48, 31, 30); pk(49, 29, 28); pk(50, 30, 29); pk(51, 28, 32)
    a("ds_write_b64 v22, v[48:49] offset:512")
    a("ds_write_b64 v22, v[50:51] offset:%d" % (512 + KB_OFF))
    a.wait_lg("s1")
    pk(52, 36, 35); pk(53, 34, 34); pk(54, 35, 34); pk(55, 34, 37)
    a("ds_write_b64 v22, v[52:53]")
    a("ds_write_b64 v22, v[54:55] offset:%d" % KB_OFF)
    a.wait_lg("s2")
    A_, B_, C_ = 38, 39, 40
    pk(56, C_, C_); pk(57, B_, B_); pk(58, B_, A_); pk(59, A_, A_)
    pk(60, C_, B_); pk(61, B_, B_); pk(62, A_, A_); pk(63, A_, A_)
    a("ds_write_b128 v23, v[56:59]")
    a("ds_write_b128 v23, v[60:63] offset:%d" % KB_OFF)
    a.wait_lg("s3")
    A_, B_, C_ = 42, 43, 44
    seqA = [(C_, C_), (C_, C_), (B_, B_), (B_, B_), (B_, B_), (B_, A_), (A_, A_), (A_, A_)]
    seqB = [(C_, C_), (C_, B_), (B_, B_), (B_, B_), (B_, B_), (A_, A_), (A_, A_), (A_, A_)]
    for k, (lo, hi) in enumerate(seqA):
        pk(64 + k, lo, hi)
    for k, (lo, hi) in enumerate(seqB):
        pk(72 + k, lo, hi)
    a("ds_write_b128 v24, v[64:67]")
    a("ds_write_b128 v24, v[68:71] offset:16")
    a("ds_write_b128 v24, v[72:75] offset:%d" % KB_OFF)
    a("ds_write_b128 v24, v[76:79] offset:%d" % (KB_OFF + 16))
    stamp(5)
    if not cfg.keepk and not cfg.fastp:
        a("s_setprio 0")
    if not cfg.helper and not cfg.sepu:
        a.drain_lg()
        lds_arrive(20, 8, 9)
    vUA, vKA = 10, 11
    def conv_addr(sb):
        a("v_and_b32 v12, 15, v0")
        a("v_lshrrev_b32 v13, 4, v0")
        a("v_lshlrev_b32 v13, 1, v13")
        a("v_sub_u32 v12, v12, v13")
        a("v_lshlrev_b32 v12, 4, v12")
        a("s_add_u32 s%d, s%d, %d" % (sT1, sb, U_OFF - 128))
        a("v_add_u32 v%d, s%d, v12" % (vUA, sT1))
        a("v_lshrrev_b32 v12, 1, v0")
        a("v_lshlrev_b32 v12, 2, v12")
        a("v_and_b32 v13, 1, v0")
        a("v_mul_u32_u24 v13, %d, v13" % KB_OFF)
        a("v_add_u32 v12, v12, v13")
        a("s_add_u32 s%d, s%d, %d" % (sT1, sb, KB_OFF + 4092 - 128 - 768))
        a("v_sub_u32 v%d, s%d, v12" % (vKA, sT1))
        for g in range(1, 4):
            a("v_subrev_u32 v%d, %d, v%d" % (vKA + g, 1024 * g, vKA))
    conv_addr(sRB)
    AC, KF, UF, NU = 16, 80, 208, 8
    NT = cfg.NT if cfg.helper else 16
    NH = 16 - NT
    def kfr(lo, hi):
        for idx in range(lo, hi):
            c, tau = idx >> 4, idx & 15
            if tau >= NT:
                continue
            o = 192 - 64 * (tau & 3) + 32 * (1 - c)
            r = KF + 4 * idx
            a("ds_read2_b32 %s, v%d offset0:%d offset1:%d" % (v(r, 2), vKA + (tau >> 2), o, o + 1))
            a("ds_read2_b32 %s, v%d offset0:%d offset1:%d" % (v(r + 2, 2), vKA + (tau >> 2), o + 2, o + 3))
    kfr(0, cfg.kf0 if cfg.fastp else 32)
    a("v_and_b32 v4, 15, v0")
    a("v_lshlrev_b32 v4, 4, v4")
    a("v_lshrrev_b32 v5, 5, v0")
    a("v_lshl_add_u32 v4, v5, 11, v4")
    a("v_bfe_u32 v5, v0, 4, 1")
    a("v_lshl_add_u32 v4, v5, 8, v4")
    group_ids(5, 6, sX, 7)
    a("v_mov_b32 v6, %d" % CNT)
    if cfg.zc:
        for k in range(4):
            a("v_mov_b32 v%d, 0" % (240 + k))
    if cfg.helper:
        a.drain_lg()
        lds_arrive(20, 8, 9)
    if cfg.fastp:
        assert cfg.nox and not cfg.t7 and not cfg.helper
        lds_wait(24, 1, 8, 9, sleep=1)
        a("v_add_u32 v8, s%d, v2" % sRB)
        a("v_lshlrev_b32 v9, 5, v0")
        for k in range(4):
            a("ds_read_b128 %s, v9 offset:%d" % (v(AC + 8 * k, 4), RY + 2048 * k), tag="x%d" % k)
            a("ds_read_b128 %s, v9 offset:%d" % (v(AC + 8 * k + 4, 4), RY + 2048 * k + 16), tag="x%d" % k)
            a("ds_read_b128 %s, v8 offset:%d" % (v(UF + 4 * k, 4), U_OFF + 1024 * k), tag="x%d" % k)
        kq = a.capture(kfr, cfg.kf0, 32)
        TH = UF + 16
        def tf():
            for k in range(4):
                H_ = UF + 4 * k
                a.wait_lg("x%d" % k)
                for q in range(8 * k, 8 * k + 8):
                    a("v_lshlrev_b32 v%d, 16, v%d" % (AC + 32 + q, AC + q))
                    a("v_and_b32 v%d, s%d, v%d" % (AC + q, sMASK, AC + q))
                for q in range(4):
                    a("v_lshlrev_b32 v%d, 16, v%d" % (TH + 2 * q, H_ + q))
                    a("v_and_b32 v%d, s%d, v%d" % (TH + 2 * q + 1, sMASK, H_ + q))
                for q in range(8):
                    a("v_fmac_f32 v%d, v%d, v%d" % (AC + 32 + 8 * k + q, TH + q, AC + 8 * k + q))
                for q in range(4):
                    a("v_cvt_pk_bf16_f32 v%d, v%d, v%d" % (AC + 8 * k + q, AC + 32 + 8 * k + 2 * q, AC + 32 + 8 * k + 2 * q + 1))
                a("ds_write_b128 v8, %s offset:%d" % (v(AC + 8 * k, 4), U_OFF + 1024 * k))
        for n_, it in enumerate(a.capture(tf)):
            a.play(it)
            if n_ % 3 == 2 and kq:
                a.play(kq.pop(0))
        for it in kq:
            a.play(it)
        lds_arrive(44, 8, 9)
    else:
        if cfg.nox and not cfg.t7:
            if cfg.tprio:
                a("s_setprio %d" % cfg.tprio)
            lds_wait(48, 1, 8, 9, sleep=1)
            a("v_lshlrev_b32 v9, 5, v0")
            for k in range(4):
                a("ds_read_b128 %s, v9 offset:%d" % (v(AC + 8 * k, 4), RY + 2048 * k), tag="x%d" % k)
                a("ds_read_b128 %s, v9 offset:%d" % (v(AC + 8 * k + 4, 4), RY + 2048 * k + 16), tag="x%d" % k)
            for k in range(4):
                a.wait_lg("x%d" % k)
                for q in range(8 * k, 8 * k + 8):
                    a("v_lshlrev_b32 v%d, 16, v%d" % (AC + 32 + q, AC + q))
                    a("v_and_b32 v%d, s%d, v%d" % (AC + q, sMASK, AC + q))
        lds_wait(24, 1, 8, 9, sleep=1)
        if cfg.nox and not cfg.t7:
            a("v_add_u32 v8, s%d, v2" % sRB)
            for k in range(4):
                a("ds_read_b128 %s, v8 offset:%d" % (v(UF + 4 * k, 4), U_OFF + 1024 * k), tag="x%d" % k)
            TH = UF + 16
            for k in range(4):
                H_ = UF + 4 * k
                a.wait_lg("x%d" % k)
                for q in range(4):
                    a("v_lshlrev_b32 v%d, 16, v%d" % (TH + 2 * q, H_ + q))
                    a("v_and_b32 v%d, s%d, v%d" % (TH + 2 * q + 1, sMASK, H_ + q))
                for q in range(8):
                    a("v_fmac_f32 v%d, v%d, v%d" % (AC + 32 + 8 * k + q, TH + q, AC + 8 * k + q))
                for q in range(4):
                    a("v_cvt_pk_bf16_f32 v%d, v%d, v%d" % (AC + 8 * k + q, AC + 32 + 8 * k + 2 * q, AC + 32 + 8 * k + 2 * q + 1))
                a("ds_write_b128 v8, %s offset:%d" % (v(AC + 8 * k, 4), U_OFF + 1024 * k))
            lds_arrive(44, 8, 9)
    stamp(7)
    if cfg.cprio or cfg.keepk or cfg.tprio or cfg.fastp:
        a("s_setprio %d" % cfg.cprio)
    seq = []
    for c in range(2):
        if cfg.helper and c == 0:
            seq += [(0, 0), (0, NT)]
            rest = [m for m in range(1, 16) if m != NT]
            while rest:
                seq += [(0, rest.pop(0)), (0, rest.pop())]
        else:
            for q in range(8):
                seq += [(c, q), (c, 15 - q)]
    def uread(n):
        c, mu = seq[n]
        a("ds_read_b128 %s, v%d offset:%d" % (v(UF + 4 * (n % NU), 4), vUA, 128 * (1 - c) + 256 * mu), tag="U%d" % n)
    for n in range(NU - 2):
        uread(n)
    stubs = []
    for n in range(32):
        c, mu = seq[n]
        if n % 2 == 0:
            if cfg.pause and n:
                a.wait_lg("pz")
                if cfg.pth > 1:
                    a("v_sub_u32 v8, v8, v9")
                    a("v_cmp_le_u32 vcc, %d, v8" % cfg.pth)
                else:
                    a("v_cmp_ne_u32 vcc, v8, v9")
                a("s_cbranch_vccnz L_pz%d" % n)
                a.label("L_np%d" % n)
                stubs.append(n)
            if cfg.pause and n < 30:
                a("ds_read2_b32 v[8:9], v6 offset0:0 offset1:7", tag="pz")
            for k in (n + NU - 2, n + NU - 1):
                if k < 32:
                    uread(k)
        a.wait_lg("U%d" % n)
        for tau in range(min(NT, 16 - mu)):
            acc = v(AC + 4 * (tau + mu), 4)
            first = n == 0 or (cfg.helper and n == 1)
            if not cfg.noconv or first:
                a("v_mfma_f32_16x16x32_bf16 %s, %s, %s, %s" % (acc, v(KF + 4 * (16 * c + tau), 4), v(UF + 4 * (n % NU), 4), ("v[240:243]" if cfg.zc else "0") if first else acc))
    stamp(8)
    if cfg.helper:
        a("s_sub_u32 s%d, s%d, 3" % (sT3, sWV))
        lds_wait(36, "s%d" % sT3, 8, 9, sleep=1)
        a("v_add_u32 v8, s%d, v2" % sRB)
        for q in range(NH):
            a("ds_read_b128 %s, v8 offset:%d" % (v(UF + 4 * q, 4), 1024 * q), tag="hp%d" % q)
        for q in range(NH):
            a.wait_lg("hp%d" % q)
            for r in range(4):
                a("v_add_f32 v%d, v%d, v%d" % (AC + 4 * (NT + q) + r, AC + 4 * (NT + q) + r, UF + 4 * q + r))
    if cfg.eprio != cfg.cprio:
        a("s_setprio %d" % cfg.eprio)
    CY = 100
    for r in range(4):
        a("v_mov_b32 v%d, 0" % (CY + r))
    for m in range(8):
        for r in range(4):
            a("v_permlane32_swap_b32 v%d, v%d" % (AC + 4 * m + r, AC + 32 + 4 * m + r))
    for r in range(4):
        a("v_mov_b32 v%d, v%d" % (CY + 4 + r, AC + 32 + 28 + r))
    for m in range(8):
        for r in range(4):
            L_ = AC + 4 * m + r
            a("v_add_f32_dpp v%d, v%d, v%d row_shr:1 row_mask:0xf bank_mask:0xf bound_ctrl:0" % (L_, AC + 32 + 4 * m + r, L_))
        if m == 0:
            for r in range(4):
                a("v_permlane32_swap_b32 v%d, v%d" % (CY + r, CY + 4 + r))
    for m in range(8):
        for r in range(4):
            L_ = AC + 4 * m + r
            prev = (AC + 32 + 4 * (m - 1) + r) if m else (CY + r)
            a("v_add_f32_dpp v%d, v%d, v%d row_shl:15 row_mask:0xf bank_mask:0xf bound_ctrl:0" % (L_, prev, L_))
    TP2 = 108
    for k in range(16):
        a("v_cvt_pk_bf16_f32 v%d, v%d, v%d" % (TP2 + k, AC + 2 * k, AC + 2 * k + 1))
    for mp in range(4):
        a("v_permlane16_swap_b32 v%d, v%d" % (TP2 + 4 * mp, TP2 + 4 * mp + 2))
        a("v_permlane16_swap_b32 v%d, v%d" % (TP2 + 4 * mp + 1, TP2 + 4 * mp + 3))
    if cfg.ysync:
        a("s_and_b32 s%d, s%d, 1" % (sT2, sJ))
        a("s_add_u32 s%d, s%d, 2" % (sT2, sT2))
        a("v_mov_b32 v12, %d" % (CNT + 32))
        a("v_mov_b32 v13, s%d" % sT2)
        a("s_mov_b64 exec, 1")
        a("ds_add_u32 v12, v13")
        a("s_mov_b64 exec, -1")
        lds_wait(32, 6, 12, 13, sleep=1)
    a("s_lshl_b32 s%d, s%d, 12" % (sT0, sPOS))
    a("s_add_u32 s%d, s%d, 0x%x" % (sT0, sT0, YA))
    for mp in range(4):
        a("buffer_store_dwordx4 %s, v4, %s, s%d offen offset:%d sc1" % (v(TP2 + 4 * mp, 4), s(rWS, 4), sT0, 512 * mp))
    if cfg.ssig:
        a("s_lshl_b32 s%d, s%d, 10" % (sT1, sX))
        a("s_add_u32 s%d, s%d, 0x%x" % (sT1, sT1, YC))
        if cfg.ywg:
            assert cfg.xnlate != 2
            a("v_mov_b32 v12, %d" % (CNT + 40))
            a("v_mov_b32 v13, 1")
            a("s_and_b32 s%d, s%d, 1" % (sT2, sJ))
        a.drain_vm()
        if cfg.ywg:
            a("s_mov_b64 exec, 1")
            a("ds_add_rtn_u32 v13, v12, v13")
            a("s_mov_b64 exec, -1")
            a.drain_lg()
            a("v_readfirstlane_b32 s%d, v13" % sT0)
            a("s_add_u32 s%d, s%d, s%d" % (sT0, sT0, sT2))
            a("s_cmp_lg_u32 s%d, 2" % sT0)
            a("s_cbranch_scc1 L_aux_done")
        sig8(sT1, 128)
    else:
        a("s_mov_b32 s%d, 0x%x" % (sT1, YC))
        a.drain_vm()
        group_add(5, sT1, 13)
    stamp(9)
    a.label("L_aux_done")
    finish()
    def emit_stubs(lst):
        for n in lst:
            a.label("L_pz%d" % n)
            a("s_mov_b32 s%d, 0x%x" % (sCNT, cfg.spin * 64))
            a.label("L_pl%d" % n)
            a("s_sleep 1")
            a("ds_read2_b32 v[8:9], v6 offset0:0 offset1:7")
            a("s_sub_u32 s%d, s%d, 1" % (sCNT, sCNT))
            a("s_cbranch_scc1 L_np%d" % n)
            a.drain_lg()
            a("v_cmp_ne_u32 vcc, v8, v9")
            a("s_cbranch_vccnz L_pl%d" % n)
            a("s_branch L_np%d" % n)
    emit_stubs(stubs)
    hstubs = []
    if cfg.stouch:
        a.label("L_w6")
        a("s_lshr_b32 s%d, s%d, 1" % (sT0, sJ))
        a("s_mul_i32 s%d, s%d, %d" % (sT0, sT0, 96 * 4096))
        a("s_lshl_b32 s%d, s%d, 9" % (sT1, sX))
        a("s_add_u32 s%d, s%d, s%d" % (sT0, sT0, sT1))
        a("s_add_u32 s14, s%d, s%d" % (pW2, sT0))
        a("s_addc_u32 s15, s%d, 0" % (pW2 + 1))
        a("s_mov_b32 s%d, 24" % sCNT)
        a.label("L_w6l")
        for r in range(4):
            for c in range(4):
                a("s_load_dword s%d, s[14:15], 0x%x" % (76 + (4 * r + c) % 8, r * 4096 + c * 128))
            if cfg.stouch == 2:
                a("s_waitcnt lgkmcnt(8)")
        a("s_add_u32 s14, s14, %d" % (4 * 4096))
        a("s_addc_u32 s15, s15, 0")
        a("s_sub_u32 s%d, s%d, 1" % (sCNT, sCNT))
        a("s_cmp_lg_u32 s%d, 0" % sCNT)
        a("s_cbranch_scc1 L_w6l")
        stamp(9)
        a("s_branch L_aux_done")
    a.label("L_w7")
    a.vm = []; a.lg = []
    tile_math()
    a("v_lshrrev_b32 v8, 2, v0")
    a("v_and_b32 v9, 3, v0")
    a("v_mul_u32_u24 v5, 10240, v8")
    a("v_lshl_add_u32 v5, v9, 4, v5")
    a("v_mul_u32_u24 v4, %d, v9" % S)
    a("v_lshl_add_u32 v4, v8, 4, v4")
    a("s_lshl_b32 s96, s%d, 4" % sPOS)
    a("s_add_u32 s96, s96, 0x%x" % (HB if cfg.nox else XB))
    a("v_lshrrev_b32 v7, 1, v0")
    a("v_lshlrev_b32 v7, %d, v7" % cfg.stsh)
    a("v_and_b32 v13, 16, v2")
    a("v_add_u32 v7, v7, v13")
    a("s_and_b32 s%d, s%d, 1" % (sT3, sJ))
    a("s_cmp_eq_u32 s%d, 0" % sT3)
    a("s_mov_b32 s%d, 0x33333333" % sT2)
    a("s_cselect_b32 s100, 0x77777777, s%d" % sT2)
    a("s_mov_b32 s101, s100")
    a("s_setprio %d" % cfg.uprio)
    if cfg.w7mb:
        a("s_lshl_b32 s%d, s%d, 10" % (sT1, sID))
        a("s_add_u32 s%d, s%d, 0x%x" % (sT1, sT1, MB))
        a("s_add_u32 s14, s%d, s%d" % (pWS, sT1))
        a("s_addc_u32 s15, s%d, 0" % (pWS + 1))
        a("s_mov_b32 s%d, %d" % (sCNT, cfg.spin * 2))
        a.label("L_p4")
        for k in range(4):
            a("s_load_dword s%d, s[14:15], %d glc" % (sD[k], 128 * k + (64 if cfg.xnlate else 0)))
        a("s_waitcnt lgkmcnt(0)"); a.lg = []
        for k in range(4):
            a("s_xor_b32 s%d, s%d, s%d" % (sD[k], sD[k], sTAG))
        a("s_or_b32 s%d, s%d, s%d" % (sD[0], sD[0], sD[1]))
        a("s_or_b32 s%d, s%d, s%d" % (sD[2], sD[2], sD[3]))
        a("s_or_b32 s%d, s%d, s%d" % (sD[0], sD[0], sD[2]))
        a("s_cbranch_scc0 L_p4ok")
        if cfg.p4s:
            a("s_sleep %d" % cfg.p4s)
        a("s_sub_u32 s%d, s%d, 1" % (sCNT, sCNT))
        a("s_cmp_lg_u32 s%d, 0" % sCNT)
        a("s_cbranch_scc1 L_p4")
        a.label("L_p4ok")
    else:
        lds_wait(12, 4, 10, 11, sleep=2)
    stamp(5)
    def touch_w2():
        sh = 2 if cfg.map2 == 8 else 3
        a("v_lshrrev_b32 v10, %d, v0" % sh)
        a("v_lshlrev_b32 v10, 12, v10")
        a("v_and_b32 v11, %d, v0" % ((1 << sh) - 1))
        a("v_lshl_add_u32 v10, v11, 7, v10")
        a("s_mul_i32 s%d, s%d, %d" % (sT1, sJ, 48 * 4096))
        if cfg.map2 == 8:
            a("s_lshl_b32 s%d, s%d, 9" % (sT2, sX))
        else:
            a("s_lshr_b32 s%d, s%d, 1" % (sT2, sX))
            a("s_lshl_b32 s%d, s%d, 10" % (sT2, sT2))
        a("s_add_u32 s%d, s%d, s%d" % (sT1, sT1, sT2))
        n = 3 if cfg.map2 == 8 else 6
        for k in range(n):
            a("buffer_load_dword v%d, v10, %s, s%d offen %s" % (100 + k, s(rW2, 4), sT1, cfg.t2pol))
            a("s_add_u32 s%d, s%d, %d" % (sT1, sT1, (64 >> sh) * 4096))
            if cfg.t2gap:
                a.drain_vm()
    if cfg.touch2 == 1 or cfg.refresh:
        sv = cfg.t2pol
        if cfg.refresh:
            cfg.t2pol = ''
        touch_w2()
        cfg.t2pol = sv
    if cfg.late:
        a("s_cmp_ge_u32 s%d, 30" % sJ)
        a("s_cbranch_scc1 L_w7_nl")
        lds_wait(28 if cfg.late == 1 else 0, 4 if cfg.late == 1 else 1, 10, 11, sleep=4)
        a.label("L_w7_nl")
    if cfg.nox:
        for k in range(8):
            a("s_mov_b32 s%d, 0x%x" % (sT2, ST + (32 << cfg.stsh) * k))
            a("buffer_load_dwordx4 %s, v7, %s, s%d offen sc1" % (v(80 + 4 * k, 4), s(rWS, 4), sT2), tag="st%d" % k)
    a("s_mov_b64 exec, s[100:101]")
    for k in range(16):
        a("buffer_load_dwordx4 %s, v5, %s, s96 offen sc1" % (v(16 + 4 * k, 4), s(rWS, 4)), tag="u%d" % k)
        if k < 15:
            a("s_add_u32 s96, s96, %d" % (16 * 10240))
    a("s_mov_b64 exec, -1")
    a("s_cmp_lg_u32 s%d, 0" % sID)
    a("s_cbranch_scc1 L_noE")
    a("s_add_u32 s14, s%d, 0x%x" % (pWS, EW))
    a("s_addc_u32 s15, s%d, 0" % (pWS + 1))
    a("s_mov_b32 s7, s%d" % sTAG)
    a("s_atomic_swap s7, s[14:15], 0")
    a("s_waitcnt lgkmcnt(0)")
    a.label("L_noE")
    if cfg.nox:
        for k in range(8):
            a.wait_vm("st%d" % k)
            a("ds_write_b128 v2, %s offset:%d" % (v(80 + 4 * k, 4), RY + 1024 * k))
        if not cfg.t7:
            lds_arrive(48, 12, 13)
        if cfg.t7:
            a("v_lshlrev_b32 v12, 5, v8")
            a("v_mov_b32 v13, 0x3f80")
            SR, TB_ = 112, 240
            def srd_(k):
                a("ds_read_b128 %s, v12 offset:%d" % (v(SR + 8 * k, 4), RY + 512 * k), tag="s%d" % k)
                a("ds_read_b128 %s, v12 offset:%d" % (v(SR + 8 * k + 4, 4), RY + 512 * k + 16), tag="s%d" % k)
            for k in range(6):
                srd_(k)
            for k in range(16):
                H_, S_, T_ = 16 + 4 * k, SR + 8 * k, TB_ + 8 * (k & 1)
                a.wait_vm("u%d" % k)
                for q in range(4):
                    a("v_lshl_or_b32 v%d, v%d, 16, v13" % (T_ + 2 * q, H_ + q))
                    a("v_and_or_b32 v%d, v%d, s%d, v13" % (T_ + 2 * q + 1, H_ + q, sMASK))
                a.wait_lg("s%d" % k)
                if k + 6 < 16:
                    srd_(k + 6)
                for q in range(8):
                    a("v_dot2_f32_bf16 v%d, v%d, v%d, 0" % (S_ + q, S_ + q, T_ + q))
                if k:
                    for q in range(4):
                        a("v_cvt_pk_bf16_f32 v%d, v%d, v%d" % (H_ - 4 + q, S_ - 8 + 2 * q, S_ - 8 + 2 * q + 1))
            for q in range(4):
                a("v_cvt_pk_bf16_f32 v%d, v%d, v%d" % (76 + q, SR + 120 + 2 * q, SR + 120 + 2 * q + 1))
    if not cfg.sepu:
        a("v_mov_b32 v12, %d" % (CNT + 20))
        a("v_mov_b32 v13, s%d" % sT3)
        a("s_mov_b64 exec, 1")
        a("ds_add_u32 v12, v13")
        a("s_mov_b64 exec, -1")
        lds_wait(20, 3, 12, 13, sleep=2)
    a("s_mov_b64 exec, s[100:101]")
    for k in range(16):
        a.wait_vm("u%d" % k)
        a("ds_write_b128 v4, %s offset:%d" % (v(16 + 4 * k, 4), U_OFF + 256 * k))
    a("s_mov_b64 exec, -1")
    a.drain_lg()
    lds_arrive(24, 12, 13)
    stamp(9)
    if cfg.nox and not cfg.t7:
        a("s_and_b32 s%d, s%d, 1" % (sT3, sJ))
        a("s_sub_u32 s%d, 3, s%d" % (sT3, sT3))
        lds_wait(44, "s%d" % sT3, 10, 11, sleep=2)
    if cfg.helper:
        a("s_setprio %d" % cfg.cprio)
        assert NH <= 6
        a("s_mov_b32 s%d, 0" % sRB)
        a("v_mov_b32 v6, %d" % CNT)
        conv_addr(sRB)
        hseq = []
        for c in range(2):
            rest = list(range(NH))
            while rest:
                hseq.append((c, rest.pop(0)))
                if rest:
                    hseq.append((c, rest.pop()))
        def hregs(ch):
            b = ch & 1
            return 16 + 24 * b, 64 + 96 * b, 112 + 96 * b
        def hreads(ch):
            HA, HK, HU = hregs(ch)
            if ch:
                for r in (vUA, vKA + 2, vKA + 3):
                    a("v_add_u32 v%d, %d, v%d" % (r, S, r))
            for c in range(2):
                for tau in range(NT, 16):
                    o = 192 - 64 * (tau & 3) + 32 * (1 - c)
                    r = HK + 4 * (NH * c + tau - NT)
                    a("ds_read2_b32 %s, v%d offset0:%d offset1:%d" % (v(r, 2), vKA + (tau >> 2), o, o + 1), tag="h%d" % ch)
                    a("ds_read2_b32 %s, v%d offset0:%d offset1:%d" % (v(r + 2, 2), vKA + (tau >> 2), o + 2, o + 3), tag="h%d" % ch)
            for n, (cc, mu) in enumerate(hseq):
                a("ds_read_b128 %s, v%d offset:%d" % (v(HU + 4 * n, 4), vUA, 128 * (1 - cc) + 256 * mu), tag="h%d" % ch)
        hreads(0)
        for ch in range(3):
            HA, HK, HU = hregs(ch)
            a.drain_lg()
            if ch:
                lds_arrive(36, 8, 9)
            if ch == 2:
                a("s_bitcmp1_b32 s%d, 0" % sJ)
                a("s_cbranch_scc1 L_hdone")
            hf_ = a.capture(hreads, ch + 1) if ch < 2 else []
            cnt = 0
            for n, (c, mu) in enumerate(hseq):
                if n % 4 == 0 and cfg.pause:
                    if n:
                        a.wait_lg("pz")
                        a("v_cmp_ne_u32 vcc, v8, v9")
                        a("s_cbranch_vccnz L_pz%d" % (100 + 20 * ch + n))
                        a.label("L_np%d" % (100 + 20 * ch + n))
                        hstubs.append(100 + 20 * ch + n)
                    if n + 4 < len(hseq):
                        a("ds_read2_b32 v[8:9], v6 offset0:0 offset1:7", tag="pz")
                for tau in range(NT, 16 - mu):
                    acc = v(HA + 4 * (tau + mu - NT), 4)
                    a("v_mfma_f32_16x16x32_bf16 %s, %s, %s, %s" % (acc, v(HK + 4 * (NH * c + tau - NT), 4), v(HU + 4 * n, 4), acc if n else "0"))
                    if hf_:
                        a.play(hf_.pop(0))
            for it in hf_:
                a.play(it)
            for q in range(NH):
                a("ds_write_b128 v2, %s offset:%d" % (v(HA + 4 * q, 4), ch * S + 1024 * q))
        a.drain_lg()
        lds_arrive(36, 8, 9)
        a.label("L_hdone")
        a.drain_lg()
        a("s_setprio %d" % cfg.uprio)
        stamp(8)
    if cfg.ywait:
        a("s_cmp_ge_u32 s%d, 30" % sJ)
        a("s_cbranch_scc1 L_yw")
        lds_wait(28, 4, 10, 11, sleep=8)
        a.label("L_yw")
    if cfg.ssig:
        a("s_and_b32 s%d, s%d, 63" % (sT1, sID))
        a("s_lshl_b32 s%d, s%d, 7" % (sT1, sT1))
    else:
        a("s_lshl_b32 s%d, s%d, 7" % (sT1, sID))
    a("s_add_u32 s%d, s%d, 0x%x" % (sT1, sT1, YC))
    if not cfg.noya:
        spoll(sT1, cfg.ysleep, target=32 if (cfg.ywg and cfg.ssig) else 80)
    stamp(6)
    a("v_lshrrev_b32 v8, 3, v0")
    a("v_lshlrev_b32 v8, 12, v8")
    a("v_and_b32 v9, 7, v0")
    a("v_lshl_add_u32 v8, v9, 4, v8")
    a("s_mul_i32 s%d, s%d, %d" % (sT0, sDT2, 80 * 4096))
    a("s_lshl_b32 s%d, s%d, 7" % (sT1, sST))
    a("s_add_u32 s%d, s%d, s%d" % (sT0, sT0, sT1))
    a("s_add_u32 s%d, s%d, 0x%x" % (sT0, sT0, YA))
    for k in range(10):
        a("buffer_load_dwordx4 %s, v8, %s, s%d offen sc1" % (v(16 + 4 * k, 4), s(rWS, 4), sT0), tag="y%d" % k)
        if k < 9:
            a("s_add_u32 s%d, s%d, %d" % (sT0, sT0, 8 * 4096))
    for k in range(10):
        a.wait_vm("y%d" % k)
        a("ds_write_b128 v2, %s offset:%d" % (v(16 + 4 * k, 4), RY + 1024 * k))
    stamp(7)
    finish()
    emit_stubs(hstubs)
    a.label("L_exit")
    a("s_endpgm")
    a.label("L_code_end")
    return a

HEADER = open("cdna_kernels/%s.s.ref" % NAME).read().split("; Override launch")[0]

DOC = """;
;            MFMA-fragment-blocked layout [token/8][channel][8] plus the per-token (mean, std) of the
"""

def full(cfg):
    a = gen(cfg)
    out = HEADER
    out += "; @launch grid=(256,1,1) block=(512,1,1) lds=%d\n" % LDS_BYTES
    out += DOC
    out += '.amdgcn_target "amdgcn-amd-amdhsa--gfx950"\n.text\n.globl %s_kernel\n.p2align 8\n.type %s_kernel,@function\n' % (NAME, NAME)
    out += a.text()
    out += """.section .rodata,"a"
.p2align 6
.amdhsa_kernel %s_kernel
  .amdhsa_next_free_vgpr 256
  .amdhsa_next_free_sgpr 102
  .amdhsa_accum_offset 256
  .amdhsa_group_segment_fixed_size 0
  .amdhsa_kernarg_size 136
  .amdhsa_user_sgpr_count 2
  .amdhsa_user_sgpr_kernarg_segment_ptr 1
  .amdhsa_system_sgpr_workgroup_id_x 1
  .amdhsa_float_denorm_mode_32 3
.end_amdhsa_kernel
""" % NAME
    return out, a

if __name__ == "__main__":
    cfg = Cfg()
    outp = "cdna_kernels/%s.s" % NAME
    for arg in sys.argv[1:]:
        k, val = arg.split("=")
        if k == "out":
            outp = val
        else:
            cur = getattr(cfg, k)
            setattr(cfg, k, val if isinstance(cur, str) else (bool(int(val)) if isinstance(cur, bool) else int(val)))
    txt, a = full(cfg)
    open(outp, "w").write(txt)
    print("wrote", outp, "instr", a.ninst, "pad states", a.npad)
```

```python
import sys, struct, math
from asmlib import Asm, v, s

NAME = "parallel_sum__ssm_conv_s4__mixer_token_mlp__prompt"

def f32(x):
    return "0x%08x" % struct.unpack("<I", struct.pack("<f", x))[0]

class Cfg:
    ts = False
    spin = 32768
    depth1 = 2
    depth2 = 2
    out_pol = ""
    stop = 99
    xpol = ''
    ppol = ''
    tpol = ''
    t2pol = ''
    map8 = 1
    map1 = 8
    map2 = 8
    t2gap = 0
    late = 0
    fsh = 7
    touch1 = 0
    xtl = 1
    kprio = 1
    pre1 = 0
    touch2 = 0
    tdep = 1
    laten = 1
    psat = -1
    pprio = 3
    lateinit = 1
    w7dma = 0
    w7thr = 16
    warm = 0
    kf0 = 8
    fastp = 1
    xprio = 3
    kv3 = 1
    lateb2 = 2
    zc = 0
    dupc = 1
    p4s = 0
    sepu = 1
    kg2 = 3
    tprio = 3
    t7 = 0
    keepk = 0
    c16k = 9
    nox = 1
    stsh = 5
    exactln = 0
    xnlate = 0
    xnat = 2
    NT = 10
    helper = 0
    skip2 = 0
    skip1 = 0
    noya = 0
    fake = 0
    ysync = 0
    ng1 = 10
    P1 = 15
    pK = 0
    pP = 3
    pG = 2
    pW = 3
    ywg = 1
    stouch = 0
    ywait = 1
    ssig = 1
    pbal = 0
    pth = 1
    ln4 = 1
    w7mb = 1
    e0at = 55
    nr1 = 12
    nr2 = 16
    noxn = 0
    hold = 0
    hx = -1
    fillk = 1
    noload = 0
    xm1 = 2
    fm1 = 0
    xm2 = 3
    fm2 = 0
    nokw = 0
    nopk = 0
    cprio = 0
    eprio = 3
    lateb = 0
    nagg = 8
    wrot1 = 1
    wrot2 = 1
    prea = 0
    preb = 1
    prec = 1
    swz = 0
    fine = 1
    c8k = 13
    uprio = 3
    refresh = 0
    e1 = 2
    e0 = 2
    nt1 = 0
    nt2 = 0
    pause = 1
    psleep = 0
    asleep = 0
    badmap = False
    dbg = False
    dbgw = 8
    nomfma = False
    apol = 'sc1'
    noadv = False
    noconv = False
    rotm1 = 0
    rotk1 = 0
    rotm2 = 0
    rotk2 = 0
    nsh1 = 1
    sub1 = 2
    nsh2 = 1
    sub2 = 2
    rot3 = 0
    ysleep = 2

HB, XB, GB, YA = 0, 0x280000, 0x500000, 0x700000
FL = 0xA00000
HF, XF, GF, YF, EW = FL, FL + 0x10000, FL + 0x20000, FL + 0x40000, FL + 0x60000
XF2 = FL + 0x20000
ST = FL + 0x40000
MB, YC = FL + 0x80000, FL + 0x10000
TSO = 0xB00000
WS_BYTES = 0xC00000
S = 12576
RY = 3 * S
CNT = RY + 10240
STA = CNT + 64
BIA = CNT + 96
WOFF = 49152
WSZ = 28672
LDS_BYTES = 163840
KB_OFF, ZP_OFF, U_OFF = 4160, 8256, 8480
TB_OFF = U_OFF + 16
sID, sWV, sX, sJ, sTAG = 2, 3, 4, 5, 6
pX, pARE, pAIM, pBRE, pBIM, pCRE, pCIM, pLDT, pDSK, pBX, pW1, pB1, pW2, pB2, pOUT, pDBG, pWS = [16 + 2 * i for i in range(17)]
rWS, rX, rW1, rW2, rOUT, rCODE = 52, 56, 60, 64, 68, 72
rB = rCODE
sDT, sFT, sDT2, sST, sWB = 76, 77, 78, 79, 80
sOW, sOWB, sOWE = 81, 82, 83
sOA, sOAB, sOAE = 84, 85, 86
sD = [87, 88, 89, 90]
sT0, sT1, sT2, sT3 = 8, 9, 10, 11
sCNT = 12
sORD1, sORD2 = (50, 51), (91, 92)
sPOS, sCH, sRB = 93, 94, 95
sDRY = 99
sMASK = 13
vL, vTS = 0, 15

def gen(cfg):
    global sDRY
    sDRY = 95
    a = Asm()
    nts = [0]
    def stamp(idx):
        if cfg.hx == idx and cfg.hold and stamp.gemm:
            a("s_memrealtime s[100:101]")
            a("s_waitcnt lgkmcnt(0)"); a.lg = []
            a("s_sub_u32 s99, s100, s98")
        if not cfg.ts:
            return
        a("s_memrealtime s[98:99]")
        a("s_waitcnt lgkmcnt(0)"); a.lg = []
        a("v_writelane_b32 v%d, s98, %d" % (vTS, idx))
        if idx in (0, 4, 5, 9, 10, 11):
            a("s_memtime s[98:99]")
            a("s_waitcnt lgkmcnt(0)")
            a("v_writelane_b32 v%d, s98, %d" % (vTS, 48 + idx))

    stamp.gemm = True
    def finish():
        if cfg.ts:
            a("s_lshl_b32 s%d, s%d, 3" % (sT0, sID))
            a("s_add_u32 s%d, s%d, s%d" % (sT0, sT0, sWV))
            a("s_lshl_b32 s%d, s%d, 8" % (sT0, sT0))
            a("s_add_u32 s%d, s%d, 0x%x" % (sT0, sT0, TSO))
            a("v_lshlrev_b32 v1, 2, v%d" % vL)
            a("buffer_store_dword v%d, v1, %s, s%d offen" % (vTS, s(rWS, 4), sT0))
            if cfg.dbg:
                n = nts[0]; nts[0] += 1
                a("s_lshl_b32 s%d, s%d, 3" % (sT0, sID))
                a("s_add_u32 s%d, s%d, s%d" % (sT0, sT0, sWV))
                a("s_cmp_lg_u32 s%d, %d" % (sT0, cfg.dbgw))
                a("s_cbranch_scc1 L_nodbg%d" % n)
                a("v_readlane_b32 s%d, v%d, 0" % (sT0, vTS))
                a("v_subrev_u32 v2, s%d, v%d" % (sT0, vTS))
                a("s_mov_b64 exec, 0xffff")
                a("global_store_dword v1, v2, %s" % s(pDBG, 2))
                a.label("L_nodbg%d" % n)
        a("s_waitcnt vmcnt(0) lgkmcnt(0)")
        a("s_endpgm")

    def srd(r, p, nbytes):
        a("s_mov_b32 s%d, s%d" % (r, p))
        a("s_and_b32 s%d, s%d, 0xffff" % (r + 1, p + 1))
        a("s_mov_b32 s%d, 0x%x" % (r + 2, nbytes))
        a("s_mov_b32 s%d, 0x20000" % (r + 3))

    npoll = [0]
    def poll(voffs, soffs, vdata, sleep=4, lanes=64):
        n = npoll[0]; npoll[0] += 1
        a("s_mov_b32 s%d, %d" % (sCNT, cfg.spin))
        if lanes < 64:
            a("s_mov_b64 exec, %d" % ((1 << lanes) - 1))
        a.label("L_poll%d" % n)
        for k, (vo, so) in enumerate(zip(voffs, soffs)):
            a("buffer_load_dword v%d, v%d, %s, s%d offen sc1" % (vdata + k, vo, s(rWS, 4), so))
        a.drain_vm()
        a("v_cmp_ne_u32 vcc, s%d, v%d" % (sTAG, vdata))
        for k in range(1, len(voffs)):
            a("v_cmp_ne_u32 s[14:15], s%d, v%d" % (sTAG, vdata + k))
            a("s_or_b64 vcc, vcc, s[14:15]")
        a("s_cmp_eq_u64 vcc, 0")
        a("s_cbranch_scc1 L_pollok%d" % n)
        a("s_sub_u32 s%d, s%d, 1" % (sCNT, sCNT))
        a("s_cmp_eq_u32 s%d, 0" % sCNT)
        a("s_cbranch_scc1 L_pollok%d" % n)
        a("s_mov_b64 exec, vcc")
        if sleep:
            a("s_sleep %d" % sleep)
        a("s_branch L_poll%d" % n)
        a.label("L_pollok%d" % n)
        a("s_mov_b64 exec, -1")

    def spoll_pre(soff):
        a("s_add_u32 s14, s%d, s%d" % (pWS, soff))
        a("s_addc_u32 s15, s%d, 0" % (pWS + 1))
        a("s_load_dword s7, s[14:15], 0 glc")
    def spoll(soff, sleep=1, target=None, pre=False):
        n = npoll[0]; npoll[0] += 1
        if not pre:
            a("s_add_u32 s14, s%d, s%d" % (pWS, soff))
            a("s_addc_u32 s15, s%d, 0" % (pWS + 1))
        a("s_mov_b32 s%d, %d" % (sCNT, cfg.spin * 2))
        if pre:
            a("s_branch L_sq%d" % n)
        a.label("L_sp%d" % n)
        a("s_load_dword s7, s[14:15], 0 glc")
        a.label("L_sq%d" % n)
        a("s_waitcnt lgkmcnt(0)"); a.lg = []
        if target is None:
            a("s_cmp_eq_u32 s7, s%d" % sTAG)
        else:
            a("s_cmp_eq_u32 s7, %d" % target)
        a("s_cbranch_scc1 L_spok%d" % n)
        if sleep:
            a("s_sleep %d" % sleep)
        a("s_sub_u32 s%d, s%d, 1" % (sCNT, sCNT))
        a("s_cmp_lg_u32 s%d, 0" % sCNT)
        a("s_cbranch_scc1 L_sp%d" % n)
        a.label("L_spok%d" % n)

    def group_ids(vdst, vtmp, sg, shift):
        if cfg.map2 == 8:
            a("v_and_b32 v%d, 24, v0" % vdst)
            a("v_lshlrev_b32 v%d, 3, v%d" % (vdst, vdst))
            a("v_and_b32 v%d, 7, v0" % vtmp)
            a("v_add_u32 v%d, v%d, v%d" % (vdst, vdst, vtmp))
            a("s_lshl_b32 s%d, s%d, 3" % (sT0, sg))
        else:
            a("v_and_b32 v%d, 28, v0" % vdst)
            a("v_lshlrev_b32 v%d, 3, v%d" % (vdst, vdst))
            a("v_and_b32 v%d, 3, v0" % vtmp)
            a("v_lshl_add_u32 v%d, v%d, 1, v%d" % (vdst, vtmp, vdst))
            a("s_and_b32 s%d, s%d, 3" % (sT0, sg))
            a("s_lshl_b32 s%d, s%d, 3" % (sT0, sT0))
            a("s_lshr_b32 s14, s%d, 2" % sg)
            a("s_add_u32 s%d, s%d, s14" % (sT0, sT0))
        a("v_add_lshl_u32 v%d, v%d, s%d, %d" % (vdst, vdst, sT0, shift))

    def group_add(voff, soff, vtmp):
        a("v_mov_b32 v%d, 1" % vtmp)
        a("s_mov_b64 exec, 0xffffffff")
        a("buffer_atomic_add v%d, v%d, %s, s%d offen sc1" % (vtmp, voff, s(rWS, 4), soff), tag="flag")
        a("s_mov_b64 exec, -1")

    def sig8(soff, stride):
        a("s_add_u32 s14, s%d, s%d" % (pWS, soff))
        a("s_addc_u32 s15, s%d, 0" % (pWS + 1))
        a("s_mov_b32 s7, 1")
        for x in range(8):
            a("s_atomic_add s7, s[14:15], 0x%x" % (x * stride))

    ng = [0]
    def guard(fn, *args):
        if not cfg.warm:
            fn(*args); return
        n = ng[0]; ng[0] += 1
        a("s_cmp_lg_u32 s%d, 0" % sDRY)
        a("s_cbranch_scc1 L_gd%d" % n)
        fn(*args)
        a.label("L_gd%d" % n)
    def dry_exit(label):
        if cfg.warm:
            a("s_cmp_lg_u32 s%d, 0" % sDRY)
            a("s_cbranch_scc1 %s" % label)

    def flag_store(soff, vtmp0, vtmp1):
        a("v_mov_b32 v%d, s%d" % (vtmp0, sTAG))
        a("v_mov_b32 v%d, 0" % vtmp1)
        a("s_mov_b64 exec, 1")
        a("buffer_store_dword v%d, v%d, %s, s%d offen sc1" % (vtmp0, vtmp1, s(rWS, 4), soff), tag="flag")
        a("s_mov_b64 exec, -1")

    nl = [0]
    def lds_arrive(off, vt0, vt1):
        a("v_mov_b32 v%d, %d" % (vt0, CNT + off))
        a("v_mov_b32 v%d, 1" % vt1)
        a("s_mov_b64 exec, 1")
        a("ds_add_u32 v%d, v%d" % (vt0, vt1))
        a("s_mov_b64 exec, -1")

    def lds_wait(off, target, vt0, vt1, sleep=0):
        n = nl[0]; nl[0] += 1
        a("v_mov_b32 v%d, %d" % (vt0, CNT + off))
        a("s_mov_b32 s%d, 0x%x" % (sCNT, cfg.spin * 64))
        a.label("L_lw%d" % n)
        a("ds_read_b32 v%d, v%d" % (vt1, vt0))
        a.drain_lg()
        a("v_readfirstlane_b32 s%d, v%d" % (sT0, vt1))
        a("s_cmp_ge_u32 s%d, %s" % (sT0, target))
        a("s_cbranch_scc1 L_lwok%d" % n)
        if sleep:
            a("s_sleep %d" % sleep)
        a("s_sub_u32 s%d, s%d, 1" % (sCNT, sCNT))
        a("s_cmp_lg_u32 s%d, 0" % sCNT)
        a("s_cbranch_scc1 L_lw%d" % n)
        a.label("L_lwok%d" % n)

    a.label(NAME + "_kernel")
    a("s_cmp_ge_u32 s2, 256")
    a("s_cbranch_scc1 L_exit")
    if cfg.hold:
        a("s_memrealtime s[98:99]")
    a("s_load_dwordx16 s[16:31], s[0:1], 0")
    a("s_load_dwordx16 s[32:47], s[0:1], 64")
    a("s_load_dwordx2 s[48:49], s[0:1], 128")
    a("s_getpc_b64 s[%d:%d]" % (rCODE, rCODE + 1))
    a.label("L_pc")
    a("v_lshrrev_b32 v1, 6, v0")
    a("v_and_b32 v0, 63, v0")
    if cfg.ts:
        a("v_mov_b32 v%d, 0" % vTS)
    a("v_readfirstlane_b32 s%d, v1" % sWV)
    if cfg.badmap:
        a("s_lshr_b32 s%d, s2, 5" % sX)
        a("s_and_b32 s%d, s2, 31" % sJ)
    else:
        a("s_and_b32 s%d, s2, 7" % sX)
        a("s_lshr_b32 s%d, s2, 3" % sJ)
    a("s_mov_b32 s%d, 0xffff0000" % sMASK)
    a("s_and_b32 s%d, s%d, 0xffff" % (rCODE + 1, rCODE + 1))
    a("s_mov_b32 s%d, L_code_end-L_pc" % (rCODE + 2))
    a("s_mov_b32 s%d, 0x20000" % (rCODE + 3))
    a("s_cmp_lg_u32 s%d, 7" % sWV)
    a("s_cbranch_scc1 L_nopf")
    a("s_lshl_b32 s%d, s%d, 7" % (sT0, sJ))
    a("v_lshlrev_b32 v1, 12, v0")
    a("buffer_load_dword v14, v1, %s, s%d offen" % (s(rCODE, 4), sT0))
    a("v_mov_b32 v21, %d" % CNT)
    for k in range(4):
        a("v_mov_b32 v%d, 0" % (24 + k))
    a("ds_write_b128 v21, v[24:27]")
    a("ds_write_b128 v21, v[24:27] offset:16")
    a("ds_write_b128 v21, v[24:27] offset:32")
    a("ds_write_b128 v21, v[24:27] offset:48")
    a.label("L_nopf")
    a.vm = []; a.lg = []
    a("v_lshlrev_b32 v2, 4, v0")
    a("v_lshlrev_b32 v3, 2, v0")
    a("v_mov_b32 v7, 0")
    a("v_mov_b32 v8, 0")
    nline = 3 if cfg.map1 == 8 else 6
    def tile_math():
        a("s_and_b32 s%d, s%d, 1" % (sT0, sX))
        a("s_lshr_b32 s%d, s%d, 1" % (sT1, sX))
        a("v_mul_u32_u24 v62, 3072, v0")
        a("s_mul_i32 s96, s%d, %d" % (sJ, 64 * 3072))
        if cfg.map1 == 8:
            a("s_mul_i32 s%d, s%d, 26" % (sT2, sJ))
            a("s_lshr_b32 s%d, s%d, 8" % (sT2, sT2))
            a("s_mul_i32 s%d, s%d, 10" % (sT3, sT2))
            a("s_sub_u32 s%d, s%d, s%d" % (sT3, sJ, sT3))
            a("s_mov_b32 s%d, s%d" % (sDT, sT3))
            a("s_mul_i32 s%d, s%d, 3" % (sFT, sX))
        else:
            a("s_mul_i32 s%d, s%d, 13" % (sT2, sJ))
            a("s_lshr_b32 s%d, s%d, 6" % (sT2, sT2))
            a("s_mul_i32 s%d, s%d, 5" % (sT3, sT2))
            a("s_sub_u32 s%d, s%d, s%d" % (sT3, sJ, sT3))
            a("s_mul_i32 s%d, s%d, 5" % (sDT, sT0))
            a("s_add_u32 s%d, s%d, s%d" % (sDT, sDT, sT3))
            a("s_mul_i32 s%d, s%d, 6" % (sFT, sT1))
        a("s_add_u32 s97, s%d, s%d" % (sFT, sWV))
        a("s_lshl_b32 s97, s97, 7")
        a("s_add_u32 s96, s96, s97")
        a("s_cmp_ge_u32 s%d, 3" % sWV)
        a("s_cselect_b32 s96, 0x7f000000, s96")
        a("s_add_u32 s%d, s%d, s%d" % (sFT, sFT, sT2))
        def order(n, nsh, sub, r):
            if nsh <= 1:
                return list(range(n))
            o = []
            g = nsh * sub
            for b in range(0, n, g):
                blk = list(range(b, min(b + g, n)))
                k = (r * sub) % len(blk) if len(blk) == g else (r * len(blk) // nsh) % len(blk)
                o += blk[k:] + blk[:k]
            return o
        def pack(o):
            o = o + [0] * (16 - len(o))
            return sum(x << (4 * i) for i, x in enumerate(o[:8])), sum(x << (4 * i) for i, x in enumerate(o[8:]))
        def sel_list(dst, sidx, orders):
            for r, o in enumerate(orders):
                lo, hi = pack(list(o))
                if r == 0:
                    a("s_mov_b32 s%d, 0x%x" % (dst[0], lo))
                    a("s_mov_b32 s%d, 0x%x" % (dst[1], hi))
                elif o != orders[0]:
                    a("s_cmp_eq_u32 s%d, %d" % (sidx, r))
                    a("s_cselect_b32 s%d, 0x%x, s%d" % (dst[0], lo, dst[0]))
                    a("s_cselect_b32 s%d, 0x%x, s%d" % (dst[1], hi, dst[1]))
        def sel_order(dst, sidx, nidx, n, nsh, sub):
            sel_list(dst, sidx, [order(n, nsh, sub, r % max(nsh, 1)) for r in range(nidx)])
        def rotl(n, k):
            return [(i + k) % n for i in range(n)]
        if cfg.wrot1:
            nd = 30 // nline
            if cfg.ng1 >= nd:
                a("s_mul_i32 s97, s%d, %d" % (sT3, -(-16 * 256 // nd)))
                a("s_lshr_b32 s97, s97, 8")
            else:
                tab = sum((((r % cfg.ng1) * 16) // cfg.ng1) << (4 * r) for r in range(nd))
                a("s_mov_b32 s100, 0x%x" % (tab & 0xffffffff))
                a("s_mov_b32 s101, 0x%x" % (tab >> 32))
                a("s_lshl_b32 s97, s%d, 2" % sT3)
                a("s_lshr_b64 s[100:101], s[100:101], s97")
                a("s_mov_b32 s97, s100")
            a("s_mul_i32 s14, s%d, %d" % (sX, cfg.xm1))
            a("s_add_u32 s97, s97, s14")
            a("s_mul_i32 s14, s%d, %d" % (sT2, cfg.fm1))
            a("s_add_u32 s97, s97, s14")
            a("s_and_b32 s97, s97, 15")
            if cfg.nsh1 > 1:
                sel_order(sORD1, sT2, nline, 16, cfg.nsh1, cfg.sub1)
                a("s_mul_i32 s97, s97, 0x11111111")
                for r in sORD1:
                    a("s_xor_b32 s100, s%d, s97" % r)
                    a("s_and_b32 s100, s100, 0x88888888")
                    a("s_and_b32 s%d, s%d, 0x77777777" % (r, r))
                    a("s_and_b32 s101, s97, 0x77777777")
                    a("s_add_u32 s%d, s%d, s101" % (r, r))
                    a("s_xor_b32 s%d, s%d, s100" % (r, r))
            else:
                a("s_lshl_b32 s97, s97, 2")
                a("s_mov_b32 s100, 0x76543210")
                a("s_mov_b32 s101, 0xfedcba98")
                a("s_lshr_b64 s[%d:%d], s[100:101], s97" % sORD1)
                a("s_sub_u32 s97, 64, s97")
                a("s_lshl_b64 s[100:101], s[100:101], s97")
                a("s_or_b64 s[%d:%d], s[%d:%d], s[100:101]" % (sORD1 + sORD1))
        else:
            sel_order(sORD1, sT2, nline, 16, cfg.nsh1, cfg.sub1)
        if cfg.map2 == 8:
            a("s_and_b32 s%d, s%d, 7" % (sT2, sJ))
            a("s_lshr_b32 s%d, s%d, 3" % (sT3, sJ))
            a("s_mov_b32 s%d, s%d" % (sDT2, sT2))
            a("s_lshl_b32 s%d, s%d, 2" % (sST, sX))
        else:
            a("s_and_b32 s%d, s%d, 3" % (sT2, sJ))
            a("s_lshr_b32 s%d, s%d, 2" % (sT3, sJ))
            a("s_lshl_b32 s%d, s%d, 2" % (sDT2, sT0))
            a("s_add_u32 s%d, s%d, s%d" % (sDT2, sDT2, sT2))
            a("s_lshl_b32 s%d, s%d, 3" % (sST, sT1))
        a("s_add_u32 s%d, s%d, s%d" % (sST, sST, sT3))
        if cfg.wrot2:
            nd = 8 if cfg.map2 == 8 else 4
            a("s_mul_i32 s97, s%d, %d" % (sT2, 24 // nd))
            a("s_mul_i32 s14, s%d, %d" % (sX, cfg.xm2))
            a("s_add_u32 s97, s97, s14")
            a("s_mul_i32 s14, s%d, %d" % (sT3, cfg.fm2))
            a("s_add_u32 s97, s97, s14")
            a("s_lshr_b32 s97, s97, 1")
            a("s_mul_i32 s14, s97, 43")
            a("s_lshr_b32 s14, s14, 9")
            a("s_mul_i32 s14, s14, 12")
            a("s_sub_u32 s97, s97, s14")
            sel_list(sORD2, 97, [rotl(12, r) for r in range(12)])
        else:
            sel_order(sORD2, sT3, 4 if cfg.map2 == 8 else 8, 12, cfg.nsh2, cfg.sub2)
    def chan_math():
        a("s_and_b32 s%d, s%d, 3" % (sT0, sWV))
        a("s_cmp_eq_u32 s%d, 7" % sWV)
        a("s_cselect_b32 s%d, 0, s%d" % (sT0, sT0))
        a("s_mul_i32 s%d, s%d, %d" % (sRB, sT0, S))
        a("s_lshr_b32 s%d, s%d, 1" % (sT1, sJ))
        a("s_mul_i32 s%d, s%d, 5" % (sT1, sT1))
        a("s_and_b32 s%d, s%d, 1" % (sT2, sJ))
        a("s_mul_i32 s%d, s%d, 3" % (sT2, sT2))
        a("s_add_u32 s%d, s%d, s%d" % (sT1, sT1, sT2))
        a("s_add_u32 s%d, s%d, s%d" % (sT1, sT1, sT0))
        a("s_min_u32 s%d, s%d, 79" % (sT1, sT1))
        a("s_and_b32 s%d, s%d, 35" % (sT2, sT1))
        a("s_and_b32 s%d, s%d, 12" % (sT3, sT1))
        a("s_lshl_b32 s%d, s%d, 1" % (sT3, sT3))
        a("s_or_b32 s%d, s%d, s%d" % (sT2, sT2, sT3))
        a("s_and_b32 s%d, s%d, 16" % (sT3, sT1))
        a("s_lshr_b32 s%d, s%d, 2" % (sT3, sT3))
        a("s_or_b32 s%d, s%d, s%d" % (sT2, sT2, sT3))
        a("s_cmp_ge_u32 s%d, 64" % sT1)
        a("s_cselect_b32 s%d, s%d, s%d" % (sT2, sT1, sT2))
        a("s_mul_i32 s%d, s%d, 80" % (sT3, sX))
        a("s_add_u32 s%d, s%d, s%d" % (sPOS, sT3, sT1))
        a("s_add_u32 s%d, s%d, s%d" % (sCH, sT3, sT2))
        a("s_mul_i32 s%d, s%d, 384" % (sT0, sCH))
        a("v_add_u32 v10, s%d, v3" % sT0)
        a("v_lshlrev_b32 v11, 1, v0")
        a("v_add_u32 v11, s%d, v11" % sT0)
        a("s_lshl_b32 s%d, s%d, 1" % (sT0, sCH))
        a("v_mov_b32 v12, s%d" % sT0)
    if cfg.ln4:
        chan_math()
    a("s_lshl_b32 s%d, s2, %d" % (sT0, 2 if cfg.ln4 else 3))
    a("s_add_u32 s%d, s%d, s%d" % (sT0, sT0, sWV))
    a("s_mul_i32 s%d, s%d, %d" % (sT0, sT0, 2560 if cfg.ln4 else 1280))
    for r, nb in ((rX, 2621440), (rWS, WS_BYTES), (rW1, 2048 * 3072), (rW2, 1536 * 4096), (rOUT, 2621440)):
        a("s_mov_b32 s%d, 0x%x" % (r + 2, nb))
        a("s_mov_b32 s%d, 0x20000" % (r + 3))
    def srd_bases(lst):
        for r, p in lst:
            a("s_mov_b32 s%d, s%d" % (r, p))
            a("s_and_b32 s%d, s%d, 0xffff" % (r + 1, p + 1))
    def eload():
        a("s_add_u32 s14, s%d, 0x%x" % (pWS, EW))
        a("s_addc_u32 s15, s%d, 0" % (pWS + 1))
        a("s_load_dword s7, s[14:15], 0")
    def stamp0():
        stamp(0)
        if cfg.ts:
            a("s_getreg_b32 s98, hwreg(HW_REG_XCC_ID)")
            a("v_writelane_b32 v%d, s98, 40" % vTS)
            a("s_getreg_b32 s98, hwreg(HW_REG_HW_ID)")
            a("v_writelane_b32 v%d, s98, 41" % vTS)
    SB, SS = WOFF + 16384, WSZ
    a("s_mul_i32 s%d, s%d, %d" % (sT2, sWV, 1408 if cfg.ln4 else 704))
    a("s_add_u32 s%d, s%d, %d" % (sT2, sT2, SB))
    a("v_add_u32 v61, %d, v2" % (SS - 640))
    a("v_cmp_gt_u32 vcc, 40, v0")
    a("v_cndmask_b32 v60, v61, v2, vcc")
    a("v_add_u32 v60, s%d, v60" % sT2)
    a("s_add_u32 s%d, s%d, %d" % (sT2, sT2, SS + 384))
    a("v_add_u32 v61, s%d, v3" % sT2)
    if cfg.nox:
        assert not cfg.xnlate
        a("s_lshl_b32 s%d, s%d, %d" % (sT2, sWV, 3 if cfg.ln4 else 2))
        a("s_add_u32 s%d, s%d, %d" % (sT2, sT2, STA))
        a("v_mov_b32 v59, s%d" % sT2)
    vPA = [4, 5, 6, 7, 8]
    PRM0, PRM1, vLDT, vDSK = 84, 90, 96, 97
    def param_loads():
        for k, p in enumerate([pARE, pAIM, pBRE, pBIM, pCRE, pCIM]):
            a("global_load_dword v%d, v10, %s %s" % (PRM0 + k, s(p, 2), cfg.ppol), tag="p")
            a("global_load_ushort v%d, v11, %s offset:256 %s" % (PRM1 + k, s(p, 2), cfg.ppol), tag="p")
        a("global_load_ushort v%d, v12, %s" % (vLDT, s(pLDT, 2)), tag="p")
        a("global_load_ushort v%d, v12, %s" % (vDSK, s(pDSK, 2)), tag="p")
    def x_loads():
        srd_bases([(rX, pX)])
        a("buffer_load_dwordx4 v[16:19], v2, %s, s%d offen %s" % (s(rX, 4), sT0, cfg.xpol), tag="x")
        a("buffer_load_dword v20, v3, %s, s%d offen offset:1024 %s" % (s(rX, 4), sT0, cfg.xpol), tag="x")
        if cfg.ln4:
            a("buffer_load_dwordx4 v[64:67], v2, %s, s%d offen offset:1280 %s" % (s(rX, 4), sT0, cfg.xpol), tag="x")
            a("buffer_load_dword v68, v3, %s, s%d offen offset:2304 %s" % (s(rX, 4), sT0, cfg.xpol), tag="x")
    def common_tail():
        stamp0()
        eload()
        srd_bases([(rWS, pWS), (rW1, pW1), (rW2, pW2), (rOUT, pOUT)])
    if cfg.ln4:
        a("s_cmp_ge_u32 s%d, 4" % sWV)
        a("s_waitcnt lgkmcnt(0)")
        a("s_cbranch_scc1 L_nox")
        x_loads()
        vm_x = list(a.vm)
        a.label("L_nox")
        a("s_cmp_lt_u32 s%d, 4" % sWV)
        if not cfg.lateb2:
            a("s_barrier")
        a("s_cbranch_scc1 L_gemm_pre")
        a.vm = []
        a("s_cmp_eq_u32 s%d, 7" % sWV)
        a("s_cbranch_scc1 L_w7_pre")
        param_loads()
        aux_vm = list(a.vm)
        stamp0()
        srd_bases([(rWS, pWS)])
        if cfg.lateb2 == 2:
            a("s_barrier")
        a("s_branch L_aux_main")
        a.label("L_w7_pre")
        a.vm = []
        common_tail()
    else:
        a("s_waitcnt lgkmcnt(0)")
        if cfg.hold:
            a("s_mov_b32 s99, 0")
        x_loads()
        common_tail()
        vm_common = list(a.vm)
        a("s_cmp_lt_u32 s%d, 4" % sWV)
        a("s_cbranch_scc1 L_gemm_pre")
        chan_math()
        a("s_cmp_eq_u32 s%d, 7" % sWV)
        a("s_cbranch_scc1 L_w7_pre")
        param_loads()
        a.wait_vm("x")
        aux_vm = list(a.vm)
        a("s_branch L_ln")
        a.label("L_w7_pre")
        a.vm = list(vm_common)
    a("v_lshrrev_b32 v10, 4, v0")
    a("v_and_b32 v11, 3, v0")
    a("v_bfe_u32 v12, v0, 2, 2")
    a("s_movk_i32 s%d, 704" % sT0)
    a("v_mul_lo_u32 v12, v12, s%d" % sT0)
    a("v_add_u32 v12, %d, v12" % SB)
    for q in range(5):
        a("v_add_u32 v21, %d, v10" % (4 * q))
        a("v_mul_u32_u24 v22, 13, v21")
        a("v_lshrrev_b32 v22, 6, v22")
        a("v_mul_u32_u24 v23, 5, v22")
        a("v_sub_u32 v21, v21, v23")
        a("v_lshrrev_b32 v23, 1, v21")
        a("v_lshlrev_b32 v23, 5, v23")
        a("v_and_b32 v24, 1, v21")
        a("v_lshl_add_u32 v23, v24, 2, v23")
        a("v_lshlrev_b32 v24, 3, v11")
        a("v_lshlrev_b32 v25, 2, v11")
        a("v_cmp_eq_u32 vcc, 4, v21")
        a("v_cndmask_b32 v24, v24, v25, vcc")
        a("v_add_u32 v23, v23, v24")
        a("v_mul_u32_u24 v22, 80, v22")
        a("v_add_u32 v23, v23, v22")
        a("v_lshl_add_u32 v%d, v23, 1, v12" % vPA[q])
    if cfg.ln4:
        a("s_setprio 3")
        if cfg.lateb2:
            a("s_barrier")
        lds_wait(8, 4, 12, 13)
        a("s_add_u32 s%d, s7, 0x9E3779B9" % sTAG)
        a("s_branch L_pub")
        a.label("L_gemm_pre")
        a.vm = list(vm_x)
        srd_bases([(rX, pX)])
        common_tail()
    else:
        a.wait_vm("x")
        a("s_branch L_ln")
        a.label("L_gemm_pre")
        a.vm = list(vm_common)
    tile_math()

    vTR = [2, 3, 4, 5]
    vFO, vDO, vPO, vPD = 6, 7, 8, 9
    ACC1, STG1, WREG1 = 16, 80, 128
    ACC2, STG2, WREG2, XR = 16, 96, 160, 148
    NR1, NR2 = cfg.nr1, cfg.nr2

    def dma_voff(rowbytes, gemm1):
        a("v_lshrrev_b32 v10, 3, v0")
        if cfg.swz == 0:
            a("v_and_b32 v11, 6, v10")
        else:
            a("v_and_b32 v11, 2, v10")
            a("v_lshlrev_b32 v11, 1, v11")
        a("v_and_b32 v12, 7, v0")
        a("v_xor_b32 v12, v12, v11")
        a("v_lshlrev_b32 v12, 4, v12")
        if gemm1:
            a("v_and_b32 v11, 4, v10")
            a("v_add_u32 v10, v10, v11")
        a("s_mov_b32 s%d, %d" % (sT0, rowbytes))
        a("v_mul_lo_u32 v10, v10, s%d" % sT0)
        a("v_add_u32 v%d, v10, v12" % vDO)

    def setoff(dst, base, ordr, step, stepbytes):
        wd = 4
        if dst == sOA and ((cfg.fake & 1 and ordr == sORD1) or (cfg.fake & 2 and ordr == sORD2)):
            wd = 2
        a("s_bfe_u32 s%d, s%d, 0x%x" % (dst, ordr[step >> 3], (wd << 16) | (4 * (step & 7))))
        a("s_mul_i32 s%d, s%d, %d" % (dst, dst, stepbytes))
        a("s_add_u32 s%d, s%d, s%d" % (dst, dst, base))

    def dma_step(srdreg, slot, consts, stepbytes, tag, pol=''):
        setoff(sOW, sOWB, sORD1 if srdreg == rW1 else sORD2, int(tag[1:]), stepbytes)
        for b in range(4):
            a("s_add_u32 m0, s%d, %d" % (sWB, slot * 4096 + b * 1024))
            if consts[b]:
                a("s_add_u32 s%d, s%d, %d" % (sT0, sOW, consts[b]))
                so = sT0
            else:
                so = sOW
            a("buffer_load_dwordx4 v%d, %s, s%d offen %s lds" % (vDO, s(srdreg, 4), so, pol), tag=tag)

    C1 = [(16 * (b & 1) + 4 * (b >> 1)) * 3072 for b in range(4)]
    C2 = [8 * b * 4096 for b in range(4)]

    def tr_step(slot, wreg, tag):
        for n in range(4):
            for e in range(2):
                a("ds_read_b64_tr_b16 %s, v%d offset:%d" % (v(wreg + 4 * n + 2 * e, 2), vTR[n], slot * 4096 + e * 2048), tag=tag)

    def touch_w1():
        a("buffer_load_dword v63, v62, %s, s96 offen %s" % (s(rW1, 4), cfg.tpol), tag="tch")
    def touch_w2s():
        a("v_lshrrev_b32 v8, 2, v0")
        a("v_lshlrev_b32 v8, 12, v8")
        a("v_and_b32 v9, 3, v0")
        a("v_lshl_add_u32 v8, v9, 7, v8")
        a("v_mov_b32 v9, 0x7f000000")
        a("v_cmp_gt_u32 vcc, 48, v0")
        a("v_cndmask_b32 v8, v9, v8, vcc")
        a("s_lshl_b32 s97, s%d, 2" % sJ)
        a("s_add_u32 s97, s97, s%d" % sWV)
        a("s_mul_i32 s97, s97, %d" % (12 * 4096))
        a("s_lshl_b32 s%d, s%d, 9" % (sT2, sX))
        a("s_add_u32 s97, s97, s%d" % sT2)
    def touch_w2i():
        a("buffer_load_dword v9, v8, %s, s97 offen %s" % (s(rW2, 4), cfg.t2pol), tag="tch")
    def touch_w1b():
        if nline == 6:
            a("buffer_load_dword v63, v62, %s, s96 offen offset:384 %s" % (s(rW1, 4), cfg.tpol), tag="tch")
    a("s_mov_b64 exec, 0xffffffff")
    srd(rB, pB1, 3072)
    a("s_lshl_b32 s%d, s%d, 7" % (sT0, sFT))
    a("s_mov_b32 m0, %d" % BIA)
    a("buffer_load_dword v3, %s, s%d offen lds" % (s(rB, 4), sT0), tag="b")
    srd(rB, pB2, 4096)
    a("s_lshl_b32 s%d, s%d, 7" % (sT0, sST))
    a("s_mov_b32 m0, %d" % (BIA + 128))
    a("buffer_load_dword v3, %s, s%d offen lds" % (s(rB, 4), sT0), tag="b")
    a("s_mov_b64 exec, -1")
    if cfg.touch1 == 1:
        touch_w1()
    if cfg.touch2 in (3, 4, 5, 7):
        touch_w2s()
    if cfg.touch2 == 4:
        touch_w2i()
    a("s_setprio 2")
    a("s_mul_i32 s%d, s%d, %d" % (sWB, sWV, WSZ))
    a("s_add_u32 s%d, s%d, %d" % (sWB, sWB, WOFF))
    dma_voff(3072, True)
    a("s_mul_i32 s%d, s%d, %d" % (sOWB, sWV, 512 * 3072))
    a("s_lshl_b32 s%d, s%d, 7" % (sT0, sFT))
    a("s_add_u32 s%d, s%d, s%d" % (sOWB, sOWB, sT0))
    a("s_cmp_ge_u32 s%d, 30" % sJ)
    a("s_cselect_b32 s%d, 0x7f000000, s%d" % (sOWB, sOWB))
    def dma1(k):
        if 15 - cfg.skip1 <= k < 15:
            return
        dma_step(rW1, k % 7, C1, 32 * 3072, "w%d" % k, cfg.tpol if k < cfg.nt1 else '')
    for i in range(cfg.prea):
        dma1(i)
    if cfg.ln4 and cfg.lateb2:
        a("s_barrier")
    a.wait_vm("x")
    for i in range(cfg.prea, cfg.prea + cfg.preb):
        dma1(i)
    gemm_vm = list(a.vm)
    a.label("L_ln")
    stamp(1)

    def bfround(r):
        a("v_cvt_pk_bf16_f32 v%d, v%d, v%d" % (r, r, r))
        a("v_and_b32 v%d, s%d, v%d" % (r, sMASK, r))

    def ln_token(o, sx0, s1, s2, row):
        L = []
        e = L.append
        XP, D_, A, B, C, E_, HP = 16 + o, 24 + o, 34 + o, 36 + o, 38 + o, 40 + o, 44 + o
        M, V, R1, R2 = 50 + o, 51 + o, 52 + o, 54 + o
        for k in range(5):
            e("v_lshlrev_b32 v%d, 16, v%d" % (D_ + 2 * k, XP + k))
            e("v_and_b32 v%d, s%d, v%d" % (D_ + 2 * k + 1, sMASK, XP + k))
        e("v_readfirstlane_b32 s%d, v%d" % (sx0, D_))
        e("v_mov_b32 v%d, %s" % (R2, f32(1.0 / 640)))
        e("v_mov_b32 v%d, s%d" % (A, sx0))
        for k in range(5):
            e("v_pk_add_f32 %s, %s, %s op_sel_hi:[1,0] neg_lo:[0,1] neg_hi:[0,1]" % (v(D_ + 2 * k, 2), v(D_ + 2 * k, 2), v(A, 2)))
        e("v_pk_mul_f32 %s, %s, %s" % (v(B, 2), v(D_, 2), v(D_, 2)))
        e("v_pk_add_f32 %s, %s, %s" % (v(A, 2), v(D_, 2), v(D_ + 2, 2)))
        e("v_pk_mul_f32 %s, %s, %s" % (v(E_, 2), v(D_ + 4, 2), v(D_ + 4, 2)))
        e("v_pk_add_f32 %s, %s, %s" % (v(C, 2), v(D_ + 4, 2), v(D_ + 6, 2)))
        e("v_pk_fma_f32 %s, %s, %s, %s" % (v(B, 2), v(D_ + 2, 2), v(D_ + 2, 2), v(B, 2)))
        e("v_pk_add_f32 %s, %s, %s" % (v(A, 2), v(A, 2), v(D_ + 8, 2)))
        e("v_pk_fma_f32 %s, %s, %s, %s" % (v(E_, 2), v(D_ + 6, 2), v(D_ + 6, 2), v(E_, 2)))
        e("v_pk_fma_f32 %s, %s, %s, %s" % (v(B, 2), v(D_ + 8, 2), v(D_ + 8, 2), v(B, 2)))
        e("v_pk_add_f32 %s, %s, %s" % (v(A, 2), v(A, 2), v(C, 2)))
        e("v_pk_add_f32 %s, %s, %s" % (v(B, 2), v(B, 2), v(E_, 2)))
        e("v_add_f32 v%d, v%d, v%d" % (A, A, A + 1))
        e("v_add_f32 v%d, v%d, v%d" % (B, B, B + 1))
        for ctl in ["row_shr:1", "row_shr:2", "row_shr:4", "row_shr:8"]:
            for r in (A, B):
                e("v_add_f32_dpp v%d, v%d, v%d %s row_mask:0xf bank_mask:0xf bound_ctrl:0" % (r, r, r, ctl))
        for r in (A, B):
            e("v_add_f32_dpp v%d, v%d, v%d row_bcast:15 row_mask:0xa bank_mask:0xf" % (r, r, r))
        for r in (A, B):
            e("v_add_f32_dpp v%d, v%d, v%d row_bcast:31 row_mask:0xc bank_mask:0xf" % (r, r, r))
        e("v_readlane_b32 s%d, v%d, 63" % (s1, A))
        e("v_readlane_b32 s%d, v%d, 63" % (s2, B))
        e("v_mul_f32 v%d, s%d, v%d" % (M, s1, R2))
        e("v_mul_f32 v%d, s%d, v%d" % (V, s2, R2))
        e("v_fma_f32 v%d, -v%d, v%d, v%d" % (V, M, M, V))
        e("v_add_f32 v%d, s%d, v%d" % (A, sx0, M))
        e("v_max_f32 v%d, 0, v%d" % (V, V))
        def rstd(dst, mean, var, mb):
            e("v_cvt_pk_bf16_f32 v%d, v%d, v%d" % (C, mean, var))
            e("v_and_b32 v%d, s%d, v%d" % (dst, sMASK, C))
            e("v_lshlrev_b32 v%d, 16, v%d" % (mb, C))
            e("v_add_f32 v%d, %s, v%d" % (dst, f32(1e-5), dst))
            e("v_cvt_pk_bf16_f32 v%d, v%d, v%d" % (dst, dst, dst))
            e("v_and_b32 v%d, s%d, v%d" % (dst, sMASK, dst))
            e("v_sqrt_f32 v%d, v%d" % (dst, dst))
            e("v_cvt_pk_bf16_f32 v%d, v%d, v%d" % (dst, dst, dst))
            e("v_and_b32 v%d, s%d, v%d" % (dst, sMASK, dst))
            if cfg.nox and dst == R2:
                e("v_lshrrev_b32 v%d, 16, v%d" % (C, mb))
                e("v_or_b32 v%d, v%d, v%d" % (C, C, dst))
                e("ds_write_b32 v59, v%d offset:%d" % (C, 4 * row))
            e("v_rcp_f32 v%d, v%d" % (dst, dst))
        rstd(R1, A, V, B)
        e("v_sub_f32 v%d, s%d, v%d" % (B, sx0, B))
        e("v_mul_f32 v%d, v%d, v%d" % (V, V, R1))
        e("v_mul_f32 v%d, v%d, v%d" % (R1 + 1, B, R1))
        e("v_mul_f32 v%d, v%d, v%d" % (E_, B, R1))
        e("v_mul_f32 v%d, v%d, v%d" % (E_ + 1, B, R1))
        e("v_mul_f32 v%d, v%d, v%d" % (V, V, R1))
        e("v_fma_f32 v%d, v%d, v%d, v%d" % (A, M, R1, R1 + 1))
        n0 = len(L)
        rstd(R2, A, V, B)
        e("v_mul_f32 v%d, v%d, v%d" % (E_ + 2, B, R2))
        e("v_mul_f32 v%d, v%d, v%d" % (E_ + 3, B, R2))
        chain = L[n0:]; del L[n0:]
        body = []
        for k in range(5):
            body.append("v_pk_fma_f32 %s, %s, %s, %s op_sel_hi:[1,0,1]" % (v(D_ + 2 * k, 2), v(D_ + 2 * k, 2), v(R1, 2), v(E_, 2)))
        if not cfg.nox:
            for k in range(5):
                body.append("v_cvt_pk_bf16_f32 v%d, v%d, v%d" % (XP + k, D_ + 2 * k, D_ + 2 * k + 1))
            body.append("ds_write_b128 v60, %s offset:%d" % (v(XP, 4), 2 * SS + 704 * row))
            body.append("ds_write_b32 v61, v%d offset:%d" % (XP + 4, 2 * SS + 704 * row))
        while chain or body:
            if chain: e(chain.pop(0))
            if body: e(body.pop(0))
        for k in range(5):
            e("v_pk_fma_f32 %s, %s, %s, %s op_sel_hi:[1,0,1] neg_lo:[0,0,1] neg_hi:[0,0,1]" % (v(D_ + 2 * k, 2), v(D_ + 2 * k, 2), v(R2, 2), v(E_ + 2, 2)))
        for k in range(5):
            e("v_cvt_pk_bf16_f32 v%d, v%d, v%d" % (HP + k, D_ + 2 * k, D_ + 2 * k + 1))
        e("ds_write_b128 v60, %s offset:%d" % (v(HP, 4), 704 * row))
        e("ds_write_b32 v61, v%d offset:%d" % (HP + 4, 704 * row))
        return L
    def ln_token_exact(o, sx0, s1, s2, row):
        L = []
        e = L.append
        XP, XF32, DT_, A, B, C, D, HP = 16 + o, 24 + o, 34 + o, 44 + o, 46 + o, 48 + o, 50 + o, 52 + o
        def unpack(dst, src):
            for k in range(5):
                e("v_lshlrev_b32 v%d, 16, v%d" % (dst + 2 * k, src + k))
                e("v_and_b32 v%d, s%d, v%d" % (dst + 2 * k + 1, sMASK, src + k))
        unpack(XF32, XP)
        for shift, outp in ((True, XP), (False, HP)):
            src = XF32
            if shift:
                e("v_readfirstlane_b32 s%d, v%d" % (sx0, XF32))
                for i in range(10):
                    e("v_subrev_f32 v%d, s%d, v%d" % (DT_ + i, sx0, XF32 + i))
                src = DT_
            e("v_pk_add_f32 %s, %s, %s" % (v(A, 2), v(src, 2), v(src + 2, 2)))
            e("v_pk_mul_f32 %s, %s, %s" % (v(B, 2), v(src, 2), v(src, 2)))
            e("v_pk_add_f32 %s, %s, %s" % (v(C, 2), v(src + 4, 2), v(src + 6, 2)))
            e("v_pk_fma_f32 %s, %s, %s, %s" % (v(B, 2), v(src + 2, 2), v(src + 2, 2), v(B, 2)))
            e("v_pk_add_f32 %s, %s, %s" % (v(A, 2), v(A, 2), v(src + 8, 2)))
            e("v_pk_mul_f32 %s, %s, %s" % (v(D, 2), v(src + 4, 2), v(src + 4, 2)))
            e("v_pk_fma_f32 %s, %s, %s, %s" % (v(B, 2), v(src + 8, 2), v(src + 8, 2), v(B, 2)))
            e("v_pk_add_f32 %s, %s, %s" % (v(A, 2), v(A, 2), v(C, 2)))
            e("v_pk_fma_f32 %s, %s, %s, %s" % (v(D, 2), v(src + 6, 2), v(src + 6, 2), v(D, 2)))
            e("v_add_f32 v%d, v%d, v%d" % (A, A, A + 1))
            e("v_pk_add_f32 %s, %s, %s" % (v(B, 2), v(B, 2), v(D, 2)))
            e("v_add_f32 v%d, v%d, v%d" % (B, B, B + 1))
            for ctl in ["row_shr:1", "row_shr:2", "row_shr:4", "row_shr:8"]:
                for r in (A, B):
                    e("v_add_f32_dpp v%d, v%d, v%d %s row_mask:0xf bank_mask:0xf bound_ctrl:0" % (r, r, r, ctl))
            for r in (A, B):
                e("v_add_f32_dpp v%d, v%d, v%d row_bcast:15 row_mask:0xa bank_mask:0xf" % (r, r, r))
            for r in (A, B):
                e("v_add_f32_dpp v%d, v%d, v%d row_bcast:31 row_mask:0xc bank_mask:0xf" % (r, r, r))
            e("v_readlane_b32 s%d, v%d, 63" % (s1, A))
            e("v_readlane_b32 s%d, v%d, 63" % (s2, B))
            e("v_mov_b32 v%d, %s" % (A + 1, f32(1.0 / 640)))
            e("v_mul_f32 v%d, s%d, v%d" % (A, s1, A + 1))
            e("v_mul_f32 v%d, s%d, v%d" % (B, s2, A + 1))
            e("v_fma_f32 v%d, -v%d, v%d, v%d" % (B, A, A, B))
            if shift:
                e("v_add_f32 v%d, s%d, v%d" % (A, sx0, A))
            e("v_max_f32 v%d, 0, v%d" % (B, B))
            e("v_cvt_pk_bf16_f32 v%d, v%d, v%d" % (B + 1, A, B))
            e("v_and_b32 v%d, s%d, v%d" % (B, sMASK, B + 1))
            e("v_lshlrev_b32 v%d, 16, v%d" % (A, B + 1))
            e("v_add_f32 v%d, %s, v%d" % (B, f32(1e-5), B))
            for k in range(5):
                e("v_pk_add_f32 %s, %s, %s op_sel_hi:[1,0] neg_lo:[0,1] neg_hi:[0,1]" % (v(DT_ + 2 * k, 2), v(XF32 + 2 * k, 2), v(A, 2)))
                if k == 0:
                    e("v_cvt_pk_bf16_f32 v%d, v%d, v%d" % (B, B, B))
                if k == 1:
                    e("v_and_b32 v%d, s%d, v%d" % (B, sMASK, B))
                if k == 2:
                    e("v_sqrt_f32 v%d, v%d" % (B, B))
                if k == 4:
                    e("v_cvt_pk_bf16_f32 v%d, v%d, v%d" % (B, B, B))
            for k in range(5):
                e("v_cvt_pk_bf16_f32 v%d, v%d, v%d" % (C + k, DT_ + 2 * k, DT_ + 2 * k + 1))
                if k == 0:
                    e("v_and_b32 v%d, s%d, v%d" % (B, sMASK, B))
                if k == 1:
                    if cfg.nox and not shift:
                        e("v_lshrrev_b32 v%d, 16, v%d" % (A + 1, A))
                        e("v_or_b32 v%d, v%d, v%d" % (A + 1, A + 1, B))
                    e("v_rcp_f32 v%d, v%d" % (B, B))
                if k == 2 and cfg.nox and not shift:
                    e("ds_write_b32 v59, v%d offset:%d" % (A + 1, 4 * row))
            unpack(DT_, C)
            for k in range(5):
                e("v_pk_mul_f32 %s, %s, %s op_sel_hi:[1,0]" % (v(DT_ + 2 * k, 2), v(DT_ + 2 * k, 2), v(B, 2)))
            for k in range(5):
                e("v_cvt_pk_bf16_f32 v%d, v%d, v%d" % (outp + k, DT_ + 2 * k, DT_ + 2 * k + 1))
            off = (2 * SS if shift else 0) + 704 * row
            if shift:
                unpack(XF32, outp)
            if not (cfg.nox and shift):
                e("ds_write_b128 v60, %s offset:%d" % (v(outp, 4), off))
                e("ds_write_b32 v61, v%d offset:%d" % (outp + 4, off))
        return L
    if cfg.exactln:
        ln_token = ln_token_exact
    if cfg.ln4:
        for i0, i1 in zip(ln_token(0, 14, sT0, sT1, 0), ln_token(48, 15, sT2, sT3, 1)):
            a(i0); a(i1)
        a("s_waitcnt lgkmcnt(0)"); a.lg = []
        lds_arrive(8, 12, 13)
        a("s_add_u32 s%d, s7, 0x9E3779B9" % sTAG)
        a("s_branch L_not7")
        a.label("L_pub")
    else:
        for i0 in ln_token(0, 14, sT0, sT1, 0):
            a(i0)
        a("s_waitcnt lgkmcnt(0)"); a.lg = []
        a("s_add_u32 s%d, s7, 0x9E3779B9" % sTAG)
        a("s_cmp_lg_u32 s%d, 7" % sWV)
        a("s_barrier")
        a("s_cbranch_scc1 L_not7")
    a.vm = []; a.lg = []
    a("s_setprio 3")
    stamp(2)
    a("s_mul_i32 s%d, s%d, 10240" % (sT0, sID))
    a("s_add_u32 s%d, s%d, 4096" % (sT1, sT0))
    a("s_add_u32 s%d, s%d, 8192" % (sT2, sT0))
    def prd(k):
        arr, hf, q = k // 10, (k // 5) & 1, k % 5
        r = 16 + 4 * k
        o = hf * SS
        va = 100 + q if arr else vPA[q]
        a("ds_read_b64_tr_b16 %s, v%d offset:%d" % (v(r, 2), va, o), tag="p%d" % k)
        a("ds_read_b64_tr_b16 %s, v%d offset:%d" % (v(r + 2, 2), va, o + 2816), tag="p%d" % k)
    NP = 10 if cfg.nox else 20
    for k in range(6):
        prd(k)
    if cfg.nox:
        a("v_and_b32 v100, 16, v2")
        a("ds_read_b128 v[104:107], v100 offset:%d" % STA, tag="sta")
    else:
        for q in range(5):
            a("v_add_u32 v%d, %d, v%d" % (100 + q, 2 * SS, vPA[q]))
    for k in range(NP):
        if k == 10:
            for q in range(3):
                a("s_add_u32 s%d, s%d, 0x%x" % ((sT0, sT1, sT2)[q], (sT0, sT1, sT2)[q], XB))
        a.wait_lg("p%d" % k)
        kk = k % 10
        if k < 10 or not (cfg.noxn or cfg.xnlate):
            a("buffer_store_dwordx4 %s, v2, %s, s%d offen offset:%d sc1" % (v(16 + 4 * k, 4), s(rWS, 4), (sT0, sT1, sT2)[kk >> 2], 1024 * (kk & 3)), tag="hs" if k < 10 else "xs")
        if k + 6 < NP:
            prd(k + 6)
        if k == (cfg.c16k if cfg.nox else 13):
            a.drain_lg()
            lds_arrive(16, 12, 13)
    if cfg.nox:
        a("s_lshl_b32 s%d, s%d, %d" % (sT3, sID, cfg.stsh))
        a("s_add_u32 s%d, s%d, 0x%x" % (sT3, sT3, ST))
        a("s_mov_b64 exec, %d" % ((1 << (1 << (cfg.stsh - 4))) - 1))
        a("buffer_store_dwordx4 v[104:107], v2, %s, s%d offen sc1" % (s(rWS, 4), sT3))
        a("s_mov_b64 exec, -1")
    if cfg.ssig:
        a("s_cmp_ge_u32 s%d, 64" % sID)
        a("s_cbranch_scc1 L_nozero")
    for k in range(4):
        a("v_mov_b32 v%d, 0" % (108 + k))
    a("s_lshl_b32 s%d, s%d, 10" % (sT3, sID))
    a("s_add_u32 s%d, s%d, 0x%x" % (sT3, sT3, MB + 512))
    a("s_mov_b64 exec, 0xffffffff")
    a("buffer_store_dwordx4 v[108:111], v2, %s, s%d offen sc1" % (s(rWS, 4), sT3))
    a("s_lshl_b32 s%d, s%d, 7" % (sT3, sID))
    a("s_add_u32 s%d, s%d, 0x%x" % (sT3, sT3, YC))
    a("s_mov_b64 exec, 0xff")
    a("buffer_store_dwordx4 v[108:111], v2, %s, s%d offen sc1" % (s(rWS, 4), sT3))
    a("s_mov_b64 exec, -1")
    a.label("L_nozero")
    a("s_lshl_b32 s%d, s%d, %d" % (sT3, sID, cfg.fsh))
    a("s_add_u32 s%d, s%d, 0x%x" % (sT3, sT3, HF))
    if cfg.ssig:
        a("s_add_u32 s14, s%d, s%d" % (pWS, sT3))
        a("s_addc_u32 s15, s%d, 0" % (pWS + 1))
        a("s_mov_b32 s7, s%d" % sTAG)
        a.drain_vm()
        a("s_atomic_swap s7, s[14:15], 0")
        a.drain_lg()
        if cfg.xnlate:
            if cfg.xnlate == 2:
                a("s_mov_b32 s%d, s%d" % (sT3, sT0))
                lds_wait(40, 1, 12, 13, sleep=2)
                a("s_mov_b32 s%d, s%d" % (sT0, sT3))
            for kk in range(10):
                a("buffer_store_dwordx4 %s, v2, %s, s%d offen offset:%d sc1" % (v(56 + 4 * kk, 4), s(rWS, 4), (sT0, sT1, sT2)[kk >> 2], 1024 * (kk & 3)))
            a("s_mov_b32 s7, s%d" % sTAG)
            a.drain_vm()
            a("s_atomic_swap s7, s[14:15], 0x%x" % (XF2 - HF))
            a.drain_lg()
    else:
        a.drain_vm()
        flag_store(sT3, 12, 13)
    stamp(3)
    a("s_branch L_w7")
    a.label("L_not7")
    a.lg = ["arr"]
    if not cfg.ln4:
        a("s_cmp_ge_u32 s%d, 4" % sWV)
        a("s_cbranch_scc1 L_aux_main")
    a.vm = list(gemm_vm)
    a("s_setprio %d" % cfg.pP)
    stamp(2)
    for i in range(cfg.prea + cfg.preb, cfg.prea + cfg.preb + cfg.prec):
        dma1(i)
    cfg.pre1 = cfg.prea + cfg.preb + cfg.prec

    a("v_lshrrev_b32 v10, 2, v0")
    if cfg.swz == 0:
        a("v_bfe_u32 v11, v0, 3, 2")
    else:
        a("v_bfe_u32 v11, v0, 3, 1")
        a("v_lshlrev_b32 v11, 1, v11")
    a("v_lshlrev_b32 v10, 7, v10")
    a("v_and_b32 v12, 3, v0")
    a("v_lshl_add_u32 v10, v12, 3, v10")
    a("v_add_u32 v10, s%d, v10" % sWB)
    for n in range(4):
        a("v_xor_b32 v12, %d, v11" % n)
        a("v_lshl_add_u32 v%d, v12, 5, v10" % vTR[n])
    a("v_lshrrev_b32 v10, 4, v0")
    a("v_mul_u32_u24 v10, 10240, v10")
    a("v_and_b32 v11, 15, v0")
    a("v_lshl_add_u32 v%d, v11, 4, v10" % vFO)
    a.wait_vm("b")
    a("v_lshrrev_b32 v10, 4, v0")
    a("v_lshlrev_b32 v10, 3, v10")
    for fi in range(4):
        a("ds_read_b64 %s, v10 offset:%d" % (v(STG1 + 2 * fi, 2), BIA + 32 * fi), tag="bias")
    a.wait_lg("bias")
    for k in range(8):
        a("v_lshlrev_b32 v%d, 16, v%d" % (ACC1 + 2 * k, STG1 + k))
        a("v_and_b32 v%d, s%d, v%d" % (ACC1 + 2 * k + 1, sMASK, STG1 + k))
    if cfg.warm:
        assert not cfg.ts or True
        a("v_mov_b32 v9, 0")
        a("v_mov_b32 v1, 0")
        a("s_mov_b32 s%d, 1" % sDRY)
        a("s_mov_b64 exec, 0")
        a("s_branch L_ep1")
        a.label("L_dry_ret")
        a("s_mov_b64 exec, -1")
        a("s_mov_b32 s%d, 0" % sDRY)
        a("s_waitcnt lgkmcnt(0)"); a.lg = []
    lds_wait(16, 1, 12, 13)
    stamp(14)
    if cfg.touch1:
        touch_w1b()
    if cfg.touch2 == 5:
        touch_w2i()
    a("s_cmp_ge_u32 s%d, 30" % sJ)
    a("s_cbranch_scc1 L_g2_pre_nog1")
    a("s_mul_i32 s%d, s%d, %d" % (sOAB, sWV, 64 * 10240))
    a("s_lshl_b32 s%d, s%d, 10" % (sT0, sDT))
    a("s_add_u32 s%d, s%d, s%d" % (sOAB, sOAB, sT0))
    if HB:
        a("s_add_u32 s%d, s%d, 0x%x" % (sOAB, sOAB, HB))
    for di in range(4):
        a("s_xor_b32 s%d, s%d, %d" % (sD[di], sWV, di))
        a("s_lshl_b32 s%d, s%d, 8" % (sD[di], sD[di]))
    def mbox(extra):
        if cfg.ssig and extra:
            a("s_and_b32 s%d, s%d, 63" % (sT1, sID))
            a("s_lshl_b32 s%d, s%d, 3" % (sT1, sT1))
        else:
            a("s_lshl_b32 s%d, s%d, 3" % (sT1, sID))
        a("s_add_u32 s%d, s%d, s%d" % (sT1, sT1, sWV))
        a("s_lshl_b32 s%d, s%d, 7" % (sT1, sT1))
        a("s_add_u32 s%d, s%d, 0x%x" % (sT1, sT1, MB + extra))
    D1 = cfg.depth1
    issued = cfg.pre1
    P1 = cfg.P1
    polled = False
    for i in range(P1):
        while issued < P1 and issued <= i + D1:
            k = issued
            if k >= 7:
                a.wait_lg("t%d" % (k - 7))
            if k >= P1 - 2 and i >= 8 and not polled:
                a.drain_lg()
                mbox(0)
                spoll_pre(sT1)
                polled = True
            dma1(k)
            issued += 1
        if i < 8:
            a.wait_vm("w%d" % i)
            tr_step(i % 7, WREG1 + 16 * i, "t%d" % i)
            if cfg.xnlate == 2 and i == cfg.xnat:
                lds_arrive(40, 12, 13)
        elif issued < P1:
            a.wait_vm("w%d" % i)
        if (i in (0, 8) and cfg.fine) or (cfg.fine == 2 and i in (2, 4, 6, 10)):
            stamp(16 + i // 2)
    if not polled:
        mbox(0)
        spoll_pre(sT1)
    if cfg.touch2 == 7:
        touch_w2i()
    stamp(3)
    def hwait(sl):
        a("s_lshl_b32 s%d, s%d, 3" % (sT1, sID))
        a("s_add_u32 s%d, s%d, s%d" % (sT1, sT1, sWV))
        a("s_lshl_b32 s%d, s%d, 7" % (sT1, sT1))
        a("s_add_u32 s%d, s%d, 0x%x" % (sT1, sT1, MB))
        spoll(sT1, sl)
    spoll(sT1, cfg.psleep, pre=True)
    a("s_setprio %d" % cfg.pG)
    if cfg.pbal:
        a("s_and_b32 s%d, s%d, 1" % (sT2, sJ))
        a("s_add_u32 s%d, s%d, s%d" % (sT2, sT2, sWV))
        a("s_cmp_lt_u32 s%d, 3" % sT2)
        a("s_cbranch_scc1 L_pb")
        a("s_setprio 1")
        a.label("L_pb")
    stamp(4)

    def adv_a(stepbytes):
        if cfg.noadv:
            return
        a("s_add_u32 s%d, s%d, %d" % (sOA, sOA, stepbytes))
        a("s_cmp_ge_u32 s%d, s%d" % (sOA, sOAE))
        a("s_cselect_b32 s%d, s%d, s%d" % (sOA, sOAB, sOA))

    def DI(n):
        return ((n + 1) & 3) if n >= 60 else (n & 3)
    def hload(n):
        di = DI(n)
        if n & 3 == 0:
            setoff(sOA, sOAB, sORD1, n >> 2, 4 * 10240)
        a("s_add_u32 s%d, s%d, s%d" % (sT1, sOA, sD[di]))
        a("buffer_load_dwordx4 %s, v%d, %s, s%d offen %s" % (v(STG1 + 4 * (n % NR1), 4), vFO, s(rWS, 4), sT1, cfg.apol), tag="h%d" % n)

    def w2_setup():
        dma_voff(4096, False)
        a("s_mul_i32 s%d, s%d, %d" % (sOWB, sWV, 384 * 4096))
        a("s_lshl_b32 s%d, s%d, 7" % (sT0, sST))
        a("s_add_u32 s%d, s%d, s%d" % (sOWB, sOWB, sT0))

    SL2 = {0: 3, 1: 4, 2: 5, 3: 6, 4: 0, 5: 1, 6: 2, 7: 3, 8: 4, 9: 5, 10: 6, 11: 0}
    def slot2(i):
        return SL2[i]
    def dma2(k):
        if k >= 12 - cfg.skip2:
            return
        dma_step(rW2, slot2(k), C2, 32 * 4096, "u%d" % k, cfg.t2pol if k < cfg.nt2 else '')
    def tr2(k):
        tr_step(slot2(k), WREG2 + 16 * k, "q%d" % k)
    def tr_flip():
        a("s_lshl_b32 s%d, s%d, 5" % (sT0, sWV))
        for n in range(4):
            a("v_xor_b32 v%d, s%d, v%d" % (vTR[n], sT0, vTR[n]))

    vXO, vXO4, vB2 = 9, 1, 14
    sXO = 97
    def xt_setup():
        a("v_and_b32 v12, 15, v0")
        a("v_lshrrev_b32 v13, 4, v0")
        a("v_mul_u32_u24 v%d, 1280, v12" % vXO)
        a("v_lshl_add_u32 v%d, v13, 3, v%d" % (vXO4, vXO))
        a("v_lshl_add_u32 v%d, v13, 4, v%d" % (vXO, vXO))
        a("s_lshl_b32 s%d, s%d, 2" % (sT2, sST))
        a("s_add_u32 s%d, s%d, s%d" % (sT2, sT2, sWV))
        a("s_mul_i32 s%d, s%d, %d" % (sXO, sT2, 16 * 1280))
        a("s_mul_i32 s%d, s%d, 160" % (sT3, sDT2))
        a("s_add_u32 s%d, s%d, s%d" % (sXO, sXO, sT3))
    def acc2_init():
        a("v_and_b32 v12, 15, v0")
        a("s_lshl_b32 s%d, s%d, 5" % (sT2, sWV))
        a("v_lshl_add_u32 v12, v12, 1, s%d" % sT2)
        a("ds_read_u16 v%d, v12 offset:%d" % (vB2, BIA + 128), tag="b2")
        for k in range(10):
            a("v_lshlrev_b32 v%d, 16, v%d" % (ACC2 + 2 * k, XR + k))
            a("v_and_b32 v%d, s%d, v%d" % (ACC2 + 2 * k + 1, sMASK, XR + k))
        a.wait_lg("b2")
        a("v_lshlrev_b32 v%d, 16, v%d" % (vB2, vB2))
        for k in range(20):
            a("v_add_f32 v%d, v%d, v%d" % (ACC2 + k, vB2, ACC2 + k))
    def xt_loads():
        a("buffer_load_dwordx4 %s, v%d, %s, s%d offen %s" % (v(XR, 4), vXO, s(rX, 4), sXO, cfg.xpol), tag="xt")
        a("buffer_load_dwordx4 %s, v%d, %s, s%d offen offset:64 %s" % (v(XR + 4, 4), vXO, s(rX, 4), sXO, cfg.xpol), tag="xt")
        a("buffer_load_dwordx2 %s, v%d, %s, s%d offen offset:128 %s" % (v(XR + 8, 2), vXO4, s(rX, 4), sXO, cfg.xpol), tag="xt")

    for n in range(NR1):
        hload(n)
    lds_arrive(12, 12, 13)
    sGS, sGC = sOWE, sOAE
    vEX = [WREG1 + k for k in range(4)]
    vC = WREG1 + 4
    c0 = -2.0 * math.sqrt(2.0 / math.pi) * math.log2(math.e)
    c1 = c0 * 0.044715
    def xwrite(i):
        for q in range(4):
            a("ds_write_b128 v%d, %s offset:%d" % (vEX[0], v(ACC1 + 16 * i + 4 * q, 4), (i - 1) * 4096 + q * 1024))
    fifo = []
    def fill(k):
        for _ in range(k):
            if fifo:
                a.play(fifo.pop(0))
    def need(tag):
        while any(it[2] == tag for it in fifo):
            fill(1)
    def setup8():
        tr_flip()
        a("v_lshlrev_b32 v10, 4, v0")
        a("v_add_u32 v%d, s%d, v10" % (vEX[0], sWB))
        for k in range(1, 4):
            a("s_xor_b32 s%d, s%d, %d" % (sT0, sWV, k))
            a("s_mul_i32 s%d, s%d, %d" % (sT0, sT0, WSZ))
            a("s_add_u32 s%d, s%d, %d" % (sT0, sT0, WOFF))
            a("v_add_u32 v%d, s%d, v10" % (vEX[k], sT0))
        a("v_mov_b32 v%d, %s" % (vC, f32(c1)))
        a("v_mov_b32 v%d, %s" % (vC + 1, f32(c0 if not cfg.dupc else c1)))
        if cfg.dupc:
            a("v_mov_b32 v%d, %s" % (vC + 2, f32(c0)))
            a("v_mov_b32 v%d, %s" % (vC + 3, f32(c0)))
    def setup10():
        a("s_mul_i32 s%d, s%d, %d" % (sGS, sFT, 8 * 10240))
        a("s_lshl_b32 s%d, s%d, 10" % (sT2, sDT))
        a("s_add_u32 s%d, s%d, s%d" % (sGS, sGS, sT2))
        a("s_add_u32 s%d, s%d, s%d" % (sGS, sGS, sD[0]))
        a("s_add_u32 s%d, s%d, 0x%x" % (sGS, sGS, GB))
        a("s_add_u32 s96, s%d, %d" % (sGS, 4 * 10240))
        a("s_lshl_b32 s%d, s%d, 2" % (sT2, sDT))
        a("s_add_u32 s%d, s%d, s%d" % (sT2, sT2, sWV))
        a("s_mul_i32 s%d, s%d, 52" % (sT2, sT2))
        a("s_lshr_b32 s%d, s%d, 8" % (sT2, sT2))
        if not cfg.ssig:
            group_ids(vPO, 13, sT2, 10)
        a("s_mul_i32 s%d, s%d, 43" % (sGC, sFT))
        a("s_lshr_b32 s%d, s%d, 8" % (sGC, sGC))
        a("s_lshl_b32 s%d, s%d, 7" % (sGC, sGC))
        a("s_add_u32 s%d, s%d, 0x%x" % (sGC, sGC, MB + 512))
        if cfg.ssig:
            a("s_lshl_b32 s%d, s%d, 13" % (sT2, sT2))
            a("s_add_u32 s%d, s%d, s%d" % (sGC, sGC, sT2))
    def refill(i, wr):
        a.wait_vm("w%d" % i)
        tr_step(i % 7, wr, "t%d" % i)
    def late15():
        a.wait_lg("t8")
        dma1(15)
        w2_setup()
    for i in range(16):
        wr = WREG1 + 16 * (i & 7)
        if i >= 8:
            need("t%d" % i)
            a.wait_lg("t%d" % i)
        for dd in range(4):
            n = 4 * i + dd
            di = DI(n)
            nxt = a.capture(hload, n + NR1) if (n + NR1 < 64 and not cfg.noload) else []
            a.wait_vm("h%d" % n)
            for fi in range(4):
                acc = v(ACC1 + 16 * di + 4 * fi, 4)
                if not cfg.nomfma or i == 0:
                    a("v_mfma_f32_16x16x32_bf16 %s, %s, %s, %s" % (acc, v(wr + 4 * fi, 4), v(STG1 + 4 * (n % NR1), 4), acc if (i or di == 0) else "0"))
                if fi < 3:
                    k = cfg.fillk
                    while len(nxt) > 1 and k:
                        a.play(nxt.pop(0)); k -= 1
                    fill(k)
            for it in nxt:
                a.play(it)
            if not nxt:
                fill(cfg.fillk)
            if n == cfg.e0at:
                fill(1000)
                for k in range(cfg.e0):
                    fifo += a.capture(dma2, k)
            if n >= 61:
                xwrite(n - 60)
        if i in (0, 7) and cfg.fine:
            stamp(24 + (i + 1) // 4)
        if i < 8:
            fifo += a.capture(refill, i + 8, wr)
        if P1 + i < 15:
            fifo += a.capture(dma1, P1 + i)
        if i == max(1, 15 - P1):
            fifo += a.capture(late15)
        if i == 10:
            fifo += a.capture(setup10)
        if i == cfg.psat:
            fill(1000)
            lds_arrive(56, 12, 13)
        if i == 8:
            fifo += a.capture(setup8)
        if i == 9:
            fifo += a.capture(xt_setup)
    fill(1000)
    if cfg.pW != cfg.pG:
        a("s_setprio %d" % cfg.pW)
    stamp(5)
    a.drain_lg()
    lds_arrive(0, 12, 13)
    lds_wait(0, 4, 12, 13)
    stamp(12)
    a.label("L_ep1")
    for q in range(4):
        for i in range(1, 4):
            a("ds_read_b128 %s, v%d offset:%d" % (v(ACC1 + 16 * i + 4 * q, 4), vEX[i], (i - 1) * 4096 + q * 1024), tag="r%d" % q)
    def _e1():
        for k in range(cfg.e0, cfg.e0 + cfg.e1):
            dma2(k)
    if not cfg.w7dma:
        guard(_e1)
    def op2(name, d, x, y, n):
        if cfg.nopk:
            for k in range(n):
                a("v_%s_f32 v%d, v%d, v%d" % (name, d + k, x + k, y + k))
        else:
            for k in range(0, n, 2):
                a("v_pk_%s_f32 %s, %s, %s" % (name, v(d + k, 2), v(x + k, 2), v(y + k, 2)))
    U_, T_, P_ = ACC1, ACC1 + 16, STG1
    for hf in range(2):
        o = 8 * hf
        a.wait_lg("r%d" % (2 * hf + 1))
        if hf == 1:
            guard(lds_arrive, 4, 12, 13)
        op2("add", U_ + o, U_ + o, ACC1 + 16 + o, 8)
        op2("add", ACC1 + 32 + o, ACC1 + 32 + o, ACC1 + 48 + o, 8)
        op2("add", U_ + o, U_ + o, ACC1 + 32 + o, 8)
        op2("mul", T_ + o, U_ + o, U_ + o, 8)
        if cfg.nopk:
            for k in range(8):
                a("v_fma_f32 v%d, v%d, v%d, v%d" % (T_ + o + k, T_ + o + k, vC, vC + (2 if cfg.dupc else 1)))
        else:
            for k in range(0, 8, 2):
                if cfg.dupc:
                    a("v_pk_fma_f32 %s, %s, %s, %s" % (v(T_ + o + k, 2), v(T_ + o + k, 2), v(vC, 2), v(vC + 2, 2)))
                else:
                    a("v_pk_fma_f32 %s, %s, %s, %s op_sel:[0,0,1] op_sel_hi:[1,0,1]" % (v(T_ + o + k, 2), v(T_ + o + k, 2), v(vC, 2), v(vC, 2)))
        op2("mul", T_ + o, T_ + o, U_ + o, 8)
        for k in range(8):
            a("v_exp_f32 v%d, v%d" % (T_ + o + k, T_ + o + k))
        if cfg.nopk:
            for k in range(8):
                a("v_add_f32 v%d, 1.0, v%d" % (T_ + o + k, T_ + o + k))
        else:
            for k in range(0, 8, 2):
                a("v_pk_add_f32 %s, %s, 1.0 op_sel_hi:[1,0]" % (v(T_ + o + k, 2), v(T_ + o + k, 2)))
        for k in range(8):
            a("v_rcp_f32 v%d, v%d" % (T_ + o + k, T_ + o + k))
        op2("mul", T_ + o, T_ + o, U_ + o, 8)
        for k in range(4):
            a("v_cvt_pk_bf16_f32 v%d, v%d, v%d" % (P_ + 4 * hf + k, T_ + o + 2 * k, T_ + o + 2 * k + 1))
        if hf == 1:
            dry_exit("L_ep2")
            a("buffer_store_dwordx4 %s, v%d, %s, s%d offen sc1" % (v(P_ + 4 * hf, 4), vFO, s(rWS, 4), 96), tag="gs")
        else:
            guard(lambda: a("buffer_store_dwordx4 %s, v%d, %s, s%d offen sc1" % (v(P_, 4), vFO, s(rWS, 4), sGS), tag="gs"))
    lds_arrive(28, 12, 13)
    stamp(6)
    if cfg.w7dma == 2:
        assert cfg.e0 == 2 and cfg.ssig
        lds_wait(4, 4, 12, 13)
        dma2(4); dma2(5)
        a.wait_vm("u1")
        tr2(0); tr2(1)
        lds_wait(52, 1, 12, 13)
        tr2(2); tr2(3)
        a.drain_lg()
        a.wait_vm("gs")
        sig8(sGC, 1024)
        a.smem = True
        stamp(7)
        xt_loads()
        dma2(6); dma2(7)
        a.wait_vm("u4"); tr2(4)
        dma2(8)
        a.wait_vm("u5"); tr2(5)
        dma2(9)
        a.wait_vm("xt")
        acc2_init()
        a.drain_lg()
        mbox(512)
        spoll_pre(sT1)
        dma2(10); dma2(11)
    elif cfg.w7dma:
        assert cfg.e0 == 2 and cfg.ssig
        a.wait_vm("u1")
        tr2(0); tr2(1)
        a.drain_lg()
        a.wait_vm("gs")
        sig8(sGC, 1024)
        a.smem = True
        stamp(7)
        xt_loads()
        dma2(7); dma2(8)
        lds_wait(52, 1, 12, 13)
        tr2(2); tr2(3)
        a.wait_vm("xt")
        acc2_init()
        a.drain_lg()
        dma2(9); dma2(10)
        lds_wait(52, 2, 12, 13)
        tr2(4); tr2(5)
        a.drain_lg()
        mbox(512)
        spoll_pre(sT1)
        dma2(11)
    else:
        ne = cfg.e0 + cfg.e1
        for k in range(ne, 4):
            dma2(k)
        lds_wait(4, 4, 12, 13)
        dma2(4); dma2(5)
        if ne:
            a.wait_vm("u%d" % (ne - 1))
            for k in range(ne):
                tr2(k)
        if cfg.ssig:
            a.drain_lg()
        a.wait_vm("gs")
        if cfg.ssig:
            sig8(sGC, 1024)
            a.smem = True
        else:
            group_add(vPO, sGC, 13)
        stamp(7)
        xt_loads()
        dma2(6)
        for k in range(ne, 4):
            a.wait_vm("u%d" % k); tr2(k)
        a.wait_lg("q0"); dma2(7)
        a.wait_vm("u4"); tr2(4)
        a.wait_lg("q1"); dma2(8)
        a.wait_vm("u5"); tr2(5)
        a.wait_lg("q2"); dma2(9)
        a.wait_vm("xt")
        if not cfg.lateinit:
            acc2_init()
        a.drain_lg()
        mbox(512)
        spoll_pre(sT1)
        dma2(10); dma2(11)
    vm_join = list(a.vm)
    a("s_branch L_g2_pre")
    a.label("L_g2_pre_nog1")
    a.vm = []; a.lg = []
    if cfg.xnlate == 2:
        lds_arrive(40, 12, 13)
    if cfg.nagg == 8:
        a("s_cmp_lg_u32 s%d, 31" % sJ)
        a("s_cbranch_scc1 L_noagg_h")
    a("v_lshlrev_b32 v%d, %d, v0" % (vPO, cfg.fsh))
    a("s_lshl_b32 s%d, s%d, %d" % (sT1, sWV, 6 + cfg.fsh))
    a("s_add_u32 s%d, s%d, 0x%x" % (sT1, sT1, HF))
    a("v_lshlrev_b32 v12, 13, v0")
    a("v_mov_b32 v13, s%d" % sTAG)
    a("s_lshl_b32 s%d, s%d, 3" % (sT2, sX))
    a("s_add_u32 s%d, s%d, s%d" % (sT2, sT2, sWV))
    a("s_lshl_b32 s%d, s%d, 7" % (sT2, sT2))
    a("s_add_u32 s%d, s%d, 0x%x" % (sT2, sT2, MB))
    if cfg.nagg == 16:
        a("s_and_b32 s%d, s%d, 1" % (sT3, sJ))
        a("s_lshl_b32 s%d, s%d, 17" % (sT3, sT3))
        a("s_add_u32 s%d, s%d, s%d" % (sT2, sT2, sT3))
    poll([vPO], [sT1], vPD, sleep=cfg.asleep)
    a("s_mov_b64 exec, 0x%x" % (0xffffffff if cfg.nagg == 8 else 0xffff))
    a("buffer_store_dword v13, v12, %s, s%d offen sc1" % (s(rWS, 4), sT2))
    a("s_mov_b64 exec, -1")
    stamp(13)
    if cfg.xnlate:
        a("s_add_u32 s%d, s%d, 0x%x" % (sT1, sT1, XF2 - HF))
        poll([vPO], [sT1], vPD, sleep=cfg.asleep)
        a("s_mov_b64 exec, 0x%x" % (0xffffffff if cfg.nagg == 8 else 0xffff))
        a("buffer_store_dword v13, v12, %s, s%d offen offset:64 sc1" % (s(rWS, 4), sT2))
        a("s_mov_b64 exec, -1")
    a.label("L_noagg_h")
    a.vm = []
    if cfg.touch2 == 6:
        a("v_lshrrev_b32 v8, 2, v0")
        a("v_lshlrev_b32 v8, 12, v8")
        a("v_and_b32 v9, 3, v0")
        a("v_lshl_add_u32 v8, v9, 7, v8")
        a("s_mul_i32 s%d, s%d, 24" % (sT1, sWV))
        a("s_add_u32 s%d, s%d, s%d" % (sT1, sT1, sJ))
        a("s_sub_u32 s%d, s%d, 30" % (sT1, sT1))
        a("s_lshl_b32 s%d, s%d, 16" % (sT1, sT1))
        a("s_lshl_b32 s%d, s%d, 9" % (sT2, sX))
        a("s_add_u32 s%d, s%d, s%d" % (sT1, sT1, sT2))
        a("s_mov_b32 s%d, s%d" % (sT3, sT1))
        for k in range(12):
            a("buffer_load_dword v9, v8, %s, s%d offen %s" % (s(rW2, 4), sT3, cfg.t2pol), tag="tw%d" % k)
            a("s_add_u32 s%d, s%d, %d" % (sT3, sT3, 32 * 4096))
            if k == 3:
                hwait(2)
                lds_arrive(12, 12, 13)
            if k >= cfg.tdep:
                a.wait_vm("tw%d" % (k - cfg.tdep))
    else:
        hwait(4)
        lds_arrive(12, 12, 13)
        if cfg.touch2 == 7:
            lds_wait(12, 4, 12, 13, sleep=2)
            touch_w2s()
            touch_w2i()
    lds_wait(12, 4, 12, 13, sleep=2)
    a("s_setprio 2")
    xt_setup()
    xt_loads()
    w2_setup()
    tr_flip()
    for k in range(7):
        dma2(k)
        if k:
            a.wait_vm("u%d" % (k - 1))
    for k in range(6):
        tr2(k)
    if not cfg.lateinit:
        acc2_init()
    a.drain_lg()
    for k in range(7, 12):
        dma2(k)
        a.wait_vm("u%d" % (k - 1))
    a.drain_vm()
    mbox(512)
    spoll_pre(sT1)
    a.label("L_g2_pre")
    a.vm = list(vm_join); a.lg = []
    stamp(8)
    a("s_mul_i32 s%d, s%d, %d" % (sOAB, sWV, 48 * 10240))
    a("s_mul_i32 s%d, s%d, 1280" % (sT0, sDT2))
    a("s_add_u32 s%d, s%d, s%d" % (sOAB, sOAB, sT0))
    a("s_add_u32 s%d, s%d, 0x%x" % (sOAB, sOAB, GB))
    spoll(sT1, cfg.psleep, target=30, pre=True)
    if cfg.pW != cfg.pG:
        a("s_setprio %d" % cfg.pG)
    stamp(9)

    def gload(n):
        mi = n % 5
        if mi == 0:
            setoff(sOA, sOAB, sORD2, n // 5, 4 * 10240)
        a("buffer_load_dwordx4 %s, v%d, %s, s%d offen offset:%d %s" % (v(STG2 + 4 * (n % NR2), 4), vFO, s(rWS, 4), sOA, 256 * mi, cfg.apol), tag="g%d" % n)

    for n in range(NR2):
        if n == 13 and cfg.lateinit:
            acc2_init()
        gload(n)
    assert NR2 > 13 or not cfg.lateinit
    vE2 = [8, 10, 11, 12, 13]
    def setup6():
        a("v_lshlrev_b32 v7, 4, v0")
        a("v_add_u32 v%d, s%d, v7" % (vE2[0], sWB))
        for k in range(1, 4):
            a("s_xor_b32 s%d, s%d, %d" % (sT0, sWV, k))
            a("s_mul_i32 s%d, s%d, %d" % (sT0, sT0, WSZ))
            a("s_add_u32 s%d, s%d, %d" % (sT0, sT0, WOFF))
            a("v_add_u32 v%d, s%d, v7" % (vE2[k], sT0))
        a("v_lshrrev_b32 v7, 2, v0")
        a("v_lshlrev_b32 v7, 7, v7")
        a("v_and_b32 v14, 3, v0")
        a("v_lshl_add_u32 v7, v14, 3, v7")
        a("s_lshl_b32 s%d, s%d, 5" % (sT0, sWV))
        a("s_add_u32 s%d, s%d, %d" % (sT0, sT0, RY))
        a("v_add_u32 v%d, s%d, v7" % (vE2[4], sT0))
    setup6()
    for i in range(12):
        wr = WREG2 + 16 * (i % 6)
        if i >= 6:
            need("q%d" % i)
            a.wait_lg("q%d" % i)
        for mi in range(5):
            n = 5 * i + mi
            nxt = a.capture(gload, n + NR2) if (n + NR2 < 60 and not cfg.noload) else []
            a.wait_vm("g%d" % n)
            for x, ni in enumerate((1, 2, 3, 0) if i == 11 else range(4)):
                acc = v(ACC2 + 20 * ni + 4 * mi, 4)
                if not cfg.nomfma or i == 0:
                    a("v_mfma_f32_16x16x32_bf16 %s, %s, %s, %s" % (acc, v(STG2 + 4 * (n % NR2), 4), v(wr + 4 * ni, 4), acc if (i or ni == 0) else "0"))
                if x < 3:
                    k = cfg.fillk
                    while len(nxt) > 1 and k:
                        a.play(nxt.pop(0)); k -= 1
                    fill(k)
                if i == 11 and mi >= 2 and x < 3:
                    a("ds_write_b128 v%d, %s offset:%d" % (vE2[0], v(ACC2 + 20 * (x + 1) + 4 * (mi - 2), 4), x * 5120 + (mi - 2) * 1024))
            for it in nxt:
                a.play(it)
        if i in (0, 5) and cfg.fine:
            stamp(28 + (i + 1) // 3)
        if i + 6 < 12:
            fifo += a.capture(tr_step, slot2(i + 6), wr, "q%d" % (i + 6))
    fill(1000)
    stamp(10)
    for q in (3, 4):
        for k in range(1, 4):
            a("ds_write_b128 v%d, %s offset:%d" % (vE2[0], v(ACC2 + 20 * k + 4 * q, 4), (k - 1) * 5120 + q * 1024))
    a.drain_lg()
    a("s_barrier")
    a.label("L_ep2")
    YR, TY, TP = WREG2 + 40, WREG2, WREG2 + 20
    def _ya():
        for mi in range(5):
            a("ds_read_b64_tr_b16 %s, v%d offset:%d" % (v(YR + 2 * mi, 2), vE2[4], mi * 2048), tag="ya")
    guard(_ya)
    for q in range(5):
        for k in range(1, 4):
            a("ds_read_b128 %s, v%d offset:%d" % (v(ACC2 + 20 * k + 4 * q, 4), vE2[k], (k - 1) * 5120 + q * 1024), tag="r%d" % q)
    a.wait_lg("ya")
    for k in range(10):
        a("v_lshlrev_b32 v%d, 16, v%d" % (TY + 2 * k, YR + k))
        a("v_and_b32 v%d, s%d, v%d" % (TY + 2 * k + 1, sMASK, YR + k))
    def pk2(d, x, y, n):
        for k in range(0, n, 2):
            a("v_pk_add_f32 %s, %s, %s" % (v(d + k, 2), v(x + k, 2), v(y + k, 2)))
    pk2(ACC2, ACC2, TY, 20)
    pol = (" " + cfg.out_pol) if cfg.out_pol else ""
    for (o, n, last) in ((0, 8, 1), (8, 8, 3), (16, 4, 4)):
        a.wait_lg("r%d" % last)
        pk2(ACC2 + o, ACC2 + o, ACC2 + 20 + o, n)
        pk2(ACC2 + 40 + o, ACC2 + 40 + o, ACC2 + 60 + o, n)
        pk2(ACC2 + o, ACC2 + o, ACC2 + 40 + o, n)
        for k in range(n // 2):
            a("v_cvt_pk_bf16_f32 v%d, v%d, v%d" % (TP + o // 2 + k, ACC2 + o + 2 * k, ACC2 + o + 2 * k + 1))
        if n == 8:
            guard(lambda: a("buffer_store_dwordx4 %s, v%d, %s, s%d offen offset:%d%s" % (v(TP + o // 2, 4), vXO, s(rOUT, 4), sXO, 8 * o, pol)))
        else:
            dry_exit("L_dry_ret")
            a("buffer_store_dwordx2 %s, v%d, %s, s%d offen offset:128%s" % (v(TP + 8, 2), vXO4, s(rOUT, 4), sXO, pol))
    stamp(11)
    if cfg.hold:
        a("s_waitcnt vmcnt(0)")
        a.label("L_hold")
        a("s_memrealtime s[100:101]")
        a("s_waitcnt lgkmcnt(0)")
        a("s_sub_u32 s100, s100, s98")
        if cfg.hx >= 0:
            a("s_sub_u32 s100, s100, s99")
        a("s_cmp_lt_u32 s100, %d" % (cfg.hold * 100))
        a("s_cbranch_scc1 L_hold")
    finish()

    a.label("L_aux_main")
    a.vm = list(aux_vm); a.lg = []
    a("s_and_b32 s%d, s%d, 1" % (sT0, sJ))
    a("s_add_u32 s%d, s%d, s%d" % (sT0, sT0, sWV))
    a("s_cmp_ge_u32 s%d, 7" % sT0)
    a("s_cbranch_scc1 %s" % ("L_w6" if cfg.stouch else "L_aux_done"))
    F0 = 64
    if cfg.ln4 and cfg.lateb2 == 1:
        a("s_barrier")
    a.wait_vm("p")
    for k in range(6):
        a("v_lshlrev_b32 v%d, 16, v%d" % (F0 + k, PRM0 + k))
        a("v_and_b32 v%d, s%d, v%d" % (F0 + 6 + k, sMASK, PRM0 + k))
        a("v_lshlrev_b32 v%d, 16, v%d" % (F0 + 12 + k, PRM1 + k))
    vDT, vDS = 82, 83
    a("v_lshlrev_b32 v%d, 16, v%d" % (vDT, vLDT))
    a("v_lshlrev_b32 v%d, 16, v%d" % (vDS, vDSK))
    a("v_mul_f32 v%d, %s, v%d" % (vDT, f32(math.log2(math.e)), vDT))
    a("v_exp_f32 v%d, v%d" % (vDT, vDT))
    bfround(vDT)
    a("s_setprio %d" % cfg.pK)
    stamp(3)

    E = {k: 84 + 2 * (k - 1) for k in range(1, 8)}
    P = {k: 98 + 2 * (k - 1) for k in range(1, 9)}
    Q, Q2 = 114, 116
    Y = [118, 120, 122, 124]
    TT = [126, 128, 130, 132]
    CV = list(range(134, 142))
    YFR, XFR, DK = 144, 160, 208
    vFA = 220
    if cfg.kv3:
        assert cfg.kg2 == 3 and cfg.sepu
        DK, vFA = 176, 188
    cvi = [0]
    def cmul1(d, x, y):
        a("v_pk_mul_f32 %s, %s, %s op_sel:[0,0] op_sel_hi:[0,1]" % (v(d, 2), v(x, 2), v(y, 2)))
    def cmul2(d, x, y):
        a("v_pk_fma_f32 %s, %s, %s, %s op_sel:[1,1,0] op_sel_hi:[1,0,1] neg_lo:[1,0,0]" % (v(d, 2), v(x, 2), v(y, 2), v(d, 2)))
    if cfg.kg2 == 3:
        CV = list(range(16, 64)) + list(range(224, 233))
        if cfg.kv3:
            CV = list(range(16, 64)) + list(range(189, 197))
    def put(r, row, neg=False):
        c = CV[cvi[0] % len(CV)]; cvi[0] += 1
        a("v_cvt_pk_bf16_f32 v%d, v%d, %sv%d" % (c, r, "-" if neg else "", r + 1))
        return ("w", c, row)
    def wr(c, row):
        if not cfg.nokw:
            a("ds_write_addtid_b32 v%d offset:%d" % (c, row * 288))
    def group(ops):
        for d, x, y, row, neg in ops:
            cmul1(d, x, y)
        for d, x, y, row, neg in ops:
            cmul2(d, x, y)
        pend = []
        for d, x, y, row, neg in ops:
            if row is not None:
                pend.append(put(d, row, neg))
        for _, c, row in pend:
            wr(c, row)

    a("s_mov_b32 m0, s%d" % sRB)
    a("v_and_b32 v1, 15, v0")
    a("v_mul_u32_u24 v1, 288, v1")
    a("v_and_b32 v%d, 48, v0" % vFA)
    a("v_add3_u32 v%d, v%d, v1, s%d" % (vFA, vFA, sRB))
    for k in range(12):
        a("v_mov_b32 v%d, 0" % (DK + k))
    a("v_mov_b32 v143, 0x3f80")
    if cfg.kg2 in (1, 2):
        YR0 = 25
        pend = []
        def drip(n):
            for _ in range(n):
                if pend:
                    a.play(pend.pop(0))
        def out(r, row, neg=False):
            def f():
                _, c, _r = put(r, row, neg)
                f.c = c
            it = a.capture(f)
            return it, a.capture(wr, f.c, row)
        def grp(ops):
            for d, x, y, row, neg in ops:
                cmul1(d, x, y); drip(1)
            for d, x, y, row, neg in ops:
                cmul2(d, x, y); drip(1)
            drip(100)
            cv, wrs = [], []
            for d, x, y, row, neg in ops:
                if row is not None:
                    c_, w_ = out(d, row, neg)
                    cv += c_; wrs += w_
            seq_ = cv[:1]
            for k in range(len(wrs)):
                seq_ += cv[k + 1:k + 2] + [wrs[k]]
            pend.extend(seq_)
        T2 = TT + [224, 226, 228, 230]
        AN = 232
        late = []
        def dl(n):
            for _ in range(n):
                if late:
                    a.play(late.pop(0))
        def mf(dk, xo, tag):
            a.wait_lg(tag)
            for st in range(4):
                a("v_mfma_f32_16x16x32_bf16 %s, %s, %s, %s" % (v(dk, 4), v(XFR + xo + 4 * st, 4), v(YFR + 4 * st, 4), v(dk, 4)))
        if cfg.kg2 == 2:
            a("s_mov_b32 s%d, 3" % sT3)
            a.label("L_kgen")
            a.lg = []
        for rd in range(3 if cfg.kg2 == 1 else 1):
            Fp = F0 + 6 * rd
            a("v_pk_mul_f32 %s, %s, v[82:83] op_sel_hi:[1,0]" % (v(AN, 2), v(Fp, 2)))
            a("v_pk_mul_f32 %s, %s, v[82:83] op_sel_hi:[1,0]" % (v(AN + 2, 2), v(Fp + 2, 2)))
            a("v_mul_f32 v%d, %s, v%d" % (AN, f32(math.log2(math.e)), AN))
            a("v_mul_f32 v%d, 0.15915494, v%d" % (AN + 1, AN + 1))
            cmul1(Y[0], Fp + 4, AN + 2)
            anchors = [(E[1], 1.0), (Q, 8.0), (P[1], 128.0)]
            for idx, (d, k) in enumerate(anchors):
                m_, f_ = AN + 4 + 2 * idx, AN + 5 + 2 * idx
                if k == 1.0:
                    a("v_exp_f32 v%d, v%d" % (m_, AN))
                    a("v_fract_f32 v%d, v%d" % (f_, AN + 1))
                else:
                    a("v_mul_f32 v%d, %s, v%d" % (m_, f32(k), AN))
                    a("v_mul_f32 v%d, %s, v%d" % (f_, f32(k), AN + 1))
                    a("v_exp_f32 v%d, v%d" % (m_, m_))
                    a("v_fract_f32 v%d, v%d" % (f_, f_))
                dl(1)
            cmul2(Y[0], Fp + 4, AN + 2)
            for idx, (d, k) in enumerate(anchors):
                a("v_cos_f32 v%d, v%d" % (d, AN + 5 + 2 * idx)); dl(1)
                a("v_sin_f32 v%d, v%d" % (d + 1, AN + 5 + 2 * idx)); dl(1)
            dl(100)
            for idx, (d, k) in enumerate(anchors):
                a("v_pk_mul_f32 %s, %s, %s op_sel_hi:[1,0]" % (v(d, 2), v(d, 2), v(AN + 4 + 2 * idx, 2)))
            pend.extend(a.capture(wr, 143, 0))
            for r_, row, neg in ((Y[0], YR0, True), (E[1], 1, False), (P[1], 8, False)):
                c_, w_ = out(r_, row, neg)
                pend.extend(c_ + w_)
            grp([(Y[1], Y[0], Q, YR0 + 1, True), (Q2, Q, Q, None, False), (E[2], E[1], E[1], 2, False), (P[2], P[1], P[1], 16, False)])
            grp([(Y[2], Y[0], Q2, YR0 + 2, True), (Y[3], Y[1], Q2, YR0 + 3, True), (E[3], E[2], E[1], 3, False), (E[4], E[2], E[2], 4, False)])
            grp([(Y[0], Y[2], Q2, YR0 + 4, True), (Y[1], Y[3], Q2, YR0 + 5, True), (E[5], E[4], E[1], 5, False), (E[6], E[4], E[2], 6, False)])
            grp([(Y[2], Y[0], Q2, YR0 + 6, True), (Y[3], Y[1], Q2, YR0 + 7, True), (E[7], E[4], E[3], 7, False), (P[3], P[2], P[1], 20, False)])
            grp([(Y[0], Y[2], Q2, YR0 + 8, True), (Y[1], Y[3], Q2, YR0 + 9, True), (T2[0], P[1], E[1], 9, False), (T2[1], P[1], E[2], 10, False)])
            grp([(Y[2], Y[0], Q2, YR0 + 10, True), (Y[3], Y[1], Q2, YR0 + 11, True), (T2[2], P[1], E[3], 11, False), (T2[3], P[1], E[4], 12, False)])
            grp([(Y[0], Y[2], Q2, YR0 + 12, True), (Y[1], Y[3], Q2, YR0 + 13, True), (T2[0], P[1], E[5], 13, False), (T2[1], P[1], E[6], 14, False)])
            grp([(Y[2], Y[0], Q2, YR0 + 14, True), (Y[3], Y[1], Q2, YR0 + 15, True), (T2[2], P[1], E[7], 15, False), (P[4], P[2], P[2], 24, False)])
            def rdf(dst, row0, tag):
                for st in range(4):
                    a("ds_read_b128 %s, v%d offset:%d" % (v(dst + 4 * st, 4), vFA, row0 * 288 + 64 * st), tag=tag)
            pend.extend(a.capture(rdf, YFR, YR0, "yf") + a.capture(rdf, XFR, 0, "x0"))
            grp([(T2[4], P[2], E[2], 17, False), (T2[5], P[2], E[4], 18, False), (T2[6], P[2], E[6], 19, False), (P[5], P[4], P[1], 26, False)])
            grp([(T2[0], P[3], E[2], 21, False), (T2[1], P[3], E[4], 22, False), (T2[2], P[3], E[6], 23, False), (P[6], P[4], P[2], 28, False)])
            grp([(P[7], P[4], P[3], 30, False), (P[8], P[4], P[4], 32, False), (T2[4], P[4], E[4], 25, False), (T2[5], P[5], E[4], 27, False)])
            grp([(T2[0], P[6], E[4], 29, False), (T2[1], P[7], E[4], 31, False), (T2[2], P[8], P[1], 33, False), (T2[3], P[8], P[2], 34, False)])
            pend.extend(a.capture(rdf, XFR + 16, 16, "x1"))
            grp([(T2[4], P[8], P[3], 35, False), (T2[5], P[8], P[4], 36, False), (T2[6], P[8], P[5], 37, False)])
            grp([(T2[0], P[8], P[6], 38, False), (T2[1], P[8], P[7], 39, False), (T2[2], P[8], P[8], 40, False)])
            m0_ = a.capture(mf, DK, 0, "x0")
            while pend or m0_:
                drip(1)
                if m0_:
                    a.play(m0_.pop(0))
            rdf(XFR + 32, 32, "x2")
            late.extend(a.capture(mf, DK + 4, 16, "x1") + a.capture(mf, DK + 8, 32, "x2"))
        if cfg.kg2 == 2:
            for k in range(12):
                a("v_mov_b32 v%d, v%d" % (F0 + k, F0 + 6 + k))
                if k % 2:
                    dl(1)
        dl(100)
        if cfg.kg2 == 2:
            a("s_sub_u32 s%d, s%d, 1" % (sT3, sT3))
            a("s_cmp_lg_u32 s%d, 0" % sT3)
            a("s_cbranch_scc1 L_kgen")
    else:
        a("s_mov_b32 s%d, 3" % sT3)
        a.label("L_kgen")
        a.lg = []
        def round_body():
            a("v_pk_mul_f32 v[126:127], v[64:65], v[82:83] op_sel_hi:[1,0]")
            a("v_pk_mul_f32 v[128:129], v[66:67], v[82:83] op_sel_hi:[1,0]")
            a("v_mul_f32 v126, %s, v126" % f32(math.log2(math.e)))
            a("v_mul_f32 v127, 0.15915494, v127")
            cmul1(Y[0], 68, 128)
            anchors = [(E[1], 1.0), (Q, 8.0), (P[1], 128.0)]
            for idx, (d, k) in enumerate(anchors):
                m_, f_ = 134 + 2 * idx, 135 + 2 * idx
                if k == 1.0:
                    a("v_exp_f32 v%d, v126" % m_)
                    a("v_fract_f32 v%d, v127" % f_)
                else:
                    a("v_mul_f32 v%d, %s, v126" % (m_, f32(k)))
                    a("v_mul_f32 v%d, %s, v127" % (f_, f32(k)))
                    a("v_exp_f32 v%d, v%d" % (m_, m_))
                    a("v_fract_f32 v%d, v%d" % (f_, f_))
            cmul2(Y[0], 68, 128)
            for idx, (d, k) in enumerate(anchors):
                a("v_cos_f32 v%d, v%d" % (d, 135 + 2 * idx))
                a("v_sin_f32 v%d, v%d" % (d + 1, 135 + 2 * idx))
            for idx, (d, k) in enumerate(anchors):
                a("v_pk_mul_f32 %s, %s, %s op_sel_hi:[1,0]" % (v(d, 2), v(d, 2), v(134 + 2 * idx, 2)))
            for k in range(12):
                a("v_mov_b32 v%d, v%d" % (F0 + k, F0 + 6 + k))
            YR0 = 25
            wr(143, 0)
            p_ = [put(Y[0], YR0, True), put(E[1], 1), put(P[1], 8)]
            for _, c, row in p_:
                wr(c, row)
            group([(Y[1], Y[0], Q, YR0 + 1, True), (Q2, Q, Q, None, False), (E[2], E[1], E[1], 2, False), (P[2], P[1], P[1], 16, False)])
            group([(Y[2], Y[0], Q2, YR0 + 2, True), (Y[3], Y[1], Q2, YR0 + 3, True), (E[3], E[2], E[1], 3, False), (E[4], E[2], E[2], 4, False)])
            group([(Y[0], Y[2], Q2, YR0 + 4, True), (Y[1], Y[3], Q2, YR0 + 5, True), (E[5], E[4], E[1], 5, False), (E[6], E[4], E[2], 6, False)])
            group([(Y[2], Y[0], Q2, YR0 + 6, True), (Y[3], Y[1], Q2, YR0 + 7, True), (E[7], E[4], E[3], 7, False), (P[3], P[2], P[1], 20, False)])
            group([(Y[0], Y[2], Q2, YR0 + 8, True), (Y[1], Y[3], Q2, YR0 + 9, True), (TT[0], P[1], E[1], 9, False), (TT[1], P[1], E[2], 10, False)])
            group([(Y[2], Y[0], Q2, YR0 + 10, True), (Y[3], Y[1], Q2, YR0 + 11, True), (TT[0], P[1], E[3], 11, False), (TT[1], P[1], E[4], 12, False)])
            group([(Y[0], Y[2], Q2, YR0 + 12, True), (Y[1], Y[3], Q2, YR0 + 13, True), (TT[0], P[1], E[5], 13, False), (TT[1], P[1], E[6], 14, False)])
            group([(Y[2], Y[0], Q2, YR0 + 14, True), (Y[3], Y[1], Q2, YR0 + 15, True), (TT[0], P[1], E[7], 15, False), (P[4], P[2], P[2], 24, False)])
            for st in range(4):
                a("ds_read_b128 %s, v%d offset:%d" % (v(YFR + 4 * st, 4), vFA, YR0 * 288 + 64 * st), tag="yf")
            for st in range(4):
                a("ds_read_b128 %s, v%d offset:%d" % (v(XFR + 4 * st, 4), vFA, 64 * st), tag="x0")
            group([(TT[0], P[2], E[2], 17, False), (TT[1], P[2], E[4], 18, False), (TT[2], P[2], E[6], 19, False), (P[5], P[4], P[1], 26, False)])
            group([(TT[0], P[3], E[2], 21, False), (TT[1], P[3], E[4], 22, False), (TT[2], P[3], E[6], 23, False), (P[6], P[4], P[2], 28, False)])
            a.wait_lg("x0")
            for st in range(4):
                a("v_mfma_f32_16x16x32_bf16 %s, %s, %s, %s" % (v(DK, 4), v(XFR + 4 * st, 4), v(YFR + 4 * st, 4), v(DK, 4)))
            group([(P[7], P[4], P[3], 30, False), (P[8], P[4], P[4], 32, False), (TT[0], P[4], E[4], 25, False), (TT[1], P[5], E[4], 27, False)])
            group([(TT[0], P[6], E[4], 29, False), (TT[1], P[7], E[4], 31, False), (TT[2], P[8], P[1], 33, False), (TT[3], P[8], P[2], 34, False)])
            for st in range(4):
                a("ds_read_b128 %s, v%d offset:%d" % (v(XFR + 16 + 4 * st, 4), vFA, 16 * 288 + 64 * st), tag="x1")
            group([(TT[0], P[8], P[3], 35, False), (TT[1], P[8], P[4], 36, False), (TT[2], P[8], P[5], 37, False)])
            group([(TT[0], P[8], P[6], 38, False), (TT[1], P[8], P[7], 39, False), (TT[2], P[8], P[8], 40, False)])
            for st in range(4):
                a("ds_read_b128 %s, v%d offset:%d" % (v(XFR + 32 + 4 * st, 4), vFA, 32 * 288 + 64 * st), tag="x2")
            a.wait_lg("x1")
            for st in range(4):
                a("v_mfma_f32_16x16x32_bf16 %s, %s, %s, %s" % (v(DK + 4, 4), v(XFR + 16 + 4 * st, 4), v(YFR + 4 * st, 4), v(DK + 4, 4)))
            a.wait_lg("x2")
            for st in range(4):
                a("v_mfma_f32_16x16x32_bf16 %s, %s, %s, %s" % (v(DK + 8, 4), v(XFR + 32 + 4 * st, 4), v(YFR + 4 * st, 4), v(DK + 8, 4)))
        items = a.capture(round_body)
        if cfg.kg2 == 3:
            isv = lambda it: it[0] == "i" and it[1].startswith("v_") and not it[1].startswith("v_mfma")
            vv = [it for it in items if isv(it)]
            oo = [it for it in items if not isv(it)]
            if cfg.sepu:
                import re as _re
                sets = {0: [], 1: [], 2: [], 3: []}
                seenY = False
                for it in oo:
                    if it[0] == "i" and it[1].startswith("ds_read") and it[2] == "yf":
                        seenY = True
                    if it[0] == "i" and it[1].startswith("ds_write_addtid"):
                        row = int(_re.search(r"offset:(\d+)", it[1]).group(1)) // 288
                        if row >= 25 and not seenY:
                            k, r16 = 0, row - 25
                        else:
                            k, r16 = 1 + row // 16, row % 16
                        sets[k].append(("i", _re.sub(r"offset:\d+", "offset:%d" % (r16 * 288), it[1]), None))
                oo = []
                XS = 0 if cfg.kv3 else 16
                for k, (dst, tg) in enumerate(((YFR, "yf"), (XFR, "x0"), (XFR + XS, "x1"), (XFR + 2 * XS, "x2"))):
                    oo += sets[k]
                    if k >= 2:
                        oo.append(("wait_lg", ("x0", "x1")[k - 2], None))
                        for st in range(4):
                            dk = DK + 4 * (k - 2)
                            oo.append(("i", "v_mfma_f32_16x16x32_bf16 %s, %s, %s, %s" % (v(dk, 4), v(XFR + XS * (k - 2) + 4 * st, 4), v(YFR + 4 * st, 4), v(dk, 4)), None))
                    for st in range(4):
                        oo.append(("i", "ds_read_b128 %s, v%d offset:%d" % (v(dst + 4 * st, 4), vFA, 64 * st), tg))
                oo.append(("wait_lg", "x2", None))
                for st in range(4):
                    oo.append(("i", "v_mfma_f32_16x16x32_bf16 %s, %s, %s, %s" % (v(DK + 8, 4), v(XFR + 2 * XS + 4 * st, 4), v(YFR + 4 * st, 4), v(DK + 8, 4)), None))
            items = vv + oo
        if cfg.kv3:
            for it in vv:
                a.play(it)
            a("s_cmp_lg_u32 s%d, 2" % sT3)
            a("s_cbranch_scc1 L_kL")
            for k, c in enumerate(CV):
                a("v_mov_b32 v%d, v%d" % (197 + k, c))
            a("s_mov_b32 s%d, 1" % sT3)
            a("s_branch L_kgen")
            a.label("L_kL")
            for it in oo:
                a.play(it)
            a("s_sub_u32 s%d, s%d, 1" % (sT3, sT3))
            a("s_cbranch_scc1 L_kend")
            a("s_cmp_lg_u32 s%d, 0" % sT3)
            a("s_cbranch_scc1 L_kgen")
            for k, c in enumerate(CV):
                a("v_mov_b32 v%d, v%d" % (c, 197 + k))
            a("s_branch L_kL")
            a.label("L_kend")
            a("s_nop 7")
        else:
            for it in items:
                a.play(it)
            a("s_sub_u32 s%d, s%d, 1" % (sT3, sT3))
            a("s_cmp_lg_u32 s%d, 0" % sT3)
            a("s_cbranch_scc1 L_kgen")
    a.drain_vm()
    if cfg.fastp:
        a("s_setprio %d" % cfg.xprio)
    stamp(4)
    a("v_and_b32 v16, 15, v0")
    a("v_lshrrev_b32 v17, 4, v0")
    a("s_add_u32 s%d, s%d, %d" % (sT0, sRB, 4624 if cfg.sepu else TB_OFF))
    a("v_lshrrev_b32 v18, 1, v17")
    a("v_lshlrev_b32 v18, 7, v18")
    a("v_and_b32 v19, 1, v17")
    a("v_lshl_add_u32 v18, v19, 2, v18")
    a("v_lshl_add_u32 v18, v16, 3, v18")
    a("v_lshl_add_u32 v18, v18, 2, s%d" % sT0)
    a("v_lshlrev_b32 v19, 2, v16")
    a("v_lshlrev_b32 v20, 1, v16")
    a("v_cmp_gt_u32 vcc, 2, v17")
    a("v_cndmask_b32 v19, v20, v19, vcc")
    a("v_lshl_add_u32 v19, v17, 6, v19")
    a("v_lshl_add_u32 v19, v19, 2, s%d" % sT0)
    a("v_mov_b32 v20, 128")
    a("v_cndmask_b32 v20, v20, 8, vcc")
    a("v_add_u32 v20, v19, v20")
    a("v_lshl_add_u32 v21, v17, 6, v16")
    a("v_lshl_add_u32 v21, v21, 2, s%d" % sT0)
    a("v_lshlrev_b32 v22, 4, v0")
    a("v_add_u32 v22, %d, v22" % ZP_OFF)
    a("v_mov_b32 v23, 4096")
    a("v_cmp_gt_u32 vcc, %d, v0" % (14 if cfg.sepu else 15))
    a("v_cndmask_b32 v22, v23, v22, vcc")
    if cfg.sepu:
        a("v_mov_b32 v23, 4608")
        a("v_cmp_eq_u32 vcc, 14, v0")
        a("v_cndmask_b32 v22, v22, v23, vcc")
    a("v_add_u32 v22, s%d, v22" % sRB)
    for k in range(4):
        a("v_mov_b32 v%d, 0" % (24 + k))
    a("ds_write_b128 v22, v[24:27]")
    a("ds_write_b128 v18, %s" % v(DK, 4))
    a("ds_write_b64 v19, %s offset:1024" % v(DK + 4, 2))
    a("ds_write_b64 v20, %s offset:1024" % v(DK + 6, 2))
    for r in range(4):
        a("ds_write_b32 v21, v%d offset:%d" % (DK + 8 + r, 2048 + 64 * r))
    a("v_lshl_add_u32 v18, v0, 4, s%d" % sT0)
    a("v_lshl_add_u32 v19, v0, 3, s%d" % sT0)
    a("v_subrev_u32 v20, 4, v18")
    a("v_subrev_u32 v21, 4, v19")
    a("v_cmp_eq_u32 vcc, 0, v0")
    a("v_cndmask_b32 v21, v19, v21, vcc")
    a("ds_read_b128 v[28:31], v18", tag="s0")
    a("ds_read_b32 v32, v20", tag="s0")
    a("ds_read_b64 v[34:35], v19 offset:1024", tag="s1")
    a("ds_read_b32 v36, v19 offset:1032", tag="s1")
    a("ds_read_b32 v37, v21 offset:1024", tag="s1")
    a("ds_read_b64 v[38:39], v19 offset:1536", tag="s2")
    a("ds_read_b32 v40, v19 offset:1544", tag="s2")
    a("ds_read_b64 v[42:43], v19 offset:2048", tag="s3")
    a("ds_read_b32 v44, v19 offset:2056", tag="s3")
    a("v_lshlrev_b32 v22, 3, v0")
    a("v_sub_u32 v22, s%d, v22" % sRB)
    a("v_lshlrev_b32 v23, 4, v0")
    a("v_sub_u32 v23, s%d, v23" % sRB)
    a("v_lshlrev_b32 v24, 5, v0")
    a("v_sub_u32 v24, s%d, v24" % sRB)
    a("v_add_u32 v22, %d, v22" % (4096 - 512 - 8))
    a("v_add_u32 v23, %d, v23" % (4096 - 1024 - 16))
    a("v_add_u32 v24, %d, v24" % (4096 - 2048 - 32))
    def pk(d, lo, hi):
        a("v_cvt_pk_bf16_f32 v%d, v%d, v%d" % (d, lo, hi))
    a("v_cndmask_b32 v33, 0, v%d, vcc" % vDS)
    a.wait_lg("s0")
    a("v_add_f32 v28, v28, v33")
    pk(48, 31, 30); pk(49, 29, 28); pk(50, 30, 29); pk(51, 28, 32)
    a("ds_write_b64 v22, v[48:49] offset:512")
    a("ds_write_b64 v22, v[50:51] offset:%d" % (512 + KB_OFF))
    a.wait_lg("s1")
    pk(52, 36, 35); pk(53, 34, 34); pk(54, 35, 34); pk(55, 34, 37)
    a("ds_write_b64 v22, v[52:53]")
    a("ds_write_b64 v22, v[54:55] offset:%d" % KB_OFF)
    a.wait_lg("s2")
    A_, B_, C_ = 38, 39, 40
    pk(56, C_, C_); pk(57, B_, B_); pk(58, B_, A_); pk(59, A_, A_)
    pk(60, C_, B_); pk(61, B_, B_); pk(62, A_, A_); pk(63, A_, A_)
    a("ds_write_b128 v23, v[56:59]")
    a("ds_write_b128 v23, v[60:63] offset:%d" % KB_OFF)
    a.wait_lg("s3")
    A_, B_, C_ = 42, 43, 44
    seqA = [(C_, C_), (C_, C_), (B_, B_), (B_, B_), (B_, B_), (B_, A_), (A_, A_), (A_, A_)]
    seqB = [(C_, C_), (C_, B_), (B_, B_), (B_, B_), (B_, B_), (A_, A_), (A_, A_), (A_, A_)]
    for k, (lo, hi) in enumerate(seqA):
        pk(64 + k, lo, hi)
    for k, (lo, hi) in enumerate(seqB):
        pk(72 + k, lo, hi)
    a("ds_write_b128 v24, v[64:67]")
    a("ds_write_b128 v24, v[68:71] offset:16")
    a("ds_write_b128 v24, v[72:75] offset:%d" % KB_OFF)
    a("ds_write_b128 v24, v[76:79] offset:%d" % (KB_OFF + 16))
    stamp(5)
    if not cfg.keepk and not cfg.fastp:
        a("s_setprio 0")
    if not cfg.helper and not cfg.sepu:
        a.drain_lg()
        lds_arrive(20, 8, 9)
    vUA, vKA = 10, 11
    def conv_addr(sb):
        a("v_and_b32 v12, 15, v0")
        a("v_lshrrev_b32 v13, 4, v0")
        a("v_lshlrev_b32 v13, 1, v13")
        a("v_sub_u32 v12, v12, v13")
        a("v_lshlrev_b32 v12, 4, v12")
        a("s_add_u32 s%d, s%d, %d" % (sT1, sb, U_OFF - 128))
        a("v_add_u32 v%d, s%d, v12" % (vUA, sT1))
        a("v_lshrrev_b32 v12, 1, v0")
        a("v_lshlrev_b32 v12, 2, v12")
        a("v_and_b32 v13, 1, v0")
        a("v_mul_u32_u24 v13, %d, v13" % KB_OFF)
        a("v_add_u32 v12, v12, v13")
        a("s_add_u32 s%d, s%d, %d" % (sT1, sb, KB_OFF + 4092 - 128 - 768))
        a("v_sub_u32 v%d, s%d, v12" % (vKA, sT1))
        for g in range(1, 4):
            a("v_subrev_u32 v%d, %d, v%d" % (vKA + g, 1024 * g, vKA))
    conv_addr(sRB)
    AC, KF, UF, NU = 16, 80, 208, 8
    NT = cfg.NT if cfg.helper else 16
    NH = 16 - NT
    def kfr(lo, hi):
        for idx in range(lo, hi):
            c, tau = idx >> 4, idx & 15
            if tau >= NT:
                continue
            o = 192 - 64 * (tau & 3) + 32 * (1 - c)
            r = KF + 4 * idx
            a("ds_read2_b32 %s, v%d offset0:%d offset1:%d" % (v(r, 2), vKA + (tau >> 2), o, o + 1))
            a("ds_read2_b32 %s, v%d offset0:%d offset1:%d" % (v(r + 2, 2), vKA + (tau >> 2), o + 2, o + 3))
    kfr(0, cfg.kf0 if cfg.fastp else 32)
    a("v_and_b32 v4, 15, v0")
    a("v_lshlrev_b32 v4, 4, v4")
    a("v_lshrrev_b32 v5, 5, v0")
    a("v_lshl_add_u32 v4, v5, 11, v4")
    a("v_bfe_u32 v5, v0, 4, 1")
    a("v_lshl_add_u32 v4, v5, 8, v4")
    group_ids(5, 6, sX, 7)
    a("v_mov_b32 v6, %d" % CNT)
    if cfg.zc:
        for k in range(4):
            a("v_mov_b32 v%d, 0" % (240 + k))
    if cfg.helper:
        a.drain_lg()
        lds_arrive(20, 8, 9)
    if cfg.fastp:
        assert cfg.nox and not cfg.t7 and not cfg.helper
        lds_wait(24, 1, 8, 9, sleep=1)
        a("v_add_u32 v8, s%d, v2" % sRB)
        a("v_lshlrev_b32 v9, 5, v0")
        for k in range(4):
            a("ds_read_b128 %s, v9 offset:%d" % (v(AC + 8 * k, 4), RY + 2048 * k), tag="x%d" % k)
            a("ds_read_b128 %s, v9 offset:%d" % (v(AC + 8 * k + 4, 4), RY + 2048 * k + 16), tag="x%d" % k)
            a("ds_read_b128 %s, v8 offset:%d" % (v(UF + 4 * k, 4), U_OFF + 1024 * k), tag="x%d" % k)
        kq = a.capture(kfr, cfg.kf0, 32)
        TH = UF + 16
        def tf():
            for k in range(4):
                H_ = UF + 4 * k
                a.wait_lg("x%d" % k)
                for q in range(8 * k, 8 * k + 8):
                    a("v_lshlrev_b32 v%d, 16, v%d" % (AC + 32 + q, AC + q))
                    a("v_and_b32 v%d, s%d, v%d" % (AC + q, sMASK, AC + q))
                for q in range(4):
                    a("v_lshlrev_b32 v%d, 16, v%d" % (TH + 2 * q, H_ + q))
                    a("v_and_b32 v%d, s%d, v%d" % (TH + 2 * q + 1, sMASK, H_ + q))
                for q in range(8):
                    a("v_fmac_f32 v%d, v%d, v%d" % (AC + 32 + 8 * k + q, TH + q, AC + 8 * k + q))
                for q in range(4):
                    a("v_cvt_pk_bf16_f32 v%d, v%d, v%d" % (AC + 8 * k + q, AC + 32 + 8 * k + 2 * q, AC + 32 + 8 * k + 2 * q + 1))
                a("ds_write_b128 v8, %s offset:%d" % (v(AC + 8 * k, 4), U_OFF + 1024 * k))
        for n_, it in enumerate(a.capture(tf)):
            a.play(it)
            if n_ % 3 == 2 and kq:
                a.play(kq.pop(0))
        for it in kq:
            a.play(it)
        lds_arrive(44, 8, 9)
    else:
        if cfg.nox and not cfg.t7:
            if cfg.tprio:
                a("s_setprio %d" % cfg.tprio)
            lds_wait(48, 1, 8, 9, sleep=1)
            a("v_lshlrev_b32 v9, 5, v0")
            for k in range(4):
                a("ds_read_b128 %s, v9 offset:%d" % (v(AC + 8 * k, 4), RY + 2048 * k), tag="x%d" % k)
                a("ds_read_b128 %s, v9 offset:%d" % (v(AC + 8 * k + 4, 4), RY + 2048 * k + 16), tag="x%d" % k)
            for k in range(4):
                a.wait_lg("x%d" % k)
                for q in range(8 * k, 8 * k + 8):
                    a("v_lshlrev_b32 v%d, 16, v%d" % (AC + 32 + q, AC + q))
                    a("v_and_b32 v%d, s%d, v%d" % (AC + q, sMASK, AC + q))
        lds_wait(24, 1, 8, 9, sleep=1)
        if cfg.nox and not cfg.t7:
            a("v_add_u32 v8, s%d, v2" % sRB)
            for k in range(4):
                a("ds_read_b128 %s, v8 offset:%d" % (v(UF + 4 * k, 4), U_OFF + 1024 * k), tag="x%d" % k)
            TH = UF + 16
            for k in range(4):
                H_ = UF + 4 * k
                a.wait_lg("x%d" % k)
                for q in range(4):
                    a("v_lshlrev_b32 v%d, 16, v%d" % (TH + 2 * q, H_ + q))
                    a("v_and_b32 v%d, s%d, v%d" % (TH + 2 * q + 1, sMASK, H_ + q))
                for q in range(8):
                    a("v_fmac_f32 v%d, v%d, v%d" % (AC + 32 + 8 * k + q, TH + q, AC + 8 * k + q))
                for q in range(4):
                    a("v_cvt_pk_bf16_f32 v%d, v%d, v%d" % (AC + 8 * k + q, AC + 32 + 8 * k + 2 * q, AC + 32 + 8 * k + 2 * q + 1))
                a("ds_write_b128 v8, %s offset:%d" % (v(AC + 8 * k, 4), U_OFF + 1024 * k))
            lds_arrive(44, 8, 9)
    stamp(7)
    if cfg.cprio or cfg.keepk or cfg.tprio or cfg.fastp:
        a("s_setprio %d" % cfg.cprio)
    seq = []
    for c in range(2):
        if cfg.helper and c == 0:
            seq += [(0, 0), (0, NT)]
            rest = [m for m in range(1, 16) if m != NT]
            while rest:
                seq += [(0, rest.pop(0)), (0, rest.pop())]
        else:
            for q in range(8):
                seq += [(c, q), (c, 15 - q)]
    def uread(n):
        c, mu = seq[n]
        a("ds_read_b128 %s, v%d offset:%d" % (v(UF + 4 * (n % NU), 4), vUA, 128 * (1 - c) + 256 * mu), tag="U%d" % n)
    for n in range(NU - 2):
        uread(n)
    stubs = []
    for n in range(32):
        c, mu = seq[n]
        if n % 2 == 0:
            if cfg.pause and n:
                a.wait_lg("pz")
                if n == 2 and cfg.pprio:
                    a("v_cmp_le_u32 vcc, 4, v9")
                    a("s_cbranch_vccz L_nlp")
                    a("s_setprio %d" % cfg.pprio)
                    a.label("L_nlp")
                if cfg.pth > 1:
                    a("v_sub_u32 v8, v8, v9")
                    a("v_cmp_le_u32 vcc, %d, v8" % cfg.pth)
                else:
                    a("v_cmp_ne_u32 vcc, v8, v9")
                a("s_cbranch_vccnz L_pz%d" % n)
                a.label("L_np%d" % n)
                stubs.append(n)
            if cfg.pause and n < 30:
                a("ds_read2_b32 v[8:9], v6 offset0:%d offset1:7" % (14 if cfg.psat >= 0 else 0), tag="pz")
            for k in (n + NU - 2, n + NU - 1):
                if k < 32:
                    uread(k)
        a.wait_lg("U%d" % n)
        for tau in range(min(NT, 16 - mu)):
            acc = v(AC + 4 * (tau + mu), 4)
            first = n == 0 or (cfg.helper and n == 1)
            if not cfg.noconv or first:
                a("v_mfma_f32_16x16x32_bf16 %s, %s, %s, %s" % (acc, v(KF + 4 * (16 * c + tau), 4), v(UF + 4 * (n % NU), 4), ("v[240:243]" if cfg.zc else "0") if first else acc))
    stamp(8)
    if cfg.helper:
        a("s_sub_u32 s%d, s%d, 3" % (sT3, sWV))
        lds_wait(36, "s%d" % sT3, 8, 9, sleep=1)
        a("v_add_u32 v8, s%d, v2" % sRB)
        for q in range(NH):
            a("ds_read_b128 %s, v8 offset:%d" % (v(UF + 4 * q, 4), 1024 * q), tag="hp%d" % q)
        for q in range(NH):
            a.wait_lg("hp%d" % q)
            for r in range(4):
                a("v_add_f32 v%d, v%d, v%d" % (AC + 4 * (NT + q) + r, AC + 4 * (NT + q) + r, UF + 4 * q + r))
    if cfg.eprio != cfg.cprio:
        a("s_setprio %d" % cfg.eprio)
    CY = 100
    for r in range(4):
        a("v_mov_b32 v%d, 0" % (CY + r))
    for m in range(8):
        for r in range(4):
            a("v_permlane32_swap_b32 v%d, v%d" % (AC + 4 * m + r, AC + 32 + 4 * m + r))
    for r in range(4):
        a("v_mov_b32 v%d, v%d" % (CY + 4 + r, AC + 32 + 28 + r))
    for m in range(8):
        for r in range(4):
            L_ = AC + 4 * m + r
            a("v_add_f32_dpp v%d, v%d, v%d row_shr:1 row_mask:0xf bank_mask:0xf bound_ctrl:0" % (L_, AC + 32 + 4 * m + r, L_))
        if m == 0:
            for r in range(4):
                a("v_permlane32_swap_b32 v%d, v%d" % (CY + r, CY + 4 + r))
    for m in range(8):
        for r in range(4):
            L_ = AC + 4 * m + r
            prev = (AC + 32 + 4 * (m - 1) + r) if m else (CY + r)
            a("v_add_f32_dpp v%d, v%d, v%d row_shl:15 row_mask:0xf bank_mask:0xf bound_ctrl:0" % (L_, prev, L_))
    TP2 = 108
    for k in range(16):
        a("v_cvt_pk_bf16_f32 v%d, v%d, v%d" % (TP2 + k, AC + 2 * k, AC + 2 * k + 1))
    for mp in range(4):
        a("v_permlane16_swap_b32 v%d, v%d" % (TP2 + 4 * mp, TP2 + 4 * mp + 2))
        a("v_permlane16_swap_b32 v%d, v%d" % (TP2 + 4 * mp + 1, TP2 + 4 * mp + 3))
    if cfg.ysync:
        a("s_and_b32 s%d, s%d, 1" % (sT2, sJ))
        a("s_add_u32 s%d, s%d, 2" % (sT2, sT2))
        a("v_mov_b32 v12, %d" % (CNT + 32))
        a("v_mov_b32 v13, s%d" % sT2)
        a("s_mov_b64 exec, 1")
        a("ds_add_u32 v12, v13")
        a("s_mov_b64 exec, -1")
        lds_wait(32, 6, 12, 13, sleep=1)
    a("s_lshl_b32 s%d, s%d, 12" % (sT0, sPOS))
    a("s_add_u32 s%d, s%d, 0x%x" % (sT0, sT0, YA))
    for mp in range(4):
        a("buffer_store_dwordx4 %s, v4, %s, s%d offen offset:%d sc1" % (v(TP2 + 4 * mp, 4), s(rWS, 4), sT0, 512 * mp))
    if cfg.ssig:
        a("s_lshl_b32 s%d, s%d, 10" % (sT1, sX))
        a("s_add_u32 s%d, s%d, 0x%x" % (sT1, sT1, YC))
        if cfg.ywg:
            assert cfg.xnlate != 2
            a("v_mov_b32 v12, %d" % (CNT + 40))
            a("v_mov_b32 v13, 1")
            a("s_and_b32 s%d, s%d, 1" % (sT2, sJ))
        a.drain_vm()
        if cfg.ywg:
            a("s_mov_b64 exec, 1")
            a("ds_add_rtn_u32 v13, v12, v13")
            a("s_mov_b64 exec, -1")
            a.drain_lg()
            a("v_readfirstlane_b32 s%d, v13" % sT0)
            a("s_add_u32 s%d, s%d, s%d" % (sT0, sT0, sT2))
            a("s_cmp_lg_u32 s%d, 2" % sT0)
            a("s_cbranch_scc1 L_aux_done")
        sig8(sT1, 128)
    else:
        a("s_mov_b32 s%d, 0x%x" % (sT1, YC))
        a.drain_vm()
        group_add(5, sT1, 13)
    stamp(9)
    a.label("L_aux_done")
    finish()
    def emit_stubs(lst):
        for n in lst:
            a.label("L_pz%d" % n)
            a("s_mov_b32 s%d, 0x%x" % (sCNT, cfg.spin * 64))
            a.label("L_pl%d" % n)
            a("s_sleep 1")
            a("ds_read2_b32 v[8:9], v6 offset0:%d offset1:7" % (14 if cfg.psat >= 0 else 0))
            a("s_sub_u32 s%d, s%d, 1" % (sCNT, sCNT))
            a("s_cbranch_scc1 L_np%d" % n)
            a.drain_lg()
            a("v_cmp_ne_u32 vcc, v8, v9")
            a("s_cbranch_vccnz L_pl%d" % n)
            if cfg.pprio:
                a("s_setprio %d" % cfg.pprio)
            a("s_branch L_np%d" % n)
    emit_stubs(stubs)
    hstubs = []
    if cfg.stouch:
        a.label("L_w6")
        a("s_lshr_b32 s%d, s%d, 1" % (sT0, sJ))
        a("s_mul_i32 s%d, s%d, %d" % (sT0, sT0, 96 * 4096))
        a("s_lshl_b32 s%d, s%d, 9" % (sT1, sX))
        a("s_add_u32 s%d, s%d, s%d" % (sT0, sT0, sT1))
        a("s_add_u32 s14, s%d, s%d" % (pW2, sT0))
        a("s_addc_u32 s15, s%d, 0" % (pW2 + 1))
        a("s_mov_b32 s%d, 24" % sCNT)
        a.label("L_w6l")
        for r in range(4):
            for c in range(4):
                a("s_load_dword s%d, s[14:15], 0x%x" % (76 + (4 * r + c) % 8, r * 4096 + c * 128))
            if cfg.stouch == 2:
                a("s_waitcnt lgkmcnt(8)")
        a("s_add_u32 s14, s14, %d" % (4 * 4096))
        a("s_addc_u32 s15, s15, 0")
        a("s_sub_u32 s%d, s%d, 1" % (sCNT, sCNT))
        a("s_cmp_lg_u32 s%d, 0" % sCNT)
        a("s_cbranch_scc1 L_w6l")
        stamp(9)
        a("s_branch L_aux_done")
    a.label("L_w7")
    a.vm = []; a.lg = []
    tile_math()
    a("v_lshrrev_b32 v8, 2, v0")
    a("v_and_b32 v9, 3, v0")
    a("v_mul_u32_u24 v5, 10240, v8")
    a("v_lshl_add_u32 v5, v9, 4, v5")
    a("v_mul_u32_u24 v4, %d, v9" % S)
    a("v_lshl_add_u32 v4, v8, 4, v4")
    a("s_lshl_b32 s96, s%d, 4" % sPOS)
    a("s_add_u32 s96, s96, 0x%x" % (HB if cfg.nox else XB))
    a("v_lshrrev_b32 v7, 1, v0")
    a("v_lshlrev_b32 v7, %d, v7" % cfg.stsh)
    a("v_and_b32 v13, 16, v2")
    a("v_add_u32 v7, v7, v13")
    a("s_and_b32 s%d, s%d, 1" % (sT3, sJ))
    a("s_cmp_eq_u32 s%d, 0" % sT3)
    a("s_mov_b32 s%d, 0x33333333" % sT2)
    a("s_cselect_b32 s100, 0x77777777, s%d" % sT2)
    a("s_mov_b32 s101, s100")
    a("s_setprio %d" % cfg.uprio)
    if cfg.w7mb:
        a("s_lshl_b32 s%d, s%d, 10" % (sT1, sID))
        a("s_add_u32 s%d, s%d, 0x%x" % (sT1, sT1, MB))
        a("s_add_u32 s14, s%d, s%d" % (pWS, sT1))
        a("s_addc_u32 s15, s%d, 0" % (pWS + 1))
        a("s_mov_b32 s%d, %d" % (sCNT, cfg.spin * 2))
        a.label("L_p4")
        for k in range(4):
            a("s_load_dword s%d, s[14:15], %d glc" % (sD[k], 128 * k + (64 if cfg.xnlate else 0)))
        a("s_waitcnt lgkmcnt(0)"); a.lg = []
        for k in range(4):
            a("s_xor_b32 s%d, s%d, s%d" % (sD[k], sD[k], sTAG))
        a("s_or_b32 s%d, s%d, s%d" % (sD[0], sD[0], sD[1]))
        a("s_or_b32 s%d, s%d, s%d" % (sD[2], sD[2], sD[3]))
        a("s_or_b32 s%d, s%d, s%d" % (sD[0], sD[0], sD[2]))
        a("s_cbranch_scc0 L_p4ok")
        if cfg.p4s:
            a("s_sleep %d" % cfg.p4s)
        a("s_sub_u32 s%d, s%d, 1" % (sCNT, sCNT))
        a("s_cmp_lg_u32 s%d, 0" % sCNT)
        a("s_cbranch_scc1 L_p4")
        a.label("L_p4ok")
    else:
        lds_wait(12, 4, 10, 11, sleep=2)
    stamp(5)
    def touch_w2():
        sh = 2 if cfg.map2 == 8 else 3
        a("v_lshrrev_b32 v10, %d, v0" % sh)
        a("v_lshlrev_b32 v10, 12, v10")
        a("v_and_b32 v11, %d, v0" % ((1 << sh) - 1))
        a("v_lshl_add_u32 v10, v11, 7, v10")
        a("s_mul_i32 s%d, s%d, %d" % (sT1, sJ, 48 * 4096))
        if cfg.map2 == 8:
            a("s_lshl_b32 s%d, s%d, 9" % (sT2, sX))
        else:
            a("s_lshr_b32 s%d, s%d, 1" % (sT2, sX))
            a("s_lshl_b32 s%d, s%d, 10" % (sT2, sT2))
        a("s_add_u32 s%d, s%d, s%d" % (sT1, sT1, sT2))
        n = 3 if cfg.map2 == 8 else 6
        for k in range(n):
            a("buffer_load_dword v%d, v10, %s, s%d offen %s" % (100 + k, s(rW2, 4), sT1, cfg.t2pol))
            a("s_add_u32 s%d, s%d, %d" % (sT1, sT1, (64 >> sh) * 4096))
            if cfg.t2gap:
                a.drain_vm()
    if cfg.touch2 == 1 or cfg.refresh:
        sv = cfg.t2pol
        if cfg.refresh:
            cfg.t2pol = ''
        touch_w2()
        cfg.t2pol = sv
    if cfg.late:
        a("s_cmp_ge_u32 s%d, 30" % sJ)
        a("s_cbranch_scc1 L_w7_nl")
        lds_wait({1: 28, 2: 0, 3: 56}[cfg.late], 4 if cfg.late == 1 else cfg.laten, 10, 11, sleep=2)
        a.label("L_w7_nl")
    if cfg.nox:
        for k in range(8):
            a("s_mov_b32 s%d, 0x%x" % (sT2, ST + (32 << cfg.stsh) * k))
            a("buffer_load_dwordx4 %s, v7, %s, s%d offen sc1" % (v(80 + 4 * k, 4), s(rWS, 4), sT2), tag="st%d" % k)
    a("s_mov_b64 exec, s[100:101]")
    for k in range(16):
        a("buffer_load_dwordx4 %s, v5, %s, s96 offen sc1" % (v(16 + 4 * k, 4), s(rWS, 4)), tag="u%d" % k)
        if k < 15:
            a("s_add_u32 s96, s96, %d" % (16 * 10240))
    a("s_mov_b64 exec, -1")
    a("s_cmp_lg_u32 s%d, 0" % sID)
    a("s_cbranch_scc1 L_noE")
    a("s_add_u32 s14, s%d, 0x%x" % (pWS, EW))
    a("s_addc_u32 s15, s%d, 0" % (pWS + 1))
    a("s_mov_b32 s7, s%d" % sTAG)
    a("s_atomic_swap s7, s[14:15], 0")
    a("s_waitcnt lgkmcnt(0)")
    a.label("L_noE")
    if cfg.nox:
        for k in range(8):
            a.wait_vm("st%d" % k)
            a("ds_write_b128 v2, %s offset:%d" % (v(80 + 4 * k, 4), RY + 1024 * k))
        if not cfg.t7:
            lds_arrive(48, 12, 13)
        if cfg.t7:
            a("v_lshlrev_b32 v12, 5, v8")
            a("v_mov_b32 v13, 0x3f80")
            SR, TB_ = 112, 240
            def srd_(k):
                a("ds_read_b128 %s, v12 offset:%d" % (v(SR + 8 * k, 4), RY + 512 * k), tag="s%d" % k)
                a("ds_read_b128 %s, v12 offset:%d" % (v(SR + 8 * k + 4, 4), RY + 512 * k + 16), tag="s%d" % k)
            for k in range(6):
                srd_(k)
            for k in range(16):
                H_, S_, T_ = 16 + 4 * k, SR + 8 * k, TB_ + 8 * (k & 1)
                a.wait_vm("u%d" % k)
                for q in range(4):
                    a("v_lshl_or_b32 v%d, v%d, 16, v13" % (T_ + 2 * q, H_ + q))
                    a("v_and_or_b32 v%d, v%d, s%d, v13" % (T_ + 2 * q + 1, H_ + q, sMASK))
                a.wait_lg("s%d" % k)
                if k + 6 < 16:
                    srd_(k + 6)
                for q in range(8):
                    a("v_dot2_f32_bf16 v%d, v%d, v%d, 0" % (S_ + q, S_ + q, T_ + q))
                if k:
                    for q in range(4):
                        a("v_cvt_pk_bf16_f32 v%d, v%d, v%d" % (H_ - 4 + q, S_ - 8 + 2 * q, S_ - 8 + 2 * q + 1))
            for q in range(4):
                a("v_cvt_pk_bf16_f32 v%d, v%d, v%d" % (76 + q, SR + 120 + 2 * q, SR + 120 + 2 * q + 1))
    if not cfg.sepu:
        a("v_mov_b32 v12, %d" % (CNT + 20))
        a("v_mov_b32 v13, s%d" % sT3)
        a("s_mov_b64 exec, 1")
        a("ds_add_u32 v12, v13")
        a("s_mov_b64 exec, -1")
        lds_wait(20, 3, 12, 13, sleep=2)
    a("s_mov_b64 exec, s[100:101]")
    for k in range(16):
        a.wait_vm("u%d" % k)
        a("ds_write_b128 v4, %s offset:%d" % (v(16 + 4 * k, 4), U_OFF + 256 * k))
    a("s_mov_b64 exec, -1")
    a.drain_lg()
    lds_arrive(24, 12, 13)
    stamp(9)
    if cfg.nox and not cfg.t7 and cfg.helper:
        a("s_and_b32 s%d, s%d, 1" % (sT3, sJ))
        a("s_sub_u32 s%d, 3, s%d" % (sT3, sT3))
        lds_wait(44, "s%d" % sT3, 10, 11, sleep=2)
    if cfg.helper:
        a("s_setprio %d" % cfg.cprio)
        assert NH <= 6
        a("s_mov_b32 s%d, 0" % sRB)
        a("v_mov_b32 v6, %d" % CNT)
        conv_addr(sRB)
        hseq = []
        for c in range(2):
            rest = list(range(NH))
            while rest:
                hseq.append((c, rest.pop(0)))
                if rest:
                    hseq.append((c, rest.pop()))
        def hregs(ch):
            b = ch & 1
            return 16 + 24 * b, 64 + 96 * b, 112 + 96 * b
        def hreads(ch):
            HA, HK, HU = hregs(ch)
            if ch:
                for r in (vUA, vKA + 2, vKA + 3):
                    a("v_add_u32 v%d, %d, v%d" % (r, S, r))
            for c in range(2):
                for tau in range(NT, 16):
                    o = 192 - 64 * (tau & 3) + 32 * (1 - c)
                    r = HK + 4 * (NH * c + tau - NT)
                    a("ds_read2_b32 %s, v%d offset0:%d offset1:%d" % (v(r, 2), vKA + (tau >> 2), o, o + 1), tag="h%d" % ch)
                    a("ds_read2_b32 %s, v%d offset0:%d offset1:%d" % (v(r + 2, 2), vKA + (tau >> 2), o + 2, o + 3), tag="h%d" % ch)
            for n, (cc, mu) in enumerate(hseq):
                a("ds_read_b128 %s, v%d offset:%d" % (v(HU + 4 * n, 4), vUA, 128 * (1 - cc) + 256 * mu), tag="h%d" % ch)
        hreads(0)
        for ch in range(3):
            HA, HK, HU = hregs(ch)
            a.drain_lg()
            if ch:
                lds_arrive(36, 8, 9)
            if ch == 2:
                a("s_bitcmp1_b32 s%d, 0" % sJ)
                a("s_cbranch_scc1 L_hdone")
            hf_ = a.capture(hreads, ch + 1) if ch < 2 else []
            cnt = 0
            for n, (c, mu) in enumerate(hseq):
                if n % 4 == 0 and cfg.pause:
                    if n:
                        a.wait_lg("pz")
                        a("v_cmp_ne_u32 vcc, v8, v9")
                        a("s_cbranch_vccnz L_pz%d" % (100 + 20 * ch + n))
                        a.label("L_np%d" % (100 + 20 * ch + n))
                        hstubs.append(100 + 20 * ch + n)
                    if n + 4 < len(hseq):
                        a("ds_read2_b32 v[8:9], v6 offset0:%d offset1:7" % (14 if cfg.psat >= 0 else 0), tag="pz")
                for tau in range(NT, 16 - mu):
                    acc = v(HA + 4 * (tau + mu - NT), 4)
                    a("v_mfma_f32_16x16x32_bf16 %s, %s, %s, %s" % (acc, v(HK + 4 * (NH * c + tau - NT), 4), v(HU + 4 * n, 4), acc if n else "0"))
                    if hf_:
                        a.play(hf_.pop(0))
            for it in hf_:
                a.play(it)
            for q in range(NH):
                a("ds_write_b128 v2, %s offset:%d" % (v(HA + 4 * q, 4), ch * S + 1024 * q))
        a.drain_lg()
        lds_arrive(36, 8, 9)
        a.label("L_hdone")
        a.drain_lg()
        a("s_setprio %d" % cfg.uprio)
        stamp(8)
    if cfg.w7dma:
        a("s_cmp_ge_u32 s%d, 30" % sJ)
        a("s_cbranch_scc1 L_no7d")
        dma_voff(4096, False)
        a("s_lshl_b32 s%d, s%d, 7" % (sOWB, sST))
        lds_wait(0, 4, 10, 11, sleep=1)
        for k in range(2, 7 if cfg.w7dma == 1 else 4):
            if k == 4:
                lds_wait(4, 4, 10, 11)
            setoff(sOW, sOWB, sORD2, k, 32 * 4096)
            for w in range(4):
                for b in range(4):
                    a("s_mov_b32 m0, %d" % (WOFF + w * WSZ + slot2(k) * 4096 + b * 1024))
                    a("s_add_u32 s%d, s%d, %d" % (sT0, sOW, w * 384 * 4096 + C2[b]))
                    a("buffer_load_dwordx4 v%d, %s, s%d offen lds" % (vDO, s(rW2, 4), sT0), tag="d%d" % k)
                a("s_waitcnt vmcnt(%d)" % cfg.w7thr)
            if k == 4:
                a.wait_vm("d3")
                lds_arrive(52, 12, 13)
        a.drain_vm()
        lds_arrive(52, 12, 13)
        a.label("L_no7d")
        a.vm = []
    if cfg.nox and not cfg.t7 and not cfg.helper:
        a("s_and_b32 s%d, s%d, 1" % (sT3, sJ))
        a("s_sub_u32 s%d, 3, s%d" % (sT3, sT3))
        lds_wait(44, "s%d" % sT3, 10, 11, sleep=2)
    if cfg.ywait:
        a("s_cmp_ge_u32 s%d, 30" % sJ)
        a("s_cbranch_scc1 L_yw")
        lds_wait(28, 4, 10, 11, sleep=8)
        a.label("L_yw")
    if cfg.ssig:
        a("s_and_b32 s%d, s%d, 63" % (sT1, sID))
        a("s_lshl_b32 s%d, s%d, 7" % (sT1, sT1))
    else:
        a("s_lshl_b32 s%d, s%d, 7" % (sT1, sID))
    a("s_add_u32 s%d, s%d, 0x%x" % (sT1, sT1, YC))
    if not cfg.noya:
        spoll(sT1, cfg.ysleep, target=32 if (cfg.ywg and cfg.ssig) else 80)
    stamp(6)
    a("v_lshrrev_b32 v8, 3, v0")
    a("v_lshlrev_b32 v8, 12, v8")
    a("v_and_b32 v9, 7, v0")
    a("v_lshl_add_u32 v8, v9, 4, v8")
    a("s_mul_i32 s%d, s%d, %d" % (sT0, sDT2, 80 * 4096))
    a("s_lshl_b32 s%d, s%d, 7" % (sT1, sST))
    a("s_add_u32 s%d, s%d, s%d" % (sT0, sT0, sT1))
    a("s_add_u32 s%d, s%d, 0x%x" % (sT0, sT0, YA))
    for k in range(10):
        a("buffer_load_dwordx4 %s, v8, %s, s%d offen sc1" % (v(16 + 4 * k, 4), s(rWS, 4), sT0), tag="y%d" % k)
        if k < 9:
            a("s_add_u32 s%d, s%d, %d" % (sT0, sT0, 8 * 4096))
    for k in range(10):
        a.wait_vm("y%d" % k)
        a("ds_write_b128 v2, %s offset:%d" % (v(16 + 4 * k, 4), RY + 1024 * k))
    stamp(7)
    finish()
    emit_stubs(hstubs)
    a.label("L_exit")
    a("s_endpgm")
    a.label("L_code_end")
    return a

HEADER = open("cdna_kernels/%s.s.ref" % NAME).read().split("; Override launch")[0]

DOC = """;
;            MFMA-fragment-blocked layout [token/8][channel][8] plus the per-token (mean, std) of the
"""

def full(cfg):
    a = gen(cfg)
    out = HEADER
    out += "; @launch grid=(256,1,1) block=(512,1,1) lds=%d\n" % LDS_BYTES
    out += DOC
    out += '.amdgcn_target "amdgcn-amd-amdhsa--gfx950"\n.text\n.globl %s_kernel\n.p2align 8\n.type %s_kernel,@function\n' % (NAME, NAME)
    out += a.text()
    out += """.section .rodata,"a"
.p2align 6
.amdhsa_kernel %s_kernel
  .amdhsa_next_free_vgpr 256
  .amdhsa_next_free_sgpr 102
  .amdhsa_accum_offset 256
  .amdhsa_group_segment_fixed_size 0
  .amdhsa_kernarg_size 136
  .amdhsa_user_sgpr_count 2
  .amdhsa_user_sgpr_kernarg_segment_ptr 1
  .amdhsa_system_sgpr_workgroup_id_x 1
  .amdhsa_float_denorm_mode_32 3
.end_amdhsa_kernel
""" % NAME
    return out, a

if __name__ == "__main__":
    cfg = Cfg()
    outp = "cdna_kernels/%s.s" % NAME
    for arg in sys.argv[1:]:
        k, val = arg.split("=")
        if k == "out":
            outp = val
        else:
            cur = getattr(cfg, k)
            setattr(cfg, k, val if isinstance(cur, str) else (bool(int(val)) if isinstance(cur, bool) else int(val)))
    txt, a = full(cfg)
    open(outp, "w").write(txt)
    print("wrote", outp, "instr", a.ninst, "pad states", a.npad)
```

```python
import sys, struct, math
from asmlib import Asm, v, s

NAME = "parallel_sum__ssm_conv_s4__mixer_token_mlp__prompt"

def f32(x):
    return "0x%08x" % struct.unpack("<I", struct.pack("<f", x))[0]

class Cfg:
    ts = False
    spin = 32768
    depth1 = 2
    depth2 = 2
    out_pol = ""
    stop = 99
    xpol = ''
    ppol = ''
    tpol = ''
    t2pol = ''
    map8 = 1
    map1 = 8
    map2 = 8
    t2gap = 0
    late = 0
    fsh = 7
    touch1 = 0
    xtl = 1
    kprio = 1
    pre1 = 0
    touch2 = 0
    tdep = 1
    ng2 = 8
    e2 = 0
    b7e = 0
    lean = 0
    fastx = 0
    laten = 1
    psat = -1
    pprio = 3
    lateinit = 1
    w7dma = 0
    w7thr = 16
    warm = 0
    kf0 = 8
    fastp = 1
    xprio = 3
    kv3 = 1
    lateb2 = 2
    zc = 0
    dupc = 1
    p4s = 0
    sepu = 1
    kg2 = 3
    tprio = 3
    t7 = 0
    keepk = 0
    c16k = 9
    nox = 1
    stsh = 5
    exactln = 0
    xnlate = 0
    xnat = 2
    NT = 10
    helper = 0
    skip2 = 0
    skip1 = 0
    noya = 0
    fake = 0
    ysync = 0
    ng1 = 10
    P1 = 15
    pK = 0
    pP = 3
    pG = 2
    pW = 3
    ywg = 1
    stouch = 0
    ywait = 1
    ssig = 1
    pbal = 0
    pth = 1
    ln4 = 1
    w7mb = 1
    e0at = 55
    nr1 = 12
    nr2 = 16
    noxn = 0
    hold = 0
    hx = -1
    fillk = 1
    noload = 0
    xm1 = 2
    fm1 = 0
    xm2 = 3
    fm2 = 0
    nokw = 0
    nopk = 0
    cprio = 0
    eprio = 3
    lateb = 0
    nagg = 8
    wrot1 = 1
    wrot2 = 1
    prea = 0
    preb = 1
    prec = 1
    swz = 0
    fine = 1
    c8k = 13
    uprio = 3
    refresh = 0
    e1 = 2
    e0 = 2
    nt1 = 0
    nt2 = 0
    pause = 1
    psleep = 0
    asleep = 0
    badmap = False
    dbg = False
    dbgw = 8
    nomfma = False
    apol = 'sc1'
    noadv = False
    noconv = False
    rotm1 = 0
    rotk1 = 0
    rotm2 = 0
    rotk2 = 0
    nsh1 = 1
    sub1 = 2
    nsh2 = 1
    sub2 = 2
    rot3 = 0
    ysleep = 2

HB, XB, GB, YA = 0, 0x280000, 0x500000, 0x700000
FL = 0xA00000
HF, XF, GF, YF, EW = FL, FL + 0x10000, FL + 0x20000, FL + 0x40000, FL + 0x60000
XF2 = FL + 0x20000
ST = FL + 0x40000
MB, YC = FL + 0x80000, FL + 0x10000
TSO = 0xB00000
WS_BYTES = 0xC00000
S = 12576
RY = 3 * S
CNT = RY + 10240
STA = CNT + 64
BIA = CNT + 96
WOFF = 49152
WSZ = 28672
LDS_BYTES = 163840
KB_OFF, ZP_OFF, U_OFF = 4160, 8256, 8480
TB_OFF = U_OFF + 16
sID, sWV, sX, sJ, sTAG = 2, 3, 4, 5, 6
pX, pARE, pAIM, pBRE, pBIM, pCRE, pCIM, pLDT, pDSK, pBX, pW1, pB1, pW2, pB2, pOUT, pDBG, pWS = [16 + 2 * i for i in range(17)]
rWS, rX, rW1, rW2, rOUT, rCODE = 52, 56, 60, 64, 68, 72
rB = rCODE
sDT, sFT, sDT2, sST, sWB = 76, 77, 78, 79, 80
sOW, sOWB, sOWE = 81, 82, 83
sOA, sOAB, sOAE = 84, 85, 86
sD = [87, 88, 89, 90]
sT0, sT1, sT2, sT3 = 8, 9, 10, 11
sCNT = 12
sORD1, sORD2 = (50, 51), (91, 92)
sPOS, sCH, sRB = 93, 94, 95
sDRY = 99
sMASK = 13
vL, vTS = 0, 15

def gen(cfg):
    global sDRY
    sDRY = 95
    a = Asm()
    nts = [0]
    def stamp(idx):
        if cfg.hx == idx and cfg.hold and stamp.gemm:
            a("s_memrealtime s[100:101]")
            a("s_waitcnt lgkmcnt(0)"); a.lg = []
            a("s_sub_u32 s99, s100, s98")
        if not cfg.ts:
            return
        a("s_memrealtime s[98:99]")
        a("s_waitcnt lgkmcnt(0)"); a.lg = []
        a("v_writelane_b32 v%d, s98, %d" % (vTS, idx))
        if idx in (0, 4, 5, 9, 10, 11):
            a("s_memtime s[98:99]")
            a("s_waitcnt lgkmcnt(0)")
            a("v_writelane_b32 v%d, s98, %d" % (vTS, 48 + idx))

    stamp.gemm = True
    def finish():
        if cfg.ts:
            a("s_lshl_b32 s%d, s%d, 3" % (sT0, sID))
            a("s_add_u32 s%d, s%d, s%d" % (sT0, sT0, sWV))
            a("s_lshl_b32 s%d, s%d, 8" % (sT0, sT0))
            a("s_add_u32 s%d, s%d, 0x%x" % (sT0, sT0, TSO))
            a("v_lshlrev_b32 v1, 2, v%d" % vL)
            a("buffer_store_dword v%d, v1, %s, s%d offen" % (vTS, s(rWS, 4), sT0))
            if cfg.dbg:
                n = nts[0]; nts[0] += 1
                a("s_lshl_b32 s%d, s%d, 3" % (sT0, sID))
                a("s_add_u32 s%d, s%d, s%d" % (sT0, sT0, sWV))
                a("s_cmp_lg_u32 s%d, %d" % (sT0, cfg.dbgw))
                a("s_cbranch_scc1 L_nodbg%d" % n)
                a("v_readlane_b32 s%d, v%d, 0" % (sT0, vTS))
                a("v_subrev_u32 v2, s%d, v%d" % (sT0, vTS))
                a("s_mov_b64 exec, 0xffff")
                a("global_store_dword v1, v2, %s" % s(pDBG, 2))
                a.label("L_nodbg%d" % n)
        a("s_waitcnt vmcnt(0) lgkmcnt(0)")
        a("s_endpgm")

    def srd(r, p, nbytes):
        a("s_mov_b32 s%d, s%d" % (r, p))
        a("s_and_b32 s%d, s%d, 0xffff" % (r + 1, p + 1))
        a("s_mov_b32 s%d, 0x%x" % (r + 2, nbytes))
        a("s_mov_b32 s%d, 0x20000" % (r + 3))

    npoll = [0]
    def poll(voffs, soffs, vdata, sleep=4, lanes=64):
        n = npoll[0]; npoll[0] += 1
        a("s_mov_b32 s%d, %d" % (sCNT, cfg.spin))
        if lanes < 64:
            a("s_mov_b64 exec, %d" % ((1 << lanes) - 1))
        a.label("L_poll%d" % n)
        for k, (vo, so) in enumerate(zip(voffs, soffs)):
            a("buffer_load_dword v%d, v%d, %s, s%d offen sc1" % (vdata + k, vo, s(rWS, 4), so))
        a.drain_vm()
        a("v_cmp_ne_u32 vcc, s%d, v%d" % (sTAG, vdata))
        for k in range(1, len(voffs)):
            a("v_cmp_ne_u32 s[14:15], s%d, v%d" % (sTAG, vdata + k))
            a("s_or_b64 vcc, vcc, s[14:15]")
        a("s_cmp_eq_u64 vcc, 0")
        a("s_cbranch_scc1 L_pollok%d" % n)
        a("s_sub_u32 s%d, s%d, 1" % (sCNT, sCNT))
        a("s_cmp_eq_u32 s%d, 0" % sCNT)
        a("s_cbranch_scc1 L_pollok%d" % n)
        a("s_mov_b64 exec, vcc")
        if sleep:
            a("s_sleep %d" % sleep)
        a("s_branch L_poll%d" % n)
        a.label("L_pollok%d" % n)
        a("s_mov_b64 exec, -1")

    def spoll_pre(soff):
        a("s_add_u32 s14, s%d, s%d" % (pWS, soff))
        a("s_addc_u32 s15, s%d, 0" % (pWS + 1))
        a("s_load_dword s7, s[14:15], 0 glc")
    def spoll(soff, sleep=1, target=None, pre=False):
        n = npoll[0]; npoll[0] += 1
        if not pre:
            a("s_add_u32 s14, s%d, s%d" % (pWS, soff))
            a("s_addc_u32 s15, s%d, 0" % (pWS + 1))
        a("s_mov_b32 s%d, %d" % (sCNT, cfg.spin * 2))
        if pre:
            a("s_branch L_sq%d" % n)
        a.label("L_sp%d" % n)
        a("s_load_dword s7, s[14:15], 0 glc")
        a.label("L_sq%d" % n)
        a("s_waitcnt lgkmcnt(0)"); a.lg = []
        if target is None:
            a("s_cmp_eq_u32 s7, s%d" % sTAG)
        else:
            a("s_cmp_eq_u32 s7, %d" % target)
        a("s_cbranch_scc1 L_spok%d" % n)
        if sleep:
            a("s_sleep %d" % sleep)
        a("s_sub_u32 s%d, s%d, 1" % (sCNT, sCNT))
        a("s_cmp_lg_u32 s%d, 0" % sCNT)
        a("s_cbranch_scc1 L_sp%d" % n)
        a.label("L_spok%d" % n)

    def group_ids(vdst, vtmp, sg, shift):
        if cfg.map2 == 8:
            a("v_and_b32 v%d, 24, v0" % vdst)
            a("v_lshlrev_b32 v%d, 3, v%d" % (vdst, vdst))
            a("v_and_b32 v%d, 7, v0" % vtmp)
            a("v_add_u32 v%d, v%d, v%d" % (vdst, vdst, vtmp))
            a("s_lshl_b32 s%d, s%d, 3" % (sT0, sg))
        else:
            a("v_and_b32 v%d, 28, v0" % vdst)
            a("v_lshlrev_b32 v%d, 3, v%d" % (vdst, vdst))
            a("v_and_b32 v%d, 3, v0" % vtmp)
            a("v_lshl_add_u32 v%d, v%d, 1, v%d" % (vdst, vtmp, vdst))
            a("s_and_b32 s%d, s%d, 3" % (sT0, sg))
            a("s_lshl_b32 s%d, s%d, 3" % (sT0, sT0))
            a("s_lshr_b32 s14, s%d, 2" % sg)
            a("s_add_u32 s%d, s%d, s14" % (sT0, sT0))
        a("v_add_lshl_u32 v%d, v%d, s%d, %d" % (vdst, vdst, sT0, shift))

    def group_add(voff, soff, vtmp):
        a("v_mov_b32 v%d, 1" % vtmp)
        a("s_mov_b64 exec, 0xffffffff")
        a("buffer_atomic_add v%d, v%d, %s, s%d offen sc1" % (vtmp, voff, s(rWS, 4), soff), tag="flag")
        a("s_mov_b64 exec, -1")

    def sig8(soff, stride):
        a("s_add_u32 s14, s%d, s%d" % (pWS, soff))
        a("s_addc_u32 s15, s%d, 0" % (pWS + 1))
        a("s_mov_b32 s7, 1")
        for x in range(8):
            a("s_atomic_add s7, s[14:15], 0x%x" % (x * stride))

    ng = [0]
    def guard(fn, *args):
        if not cfg.warm:
            fn(*args); return
        n = ng[0]; ng[0] += 1
        a("s_cmp_lg_u32 s%d, 0" % sDRY)
        a("s_cbranch_scc1 L_gd%d" % n)
        fn(*args)
        a.label("L_gd%d" % n)
    def dry_exit(label):
        if cfg.warm:
            a("s_cmp_lg_u32 s%d, 0" % sDRY)
            a("s_cbranch_scc1 %s" % label)

    def flag_store(soff, vtmp0, vtmp1):
        a("v_mov_b32 v%d, s%d" % (vtmp0, sTAG))
        a("v_mov_b32 v%d, 0" % vtmp1)
        a("s_mov_b64 exec, 1")
        a("buffer_store_dword v%d, v%d, %s, s%d offen sc1" % (vtmp0, vtmp1, s(rWS, 4), soff), tag="flag")
        a("s_mov_b64 exec, -1")

    nl = [0]
    def lds_arrive(off, vt0, vt1):
        a("v_mov_b32 v%d, %d" % (vt0, CNT + off))
        a("v_mov_b32 v%d, 1" % vt1)
        a("s_mov_b64 exec, 1")
        a("ds_add_u32 v%d, v%d" % (vt0, vt1))
        a("s_mov_b64 exec, -1")

    def lds_wait(off, target, vt0, vt1, sleep=0):
        n = nl[0]; nl[0] += 1
        a("v_mov_b32 v%d, %d" % (vt0, CNT + off))
        a("s_mov_b32 s%d, 0x%x" % (sCNT, cfg.spin * 64))
        a.label("L_lw%d" % n)
        a("ds_read_b32 v%d, v%d" % (vt1, vt0))
        a.drain_lg()
        a("v_readfirstlane_b32 s%d, v%d" % (sT0, vt1))
        a("s_cmp_ge_u32 s%d, %s" % (sT0, target))
        a("s_cbranch_scc1 L_lwok%d" % n)
        if sleep:
            a("s_sleep %d" % sleep)
        a("s_sub_u32 s%d, s%d, 1" % (sCNT, sCNT))
        a("s_cmp_lg_u32 s%d, 0" % sCNT)
        a("s_cbranch_scc1 L_lw%d" % n)
        a.label("L_lwok%d" % n)

    a.label(NAME + "_kernel")
    a("s_cmp_ge_u32 s2, 256")
    a("s_cbranch_scc1 L_exit")
    if cfg.hold:
        a("s_memrealtime s[98:99]")
    a("s_load_dwordx16 s[16:31], s[0:1], 0")
    a("s_load_dwordx16 s[32:47], s[0:1], 64")
    a("s_load_dwordx2 s[48:49], s[0:1], 128")
    a("v_lshrrev_b32 v1, 6, v0")
    a("v_and_b32 v0, 63, v0")
    if cfg.ts:
        a("v_mov_b32 v%d, 0" % vTS)
    a("v_readfirstlane_b32 s%d, v1" % sWV)
    a("v_lshlrev_b32 v2, 4, v0")
    a("v_lshlrev_b32 v3, 2, v0")
    if cfg.fastx:
        assert cfg.ln4
        a("s_lshl_b32 s%d, s2, 2" % sT0)
        a("s_add_u32 s%d, s%d, s%d" % (sT0, sT0, sWV))
        a("s_mulk_i32 s%d, 2560" % sT0)
        a("s_mov_b32 s%d, 0x%x" % (rX + 2, 2621440))
        a("s_mov_b32 s%d, 0x20000" % (rX + 3))
        a("s_cmp_ge_u32 s%d, 4" % sWV)
        a("s_cbranch_scc1 L_nox0")
        a("s_waitcnt lgkmcnt(0)")
        a("s_mov_b32 s%d, s%d" % (rX, pX))
        a("s_and_b32 s%d, s%d, 0xffff" % (rX + 1, pX + 1))
        a("buffer_load_dwordx4 v[16:19], v2, %s, s%d offen" % (s(rX, 4), sT0))
        a("buffer_load_dword v20, v3, %s, s%d offen offset:1024" % (s(rX, 4), sT0))
        a("buffer_load_dwordx4 v[64:67], v2, %s, s%d offen offset:1280" % (s(rX, 4), sT0))
        a("buffer_load_dword v68, v3, %s, s%d offen offset:2304" % (s(rX, 4), sT0))
        a.label("L_nox0")
    a("s_getpc_b64 s[%d:%d]" % (rCODE, rCODE + 1))
    a.label("L_pc")
    if cfg.badmap:
        a("s_lshr_b32 s%d, s2, 5" % sX)
        a("s_and_b32 s%d, s2, 31" % sJ)
    else:
        a("s_and_b32 s%d, s2, 7" % sX)
        a("s_lshr_b32 s%d, s2, 3" % sJ)
    a("s_mov_b32 s%d, 0xffff0000" % sMASK)
    a("s_and_b32 s%d, s%d, 0xffff" % (rCODE + 1, rCODE + 1))
    a("s_mov_b32 s%d, L_code_end-L_pc" % (rCODE + 2))
    a("s_mov_b32 s%d, 0x20000" % (rCODE + 3))
    a("s_cmp_lg_u32 s%d, 7" % sWV)
    a("s_cbranch_scc1 L_nopf")
    a("s_lshl_b32 s%d, s%d, 7" % (sT0, sJ))
    a("v_lshlrev_b32 v1, 12, v0")
    a("buffer_load_dword v14, v1, %s, s%d offen" % (s(rCODE, 4), sT0))
    a("v_mov_b32 v21, %d" % CNT)
    for k in range(4):
        a("v_mov_b32 v%d, 0" % (24 + k))
    a("ds_write_b128 v21, v[24:27]")
    a("ds_write_b128 v21, v[24:27] offset:16")
    a("ds_write_b128 v21, v[24:27] offset:32")
    a("ds_write_b128 v21, v[24:27] offset:48")
    a.label("L_nopf")
    a.vm = []; a.lg = []
    a("v_mov_b32 v7, 0")
    a("v_mov_b32 v8, 0")
    nline = 3 if cfg.map1 == 8 else 6
    def tile_math(part=3):
        items = a.capture(tile_math_all)
        cut = [k for k, it in enumerate(items) if it[1] == "s_nop 0"][0]
        dead = lambda t: cfg.lean and (t.startswith("v_mul_u32_u24 v62") or " s96" in t or t.startswith("s_and_b32 s%d, s%d, 1" % (sT0, sX)) or t.startswith("s_lshr_b32 s%d, s%d, 1" % (sT1, sX)) or t.startswith("s_add_u32 s97, s%d, s%d" % (sFT, sWV)) or t == "s_lshl_b32 s97, s97, 7" or t == "s_cmp_ge_u32 s%d, 3" % sWV)
        sel = (items[:cut] if part & 1 else []) + (items[cut + 1:] if part & 2 else [])
        for it in sel:
            if not dead(it[1]):
                a.play(it)
    def tile_math_all():
        a("s_and_b32 s%d, s%d, 1" % (sT0, sX))
        a("s_lshr_b32 s%d, s%d, 1" % (sT1, sX))
        a("v_mul_u32_u24 v62, 3072, v0")
        a("s_mul_i32 s96, s%d, %d" % (sJ, 64 * 3072))
        if cfg.map1 == 8:
            a("s_mul_i32 s%d, s%d, 26" % (sT2, sJ))
            a("s_lshr_b32 s%d, s%d, 8" % (sT2, sT2))
            a("s_mul_i32 s%d, s%d, 10" % (sT3, sT2))
            a("s_sub_u32 s%d, s%d, s%d" % (sT3, sJ, sT3))
            a("s_mov_b32 s%d, s%d" % (sDT, sT3))
            a("s_mul_i32 s%d, s%d, 3" % (sFT, sX))
        else:
            a("s_mul_i32 s%d, s%d, 13" % (sT2, sJ))
            a("s_lshr_b32 s%d, s%d, 6" % (sT2, sT2))
            a("s_mul_i32 s%d, s%d, 5" % (sT3, sT2))
            a("s_sub_u32 s%d, s%d, s%d" % (sT3, sJ, sT3))
            a("s_mul_i32 s%d, s%d, 5" % (sDT, sT0))
            a("s_add_u32 s%d, s%d, s%d" % (sDT, sDT, sT3))
            a("s_mul_i32 s%d, s%d, 6" % (sFT, sT1))
        a("s_add_u32 s97, s%d, s%d" % (sFT, sWV))
        a("s_lshl_b32 s97, s97, 7")
        a("s_add_u32 s96, s96, s97")
        a("s_cmp_ge_u32 s%d, 3" % sWV)
        a("s_cselect_b32 s96, 0x7f000000, s96")
        a("s_add_u32 s%d, s%d, s%d" % (sFT, sFT, sT2))
        def order(n, nsh, sub, r):
            if nsh <= 1:
                return list(range(n))
            o = []
            g = nsh * sub
            for b in range(0, n, g):
                blk = list(range(b, min(b + g, n)))
                k = (r * sub) % len(blk) if len(blk) == g else (r * len(blk) // nsh) % len(blk)
                o += blk[k:] + blk[:k]
            return o
        def pack(o):
            o = o + [0] * (16 - len(o))
            return sum(x << (4 * i) for i, x in enumerate(o[:8])), sum(x << (4 * i) for i, x in enumerate(o[8:]))
        def sel_list(dst, sidx, orders):
            for r, o in enumerate(orders):
                lo, hi = pack(list(o))
                if r == 0:
                    a("s_mov_b32 s%d, 0x%x" % (dst[0], lo))
                    a("s_mov_b32 s%d, 0x%x" % (dst[1], hi))
                elif o != orders[0]:
                    a("s_cmp_eq_u32 s%d, %d" % (sidx, r))
                    a("s_cselect_b32 s%d, 0x%x, s%d" % (dst[0], lo, dst[0]))
                    a("s_cselect_b32 s%d, 0x%x, s%d" % (dst[1], hi, dst[1]))
        def sel_order(dst, sidx, nidx, n, nsh, sub):
            sel_list(dst, sidx, [order(n, nsh, sub, r % max(nsh, 1)) for r in range(nidx)])
        def rotl(n, k):
            return [(i + k) % n for i in range(n)]
        if cfg.wrot1:
            nd = 30 // nline
            if cfg.ng1 >= nd:
                a("s_mul_i32 s97, s%d, %d" % (sT3, -(-16 * 256 // nd)))
                a("s_lshr_b32 s97, s97, 8")
            else:
                tab = sum((((r % cfg.ng1) * 16) // cfg.ng1) << (4 * r) for r in range(nd))
                a("s_mov_b32 s100, 0x%x" % (tab & 0xffffffff))
                a("s_mov_b32 s101, 0x%x" % (tab >> 32))
                a("s_lshl_b32 s97, s%d, 2" % sT3)
                a("s_lshr_b64 s[100:101], s[100:101], s97")
                a("s_mov_b32 s97, s100")
            a("s_mul_i32 s14, s%d, %d" % (sX, cfg.xm1))
            a("s_add_u32 s97, s97, s14")
            a("s_mul_i32 s14, s%d, %d" % (sT2, cfg.fm1))
            a("s_add_u32 s97, s97, s14")
            a("s_and_b32 s97, s97, 15")
            if cfg.nsh1 > 1:
                sel_order(sORD1, sT2, nline, 16, cfg.nsh1, cfg.sub1)
                a("s_mul_i32 s97, s97, 0x11111111")
                for r in sORD1:
                    a("s_xor_b32 s100, s%d, s97" % r)
                    a("s_and_b32 s100, s100, 0x88888888")
                    a("s_and_b32 s%d, s%d, 0x77777777" % (r, r))
                    a("s_and_b32 s101, s97, 0x77777777")
                    a("s_add_u32 s%d, s%d, s101" % (r, r))
                    a("s_xor_b32 s%d, s%d, s100" % (r, r))
            else:
                a("s_lshl_b32 s97, s97, 2")
                a("s_mov_b32 s100, 0x76543210")
                a("s_mov_b32 s101, 0xfedcba98")
                a("s_lshr_b64 s[%d:%d], s[100:101], s97" % sORD1)
                a("s_sub_u32 s97, 64, s97")
                a("s_lshl_b64 s[100:101], s[100:101], s97")
                a("s_or_b64 s[%d:%d], s[%d:%d], s[100:101]" % (sORD1 + sORD1))
        else:
            sel_order(sORD1, sT2, nline, 16, cfg.nsh1, cfg.sub1)
        a("s_nop 0")
        if cfg.map2 == 8:
            a("s_and_b32 s%d, s%d, 7" % (sT2, sJ))
            a("s_lshr_b32 s%d, s%d, 3" % (sT3, sJ))
            a("s_mov_b32 s%d, s%d" % (sDT2, sT2))
            a("s_lshl_b32 s%d, s%d, 2" % (sST, sX))
        else:
            a("s_and_b32 s%d, s%d, 3" % (sT2, sJ))
            a("s_lshr_b32 s%d, s%d, 2" % (sT3, sJ))
            a("s_lshl_b32 s%d, s%d, 2" % (sDT2, sT0))
            a("s_add_u32 s%d, s%d, s%d" % (sDT2, sDT2, sT2))
            a("s_lshl_b32 s%d, s%d, 3" % (sST, sT1))
        a("s_add_u32 s%d, s%d, s%d" % (sST, sST, sT3))
        if cfg.wrot2:
            nd = 8 if cfg.map2 == 8 else 4
            if cfg.ng2 == 6:
                a("s_mul_i32 s97, s%d, 4" % sT2)
            elif cfg.ng2 == 4:
                a("s_mul_i32 s97, s%d, 6" % sT2)
            else:
                a("s_mul_i32 s97, s%d, %d" % (sT2, 24 // nd))
            a("s_mul_i32 s14, s%d, %d" % (sX, cfg.xm2))
            a("s_add_u32 s97, s97, s14")
            a("s_mul_i32 s14, s%d, %d" % (sT3, cfg.fm2))
            a("s_add_u32 s97, s97, s14")
            a("s_lshr_b32 s97, s97, 1")
            a("s_mul_i32 s14, s97, 43")
            a("s_lshr_b32 s14, s14, 9")
            a("s_mul_i32 s14, s14, 12")
            a("s_sub_u32 s97, s97, s14")
            sel_list(sORD2, 97, [rotl(12, r) for r in range(12)])
        else:
            sel_order(sORD2, sT3, 4 if cfg.map2 == 8 else 8, 12, cfg.nsh2, cfg.sub2)
    def chan_math():
        a("s_and_b32 s%d, s%d, 3" % (sT0, sWV))
        a("s_cmp_eq_u32 s%d, 7" % sWV)
        a("s_cselect_b32 s%d, 0, s%d" % (sT0, sT0))
        a("s_mul_i32 s%d, s%d, %d" % (sRB, sT0, S))
        a("s_lshr_b32 s%d, s%d, 1" % (sT1, sJ))
        a("s_mul_i32 s%d, s%d, 5" % (sT1, sT1))
        a("s_and_b32 s%d, s%d, 1" % (sT2, sJ))
        a("s_mul_i32 s%d, s%d, 3" % (sT2, sT2))
        a("s_add_u32 s%d, s%d, s%d" % (sT1, sT1, sT2))
        a("s_add_u32 s%d, s%d, s%d" % (sT1, sT1, sT0))
        a("s_min_u32 s%d, s%d, 79" % (sT1, sT1))
        a("s_and_b32 s%d, s%d, 35" % (sT2, sT1))
        a("s_and_b32 s%d, s%d, 12" % (sT3, sT1))
        a("s_lshl_b32 s%d, s%d, 1" % (sT3, sT3))
        a("s_or_b32 s%d, s%d, s%d" % (sT2, sT2, sT3))
        a("s_and_b32 s%d, s%d, 16" % (sT3, sT1))
        a("s_lshr_b32 s%d, s%d, 2" % (sT3, sT3))
        a("s_or_b32 s%d, s%d, s%d" % (sT2, sT2, sT3))
        a("s_cmp_ge_u32 s%d, 64" % sT1)
        a("s_cselect_b32 s%d, s%d, s%d" % (sT2, sT1, sT2))
        a("s_mul_i32 s%d, s%d, 80" % (sT3, sX))
        a("s_add_u32 s%d, s%d, s%d" % (sPOS, sT3, sT1))
        a("s_add_u32 s%d, s%d, s%d" % (sCH, sT3, sT2))
        a("s_mul_i32 s%d, s%d, 384" % (sT0, sCH))
        a("v_add_u32 v10, s%d, v3" % sT0)
        a("v_lshlrev_b32 v11, 1, v0")
        a("v_add_u32 v11, s%d, v11" % sT0)
        a("s_lshl_b32 s%d, s%d, 1" % (sT0, sCH))
        a("v_mov_b32 v12, s%d" % sT0)
    if cfg.ln4:
        if cfg.fastx:
            a("v_mov_b32 v10, 0"); a("v_mov_b32 v11, 0"); a("v_mov_b32 v12, 0")
            a("s_cmp_lt_u32 s%d, 4" % sWV)
            a("s_cbranch_scc1 L_nochan")
        chan_math()
        if cfg.fastx:
            a.label("L_nochan")
    a("s_lshl_b32 s%d, s2, %d" % (sT0, 2 if cfg.ln4 else 3))
    a("s_add_u32 s%d, s%d, s%d" % (sT0, sT0, sWV))
    a("s_mul_i32 s%d, s%d, %d" % (sT0, sT0, 2560 if cfg.ln4 else 1280))
    for r, nb in ((rX, 2621440), (rWS, WS_BYTES), (rW1, 2048 * 3072), (rW2, 1536 * 4096), (rOUT, 2621440)):
        a("s_mov_b32 s%d, 0x%x" % (r + 2, nb))
        a("s_mov_b32 s%d, 0x20000" % (r + 3))
    def srd_bases(lst):
        for r, p in lst:
            a("s_mov_b32 s%d, s%d" % (r, p))
            a("s_and_b32 s%d, s%d, 0xffff" % (r + 1, p + 1))
    def eload():
        a("s_add_u32 s14, s%d, 0x%x" % (pWS, EW))
        a("s_addc_u32 s15, s%d, 0" % (pWS + 1))
        a("s_load_dword s7, s[14:15], 0")
    def stamp0():
        stamp(0)
        if cfg.ts:
            a("s_getreg_b32 s98, hwreg(HW_REG_XCC_ID)")
            a("v_writelane_b32 v%d, s98, 40" % vTS)
            a("s_getreg_b32 s98, hwreg(HW_REG_HW_ID)")
            a("v_writelane_b32 v%d, s98, 41" % vTS)
    SB, SS = WOFF + 16384, WSZ
    a("s_mul_i32 s%d, s%d, %d" % (sT2, sWV, 1408 if cfg.ln4 else 704))
    a("s_add_u32 s%d, s%d, %d" % (sT2, sT2, SB))
    a("v_add_u32 v61, %d, v2" % (SS - 640))
    a("v_cmp_gt_u32 vcc, 40, v0")
    a("v_cndmask_b32 v60, v61, v2, vcc")
    a("v_add_u32 v60, s%d, v60" % sT2)
    a("s_add_u32 s%d, s%d, %d" % (sT2, sT2, SS + 384))
    a("v_add_u32 v61, s%d, v3" % sT2)
    if cfg.nox:
        assert not cfg.xnlate
        a("s_lshl_b32 s%d, s%d, %d" % (sT2, sWV, 3 if cfg.ln4 else 2))
        a("s_add_u32 s%d, s%d, %d" % (sT2, sT2, STA))
        a("v_mov_b32 v59, s%d" % sT2)
    vPA = [4, 5, 6, 7, 8]
    PRM0, PRM1, vLDT, vDSK = 84, 90, 96, 97
    def param_loads():
        for k, p in enumerate([pARE, pAIM, pBRE, pBIM, pCRE, pCIM]):
            a("global_load_dword v%d, v10, %s %s" % (PRM0 + k, s(p, 2), cfg.ppol), tag="p")
            a("global_load_ushort v%d, v11, %s offset:256 %s" % (PRM1 + k, s(p, 2), cfg.ppol), tag="p")
        a("global_load_ushort v%d, v12, %s" % (vLDT, s(pLDT, 2)), tag="p")
        a("global_load_ushort v%d, v12, %s" % (vDSK, s(pDSK, 2)), tag="p")
    def x_loads():
        srd_bases([(rX, pX)])
        a("buffer_load_dwordx4 v[16:19], v2, %s, s%d offen %s" % (s(rX, 4), sT0, cfg.xpol), tag="x")
        a("buffer_load_dword v20, v3, %s, s%d offen offset:1024 %s" % (s(rX, 4), sT0, cfg.xpol), tag="x")
        if cfg.ln4:
            a("buffer_load_dwordx4 v[64:67], v2, %s, s%d offen offset:1280 %s" % (s(rX, 4), sT0, cfg.xpol), tag="x")
            a("buffer_load_dword v68, v3, %s, s%d offen offset:2304 %s" % (s(rX, 4), sT0, cfg.xpol), tag="x")
    def common_tail():
        stamp0()
        eload()
        srd_bases([(rWS, pWS), (rW1, pW1), (rW2, pW2), (rOUT, pOUT)])
    if cfg.ln4:
        if cfg.fastx:
            a("s_waitcnt lgkmcnt(0)")
            vm_x = ["x"] * 4
        else:
            a("s_cmp_ge_u32 s%d, 4" % sWV)
            a("s_waitcnt lgkmcnt(0)")
            a("s_cbranch_scc1 L_nox")
            x_loads()
            vm_x = list(a.vm)
            a.label("L_nox")
        a("s_cmp_lt_u32 s%d, 4" % sWV)
        if not cfg.lateb2:
            a("s_barrier")
        a("s_cbranch_scc1 L_gemm_pre")
        a.vm = []
        a("s_cmp_eq_u32 s%d, 7" % sWV)
        a("s_cbranch_scc1 L_w7_pre")
        param_loads()
        aux_vm = list(a.vm)
        stamp0()
        srd_bases([(rWS, pWS)])
        if cfg.lateb2 == 2:
            a("s_barrier")
        a("s_branch L_aux_main")
        a.label("L_w7_pre")
        a.vm = []
        common_tail()
        if cfg.lateb2 == 2 and cfg.b7e:
            a("s_barrier")
    else:
        a("s_waitcnt lgkmcnt(0)")
        if cfg.hold:
            a("s_mov_b32 s99, 0")
        x_loads()
        common_tail()
        vm_common = list(a.vm)
        a("s_cmp_lt_u32 s%d, 4" % sWV)
        a("s_cbranch_scc1 L_gemm_pre")
        chan_math()
        a("s_cmp_eq_u32 s%d, 7" % sWV)
        a("s_cbranch_scc1 L_w7_pre")
        param_loads()
        a.wait_vm("x")
        aux_vm = list(a.vm)
        a("s_branch L_ln")
        a.label("L_w7_pre")
        a.vm = list(vm_common)
    a("v_lshrrev_b32 v10, 4, v0")
    a("v_and_b32 v11, 3, v0")
    a("v_bfe_u32 v12, v0, 2, 2")
    a("s_movk_i32 s%d, 704" % sT0)
    a("v_mul_lo_u32 v12, v12, s%d" % sT0)
    a("v_add_u32 v12, %d, v12" % SB)
    for q in range(5):
        a("v_add_u32 v21, %d, v10" % (4 * q))
        a("v_mul_u32_u24 v22, 13, v21")
        a("v_lshrrev_b32 v22, 6, v22")
        a("v_mul_u32_u24 v23, 5, v22")
        a("v_sub_u32 v21, v21, v23")
        a("v_lshrrev_b32 v23, 1, v21")
        a("v_lshlrev_b32 v23, 5, v23")
        a("v_and_b32 v24, 1, v21")
        a("v_lshl_add_u32 v23, v24, 2, v23")
        a("v_lshlrev_b32 v24, 3, v11")
        a("v_lshlrev_b32 v25, 2, v11")
        a("v_cmp_eq_u32 vcc, 4, v21")
        a("v_cndmask_b32 v24, v24, v25, vcc")
        a("v_add_u32 v23, v23, v24")
        a("v_mul_u32_u24 v22, 80, v22")
        a("v_add_u32 v23, v23, v22")
        a("v_lshl_add_u32 v%d, v23, 1, v12" % vPA[q])
    if cfg.ln4:
        a("s_setprio 3")
        if cfg.lateb2 and not (cfg.lateb2 == 2 and cfg.b7e):
            a("s_barrier")
        lds_wait(8, 4, 12, 13)
        a("s_add_u32 s%d, s7, 0x9E3779B9" % sTAG)
        a("s_branch L_pub")
        a.label("L_gemm_pre")
        a.vm = list(vm_x)
        srd_bases([(rX, pX)])
        common_tail()
    else:
        a.wait_vm("x")
        a("s_branch L_ln")
        a.label("L_gemm_pre")
        a.vm = list(vm_common)
    if cfg.lean:
        assert cfg.map1 == 8 and cfg.map2 == 8 and not cfg.touch1
    tile_math(1 if cfg.lean else 3)

    vTR = [2, 3, 4, 5]
    vFO, vDO, vPO, vPD = 6, 7, 8, 9
    ACC1, STG1, WREG1 = 16, 80, 128
    ACC2, STG2, WREG2, XR = 16, 96, 160, 148
    NR1, NR2 = cfg.nr1, cfg.nr2

    def dma_voff(rowbytes, gemm1):
        a("v_lshrrev_b32 v10, 3, v0")
        if cfg.swz == 0:
            a("v_and_b32 v11, 6, v10")
        else:
            a("v_and_b32 v11, 2, v10")
            a("v_lshlrev_b32 v11, 1, v11")
        a("v_and_b32 v12, 7, v0")
        a("v_xor_b32 v12, v12, v11")
        a("v_lshlrev_b32 v12, 4, v12")
        if gemm1:
            a("v_and_b32 v11, 4, v10")
            a("v_add_u32 v10, v10, v11")
        a("s_mov_b32 s%d, %d" % (sT0, rowbytes))
        a("v_mul_lo_u32 v10, v10, s%d" % sT0)
        a("v_add_u32 v%d, v10, v12" % vDO)

    def setoff(dst, base, ordr, step, stepbytes):
        wd = 4
        if dst == sOA and ((cfg.fake & 1 and ordr == sORD1) or (cfg.fake & 2 and ordr == sORD2)):
            wd = 2
        a("s_bfe_u32 s%d, s%d, 0x%x" % (dst, ordr[step >> 3], (wd << 16) | (4 * (step & 7))))
        a("s_mul_i32 s%d, s%d, %d" % (dst, dst, stepbytes))
        a("s_add_u32 s%d, s%d, s%d" % (dst, dst, base))

    def dma_step(srdreg, slot, consts, stepbytes, tag, pol=''):
        setoff(sOW, sOWB, sORD1 if srdreg == rW1 else sORD2, int(tag[1:]), stepbytes)
        for b in range(4):
            a("s_add_u32 m0, s%d, %d" % (sWB, slot * 4096 + b * 1024))
            if consts[b]:
                a("s_add_u32 s%d, s%d, %d" % (sT0, sOW, consts[b]))
                so = sT0
            else:
                so = sOW
            a("buffer_load_dwordx4 v%d, %s, s%d offen %s lds" % (vDO, s(srdreg, 4), so, pol), tag=tag)

    C1 = [(16 * (b & 1) + 4 * (b >> 1)) * 3072 for b in range(4)]
    C2 = [8 * b * 4096 for b in range(4)]

    def tr_step(slot, wreg, tag):
        for n in range(4):
            for e in range(2):
                a("ds_read_b64_tr_b16 %s, v%d offset:%d" % (v(wreg + 4 * n + 2 * e, 2), vTR[n], slot * 4096 + e * 2048), tag=tag)

    def touch_w1():
        a("buffer_load_dword v63, v62, %s, s96 offen %s" % (s(rW1, 4), cfg.tpol), tag="tch")
    def touch_w2s():
        a("v_lshrrev_b32 v8, 2, v0")
        a("v_lshlrev_b32 v8, 12, v8")
        a("v_and_b32 v9, 3, v0")
        a("v_lshl_add_u32 v8, v9, 7, v8")
        a("v_mov_b32 v9, 0x7f000000")
        a("v_cmp_gt_u32 vcc, 48, v0")
        a("v_cndmask_b32 v8, v9, v8, vcc")
        a("s_lshl_b32 s97, s%d, 2" % sJ)
        a("s_add_u32 s97, s97, s%d" % sWV)
        a("s_mul_i32 s97, s97, %d" % (12 * 4096))
        a("s_lshl_b32 s%d, s%d, 9" % (sT2, sX))
        a("s_add_u32 s97, s97, s%d" % sT2)
    def touch_w2i():
        a("buffer_load_dword v9, v8, %s, s97 offen %s" % (s(rW2, 4), cfg.t2pol), tag="tch")
    def touch_w1b():
        if nline == 6:
            a("buffer_load_dword v63, v62, %s, s96 offen offset:384 %s" % (s(rW1, 4), cfg.tpol), tag="tch")
    a("s_mov_b64 exec, 0xffffffff")
    srd(rB, pB1, 3072)
    a("s_lshl_b32 s%d, s%d, 7" % (sT0, sFT))
    a("s_mov_b32 m0, %d" % BIA)
    a("buffer_load_dword v3, %s, s%d offen lds" % (s(rB, 4), sT0), tag="b")
    def b2dma():
        srd(rB, pB2, 4096)
        a("s_lshl_b32 s%d, s%d, 7" % (sT0, sST))
        a("s_mov_b32 m0, %d" % (BIA + 128))
        a("buffer_load_dword v%d, %s, s%d offen lds" % (10 if cfg.lean else 3, s(rB, 4), sT0), tag="b2")
    if not cfg.lean:
        b2dma()
    a("s_mov_b64 exec, -1")
    if cfg.touch1 == 1:
        touch_w1()
    if cfg.touch2 in (3, 4, 5, 7):
        touch_w2s()
    if cfg.touch2 == 4:
        touch_w2i()
    a("s_setprio 2")
    a("s_mul_i32 s%d, s%d, %d" % (sWB, sWV, WSZ))
    a("s_add_u32 s%d, s%d, %d" % (sWB, sWB, WOFF))
    dma_voff(3072, True)
    a("s_mul_i32 s%d, s%d, %d" % (sOWB, sWV, 512 * 3072))
    a("s_lshl_b32 s%d, s%d, 7" % (sT0, sFT))
    a("s_add_u32 s%d, s%d, s%d" % (sOWB, sOWB, sT0))
    a("s_cmp_ge_u32 s%d, 30" % sJ)
    a("s_cselect_b32 s%d, 0x7f000000, s%d" % (sOWB, sOWB))
    def dma1(k):
        if 15 - cfg.skip1 <= k < 15:
            return
        dma_step(rW1, k % 7, C1, 32 * 3072, "w%d" % k, cfg.tpol if k < cfg.nt1 else '')
    for i in range(cfg.prea):
        dma1(i)
    if cfg.ln4 and cfg.lateb2:
        a("s_barrier")
    a.wait_vm("x")
    for i in range(cfg.prea, cfg.prea + cfg.preb):
        dma1(i)
    gemm_vm = list(a.vm)
    a.label("L_ln")
    stamp(1)

    def bfround(r):
        a("v_cvt_pk_bf16_f32 v%d, v%d, v%d" % (r, r, r))
        a("v_and_b32 v%d, s%d, v%d" % (r, sMASK, r))

    def ln_token(o, sx0, s1, s2, row):
        L = []
        e = L.append
        XP, D_, A, B, C, E_, HP = 16 + o, 24 + o, 34 + o, 36 + o, 38 + o, 40 + o, 44 + o
        M, V, R1, R2 = 50 + o, 51 + o, 52 + o, 54 + o
        for k in range(5):
            e("v_lshlrev_b32 v%d, 16, v%d" % (D_ + 2 * k, XP + k))
            e("v_and_b32 v%d, s%d, v%d" % (D_ + 2 * k + 1, sMASK, XP + k))
        e("v_readfirstlane_b32 s%d, v%d" % (sx0, D_))
        e("v_mov_b32 v%d, %s" % (R2, f32(1.0 / 640)))
        e("v_mov_b32 v%d, s%d" % (A, sx0))
        for k in range(5):
            e("v_pk_add_f32 %s, %s, %s op_sel_hi:[1,0] neg_lo:[0,1] neg_hi:[0,1]" % (v(D_ + 2 * k, 2), v(D_ + 2 * k, 2), v(A, 2)))
        e("v_pk_mul_f32 %s, %s, %s" % (v(B, 2), v(D_, 2), v(D_, 2)))
        e("v_pk_add_f32 %s, %s, %s" % (v(A, 2), v(D_, 2), v(D_ + 2, 2)))
        e("v_pk_mul_f32 %s, %s, %s" % (v(E_, 2), v(D_ + 4, 2), v(D_ + 4, 2)))
        e("v_pk_add_f32 %s, %s, %s" % (v(C, 2), v(D_ + 4, 2), v(D_ + 6, 2)))
        e("v_pk_fma_f32 %s, %s, %s, %s" % (v(B, 2), v(D_ + 2, 2), v(D_ + 2, 2), v(B, 2)))
        e("v_pk_add_f32 %s, %s, %s" % (v(A, 2), v(A, 2), v(D_ + 8, 2)))
        e("v_pk_fma_f32 %s, %s, %s, %s" % (v(E_, 2), v(D_ + 6, 2), v(D_ + 6, 2), v(E_, 2)))
        e("v_pk_fma_f32 %s, %s, %s, %s" % (v(B, 2), v(D_ + 8, 2), v(D_ + 8, 2), v(B, 2)))
        e("v_pk_add_f32 %s, %s, %s" % (v(A, 2), v(A, 2), v(C, 2)))
        e("v_pk_add_f32 %s, %s, %s" % (v(B, 2), v(B, 2), v(E_, 2)))
        e("v_add_f32 v%d, v%d, v%d" % (A, A, A + 1))
        e("v_add_f32 v%d, v%d, v%d" % (B, B, B + 1))
        for ctl in ["row_shr:1", "row_shr:2", "row_shr:4", "row_shr:8"]:
            for r in (A, B):
                e("v_add_f32_dpp v%d, v%d, v%d %s row_mask:0xf bank_mask:0xf bound_ctrl:0" % (r, r, r, ctl))
        for r in (A, B):
            e("v_add_f32_dpp v%d, v%d, v%d row_bcast:15 row_mask:0xa bank_mask:0xf" % (r, r, r))
        for r in (A, B):
            e("v_add_f32_dpp v%d, v%d, v%d row_bcast:31 row_mask:0xc bank_mask:0xf" % (r, r, r))
        e("v_readlane_b32 s%d, v%d, 63" % (s1, A))
        e("v_readlane_b32 s%d, v%d, 63" % (s2, B))
        e("v_mul_f32 v%d, s%d, v%d" % (M, s1, R2))
        e("v_mul_f32 v%d, s%d, v%d" % (V, s2, R2))
        e("v_fma_f32 v%d, -v%d, v%d, v%d" % (V, M, M, V))
        e("v_add_f32 v%d, s%d, v%d" % (A, sx0, M))
        e("v_max_f32 v%d, 0, v%d" % (V, V))
        def rstd(dst, mean, var, mb):
            e("v_cvt_pk_bf16_f32 v%d, v%d, v%d" % (C, mean, var))
            e("v_and_b32 v%d, s%d, v%d" % (dst, sMASK, C))
            e("v_lshlrev_b32 v%d, 16, v%d" % (mb, C))
            e("v_add_f32 v%d, %s, v%d" % (dst, f32(1e-5), dst))
            e("v_cvt_pk_bf16_f32 v%d, v%d, v%d" % (dst, dst, dst))
            e("v_and_b32 v%d, s%d, v%d" % (dst, sMASK, dst))
            e("v_sqrt_f32 v%d, v%d" % (dst, dst))
            e("v_cvt_pk_bf16_f32 v%d, v%d, v%d" % (dst, dst, dst))
            e("v_and_b32 v%d, s%d, v%d" % (dst, sMASK, dst))
            if cfg.nox and dst == R2:
                e("v_lshrrev_b32 v%d, 16, v%d" % (C, mb))
                e("v_or_b32 v%d, v%d, v%d" % (C, C, dst))
                e("ds_write_b32 v59, v%d offset:%d" % (C, 4 * row))
            e("v_rcp_f32 v%d, v%d" % (dst, dst))
        rstd(R1, A, V, B)
        e("v_sub_f32 v%d, s%d, v%d" % (B, sx0, B))
        e("v_mul_f32 v%d, v%d, v%d" % (V, V, R1))
        e("v_mul_f32 v%d, v%d, v%d" % (R1 + 1, B, R1))
        e("v_mul_f32 v%d, v%d, v%d" % (E_, B, R1))
        e("v_mul_f32 v%d, v%d, v%d" % (E_ + 1, B, R1))
        e("v_mul_f32 v%d, v%d, v%d" % (V, V, R1))
        e("v_fma_f32 v%d, v%d, v%d, v%d" % (A, M, R1, R1 + 1))
        n0 = len(L)
        rstd(R2, A, V, B)
        e("v_mul_f32 v%d, v%d, v%d" % (E_ + 2, B, R2))
        e("v_mul_f32 v%d, v%d, v%d" % (E_ + 3, B, R2))
        chain = L[n0:]; del L[n0:]
        body = []
        for k in range(5):
            body.append("v_pk_fma_f32 %s, %s, %s, %s op_sel_hi:[1,0,1]" % (v(D_ + 2 * k, 2), v(D_ + 2 * k, 2), v(R1, 2), v(E_, 2)))
        if not cfg.nox:
            for k in range(5):
                body.append("v_cvt_pk_bf16_f32 v%d, v%d, v%d" % (XP + k, D_ + 2 * k, D_ + 2 * k + 1))
            body.append("ds_write_b128 v60, %s offset:%d" % (v(XP, 4), 2 * SS + 704 * row))
            body.append("ds_write_b32 v61, v%d offset:%d" % (XP + 4, 2 * SS + 704 * row))
        while chain or body:
            if chain: e(chain.pop(0))
            if body: e(body.pop(0))
        for k in range(5):
            e("v_pk_fma_f32 %s, %s, %s, %s op_sel_hi:[1,0,1] neg_lo:[0,0,1] neg_hi:[0,0,1]" % (v(D_ + 2 * k, 2), v(D_ + 2 * k, 2), v(R2, 2), v(E_ + 2, 2)))
        for k in range(5):
            e("v_cvt_pk_bf16_f32 v%d, v%d, v%d" % (HP + k, D_ + 2 * k, D_ + 2 * k + 1))
        e("ds_write_b128 v60, %s offset:%d" % (v(HP, 4), 704 * row))
        e("ds_write_b32 v61, v%d offset:%d" % (HP + 4, 704 * row))
        return L
    def ln_token_exact(o, sx0, s1, s2, row):
        L = []
        e = L.append
        XP, XF32, DT_, A, B, C, D, HP = 16 + o, 24 + o, 34 + o, 44 + o, 46 + o, 48 + o, 50 + o, 52 + o
        def unpack(dst, src):
            for k in range(5):
                e("v_lshlrev_b32 v%d, 16, v%d" % (dst + 2 * k, src + k))
                e("v_and_b32 v%d, s%d, v%d" % (dst + 2 * k + 1, sMASK, src + k))
        unpack(XF32, XP)
        for shift, outp in ((True, XP), (False, HP)):
            src = XF32
            if shift:
                e("v_readfirstlane_b32 s%d, v%d" % (sx0, XF32))
                for i in range(10):
                    e("v_subrev_f32 v%d, s%d, v%d" % (DT_ + i, sx0, XF32 + i))
                src = DT_
            e("v_pk_add_f32 %s, %s, %s" % (v(A, 2), v(src, 2), v(src + 2, 2)))
            e("v_pk_mul_f32 %s, %s, %s" % (v(B, 2), v(src, 2), v(src, 2)))
            e("v_pk_add_f32 %s, %s, %s" % (v(C, 2), v(src + 4, 2), v(src + 6, 2)))
            e("v_pk_fma_f32 %s, %s, %s, %s" % (v(B, 2), v(src + 2, 2), v(src + 2, 2), v(B, 2)))
            e("v_pk_add_f32 %s, %s, %s" % (v(A, 2), v(A, 2), v(src + 8, 2)))
            e("v_pk_mul_f32 %s, %s, %s" % (v(D, 2), v(src + 4, 2), v(src + 4, 2)))
            e("v_pk_fma_f32 %s, %s, %s, %s" % (v(B, 2), v(src + 8, 2), v(src + 8, 2), v(B, 2)))
            e("v_pk_add_f32 %s, %s, %s" % (v(A, 2), v(A, 2), v(C, 2)))
            e("v_pk_fma_f32 %s, %s, %s, %s" % (v(D, 2), v(src + 6, 2), v(src + 6, 2), v(D, 2)))
            e("v_add_f32 v%d, v%d, v%d" % (A, A, A + 1))
            e("v_pk_add_f32 %s, %s, %s" % (v(B, 2), v(B, 2), v(D, 2)))
            e("v_add_f32 v%d, v%d, v%d" % (B, B, B + 1))
            for ctl in ["row_shr:1", "row_shr:2", "row_shr:4", "row_shr:8"]:
                for r in (A, B):
                    e("v_add_f32_dpp v%d, v%d, v%d %s row_mask:0xf bank_mask:0xf bound_ctrl:0" % (r, r, r, ctl))
            for r in (A, B):
                e("v_add_f32_dpp v%d, v%d, v%d row_bcast:15 row_mask:0xa bank_mask:0xf" % (r, r, r))
            for r in (A, B):
                e("v_add_f32_dpp v%d, v%d, v%d row_bcast:31 row_mask:0xc bank_mask:0xf" % (r, r, r))
            e("v_readlane_b32 s%d, v%d, 63" % (s1, A))
            e("v_readlane_b32 s%d, v%d, 63" % (s2, B))
            e("v_mov_b32 v%d, %s" % (A + 1, f32(1.0 / 640)))
            e("v_mul_f32 v%d, s%d, v%d" % (A, s1, A + 1))
            e("v_mul_f32 v%d, s%d, v%d" % (B, s2, A + 1))
            e("v_fma_f32 v%d, -v%d, v%d, v%d" % (B, A, A, B))
            if shift:
                e("v_add_f32 v%d, s%d, v%d" % (A, sx0, A))
            e("v_max_f32 v%d, 0, v%d" % (B, B))
            e("v_cvt_pk_bf16_f32 v%d, v%d, v%d" % (B + 1, A, B))
            e("v_and_b32 v%d, s%d, v%d" % (B, sMASK, B + 1))
            e("v_lshlrev_b32 v%d, 16, v%d" % (A, B + 1))
            e("v_add_f32 v%d, %s, v%d" % (B, f32(1e-5), B))
            for k in range(5):
                e("v_pk_add_f32 %s, %s, %s op_sel_hi:[1,0] neg_lo:[0,1] neg_hi:[0,1]" % (v(DT_ + 2 * k, 2), v(XF32 + 2 * k, 2), v(A, 2)))
                if k == 0:
                    e("v_cvt_pk_bf16_f32 v%d, v%d, v%d" % (B, B, B))
                if k == 1:
                    e("v_and_b32 v%d, s%d, v%d" % (B, sMASK, B))
                if k == 2:
                    e("v_sqrt_f32 v%d, v%d" % (B, B))
                if k == 4:
                    e("v_cvt_pk_bf16_f32 v%d, v%d, v%d" % (B, B, B))
            for k in range(5):
                e("v_cvt_pk_bf16_f32 v%d, v%d, v%d" % (C + k, DT_ + 2 * k, DT_ + 2 * k + 1))
                if k == 0:
                    e("v_and_b32 v%d, s%d, v%d" % (B, sMASK, B))
                if k == 1:
                    if cfg.nox and not shift:
                        e("v_lshrrev_b32 v%d, 16, v%d" % (A + 1, A))
                        e("v_or_b32 v%d, v%d, v%d" % (A + 1, A + 1, B))
                    e("v_rcp_f32 v%d, v%d" % (B, B))
                if k == 2 and cfg.nox and not shift:
                    e("ds_write_b32 v59, v%d offset:%d" % (A + 1, 4 * row))
            unpack(DT_, C)
            for k in range(5):
                e("v_pk_mul_f32 %s, %s, %s op_sel_hi:[1,0]" % (v(DT_ + 2 * k, 2), v(DT_ + 2 * k, 2), v(B, 2)))
            for k in range(5):
                e("v_cvt_pk_bf16_f32 v%d, v%d, v%d" % (outp + k, DT_ + 2 * k, DT_ + 2 * k + 1))
            off = (2 * SS if shift else 0) + 704 * row
            if shift:
                unpack(XF32, outp)
            if not (cfg.nox and shift):
                e("ds_write_b128 v60, %s offset:%d" % (v(outp, 4), off))
                e("ds_write_b32 v61, v%d offset:%d" % (outp + 4, off))
        return L
    if cfg.exactln:
        ln_token = ln_token_exact
    if cfg.ln4:
        for i0, i1 in zip(ln_token(0, 14, sT0, sT1, 0), ln_token(48, 15, sT2, sT3, 1)):
            a(i0); a(i1)
        a("s_waitcnt lgkmcnt(0)"); a.lg = []
        lds_arrive(8, 12, 13)
        a("s_add_u32 s%d, s7, 0x9E3779B9" % sTAG)
        a("s_branch L_not7")
        a.label("L_pub")
    else:
        for i0 in ln_token(0, 14, sT0, sT1, 0):
            a(i0)
        a("s_waitcnt lgkmcnt(0)"); a.lg = []
        a("s_add_u32 s%d, s7, 0x9E3779B9" % sTAG)
        a("s_cmp_lg_u32 s%d, 7" % sWV)
        a("s_barrier")
        a("s_cbranch_scc1 L_not7")
    a.vm = []; a.lg = []
    a("s_setprio 3")
    stamp(2)
    a("s_mul_i32 s%d, s%d, 10240" % (sT0, sID))
    a("s_add_u32 s%d, s%d, 4096" % (sT1, sT0))
    a("s_add_u32 s%d, s%d, 8192" % (sT2, sT0))
    def prd(k):
        arr, hf, q = k // 10, (k // 5) & 1, k % 5
        r = 16 + 4 * k
        o = hf * SS
        va = 100 + q if arr else vPA[q]
        a("ds_read_b64_tr_b16 %s, v%d offset:%d" % (v(r, 2), va, o), tag="p%d" % k)
        a("ds_read_b64_tr_b16 %s, v%d offset:%d" % (v(r + 2, 2), va, o + 2816), tag="p%d" % k)
    NP = 10 if cfg.nox else 20
    for k in range(6):
        prd(k)
    if cfg.nox:
        a("v_and_b32 v100, 16, v2")
        a("ds_read_b128 v[104:107], v100 offset:%d" % STA, tag="sta")
    else:
        for q in range(5):
            a("v_add_u32 v%d, %d, v%d" % (100 + q, 2 * SS, vPA[q]))
    for k in range(NP):
        if k == 10:
            for q in range(3):
                a("s_add_u32 s%d, s%d, 0x%x" % ((sT0, sT1, sT2)[q], (sT0, sT1, sT2)[q], XB))
        a.wait_lg("p%d" % k)
        kk = k % 10
        if k < 10 or not (cfg.noxn or cfg.xnlate):
            a("buffer_store_dwordx4 %s, v2, %s, s%d offen offset:%d sc1" % (v(16 + 4 * k, 4), s(rWS, 4), (sT0, sT1, sT2)[kk >> 2], 1024 * (kk & 3)), tag="hs" if k < 10 else "xs")
        if k + 6 < NP:
            prd(k + 6)
        if k == (cfg.c16k if cfg.nox else 13):
            a.drain_lg()
            lds_arrive(16, 12, 13)
    if cfg.nox:
        a("s_lshl_b32 s%d, s%d, %d" % (sT3, sID, cfg.stsh))
        a("s_add_u32 s%d, s%d, 0x%x" % (sT3, sT3, ST))
        a("s_mov_b64 exec, %d" % ((1 << (1 << (cfg.stsh - 4))) - 1))
        a("buffer_store_dwordx4 v[104:107], v2, %s, s%d offen sc1" % (s(rWS, 4), sT3))
        a("s_mov_b64 exec, -1")
    if cfg.ssig:
        a("s_cmp_ge_u32 s%d, 64" % sID)
        a("s_cbranch_scc1 L_nozero")
    for k in range(4):
        a("v_mov_b32 v%d, 0" % (108 + k))
    a("s_lshl_b32 s%d, s%d, 10" % (sT3, sID))
    a("s_add_u32 s%d, s%d, 0x%x" % (sT3, sT3, MB + 512))
    a("s_mov_b64 exec, 0xffffffff")
    a("buffer_store_dwordx4 v[108:111], v2, %s, s%d offen sc1" % (s(rWS, 4), sT3))
    a("s_lshl_b32 s%d, s%d, 7" % (sT3, sID))
    a("s_add_u32 s%d, s%d, 0x%x" % (sT3, sT3, YC))
    a("s_mov_b64 exec, 0xff")
    a("buffer_store_dwordx4 v[108:111], v2, %s, s%d offen sc1" % (s(rWS, 4), sT3))
    a("s_mov_b64 exec, -1")
    a.label("L_nozero")
    a("s_lshl_b32 s%d, s%d, %d" % (sT3, sID, cfg.fsh))
    a("s_add_u32 s%d, s%d, 0x%x" % (sT3, sT3, HF))
    if cfg.ssig:
        a("s_add_u32 s14, s%d, s%d" % (pWS, sT3))
        a("s_addc_u32 s15, s%d, 0" % (pWS + 1))
        a("s_mov_b32 s7, s%d" % sTAG)
        a.drain_vm()
        a("s_atomic_swap s7, s[14:15], 0")
        a.drain_lg()
        if cfg.xnlate:
            if cfg.xnlate == 2:
                a("s_mov_b32 s%d, s%d" % (sT3, sT0))
                lds_wait(40, 1, 12, 13, sleep=2)
                a("s_mov_b32 s%d, s%d" % (sT0, sT3))
            for kk in range(10):
                a("buffer_store_dwordx4 %s, v2, %s, s%d offen offset:%d sc1" % (v(56 + 4 * kk, 4), s(rWS, 4), (sT0, sT1, sT2)[kk >> 2], 1024 * (kk & 3)))
            a("s_mov_b32 s7, s%d" % sTAG)
            a.drain_vm()
            a("s_atomic_swap s7, s[14:15], 0x%x" % (XF2 - HF))
            a.drain_lg()
    else:
        a.drain_vm()
        flag_store(sT3, 12, 13)
    stamp(3)
    a("s_branch L_w7")
    a.label("L_not7")
    a.lg = ["arr"]
    if not cfg.ln4:
        a("s_cmp_ge_u32 s%d, 4" % sWV)
        a("s_cbranch_scc1 L_aux_main")
    a.vm = list(gemm_vm)
    a("s_setprio %d" % cfg.pP)
    stamp(2)
    for i in range(cfg.prea + cfg.preb, cfg.prea + cfg.preb + cfg.prec):
        dma1(i)
    cfg.pre1 = cfg.prea + cfg.preb + cfg.prec

    a("v_lshrrev_b32 v10, 2, v0")
    if cfg.swz == 0:
        a("v_bfe_u32 v11, v0, 3, 2")
    else:
        a("v_bfe_u32 v11, v0, 3, 1")
        a("v_lshlrev_b32 v11, 1, v11")
    a("v_lshlrev_b32 v10, 7, v10")
    a("v_and_b32 v12, 3, v0")
    a("v_lshl_add_u32 v10, v12, 3, v10")
    a("v_add_u32 v10, s%d, v10" % sWB)
    for n in range(4):
        a("v_xor_b32 v12, %d, v11" % n)
        a("v_lshl_add_u32 v%d, v12, 5, v10" % vTR[n])
    a("v_lshrrev_b32 v10, 4, v0")
    a("v_mul_u32_u24 v10, 10240, v10")
    a("v_and_b32 v11, 15, v0")
    a("v_lshl_add_u32 v%d, v11, 4, v10" % vFO)
    a.wait_vm("b")
    a("v_lshrrev_b32 v10, 4, v0")
    a("v_lshlrev_b32 v10, 3, v10")
    for fi in range(4):
        a("ds_read_b64 %s, v10 offset:%d" % (v(STG1 + 2 * fi, 2), BIA + 32 * fi), tag="bias")
    a.wait_lg("bias")
    for k in range(8):
        a("v_lshlrev_b32 v%d, 16, v%d" % (ACC1 + 2 * k, STG1 + k))
        a("v_and_b32 v%d, s%d, v%d" % (ACC1 + 2 * k + 1, sMASK, STG1 + k))
    if cfg.warm:
        assert not cfg.ts or True
        a("v_mov_b32 v9, 0")
        a("v_mov_b32 v1, 0")
        a("s_mov_b32 s%d, 1" % sDRY)
        a("s_mov_b64 exec, 0")
        a("s_branch L_ep1")
        a.label("L_dry_ret")
        a("s_mov_b64 exec, -1")
        a("s_mov_b32 s%d, 0" % sDRY)
        a("s_waitcnt lgkmcnt(0)"); a.lg = []
    if cfg.lean:
        tile_math(2)
    lds_wait(16, 1, 12, 13)
    if cfg.lean:
        a("v_lshlrev_b32 v10, 2, v0")
        a("s_mov_b64 exec, 0xffffffff")
        b2dma()
        a("s_mov_b64 exec, -1")
    stamp(14)
    if cfg.touch1:
        touch_w1b()
    if cfg.touch2 == 5:
        touch_w2i()
    a("s_cmp_ge_u32 s%d, 30" % sJ)
    a("s_cbranch_scc1 L_g2_pre_nog1")
    a("s_mul_i32 s%d, s%d, %d" % (sOAB, sWV, 64 * 10240))
    a("s_lshl_b32 s%d, s%d, 10" % (sT0, sDT))
    a("s_add_u32 s%d, s%d, s%d" % (sOAB, sOAB, sT0))
    if HB:
        a("s_add_u32 s%d, s%d, 0x%x" % (sOAB, sOAB, HB))
    for di in range(4):
        a("s_xor_b32 s%d, s%d, %d" % (sD[di], sWV, di))
        a("s_lshl_b32 s%d, s%d, 8" % (sD[di], sD[di]))
    def mbox(extra):
        if cfg.ssig and extra:
            a("s_and_b32 s%d, s%d, 63" % (sT1, sID))
            a("s_lshl_b32 s%d, s%d, 3" % (sT1, sT1))
        else:
            a("s_lshl_b32 s%d, s%d, 3" % (sT1, sID))
        a("s_add_u32 s%d, s%d, s%d" % (sT1, sT1, sWV))
        a("s_lshl_b32 s%d, s%d, 7" % (sT1, sT1))
        a("s_add_u32 s%d, s%d, 0x%x" % (sT1, sT1, MB + extra))
    D1 = cfg.depth1
    issued = cfg.pre1
    P1 = cfg.P1
    polled = False
    for i in range(P1):
        while issued < P1 and issued <= i + D1:
            k = issued
            if k >= 7:
                a.wait_lg("t%d" % (k - 7))
            if k >= P1 - 2 and i >= 8 and not polled:
                a.drain_lg()
                mbox(0)
                spoll_pre(sT1)
                polled = True
            dma1(k)
            issued += 1
        if i < 8:
            a.wait_vm("w%d" % i)
            tr_step(i % 7, WREG1 + 16 * i, "t%d" % i)
            if cfg.xnlate == 2 and i == cfg.xnat:
                lds_arrive(40, 12, 13)
        elif issued < P1:
            a.wait_vm("w%d" % i)
        if (i in (0, 8) and cfg.fine) or (cfg.fine == 2 and i in (2, 4, 6, 10)):
            stamp(16 + i // 2)
    if not polled:
        mbox(0)
        spoll_pre(sT1)
    if cfg.touch2 == 7:
        touch_w2i()
    stamp(3)
    def hwait(sl):
        a("s_lshl_b32 s%d, s%d, 3" % (sT1, sID))
        a("s_add_u32 s%d, s%d, s%d" % (sT1, sT1, sWV))
        a("s_lshl_b32 s%d, s%d, 7" % (sT1, sT1))
        a("s_add_u32 s%d, s%d, 0x%x" % (sT1, sT1, MB))
        spoll(sT1, sl)
    spoll(sT1, cfg.psleep, pre=True)
    a("s_setprio %d" % cfg.pG)
    if cfg.pbal:
        a("s_and_b32 s%d, s%d, 1" % (sT2, sJ))
        a("s_add_u32 s%d, s%d, s%d" % (sT2, sT2, sWV))
        a("s_cmp_lt_u32 s%d, 3" % sT2)
        a("s_cbranch_scc1 L_pb")
        a("s_setprio 1")
        a.label("L_pb")
    stamp(4)

    def adv_a(stepbytes):
        if cfg.noadv:
            return
        a("s_add_u32 s%d, s%d, %d" % (sOA, sOA, stepbytes))
        a("s_cmp_ge_u32 s%d, s%d" % (sOA, sOAE))
        a("s_cselect_b32 s%d, s%d, s%d" % (sOA, sOAB, sOA))

    def DI(n):
        return ((n + 1) & 3) if n >= 60 else (n & 3)
    def hload(n):
        di = DI(n)
        if n & 3 == 0:
            setoff(sOA, sOAB, sORD1, n >> 2, 4 * 10240)
        a("s_add_u32 s%d, s%d, s%d" % (sT1, sOA, sD[di]))
        a("buffer_load_dwordx4 %s, v%d, %s, s%d offen %s" % (v(STG1 + 4 * (n % NR1), 4), vFO, s(rWS, 4), sT1, cfg.apol), tag="h%d" % n)

    def w2_setup():
        dma_voff(4096, False)
        a("s_mul_i32 s%d, s%d, %d" % (sOWB, sWV, 384 * 4096))
        a("s_lshl_b32 s%d, s%d, 7" % (sT0, sST))
        a("s_add_u32 s%d, s%d, s%d" % (sOWB, sOWB, sT0))

    SL2 = {0: 3, 1: 4, 2: 5, 3: 6, 4: 0, 5: 1, 6: 2, 7: 3, 8: 4, 9: 5, 10: 6, 11: 0}
    if cfg.e2:
        SL2 = {0: 3, 1: 4, 2: 5, 3: 6, 4: 3, 5: 4, 6: 0, 7: 1, 8: 2, 9: 5, 10: 6, 11: 3}
    def slot2(i):
        return SL2[i]
    def dma2(k):
        if k >= 12 - cfg.skip2:
            return
        dma_step(rW2, slot2(k), C2, 32 * 4096, "u%d" % k, cfg.t2pol if k < cfg.nt2 else '')
    def tr2(k):
        tr_step(slot2(k), WREG2 + 16 * k, "q%d" % k)
    def tr_flip():
        a("s_lshl_b32 s%d, s%d, 5" % (sT0, sWV))
        for n in range(4):
            a("v_xor_b32 v%d, s%d, v%d" % (vTR[n], sT0, vTR[n]))

    vXO, vXO4, vB2 = 9, 1, 14
    sXO = 97
    def xt_setup():
        a("v_and_b32 v12, 15, v0")
        a("v_lshrrev_b32 v13, 4, v0")
        a("v_mul_u32_u24 v%d, 1280, v12" % vXO)
        a("v_lshl_add_u32 v%d, v13, 3, v%d" % (vXO4, vXO))
        a("v_lshl_add_u32 v%d, v13, 4, v%d" % (vXO, vXO))
        a("s_lshl_b32 s%d, s%d, 2" % (sT2, sST))
        a("s_add_u32 s%d, s%d, s%d" % (sT2, sT2, sWV))
        a("s_mul_i32 s%d, s%d, %d" % (sXO, sT2, 16 * 1280))
        a("s_mul_i32 s%d, s%d, 160" % (sT3, sDT2))
        a("s_add_u32 s%d, s%d, s%d" % (sXO, sXO, sT3))
    def acc2_init():
        a("v_and_b32 v12, 15, v0")
        a("s_lshl_b32 s%d, s%d, 5" % (sT2, sWV))
        a("v_lshl_add_u32 v12, v12, 1, s%d" % sT2)
        a("ds_read_u16 v%d, v12 offset:%d" % (vB2, BIA + 128), tag="b2")
        for k in range(10):
            a("v_lshlrev_b32 v%d, 16, v%d" % (ACC2 + 2 * k, XR + k))
            a("v_and_b32 v%d, s%d, v%d" % (ACC2 + 2 * k + 1, sMASK, XR + k))
        a.wait_lg("b2")
        a("v_lshlrev_b32 v%d, 16, v%d" % (vB2, vB2))
        for k in range(20):
            a("v_add_f32 v%d, v%d, v%d" % (ACC2 + k, vB2, ACC2 + k))
    def xt_loads():
        a("buffer_load_dwordx4 %s, v%d, %s, s%d offen %s" % (v(XR, 4), vXO, s(rX, 4), sXO, cfg.xpol), tag="xt")
        a("buffer_load_dwordx4 %s, v%d, %s, s%d offen offset:64 %s" % (v(XR + 4, 4), vXO, s(rX, 4), sXO, cfg.xpol), tag="xt")
        a("buffer_load_dwordx2 %s, v%d, %s, s%d offen offset:128 %s" % (v(XR + 8, 2), vXO4, s(rX, 4), sXO, cfg.xpol), tag="xt")

    for n in range(NR1):
        hload(n)
    lds_arrive(12, 12, 13)
    sGS, sGC = sOWE, sOAE
    vEX = [WREG1 + k for k in range(4)]
    vC = WREG1 + 4
    c0 = -2.0 * math.sqrt(2.0 / math.pi) * math.log2(math.e)
    c1 = c0 * 0.044715
    def xwrite(i):
        for q in range(4):
            a("ds_write_b128 v%d, %s offset:%d" % (vEX[0], v(ACC1 + 16 * i + 4 * q, 4), (i - 1) * 4096 + q * 1024))
    fifo = []
    def fill(k):
        for _ in range(k):
            if fifo:
                a.play(fifo.pop(0))
    def need(tag):
        while any(it[2] == tag for it in fifo):
            fill(1)
    def setup8():
        tr_flip()
        a("v_lshlrev_b32 v10, 4, v0")
        a("v_add_u32 v%d, s%d, v10" % (vEX[0], sWB))
        for k in range(1, 4):
            a("s_xor_b32 s%d, s%d, %d" % (sT0, sWV, k))
            a("s_mul_i32 s%d, s%d, %d" % (sT0, sT0, WSZ))
            a("s_add_u32 s%d, s%d, %d" % (sT0, sT0, WOFF))
            a("v_add_u32 v%d, s%d, v10" % (vEX[k], sT0))
        a("v_mov_b32 v%d, %s" % (vC, f32(c1)))
        a("v_mov_b32 v%d, %s" % (vC + 1, f32(c0 if not cfg.dupc else c1)))
        if cfg.dupc:
            a("v_mov_b32 v%d, %s" % (vC + 2, f32(c0)))
            a("v_mov_b32 v%d, %s" % (vC + 3, f32(c0)))
    def setup10():
        a("s_mul_i32 s%d, s%d, %d" % (sGS, sFT, 8 * 10240))
        a("s_lshl_b32 s%d, s%d, 10" % (sT2, sDT))
        a("s_add_u32 s%d, s%d, s%d" % (sGS, sGS, sT2))
        a("s_add_u32 s%d, s%d, s%d" % (sGS, sGS, sD[0]))
        a("s_add_u32 s%d, s%d, 0x%x" % (sGS, sGS, GB))
        a("s_add_u32 s96, s%d, %d" % (sGS, 4 * 10240))
        a("s_lshl_b32 s%d, s%d, 2" % (sT2, sDT))
        a("s_add_u32 s%d, s%d, s%d" % (sT2, sT2, sWV))
        a("s_mul_i32 s%d, s%d, 52" % (sT2, sT2))
        a("s_lshr_b32 s%d, s%d, 8" % (sT2, sT2))
        if not cfg.ssig:
            group_ids(vPO, 13, sT2, 10)
        a("s_mul_i32 s%d, s%d, 43" % (sGC, sFT))
        a("s_lshr_b32 s%d, s%d, 8" % (sGC, sGC))
        a("s_lshl_b32 s%d, s%d, 7" % (sGC, sGC))
        a("s_add_u32 s%d, s%d, 0x%x" % (sGC, sGC, MB + 512))
        if cfg.ssig:
            a("s_lshl_b32 s%d, s%d, 13" % (sT2, sT2))
            a("s_add_u32 s%d, s%d, s%d" % (sGC, sGC, sT2))
    def refill(i, wr):
        a.wait_vm("w%d" % i)
        tr_step(i % 7, wr, "t%d" % i)
    def late15():
        a.wait_lg("t8")
        dma1(15)
        w2_setup()
    for i in range(16):
        wr = WREG1 + 16 * (i & 7)
        if i >= 8:
            need("t%d" % i)
            a.wait_lg("t%d" % i)
        for dd in range(4):
            n = 4 * i + dd
            di = DI(n)
            nxt = a.capture(hload, n + NR1) if (n + NR1 < 64 and not cfg.noload) else []
            a.wait_vm("h%d" % n)
            for fi in range(4):
                acc = v(ACC1 + 16 * di + 4 * fi, 4)
                if not cfg.nomfma or i == 0:
                    a("v_mfma_f32_16x16x32_bf16 %s, %s, %s, %s" % (acc, v(wr + 4 * fi, 4), v(STG1 + 4 * (n % NR1), 4), acc if (i or di == 0) else "0"))
                if fi < 3:
                    k = cfg.fillk
                    while len(nxt) > 1 and k:
                        a.play(nxt.pop(0)); k -= 1
                    fill(k)
            for it in nxt:
                a.play(it)
            if not nxt:
                fill(cfg.fillk)
            if n == cfg.e0at:
                fill(1000)
                for k in range(cfg.e0):
                    fifo += a.capture(dma2, k)
            if n >= 61:
                xwrite(n - 60)
        if i in (0, 7) and cfg.fine:
            stamp(24 + (i + 1) // 4)
        if i < 8:
            fifo += a.capture(refill, i + 8, wr)
        if P1 + i < 15:
            fifo += a.capture(dma1, P1 + i)
        if i == max(1, 15 - P1):
            fifo += a.capture(late15)
        if i == 10:
            fifo += a.capture(setup10)
        if i == cfg.psat:
            fill(1000)
            lds_arrive(56, 12, 13)
        if i == 8:
            fifo += a.capture(setup8)
        if i == 9:
            fifo += a.capture(xt_setup)
    fill(1000)
    if cfg.pW != cfg.pG:
        a("s_setprio %d" % cfg.pW)
    stamp(5)
    a.drain_lg()
    lds_arrive(0, 12, 13)
    if cfg.e2:
        a.wait_vm("u1")
        tr2(0); tr2(1)
    lds_wait(0, 4, 12, 13)
    stamp(12)
    a.label("L_ep1")
    for q in range(4):
        for i in range(1, 4):
            a("ds_read_b128 %s, v%d offset:%d" % (v(ACC1 + 16 * i + 4 * q, 4), vEX[i], (i - 1) * 4096 + q * 1024), tag="r%d" % q)
    def _e1():
        for k in range(cfg.e0, cfg.e0 + cfg.e1):
            dma2(k)
        if cfg.e2 == 1:
            dma2(4); dma2(5)
    if not cfg.w7dma:
        guard(_e1)
    def op2(name, d, x, y, n):
        if cfg.nopk:
            for k in range(n):
                a("v_%s_f32 v%d, v%d, v%d" % (name, d + k, x + k, y + k))
        else:
            for k in range(0, n, 2):
                a("v_pk_%s_f32 %s, %s, %s" % (name, v(d + k, 2), v(x + k, 2), v(y + k, 2)))
    U_, T_, P_ = ACC1, ACC1 + 16, STG1
    for hf in range(2):
        o = 8 * hf
        a.wait_lg("r%d" % (2 * hf + 1))
        if hf == 1:
            guard(lds_arrive, 4, 12, 13)
            if cfg.e2 == 2:
                dma2(4); dma2(5)
        op2("add", U_ + o, U_ + o, ACC1 + 16 + o, 8)
        op2("add", ACC1 + 32 + o, ACC1 + 32 + o, ACC1 + 48 + o, 8)
        op2("add", U_ + o, U_ + o, ACC1 + 32 + o, 8)
        op2("mul", T_ + o, U_ + o, U_ + o, 8)
        if cfg.nopk:
            for k in range(8):
                a("v_fma_f32 v%d, v%d, v%d, v%d" % (T_ + o + k, T_ + o + k, vC, vC + (2 if cfg.dupc else 1)))
        else:
            for k in range(0, 8, 2):
                if cfg.dupc:
                    a("v_pk_fma_f32 %s, %s, %s, %s" % (v(T_ + o + k, 2), v(T_ + o + k, 2), v(vC, 2), v(vC + 2, 2)))
                else:
                    a("v_pk_fma_f32 %s, %s, %s, %s op_sel:[0,0,1] op_sel_hi:[1,0,1]" % (v(T_ + o + k, 2), v(T_ + o + k, 2), v(vC, 2), v(vC, 2)))
        op2("mul", T_ + o, T_ + o, U_ + o, 8)
        for k in range(8):
            a("v_exp_f32 v%d, v%d" % (T_ + o + k, T_ + o + k))
        if cfg.nopk:
            for k in range(8):
                a("v_add_f32 v%d, 1.0, v%d" % (T_ + o + k, T_ + o + k))
        else:
            for k in range(0, 8, 2):
                a("v_pk_add_f32 %s, %s, 1.0 op_sel_hi:[1,0]" % (v(T_ + o + k, 2), v(T_ + o + k, 2)))
        for k in range(8):
            a("v_rcp_f32 v%d, v%d" % (T_ + o + k, T_ + o + k))
        op2("mul", T_ + o, T_ + o, U_ + o, 8)
        for k in range(4):
            a("v_cvt_pk_bf16_f32 v%d, v%d, v%d" % (P_ + 4 * hf + k, T_ + o + 2 * k, T_ + o + 2 * k + 1))
        if hf == 1:
            dry_exit("L_ep2")
            a("buffer_store_dwordx4 %s, v%d, %s, s%d offen sc1" % (v(P_ + 4 * hf, 4), vFO, s(rWS, 4), 96), tag="gs")
        else:
            guard(lambda: a("buffer_store_dwordx4 %s, v%d, %s, s%d offen sc1" % (v(P_, 4), vFO, s(rWS, 4), sGS), tag="gs"))
    lds_arrive(28, 12, 13)
    stamp(6)
    if cfg.e2:
        assert cfg.e0 == 2 and cfg.e1 == 2 and cfg.ssig and cfg.lateinit
        lds_wait(4, 4, 12, 13)
        dma2(6); dma2(7)
        a.wait_vm("u5")
        for k in range(2, 6):
            tr2(k)
        a.drain_lg()
        a.wait_vm("gs")
        sig8(sGC, 1024)
        a.smem = True
        stamp(7)
        xt_loads()
        dma2(8); dma2(9)
        a.wait_vm("xt")
        a.drain_lg()
        mbox(512)
        spoll_pre(sT1)
        dma2(10); dma2(11)
    elif cfg.w7dma == 2:
        assert cfg.e0 == 2 and cfg.ssig
        lds_wait(4, 4, 12, 13)
        dma2(4); dma2(5)
        a.wait_vm("u1")
        tr2(0); tr2(1)
        lds_wait(52, 1, 12, 13)
        tr2(2); tr2(3)
        a.drain_lg()
        a.wait_vm("gs")
        sig8(sGC, 1024)
        a.smem = True
        stamp(7)
        xt_loads()
        dma2(6); dma2(7)
        a.wait_vm("u4"); tr2(4)
        dma2(8)
        a.wait_vm("u5"); tr2(5)
        dma2(9)
        a.wait_vm("xt")
        acc2_init()
        a.drain_lg()
        mbox(512)
        spoll_pre(sT1)
        dma2(10); dma2(11)
    elif cfg.w7dma:
        assert cfg.e0 == 2 and cfg.ssig
        a.wait_vm("u1")
        tr2(0); tr2(1)
        a.drain_lg()
        a.wait_vm("gs")
        sig8(sGC, 1024)
        a.smem = True
        stamp(7)
        xt_loads()
        dma2(7); dma2(8)
        lds_wait(52, 1, 12, 13)
        tr2(2); tr2(3)
        a.wait_vm("xt")
        acc2_init()
        a.drain_lg()
        dma2(9); dma2(10)
        lds_wait(52, 2, 12, 13)
        tr2(4); tr2(5)
        a.drain_lg()
        mbox(512)
        spoll_pre(sT1)
        dma2(11)
    else:
        ne = cfg.e0 + cfg.e1
        for k in range(ne, 4):
            dma2(k)
        lds_wait(4, 4, 12, 13)
        dma2(4); dma2(5)
        if ne:
            a.wait_vm("u%d" % (ne - 1))
            for k in range(ne):
                tr2(k)
        if cfg.ssig:
            a.drain_lg()
        a.wait_vm("gs")
        if cfg.ssig:
            sig8(sGC, 1024)
            a.smem = True
        else:
            group_add(vPO, sGC, 13)
        stamp(7)
        xt_loads()
        dma2(6)
        for k in range(ne, 4):
            a.wait_vm("u%d" % k); tr2(k)
        a.wait_lg("q0"); dma2(7)
        a.wait_vm("u4"); tr2(4)
        a.wait_lg("q1"); dma2(8)
        a.wait_vm("u5"); tr2(5)
        a.wait_lg("q2"); dma2(9)
        a.wait_vm("xt")
        if not cfg.lateinit:
            acc2_init()
        a.drain_lg()
        mbox(512)
        spoll_pre(sT1)
        dma2(10); dma2(11)
    vm_join = list(a.vm)
    a("s_branch L_g2_pre")
    a.label("L_g2_pre_nog1")
    a.vm = []; a.lg = []
    if cfg.xnlate == 2:
        lds_arrive(40, 12, 13)
    if cfg.nagg == 8:
        a("s_cmp_lg_u32 s%d, 31" % sJ)
        a("s_cbranch_scc1 L_noagg_h")
    a("v_lshlrev_b32 v%d, %d, v0" % (vPO, cfg.fsh))
    a("s_lshl_b32 s%d, s%d, %d" % (sT1, sWV, 6 + cfg.fsh))
    a("s_add_u32 s%d, s%d, 0x%x" % (sT1, sT1, HF))
    a("v_lshlrev_b32 v12, 13, v0")
    a("v_mov_b32 v13, s%d" % sTAG)
    a("s_lshl_b32 s%d, s%d, 3" % (sT2, sX))
    a("s_add_u32 s%d, s%d, s%d" % (sT2, sT2, sWV))
    a("s_lshl_b32 s%d, s%d, 7" % (sT2, sT2))
    a("s_add_u32 s%d, s%d, 0x%x" % (sT2, sT2, MB))
    if cfg.nagg == 16:
        a("s_and_b32 s%d, s%d, 1" % (sT3, sJ))
        a("s_lshl_b32 s%d, s%d, 17" % (sT3, sT3))
        a("s_add_u32 s%d, s%d, s%d" % (sT2, sT2, sT3))
    poll([vPO], [sT1], vPD, sleep=cfg.asleep)
    a("s_mov_b64 exec, 0x%x" % (0xffffffff if cfg.nagg == 8 else 0xffff))
    a("buffer_store_dword v13, v12, %s, s%d offen sc1" % (s(rWS, 4), sT2))
    a("s_mov_b64 exec, -1")
    stamp(13)
    if cfg.xnlate:
        a("s_add_u32 s%d, s%d, 0x%x" % (sT1, sT1, XF2 - HF))
        poll([vPO], [sT1], vPD, sleep=cfg.asleep)
        a("s_mov_b64 exec, 0x%x" % (0xffffffff if cfg.nagg == 8 else 0xffff))
        a("buffer_store_dword v13, v12, %s, s%d offen offset:64 sc1" % (s(rWS, 4), sT2))
        a("s_mov_b64 exec, -1")
    a.label("L_noagg_h")
    a.vm = []
    if cfg.touch2 == 6:
        a("v_lshrrev_b32 v8, 2, v0")
        a("v_lshlrev_b32 v8, 12, v8")
        a("v_and_b32 v9, 3, v0")
        a("v_lshl_add_u32 v8, v9, 7, v8")
        a("s_mul_i32 s%d, s%d, 24" % (sT1, sWV))
        a("s_add_u32 s%d, s%d, s%d" % (sT1, sT1, sJ))
        a("s_sub_u32 s%d, s%d, 30" % (sT1, sT1))
        a("s_lshl_b32 s%d, s%d, 16" % (sT1, sT1))
        a("s_lshl_b32 s%d, s%d, 9" % (sT2, sX))
        a("s_add_u32 s%d, s%d, s%d" % (sT1, sT1, sT2))
        a("s_mov_b32 s%d, s%d" % (sT3, sT1))
        for k in range(12):
            a("buffer_load_dword v9, v8, %s, s%d offen %s" % (s(rW2, 4), sT3, cfg.t2pol), tag="tw%d" % k)
            a("s_add_u32 s%d, s%d, %d" % (sT3, sT3, 32 * 4096))
            if k == 3:
                hwait(2)
                lds_arrive(12, 12, 13)
            if k >= cfg.tdep:
                a.wait_vm("tw%d" % (k - cfg.tdep))
    else:
        hwait(4)
        lds_arrive(12, 12, 13)
        if cfg.touch2 == 7:
            lds_wait(12, 4, 12, 13, sleep=2)
            touch_w2s()
            touch_w2i()
    lds_wait(12, 4, 12, 13, sleep=2)
    a("s_setprio 2")
    xt_setup()
    xt_loads()
    w2_setup()
    tr_flip()
    if cfg.e2:
        for k in range(4):
            dma2(k)
        a.drain_vm()
        for k in range(4):
            tr2(k)
        a.drain_lg()
        for k in range(4, 11):
            dma2(k)
            a.wait_vm("u%d" % (k - 1))
        tr2(4); tr2(5)
        a.drain_lg()
        dma2(11)
    else:
        for k in range(7):
            dma2(k)
            if k:
                a.wait_vm("u%d" % (k - 1))
        for k in range(6):
            tr2(k)
        if not cfg.lateinit:
            acc2_init()
        a.drain_lg()
        for k in range(7, 12):
            dma2(k)
            a.wait_vm("u%d" % (k - 1))
    a.drain_vm()
    mbox(512)
    spoll_pre(sT1)
    a.label("L_g2_pre")
    a.vm = list(vm_join); a.lg = []
    stamp(8)
    a("s_mul_i32 s%d, s%d, %d" % (sOAB, sWV, 48 * 10240))
    a("s_mul_i32 s%d, s%d, 1280" % (sT0, sDT2))
    a("s_add_u32 s%d, s%d, s%d" % (sOAB, sOAB, sT0))
    a("s_add_u32 s%d, s%d, 0x%x" % (sOAB, sOAB, GB))
    spoll(sT1, cfg.psleep, target=30, pre=True)
    if cfg.pW != cfg.pG:
        a("s_setprio %d" % cfg.pG)
    stamp(9)

    def gload(n):
        mi = n % 5
        if mi == 0:
            setoff(sOA, sOAB, sORD2, n // 5, 4 * 10240)
        a("buffer_load_dwordx4 %s, v%d, %s, s%d offen offset:%d %s" % (v(STG2 + 4 * (n % NR2), 4), vFO, s(rWS, 4), sOA, 256 * mi, cfg.apol), tag="g%d" % n)

    for n in range(NR2):
        if n == 13 and cfg.lateinit:
            acc2_init()
        gload(n)
    assert NR2 > 13 or not cfg.lateinit
    vE2 = [8, 10, 11, 12, 13]
    def setup6():
        a("v_lshlrev_b32 v7, 4, v0")
        a("v_add_u32 v%d, s%d, v7" % (vE2[0], sWB))
        for k in range(1, 4):
            a("s_xor_b32 s%d, s%d, %d" % (sT0, sWV, k))
            a("s_mul_i32 s%d, s%d, %d" % (sT0, sT0, WSZ))
            a("s_add_u32 s%d, s%d, %d" % (sT0, sT0, WOFF))
            a("v_add_u32 v%d, s%d, v7" % (vE2[k], sT0))
        a("v_lshrrev_b32 v7, 2, v0")
        a("v_lshlrev_b32 v7, 7, v7")
        a("v_and_b32 v14, 3, v0")
        a("v_lshl_add_u32 v7, v14, 3, v7")
        a("s_lshl_b32 s%d, s%d, 5" % (sT0, sWV))
        a("s_add_u32 s%d, s%d, %d" % (sT0, sT0, RY))
        a("v_add_u32 v%d, s%d, v7" % (vE2[4], sT0))
    setup6()
    for i in range(12):
        wr = WREG2 + 16 * (i % 6)
        if i >= 6:
            need("q%d" % i)
            a.wait_lg("q%d" % i)
        for mi in range(5):
            n = 5 * i + mi
            nxt = a.capture(gload, n + NR2) if (n + NR2 < 60 and not cfg.noload) else []
            a.wait_vm("g%d" % n)
            for x, ni in enumerate((1, 2, 3, 0) if i == 11 else range(4)):
                acc = v(ACC2 + 20 * ni + 4 * mi, 4)
                if not cfg.nomfma or i == 0:
                    a("v_mfma_f32_16x16x32_bf16 %s, %s, %s, %s" % (acc, v(STG2 + 4 * (n % NR2), 4), v(wr + 4 * ni, 4), acc if (i or ni == 0) else "0"))
                if x < 3:
                    k = cfg.fillk
                    while len(nxt) > 1 and k:
                        a.play(nxt.pop(0)); k -= 1
                    fill(k)
                if i == 11 and mi >= 2 and x < 3:
                    a("ds_write_b128 v%d, %s offset:%d" % (vE2[0], v(ACC2 + 20 * (x + 1) + 4 * (mi - 2), 4), x * 5120 + (mi - 2) * 1024))
            for it in nxt:
                a.play(it)
        if i in (0, 5) and cfg.fine:
            stamp(28 + (i + 1) // 3)
        if i + 6 < 12:
            fifo += a.capture(tr_step, slot2(i + 6), wr, "q%d" % (i + 6))
    fill(1000)
    stamp(10)
    for q in (3, 4):
        for k in range(1, 4):
            a("ds_write_b128 v%d, %s offset:%d" % (vE2[0], v(ACC2 + 20 * k + 4 * q, 4), (k - 1) * 5120 + q * 1024))
    a.drain_lg()
    a("s_barrier")
    a.label("L_ep2")
    YR, TY, TP = WREG2 + 40, WREG2, WREG2 + 20
    def _ya():
        for mi in range(5):
            a("ds_read_b64_tr_b16 %s, v%d offset:%d" % (v(YR + 2 * mi, 2), vE2[4], mi * 2048), tag="ya")
    guard(_ya)
    for q in range(5):
        for k in range(1, 4):
            a("ds_read_b128 %s, v%d offset:%d" % (v(ACC2 + 20 * k + 4 * q, 4), vE2[k], (k - 1) * 5120 + q * 1024), tag="r%d" % q)
    a.wait_lg("ya")
    for k in range(10):
        a("v_lshlrev_b32 v%d, 16, v%d" % (TY + 2 * k, YR + k))
        a("v_and_b32 v%d, s%d, v%d" % (TY + 2 * k + 1, sMASK, YR + k))
    def pk2(d, x, y, n):
        for k in range(0, n, 2):
            a("v_pk_add_f32 %s, %s, %s" % (v(d + k, 2), v(x + k, 2), v(y + k, 2)))
    pk2(ACC2, ACC2, TY, 20)
    pol = (" " + cfg.out_pol) if cfg.out_pol else ""
    for (o, n, last) in ((0, 8, 1), (8, 8, 3), (16, 4, 4)):
        a.wait_lg("r%d" % last)
        pk2(ACC2 + o, ACC2 + o, ACC2 + 20 + o, n)
        pk2(ACC2 + 40 + o, ACC2 + 40 + o, ACC2 + 60 + o, n)
        pk2(ACC2 + o, ACC2 + o, ACC2 + 40 + o, n)
        for k in range(n // 2):
            a("v_cvt_pk_bf16_f32 v%d, v%d, v%d" % (TP + o // 2 + k, ACC2 + o + 2 * k, ACC2 + o + 2 * k + 1))
        if n == 8:
            guard(lambda: a("buffer_store_dwordx4 %s, v%d, %s, s%d offen offset:%d%s" % (v(TP + o // 2, 4), vXO, s(rOUT, 4), sXO, 8 * o, pol)))
        else:
            dry_exit("L_dry_ret")
            a("buffer_store_dwordx2 %s, v%d, %s, s%d offen offset:128%s" % (v(TP + 8, 2), vXO4, s(rOUT, 4), sXO, pol))
    stamp(11)
    if cfg.hold:
        a("s_waitcnt vmcnt(0)")
        a.label("L_hold")
        a("s_memrealtime s[100:101]")
        a("s_waitcnt lgkmcnt(0)")
        a("s_sub_u32 s100, s100, s98")
        if cfg.hx >= 0:
            a("s_sub_u32 s100, s100, s99")
        a("s_cmp_lt_u32 s100, %d" % (cfg.hold * 100))
        a("s_cbranch_scc1 L_hold")
    finish()

    a.label("L_aux_main")
    a.vm = list(aux_vm); a.lg = []
    a("s_and_b32 s%d, s%d, 1" % (sT0, sJ))
    a("s_add_u32 s%d, s%d, s%d" % (sT0, sT0, sWV))
    a("s_cmp_ge_u32 s%d, 7" % sT0)
    a("s_cbranch_scc1 %s" % ("L_w6" if cfg.stouch else "L_aux_done"))
    F0 = 64
    if cfg.ln4 and cfg.lateb2 == 1:
        a("s_barrier")
    a.wait_vm("p")
    for k in range(6):
        a("v_lshlrev_b32 v%d, 16, v%d" % (F0 + k, PRM0 + k))
        a("v_and_b32 v%d, s%d, v%d" % (F0 + 6 + k, sMASK, PRM0 + k))
        a("v_lshlrev_b32 v%d, 16, v%d" % (F0 + 12 + k, PRM1 + k))
    vDT, vDS = 82, 83
    a("v_lshlrev_b32 v%d, 16, v%d" % (vDT, vLDT))
    a("v_lshlrev_b32 v%d, 16, v%d" % (vDS, vDSK))
    a("v_mul_f32 v%d, %s, v%d" % (vDT, f32(math.log2(math.e)), vDT))
    a("v_exp_f32 v%d, v%d" % (vDT, vDT))
    bfround(vDT)
    a("s_setprio %d" % cfg.pK)
    stamp(3)

    E = {k: 84 + 2 * (k - 1) for k in range(1, 8)}
    P = {k: 98 + 2 * (k - 1) for k in range(1, 9)}
    Q, Q2 = 114, 116
    Y = [118, 120, 122, 124]
    TT = [126, 128, 130, 132]
    CV = list(range(134, 142))
    YFR, XFR, DK = 144, 160, 208
    vFA = 220
    if cfg.kv3:
        assert cfg.kg2 == 3 and cfg.sepu
        DK, vFA = 176, 188
    cvi = [0]
    def cmul1(d, x, y):
        a("v_pk_mul_f32 %s, %s, %s op_sel:[0,0] op_sel_hi:[0,1]" % (v(d, 2), v(x, 2), v(y, 2)))
    def cmul2(d, x, y):
        a("v_pk_fma_f32 %s, %s, %s, %s op_sel:[1,1,0] op_sel_hi:[1,0,1] neg_lo:[1,0,0]" % (v(d, 2), v(x, 2), v(y, 2), v(d, 2)))
    if cfg.kg2 == 3:
        CV = list(range(16, 64)) + list(range(224, 233))
        if cfg.kv3:
            CV = list(range(16, 64)) + list(range(189, 197))
    def put(r, row, neg=False):
        c = CV[cvi[0] % len(CV)]; cvi[0] += 1
        a("v_cvt_pk_bf16_f32 v%d, v%d, %sv%d" % (c, r, "-" if neg else "", r + 1))
        return ("w", c, row)
    def wr(c, row):
        if not cfg.nokw:
            a("ds_write_addtid_b32 v%d offset:%d" % (c, row * 288))
    def group(ops):
        for d, x, y, row, neg in ops:
            cmul1(d, x, y)
        for d, x, y, row, neg in ops:
            cmul2(d, x, y)
        pend = []
        for d, x, y, row, neg in ops:
            if row is not None:
                pend.append(put(d, row, neg))
        for _, c, row in pend:
            wr(c, row)

    a("s_mov_b32 m0, s%d" % sRB)
    a("v_and_b32 v1, 15, v0")
    a("v_mul_u32_u24 v1, 288, v1")
    a("v_and_b32 v%d, 48, v0" % vFA)
    a("v_add3_u32 v%d, v%d, v1, s%d" % (vFA, vFA, sRB))
    for k in range(12):
        a("v_mov_b32 v%d, 0" % (DK + k))
    a("v_mov_b32 v143, 0x3f80")
    if cfg.kg2 in (1, 2):
        YR0 = 25
        pend = []
        def drip(n):
            for _ in range(n):
                if pend:
                    a.play(pend.pop(0))
        def out(r, row, neg=False):
            def f():
                _, c, _r = put(r, row, neg)
                f.c = c
            it = a.capture(f)
            return it, a.capture(wr, f.c, row)
        def grp(ops):
            for d, x, y, row, neg in ops:
                cmul1(d, x, y); drip(1)
            for d, x, y, row, neg in ops:
                cmul2(d, x, y); drip(1)
            drip(100)
            cv, wrs = [], []
            for d, x, y, row, neg in ops:
                if row is not None:
                    c_, w_ = out(d, row, neg)
                    cv += c_; wrs += w_
            seq_ = cv[:1]
            for k in range(len(wrs)):
                seq_ += cv[k + 1:k + 2] + [wrs[k]]
            pend.extend(seq_)
        T2 = TT + [224, 226, 228, 230]
        AN = 232
        late = []
        def dl(n):
            for _ in range(n):
                if late:
                    a.play(late.pop(0))
        def mf(dk, xo, tag):
            a.wait_lg(tag)
            for st in range(4):
                a("v_mfma_f32_16x16x32_bf16 %s, %s, %s, %s" % (v(dk, 4), v(XFR + xo + 4 * st, 4), v(YFR + 4 * st, 4), v(dk, 4)))
        if cfg.kg2 == 2:
            a("s_mov_b32 s%d, 3" % sT3)
            a.label("L_kgen")
            a.lg = []
        for rd in range(3 if cfg.kg2 == 1 else 1):
            Fp = F0 + 6 * rd
            a("v_pk_mul_f32 %s, %s, v[82:83] op_sel_hi:[1,0]" % (v(AN, 2), v(Fp, 2)))
            a("v_pk_mul_f32 %s, %s, v[82:83] op_sel_hi:[1,0]" % (v(AN + 2, 2), v(Fp + 2, 2)))
            a("v_mul_f32 v%d, %s, v%d" % (AN, f32(math.log2(math.e)), AN))
            a("v_mul_f32 v%d, 0.15915494, v%d" % (AN + 1, AN + 1))
            cmul1(Y[0], Fp + 4, AN + 2)
            anchors = [(E[1], 1.0), (Q, 8.0), (P[1], 128.0)]
            for idx, (d, k) in enumerate(anchors):
                m_, f_ = AN + 4 + 2 * idx, AN + 5 + 2 * idx
                if k == 1.0:
                    a("v_exp_f32 v%d, v%d" % (m_, AN))
                    a("v_fract_f32 v%d, v%d" % (f_, AN + 1))
                else:
                    a("v_mul_f32 v%d, %s, v%d" % (m_, f32(k), AN))
                    a("v_mul_f32 v%d, %s, v%d" % (f_, f32(k), AN + 1))
                    a("v_exp_f32 v%d, v%d" % (m_, m_))
                    a("v_fract_f32 v%d, v%d" % (f_, f_))
                dl(1)
            cmul2(Y[0], Fp + 4, AN + 2)
            for idx, (d, k) in enumerate(anchors):
                a("v_cos_f32 v%d, v%d" % (d, AN + 5 + 2 * idx)); dl(1)
                a("v_sin_f32 v%d, v%d" % (d + 1, AN + 5 + 2 * idx)); dl(1)
            dl(100)
            for idx, (d, k) in enumerate(anchors):
                a("v_pk_mul_f32 %s, %s, %s op_sel_hi:[1,0]" % (v(d, 2), v(d, 2), v(AN + 4 + 2 * idx, 2)))
            pend.extend(a.capture(wr, 143, 0))
            for r_, row, neg in ((Y[0], YR0, True), (E[1], 1, False), (P[1], 8, False)):
                c_, w_ = out(r_, row, neg)
                pend.extend(c_ + w_)
            grp([(Y[1], Y[0], Q, YR0 + 1, True), (Q2, Q, Q, None, False), (E[2], E[1], E[1], 2, False), (P[2], P[1], P[1], 16, False)])
            grp([(Y[2], Y[0], Q2, YR0 + 2, True), (Y[3], Y[1], Q2, YR0 + 3, True), (E[3], E[2], E[1], 3, False), (E[4], E[2], E[2], 4, False)])
            grp([(Y[0], Y[2], Q2, YR0 + 4, True), (Y[1], Y[3], Q2, YR0 + 5, True), (E[5], E[4], E[1], 5, False), (E[6], E[4], E[2], 6, False)])
            grp([(Y[2], Y[0], Q2, YR0 + 6, True), (Y[3], Y[1], Q2, YR0 + 7, True), (E[7], E[4], E[3], 7, False), (P[3], P[2], P[1], 20, False)])
            grp([(Y[0], Y[2], Q2, YR0 + 8, True), (Y[1], Y[3], Q2, YR0 + 9, True), (T2[0], P[1], E[1], 9, False), (T2[1], P[1], E[2], 10, False)])
            grp([(Y[2], Y[0], Q2, YR0 + 10, True), (Y[3], Y[1], Q2, YR0 + 11, True), (T2[2], P[1], E[3], 11, False), (T2[3], P[1], E[4], 12, False)])
            grp([(Y[0], Y[2], Q2, YR0 + 12, True), (Y[1], Y[3], Q2, YR0 + 13, True), (T2[0], P[1], E[5], 13, False), (T2[1], P[1], E[6], 14, False)])
            grp([(Y[2], Y[0], Q2, YR0 + 14, True), (Y[3], Y[1], Q2, YR0 + 15, True), (T2[2], P[1], E[7], 15, False), (P[4], P[2], P[2], 24, False)])
            def rdf(dst, row0, tag):
                for st in range(4):
                    a("ds_read_b128 %s, v%d offset:%d" % (v(dst + 4 * st, 4), vFA, row0 * 288 + 64 * st), tag=tag)
            pend.extend(a.capture(rdf, YFR, YR0, "yf") + a.capture(rdf, XFR, 0, "x0"))
            grp([(T2[4], P[2], E[2], 17, False), (T2[5], P[2], E[4], 18, False), (T2[6], P[2], E[6], 19, False), (P[5], P[4], P[1], 26, False)])
            grp([(T2[0], P[3], E[2], 21, False), (T2[1], P[3], E[4], 22, False), (T2[2], P[3], E[6], 23, False), (P[6], P[4], P[2], 28, False)])
            grp([(P[7], P[4], P[3], 30, False), (P[8], P[4], P[4], 32, False), (T2[4], P[4], E[4], 25, False), (T2[5], P[5], E[4], 27, False)])
            grp([(T2[0], P[6], E[4], 29, False), (T2[1], P[7], E[4], 31, False), (T2[2], P[8], P[1], 33, False), (T2[3], P[8], P[2], 34, False)])
            pend.extend(a.capture(rdf, XFR + 16, 16, "x1"))
            grp([(T2[4], P[8], P[3], 35, False), (T2[5], P[8], P[4], 36, False), (T2[6], P[8], P[5], 37, False)])
            grp([(T2[0], P[8], P[6], 38, False), (T2[1], P[8], P[7], 39, False), (T2[2], P[8], P[8], 40, False)])
            m0_ = a.capture(mf, DK, 0, "x0")
            while pend or m0_:
                drip(1)
                if m0_:
                    a.play(m0_.pop(0))
            rdf(XFR + 32, 32, "x2")
            late.extend(a.capture(mf, DK + 4, 16, "x1") + a.capture(mf, DK + 8, 32, "x2"))
        if cfg.kg2 == 2:
            for k in range(12):
                a("v_mov_b32 v%d, v%d" % (F0 + k, F0 + 6 + k))
                if k % 2:
                    dl(1)
        dl(100)
        if cfg.kg2 == 2:
            a("s_sub_u32 s%d, s%d, 1" % (sT3, sT3))
            a("s_cmp_lg_u32 s%d, 0" % sT3)
            a("s_cbranch_scc1 L_kgen")
    else:
        a("s_mov_b32 s%d, 3" % sT3)
        a.label("L_kgen")
        a.lg = []
        def round_body():
            a("v_pk_mul_f32 v[126:127], v[64:65], v[82:83] op_sel_hi:[1,0]")
            a("v_pk_mul_f32 v[128:129], v[66:67], v[82:83] op_sel_hi:[1,0]")
            a("v_mul_f32 v126, %s, v126" % f32(math.log2(math.e)))
            a("v_mul_f32 v127, 0.15915494, v127")
            cmul1(Y[0], 68, 128)
            anchors = [(E[1], 1.0), (Q, 8.0), (P[1], 128.0)]
            for idx, (d, k) in enumerate(anchors):
                m_, f_ = 134 + 2 * idx, 135 + 2 * idx
                if k == 1.0:
                    a("v_exp_f32 v%d, v126" % m_)
                    a("v_fract_f32 v%d, v127" % f_)
                else:
                    a("v_mul_f32 v%d, %s, v126" % (m_, f32(k)))
                    a("v_mul_f32 v%d, %s, v127" % (f_, f32(k)))
                    a("v_exp_f32 v%d, v%d" % (m_, m_))
                    a("v_fract_f32 v%d, v%d" % (f_, f_))
            cmul2(Y[0], 68, 128)
            for idx, (d, k) in enumerate(anchors):
                a("v_cos_f32 v%d, v%d" % (d, 135 + 2 * idx))
                a("v_sin_f32 v%d, v%d" % (d + 1, 135 + 2 * idx))
            for idx, (d, k) in enumerate(anchors):
                a("v_pk_mul_f32 %s, %s, %s op_sel_hi:[1,0]" % (v(d, 2), v(d, 2), v(134 + 2 * idx, 2)))
            for k in range(12):
                a("v_mov_b32 v%d, v%d" % (F0 + k, F0 + 6 + k))
            YR0 = 25
            wr(143, 0)
            p_ = [put(Y[0], YR0, True), put(E[1], 1), put(P[1], 8)]
            for _, c, row in p_:
                wr(c, row)
            group([(Y[1], Y[0], Q, YR0 + 1, True), (Q2, Q, Q, None, False), (E[2], E[1], E[1], 2, False), (P[2], P[1], P[1], 16, False)])
            group([(Y[2], Y[0], Q2, YR0 + 2, True), (Y[3], Y[1], Q2, YR0 + 3, True), (E[3], E[2], E[1], 3, False), (E[4], E[2], E[2], 4, False)])
            group([(Y[0], Y[2], Q2, YR0 + 4, True), (Y[1], Y[3], Q2, YR0 + 5, True), (E[5], E[4], E[1], 5, False), (E[6], E[4], E[2], 6, False)])
            group([(Y[2], Y[0], Q2, YR0 + 6, True), (Y[3], Y[1], Q2, YR0 + 7, True), (E[7], E[4], E[3], 7, False), (P[3], P[2], P[1], 20, False)])
            group([(Y[0], Y[2], Q2, YR0 + 8, True), (Y[1], Y[3], Q2, YR0 + 9, True), (TT[0], P[1], E[1], 9, False), (TT[1], P[1], E[2], 10, False)])
            group([(Y[2], Y[0], Q2, YR0 + 10, True), (Y[3], Y[1], Q2, YR0 + 11, True), (TT[0], P[1], E[3], 11, False), (TT[1], P[1], E[4], 12, False)])
            group([(Y[0], Y[2], Q2, YR0 + 12, True), (Y[1], Y[3], Q2, YR0 + 13, True), (TT[0], P[1], E[5], 13, False), (TT[1], P[1], E[6], 14, False)])
            group([(Y[2], Y[0], Q2, YR0 + 14, True), (Y[3], Y[1], Q2, YR0 + 15, True), (TT[0], P[1], E[7], 15, False), (P[4], P[2], P[2], 24, False)])
            for st in range(4):
                a("ds_read_b128 %s, v%d offset:%d" % (v(YFR + 4 * st, 4), vFA, YR0 * 288 + 64 * st), tag="yf")
            for st in range(4):
                a("ds_read_b128 %s, v%d offset:%d" % (v(XFR + 4 * st, 4), vFA, 64 * st), tag="x0")
            group([(TT[0], P[2], E[2], 17, False), (TT[1], P[2], E[4], 18, False), (TT[2], P[2], E[6], 19, False), (P[5], P[4], P[1], 26, False)])
            group([(TT[0], P[3], E[2], 21, False), (TT[1], P[3], E[4], 22, False), (TT[2], P[3], E[6], 23, False), (P[6], P[4], P[2], 28, False)])
            a.wait_lg("x0")
            for st in range(4):
                a("v_mfma_f32_16x16x32_bf16 %s, %s, %s, %s" % (v(DK, 4), v(XFR + 4 * st, 4), v(YFR + 4 * st, 4), v(DK, 4)))
            group([(P[7], P[4], P[3], 30, False), (P[8], P[4], P[4], 32, False), (TT[0], P[4], E[4], 25, False), (TT[1], P[5], E[4], 27, False)])
            group([(TT[0], P[6], E[4], 29, False), (TT[1], P[7], E[4], 31, False), (TT[2], P[8], P[1], 33, False), (TT[3], P[8], P[2], 34, False)])
            for st in range(4):
                a("ds_read_b128 %s, v%d offset:%d" % (v(XFR + 16 + 4 * st, 4), vFA, 16 * 288 + 64 * st), tag="x1")
            group([(TT[0], P[8], P[3], 35, False), (TT[1], P[8], P[4], 36, False), (TT[2], P[8], P[5], 37, False)])
            group([(TT[0], P[8], P[6], 38, False), (TT[1], P[8], P[7], 39, False), (TT[2], P[8], P[8], 40, False)])
            for st in range(4):
                a("ds_read_b128 %s, v%d offset:%d" % (v(XFR + 32 + 4 * st, 4), vFA, 32 * 288 + 64 * st), tag="x2")
            a.wait_lg("x1")
            for st in range(4):
                a("v_mfma_f32_16x16x32_bf16 %s, %s, %s, %s" % (v(DK + 4, 4), v(XFR + 16 + 4 * st, 4), v(YFR + 4 * st, 4), v(DK + 4, 4)))
            a.wait_lg("x2")
            for st in range(4):
                a("v_mfma_f32_16x16x32_bf16 %s, %s, %s, %s" % (v(DK + 8, 4), v(XFR + 32 + 4 * st, 4), v(YFR + 4 * st, 4), v(DK + 8, 4)))
        items = a.capture(round_body)
        if cfg.kg2 == 3:
            isv = lambda it: it[0] == "i" and it[1].startswith("v_") and not it[1].startswith("v_mfma")
            vv = [it for it in items if isv(it)]
            oo = [it for it in items if not isv(it)]
            if cfg.sepu:
                import re as _re
                sets = {0: [], 1: [], 2: [], 3: []}
                seenY = False
                for it in oo:
                    if it[0] == "i" and it[1].startswith("ds_read") and it[2] == "yf":
                        seenY = True
                    if it[0] == "i" and it[1].startswith("ds_write_addtid"):
                        row = int(_re.search(r"offset:(\d+)", it[1]).group(1)) // 288
                        if row >= 25 and not seenY:
                            k, r16 = 0, row - 25
                        else:
                            k, r16 = 1 + row // 16, row % 16
                        sets[k].append(("i", _re.sub(r"offset:\d+", "offset:%d" % (r16 * 288), it[1]), None))
                oo = []
                XS = 0 if cfg.kv3 else 16
                for k, (dst, tg) in enumerate(((YFR, "yf"), (XFR, "x0"), (XFR + XS, "x1"), (XFR + 2 * XS, "x2"))):
                    oo += sets[k]
                    if k >= 2:
                        oo.append(("wait_lg", ("x0", "x1")[k - 2], None))
                        for st in range(4):
                            dk = DK + 4 * (k - 2)
                            oo.append(("i", "v_mfma_f32_16x16x32_bf16 %s, %s, %s, %s" % (v(dk, 4), v(XFR + XS * (k - 2) + 4 * st, 4), v(YFR + 4 * st, 4), v(dk, 4)), None))
                    for st in range(4):
                        oo.append(("i", "ds_read_b128 %s, v%d offset:%d" % (v(dst + 4 * st, 4), vFA, 64 * st), tg))
                oo.append(("wait_lg", "x2", None))
                for st in range(4):
                    oo.append(("i", "v_mfma_f32_16x16x32_bf16 %s, %s, %s, %s" % (v(DK + 8, 4), v(XFR + 2 * XS + 4 * st, 4), v(YFR + 4 * st, 4), v(DK + 8, 4)), None))
            items = vv + oo
        if cfg.kv3:
            for it in vv:
                a.play(it)
            a("s_cmp_lg_u32 s%d, 2" % sT3)
            a("s_cbranch_scc1 L_kL")
            for k, c in enumerate(CV):
                a("v_mov_b32 v%d, v%d" % (197 + k, c))
            a("s_mov_b32 s%d, 1" % sT3)
            a("s_branch L_kgen")
            a.label("L_kL")
            for it in oo:
                a.play(it)
            a("s_sub_u32 s%d, s%d, 1" % (sT3, sT3))
            a("s_cbranch_scc1 L_kend")
            a("s_cmp_lg_u32 s%d, 0" % sT3)
            a("s_cbranch_scc1 L_kgen")
            for k, c in enumerate(CV):
                a("v_mov_b32 v%d, v%d" % (c, 197 + k))
            a("s_branch L_kL")
            a.label("L_kend")
            a("s_nop 7")
        else:
            for it in items:
                a.play(it)
            a("s_sub_u32 s%d, s%d, 1" % (sT3, sT3))
            a("s_cmp_lg_u32 s%d, 0" % sT3)
            a("s_cbranch_scc1 L_kgen")
    a.drain_vm()
    if cfg.fastp:
        a("s_setprio %d" % cfg.xprio)
    stamp(4)
    a("v_and_b32 v16, 15, v0")
    a("v_lshrrev_b32 v17, 4, v0")
    a("s_add_u32 s%d, s%d, %d" % (sT0, sRB, 4624 if cfg.sepu else TB_OFF))
    a("v_lshrrev_b32 v18, 1, v17")
    a("v_lshlrev_b32 v18, 7, v18")
    a("v_and_b32 v19, 1, v17")
    a("v_lshl_add_u32 v18, v19, 2, v18")
    a("v_lshl_add_u32 v18, v16, 3, v18")
    a("v_lshl_add_u32 v18, v18, 2, s%d" % sT0)
    a("v_lshlrev_b32 v19, 2, v16")
    a("v_lshlrev_b32 v20, 1, v16")
    a("v_cmp_gt_u32 vcc, 2, v17")
    a("v_cndmask_b32 v19, v20, v19, vcc")
    a("v_lshl_add_u32 v19, v17, 6, v19")
    a("v_lshl_add_u32 v19, v19, 2, s%d" % sT0)
    a("v_mov_b32 v20, 128")
    a("v_cndmask_b32 v20, v20, 8, vcc")
    a("v_add_u32 v20, v19, v20")
    a("v_lshl_add_u32 v21, v17, 6, v16")
    a("v_lshl_add_u32 v21, v21, 2, s%d" % sT0)
    a("v_lshlrev_b32 v22, 4, v0")
    a("v_add_u32 v22, %d, v22" % ZP_OFF)
    a("v_mov_b32 v23, 4096")
    a("v_cmp_gt_u32 vcc, %d, v0" % (14 if cfg.sepu else 15))
    a("v_cndmask_b32 v22, v23, v22, vcc")
    if cfg.sepu:
        a("v_mov_b32 v23, 4608")
        a("v_cmp_eq_u32 vcc, 14, v0")
        a("v_cndmask_b32 v22, v22, v23, vcc")
    a("v_add_u32 v22, s%d, v22" % sRB)
    for k in range(4):
        a("v_mov_b32 v%d, 0" % (24 + k))
    a("ds_write_b128 v22, v[24:27]")
    a("ds_write_b128 v18, %s" % v(DK, 4))
    a("ds_write_b64 v19, %s offset:1024" % v(DK + 4, 2))
    a("ds_write_b64 v20, %s offset:1024" % v(DK + 6, 2))
    for r in range(4):
        a("ds_write_b32 v21, v%d offset:%d" % (DK + 8 + r, 2048 + 64 * r))
    a("v_lshl_add_u32 v18, v0, 4, s%d" % sT0)
    a("v_lshl_add_u32 v19, v0, 3, s%d" % sT0)
    a("v_subrev_u32 v20, 4, v18")
    a("v_subrev_u32 v21, 4, v19")
    a("v_cmp_eq_u32 vcc, 0, v0")
    a("v_cndmask_b32 v21, v19, v21, vcc")
    a("ds_read_b128 v[28:31], v18", tag="s0")
    a("ds_read_b32 v32, v20", tag="s0")
    a("ds_read_b64 v[34:35], v19 offset:1024", tag="s1")
    a("ds_read_b32 v36, v19 offset:1032", tag="s1")
    a("ds_read_b32 v37, v21 offset:1024", tag="s1")
    a("ds_read_b64 v[38:39], v19 offset:1536", tag="s2")
    a("ds_read_b32 v40, v19 offset:1544", tag="s2")
    a("ds_read_b64 v[42:43], v19 offset:2048", tag="s3")
    a("ds_read_b32 v44, v19 offset:2056", tag="s3")
    a("v_lshlrev_b32 v22, 3, v0")
    a("v_sub_u32 v22, s%d, v22" % sRB)
    a("v_lshlrev_b32 v23, 4, v0")
    a("v_sub_u32 v23, s%d, v23" % sRB)
    a("v_lshlrev_b32 v24, 5, v0")
    a("v_sub_u32 v24, s%d, v24" % sRB)
    a("v_add_u32 v22, %d, v22" % (4096 - 512 - 8))
    a("v_add_u32 v23, %d, v23" % (4096 - 1024 - 16))
    a("v_add_u32 v24, %d, v24" % (4096 - 2048 - 32))
    def pk(d, lo, hi):
        a("v_cvt_pk_bf16_f32 v%d, v%d, v%d" % (d, lo, hi))
    a("v_cndmask_b32 v33, 0, v%d, vcc" % vDS)
    a.wait_lg("s0")
    a("v_add_f32 v28, v28, v33")
    pk(48, 31, 30); pk(49, 29, 28); pk(50, 30, 29); pk(51, 28, 32)
    a("ds_write_b64 v22, v[48:49] offset:512")
    a("ds_write_b64 v22, v[50:51] offset:%d" % (512 + KB_OFF))
    a.wait_lg("s1")
    pk(52, 36, 35); pk(53, 34, 34); pk(54, 35, 34); pk(55, 34, 37)
    a("ds_write_b64 v22, v[52:53]")
    a("ds_write_b64 v22, v[54:55] offset:%d" % KB_OFF)
    a.wait_lg("s2")
    A_, B_, C_ = 38, 39, 40
    pk(56, C_, C_); pk(57, B_, B_); pk(58, B_, A_); pk(59, A_, A_)
    pk(60, C_, B_); pk(61, B_, B_); pk(62, A_, A_); pk(63, A_, A_)
    a("ds_write_b128 v23, v[56:59]")
    a("ds_write_b128 v23, v[60:63] offset:%d" % KB_OFF)
    a.wait_lg("s3")
    A_, B_, C_ = 42, 43, 44
    seqA = [(C_, C_), (C_, C_), (B_, B_), (B_, B_), (B_, B_), (B_, A_), (A_, A_), (A_, A_)]
    seqB = [(C_, C_), (C_, B_), (B_, B_), (B_, B_), (B_, B_), (A_, A_), (A_, A_), (A_, A_)]
    for k, (lo, hi) in enumerate(seqA):
        pk(64 + k, lo, hi)
    for k, (lo, hi) in enumerate(seqB):
        pk(72 + k, lo, hi)
    a("ds_write_b128 v24, v[64:67]")
    a("ds_write_b128 v24, v[68:71] offset:16")
    a("ds_write_b128 v24, v[72:75] offset:%d" % KB_OFF)
    a("ds_write_b128 v24, v[76:79] offset:%d" % (KB_OFF + 16))
    stamp(5)
    if not cfg.keepk and not cfg.fastp:
        a("s_setprio 0")
    if not cfg.helper and not cfg.sepu:
        a.drain_lg()
        lds_arrive(20, 8, 9)
    vUA, vKA = 10, 11
    def conv_addr(sb):
        a("v_and_b32 v12, 15, v0")
        a("v_lshrrev_b32 v13, 4, v0")
        a("v_lshlrev_b32 v13, 1, v13")
        a("v_sub_u32 v12, v12, v13")
        a("v_lshlrev_b32 v12, 4, v12")
        a("s_add_u32 s%d, s%d, %d" % (sT1, sb, U_OFF - 128))
        a("v_add_u32 v%d, s%d, v12" % (vUA, sT1))
        a("v_lshrrev_b32 v12, 1, v0")
        a("v_lshlrev_b32 v12, 2, v12")
        a("v_and_b32 v13, 1, v0")
        a("v_mul_u32_u24 v13, %d, v13" % KB_OFF)
        a("v_add_u32 v12, v12, v13")
        a("s_add_u32 s%d, s%d, %d" % (sT1, sb, KB_OFF + 4092 - 128 - 768))
        a("v_sub_u32 v%d, s%d, v12" % (vKA, sT1))
        for g in range(1, 4):
            a("v_subrev_u32 v%d, %d, v%d" % (vKA + g, 1024 * g, vKA))
    conv_addr(sRB)
    AC, KF, UF, NU = 16, 80, 208, 8
    NT = cfg.NT if cfg.helper else 16
    NH = 16 - NT
    def kfr(lo, hi):
        for idx in range(lo, hi):
            c, tau = idx >> 4, idx & 15
            if tau >= NT:
                continue
            o = 192 - 64 * (tau & 3) + 32 * (1 - c)
            r = KF + 4 * idx
            a("ds_read2_b32 %s, v%d offset0:%d offset1:%d" % (v(r, 2), vKA + (tau >> 2), o, o + 1))
            a("ds_read2_b32 %s, v%d offset0:%d offset1:%d" % (v(r + 2, 2), vKA + (tau >> 2), o + 2, o + 3))
    kfr(0, cfg.kf0 if cfg.fastp else 32)
    a("v_and_b32 v4, 15, v0")
    a("v_lshlrev_b32 v4, 4, v4")
    a("v_lshrrev_b32 v5, 5, v0")
    a("v_lshl_add_u32 v4, v5, 11, v4")
    a("v_bfe_u32 v5, v0, 4, 1")
    a("v_lshl_add_u32 v4, v5, 8, v4")
    group_ids(5, 6, sX, 7)
    a("v_mov_b32 v6, %d" % CNT)
    if cfg.zc:
        for k in range(4):
            a("v_mov_b32 v%d, 0" % (240 + k))
    if cfg.helper:
        a.drain_lg()
        lds_arrive(20, 8, 9)
    if cfg.fastp:
        assert cfg.nox and not cfg.t7 and not cfg.helper
        lds_wait(24, 1, 8, 9, sleep=1)
        a("v_add_u32 v8, s%d, v2" % sRB)
        a("v_lshlrev_b32 v9, 5, v0")
        for k in range(4):
            a("ds_read_b128 %s, v9 offset:%d" % (v(AC + 8 * k, 4), RY + 2048 * k), tag="x%d" % k)
            a("ds_read_b128 %s, v9 offset:%d" % (v(AC + 8 * k + 4, 4), RY + 2048 * k + 16), tag="x%d" % k)
            a("ds_read_b128 %s, v8 offset:%d" % (v(UF + 4 * k, 4), U_OFF + 1024 * k), tag="x%d" % k)
        kq = a.capture(kfr, cfg.kf0, 32)
        TH = UF + 16
        def tf():
            for k in range(4):
                H_ = UF + 4 * k
                a.wait_lg("x%d" % k)
                for q in range(8 * k, 8 * k + 8):
                    a("v_lshlrev_b32 v%d, 16, v%d" % (AC + 32 + q, AC + q))
                    a("v_and_b32 v%d, s%d, v%d" % (AC + q, sMASK, AC + q))
                for q in range(4):
                    a("v_lshlrev_b32 v%d, 16, v%d" % (TH + 2 * q, H_ + q))
                    a("v_and_b32 v%d, s%d, v%d" % (TH + 2 * q + 1, sMASK, H_ + q))
                for q in range(8):
                    a("v_fmac_f32 v%d, v%d, v%d" % (AC + 32 + 8 * k + q, TH + q, AC + 8 * k + q))
                for q in range(4):
                    a("v_cvt_pk_bf16_f32 v%d, v%d, v%d" % (AC + 8 * k + q, AC + 32 + 8 * k + 2 * q, AC + 32 + 8 * k + 2 * q + 1))
                a("ds_write_b128 v8, %s offset:%d" % (v(AC + 8 * k, 4), U_OFF + 1024 * k))
        for n_, it in enumerate(a.capture(tf)):
            a.play(it)
            if n_ % 3 == 2 and kq:
                a.play(kq.pop(0))
        for it in kq:
            a.play(it)
        lds_arrive(44, 8, 9)
    else:
        if cfg.nox and not cfg.t7:
            if cfg.tprio:
                a("s_setprio %d" % cfg.tprio)
            lds_wait(48, 1, 8, 9, sleep=1)
            a("v_lshlrev_b32 v9, 5, v0")
            for k in range(4):
                a("ds_read_b128 %s, v9 offset:%d" % (v(AC + 8 * k, 4), RY + 2048 * k), tag="x%d" % k)
                a("ds_read_b128 %s, v9 offset:%d" % (v(AC + 8 * k + 4, 4), RY + 2048 * k + 16), tag="x%d" % k)
            for k in range(4):
                a.wait_lg("x%d" % k)
                for q in range(8 * k, 8 * k + 8):
                    a("v_lshlrev_b32 v%d, 16, v%d" % (AC + 32 + q, AC + q))
                    a("v_and_b32 v%d, s%d, v%d" % (AC + q, sMASK, AC + q))
        lds_wait(24, 1, 8, 9, sleep=1)
        if cfg.nox and not cfg.t7:
            a("v_add_u32 v8, s%d, v2" % sRB)
            for k in range(4):
                a("ds_read_b128 %s, v8 offset:%d" % (v(UF + 4 * k, 4), U_OFF + 1024 * k), tag="x%d" % k)
            TH = UF + 16
            for k in range(4):
                H_ = UF + 4 * k
                a.wait_lg("x%d" % k)
                for q in range(4):
                    a("v_lshlrev_b32 v%d, 16, v%d" % (TH + 2 * q, H_ + q))
                    a("v_and_b32 v%d, s%d, v%d" % (TH + 2 * q + 1, sMASK, H_ + q))
                for q in range(8):
                    a("v_fmac_f32 v%d, v%d, v%d" % (AC + 32 + 8 * k + q, TH + q, AC + 8 * k + q))
                for q in range(4):
                    a("v_cvt_pk_bf16_f32 v%d, v%d, v%d" % (AC + 8 * k + q, AC + 32 + 8 * k + 2 * q, AC + 32 + 8 * k + 2 * q + 1))
                a("ds_write_b128 v8, %s offset:%d" % (v(AC + 8 * k, 4), U_OFF + 1024 * k))
            lds_arrive(44, 8, 9)
    stamp(7)
    if cfg.cprio or cfg.keepk or cfg.tprio or cfg.fastp:
        a("s_setprio %d" % cfg.cprio)
    seq = []
    for c in range(2):
        if cfg.helper and c == 0:
            seq += [(0, 0), (0, NT)]
            rest = [m for m in range(1, 16) if m != NT]
            while rest:
                seq += [(0, rest.pop(0)), (0, rest.pop())]
        else:
            for q in range(8):
                seq += [(c, q), (c, 15 - q)]
    def uread(n):
        c, mu = seq[n]
        a("ds_read_b128 %s, v%d offset:%d" % (v(UF + 4 * (n % NU), 4), vUA, 128 * (1 - c) + 256 * mu), tag="U%d" % n)
    for n in range(NU - 2):
        uread(n)
    stubs = []
    for n in range(32):
        c, mu = seq[n]
        if n % 2 == 0:
            if cfg.pause and n:
                a.wait_lg("pz")
                if n == 2 and cfg.pprio:
                    a("v_cmp_le_u32 vcc, 4, v9")
                    a("s_cbranch_vccz L_nlp")
                    a("s_setprio %d" % cfg.pprio)
                    a.label("L_nlp")
                if cfg.pth > 1:
                    a("v_sub_u32 v8, v8, v9")
                    a("v_cmp_le_u32 vcc, %d, v8" % cfg.pth)
                else:
                    a("v_cmp_ne_u32 vcc, v8, v9")
                a("s_cbranch_vccnz L_pz%d" % n)
                a.label("L_np%d" % n)
                stubs.append(n)
            if cfg.pause and n < 30:
                a("ds_read2_b32 v[8:9], v6 offset0:%d offset1:7" % (14 if cfg.psat >= 0 else 0), tag="pz")
            for k in (n + NU - 2, n + NU - 1):
                if k < 32:
                    uread(k)
        a.wait_lg("U%d" % n)
        for tau in range(min(NT, 16 - mu)):
            acc = v(AC + 4 * (tau + mu), 4)
            first = n == 0 or (cfg.helper and n == 1)
            if not cfg.noconv or first:
                a("v_mfma_f32_16x16x32_bf16 %s, %s, %s, %s" % (acc, v(KF + 4 * (16 * c + tau), 4), v(UF + 4 * (n % NU), 4), ("v[240:243]" if cfg.zc else "0") if first else acc))
    stamp(8)
    if cfg.helper:
        a("s_sub_u32 s%d, s%d, 3" % (sT3, sWV))
        lds_wait(36, "s%d" % sT3, 8, 9, sleep=1)
        a("v_add_u32 v8, s%d, v2" % sRB)
        for q in range(NH):
            a("ds_read_b128 %s, v8 offset:%d" % (v(UF + 4 * q, 4), 1024 * q), tag="hp%d" % q)
        for q in range(NH):
            a.wait_lg("hp%d" % q)
            for r in range(4):
                a("v_add_f32 v%d, v%d, v%d" % (AC + 4 * (NT + q) + r, AC + 4 * (NT + q) + r, UF + 4 * q + r))
    if cfg.eprio != cfg.cprio:
        a("s_setprio %d" % cfg.eprio)
    CY = 100
    for r in range(4):
        a("v_mov_b32 v%d, 0" % (CY + r))
    for m in range(8):
        for r in range(4):
            a("v_permlane32_swap_b32 v%d, v%d" % (AC + 4 * m + r, AC + 32 + 4 * m + r))
    for r in range(4):
        a("v_mov_b32 v%d, v%d" % (CY + 4 + r, AC + 32 + 28 + r))
    for m in range(8):
        for r in range(4):
            L_ = AC + 4 * m + r
            a("v_add_f32_dpp v%d, v%d, v%d row_shr:1 row_mask:0xf bank_mask:0xf bound_ctrl:0" % (L_, AC + 32 + 4 * m + r, L_))
        if m == 0:
            for r in range(4):
                a("v_permlane32_swap_b32 v%d, v%d" % (CY + r, CY + 4 + r))
    for m in range(8):
        for r in range(4):
            L_ = AC + 4 * m + r
            prev = (AC + 32 + 4 * (m - 1) + r) if m else (CY + r)
            a("v_add_f32_dpp v%d, v%d, v%d row_shl:15 row_mask:0xf bank_mask:0xf bound_ctrl:0" % (L_, prev, L_))
    TP2 = 108
    for k in range(16):
        a("v_cvt_pk_bf16_f32 v%d, v%d, v%d" % (TP2 + k, AC + 2 * k, AC + 2 * k + 1))
    for mp in range(4):
        a("v_permlane16_swap_b32 v%d, v%d" % (TP2 + 4 * mp, TP2 + 4 * mp + 2))
        a("v_permlane16_swap_b32 v%d, v%d" % (TP2 + 4 * mp + 1, TP2 + 4 * mp + 3))
    if cfg.ysync:
        a("s_and_b32 s%d, s%d, 1" % (sT2, sJ))
        a("s_add_u32 s%d, s%d, 2" % (sT2, sT2))
        a("v_mov_b32 v12, %d" % (CNT + 32))
        a("v_mov_b32 v13, s%d" % sT2)
        a("s_mov_b64 exec, 1")
        a("ds_add_u32 v12, v13")
        a("s_mov_b64 exec, -1")
        lds_wait(32, 6, 12, 13, sleep=1)
    a("s_lshl_b32 s%d, s%d, 12" % (sT0, sPOS))
    a("s_add_u32 s%d, s%d, 0x%x" % (sT0, sT0, YA))
    for mp in range(4):
        a("buffer_store_dwordx4 %s, v4, %s, s%d offen offset:%d sc1" % (v(TP2 + 4 * mp, 4), s(rWS, 4), sT0, 512 * mp))
    if cfg.ssig:
        a("s_lshl_b32 s%d, s%d, 10" % (sT1, sX))
        a("s_add_u32 s%d, s%d, 0x%x" % (sT1, sT1, YC))
        if cfg.ywg:
            assert cfg.xnlate != 2
            a("v_mov_b32 v12, %d" % (CNT + 40))
            a("v_mov_b32 v13, 1")
            a("s_and_b32 s%d, s%d, 1" % (sT2, sJ))
        a.drain_vm()
        if cfg.ywg:
            a("s_mov_b64 exec, 1")
            a("ds_add_rtn_u32 v13, v12, v13")
            a("s_mov_b64 exec, -1")
            a.drain_lg()
            a("v_readfirstlane_b32 s%d, v13" % sT0)
            a("s_add_u32 s%d, s%d, s%d" % (sT0, sT0, sT2))
            a("s_cmp_lg_u32 s%d, 2" % sT0)
            a("s_cbranch_scc1 L_aux_done")
        sig8(sT1, 128)
    else:
        a("s_mov_b32 s%d, 0x%x" % (sT1, YC))
        a.drain_vm()
        group_add(5, sT1, 13)
    stamp(9)
    a.label("L_aux_done")
    finish()
    def emit_stubs(lst):
        for n in lst:
            a.label("L_pz%d" % n)
            a("s_mov_b32 s%d, 0x%x" % (sCNT, cfg.spin * 64))
            a.label("L_pl%d" % n)
            a("s_sleep 1")
            a("ds_read2_b32 v[8:9], v6 offset0:%d offset1:7" % (14 if cfg.psat >= 0 else 0))
            a("s_sub_u32 s%d, s%d, 1" % (sCNT, sCNT))
            a("s_cbranch_scc1 L_np%d" % n)
            a.drain_lg()
            a("v_cmp_ne_u32 vcc, v8, v9")
            a("s_cbranch_vccnz L_pl%d" % n)
            if cfg.pprio:
                a("s_setprio %d" % cfg.pprio)
            a("s_branch L_np%d" % n)
    emit_stubs(stubs)
    hstubs = []
    if cfg.stouch:
        a.label("L_w6")
        a("s_lshr_b32 s%d, s%d, 1" % (sT0, sJ))
        a("s_mul_i32 s%d, s%d, %d" % (sT0, sT0, 96 * 4096))
        a("s_lshl_b32 s%d, s%d, 9" % (sT1, sX))
        a("s_add_u32 s%d, s%d, s%d" % (sT0, sT0, sT1))
        a("s_add_u32 s14, s%d, s%d" % (pW2, sT0))
        a("s_addc_u32 s15, s%d, 0" % (pW2 + 1))
        a("s_mov_b32 s%d, 24" % sCNT)
        a.label("L_w6l")
        for r in range(4):
            for c in range(4):
                a("s_load_dword s%d, s[14:15], 0x%x" % (76 + (4 * r + c) % 8, r * 4096 + c * 128))
            if cfg.stouch == 2:
                a("s_waitcnt lgkmcnt(8)")
        a("s_add_u32 s14, s14, %d" % (4 * 4096))
        a("s_addc_u32 s15, s15, 0")
        a("s_sub_u32 s%d, s%d, 1" % (sCNT, sCNT))
        a("s_cmp_lg_u32 s%d, 0" % sCNT)
        a("s_cbranch_scc1 L_w6l")
        stamp(9)
        a("s_branch L_aux_done")
    a.label("L_w7")
    a.vm = []; a.lg = []
    tile_math(2 if cfg.lean else 3)
    a("v_lshrrev_b32 v8, 2, v0")
    a("v_and_b32 v9, 3, v0")
    a("v_mul_u32_u24 v5, 10240, v8")
    a("v_lshl_add_u32 v5, v9, 4, v5")
    a("v_mul_u32_u24 v4, %d, v9" % S)
    a("v_lshl_add_u32 v4, v8, 4, v4")
    a("s_lshl_b32 s96, s%d, 4" % sPOS)
    a("s_add_u32 s96, s96, 0x%x" % (HB if cfg.nox else XB))
    a("v_lshrrev_b32 v7, 1, v0")
    a("v_lshlrev_b32 v7, %d, v7" % cfg.stsh)
    a("v_and_b32 v13, 16, v2")
    a("v_add_u32 v7, v7, v13")
    a("s_and_b32 s%d, s%d, 1" % (sT3, sJ))
    a("s_cmp_eq_u32 s%d, 0" % sT3)
    a("s_mov_b32 s%d, 0x33333333" % sT2)
    a("s_cselect_b32 s100, 0x77777777, s%d" % sT2)
    a("s_mov_b32 s101, s100")
    a("s_setprio %d" % cfg.uprio)
    if cfg.w7mb:
        a("s_lshl_b32 s%d, s%d, 10" % (sT1, sID))
        a("s_add_u32 s%d, s%d, 0x%x" % (sT1, sT1, MB))
        a("s_add_u32 s14, s%d, s%d" % (pWS, sT1))
        a("s_addc_u32 s15, s%d, 0" % (pWS + 1))
        a("s_mov_b32 s%d, %d" % (sCNT, cfg.spin * 2))
        a.label("L_p4")
        for k in range(4):
            a("s_load_dword s%d, s[14:15], %d glc" % (sD[k], 128 * k + (64 if cfg.xnlate else 0)))
        a("s_waitcnt lgkmcnt(0)"); a.lg = []
        for k in range(4):
            a("s_xor_b32 s%d, s%d, s%d" % (sD[k], sD[k], sTAG))
        a("s_or_b32 s%d, s%d, s%d" % (sD[0], sD[0], sD[1]))
        a("s_or_b32 s%d, s%d, s%d" % (sD[2], sD[2], sD[3]))
        a("s_or_b32 s%d, s%d, s%d" % (sD[0], sD[0], sD[2]))
        a("s_cbranch_scc0 L_p4ok")
        if cfg.p4s:
            a("s_sleep %d" % cfg.p4s)
        a("s_sub_u32 s%d, s%d, 1" % (sCNT, sCNT))
        a("s_cmp_lg_u32 s%d, 0" % sCNT)
        a("s_cbranch_scc1 L_p4")
        a.label("L_p4ok")
    else:
        lds_wait(12, 4, 10, 11, sleep=2)
    stamp(5)
    def touch_w2():
        sh = 2 if cfg.map2 == 8 else 3
        a("v_lshrrev_b32 v10, %d, v0" % sh)
        a("v_lshlrev_b32 v10, 12, v10")
        a("v_and_b32 v11, %d, v0" % ((1 << sh) - 1))
        a("v_lshl_add_u32 v10, v11, 7, v10")
        a("s_mul_i32 s%d, s%d, %d" % (sT1, sJ, 48 * 4096))
        if cfg.map2 == 8:
            a("s_lshl_b32 s%d, s%d, 9" % (sT2, sX))
        else:
            a("s_lshr_b32 s%d, s%d, 1" % (sT2, sX))
            a("s_lshl_b32 s%d, s%d, 10" % (sT2, sT2))
        a("s_add_u32 s%d, s%d, s%d" % (sT1, sT1, sT2))
        n = 3 if cfg.map2 == 8 else 6
        for k in range(n):
            a("buffer_load_dword v%d, v10, %s, s%d offen %s" % (100 + k, s(rW2, 4), sT1, cfg.t2pol))
            a("s_add_u32 s%d, s%d, %d" % (sT1, sT1, (64 >> sh) * 4096))
            if cfg.t2gap:
                a.drain_vm()
    if cfg.touch2 == 1 or cfg.refresh:
        sv = cfg.t2pol
        if cfg.refresh:
            cfg.t2pol = ''
        touch_w2()
        cfg.t2pol = sv
    if cfg.late:
        a("s_cmp_ge_u32 s%d, 30" % sJ)
        a("s_cbranch_scc1 L_w7_nl")
        lds_wait({1: 28, 2: 0, 3: 56}[cfg.late], 4 if cfg.late == 1 else cfg.laten, 10, 11, sleep=2)
        a.label("L_w7_nl")
    if cfg.nox:
        for k in range(8):
            a("s_mov_b32 s%d, 0x%x" % (sT2, ST + (32 << cfg.stsh) * k))
            a("buffer_load_dwordx4 %s, v7, %s, s%d offen sc1" % (v(80 + 4 * k, 4), s(rWS, 4), sT2), tag="st%d" % k)
    a("s_mov_b64 exec, s[100:101]")
    for k in range(16):
        a("buffer_load_dwordx4 %s, v5, %s, s96 offen sc1" % (v(16 + 4 * k, 4), s(rWS, 4)), tag="u%d" % k)
        if k < 15:
            a("s_add_u32 s96, s96, %d" % (16 * 10240))
    a("s_mov_b64 exec, -1")
    a("s_cmp_lg_u32 s%d, 0" % sID)
    a("s_cbranch_scc1 L_noE")
    a("s_add_u32 s14, s%d, 0x%x" % (pWS, EW))
    a("s_addc_u32 s15, s%d, 0" % (pWS + 1))
    a("s_mov_b32 s7, s%d" % sTAG)
    a("s_atomic_swap s7, s[14:15], 0")
    a("s_waitcnt lgkmcnt(0)")
    a.label("L_noE")
    if cfg.nox:
        for k in range(8):
            a.wait_vm("st%d" % k)
            a("ds_write_b128 v2, %s offset:%d" % (v(80 + 4 * k, 4), RY + 1024 * k))
        if not cfg.t7:
            lds_arrive(48, 12, 13)
        if cfg.t7:
            a("v_lshlrev_b32 v12, 5, v8")
            a("v_mov_b32 v13, 0x3f80")
            SR, TB_ = 112, 240
            def srd_(k):
                a("ds_read_b128 %s, v12 offset:%d" % (v(SR + 8 * k, 4), RY + 512 * k), tag="s%d" % k)
                a("ds_read_b128 %s, v12 offset:%d" % (v(SR + 8 * k + 4, 4), RY + 512 * k + 16), tag="s%d" % k)
            for k in range(6):
                srd_(k)
            for k in range(16):
                H_, S_, T_ = 16 + 4 * k, SR + 8 * k, TB_ + 8 * (k & 1)
                a.wait_vm("u%d" % k)
                for q in range(4):
                    a("v_lshl_or_b32 v%d, v%d, 16, v13" % (T_ + 2 * q, H_ + q))
                    a("v_and_or_b32 v%d, v%d, s%d, v13" % (T_ + 2 * q + 1, H_ + q, sMASK))
                a.wait_lg("s%d" % k)
                if k + 6 < 16:
                    srd_(k + 6)
                for q in range(8):
                    a("v_dot2_f32_bf16 v%d, v%d, v%d, 0" % (S_ + q, S_ + q, T_ + q))
                if k:
                    for q in range(4):
                        a("v_cvt_pk_bf16_f32 v%d, v%d, v%d" % (H_ - 4 + q, S_ - 8 + 2 * q, S_ - 8 + 2 * q + 1))
            for q in range(4):
                a("v_cvt_pk_bf16_f32 v%d, v%d, v%d" % (76 + q, SR + 120 + 2 * q, SR + 120 + 2 * q + 1))
    if not cfg.sepu:
        a("v_mov_b32 v12, %d" % (CNT + 20))
        a("v_mov_b32 v13, s%d" % sT3)
        a("s_mov_b64 exec, 1")
        a("ds_add_u32 v12, v13")
        a("s_mov_b64 exec, -1")
        lds_wait(20, 3, 12, 13, sleep=2)
    a("s_mov_b64 exec, s[100:101]")
    for k in range(16):
        a.wait_vm("u%d" % k)
        a("ds_write_b128 v4, %s offset:%d" % (v(16 + 4 * k, 4), U_OFF + 256 * k))
    a("s_mov_b64 exec, -1")
    a.drain_lg()
    lds_arrive(24, 12, 13)
    stamp(9)
    if cfg.nox and not cfg.t7 and cfg.helper:
        a("s_and_b32 s%d, s%d, 1" % (sT3, sJ))
        a("s_sub_u32 s%d, 3, s%d" % (sT3, sT3))
        lds_wait(44, "s%d" % sT3, 10, 11, sleep=2)
    if cfg.helper:
        a("s_setprio %d" % cfg.cprio)
        assert NH <= 6
        a("s_mov_b32 s%d, 0" % sRB)
        a("v_mov_b32 v6, %d" % CNT)
        conv_addr(sRB)
        hseq = []
        for c in range(2):
            rest = list(range(NH))
            while rest:
                hseq.append((c, rest.pop(0)))
                if rest:
                    hseq.append((c, rest.pop()))
        def hregs(ch):
            b = ch & 1
            return 16 + 24 * b, 64 + 96 * b, 112 + 96 * b
        def hreads(ch):
            HA, HK, HU = hregs(ch)
            if ch:
                for r in (vUA, vKA + 2, vKA + 3):
                    a("v_add_u32 v%d, %d, v%d" % (r, S, r))
            for c in range(2):
                for tau in range(NT, 16):
                    o = 192 - 64 * (tau & 3) + 32 * (1 - c)
                    r = HK + 4 * (NH * c + tau - NT)
                    a("ds_read2_b32 %s, v%d offset0:%d offset1:%d" % (v(r, 2), vKA + (tau >> 2), o, o + 1), tag="h%d" % ch)
                    a("ds_read2_b32 %s, v%d offset0:%d offset1:%d" % (v(r + 2, 2), vKA + (tau >> 2), o + 2, o + 3), tag="h%d" % ch)
            for n, (cc, mu) in enumerate(hseq):
                a("ds_read_b128 %s, v%d offset:%d" % (v(HU + 4 * n, 4), vUA, 128 * (1 - cc) + 256 * mu), tag="h%d" % ch)
        hreads(0)
        for ch in range(3):
            HA, HK, HU = hregs(ch)
            a.drain_lg()
            if ch:
                lds_arrive(36, 8, 9)
            if ch == 2:
                a("s_bitcmp1_b32 s%d, 0" % sJ)
                a("s_cbranch_scc1 L_hdone")
            hf_ = a.capture(hreads, ch + 1) if ch < 2 else []
            cnt = 0
            for n, (c, mu) in enumerate(hseq):
                if n % 4 == 0 and cfg.pause:
                    if n:
                        a.wait_lg("pz")
                        a("v_cmp_ne_u32 vcc, v8, v9")
                        a("s_cbranch_vccnz L_pz%d" % (100 + 20 * ch + n))
                        a.label("L_np%d" % (100 + 20 * ch + n))
                        hstubs.append(100 + 20 * ch + n)
                    if n + 4 < len(hseq):
                        a("ds_read2_b32 v[8:9], v6 offset0:%d offset1:7" % (14 if cfg.psat >= 0 else 0), tag="pz")
                for tau in range(NT, 16 - mu):
                    acc = v(HA + 4 * (tau + mu - NT), 4)
                    a("v_mfma_f32_16x16x32_bf16 %s, %s, %s, %s" % (acc, v(HK + 4 * (NH * c + tau - NT), 4), v(HU + 4 * n, 4), acc if n else "0"))
                    if hf_:
                        a.play(hf_.pop(0))
            for it in hf_:
                a.play(it)
            for q in range(NH):
                a("ds_write_b128 v2, %s offset:%d" % (v(HA + 4 * q, 4), ch * S + 1024 * q))
        a.drain_lg()
        lds_arrive(36, 8, 9)
        a.label("L_hdone")
        a.drain_lg()
        a("s_setprio %d" % cfg.uprio)
        stamp(8)
    if cfg.w7dma:
        a("s_cmp_ge_u32 s%d, 30" % sJ)
        a("s_cbranch_scc1 L_no7d")
        dma_voff(4096, False)
        a("s_lshl_b32 s%d, s%d, 7" % (sOWB, sST))
        lds_wait(0, 4, 10, 11, sleep=1)
        for k in range(2, 7 if cfg.w7dma == 1 else 4):
            if k == 4:
                lds_wait(4, 4, 10, 11)
            setoff(sOW, sOWB, sORD2, k, 32 * 4096)
            for w in range(4):
                for b in range(4):
                    a("s_mov_b32 m0, %d" % (WOFF + w * WSZ + slot2(k) * 4096 + b * 1024))
                    a("s_add_u32 s%d, s%d, %d" % (sT0, sOW, w * 384 * 4096 + C2[b]))
                    a("buffer_load_dwordx4 v%d, %s, s%d offen lds" % (vDO, s(rW2, 4), sT0), tag="d%d" % k)
                a("s_waitcnt vmcnt(%d)" % cfg.w7thr)
            if k == 4:
                a.wait_vm("d3")
                lds_arrive(52, 12, 13)
        a.drain_vm()
        lds_arrive(52, 12, 13)
        a.label("L_no7d")
        a.vm = []
    if cfg.nox and not cfg.t7 and not cfg.helper:
        a("s_and_b32 s%d, s%d, 1" % (sT3, sJ))
        a("s_sub_u32 s%d, 3, s%d" % (sT3, sT3))
        lds_wait(44, "s%d" % sT3, 10, 11, sleep=2)
    if cfg.ywait:
        a("s_cmp_ge_u32 s%d, 30" % sJ)
        a("s_cbranch_scc1 L_yw")
        lds_wait(28, 4, 10, 11, sleep=8)
        a.label("L_yw")
    if cfg.ssig:
        a("s_and_b32 s%d, s%d, 63" % (sT1, sID))
        a("s_lshl_b32 s%d, s%d, 7" % (sT1, sT1))
    else:
        a("s_lshl_b32 s%d, s%d, 7" % (sT1, sID))
    a("s_add_u32 s%d, s%d, 0x%x" % (sT1, sT1, YC))
    if not cfg.noya:
        spoll(sT1, cfg.ysleep, target=32 if (cfg.ywg and cfg.ssig) else 80)
    stamp(6)
    a("v_lshrrev_b32 v8, 3, v0")
    a("v_lshlrev_b32 v8, 12, v8")
    a("v_and_b32 v9, 7, v0")
    a("v_lshl_add_u32 v8, v9, 4, v8")
    a("s_mul_i32 s%d, s%d, %d" % (sT0, sDT2, 80 * 4096))
    a("s_lshl_b32 s%d, s%d, 7" % (sT1, sST))
    a("s_add_u32 s%d, s%d, s%d" % (sT0, sT0, sT1))
    a("s_add_u32 s%d, s%d, 0x%x" % (sT0, sT0, YA))
    for k in range(10):
        a("buffer_load_dwordx4 %s, v8, %s, s%d offen sc1" % (v(16 + 4 * k, 4), s(rWS, 4), sT0), tag="y%d" % k)
        if k < 9:
            a("s_add_u32 s%d, s%d, %d" % (sT0, sT0, 8 * 4096))
    for k in range(10):
        a.wait_vm("y%d" % k)
        a("ds_write_b128 v2, %s offset:%d" % (v(16 + 4 * k, 4), RY + 1024 * k))
    stamp(7)
    finish()
    emit_stubs(hstubs)
    a.label("L_exit")
    a("s_endpgm")
    a.label("L_code_end")
    return a

HEADER = open("cdna_kernels/%s.s.ref" % NAME).read().split("; Override launch")[0]

DOC = """;
;            MFMA-fragment-blocked layout [token/8][channel][8] plus the per-token (mean, std) of the
"""

def full(cfg):
    a = gen(cfg)
    out = HEADER
    out += "; @launch grid=(256,1,1) block=(512,1,1) lds=%d\n" % LDS_BYTES
    out += DOC
    out += '.amdgcn_target "amdgcn-amd-amdhsa--gfx950"\n.text\n.globl %s_kernel\n.p2align 8\n.type %s_kernel,@function\n' % (NAME, NAME)
    out += a.text()
    out += """.section .rodata,"a"
.p2align 6
.amdhsa_kernel %s_kernel
  .amdhsa_next_free_vgpr 256
  .amdhsa_next_free_sgpr 102
  .amdhsa_accum_offset 256
  .amdhsa_group_segment_fixed_size 0
  .amdhsa_kernarg_size 136
  .amdhsa_user_sgpr_count 2
  .amdhsa_user_sgpr_kernarg_segment_ptr 1
  .amdhsa_system_sgpr_workgroup_id_x 1
  .amdhsa_float_denorm_mode_32 3
.end_amdhsa_kernel
""" % NAME
    return out, a

if __name__ == "__main__":
    cfg = Cfg()
    outp = "cdna_kernels/%s.s" % NAME
    for arg in sys.argv[1:]:
        k, val = arg.split("=")
        if k == "out":
            outp = val
        else:
            cur = getattr(cfg, k)
            setattr(cfg, k, val if isinstance(cur, str) else (bool(int(val)) if isinstance(cur, bool) else int(val)))
    txt, a = full(cfg)
    open(outp, "w").write(txt)
    print("wrote", outp, "instr", a.ninst, "pad states", a.npad)
```

```python
import sys, struct, math
from asmlib import Asm, v, s

NAME = "parallel_sum__ssm_conv_s4__mixer_token_mlp__prompt"

def f32(x):
    return "0x%08x" % struct.unpack("<I", struct.pack("<f", x))[0]

class Cfg:
    ts = False
    spin = 32768
    depth1 = 2
    depth2 = 2
    out_pol = ""
    stop = 99
    xpol = ''
    ppol = ''
    tpol = ''
    t2pol = ''
    map8 = 1
    map1 = 8
    map2 = 8
    t2gap = 0
    late = 0
    fsh = 7
    touch1 = 0
    xtl = 1
    kprio = 1
    pre1 = 0
    touch2 = 0
    tdep = 1
    tn = 6
    L1 = 1
    L2 = 1
    ng2 = 8
    e2 = 0
    b7e = 0
    lean = 0
    fastx = 0
    laten = 1
    psat = -1
    pprio = 3
    lateinit = 1
    w7dma = 0
    w7thr = 16
    warm = 0
    kf0 = 8
    fastp = 1
    xprio = 3
    kv3 = 1
    lateb2 = 2
    zc = 0
    dupc = 1
    p4s = 0
    sepu = 1
    kg2 = 3
    tprio = 3
    t7 = 0
    keepk = 0
    c16k = 9
    nox = 1
    stsh = 5
    exactln = 0
    xnlate = 0
    xnat = 2
    NT = 10
    helper = 0
    skip2 = 0
    skip1 = 0
    noya = 0
    fake = 0
    ysync = 0
    ng1 = 10
    P1 = 15
    pK = 0
    pP = 3
    pG = 2
    pW = 3
    ywg = 1
    stouch = 0
    ywait = 1
    ssig = 1
    pbal = 0
    pth = 1
    ln4 = 1
    w7mb = 1
    e0at = 55
    nr1 = 12
    nr2 = 16
    noxn = 0
    hold = 0
    hx = -1
    fillk = 1
    noload = 0
    xm1 = 2
    fm1 = 0
    xm2 = 3
    fm2 = 0
    nokw = 0
    nopk = 0
    cprio = 0
    eprio = 3
    lateb = 0
    nagg = 8
    wrot1 = 1
    wrot2 = 1
    prea = 0
    preb = 1
    prec = 1
    swz = 0
    fine = 1
    c8k = 13
    uprio = 3
    refresh = 0
    e1 = 2
    e0 = 2
    nt1 = 0
    nt2 = 0
    pause = 1
    psleep = 0
    asleep = 0
    badmap = False
    dbg = False
    dbgw = 8
    nomfma = False
    apol = 'sc1'
    noadv = False
    noconv = False
    rotm1 = 0
    rotk1 = 0
    rotm2 = 0
    rotk2 = 0
    nsh1 = 1
    sub1 = 2
    nsh2 = 1
    sub2 = 2
    rot3 = 0
    ysleep = 2

HB, XB, GB, YA = 0, 0x280000, 0x500000, 0x700000
FL = 0xA00000
HF, XF, GF, YF, EW = FL, FL + 0x10000, FL + 0x20000, FL + 0x40000, FL + 0x60000
XF2 = FL + 0x20000
ST = FL + 0x40000
MB, YC = FL + 0x80000, FL + 0x10000
TSO = 0xB00000
WS_BYTES = 0xC00000
S = 12576
RY = 3 * S
CNT = RY + 10240
STA = CNT + 64
BIA = CNT + 96
WOFF = 49152
WSZ = 28672
LDS_BYTES = 163840
KB_OFF, ZP_OFF, U_OFF = 4160, 8256, 8480
TB_OFF = U_OFF + 16
sID, sWV, sX, sJ, sTAG = 2, 3, 4, 5, 6
pX, pARE, pAIM, pBRE, pBIM, pCRE, pCIM, pLDT, pDSK, pBX, pW1, pB1, pW2, pB2, pOUT, pDBG, pWS = [16 + 2 * i for i in range(17)]
rWS, rX, rW1, rW2, rOUT, rCODE = 52, 56, 60, 64, 68, 72
rB = rCODE
sDT, sFT, sDT2, sST, sWB = 76, 77, 78, 79, 80
sOW, sOWB, sOWE = 81, 82, 83
sOA, sOAB, sOAE = 84, 85, 86
sD = [87, 88, 89, 90]
sT0, sT1, sT2, sT3 = 8, 9, 10, 11
sCNT = 12
sORD1, sORD2 = (50, 51), (91, 92)
sPOS, sCH, sRB = 93, 94, 95
sDRY = 99
sMASK = 13
vL, vTS = 0, 15

def gen(cfg):
    global sDRY
    sDRY = 95
    a = Asm()
    nts = [0]
    def stamp(idx):
        if cfg.hx == idx and cfg.hold and stamp.gemm:
            a("s_memrealtime s[100:101]")
            a("s_waitcnt lgkmcnt(0)"); a.lg = []
            a("s_sub_u32 s99, s100, s98")
        if not cfg.ts:
            return
        a("s_memrealtime s[98:99]")
        a("s_waitcnt lgkmcnt(0)"); a.lg = []
        a("v_writelane_b32 v%d, s98, %d" % (vTS, idx))
        if idx in (0, 4, 5, 9, 10, 11):
            a("s_memtime s[98:99]")
            a("s_waitcnt lgkmcnt(0)")
            a("v_writelane_b32 v%d, s98, %d" % (vTS, 48 + idx))

    stamp.gemm = True
    def finish():
        if cfg.ts:
            a("s_lshl_b32 s%d, s%d, 3" % (sT0, sID))
            a("s_add_u32 s%d, s%d, s%d" % (sT0, sT0, sWV))
            a("s_lshl_b32 s%d, s%d, 8" % (sT0, sT0))
            a("s_add_u32 s%d, s%d, 0x%x" % (sT0, sT0, TSO))
            a("v_lshlrev_b32 v1, 2, v%d" % vL)
            a("buffer_store_dword v%d, v1, %s, s%d offen" % (vTS, s(rWS, 4), sT0))
            if cfg.dbg:
                n = nts[0]; nts[0] += 1
                a("s_lshl_b32 s%d, s%d, 3" % (sT0, sID))
                a("s_add_u32 s%d, s%d, s%d" % (sT0, sT0, sWV))
                a("s_cmp_lg_u32 s%d, %d" % (sT0, cfg.dbgw))
                a("s_cbranch_scc1 L_nodbg%d" % n)
                a("v_readlane_b32 s%d, v%d, 0" % (sT0, vTS))
                a("v_subrev_u32 v2, s%d, v%d" % (sT0, vTS))
                a("s_mov_b64 exec, 0xffff")
                a("global_store_dword v1, v2, %s" % s(pDBG, 2))
                a.label("L_nodbg%d" % n)
        a("s_waitcnt vmcnt(0) lgkmcnt(0)")
        a("s_endpgm")

    def srd(r, p, nbytes):
        a("s_mov_b32 s%d, s%d" % (r, p))
        a("s_and_b32 s%d, s%d, 0xffff" % (r + 1, p + 1))
        a("s_mov_b32 s%d, 0x%x" % (r + 2, nbytes))
        a("s_mov_b32 s%d, 0x20000" % (r + 3))

    npoll = [0]
    def poll(voffs, soffs, vdata, sleep=4, lanes=64):
        n = npoll[0]; npoll[0] += 1
        a("s_mov_b32 s%d, %d" % (sCNT, cfg.spin))
        if lanes < 64:
            a("s_mov_b64 exec, %d" % ((1 << lanes) - 1))
        a.label("L_poll%d" % n)
        for k, (vo, so) in enumerate(zip(voffs, soffs)):
            a("buffer_load_dword v%d, v%d, %s, s%d offen sc1" % (vdata + k, vo, s(rWS, 4), so))
        a.drain_vm()
        a("v_cmp_ne_u32 vcc, s%d, v%d" % (sTAG, vdata))
        for k in range(1, len(voffs)):
            a("v_cmp_ne_u32 s[14:15], s%d, v%d" % (sTAG, vdata + k))
            a("s_or_b64 vcc, vcc, s[14:15]")
        a("s_cmp_eq_u64 vcc, 0")
        a("s_cbranch_scc1 L_pollok%d" % n)
        a("s_sub_u32 s%d, s%d, 1" % (sCNT, sCNT))
        a("s_cmp_eq_u32 s%d, 0" % sCNT)
        a("s_cbranch_scc1 L_pollok%d" % n)
        a("s_mov_b64 exec, vcc")
        if sleep:
            a("s_sleep %d" % sleep)
        a("s_branch L_poll%d" % n)
        a.label("L_pollok%d" % n)
        a("s_mov_b64 exec, -1")

    def spoll_pre(soff):
        a("s_add_u32 s14, s%d, s%d" % (pWS, soff))
        a("s_addc_u32 s15, s%d, 0" % (pWS + 1))
        a("s_load_dword s7, s[14:15], 0 glc")
    def spoll(soff, sleep=1, target=None, pre=False):
        n = npoll[0]; npoll[0] += 1
        if not pre:
            a("s_add_u32 s14, s%d, s%d" % (pWS, soff))
            a("s_addc_u32 s15, s%d, 0" % (pWS + 1))
        a("s_mov_b32 s%d, %d" % (sCNT, cfg.spin * 2))
        if pre:
            a("s_branch L_sq%d" % n)
        a.label("L_sp%d" % n)
        a("s_load_dword s7, s[14:15], 0 glc")
        a.label("L_sq%d" % n)
        a("s_waitcnt lgkmcnt(0)"); a.lg = []
        if target is None:
            a("s_cmp_eq_u32 s7, s%d" % sTAG)
        else:
            a("s_cmp_eq_u32 s7, %d" % target)
        a("s_cbranch_scc1 L_spok%d" % n)
        if sleep:
            a("s_sleep %d" % sleep)
        a("s_sub_u32 s%d, s%d, 1" % (sCNT, sCNT))
        a("s_cmp_lg_u32 s%d, 0" % sCNT)
        a("s_cbranch_scc1 L_sp%d" % n)
        a.label("L_spok%d" % n)

    def group_ids(vdst, vtmp, sg, shift):
        if cfg.map2 == 8:
            a("v_and_b32 v%d, 24, v0" % vdst)
            a("v_lshlrev_b32 v%d, 3, v%d" % (vdst, vdst))
            a("v_and_b32 v%d, 7, v0" % vtmp)
            a("v_add_u32 v%d, v%d, v%d" % (vdst, vdst, vtmp))
            a("s_lshl_b32 s%d, s%d, 3" % (sT0, sg))
        else:
            a("v_and_b32 v%d, 28, v0" % vdst)
            a("v_lshlrev_b32 v%d, 3, v%d" % (vdst, vdst))
            a("v_and_b32 v%d, 3, v0" % vtmp)
            a("v_lshl_add_u32 v%d, v%d, 1, v%d" % (vdst, vtmp, vdst))
            a("s_and_b32 s%d, s%d, 3" % (sT0, sg))
            a("s_lshl_b32 s%d, s%d, 3" % (sT0, sT0))
            a("s_lshr_b32 s14, s%d, 2" % sg)
            a("s_add_u32 s%d, s%d, s14" % (sT0, sT0))
        a("v_add_lshl_u32 v%d, v%d, s%d, %d" % (vdst, vdst, sT0, shift))

    def group_add(voff, soff, vtmp):
        a("v_mov_b32 v%d, 1" % vtmp)
        a("s_mov_b64 exec, 0xffffffff")
        a("buffer_atomic_add v%d, v%d, %s, s%d offen sc1" % (vtmp, voff, s(rWS, 4), soff), tag="flag")
        a("s_mov_b64 exec, -1")

    def sig8(soff, stride):
        a("s_add_u32 s14, s%d, s%d" % (pWS, soff))
        a("s_addc_u32 s15, s%d, 0" % (pWS + 1))
        a("s_mov_b32 s7, 1")
        for x in range(8):
            a("s_atomic_add s7, s[14:15], 0x%x" % (x * stride))

    ng = [0]
    def guard(fn, *args):
        if not cfg.warm:
            fn(*args); return
        n = ng[0]; ng[0] += 1
        a("s_cmp_lg_u32 s%d, 0" % sDRY)
        a("s_cbranch_scc1 L_gd%d" % n)
        fn(*args)
        a.label("L_gd%d" % n)
    def dry_exit(label):
        if cfg.warm:
            a("s_cmp_lg_u32 s%d, 0" % sDRY)
            a("s_cbranch_scc1 %s" % label)

    def flag_store(soff, vtmp0, vtmp1):
        a("v_mov_b32 v%d, s%d" % (vtmp0, sTAG))
        a("v_mov_b32 v%d, 0" % vtmp1)
        a("s_mov_b64 exec, 1")
        a("buffer_store_dword v%d, v%d, %s, s%d offen sc1" % (vtmp0, vtmp1, s(rWS, 4), soff), tag="flag")
        a("s_mov_b64 exec, -1")

    nl = [0]
    def lds_arrive(off, vt0, vt1):
        a("v_mov_b32 v%d, %d" % (vt0, CNT + off))
        a("v_mov_b32 v%d, 1" % vt1)
        a("s_mov_b64 exec, 1")
        a("ds_add_u32 v%d, v%d" % (vt0, vt1))
        a("s_mov_b64 exec, -1")

    def lds_wait(off, target, vt0, vt1, sleep=0):
        n = nl[0]; nl[0] += 1
        a("v_mov_b32 v%d, %d" % (vt0, CNT + off))
        a("s_mov_b32 s%d, 0x%x" % (sCNT, cfg.spin * 64))
        a.label("L_lw%d" % n)
        a("ds_read_b32 v%d, v%d" % (vt1, vt0))
        a.drain_lg()
        a("v_readfirstlane_b32 s%d, v%d" % (sT0, vt1))
        a("s_cmp_ge_u32 s%d, %s" % (sT0, target))
        a("s_cbranch_scc1 L_lwok%d" % n)
        if sleep:
            a("s_sleep %d" % sleep)
        a("s_sub_u32 s%d, s%d, 1" % (sCNT, sCNT))
        a("s_cmp_lg_u32 s%d, 0" % sCNT)
        a("s_cbranch_scc1 L_lw%d" % n)
        a.label("L_lwok%d" % n)

    a.label(NAME + "_kernel")
    a("s_cmp_ge_u32 s2, 256")
    a("s_cbranch_scc1 L_exit")
    if cfg.hold:
        a("s_memrealtime s[98:99]")
    a("s_load_dwordx16 s[16:31], s[0:1], 0")
    a("s_load_dwordx16 s[32:47], s[0:1], 64")
    a("s_load_dwordx2 s[48:49], s[0:1], 128")
    a("v_lshrrev_b32 v1, 6, v0")
    a("v_and_b32 v0, 63, v0")
    if cfg.ts:
        a("v_mov_b32 v%d, 0" % vTS)
    a("v_readfirstlane_b32 s%d, v1" % sWV)
    a("v_lshlrev_b32 v2, 4, v0")
    a("v_lshlrev_b32 v3, 2, v0")
    if cfg.fastx:
        assert cfg.ln4
        a("s_lshl_b32 s%d, s2, 2" % sT0)
        a("s_add_u32 s%d, s%d, s%d" % (sT0, sT0, sWV))
        a("s_mulk_i32 s%d, 2560" % sT0)
        a("s_mov_b32 s%d, 0x%x" % (rX + 2, 2621440))
        a("s_mov_b32 s%d, 0x20000" % (rX + 3))
        a("s_cmp_ge_u32 s%d, 4" % sWV)
        a("s_cbranch_scc1 L_nox0")
        a("s_waitcnt lgkmcnt(0)")
        a("s_mov_b32 s%d, s%d" % (rX, pX))
        a("s_and_b32 s%d, s%d, 0xffff" % (rX + 1, pX + 1))
        a("buffer_load_dwordx4 v[16:19], v2, %s, s%d offen" % (s(rX, 4), sT0))
        a("buffer_load_dword v20, v3, %s, s%d offen offset:1024" % (s(rX, 4), sT0))
        a("buffer_load_dwordx4 v[64:67], v2, %s, s%d offen offset:1280" % (s(rX, 4), sT0))
        a("buffer_load_dword v68, v3, %s, s%d offen offset:2304" % (s(rX, 4), sT0))
        a.label("L_nox0")
    a("s_getpc_b64 s[%d:%d]" % (rCODE, rCODE + 1))
    a.label("L_pc")
    if cfg.badmap:
        a("s_lshr_b32 s%d, s2, 5" % sX)
        a("s_and_b32 s%d, s2, 31" % sJ)
    else:
        a("s_and_b32 s%d, s2, 7" % sX)
        a("s_lshr_b32 s%d, s2, 3" % sJ)
    a("s_mov_b32 s%d, 0xffff0000" % sMASK)
    a("s_and_b32 s%d, s%d, 0xffff" % (rCODE + 1, rCODE + 1))
    a("s_mov_b32 s%d, L_code_end-L_pc" % (rCODE + 2))
    a("s_mov_b32 s%d, 0x20000" % (rCODE + 3))
    a("s_cmp_lg_u32 s%d, 7" % sWV)
    a("s_cbranch_scc1 L_nopf")
    a("s_lshl_b32 s%d, s%d, 7" % (sT0, sJ))
    a("v_lshlrev_b32 v1, 12, v0")
    a("buffer_load_dword v14, v1, %s, s%d offen" % (s(rCODE, 4), sT0))
    a("v_mov_b32 v21, %d" % CNT)
    for k in range(4):
        a("v_mov_b32 v%d, 0" % (24 + k))
    a("ds_write_b128 v21, v[24:27]")
    a("ds_write_b128 v21, v[24:27] offset:16")
    a("ds_write_b128 v21, v[24:27] offset:32")
    a("ds_write_b128 v21, v[24:27] offset:48")
    a.label("L_nopf")
    a.vm = []; a.lg = []
    a("v_mov_b32 v7, 0")
    a("v_mov_b32 v8, 0")
    nline = 3 if cfg.map1 == 8 else 6
    def tile_math(part=3):
        items = a.capture(tile_math_all)
        cut = [k for k, it in enumerate(items) if it[1] == "s_nop 0"][0]
        dead = lambda t: cfg.lean and (t.startswith("v_mul_u32_u24 v62") or " s96" in t or t.startswith("s_and_b32 s%d, s%d, 1" % (sT0, sX)) or t.startswith("s_lshr_b32 s%d, s%d, 1" % (sT1, sX)) or t.startswith("s_add_u32 s97, s%d, s%d" % (sFT, sWV)) or t == "s_lshl_b32 s97, s97, 7" or t == "s_cmp_ge_u32 s%d, 3" % sWV)
        sel = (items[:cut] if part & 1 else []) + (items[cut + 1:] if part & 2 else [])
        for it in sel:
            if not dead(it[1]):
                a.play(it)
    def tile_math_all():
        a("s_and_b32 s%d, s%d, 1" % (sT0, sX))
        a("s_lshr_b32 s%d, s%d, 1" % (sT1, sX))
        a("v_mul_u32_u24 v62, 3072, v0")
        a("s_mul_i32 s96, s%d, %d" % (sJ, 64 * 3072))
        if cfg.map1 == 8:
            a("s_mul_i32 s%d, s%d, 26" % (sT2, sJ))
            a("s_lshr_b32 s%d, s%d, 8" % (sT2, sT2))
            a("s_mul_i32 s%d, s%d, 10" % (sT3, sT2))
            a("s_sub_u32 s%d, s%d, s%d" % (sT3, sJ, sT3))
            a("s_mov_b32 s%d, s%d" % (sDT, sT3))
            a("s_mul_i32 s%d, s%d, 3" % (sFT, sX))
        else:
            a("s_mul_i32 s%d, s%d, 13" % (sT2, sJ))
            a("s_lshr_b32 s%d, s%d, 6" % (sT2, sT2))
            a("s_mul_i32 s%d, s%d, 5" % (sT3, sT2))
            a("s_sub_u32 s%d, s%d, s%d" % (sT3, sJ, sT3))
            a("s_mul_i32 s%d, s%d, 5" % (sDT, sT0))
            a("s_add_u32 s%d, s%d, s%d" % (sDT, sDT, sT3))
            a("s_mul_i32 s%d, s%d, 6" % (sFT, sT1))
        a("s_add_u32 s97, s%d, s%d" % (sFT, sWV))
        a("s_lshl_b32 s97, s97, 7")
        a("s_add_u32 s96, s96, s97")
        a("s_cmp_ge_u32 s%d, 3" % sWV)
        a("s_cselect_b32 s96, 0x7f000000, s96")
        a("s_add_u32 s%d, s%d, s%d" % (sFT, sFT, sT2))
        def order(n, nsh, sub, r):
            if nsh <= 1:
                return list(range(n))
            o = []
            g = nsh * sub
            for b in range(0, n, g):
                blk = list(range(b, min(b + g, n)))
                k = (r * sub) % len(blk) if len(blk) == g else (r * len(blk) // nsh) % len(blk)
                o += blk[k:] + blk[:k]
            return o
        def pack(o):
            o = o + [0] * (16 - len(o))
            return sum(x << (4 * i) for i, x in enumerate(o[:8])), sum(x << (4 * i) for i, x in enumerate(o[8:]))
        def sel_list(dst, sidx, orders):
            for r, o in enumerate(orders):
                lo, hi = pack(list(o))
                if r == 0:
                    a("s_mov_b32 s%d, 0x%x" % (dst[0], lo))
                    a("s_mov_b32 s%d, 0x%x" % (dst[1], hi))
                elif o != orders[0]:
                    a("s_cmp_eq_u32 s%d, %d" % (sidx, r))
                    a("s_cselect_b32 s%d, 0x%x, s%d" % (dst[0], lo, dst[0]))
                    a("s_cselect_b32 s%d, 0x%x, s%d" % (dst[1], hi, dst[1]))
        def sel_order(dst, sidx, nidx, n, nsh, sub):
            sel_list(dst, sidx, [order(n, nsh, sub, r % max(nsh, 1)) for r in range(nidx)])
        def rotl(n, k):
            return [(i + k) % n for i in range(n)]
        if cfg.wrot1:
            nd = 30 // nline
            if cfg.ng1 >= nd:
                a("s_mul_i32 s97, s%d, %d" % (sT3, -(-16 * 256 // nd)))
                a("s_lshr_b32 s97, s97, 8")
            else:
                tab = sum((((r % cfg.ng1) * 16) // cfg.ng1) << (4 * r) for r in range(nd))
                a("s_mov_b32 s100, 0x%x" % (tab & 0xffffffff))
                a("s_mov_b32 s101, 0x%x" % (tab >> 32))
                a("s_lshl_b32 s97, s%d, 2" % sT3)
                a("s_lshr_b64 s[100:101], s[100:101], s97")
                a("s_mov_b32 s97, s100")
            a("s_mul_i32 s14, s%d, %d" % (sX, cfg.xm1))
            a("s_add_u32 s97, s97, s14")
            a("s_mul_i32 s14, s%d, %d" % (sT2, cfg.fm1))
            a("s_add_u32 s97, s97, s14")
            a("s_and_b32 s97, s97, 15")
            if cfg.nsh1 > 1:
                sel_order(sORD1, sT2, nline, 16, cfg.nsh1, cfg.sub1)
                a("s_mul_i32 s97, s97, 0x11111111")
                for r in sORD1:
                    a("s_xor_b32 s100, s%d, s97" % r)
                    a("s_and_b32 s100, s100, 0x88888888")
                    a("s_and_b32 s%d, s%d, 0x77777777" % (r, r))
                    a("s_and_b32 s101, s97, 0x77777777")
                    a("s_add_u32 s%d, s%d, s101" % (r, r))
                    a("s_xor_b32 s%d, s%d, s100" % (r, r))
            else:
                a("s_lshl_b32 s97, s97, 2")
                a("s_mov_b32 s100, 0x76543210")
                a("s_mov_b32 s101, 0xfedcba98")
                a("s_lshr_b64 s[%d:%d], s[100:101], s97" % sORD1)
                a("s_sub_u32 s97, 64, s97")
                a("s_lshl_b64 s[100:101], s[100:101], s97")
                a("s_or_b64 s[%d:%d], s[%d:%d], s[100:101]" % (sORD1 + sORD1))
        else:
            sel_order(sORD1, sT2, nline, 16, cfg.nsh1, cfg.sub1)
        a("s_nop 0")
        if cfg.map2 == 8:
            a("s_and_b32 s%d, s%d, 7" % (sT2, sJ))
            a("s_lshr_b32 s%d, s%d, 3" % (sT3, sJ))
            a("s_mov_b32 s%d, s%d" % (sDT2, sT2))
            a("s_lshl_b32 s%d, s%d, 2" % (sST, sX))
        else:
            a("s_and_b32 s%d, s%d, 3" % (sT2, sJ))
            a("s_lshr_b32 s%d, s%d, 2" % (sT3, sJ))
            a("s_lshl_b32 s%d, s%d, 2" % (sDT2, sT0))
            a("s_add_u32 s%d, s%d, s%d" % (sDT2, sDT2, sT2))
            a("s_lshl_b32 s%d, s%d, 3" % (sST, sT1))
        a("s_add_u32 s%d, s%d, s%d" % (sST, sST, sT3))
        if cfg.wrot2:
            nd = 8 if cfg.map2 == 8 else 4
            if cfg.ng2 == 6:
                a("s_mul_i32 s97, s%d, 4" % sT2)
            elif cfg.ng2 == 4:
                a("s_mul_i32 s97, s%d, 6" % sT2)
            else:
                a("s_mul_i32 s97, s%d, %d" % (sT2, 24 // nd))
            a("s_mul_i32 s14, s%d, %d" % (sX, cfg.xm2))
            a("s_add_u32 s97, s97, s14")
            a("s_mul_i32 s14, s%d, %d" % (sT3, cfg.fm2))
            a("s_add_u32 s97, s97, s14")
            a("s_lshr_b32 s97, s97, 1")
            a("s_mul_i32 s14, s97, 43")
            a("s_lshr_b32 s14, s14, 9")
            a("s_mul_i32 s14, s14, 12")
            a("s_sub_u32 s97, s97, s14")
            sel_list(sORD2, 97, [rotl(12, r) for r in range(12)])
        else:
            sel_order(sORD2, sT3, 4 if cfg.map2 == 8 else 8, 12, cfg.nsh2, cfg.sub2)
    def chan_math():
        a("s_and_b32 s%d, s%d, 3" % (sT0, sWV))
        a("s_cmp_eq_u32 s%d, 7" % sWV)
        a("s_cselect_b32 s%d, 0, s%d" % (sT0, sT0))
        a("s_mul_i32 s%d, s%d, %d" % (sRB, sT0, S))
        a("s_lshr_b32 s%d, s%d, 1" % (sT1, sJ))
        a("s_mul_i32 s%d, s%d, 5" % (sT1, sT1))
        a("s_and_b32 s%d, s%d, 1" % (sT2, sJ))
        a("s_mul_i32 s%d, s%d, 3" % (sT2, sT2))
        a("s_add_u32 s%d, s%d, s%d" % (sT1, sT1, sT2))
        a("s_add_u32 s%d, s%d, s%d" % (sT1, sT1, sT0))
        a("s_min_u32 s%d, s%d, 79" % (sT1, sT1))
        a("s_and_b32 s%d, s%d, 35" % (sT2, sT1))
        a("s_and_b32 s%d, s%d, 12" % (sT3, sT1))
        a("s_lshl_b32 s%d, s%d, 1" % (sT3, sT3))
        a("s_or_b32 s%d, s%d, s%d" % (sT2, sT2, sT3))
        a("s_and_b32 s%d, s%d, 16" % (sT3, sT1))
        a("s_lshr_b32 s%d, s%d, 2" % (sT3, sT3))
        a("s_or_b32 s%d, s%d, s%d" % (sT2, sT2, sT3))
        a("s_cmp_ge_u32 s%d, 64" % sT1)
        a("s_cselect_b32 s%d, s%d, s%d" % (sT2, sT1, sT2))
        a("s_mul_i32 s%d, s%d, 80" % (sT3, sX))
        a("s_add_u32 s%d, s%d, s%d" % (sPOS, sT3, sT1))
        a("s_add_u32 s%d, s%d, s%d" % (sCH, sT3, sT2))
        a("s_mul_i32 s%d, s%d, 384" % (sT0, sCH))
        a("v_add_u32 v10, s%d, v3" % sT0)
        a("v_lshlrev_b32 v11, 1, v0")
        a("v_add_u32 v11, s%d, v11" % sT0)
        a("s_lshl_b32 s%d, s%d, 1" % (sT0, sCH))
        a("v_mov_b32 v12, s%d" % sT0)
    if cfg.ln4:
        if cfg.fastx:
            a("v_mov_b32 v10, 0"); a("v_mov_b32 v11, 0"); a("v_mov_b32 v12, 0")
            a("s_cmp_lt_u32 s%d, 4" % sWV)
            a("s_cbranch_scc1 L_nochan")
        chan_math()
        if cfg.fastx:
            a.label("L_nochan")
    a("s_lshl_b32 s%d, s2, %d" % (sT0, 2 if cfg.ln4 else 3))
    a("s_add_u32 s%d, s%d, s%d" % (sT0, sT0, sWV))
    a("s_mul_i32 s%d, s%d, %d" % (sT0, sT0, 2560 if cfg.ln4 else 1280))
    for r, nb in ((rX, 2621440), (rWS, WS_BYTES), (rW1, 2048 * 3072), (rW2, 1536 * 4096), (rOUT, 2621440)):
        a("s_mov_b32 s%d, 0x%x" % (r + 2, nb))
        a("s_mov_b32 s%d, 0x20000" % (r + 3))
    def srd_bases(lst):
        for r, p in lst:
            a("s_mov_b32 s%d, s%d" % (r, p))
            a("s_and_b32 s%d, s%d, 0xffff" % (r + 1, p + 1))
    def eload():
        a("s_add_u32 s14, s%d, 0x%x" % (pWS, EW))
        a("s_addc_u32 s15, s%d, 0" % (pWS + 1))
        a("s_load_dword s7, s[14:15], 0")
    def stamp0():
        stamp(0)
        if cfg.ts:
            a("s_getreg_b32 s98, hwreg(HW_REG_XCC_ID)")
            a("v_writelane_b32 v%d, s98, 40" % vTS)
            a("s_getreg_b32 s98, hwreg(HW_REG_HW_ID)")
            a("v_writelane_b32 v%d, s98, 41" % vTS)
    SB, SS = WOFF + 16384, WSZ
    a("s_mul_i32 s%d, s%d, %d" % (sT2, sWV, 1408 if cfg.ln4 else 704))
    a("s_add_u32 s%d, s%d, %d" % (sT2, sT2, SB))
    a("v_add_u32 v61, %d, v2" % (SS - 640))
    a("v_cmp_gt_u32 vcc, 40, v0")
    a("v_cndmask_b32 v60, v61, v2, vcc")
    a("v_add_u32 v60, s%d, v60" % sT2)
    a("s_add_u32 s%d, s%d, %d" % (sT2, sT2, SS + 384))
    a("v_add_u32 v61, s%d, v3" % sT2)
    if cfg.nox:
        assert not cfg.xnlate
        a("s_lshl_b32 s%d, s%d, %d" % (sT2, sWV, 3 if cfg.ln4 else 2))
        a("s_add_u32 s%d, s%d, %d" % (sT2, sT2, STA))
        a("v_mov_b32 v59, s%d" % sT2)
    vPA = [4, 5, 6, 7, 8]
    PRM0, PRM1, vLDT, vDSK = 84, 90, 96, 97
    def param_loads():
        for k, p in enumerate([pARE, pAIM, pBRE, pBIM, pCRE, pCIM]):
            a("global_load_dword v%d, v10, %s %s" % (PRM0 + k, s(p, 2), cfg.ppol), tag="p")
            a("global_load_ushort v%d, v11, %s offset:256 %s" % (PRM1 + k, s(p, 2), cfg.ppol), tag="p")
        a("global_load_ushort v%d, v12, %s" % (vLDT, s(pLDT, 2)), tag="p")
        a("global_load_ushort v%d, v12, %s" % (vDSK, s(pDSK, 2)), tag="p")
    def x_loads():
        srd_bases([(rX, pX)])
        a("buffer_load_dwordx4 v[16:19], v2, %s, s%d offen %s" % (s(rX, 4), sT0, cfg.xpol), tag="x")
        a("buffer_load_dword v20, v3, %s, s%d offen offset:1024 %s" % (s(rX, 4), sT0, cfg.xpol), tag="x")
        if cfg.ln4:
            a("buffer_load_dwordx4 v[64:67], v2, %s, s%d offen offset:1280 %s" % (s(rX, 4), sT0, cfg.xpol), tag="x")
            a("buffer_load_dword v68, v3, %s, s%d offen offset:2304 %s" % (s(rX, 4), sT0, cfg.xpol), tag="x")
    def common_tail():
        stamp0()
        eload()
        srd_bases([(rWS, pWS), (rW1, pW1), (rW2, pW2), (rOUT, pOUT)])
    if cfg.ln4:
        if cfg.fastx:
            a("s_waitcnt lgkmcnt(0)")
            vm_x = ["x"] * 4
        else:
            a("s_cmp_ge_u32 s%d, 4" % sWV)
            a("s_waitcnt lgkmcnt(0)")
            a("s_cbranch_scc1 L_nox")
            x_loads()
            vm_x = list(a.vm)
            a.label("L_nox")
        a("s_cmp_lt_u32 s%d, 4" % sWV)
        if not cfg.lateb2:
            a("s_barrier")
        a("s_cbranch_scc1 L_gemm_pre")
        a.vm = []
        a("s_cmp_eq_u32 s%d, 7" % sWV)
        a("s_cbranch_scc1 L_w7_pre")
        param_loads()
        aux_vm = list(a.vm)
        stamp0()
        srd_bases([(rWS, pWS)])
        if cfg.lateb2 == 2:
            a("s_barrier")
        a("s_branch L_aux_main")
        a.label("L_w7_pre")
        a.vm = []
        common_tail()
        if cfg.lateb2 == 2 and cfg.b7e:
            a("s_barrier")
    else:
        a("s_waitcnt lgkmcnt(0)")
        if cfg.hold:
            a("s_mov_b32 s99, 0")
        x_loads()
        common_tail()
        vm_common = list(a.vm)
        a("s_cmp_lt_u32 s%d, 4" % sWV)
        a("s_cbranch_scc1 L_gemm_pre")
        chan_math()
        a("s_cmp_eq_u32 s%d, 7" % sWV)
        a("s_cbranch_scc1 L_w7_pre")
        param_loads()
        a.wait_vm("x")
        aux_vm = list(a.vm)
        a("s_branch L_ln")
        a.label("L_w7_pre")
        a.vm = list(vm_common)
    a("v_lshrrev_b32 v10, 4, v0")
    a("v_and_b32 v11, 3, v0")
    a("v_bfe_u32 v12, v0, 2, 2")
    a("s_movk_i32 s%d, 704" % sT0)
    a("v_mul_lo_u32 v12, v12, s%d" % sT0)
    a("v_add_u32 v12, %d, v12" % SB)
    for q in range(5):
        a("v_add_u32 v21, %d, v10" % (4 * q))
        a("v_mul_u32_u24 v22, 13, v21")
        a("v_lshrrev_b32 v22, 6, v22")
        a("v_mul_u32_u24 v23, 5, v22")
        a("v_sub_u32 v21, v21, v23")
        a("v_lshrrev_b32 v23, 1, v21")
        a("v_lshlrev_b32 v23, 5, v23")
        a("v_and_b32 v24, 1, v21")
        a("v_lshl_add_u32 v23, v24, 2, v23")
        a("v_lshlrev_b32 v24, 3, v11")
        a("v_lshlrev_b32 v25, 2, v11")
        a("v_cmp_eq_u32 vcc, 4, v21")
        a("v_cndmask_b32 v24, v24, v25, vcc")
        a("v_add_u32 v23, v23, v24")
        a("v_mul_u32_u24 v22, 80, v22")
        a("v_add_u32 v23, v23, v22")
        a("v_lshl_add_u32 v%d, v23, 1, v12" % vPA[q])
    if cfg.ln4:
        a("s_setprio 3")
        if cfg.lateb2 and not (cfg.lateb2 == 2 and cfg.b7e):
            a("s_barrier")
        lds_wait(8, 4, 12, 13)
        a("s_add_u32 s%d, s7, 0x9E3779B9" % sTAG)
        a("s_branch L_pub")
        a.label("L_gemm_pre")
        a.vm = list(vm_x)
        srd_bases([(rX, pX)])
        common_tail()
    else:
        a.wait_vm("x")
        a("s_branch L_ln")
        a.label("L_gemm_pre")
        a.vm = list(vm_common)
    if cfg.lean:
        assert cfg.map1 == 8 and cfg.map2 == 8 and not cfg.touch1
    tile_math(1 if cfg.lean else 3)

    vTR = [2, 3, 4, 5]
    vFO, vDO, vPO, vPD = 6, 7, 8, 9
    ACC1, STG1, WREG1 = 16, 80, 128
    ACC2, STG2, WREG2, XR = 16, 96, 160, 148
    NR1, NR2 = cfg.nr1, cfg.nr2

    def dma_voff(rowbytes, gemm1):
        a("v_lshrrev_b32 v10, 3, v0")
        if cfg.swz == 0:
            a("v_and_b32 v11, 6, v10")
        else:
            a("v_and_b32 v11, 2, v10")
            a("v_lshlrev_b32 v11, 1, v11")
        a("v_and_b32 v12, 7, v0")
        a("v_xor_b32 v12, v12, v11")
        a("v_lshlrev_b32 v12, 4, v12")
        if gemm1:
            a("v_and_b32 v11, 4, v10")
            a("v_add_u32 v10, v10, v11")
        a("s_mov_b32 s%d, %d" % (sT0, rowbytes))
        a("v_mul_lo_u32 v10, v10, s%d" % sT0)
        a("v_add_u32 v%d, v10, v12" % vDO)

    def setoff(dst, base, ordr, step, stepbytes):
        wd = 4
        if dst == sOA and ((cfg.fake & 1 and ordr == sORD1) or (cfg.fake & 2 and ordr == sORD2)):
            wd = 2
        a("s_bfe_u32 s%d, s%d, 0x%x" % (dst, ordr[step >> 3], (wd << 16) | (4 * (step & 7))))
        a("s_mul_i32 s%d, s%d, %d" % (dst, dst, stepbytes))
        a("s_add_u32 s%d, s%d, s%d" % (dst, dst, base))

    def dma_step(srdreg, slot, consts, stepbytes, tag, pol=''):
        setoff(sOW, sOWB, sORD1 if srdreg == rW1 else sORD2, int(tag[1:]), stepbytes)
        for b in range(4):
            a("s_add_u32 m0, s%d, %d" % (sWB, slot * 4096 + b * 1024))
            if consts[b]:
                a("s_add_u32 s%d, s%d, %d" % (sT0, sOW, consts[b]))
                so = sT0
            else:
                so = sOW
            a("buffer_load_dwordx4 v%d, %s, s%d offen %s lds" % (vDO, s(srdreg, 4), so, pol), tag=tag)

    C1 = [(16 * (b & 1) + 4 * (b >> 1)) * 3072 for b in range(4)]
    C2 = [8 * b * 4096 for b in range(4)]

    def tr_step(slot, wreg, tag):
        for n in range(4):
            for e in range(2):
                a("ds_read_b64_tr_b16 %s, v%d offset:%d" % (v(wreg + 4 * n + 2 * e, 2), vTR[n], slot * 4096 + e * 2048), tag=tag)

    def touch_w1():
        a("buffer_load_dword v63, v62, %s, s96 offen %s" % (s(rW1, 4), cfg.tpol), tag="tch")
    def touch_w2s():
        a("v_lshrrev_b32 v8, 2, v0")
        a("v_lshlrev_b32 v8, 12, v8")
        a("v_and_b32 v9, 3, v0")
        a("v_lshl_add_u32 v8, v9, 7, v8")
        a("v_mov_b32 v9, 0x7f000000")
        a("v_cmp_gt_u32 vcc, 48, v0")
        a("v_cndmask_b32 v8, v9, v8, vcc")
        a("s_lshl_b32 s97, s%d, 2" % sJ)
        a("s_add_u32 s97, s97, s%d" % sWV)
        a("s_mul_i32 s97, s97, %d" % (12 * 4096))
        a("s_lshl_b32 s%d, s%d, 9" % (sT2, sX))
        a("s_add_u32 s97, s97, s%d" % sT2)
    def touch_w2i():
        a("buffer_load_dword v9, v8, %s, s97 offen %s" % (s(rW2, 4), cfg.t2pol), tag="tch")
    def touch_w1b():
        if nline == 6:
            a("buffer_load_dword v63, v62, %s, s96 offen offset:384 %s" % (s(rW1, 4), cfg.tpol), tag="tch")
    a("s_mov_b64 exec, 0xffffffff")
    srd(rB, pB1, 3072)
    a("s_lshl_b32 s%d, s%d, 7" % (sT0, sFT))
    a("s_mov_b32 m0, %d" % BIA)
    a("buffer_load_dword v3, %s, s%d offen lds" % (s(rB, 4), sT0), tag="b")
    def b2dma():
        srd(rB, pB2, 4096)
        a("s_lshl_b32 s%d, s%d, 7" % (sT0, sST))
        a("s_mov_b32 m0, %d" % (BIA + 128))
        a("buffer_load_dword v%d, %s, s%d offen lds" % (10 if cfg.lean else 3, s(rB, 4), sT0), tag="b2")
    if not cfg.lean:
        b2dma()
    a("s_mov_b64 exec, -1")
    if cfg.touch1 == 1:
        touch_w1()
    if cfg.touch2 in (3, 4, 5, 7):
        touch_w2s()
    if cfg.touch2 == 4:
        touch_w2i()
    a("s_setprio 2")
    a("s_mul_i32 s%d, s%d, %d" % (sWB, sWV, WSZ))
    a("s_add_u32 s%d, s%d, %d" % (sWB, sWB, WOFF))
    dma_voff(3072, True)
    a("s_mul_i32 s%d, s%d, %d" % (sOWB, sWV, 512 * 3072))
    a("s_lshl_b32 s%d, s%d, 7" % (sT0, sFT))
    a("s_add_u32 s%d, s%d, s%d" % (sOWB, sOWB, sT0))
    a("s_cmp_ge_u32 s%d, 30" % sJ)
    a("s_cselect_b32 s%d, 0x7f000000, s%d" % (sOWB, sOWB))
    def dma1(k):
        if 15 - cfg.skip1 <= k < 15:
            return
        dma_step(rW1, k % 7, C1, 32 * 3072, "w%d" % k, cfg.tpol if k < cfg.nt1 else '')
    for i in range(cfg.prea):
        dma1(i)
    if cfg.ln4 and cfg.lateb2:
        a("s_barrier")
    a.wait_vm("x")
    for i in range(cfg.prea, cfg.prea + cfg.preb):
        dma1(i)
    gemm_vm = list(a.vm)
    a.label("L_ln")
    stamp(1)

    def bfround(r):
        a("v_cvt_pk_bf16_f32 v%d, v%d, v%d" % (r, r, r))
        a("v_and_b32 v%d, s%d, v%d" % (r, sMASK, r))

    def ln_token(o, sx0, s1, s2, row):
        L = []
        e = L.append
        XP, D_, A, B, C, E_, HP = 16 + o, 24 + o, 34 + o, 36 + o, 38 + o, 40 + o, 44 + o
        M, V, R1, R2 = 50 + o, 51 + o, 52 + o, 54 + o
        for k in range(5):
            e("v_lshlrev_b32 v%d, 16, v%d" % (D_ + 2 * k, XP + k))
            e("v_and_b32 v%d, s%d, v%d" % (D_ + 2 * k + 1, sMASK, XP + k))
        e("v_readfirstlane_b32 s%d, v%d" % (sx0, D_))
        e("v_mov_b32 v%d, %s" % (R2, f32(1.0 / 640)))
        e("v_mov_b32 v%d, s%d" % (A, sx0))
        for k in range(5):
            e("v_pk_add_f32 %s, %s, %s op_sel_hi:[1,0] neg_lo:[0,1] neg_hi:[0,1]" % (v(D_ + 2 * k, 2), v(D_ + 2 * k, 2), v(A, 2)))
        e("v_pk_mul_f32 %s, %s, %s" % (v(B, 2), v(D_, 2), v(D_, 2)))
        e("v_pk_add_f32 %s, %s, %s" % (v(A, 2), v(D_, 2), v(D_ + 2, 2)))
        e("v_pk_mul_f32 %s, %s, %s" % (v(E_, 2), v(D_ + 4, 2), v(D_ + 4, 2)))
        e("v_pk_add_f32 %s, %s, %s" % (v(C, 2), v(D_ + 4, 2), v(D_ + 6, 2)))
        e("v_pk_fma_f32 %s, %s, %s, %s" % (v(B, 2), v(D_ + 2, 2), v(D_ + 2, 2), v(B, 2)))
        e("v_pk_add_f32 %s, %s, %s" % (v(A, 2), v(A, 2), v(D_ + 8, 2)))
        e("v_pk_fma_f32 %s, %s, %s, %s" % (v(E_, 2), v(D_ + 6, 2), v(D_ + 6, 2), v(E_, 2)))
        e("v_pk_fma_f32 %s, %s, %s, %s" % (v(B, 2), v(D_ + 8, 2), v(D_ + 8, 2), v(B, 2)))
        e("v_pk_add_f32 %s, %s, %s" % (v(A, 2), v(A, 2), v(C, 2)))
        e("v_pk_add_f32 %s, %s, %s" % (v(B, 2), v(B, 2), v(E_, 2)))
        e("v_add_f32 v%d, v%d, v%d" % (A, A, A + 1))
        e("v_add_f32 v%d, v%d, v%d" % (B, B, B + 1))
        for ctl in ["row_shr:1", "row_shr:2", "row_shr:4", "row_shr:8"]:
            for r in (A, B):
                e("v_add_f32_dpp v%d, v%d, v%d %s row_mask:0xf bank_mask:0xf bound_ctrl:0" % (r, r, r, ctl))
        for r in (A, B):
            e("v_add_f32_dpp v%d, v%d, v%d row_bcast:15 row_mask:0xa bank_mask:0xf" % (r, r, r))
        for r in (A, B):
            e("v_add_f32_dpp v%d, v%d, v%d row_bcast:31 row_mask:0xc bank_mask:0xf" % (r, r, r))
        e("v_readlane_b32 s%d, v%d, 63" % (s1, A))
        e("v_readlane_b32 s%d, v%d, 63" % (s2, B))
        e("v_mul_f32 v%d, s%d, v%d" % (M, s1, R2))
        e("v_mul_f32 v%d, s%d, v%d" % (V, s2, R2))
        e("v_fma_f32 v%d, -v%d, v%d, v%d" % (V, M, M, V))
        e("v_add_f32 v%d, s%d, v%d" % (A, sx0, M))
        e("v_max_f32 v%d, 0, v%d" % (V, V))
        def rstd(dst, mean, var, mb):
            e("v_cvt_pk_bf16_f32 v%d, v%d, v%d" % (C, mean, var))
            e("v_and_b32 v%d, s%d, v%d" % (dst, sMASK, C))
            e("v_lshlrev_b32 v%d, 16, v%d" % (mb, C))
            e("v_add_f32 v%d, %s, v%d" % (dst, f32(1e-5), dst))
            e("v_cvt_pk_bf16_f32 v%d, v%d, v%d" % (dst, dst, dst))
            e("v_and_b32 v%d, s%d, v%d" % (dst, sMASK, dst))
            e("v_sqrt_f32 v%d, v%d" % (dst, dst))
            e("v_cvt_pk_bf16_f32 v%d, v%d, v%d" % (dst, dst, dst))
            e("v_and_b32 v%d, s%d, v%d" % (dst, sMASK, dst))
            if cfg.nox and dst == R2:
                e("v_lshrrev_b32 v%d, 16, v%d" % (C, mb))
                e("v_or_b32 v%d, v%d, v%d" % (C, C, dst))
                e("ds_write_b32 v59, v%d offset:%d" % (C, 4 * row))
            e("v_rcp_f32 v%d, v%d" % (dst, dst))
        rstd(R1, A, V, B)
        e("v_sub_f32 v%d, s%d, v%d" % (B, sx0, B))
        e("v_mul_f32 v%d, v%d, v%d" % (V, V, R1))
        e("v_mul_f32 v%d, v%d, v%d" % (R1 + 1, B, R1))
        e("v_mul_f32 v%d, v%d, v%d" % (E_, B, R1))
        e("v_mul_f32 v%d, v%d, v%d" % (E_ + 1, B, R1))
        e("v_mul_f32 v%d, v%d, v%d" % (V, V, R1))
        e("v_fma_f32 v%d, v%d, v%d, v%d" % (A, M, R1, R1 + 1))
        n0 = len(L)
        rstd(R2, A, V, B)
        e("v_mul_f32 v%d, v%d, v%d" % (E_ + 2, B, R2))
        e("v_mul_f32 v%d, v%d, v%d" % (E_ + 3, B, R2))
        chain = L[n0:]; del L[n0:]
        body = []
        for k in range(5):
            body.append("v_pk_fma_f32 %s, %s, %s, %s op_sel_hi:[1,0,1]" % (v(D_ + 2 * k, 2), v(D_ + 2 * k, 2), v(R1, 2), v(E_, 2)))
        if not cfg.nox:
            for k in range(5):
                body.append("v_cvt_pk_bf16_f32 v%d, v%d, v%d" % (XP + k, D_ + 2 * k, D_ + 2 * k + 1))
            body.append("ds_write_b128 v60, %s offset:%d" % (v(XP, 4), 2 * SS + 704 * row))
            body.append("ds_write_b32 v61, v%d offset:%d" % (XP + 4, 2 * SS + 704 * row))
        while chain or body:
            if chain: e(chain.pop(0))
            if body: e(body.pop(0))
        for k in range(5):
            e("v_pk_fma_f32 %s, %s, %s, %s op_sel_hi:[1,0,1] neg_lo:[0,0,1] neg_hi:[0,0,1]" % (v(D_ + 2 * k, 2), v(D_ + 2 * k, 2), v(R2, 2), v(E_ + 2, 2)))
        for k in range(5):
            e("v_cvt_pk_bf16_f32 v%d, v%d, v%d" % (HP + k, D_ + 2 * k, D_ + 2 * k + 1))
        e("ds_write_b128 v60, %s offset:%d" % (v(HP, 4), 704 * row))
        e("ds_write_b32 v61, v%d offset:%d" % (HP + 4, 704 * row))
        return L
    def ln_token_exact(o, sx0, s1, s2, row):
        L = []
        e = L.append
        XP, XF32, DT_, A, B, C, D, HP = 16 + o, 24 + o, 34 + o, 44 + o, 46 + o, 48 + o, 50 + o, 52 + o
        def unpack(dst, src):
            for k in range(5):
                e("v_lshlrev_b32 v%d, 16, v%d" % (dst + 2 * k, src + k))
                e("v_and_b32 v%d, s%d, v%d" % (dst + 2 * k + 1, sMASK, src + k))
        unpack(XF32, XP)
        for shift, outp in ((True, XP), (False, HP)):
            src = XF32
            if shift:
                e("v_readfirstlane_b32 s%d, v%d" % (sx0, XF32))
                for i in range(10):
                    e("v_subrev_f32 v%d, s%d, v%d" % (DT_ + i, sx0, XF32 + i))
                src = DT_
            e("v_pk_add_f32 %s, %s, %s" % (v(A, 2), v(src, 2), v(src + 2, 2)))
            e("v_pk_mul_f32 %s, %s, %s" % (v(B, 2), v(src, 2), v(src, 2)))
            e("v_pk_add_f32 %s, %s, %s" % (v(C, 2), v(src + 4, 2), v(src + 6, 2)))
            e("v_pk_fma_f32 %s, %s, %s, %s" % (v(B, 2), v(src + 2, 2), v(src + 2, 2), v(B, 2)))
            e("v_pk_add_f32 %s, %s, %s" % (v(A, 2), v(A, 2), v(src + 8, 2)))
            e("v_pk_mul_f32 %s, %s, %s" % (v(D, 2), v(src + 4, 2), v(src + 4, 2)))
            e("v_pk_fma_f32 %s, %s, %s, %s" % (v(B, 2), v(src + 8, 2), v(src + 8, 2), v(B, 2)))
            e("v_pk_add_f32 %s, %s, %s" % (v(A, 2), v(A, 2), v(C, 2)))
            e("v_pk_fma_f32 %s, %s, %s, %s" % (v(D, 2), v(src + 6, 2), v(src + 6, 2), v(D, 2)))
            e("v_add_f32 v%d, v%d, v%d" % (A, A, A + 1))
            e("v_pk_add_f32 %s, %s, %s" % (v(B, 2), v(B, 2), v(D, 2)))
            e("v_add_f32 v%d, v%d, v%d" % (B, B, B + 1))
            for ctl in ["row_shr:1", "row_shr:2", "row_shr:4", "row_shr:8"]:
                for r in (A, B):
                    e("v_add_f32_dpp v%d, v%d, v%d %s row_mask:0xf bank_mask:0xf bound_ctrl:0" % (r, r, r, ctl))
            for r in (A, B):
                e("v_add_f32_dpp v%d, v%d, v%d row_bcast:15 row_mask:0xa bank_mask:0xf" % (r, r, r))
            for r in (A, B):
                e("v_add_f32_dpp v%d, v%d, v%d row_bcast:31 row_mask:0xc bank_mask:0xf" % (r, r, r))
            e("v_readlane_b32 s%d, v%d, 63" % (s1, A))
            e("v_readlane_b32 s%d, v%d, 63" % (s2, B))
            e("v_mov_b32 v%d, %s" % (A + 1, f32(1.0 / 640)))
            e("v_mul_f32 v%d, s%d, v%d" % (A, s1, A + 1))
            e("v_mul_f32 v%d, s%d, v%d" % (B, s2, A + 1))
            e("v_fma_f32 v%d, -v%d, v%d, v%d" % (B, A, A, B))
            if shift:
                e("v_add_f32 v%d, s%d, v%d" % (A, sx0, A))
            e("v_max_f32 v%d, 0, v%d" % (B, B))
            e("v_cvt_pk_bf16_f32 v%d, v%d, v%d" % (B + 1, A, B))
            e("v_and_b32 v%d, s%d, v%d" % (B, sMASK, B + 1))
            e("v_lshlrev_b32 v%d, 16, v%d" % (A, B + 1))
            e("v_add_f32 v%d, %s, v%d" % (B, f32(1e-5), B))
            for k in range(5):
                e("v_pk_add_f32 %s, %s, %s op_sel_hi:[1,0] neg_lo:[0,1] neg_hi:[0,1]" % (v(DT_ + 2 * k, 2), v(XF32 + 2 * k, 2), v(A, 2)))
                if k == 0:
                    e("v_cvt_pk_bf16_f32 v%d, v%d, v%d" % (B, B, B))
                if k == 1:
                    e("v_and_b32 v%d, s%d, v%d" % (B, sMASK, B))
                if k == 2:
                    e("v_sqrt_f32 v%d, v%d" % (B, B))
                if k == 4:
                    e("v_cvt_pk_bf16_f32 v%d, v%d, v%d" % (B, B, B))
            for k in range(5):
                e("v_cvt_pk_bf16_f32 v%d, v%d, v%d" % (C + k, DT_ + 2 * k, DT_ + 2 * k + 1))
                if k == 0:
                    e("v_and_b32 v%d, s%d, v%d" % (B, sMASK, B))
                if k == 1:
                    if cfg.nox and not shift:
                        e("v_lshrrev_b32 v%d, 16, v%d" % (A + 1, A))
                        e("v_or_b32 v%d, v%d, v%d" % (A + 1, A + 1, B))
                    e("v_rcp_f32 v%d, v%d" % (B, B))
                if k == 2 and cfg.nox and not shift:
                    e("ds_write_b32 v59, v%d offset:%d" % (A + 1, 4 * row))
            unpack(DT_, C)
            for k in range(5):
                e("v_pk_mul_f32 %s, %s, %s op_sel_hi:[1,0]" % (v(DT_ + 2 * k, 2), v(DT_ + 2 * k, 2), v(B, 2)))
            for k in range(5):
                e("v_cvt_pk_bf16_f32 v%d, v%d, v%d" % (outp + k, DT_ + 2 * k, DT_ + 2 * k + 1))
            off = (2 * SS if shift else 0) + 704 * row
            if shift:
                unpack(XF32, outp)
            if not (cfg.nox and shift):
                e("ds_write_b128 v60, %s offset:%d" % (v(outp, 4), off))
                e("ds_write_b32 v61, v%d offset:%d" % (outp + 4, off))
        return L
    if cfg.exactln:
        ln_token = ln_token_exact
    if cfg.ln4:
        for i0, i1 in zip(ln_token(0, 14, sT0, sT1, 0), ln_token(48, 15, sT2, sT3, 1)):
            a(i0); a(i1)
        a("s_waitcnt lgkmcnt(0)"); a.lg = []
        lds_arrive(8, 12, 13)
        a("s_add_u32 s%d, s7, 0x9E3779B9" % sTAG)
        a("s_branch L_not7")
        a.label("L_pub")
    else:
        for i0 in ln_token(0, 14, sT0, sT1, 0):
            a(i0)
        a("s_waitcnt lgkmcnt(0)"); a.lg = []
        a("s_add_u32 s%d, s7, 0x9E3779B9" % sTAG)
        a("s_cmp_lg_u32 s%d, 7" % sWV)
        a("s_barrier")
        a("s_cbranch_scc1 L_not7")
    a.vm = []; a.lg = []
    a("s_setprio 3")
    stamp(2)
    a("s_mul_i32 s%d, s%d, 10240" % (sT0, sID))
    a("s_add_u32 s%d, s%d, 4096" % (sT1, sT0))
    a("s_add_u32 s%d, s%d, 8192" % (sT2, sT0))
    def prd(k):
        arr, hf, q = k // 10, (k // 5) & 1, k % 5
        r = 16 + 4 * k
        o = hf * SS
        va = 100 + q if arr else vPA[q]
        a("ds_read_b64_tr_b16 %s, v%d offset:%d" % (v(r, 2), va, o), tag="p%d" % k)
        a("ds_read_b64_tr_b16 %s, v%d offset:%d" % (v(r + 2, 2), va, o + 2816), tag="p%d" % k)
    NP = 10 if cfg.nox else 20
    for k in range(6):
        prd(k)
    if cfg.nox:
        a("v_and_b32 v100, 16, v2")
        a("ds_read_b128 v[104:107], v100 offset:%d" % STA, tag="sta")
    else:
        for q in range(5):
            a("v_add_u32 v%d, %d, v%d" % (100 + q, 2 * SS, vPA[q]))
    for k in range(NP):
        if k == 10:
            for q in range(3):
                a("s_add_u32 s%d, s%d, 0x%x" % ((sT0, sT1, sT2)[q], (sT0, sT1, sT2)[q], XB))
        a.wait_lg("p%d" % k)
        kk = k % 10
        if k < 10 or not (cfg.noxn or cfg.xnlate):
            a("buffer_store_dwordx4 %s, v2, %s, s%d offen offset:%d sc1" % (v(16 + 4 * k, 4), s(rWS, 4), (sT0, sT1, sT2)[kk >> 2], 1024 * (kk & 3)), tag="hs" if k < 10 else "xs")
        if k + 6 < NP:
            prd(k + 6)
        if k == (cfg.c16k if cfg.nox else 13):
            a.drain_lg()
            lds_arrive(16, 12, 13)
    if cfg.nox:
        a("s_lshl_b32 s%d, s%d, %d" % (sT3, sID, cfg.stsh))
        a("s_add_u32 s%d, s%d, 0x%x" % (sT3, sT3, ST))
        a("s_mov_b64 exec, %d" % ((1 << (1 << (cfg.stsh - 4))) - 1))
        a("buffer_store_dwordx4 v[104:107], v2, %s, s%d offen sc1" % (s(rWS, 4), sT3))
        a("s_mov_b64 exec, -1")
    if cfg.ssig:
        a("s_cmp_ge_u32 s%d, 64" % sID)
        a("s_cbranch_scc1 L_nozero")
    for k in range(4):
        a("v_mov_b32 v%d, 0" % (108 + k))
    a("s_lshl_b32 s%d, s%d, 10" % (sT3, sID))
    a("s_add_u32 s%d, s%d, 0x%x" % (sT3, sT3, MB + 512))
    a("s_mov_b64 exec, 0xffffffff")
    a("buffer_store_dwordx4 v[108:111], v2, %s, s%d offen sc1" % (s(rWS, 4), sT3))
    a("s_lshl_b32 s%d, s%d, 7" % (sT3, sID))
    a("s_add_u32 s%d, s%d, 0x%x" % (sT3, sT3, YC))
    a("s_mov_b64 exec, 0xff")
    a("buffer_store_dwordx4 v[108:111], v2, %s, s%d offen sc1" % (s(rWS, 4), sT3))
    a("s_mov_b64 exec, -1")
    a.label("L_nozero")
    a("s_lshl_b32 s%d, s%d, %d" % (sT3, sID, cfg.fsh))
    a("s_add_u32 s%d, s%d, 0x%x" % (sT3, sT3, HF))
    if cfg.ssig:
        a("s_add_u32 s14, s%d, s%d" % (pWS, sT3))
        a("s_addc_u32 s15, s%d, 0" % (pWS + 1))
        a("s_mov_b32 s7, s%d" % sTAG)
        a.drain_vm()
        a("s_atomic_swap s7, s[14:15], 0")
        a.drain_lg()
        if cfg.xnlate:
            if cfg.xnlate == 2:
                a("s_mov_b32 s%d, s%d" % (sT3, sT0))
                lds_wait(40, 1, 12, 13, sleep=2)
                a("s_mov_b32 s%d, s%d" % (sT0, sT3))
            for kk in range(10):
                a("buffer_store_dwordx4 %s, v2, %s, s%d offen offset:%d sc1" % (v(56 + 4 * kk, 4), s(rWS, 4), (sT0, sT1, sT2)[kk >> 2], 1024 * (kk & 3)))
            a("s_mov_b32 s7, s%d" % sTAG)
            a.drain_vm()
            a("s_atomic_swap s7, s[14:15], 0x%x" % (XF2 - HF))
            a.drain_lg()
    else:
        a.drain_vm()
        flag_store(sT3, 12, 13)
    stamp(3)
    a("s_branch L_w7")
    a.label("L_not7")
    a.lg = ["arr"]
    if not cfg.ln4:
        a("s_cmp_ge_u32 s%d, 4" % sWV)
        a("s_cbranch_scc1 L_aux_main")
    a.vm = list(gemm_vm)
    a("s_setprio %d" % cfg.pP)
    stamp(2)
    for i in range(cfg.prea + cfg.preb, cfg.prea + cfg.preb + cfg.prec):
        dma1(i)
    cfg.pre1 = cfg.prea + cfg.preb + cfg.prec

    a("v_lshrrev_b32 v10, 2, v0")
    if cfg.swz == 0:
        a("v_bfe_u32 v11, v0, 3, 2")
    else:
        a("v_bfe_u32 v11, v0, 3, 1")
        a("v_lshlrev_b32 v11, 1, v11")
    a("v_lshlrev_b32 v10, 7, v10")
    a("v_and_b32 v12, 3, v0")
    a("v_lshl_add_u32 v10, v12, 3, v10")
    a("v_add_u32 v10, s%d, v10" % sWB)
    for n in range(4):
        a("v_xor_b32 v12, %d, v11" % n)
        a("v_lshl_add_u32 v%d, v12, 5, v10" % vTR[n])
    a("v_lshrrev_b32 v10, 4, v0")
    a("v_mul_u32_u24 v10, 10240, v10")
    a("v_and_b32 v11, 15, v0")
    a("v_lshl_add_u32 v%d, v11, 4, v10" % vFO)
    a.wait_vm("b")
    a("v_lshrrev_b32 v10, 4, v0")
    a("v_lshlrev_b32 v10, 3, v10")
    for fi in range(4):
        a("ds_read_b64 %s, v10 offset:%d" % (v(STG1 + 2 * fi, 2), BIA + 32 * fi), tag="bias")
    a.wait_lg("bias")
    for k in range(8):
        a("v_lshlrev_b32 v%d, 16, v%d" % (ACC1 + 2 * k, STG1 + k))
        a("v_and_b32 v%d, s%d, v%d" % (ACC1 + 2 * k + 1, sMASK, STG1 + k))
    if cfg.warm:
        assert not cfg.ts or True
        a("v_mov_b32 v9, 0")
        a("v_mov_b32 v1, 0")
        a("s_mov_b32 s%d, 1" % sDRY)
        a("s_mov_b64 exec, 0")
        a("s_branch L_ep1")
        a.label("L_dry_ret")
        a("s_mov_b64 exec, -1")
        a("s_mov_b32 s%d, 0" % sDRY)
        a("s_waitcnt lgkmcnt(0)"); a.lg = []
    if cfg.lean:
        tile_math(2)
    lds_wait(16, 1, 12, 13)
    if cfg.lean:
        a("v_lshlrev_b32 v10, 2, v0")
        a("s_mov_b64 exec, 0xffffffff")
        b2dma()
        a("s_mov_b64 exec, -1")
    stamp(14)
    if cfg.touch1:
        touch_w1b()
    if cfg.touch2 == 5:
        touch_w2i()
    a("s_cmp_ge_u32 s%d, 30" % sJ)
    a("s_cbranch_scc1 L_g2_pre_nog1")
    a("s_mul_i32 s%d, s%d, %d" % (sOAB, sWV, 64 * 10240))
    a("s_lshl_b32 s%d, s%d, 10" % (sT0, sDT))
    a("s_add_u32 s%d, s%d, s%d" % (sOAB, sOAB, sT0))
    if HB:
        a("s_add_u32 s%d, s%d, 0x%x" % (sOAB, sOAB, HB))
    for di in range(4):
        a("s_xor_b32 s%d, s%d, %d" % (sD[di], sWV, di))
        a("s_lshl_b32 s%d, s%d, 8" % (sD[di], sD[di]))
    def mbox(extra):
        if cfg.ssig and extra:
            a("s_and_b32 s%d, s%d, 63" % (sT1, sID))
            a("s_lshl_b32 s%d, s%d, 3" % (sT1, sT1))
        else:
            a("s_lshl_b32 s%d, s%d, 3" % (sT1, sID))
        a("s_add_u32 s%d, s%d, s%d" % (sT1, sT1, sWV))
        a("s_lshl_b32 s%d, s%d, 7" % (sT1, sT1))
        a("s_add_u32 s%d, s%d, 0x%x" % (sT1, sT1, MB + extra))
    D1 = cfg.depth1
    issued = cfg.pre1
    P1 = cfg.P1
    polled = False
    for i in range(P1):
        while issued < P1 and issued <= i + D1:
            k = issued
            if k >= 7:
                a.wait_lg("t%d" % (k - 7))
            if k >= P1 - 2 and i >= 8 and not polled:
                a.drain_lg()
                mbox(0)
                spoll_pre(sT1)
                polled = True
            dma1(k)
            issued += 1
        if i < 8:
            a.wait_vm("w%d" % i)
            tr_step(i % 7, WREG1 + 16 * i, "t%d" % i)
            if cfg.xnlate == 2 and i == cfg.xnat:
                lds_arrive(40, 12, 13)
        elif issued < P1:
            a.wait_vm("w%d" % i)
        if (i in (0, 8) and cfg.fine) or (cfg.fine == 2 and i in (2, 4, 6, 10)):
            stamp(16 + i // 2)
    if not polled:
        mbox(0)
        spoll_pre(sT1)
    if cfg.touch2 == 7:
        touch_w2i()
    stamp(3)
    def hwait(sl):
        a("s_lshl_b32 s%d, s%d, 3" % (sT1, sID))
        a("s_add_u32 s%d, s%d, s%d" % (sT1, sT1, sWV))
        a("s_lshl_b32 s%d, s%d, 7" % (sT1, sT1))
        a("s_add_u32 s%d, s%d, 0x%x" % (sT1, sT1, MB))
        spoll(sT1, sl)
    spoll(sT1, cfg.psleep, pre=True)
    a("s_setprio %d" % cfg.pG)
    if cfg.pbal:
        a("s_and_b32 s%d, s%d, 1" % (sT2, sJ))
        a("s_add_u32 s%d, s%d, s%d" % (sT2, sT2, sWV))
        a("s_cmp_lt_u32 s%d, 3" % sT2)
        a("s_cbranch_scc1 L_pb")
        a("s_setprio 1")
        a.label("L_pb")
    stamp(4)

    def adv_a(stepbytes):
        if cfg.noadv:
            return
        a("s_add_u32 s%d, s%d, %d" % (sOA, sOA, stepbytes))
        a("s_cmp_ge_u32 s%d, s%d" % (sOA, sOAE))
        a("s_cselect_b32 s%d, s%d, s%d" % (sOA, sOAB, sOA))

    L1 = cfg.L1
    SEQ1 = [(i, d) for i in range(16 - L1) for d in range(4)]
    SEQ1 += [(i, d) for i in range(16 - L1, 16) for d in (1, 2, 3)] + [(i, 0) for i in range(16 - L1, 16)]
    def hload(n):
        st_, di = SEQ1[n]
        if n == 0 or SEQ1[n - 1][0] != st_:
            setoff(sOA, sOAB, sORD1, st_, 4 * 10240)
        a("s_add_u32 s%d, s%d, s%d" % (sT1, sOA, sD[di]))
        a("buffer_load_dwordx4 %s, v%d, %s, s%d offen %s" % (v(STG1 + 4 * (n % NR1), 4), vFO, s(rWS, 4), sT1, cfg.apol), tag="h%d" % n)

    def w2_setup():
        dma_voff(4096, False)
        a("s_mul_i32 s%d, s%d, %d" % (sOWB, sWV, 384 * 4096))
        a("s_lshl_b32 s%d, s%d, 7" % (sT0, sST))
        a("s_add_u32 s%d, s%d, s%d" % (sOWB, sOWB, sT0))

    SL2 = {0: 3, 1: 4, 2: 5, 3: 6, 4: 0, 5: 1, 6: 2, 7: 3, 8: 4, 9: 5, 10: 6, 11: 0}
    if cfg.e2:
        SL2 = {0: 3, 1: 4, 2: 5, 3: 6, 4: 3, 5: 4, 6: 0, 7: 1, 8: 2, 9: 5, 10: 6, 11: 3}
    def slot2(i):
        return SL2[i]
    def dma2(k):
        if k >= 12 - cfg.skip2:
            return
        dma_step(rW2, slot2(k), C2, 32 * 4096, "u%d" % k, cfg.t2pol if k < cfg.nt2 else '')
    def tr2(k):
        tr_step(slot2(k), WREG2 + 16 * k, "q%d" % k)
    def tr_flip():
        a("s_lshl_b32 s%d, s%d, 5" % (sT0, sWV))
        for n in range(4):
            a("v_xor_b32 v%d, s%d, v%d" % (vTR[n], sT0, vTR[n]))

    vXO, vXO4, vB2 = 9, 1, 14
    sXO = 97
    def xt_setup():
        a("v_and_b32 v12, 15, v0")
        a("v_lshrrev_b32 v13, 4, v0")
        a("v_mul_u32_u24 v%d, 1280, v12" % vXO)
        a("v_lshl_add_u32 v%d, v13, 3, v%d" % (vXO4, vXO))
        a("v_lshl_add_u32 v%d, v13, 4, v%d" % (vXO, vXO))
        a("s_lshl_b32 s%d, s%d, 2" % (sT2, sST))
        a("s_add_u32 s%d, s%d, s%d" % (sT2, sT2, sWV))
        a("s_mul_i32 s%d, s%d, %d" % (sXO, sT2, 16 * 1280))
        a("s_mul_i32 s%d, s%d, 160" % (sT3, sDT2))
        a("s_add_u32 s%d, s%d, s%d" % (sXO, sXO, sT3))
    def acc2_init():
        a("v_and_b32 v12, 15, v0")
        a("s_lshl_b32 s%d, s%d, 5" % (sT2, sWV))
        a("v_lshl_add_u32 v12, v12, 1, s%d" % sT2)
        a("ds_read_u16 v%d, v12 offset:%d" % (vB2, BIA + 128), tag="b2")
        for k in range(10):
            a("v_lshlrev_b32 v%d, 16, v%d" % (ACC2 + 2 * k, XR + k))
            a("v_and_b32 v%d, s%d, v%d" % (ACC2 + 2 * k + 1, sMASK, XR + k))
        a.wait_lg("b2")
        a("v_lshlrev_b32 v%d, 16, v%d" % (vB2, vB2))
        for k in range(20):
            a("v_add_f32 v%d, v%d, v%d" % (ACC2 + k, vB2, ACC2 + k))
    def xt_loads():
        a("buffer_load_dwordx4 %s, v%d, %s, s%d offen %s" % (v(XR, 4), vXO, s(rX, 4), sXO, cfg.xpol), tag="xt")
        a("buffer_load_dwordx4 %s, v%d, %s, s%d offen offset:64 %s" % (v(XR + 4, 4), vXO, s(rX, 4), sXO, cfg.xpol), tag="xt")
        a("buffer_load_dwordx2 %s, v%d, %s, s%d offen offset:128 %s" % (v(XR + 8, 2), vXO4, s(rX, 4), sXO, cfg.xpol), tag="xt")

    for n in range(NR1):
        hload(n)
    lds_arrive(12, 12, 13)
    sGS, sGC = sOWE, sOAE
    vEX = [WREG1 + k for k in range(4)]
    vC = WREG1 + 4
    c0 = -2.0 * math.sqrt(2.0 / math.pi) * math.log2(math.e)
    c1 = c0 * 0.044715
    def xwrite(i):
        for q in range(4):
            a("ds_write_b128 v%d, %s offset:%d" % (vEX[0], v(ACC1 + 16 * i + 4 * q, 4), (i - 1) * 4096 + q * 1024))
    fifo = []
    def fill(k):
        for _ in range(k):
            if fifo:
                a.play(fifo.pop(0))
    def need(tag):
        while any(it[2] == tag for it in fifo):
            fill(1)
    def setup8():
        tr_flip()
        a("v_lshlrev_b32 v10, 4, v0")
        a("v_add_u32 v%d, s%d, v10" % (vEX[0], sWB))
        for k in range(1, 4):
            a("s_xor_b32 s%d, s%d, %d" % (sT0, sWV, k))
            a("s_mul_i32 s%d, s%d, %d" % (sT0, sT0, WSZ))
            a("s_add_u32 s%d, s%d, %d" % (sT0, sT0, WOFF))
            a("v_add_u32 v%d, s%d, v10" % (vEX[k], sT0))
        a("v_mov_b32 v%d, %s" % (vC, f32(c1)))
        a("v_mov_b32 v%d, %s" % (vC + 1, f32(c0 if not cfg.dupc else c1)))
        if cfg.dupc:
            a("v_mov_b32 v%d, %s" % (vC + 2, f32(c0)))
            a("v_mov_b32 v%d, %s" % (vC + 3, f32(c0)))
    def setup10():
        a("s_mul_i32 s%d, s%d, %d" % (sGS, sFT, 8 * 10240))
        a("s_lshl_b32 s%d, s%d, 10" % (sT2, sDT))
        a("s_add_u32 s%d, s%d, s%d" % (sGS, sGS, sT2))
        a("s_add_u32 s%d, s%d, s%d" % (sGS, sGS, sD[0]))
        a("s_add_u32 s%d, s%d, 0x%x" % (sGS, sGS, GB))
        a("s_add_u32 s96, s%d, %d" % (sGS, 4 * 10240))
        a("s_lshl_b32 s%d, s%d, 2" % (sT2, sDT))
        a("s_add_u32 s%d, s%d, s%d" % (sT2, sT2, sWV))
        a("s_mul_i32 s%d, s%d, 52" % (sT2, sT2))
        a("s_lshr_b32 s%d, s%d, 8" % (sT2, sT2))
        if not cfg.ssig:
            group_ids(vPO, 13, sT2, 10)
        a("s_mul_i32 s%d, s%d, 43" % (sGC, sFT))
        a("s_lshr_b32 s%d, s%d, 8" % (sGC, sGC))
        a("s_lshl_b32 s%d, s%d, 7" % (sGC, sGC))
        a("s_add_u32 s%d, s%d, 0x%x" % (sGC, sGC, MB + 512))
        if cfg.ssig:
            a("s_lshl_b32 s%d, s%d, 13" % (sT2, sT2))
            a("s_add_u32 s%d, s%d, s%d" % (sGC, sGC, sT2))
    def refill(i, wr):
        a.wait_vm("w%d" % i)
        tr_step(i % 7, wr, "t%d" % i)
    def late15():
        a.wait_lg("t8")
        dma1(15)
        w2_setup()
    for i in range(16):
        for dd in range(4):
            n = 4 * i + dd
            st_, di = SEQ1[n]
            wr = WREG1 + 16 * (st_ & 7)
            if st_ >= 8:
                need("t%d" % st_)
                a.wait_lg("t%d" % st_)
            nxt = a.capture(hload, n + NR1) if (n + NR1 < 64 and not cfg.noload) else []
            a.wait_vm("h%d" % n)
            for fi in range(4):
                acc = v(ACC1 + 16 * di + 4 * fi, 4)
                if not cfg.nomfma or i == 0:
                    a("v_mfma_f32_16x16x32_bf16 %s, %s, %s, %s" % (acc, v(wr + 4 * fi, 4), v(STG1 + 4 * (n % NR1), 4), acc if (i or di == 0) else "0"))
                if fi < 3:
                    k = cfg.fillk
                    while len(nxt) > 1 and k:
                        a.play(nxt.pop(0)); k -= 1
                    fill(k)
            for it in nxt:
                a.play(it)
            if not nxt:
                fill(cfg.fillk)
            if n == cfg.e0at:
                fill(1000)
                for k in range(cfg.e0):
                    fifo += a.capture(dma2, k)
            x0 = 62 - L1
            if x0 <= n < x0 + 3:
                xwrite(n - x0 + 1)
            if n == x0 + 2 and L1 > 1:
                lds_arrive(0, 12, 13)
        if i in (0, 7) and cfg.fine:
            stamp(24 + (i + 1) // 4)
        if i < 8:
            fifo += a.capture(refill, i + 8, WREG1 + 16 * i)
        if P1 + i < 15:
            fifo += a.capture(dma1, P1 + i)
        if i == max(1, 15 - P1):
            fifo += a.capture(late15)
        if i == 10:
            fifo += a.capture(setup10)
        if i == cfg.psat:
            fill(1000)
            lds_arrive(56, 12, 13)
        if i == 8:
            fifo += a.capture(setup8)
        if i == 9:
            fifo += a.capture(xt_setup)
    fill(1000)
    if cfg.pW != cfg.pG:
        a("s_setprio %d" % cfg.pW)
    stamp(5)
    if L1 == 1:
        a.drain_lg()
        lds_arrive(0, 12, 13)
    if cfg.e2:
        a.wait_vm("u1")
        tr2(0); tr2(1)
    lds_wait(0, 4, 12, 13)
    stamp(12)
    a.label("L_ep1")
    for q in range(4):
        for i in range(1, 4):
            a("ds_read_b128 %s, v%d offset:%d" % (v(ACC1 + 16 * i + 4 * q, 4), vEX[i], (i - 1) * 4096 + q * 1024), tag="r%d" % q)
    def _e1():
        for k in range(cfg.e0, cfg.e0 + cfg.e1):
            dma2(k)
        if cfg.e2 == 1:
            dma2(4); dma2(5)
    if not cfg.w7dma:
        guard(_e1)
    def op2(name, d, x, y, n):
        if cfg.nopk:
            for k in range(n):
                a("v_%s_f32 v%d, v%d, v%d" % (name, d + k, x + k, y + k))
        else:
            for k in range(0, n, 2):
                a("v_pk_%s_f32 %s, %s, %s" % (name, v(d + k, 2), v(x + k, 2), v(y + k, 2)))
    U_, T_, P_ = ACC1, ACC1 + 16, STG1
    for hf in range(2):
        o = 8 * hf
        a.wait_lg("r%d" % (2 * hf + 1))
        if hf == 1:
            guard(lds_arrive, 4, 12, 13)
            if cfg.e2 == 2:
                dma2(4); dma2(5)
        op2("add", U_ + o, U_ + o, ACC1 + 16 + o, 8)
        op2("add", ACC1 + 32 + o, ACC1 + 32 + o, ACC1 + 48 + o, 8)
        op2("add", U_ + o, U_ + o, ACC1 + 32 + o, 8)
        op2("mul", T_ + o, U_ + o, U_ + o, 8)
        if cfg.nopk:
            for k in range(8):
                a("v_fma_f32 v%d, v%d, v%d, v%d" % (T_ + o + k, T_ + o + k, vC, vC + (2 if cfg.dupc else 1)))
        else:
            for k in range(0, 8, 2):
                if cfg.dupc:
                    a("v_pk_fma_f32 %s, %s, %s, %s" % (v(T_ + o + k, 2), v(T_ + o + k, 2), v(vC, 2), v(vC + 2, 2)))
                else:
                    a("v_pk_fma_f32 %s, %s, %s, %s op_sel:[0,0,1] op_sel_hi:[1,0,1]" % (v(T_ + o + k, 2), v(T_ + o + k, 2), v(vC, 2), v(vC, 2)))
        op2("mul", T_ + o, T_ + o, U_ + o, 8)
        for k in range(8):
            a("v_exp_f32 v%d, v%d" % (T_ + o + k, T_ + o + k))
        if cfg.nopk:
            for k in range(8):
                a("v_add_f32 v%d, 1.0, v%d" % (T_ + o + k, T_ + o + k))
        else:
            for k in range(0, 8, 2):
                a("v_pk_add_f32 %s, %s, 1.0 op_sel_hi:[1,0]" % (v(T_ + o + k, 2), v(T_ + o + k, 2)))
        for k in range(8):
            a("v_rcp_f32 v%d, v%d" % (T_ + o + k, T_ + o + k))
        op2("mul", T_ + o, T_ + o, U_ + o, 8)
        for k in range(4):
            a("v_cvt_pk_bf16_f32 v%d, v%d, v%d" % (P_ + 4 * hf + k, T_ + o + 2 * k, T_ + o + 2 * k + 1))
        if hf == 1:
            dry_exit("L_ep2")
            a("buffer_store_dwordx4 %s, v%d, %s, s%d offen sc1" % (v(P_ + 4 * hf, 4), vFO, s(rWS, 4), 96), tag="gs")
        else:
            guard(lambda: a("buffer_store_dwordx4 %s, v%d, %s, s%d offen sc1" % (v(P_, 4), vFO, s(rWS, 4), sGS), tag="gs"))
    lds_arrive(28, 12, 13)
    stamp(6)
    if cfg.e2:
        assert cfg.e0 == 2 and cfg.e1 == 2 and cfg.ssig and cfg.lateinit
        lds_wait(4, 4, 12, 13)
        dma2(6); dma2(7)
        a.wait_vm("u5")
        for k in range(2, 6):
            tr2(k)
        a.drain_lg()
        a.wait_vm("gs")
        sig8(sGC, 1024)
        a.smem = True
        stamp(7)
        xt_loads()
        dma2(8); dma2(9)
        a.wait_vm("xt")
        a.drain_lg()
        mbox(512)
        spoll_pre(sT1)
        dma2(10); dma2(11)
    elif cfg.w7dma == 2:
        assert cfg.e0 == 2 and cfg.ssig
        lds_wait(4, 4, 12, 13)
        dma2(4); dma2(5)
        a.wait_vm("u1")
        tr2(0); tr2(1)
        lds_wait(52, 1, 12, 13)
        tr2(2); tr2(3)
        a.drain_lg()
        a.wait_vm("gs")
        sig8(sGC, 1024)
        a.smem = True
        stamp(7)
        xt_loads()
        dma2(6); dma2(7)
        a.wait_vm("u4"); tr2(4)
        dma2(8)
        a.wait_vm("u5"); tr2(5)
        dma2(9)
        a.wait_vm("xt")
        acc2_init()
        a.drain_lg()
        mbox(512)
        spoll_pre(sT1)
        dma2(10); dma2(11)
    elif cfg.w7dma:
        assert cfg.e0 == 2 and cfg.ssig
        a.wait_vm("u1")
        tr2(0); tr2(1)
        a.drain_lg()
        a.wait_vm("gs")
        sig8(sGC, 1024)
        a.smem = True
        stamp(7)
        xt_loads()
        dma2(7); dma2(8)
        lds_wait(52, 1, 12, 13)
        tr2(2); tr2(3)
        a.wait_vm("xt")
        acc2_init()
        a.drain_lg()
        dma2(9); dma2(10)
        lds_wait(52, 2, 12, 13)
        tr2(4); tr2(5)
        a.drain_lg()
        mbox(512)
        spoll_pre(sT1)
        dma2(11)
    else:
        ne = cfg.e0 + cfg.e1
        for k in range(ne, 4):
            dma2(k)
        lds_wait(4, 4, 12, 13)
        dma2(4); dma2(5)
        if ne:
            a.wait_vm("u%d" % (ne - 1))
            for k in range(ne):
                tr2(k)
        if cfg.ssig:
            a.drain_lg()
        a.wait_vm("gs")
        if cfg.ssig:
            sig8(sGC, 1024)
            a.smem = True
        else:
            group_add(vPO, sGC, 13)
        stamp(7)
        xt_loads()
        dma2(6)
        for k in range(ne, 4):
            a.wait_vm("u%d" % k); tr2(k)
        a.wait_lg("q0"); dma2(7)
        a.wait_vm("u4"); tr2(4)
        a.wait_lg("q1"); dma2(8)
        a.wait_vm("u5"); tr2(5)
        a.wait_lg("q2"); dma2(9)
        a.wait_vm("xt")
        if not cfg.lateinit:
            acc2_init()
        a.drain_lg()
        mbox(512)
        spoll_pre(sT1)
        dma2(10); dma2(11)
    vm_join = list(a.vm)
    a("s_branch L_g2_pre")
    a.label("L_g2_pre_nog1")
    a.vm = []; a.lg = []
    if cfg.xnlate == 2:
        lds_arrive(40, 12, 13)
    if cfg.nagg == 8:
        a("s_cmp_lg_u32 s%d, 31" % sJ)
        a("s_cbranch_scc1 L_noagg_h")
    a("v_lshlrev_b32 v%d, %d, v0" % (vPO, cfg.fsh))
    a("s_lshl_b32 s%d, s%d, %d" % (sT1, sWV, 6 + cfg.fsh))
    a("s_add_u32 s%d, s%d, 0x%x" % (sT1, sT1, HF))
    a("v_lshlrev_b32 v12, 13, v0")
    a("v_mov_b32 v13, s%d" % sTAG)
    a("s_lshl_b32 s%d, s%d, 3" % (sT2, sX))
    a("s_add_u32 s%d, s%d, s%d" % (sT2, sT2, sWV))
    a("s_lshl_b32 s%d, s%d, 7" % (sT2, sT2))
    a("s_add_u32 s%d, s%d, 0x%x" % (sT2, sT2, MB))
    if cfg.nagg == 16:
        a("s_and_b32 s%d, s%d, 1" % (sT3, sJ))
        a("s_lshl_b32 s%d, s%d, 17" % (sT3, sT3))
        a("s_add_u32 s%d, s%d, s%d" % (sT2, sT2, sT3))
    poll([vPO], [sT1], vPD, sleep=cfg.asleep)
    a("s_mov_b64 exec, 0x%x" % (0xffffffff if cfg.nagg == 8 else 0xffff))
    a("buffer_store_dword v13, v12, %s, s%d offen sc1" % (s(rWS, 4), sT2))
    a("s_mov_b64 exec, -1")
    stamp(13)
    if cfg.xnlate:
        a("s_add_u32 s%d, s%d, 0x%x" % (sT1, sT1, XF2 - HF))
        poll([vPO], [sT1], vPD, sleep=cfg.asleep)
        a("s_mov_b64 exec, 0x%x" % (0xffffffff if cfg.nagg == 8 else 0xffff))
        a("buffer_store_dword v13, v12, %s, s%d offen offset:64 sc1" % (s(rWS, 4), sT2))
        a("s_mov_b64 exec, -1")
    a.label("L_noagg_h")
    a.vm = []
    if cfg.touch2 == 6:
        a("v_lshrrev_b32 v8, 2, v0")
        a("v_lshlrev_b32 v8, 12, v8")
        a("v_and_b32 v9, 3, v0")
        a("v_lshl_add_u32 v8, v9, 7, v8")
        a("s_mul_i32 s%d, s%d, 24" % (sT1, sWV))
        a("s_add_u32 s%d, s%d, s%d" % (sT1, sT1, sJ))
        a("s_sub_u32 s%d, s%d, 30" % (sT1, sT1))
        a("s_lshl_b32 s%d, s%d, 16" % (sT1, sT1))
        a("s_lshl_b32 s%d, s%d, 9" % (sT2, sX))
        a("s_add_u32 s%d, s%d, s%d" % (sT1, sT1, sT2))
        a("s_mov_b32 s%d, s%d" % (sT3, sT1))
        hwait(2)
        lds_arrive(12, 12, 13)
        lds_wait(24, 1, 12, 13, sleep=2)
        for k in range(cfg.tn):
            a("buffer_load_dword v9, v8, %s, s%d offen %s" % (s(rW2, 4), sT3, cfg.t2pol), tag="tw%d" % k)
            a("s_add_u32 s%d, s%d, %d" % (sT3, sT3, 32 * 4096))
            if k >= cfg.tdep:
                a.wait_vm("tw%d" % (k - cfg.tdep))
        a.drain_vm()
    else:
        hwait(4)
        lds_arrive(12, 12, 13)
        if cfg.touch2 == 7:
            lds_wait(12, 4, 12, 13, sleep=2)
            touch_w2s()
            touch_w2i()
    lds_wait(12, 4, 12, 13, sleep=2)
    a("s_setprio 2")
    xt_setup()
    xt_loads()
    w2_setup()
    tr_flip()
    if cfg.e2:
        for k in range(4):
            dma2(k)
        a.drain_vm()
        for k in range(4):
            tr2(k)
        a.drain_lg()
        for k in range(4, 11):
            dma2(k)
            a.wait_vm("u%d" % (k - 1))
        tr2(4); tr2(5)
        a.drain_lg()
        dma2(11)
    else:
        for k in range(7):
            dma2(k)
            if k:
                a.wait_vm("u%d" % (k - 1))
        for k in range(6):
            tr2(k)
        if not cfg.lateinit:
            acc2_init()
        a.drain_lg()
        for k in range(7, 12):
            dma2(k)
            a.wait_vm("u%d" % (k - 1))
    a.drain_vm()
    mbox(512)
    spoll_pre(sT1)
    a.label("L_g2_pre")
    a.vm = list(vm_join); a.lg = []
    stamp(8)
    a("s_mul_i32 s%d, s%d, %d" % (sOAB, sWV, 48 * 10240))
    a("s_mul_i32 s%d, s%d, 1280" % (sT0, sDT2))
    a("s_add_u32 s%d, s%d, s%d" % (sOAB, sOAB, sT0))
    a("s_add_u32 s%d, s%d, 0x%x" % (sOAB, sOAB, GB))
    spoll(sT1, cfg.psleep, target=30, pre=True)
    if cfg.pW != cfg.pG:
        a("s_setprio %d" % cfg.pG)
    stamp(9)

    def gload(n):
        mi = n % 5
        if mi == 0:
            setoff(sOA, sOAB, sORD2, n // 5, 4 * 10240)
        a("buffer_load_dwordx4 %s, v%d, %s, s%d offen offset:%d %s" % (v(STG2 + 4 * (n % NR2), 4), vFO, s(rWS, 4), sOA, 256 * mi, cfg.apol), tag="g%d" % n)

    for n in range(NR2):
        if n == 13 and cfg.lateinit:
            acc2_init()
        gload(n)
    assert NR2 > 13 or not cfg.lateinit
    vE2 = [8, 10, 11, 12, 13]
    def setup6():
        a("v_lshlrev_b32 v7, 4, v0")
        a("v_add_u32 v%d, s%d, v7" % (vE2[0], sWB))
        for k in range(1, 4):
            a("s_xor_b32 s%d, s%d, %d" % (sT0, sWV, k))
            a("s_mul_i32 s%d, s%d, %d" % (sT0, sT0, WSZ))
            a("s_add_u32 s%d, s%d, %d" % (sT0, sT0, WOFF))
            a("v_add_u32 v%d, s%d, v7" % (vE2[k], sT0))
        a("v_lshrrev_b32 v7, 2, v0")
        a("v_lshlrev_b32 v7, 7, v7")
        a("v_and_b32 v14, 3, v0")
        a("v_lshl_add_u32 v7, v14, 3, v7")
        a("s_lshl_b32 s%d, s%d, 5" % (sT0, sWV))
        a("s_add_u32 s%d, s%d, %d" % (sT0, sT0, RY))
        a("v_add_u32 v%d, s%d, v7" % (vE2[4], sT0))
    setup6()
    held = []
    assert cfg.L2 <= NR2
    for i in range(12):
        wr = WREG2 + 16 * (i % 6)
        if i >= 6:
            need("q%d" % i)
            a.wait_lg("q%d" % i)
        for mi in range(5):
            n = 5 * i + mi
            nxt = a.capture(gload, n + NR2) if (n + NR2 < 60 and not cfg.noload) else []
            a.wait_vm("g%d" % n)
            post = cfg.L2 > 1 and n >= 60 - cfg.L2
            for x, ni in enumerate((1, 2, 3, 0) if (i == 11 or post) else range(4)):
                acc = v(ACC2 + 20 * ni + 4 * mi, 4)
                txt = "v_mfma_f32_16x16x32_bf16 %s, %s, %s, %s" % (acc, v(STG2 + 4 * (n % NR2), 4), v(wr + 4 * ni, 4), acc if (i or ni == 0) else "0")
                if post and ni == 0:
                    held.append(txt)
                elif not cfg.nomfma or i == 0:
                    a(txt)
                if x < 3:
                    k = cfg.fillk
                    while len(nxt) > 1 and k:
                        a.play(nxt.pop(0)); k -= 1
                    fill(k)
                if i == 11 and mi >= 2 and x < 3:
                    a("ds_write_b128 v%d, %s offset:%d" % (vE2[0], v(ACC2 + 20 * (x + 1) + 4 * (mi - 2), 4), x * 5120 + (mi - 2) * 1024))
            for it in nxt:
                a.play(it)
        if i in (0, 5) and cfg.fine:
            stamp(28 + (i + 1) // 3)
        if i + 6 < 12:
            fifo += a.capture(tr_step, slot2(i + 6), wr, "q%d" % (i + 6))
    fill(1000)
    stamp(10)
    for q in (3, 4):
        for k in range(1, 4):
            if held:
                a(held.pop(0))
            a("ds_write_b128 v%d, %s offset:%d" % (vE2[0], v(ACC2 + 20 * k + 4 * q, 4), (k - 1) * 5120 + q * 1024))
    hold_after = held[len(held) // 2:]
    for t_ in held[:len(held) // 2]:
        a(t_)
    a.drain_lg()
    a("s_barrier")
    a.label("L_ep2")
    YR, TY, TP = WREG2 + 40, WREG2, WREG2 + 20
    def _ya():
        for mi in range(5):
            a("ds_read_b64_tr_b16 %s, v%d offset:%d" % (v(YR + 2 * mi, 2), vE2[4], mi * 2048), tag="ya")
    guard(_ya)
    for q in range(5):
        for k in range(1, 4):
            a("ds_read_b128 %s, v%d offset:%d" % (v(ACC2 + 20 * k + 4 * q, 4), vE2[k], (k - 1) * 5120 + q * 1024), tag="r%d" % q)
    for t_ in hold_after:
        a(t_)
    a.wait_lg("ya")
    for k in range(10):
        a("v_lshlrev_b32 v%d, 16, v%d" % (TY + 2 * k, YR + k))
        a("v_and_b32 v%d, s%d, v%d" % (TY + 2 * k + 1, sMASK, YR + k))
    def pk2(d, x, y, n):
        for k in range(0, n, 2):
            a("v_pk_add_f32 %s, %s, %s" % (v(d + k, 2), v(x + k, 2), v(y + k, 2)))
    pk2(ACC2, ACC2, TY, 20)
    pol = (" " + cfg.out_pol) if cfg.out_pol else ""
    for (o, n, last) in ((0, 8, 1), (8, 8, 3), (16, 4, 4)):
        a.wait_lg("r%d" % last)
        pk2(ACC2 + o, ACC2 + o, ACC2 + 20 + o, n)
        pk2(ACC2 + 40 + o, ACC2 + 40 + o, ACC2 + 60 + o, n)
        pk2(ACC2 + o, ACC2 + o, ACC2 + 40 + o, n)
        for k in range(n // 2):
            a("v_cvt_pk_bf16_f32 v%d, v%d, v%d" % (TP + o // 2 + k, ACC2 + o + 2 * k, ACC2 + o + 2 * k + 1))
        if n == 8:
            guard(lambda: a("buffer_store_dwordx4 %s, v%d, %s, s%d offen offset:%d%s" % (v(TP + o // 2, 4), vXO, s(rOUT, 4), sXO, 8 * o, pol)))
        else:
            dry_exit("L_dry_ret")
            a("buffer_store_dwordx2 %s, v%d, %s, s%d offen offset:128%s" % (v(TP + 8, 2), vXO4, s(rOUT, 4), sXO, pol))
    stamp(11)
    if cfg.hold:
        a("s_waitcnt vmcnt(0)")
        a.label("L_hold")
        a("s_memrealtime s[100:101]")
        a("s_waitcnt lgkmcnt(0)")
        a("s_sub_u32 s100, s100, s98")
        if cfg.hx >= 0:
            a("s_sub_u32 s100, s100, s99")
        a("s_cmp_lt_u32 s100, %d" % (cfg.hold * 100))
        a("s_cbranch_scc1 L_hold")
    finish()

    a.label("L_aux_main")
    a.vm = list(aux_vm); a.lg = []
    a("s_and_b32 s%d, s%d, 1" % (sT0, sJ))
    a("s_add_u32 s%d, s%d, s%d" % (sT0, sT0, sWV))
    a("s_cmp_ge_u32 s%d, 7" % sT0)
    a("s_cbranch_scc1 %s" % ("L_w6" if cfg.stouch else "L_aux_done"))
    F0 = 64
    if cfg.ln4 and cfg.lateb2 == 1:
        a("s_barrier")
    a.wait_vm("p")
    for k in range(6):
        a("v_lshlrev_b32 v%d, 16, v%d" % (F0 + k, PRM0 + k))
        a("v_and_b32 v%d, s%d, v%d" % (F0 + 6 + k, sMASK, PRM0 + k))
        a("v_lshlrev_b32 v%d, 16, v%d" % (F0 + 12 + k, PRM1 + k))
    vDT, vDS = 82, 83
    a("v_lshlrev_b32 v%d, 16, v%d" % (vDT, vLDT))
    a("v_lshlrev_b32 v%d, 16, v%d" % (vDS, vDSK))
    a("v_mul_f32 v%d, %s, v%d" % (vDT, f32(math.log2(math.e)), vDT))
    a("v_exp_f32 v%d, v%d" % (vDT, vDT))
    bfround(vDT)
    a("s_setprio %d" % cfg.pK)
    stamp(3)

    E = {k: 84 + 2 * (k - 1) for k in range(1, 8)}
    P = {k: 98 + 2 * (k - 1) for k in range(1, 9)}
    Q, Q2 = 114, 116
    Y = [118, 120, 122, 124]
    TT = [126, 128, 130, 132]
    CV = list(range(134, 142))
    YFR, XFR, DK = 144, 160, 208
    vFA = 220
    if cfg.kv3:
        assert cfg.kg2 == 3 and cfg.sepu
        DK, vFA = 176, 188
    cvi = [0]
    def cmul1(d, x, y):
        a("v_pk_mul_f32 %s, %s, %s op_sel:[0,0] op_sel_hi:[0,1]" % (v(d, 2), v(x, 2), v(y, 2)))
    def cmul2(d, x, y):
        a("v_pk_fma_f32 %s, %s, %s, %s op_sel:[1,1,0] op_sel_hi:[1,0,1] neg_lo:[1,0,0]" % (v(d, 2), v(x, 2), v(y, 2), v(d, 2)))
    if cfg.kg2 == 3:
        CV = list(range(16, 64)) + list(range(224, 233))
        if cfg.kv3:
            CV = list(range(16, 64)) + list(range(189, 197))
    def put(r, row, neg=False):
        c = CV[cvi[0] % len(CV)]; cvi[0] += 1
        a("v_cvt_pk_bf16_f32 v%d, v%d, %sv%d" % (c, r, "-" if neg else "", r + 1))
        return ("w", c, row)
    def wr(c, row):
        if not cfg.nokw:
            a("ds_write_addtid_b32 v%d offset:%d" % (c, row * 288))
    def group(ops):
        for d, x, y, row, neg in ops:
            cmul1(d, x, y)
        for d, x, y, row, neg in ops:
            cmul2(d, x, y)
        pend = []
        for d, x, y, row, neg in ops:
            if row is not None:
                pend.append(put(d, row, neg))
        for _, c, row in pend:
            wr(c, row)

    a("s_mov_b32 m0, s%d" % sRB)
    a("v_and_b32 v1, 15, v0")
    a("v_mul_u32_u24 v1, 288, v1")
    a("v_and_b32 v%d, 48, v0" % vFA)
    a("v_add3_u32 v%d, v%d, v1, s%d" % (vFA, vFA, sRB))
    for k in range(12):
        a("v_mov_b32 v%d, 0" % (DK + k))
    a("v_mov_b32 v143, 0x3f80")
    if cfg.kg2 in (1, 2):
        YR0 = 25
        pend = []
        def drip(n):
            for _ in range(n):
                if pend:
                    a.play(pend.pop(0))
        def out(r, row, neg=False):
            def f():
                _, c, _r = put(r, row, neg)
                f.c = c
            it = a.capture(f)
            return it, a.capture(wr, f.c, row)
        def grp(ops):
            for d, x, y, row, neg in ops:
                cmul1(d, x, y); drip(1)
            for d, x, y, row, neg in ops:
                cmul2(d, x, y); drip(1)
            drip(100)
            cv, wrs = [], []
            for d, x, y, row, neg in ops:
                if row is not None:
                    c_, w_ = out(d, row, neg)
                    cv += c_; wrs += w_
            seq_ = cv[:1]
            for k in range(len(wrs)):
                seq_ += cv[k + 1:k + 2] + [wrs[k]]
            pend.extend(seq_)
        T2 = TT + [224, 226, 228, 230]
        AN = 232
        late = []
        def dl(n):
            for _ in range(n):
                if late:
                    a.play(late.pop(0))
        def mf(dk, xo, tag):
            a.wait_lg(tag)
            for st in range(4):
                a("v_mfma_f32_16x16x32_bf16 %s, %s, %s, %s" % (v(dk, 4), v(XFR + xo + 4 * st, 4), v(YFR + 4 * st, 4), v(dk, 4)))
        if cfg.kg2 == 2:
            a("s_mov_b32 s%d, 3" % sT3)
            a.label("L_kgen")
            a.lg = []
        for rd in range(3 if cfg.kg2 == 1 else 1):
            Fp = F0 + 6 * rd
            a("v_pk_mul_f32 %s, %s, v[82:83] op_sel_hi:[1,0]" % (v(AN, 2), v(Fp, 2)))
            a("v_pk_mul_f32 %s, %s, v[82:83] op_sel_hi:[1,0]" % (v(AN + 2, 2), v(Fp + 2, 2)))
            a("v_mul_f32 v%d, %s, v%d" % (AN, f32(math.log2(math.e)), AN))
            a("v_mul_f32 v%d, 0.15915494, v%d" % (AN + 1, AN + 1))
            cmul1(Y[0], Fp + 4, AN + 2)
            anchors = [(E[1], 1.0), (Q, 8.0), (P[1], 128.0)]
            for idx, (d, k) in enumerate(anchors):
                m_, f_ = AN + 4 + 2 * idx, AN + 5 + 2 * idx
                if k == 1.0:
                    a("v_exp_f32 v%d, v%d" % (m_, AN))
                    a("v_fract_f32 v%d, v%d" % (f_, AN + 1))
                else:
                    a("v_mul_f32 v%d, %s, v%d" % (m_, f32(k), AN))
                    a("v_mul_f32 v%d, %s, v%d" % (f_, f32(k), AN + 1))
                    a("v_exp_f32 v%d, v%d" % (m_, m_))
                    a("v_fract_f32 v%d, v%d" % (f_, f_))
                dl(1)
            cmul2(Y[0], Fp + 4, AN + 2)
            for idx, (d, k) in enumerate(anchors):
                a("v_cos_f32 v%d, v%d" % (d, AN + 5 + 2 * idx)); dl(1)
                a("v_sin_f32 v%d, v%d" % (d + 1, AN + 5 + 2 * idx)); dl(1)
            dl(100)
            for idx, (d, k) in enumerate(anchors):
                a("v_pk_mul_f32 %s, %s, %s op_sel_hi:[1,0]" % (v(d, 2), v(d, 2), v(AN + 4 + 2 * idx, 2)))
            pend.extend(a.capture(wr, 143, 0))
            for r_, row, neg in ((Y[0], YR0, True), (E[1], 1, False), (P[1], 8, False)):
                c_, w_ = out(r_, row, neg)
                pend.extend(c_ + w_)
            grp([(Y[1], Y[0], Q, YR0 + 1, True), (Q2, Q, Q, None, False), (E[2], E[1], E[1], 2, False), (P[2], P[1], P[1], 16, False)])
            grp([(Y[2], Y[0], Q2, YR0 + 2, True), (Y[3], Y[1], Q2, YR0 + 3, True), (E[3], E[2], E[1], 3, False), (E[4], E[2], E[2], 4, False)])
            grp([(Y[0], Y[2], Q2, YR0 + 4, True), (Y[1], Y[3], Q2, YR0 + 5, True), (E[5], E[4], E[1], 5, False), (E[6], E[4], E[2], 6, False)])
            grp([(Y[2], Y[0], Q2, YR0 + 6, True), (Y[3], Y[1], Q2, YR0 + 7, True), (E[7], E[4], E[3], 7, False), (P[3], P[2], P[1], 20, False)])
            grp([(Y[0], Y[2], Q2, YR0 + 8, True), (Y[1], Y[3], Q2, YR0 + 9, True), (T2[0], P[1], E[1], 9, False), (T2[1], P[1], E[2], 10, False)])
            grp([(Y[2], Y[0], Q2, YR0 + 10, True), (Y[3], Y[1], Q2, YR0 + 11, True), (T2[2], P[1], E[3], 11, False), (T2[3], P[1], E[4], 12, False)])
            grp([(Y[0], Y[2], Q2, YR0 + 12, True), (Y[1], Y[3], Q2, YR0 + 13, True), (T2[0], P[1], E[5], 13, False), (T2[1], P[1], E[6], 14, False)])
            grp([(Y[2], Y[0], Q2, YR0 + 14, True), (Y[3], Y[1], Q2, YR0 + 15, True), (T2[2], P[1], E[7], 15, False), (P[4], P[2], P[2], 24, False)])
            def rdf(dst, row0, tag):
                for st in range(4):
                    a("ds_read_b128 %s, v%d offset:%d" % (v(dst + 4 * st, 4), vFA, row0 * 288 + 64 * st), tag=tag)
            pend.extend(a.capture(rdf, YFR, YR0, "yf") + a.capture(rdf, XFR, 0, "x0"))
            grp([(T2[4], P[2], E[2], 17, False), (T2[5], P[2], E[4], 18, False), (T2[6], P[2], E[6], 19, False), (P[5], P[4], P[1], 26, False)])
            grp([(T2[0], P[3], E[2], 21, False), (T2[1], P[3], E[4], 22, False), (T2[2], P[3], E[6], 23, False), (P[6], P[4], P[2], 28, False)])
            grp([(P[7], P[4], P[3], 30, False), (P[8], P[4], P[4], 32, False), (T2[4], P[4], E[4], 25, False), (T2[5], P[5], E[4], 27, False)])
            grp([(T2[0], P[6], E[4], 29, False), (T2[1], P[7], E[4], 31, False), (T2[2], P[8], P[1], 33, False), (T2[3], P[8], P[2], 34, False)])
            pend.extend(a.capture(rdf, XFR + 16, 16, "x1"))
            grp([(T2[4], P[8], P[3], 35, False), (T2[5], P[8], P[4], 36, False), (T2[6], P[8], P[5], 37, False)])
            grp([(T2[0], P[8], P[6], 38, False), (T2[1], P[8], P[7], 39, False), (T2[2], P[8], P[8], 40, False)])
            m0_ = a.capture(mf, DK, 0, "x0")
            while pend or m0_:
                drip(1)
                if m0_:
                    a.play(m0_.pop(0))
            rdf(XFR + 32, 32, "x2")
            late.extend(a.capture(mf, DK + 4, 16, "x1") + a.capture(mf, DK + 8, 32, "x2"))
        if cfg.kg2 == 2:
            for k in range(12):
                a("v_mov_b32 v%d, v%d" % (F0 + k, F0 + 6 + k))
                if k % 2:
                    dl(1)
        dl(100)
        if cfg.kg2 == 2:
            a("s_sub_u32 s%d, s%d, 1" % (sT3, sT3))
            a("s_cmp_lg_u32 s%d, 0" % sT3)
            a("s_cbranch_scc1 L_kgen")
    else:
        a("s_mov_b32 s%d, 3" % sT3)
        a.label("L_kgen")
        a.lg = []
        def round_body():
            a("v_pk_mul_f32 v[126:127], v[64:65], v[82:83] op_sel_hi:[1,0]")
            a("v_pk_mul_f32 v[128:129], v[66:67], v[82:83] op_sel_hi:[1,0]")
            a("v_mul_f32 v126, %s, v126" % f32(math.log2(math.e)))
            a("v_mul_f32 v127, 0.15915494, v127")
            cmul1(Y[0], 68, 128)
            anchors = [(E[1], 1.0), (Q, 8.0), (P[1], 128.0)]
            for idx, (d, k) in enumerate(anchors):
                m_, f_ = 134 + 2 * idx, 135 + 2 * idx
                if k == 1.0:
                    a("v_exp_f32 v%d, v126" % m_)
                    a("v_fract_f32 v%d, v127" % f_)
                else:
                    a("v_mul_f32 v%d, %s, v126" % (m_, f32(k)))
                    a("v_mul_f32 v%d, %s, v127" % (f_, f32(k)))
                    a("v_exp_f32 v%d, v%d" % (m_, m_))
                    a("v_fract_f32 v%d, v%d" % (f_, f_))
            cmul2(Y[0], 68, 128)
            for idx, (d, k) in enumerate(anchors):
                a("v_cos_f32 v%d, v%d" % (d, 135 + 2 * idx))
                a("v_sin_f32 v%d, v%d" % (d + 1, 135 + 2 * idx))
            for idx, (d, k) in enumerate(anchors):
                a("v_pk_mul_f32 %s, %s, %s op_sel_hi:[1,0]" % (v(d, 2), v(d, 2), v(134 + 2 * idx, 2)))
            for k in range(12):
                a("v_mov_b32 v%d, v%d" % (F0 + k, F0 + 6 + k))
            YR0 = 25
            wr(143, 0)
            p_ = [put(Y[0], YR0, True), put(E[1], 1), put(P[1], 8)]
            for _, c, row in p_:
                wr(c, row)
            group([(Y[1], Y[0], Q, YR0 + 1, True), (Q2, Q, Q, None, False), (E[2], E[1], E[1], 2, False), (P[2], P[1], P[1], 16, False)])
            group([(Y[2], Y[0], Q2, YR0 + 2, True), (Y[3], Y[1], Q2, YR0 + 3, True), (E[3], E[2], E[1], 3, False), (E[4], E[2], E[2], 4, False)])
            group([(Y[0], Y[2], Q2, YR0 + 4, True), (Y[1], Y[3], Q2, YR0 + 5, True), (E[5], E[4], E[1], 5, False), (E[6], E[4], E[2], 6, False)])
            group([(Y[2], Y[0], Q2, YR0 + 6, True), (Y[3], Y[1], Q2, YR0 + 7, True), (E[7], E[4], E[3], 7, False), (P[3], P[2], P[1], 20, False)])
            group([(Y[0], Y[2], Q2, YR0 + 8, True), (Y[1], Y[3], Q2, YR0 + 9, True), (TT[0], P[1], E[1], 9, False), (TT[1], P[1], E[2], 10, False)])
            group([(Y[2], Y[0], Q2, YR0 + 10, True), (Y[3], Y[1], Q2, YR0 + 11, True), (TT[0], P[1], E[3], 11, False), (TT[1], P[1], E[4], 12, False)])
            group([(Y[0], Y[2], Q2, YR0 + 12, True), (Y[1], Y[3], Q2, YR0 + 13, True), (TT[0], P[1], E[5], 13, False), (TT[1], P[1], E[6], 14, False)])
            group([(Y[2], Y[0], Q2, YR0 + 14, True), (Y[3], Y[1], Q2, YR0 + 15, True), (TT[0], P[1], E[7], 15, False), (P[4], P[2], P[2], 24, False)])
            for st in range(4):
                a("ds_read_b128 %s, v%d offset:%d" % (v(YFR + 4 * st, 4), vFA, YR0 * 288 + 64 * st), tag="yf")
            for st in range(4):
                a("ds_read_b128 %s, v%d offset:%d" % (v(XFR + 4 * st, 4), vFA, 64 * st), tag="x0")
            group([(TT[0], P[2], E[2], 17, False), (TT[1], P[2], E[4], 18, False), (TT[2], P[2], E[6], 19, False), (P[5], P[4], P[1], 26, False)])
            group([(TT[0], P[3], E[2], 21, False), (TT[1], P[3], E[4], 22, False), (TT[2], P[3], E[6], 23, False), (P[6], P[4], P[2], 28, False)])
            a.wait_lg("x0")
            for st in range(4):
                a("v_mfma_f32_16x16x32_bf16 %s, %s, %s, %s" % (v(DK, 4), v(XFR + 4 * st, 4), v(YFR + 4 * st, 4), v(DK, 4)))
            group([(P[7], P[4], P[3], 30, False), (P[8], P[4], P[4], 32, False), (TT[0], P[4], E[4], 25, False), (TT[1], P[5], E[4], 27, False)])
            group([(TT[0], P[6], E[4], 29, False), (TT[1], P[7], E[4], 31, False), (TT[2], P[8], P[1], 33, False), (TT[3], P[8], P[2], 34, False)])
            for st in range(4):
                a("ds_read_b128 %s, v%d offset:%d" % (v(XFR + 16 + 4 * st, 4), vFA, 16 * 288 + 64 * st), tag="x1")
            group([(TT[0], P[8], P[3], 35, False), (TT[1], P[8], P[4], 36, False), (TT[2], P[8], P[5], 37, False)])
            group([(TT[0], P[8], P[6], 38, False), (TT[1], P[8], P[7], 39, False), (TT[2], P[8], P[8], 40, False)])
            for st in range(4):
                a("ds_read_b128 %s, v%d offset:%d" % (v(XFR + 32 + 4 * st, 4), vFA, 32 * 288 + 64 * st), tag="x2")
            a.wait_lg("x1")
            for st in range(4):
                a("v_mfma_f32_16x16x32_bf16 %s, %s, %s, %s" % (v(DK + 4, 4), v(XFR + 16 + 4 * st, 4), v(YFR + 4 * st, 4), v(DK + 4, 4)))
            a.wait_lg("x2")
            for st in range(4):
                a("v_mfma_f32_16x16x32_bf16 %s, %s, %s, %s" % (v(DK + 8, 4), v(XFR + 32 + 4 * st, 4), v(YFR + 4 * st, 4), v(DK + 8, 4)))
        items = a.capture(round_body)
        if cfg.kg2 == 3:
            isv = lambda it: it[0] == "i" and it[1].startswith("v_") and not it[1].startswith("v_mfma")
            vv = [it for it in items if isv(it)]
            oo = [it for it in items if not isv(it)]
            if cfg.sepu:
                import re as _re
                sets = {0: [], 1: [], 2: [], 3: []}
                seenY = False
                for it in oo:
                    if it[0] == "i" and it[1].startswith("ds_read") and it[2] == "yf":
                        seenY = True
                    if it[0] == "i" and it[1].startswith("ds_write_addtid"):
                        row = int(_re.search(r"offset:(\d+)", it[1]).group(1)) // 288
                        if row >= 25 and not seenY:
                            k, r16 = 0, row - 25
                        else:
                            k, r16 = 1 + row // 16, row % 16
                        sets[k].append(("i", _re.sub(r"offset:\d+", "offset:%d" % (r16 * 288), it[1]), None))
                oo = []
                XS = 0 if cfg.kv3 else 16
                for k, (dst, tg) in enumerate(((YFR, "yf"), (XFR, "x0"), (XFR + XS, "x1"), (XFR + 2 * XS, "x2"))):
                    oo += sets[k]
                    if k >= 2:
                        oo.append(("wait_lg", ("x0", "x1")[k - 2], None))
                        for st in range(4):
                            dk = DK + 4 * (k - 2)
                            oo.append(("i", "v_mfma_f32_16x16x32_bf16 %s, %s, %s, %s" % (v(dk, 4), v(XFR + XS * (k - 2) + 4 * st, 4), v(YFR + 4 * st, 4), v(dk, 4)), None))
                    for st in range(4):
                        oo.append(("i", "ds_read_b128 %s, v%d offset:%d" % (v(dst + 4 * st, 4), vFA, 64 * st), tg))
                oo.append(("wait_lg", "x2", None))
                for st in range(4):
                    oo.append(("i", "v_mfma_f32_16x16x32_bf16 %s, %s, %s, %s" % (v(DK + 8, 4), v(XFR + 2 * XS + 4 * st, 4), v(YFR + 4 * st, 4), v(DK + 8, 4)), None))
            items = vv + oo
        if cfg.kv3:
            for it in vv:
                a.play(it)
            a("s_cmp_lg_u32 s%d, 2" % sT3)
            a("s_cbranch_scc1 L_kL")
            for k, c in enumerate(CV):
                a("v_mov_b32 v%d, v%d" % (197 + k, c))
            a("s_mov_b32 s%d, 1" % sT3)
            a("s_branch L_kgen")
            a.label("L_kL")
            for it in oo:
                a.play(it)
            a("s_sub_u32 s%d, s%d, 1" % (sT3, sT3))
            a("s_cbranch_scc1 L_kend")
            a("s_cmp_lg_u32 s%d, 0" % sT3)
            a("s_cbranch_scc1 L_kgen")
            for k, c in enumerate(CV):
                a("v_mov_b32 v%d, v%d" % (c, 197 + k))
            a("s_branch L_kL")
            a.label("L_kend")
            a("s_nop 7")
        else:
            for it in items:
                a.play(it)
            a("s_sub_u32 s%d, s%d, 1" % (sT3, sT3))
            a("s_cmp_lg_u32 s%d, 0" % sT3)
            a("s_cbranch_scc1 L_kgen")
    a.drain_vm()
    if cfg.fastp:
        a("s_setprio %d" % cfg.xprio)
    stamp(4)
    a("v_and_b32 v16, 15, v0")
    a("v_lshrrev_b32 v17, 4, v0")
    a("s_add_u32 s%d, s%d, %d" % (sT0, sRB, 4624 if cfg.sepu else TB_OFF))
    a("v_lshrrev_b32 v18, 1, v17")
    a("v_lshlrev_b32 v18, 7, v18")
    a("v_and_b32 v19, 1, v17")
    a("v_lshl_add_u32 v18, v19, 2, v18")
    a("v_lshl_add_u32 v18, v16, 3, v18")
    a("v_lshl_add_u32 v18, v18, 2, s%d" % sT0)
    a("v_lshlrev_b32 v19, 2, v16")
    a("v_lshlrev_b32 v20, 1, v16")
    a("v_cmp_gt_u32 vcc, 2, v17")
    a("v_cndmask_b32 v19, v20, v19, vcc")
    a("v_lshl_add_u32 v19, v17, 6, v19")
    a("v_lshl_add_u32 v19, v19, 2, s%d" % sT0)
    a("v_mov_b32 v20, 128")
    a("v_cndmask_b32 v20, v20, 8, vcc")
    a("v_add_u32 v20, v19, v20")
    a("v_lshl_add_u32 v21, v17, 6, v16")
    a("v_lshl_add_u32 v21, v21, 2, s%d" % sT0)
    a("v_lshlrev_b32 v22, 4, v0")
    a("v_add_u32 v22, %d, v22" % ZP_OFF)
    a("v_mov_b32 v23, 4096")
    a("v_cmp_gt_u32 vcc, %d, v0" % (14 if cfg.sepu else 15))
    a("v_cndmask_b32 v22, v23, v22, vcc")
    if cfg.sepu:
        a("v_mov_b32 v23, 4608")
        a("v_cmp_eq_u32 vcc, 14, v0")
        a("v_cndmask_b32 v22, v22, v23, vcc")
    a("v_add_u32 v22, s%d, v22" % sRB)
    for k in range(4):
        a("v_mov_b32 v%d, 0" % (24 + k))
    a("ds_write_b128 v22, v[24:27]")
    a("ds_write_b128 v18, %s" % v(DK, 4))
    a("ds_write_b64 v19, %s offset:1024" % v(DK + 4, 2))
    a("ds_write_b64 v20, %s offset:1024" % v(DK + 6, 2))
    for r in range(4):
        a("ds_write_b32 v21, v%d offset:%d" % (DK + 8 + r, 2048 + 64 * r))
    a("v_lshl_add_u32 v18, v0, 4, s%d" % sT0)
    a("v_lshl_add_u32 v19, v0, 3, s%d" % sT0)
    a("v_subrev_u32 v20, 4, v18")
    a("v_subrev_u32 v21, 4, v19")
    a("v_cmp_eq_u32 vcc, 0, v0")
    a("v_cndmask_b32 v21, v19, v21, vcc")
    a("ds_read_b128 v[28:31], v18", tag="s0")
    a("ds_read_b32 v32, v20", tag="s0")
    a("ds_read_b64 v[34:35], v19 offset:1024", tag="s1")
    a("ds_read_b32 v36, v19 offset:1032", tag="s1")
    a("ds_read_b32 v37, v21 offset:1024", tag="s1")
    a("ds_read_b64 v[38:39], v19 offset:1536", tag="s2")
    a("ds_read_b32 v40, v19 offset:1544", tag="s2")
    a("ds_read_b64 v[42:43], v19 offset:2048", tag="s3")
    a("ds_read_b32 v44, v19 offset:2056", tag="s3")
    a("v_lshlrev_b32 v22, 3, v0")
    a("v_sub_u32 v22, s%d, v22" % sRB)
    a("v_lshlrev_b32 v23, 4, v0")
    a("v_sub_u32 v23, s%d, v23" % sRB)
    a("v_lshlrev_b32 v24, 5, v0")
    a("v_sub_u32 v24, s%d, v24" % sRB)
    a("v_add_u32 v22, %d, v22" % (4096 - 512 - 8))
    a("v_add_u32 v23, %d, v23" % (4096 - 1024 - 16))
    a("v_add_u32 v24, %d, v24" % (4096 - 2048 - 32))
    def pk(d, lo, hi):
        a("v_cvt_pk_bf16_f32 v%d, v%d, v%d" % (d, lo, hi))
    a("v_cndmask_b32 v33, 0, v%d, vcc" % vDS)
    a.wait_lg("s0")
    a("v_add_f32 v28, v28, v33")
    pk(48, 31, 30); pk(49, 29, 28); pk(50, 30, 29); pk(51, 28, 32)
    a("ds_write_b64 v22, v[48:49] offset:512")
    a("ds_write_b64 v22, v[50:51] offset:%d" % (512 + KB_OFF))
    a.wait_lg("s1")
    pk(52, 36, 35); pk(53, 34, 34); pk(54, 35, 34); pk(55, 34, 37)
    a("ds_write_b64 v22, v[52:53]")
    a("ds_write_b64 v22, v[54:55] offset:%d" % KB_OFF)
    a.wait_lg("s2")
    A_, B_, C_ = 38, 39, 40
    pk(56, C_, C_); pk(57, B_, B_); pk(58, B_, A_); pk(59, A_, A_)
    pk(60, C_, B_); pk(61, B_, B_); pk(62, A_, A_); pk(63, A_, A_)
    a("ds_write_b128 v23, v[56:59]")
    a("ds_write_b128 v23, v[60:63] offset:%d" % KB_OFF)
    a.wait_lg("s3")
    A_, B_, C_ = 42, 43, 44
    seqA = [(C_, C_), (C_, C_), (B_, B_), (B_, B_), (B_, B_), (B_, A_), (A_, A_), (A_, A_)]
    seqB = [(C_, C_), (C_, B_), (B_, B_), (B_, B_), (B_, B_), (A_, A_), (A_, A_), (A_, A_)]
    for k, (lo, hi) in enumerate(seqA):
        pk(64 + k, lo, hi)
    for k, (lo, hi) in enumerate(seqB):
        pk(72 + k, lo, hi)
    a("ds_write_b128 v24, v[64:67]")
    a("ds_write_b128 v24, v[68:71] offset:16")
    a("ds_write_b128 v24, v[72:75] offset:%d" % KB_OFF)
    a("ds_write_b128 v24, v[76:79] offset:%d" % (KB_OFF + 16))
    stamp(5)
    if not cfg.keepk and not cfg.fastp:
        a("s_setprio 0")
    if not cfg.helper and not cfg.sepu:
        a.drain_lg()
        lds_arrive(20, 8, 9)
    vUA, vKA = 10, 11
    def conv_addr(sb):
        a("v_and_b32 v12, 15, v0")
        a("v_lshrrev_b32 v13, 4, v0")
        a("v_lshlrev_b32 v13, 1, v13")
        a("v_sub_u32 v12, v12, v13")
        a("v_lshlrev_b32 v12, 4, v12")
        a("s_add_u32 s%d, s%d, %d" % (sT1, sb, U_OFF - 128))
        a("v_add_u32 v%d, s%d, v12" % (vUA, sT1))
        a("v_lshrrev_b32 v12, 1, v0")
        a("v_lshlrev_b32 v12, 2, v12")
        a("v_and_b32 v13, 1, v0")
        a("v_mul_u32_u24 v13, %d, v13" % KB_OFF)
        a("v_add_u32 v12, v12, v13")
        a("s_add_u32 s%d, s%d, %d" % (sT1, sb, KB_OFF + 4092 - 128 - 768))
        a("v_sub_u32 v%d, s%d, v12" % (vKA, sT1))
        for g in range(1, 4):
            a("v_subrev_u32 v%d, %d, v%d" % (vKA + g, 1024 * g, vKA))
    conv_addr(sRB)
    AC, KF, UF, NU = 16, 80, 208, 8
    NT = cfg.NT if cfg.helper else 16
    NH = 16 - NT
    def kfr(lo, hi):
        for idx in range(lo, hi):
            c, tau = idx >> 4, idx & 15
            if tau >= NT:
                continue
            o = 192 - 64 * (tau & 3) + 32 * (1 - c)
            r = KF + 4 * idx
            a("ds_read2_b32 %s, v%d offset0:%d offset1:%d" % (v(r, 2), vKA + (tau >> 2), o, o + 1))
            a("ds_read2_b32 %s, v%d offset0:%d offset1:%d" % (v(r + 2, 2), vKA + (tau >> 2), o + 2, o + 3))
    kfr(0, cfg.kf0 if cfg.fastp else 32)
    a("v_and_b32 v4, 15, v0")
    a("v_lshlrev_b32 v4, 4, v4")
    a("v_lshrrev_b32 v5, 5, v0")
    a("v_lshl_add_u32 v4, v5, 11, v4")
    a("v_bfe_u32 v5, v0, 4, 1")
    a("v_lshl_add_u32 v4, v5, 8, v4")
    group_ids(5, 6, sX, 7)
    a("v_mov_b32 v6, %d" % CNT)
    if cfg.zc:
        for k in range(4):
            a("v_mov_b32 v%d, 0" % (240 + k))
    if cfg.helper:
        a.drain_lg()
        lds_arrive(20, 8, 9)
    if cfg.fastp:
        assert cfg.nox and not cfg.t7 and not cfg.helper
        lds_wait(24, 1, 8, 9, sleep=1)
        a("v_add_u32 v8, s%d, v2" % sRB)
        a("v_lshlrev_b32 v9, 5, v0")
        for k in range(4):
            a("ds_read_b128 %s, v9 offset:%d" % (v(AC + 8 * k, 4), RY + 2048 * k), tag="x%d" % k)
            a("ds_read_b128 %s, v9 offset:%d" % (v(AC + 8 * k + 4, 4), RY + 2048 * k + 16), tag="x%d" % k)
            a("ds_read_b128 %s, v8 offset:%d" % (v(UF + 4 * k, 4), U_OFF + 1024 * k), tag="x%d" % k)
        kq = a.capture(kfr, cfg.kf0, 32)
        TH = UF + 16
        def tf():
            for k in range(4):
                H_ = UF + 4 * k
                a.wait_lg("x%d" % k)
                for q in range(8 * k, 8 * k + 8):
                    a("v_lshlrev_b32 v%d, 16, v%d" % (AC + 32 + q, AC + q))
                    a("v_and_b32 v%d, s%d, v%d" % (AC + q, sMASK, AC + q))
                for q in range(4):
                    a("v_lshlrev_b32 v%d, 16, v%d" % (TH + 2 * q, H_ + q))
                    a("v_and_b32 v%d, s%d, v%d" % (TH + 2 * q + 1, sMASK, H_ + q))
                for q in range(8):
                    a("v_fmac_f32 v%d, v%d, v%d" % (AC + 32 + 8 * k + q, TH + q, AC + 8 * k + q))
                for q in range(4):
                    a("v_cvt_pk_bf16_f32 v%d, v%d, v%d" % (AC + 8 * k + q, AC + 32 + 8 * k + 2 * q, AC + 32 + 8 * k + 2 * q + 1))
                a("ds_write_b128 v8, %s offset:%d" % (v(AC + 8 * k, 4), U_OFF + 1024 * k))
        for n_, it in enumerate(a.capture(tf)):
            a.play(it)
            if n_ % 3 == 2 and kq:
                a.play(kq.pop(0))
        for it in kq:
            a.play(it)
        lds_arrive(44, 8, 9)
    else:
        if cfg.nox and not cfg.t7:
            if cfg.tprio:
                a("s_setprio %d" % cfg.tprio)
            lds_wait(48, 1, 8, 9, sleep=1)
            a("v_lshlrev_b32 v9, 5, v0")
            for k in range(4):
                a("ds_read_b128 %s, v9 offset:%d" % (v(AC + 8 * k, 4), RY + 2048 * k), tag="x%d" % k)
                a("ds_read_b128 %s, v9 offset:%d" % (v(AC + 8 * k + 4, 4), RY + 2048 * k + 16), tag="x%d" % k)
            for k in range(4):
                a.wait_lg("x%d" % k)
                for q in range(8 * k, 8 * k + 8):
                    a("v_lshlrev_b32 v%d, 16, v%d" % (AC + 32 + q, AC + q))
                    a("v_and_b32 v%d, s%d, v%d" % (AC + q, sMASK, AC + q))
        lds_wait(24, 1, 8, 9, sleep=1)
        if cfg.nox and not cfg.t7:
            a("v_add_u32 v8, s%d, v2" % sRB)
            for k in range(4):
                a("ds_read_b128 %s, v8 offset:%d" % (v(UF + 4 * k, 4), U_OFF + 1024 * k), tag="x%d" % k)
            TH = UF + 16
            for k in range(4):
                H_ = UF + 4 * k
                a.wait_lg("x%d" % k)
                for q in range(4):
                    a("v_lshlrev_b32 v%d, 16, v%d" % (TH + 2 * q, H_ + q))
                    a("v_and_b32 v%d, s%d, v%d" % (TH + 2 * q + 1, sMASK, H_ + q))
                for q in range(8):
                    a("v_fmac_f32 v%d, v%d, v%d" % (AC + 32 + 8 * k + q, TH + q, AC + 8 * k + q))
                for q in range(4):
                    a("v_cvt_pk_bf16_f32 v%d, v%d, v%d" % (AC + 8 * k + q, AC + 32 + 8 * k + 2 * q, AC + 32 + 8 * k + 2 * q + 1))
                a("ds_write_b128 v8, %s offset:%d" % (v(AC + 8 * k, 4), U_OFF + 1024 * k))
            lds_arrive(44, 8, 9)
    stamp(7)
    if cfg.cprio or cfg.keepk or cfg.tprio or cfg.fastp:
        a("s_setprio %d" % cfg.cprio)
    seq = []
    for c in range(2):
        if cfg.helper and c == 0:
            seq += [(0, 0), (0, NT)]
            rest = [m for m in range(1, 16) if m != NT]
            while rest:
                seq += [(0, rest.pop(0)), (0, rest.pop())]
        else:
            for q in range(8):
                seq += [(c, q), (c, 15 - q)]
    def uread(n):
        c, mu = seq[n]
        a("ds_read_b128 %s, v%d offset:%d" % (v(UF + 4 * (n % NU), 4), vUA, 128 * (1 - c) + 256 * mu), tag="U%d" % n)
    for n in range(NU - 2):
        uread(n)
    stubs = []
    for n in range(32):
        c, mu = seq[n]
        if n % 2 == 0:
            if cfg.pause and n:
                a.wait_lg("pz")
                if n == 2 and cfg.pprio:
                    a("v_cmp_le_u32 vcc, 4, v9")
                    a("s_cbranch_vccz L_nlp")
                    a("s_setprio %d" % cfg.pprio)
                    a.label("L_nlp")
                if cfg.pth > 1:
                    a("v_sub_u32 v8, v8, v9")
                    a("v_cmp_le_u32 vcc, %d, v8" % cfg.pth)
                else:
                    a("v_cmp_ne_u32 vcc, v8, v9")
                a("s_cbranch_vccnz L_pz%d" % n)
                a.label("L_np%d" % n)
                stubs.append(n)
            if cfg.pause and n < 30:
                a("ds_read2_b32 v[8:9], v6 offset0:%d offset1:7" % (14 if cfg.psat >= 0 else 0), tag="pz")
            for k in (n + NU - 2, n + NU - 1):
                if k < 32:
                    uread(k)
        a.wait_lg("U%d" % n)
        for tau in range(min(NT, 16 - mu)):
            acc = v(AC + 4 * (tau + mu), 4)
            first = n == 0 or (cfg.helper and n == 1)
            if not cfg.noconv or first:
                a("v_mfma_f32_16x16x32_bf16 %s, %s, %s, %s" % (acc, v(KF + 4 * (16 * c + tau), 4), v(UF + 4 * (n % NU), 4), ("v[240:243]" if cfg.zc else "0") if first else acc))
    stamp(8)
    if cfg.helper:
        a("s_sub_u32 s%d, s%d, 3" % (sT3, sWV))
        lds_wait(36, "s%d" % sT3, 8, 9, sleep=1)
        a("v_add_u32 v8, s%d, v2" % sRB)
        for q in range(NH):
            a("ds_read_b128 %s, v8 offset:%d" % (v(UF + 4 * q, 4), 1024 * q), tag="hp%d" % q)
        for q in range(NH):
            a.wait_lg("hp%d" % q)
            for r in range(4):
                a("v_add_f32 v%d, v%d, v%d" % (AC + 4 * (NT + q) + r, AC + 4 * (NT + q) + r, UF + 4 * q + r))
    if cfg.eprio != cfg.cprio:
        a("s_setprio %d" % cfg.eprio)
    CY = 100
    for r in range(4):
        a("v_mov_b32 v%d, 0" % (CY + r))
    for m in range(8):
        for r in range(4):
            a("v_permlane32_swap_b32 v%d, v%d" % (AC + 4 * m + r, AC + 32 + 4 * m + r))
    for r in range(4):
        a("v_mov_b32 v%d, v%d" % (CY + 4 + r, AC + 32 + 28 + r))
    for m in range(8):
        for r in range(4):
            L_ = AC + 4 * m + r
            a("v_add_f32_dpp v%d, v%d, v%d row_shr:1 row_mask:0xf bank_mask:0xf bound_ctrl:0" % (L_, AC + 32 + 4 * m + r, L_))
        if m == 0:
            for r in range(4):
                a("v_permlane32_swap_b32 v%d, v%d" % (CY + r, CY + 4 + r))
    for m in range(8):
        for r in range(4):
            L_ = AC + 4 * m + r
            prev = (AC + 32 + 4 * (m - 1) + r) if m else (CY + r)
            a("v_add_f32_dpp v%d, v%d, v%d row_shl:15 row_mask:0xf bank_mask:0xf bound_ctrl:0" % (L_, prev, L_))
    TP2 = 108
    for k in range(16):
        a("v_cvt_pk_bf16_f32 v%d, v%d, v%d" % (TP2 + k, AC + 2 * k, AC + 2 * k + 1))
    for mp in range(4):
        a("v_permlane16_swap_b32 v%d, v%d" % (TP2 + 4 * mp, TP2 + 4 * mp + 2))
        a("v_permlane16_swap_b32 v%d, v%d" % (TP2 + 4 * mp + 1, TP2 + 4 * mp + 3))
    if cfg.ysync:
        a("s_and_b32 s%d, s%d, 1" % (sT2, sJ))
        a("s_add_u32 s%d, s%d, 2" % (sT2, sT2))
        a("v_mov_b32 v12, %d" % (CNT + 32))
        a("v_mov_b32 v13, s%d" % sT2)
        a("s_mov_b64 exec, 1")
        a("ds_add_u32 v12, v13")
        a("s_mov_b64 exec, -1")
        lds_wait(32, 6, 12, 13, sleep=1)
    a("s_lshl_b32 s%d, s%d, 12" % (sT0, sPOS))
    a("s_add_u32 s%d, s%d, 0x%x" % (sT0, sT0, YA))
    for mp in range(4):
        a("buffer_store_dwordx4 %s, v4, %s, s%d offen offset:%d sc1" % (v(TP2 + 4 * mp, 4), s(rWS, 4), sT0, 512 * mp))
    if cfg.ssig:
        a("s_lshl_b32 s%d, s%d, 10" % (sT1, sX))
        a("s_add_u32 s%d, s%d, 0x%x" % (sT1, sT1, YC))
        if cfg.ywg:
            assert cfg.xnlate != 2
            a("v_mov_b32 v12, %d" % (CNT + 40))
            a("v_mov_b32 v13, 1")
            a("s_and_b32 s%d, s%d, 1" % (sT2, sJ))
        a.drain_vm()
        if cfg.ywg:
            a("s_mov_b64 exec, 1")
            a("ds_add_rtn_u32 v13, v12, v13")
            a("s_mov_b64 exec, -1")
            a.drain_lg()
            a("v_readfirstlane_b32 s%d, v13" % sT0)
            a("s_add_u32 s%d, s%d, s%d" % (sT0, sT0, sT2))
            a("s_cmp_lg_u32 s%d, 2" % sT0)
            a("s_cbranch_scc1 L_aux_done")
        sig8(sT1, 128)
    else:
        a("s_mov_b32 s%d, 0x%x" % (sT1, YC))
        a.drain_vm()
        group_add(5, sT1, 13)
    stamp(9)
    a.label("L_aux_done")
    finish()
    def emit_stubs(lst):
        for n in lst:
            a.label("L_pz%d" % n)
            a("s_mov_b32 s%d, 0x%x" % (sCNT, cfg.spin * 64))
            a.label("L_pl%d" % n)
            a("s_sleep 1")
            a("ds_read2_b32 v[8:9], v6 offset0:%d offset1:7" % (14 if cfg.psat >= 0 else 0))
            a("s_sub_u32 s%d, s%d, 1" % (sCNT, sCNT))
            a("s_cbranch_scc1 L_np%d" % n)
            a.drain_lg()
            a("v_cmp_ne_u32 vcc, v8, v9")
            a("s_cbranch_vccnz L_pl%d" % n)
            if cfg.pprio:
                a("s_setprio %d" % cfg.pprio)
            a("s_branch L_np%d" % n)
    emit_stubs(stubs)
    hstubs = []
    if cfg.stouch:
        a.label("L_w6")
        a("s_lshr_b32 s%d, s%d, 1" % (sT0, sJ))
        a("s_mul_i32 s%d, s%d, %d" % (sT0, sT0, 96 * 4096))
        a("s_lshl_b32 s%d, s%d, 9" % (sT1, sX))
        a("s_add_u32 s%d, s%d, s%d" % (sT0, sT0, sT1))
        a("s_add_u32 s14, s%d, s%d" % (pW2, sT0))
        a("s_addc_u32 s15, s%d, 0" % (pW2 + 1))
        a("s_mov_b32 s%d, 24" % sCNT)
        a.label("L_w6l")
        for r in range(4):
            for c in range(4):
                a("s_load_dword s%d, s[14:15], 0x%x" % (76 + (4 * r + c) % 8, r * 4096 + c * 128))
            if cfg.stouch == 2:
                a("s_waitcnt lgkmcnt(8)")
        a("s_add_u32 s14, s14, %d" % (4 * 4096))
        a("s_addc_u32 s15, s15, 0")
        a("s_sub_u32 s%d, s%d, 1" % (sCNT, sCNT))
        a("s_cmp_lg_u32 s%d, 0" % sCNT)
        a("s_cbranch_scc1 L_w6l")
        stamp(9)
        a("s_branch L_aux_done")
    a.label("L_w7")
    a.vm = []; a.lg = []
    tile_math(2 if cfg.lean else 3)
    a("v_lshrrev_b32 v8, 2, v0")
    a("v_and_b32 v9, 3, v0")
    a("v_mul_u32_u24 v5, 10240, v8")
    a("v_lshl_add_u32 v5, v9, 4, v5")
    a("v_mul_u32_u24 v4, %d, v9" % S)
    a("v_lshl_add_u32 v4, v8, 4, v4")
    a("s_lshl_b32 s96, s%d, 4" % sPOS)
    a("s_add_u32 s96, s96, 0x%x" % (HB if cfg.nox else XB))
    a("v_lshrrev_b32 v7, 1, v0")
    a("v_lshlrev_b32 v7, %d, v7" % cfg.stsh)
    a("v_and_b32 v13, 16, v2")
    a("v_add_u32 v7, v7, v13")
    a("s_and_b32 s%d, s%d, 1" % (sT3, sJ))
    a("s_cmp_eq_u32 s%d, 0" % sT3)
    a("s_mov_b32 s%d, 0x33333333" % sT2)
    a("s_cselect_b32 s100, 0x77777777, s%d" % sT2)
    a("s_mov_b32 s101, s100")
    a("s_setprio %d" % cfg.uprio)
    if cfg.w7mb:
        a("s_lshl_b32 s%d, s%d, 10" % (sT1, sID))
        a("s_add_u32 s%d, s%d, 0x%x" % (sT1, sT1, MB))
        a("s_add_u32 s14, s%d, s%d" % (pWS, sT1))
        a("s_addc_u32 s15, s%d, 0" % (pWS + 1))
        a("s_mov_b32 s%d, %d" % (sCNT, cfg.spin * 2))
        a.label("L_p4")
        for k in range(4):
            a("s_load_dword s%d, s[14:15], %d glc" % (sD[k], 128 * k + (64 if cfg.xnlate else 0)))
        a("s_waitcnt lgkmcnt(0)"); a.lg = []
        for k in range(4):
            a("s_xor_b32 s%d, s%d, s%d" % (sD[k], sD[k], sTAG))
        a("s_or_b32 s%d, s%d, s%d" % (sD[0], sD[0], sD[1]))
        a("s_or_b32 s%d, s%d, s%d" % (sD[2], sD[2], sD[3]))
        a("s_or_b32 s%d, s%d, s%d" % (sD[0], sD[0], sD[2]))
        a("s_cbranch_scc0 L_p4ok")
        if cfg.p4s:
            a("s_sleep %d" % cfg.p4s)
        a("s_sub_u32 s%d, s%d, 1" % (sCNT, sCNT))
        a("s_cmp_lg_u32 s%d, 0" % sCNT)
        a("s_cbranch_scc1 L_p4")
        a.label("L_p4ok")
    else:
        lds_wait(12, 4, 10, 11, sleep=2)
    stamp(5)
    def touch_w2():
        sh = 2 if cfg.map2 == 8 else 3
        a("v_lshrrev_b32 v10, %d, v0" % sh)
        a("v_lshlrev_b32 v10, 12, v10")
        a("v_and_b32 v11, %d, v0" % ((1 << sh) - 1))
        a("v_lshl_add_u32 v10, v11, 7, v10")
        a("s_mul_i32 s%d, s%d, %d" % (sT1, sJ, 48 * 4096))
        if cfg.map2 == 8:
            a("s_lshl_b32 s%d, s%d, 9" % (sT2, sX))
        else:
            a("s_lshr_b32 s%d, s%d, 1" % (sT2, sX))
            a("s_lshl_b32 s%d, s%d, 10" % (sT2, sT2))
        a("s_add_u32 s%d, s%d, s%d" % (sT1, sT1, sT2))
        n = 3 if cfg.map2 == 8 else 6
        for k in range(n):
            a("buffer_load_dword v%d, v10, %s, s%d offen %s" % (100 + k, s(rW2, 4), sT1, cfg.t2pol))
            a("s_add_u32 s%d, s%d, %d" % (sT1, sT1, (64 >> sh) * 4096))
            if cfg.t2gap:
                a.drain_vm()
    if cfg.touch2 == 1 or cfg.refresh:
        sv = cfg.t2pol
        if cfg.refresh:
            cfg.t2pol = ''
        touch_w2()
        cfg.t2pol = sv
    if cfg.late:
        a("s_cmp_ge_u32 s%d, 30" % sJ)
        a("s_cbranch_scc1 L_w7_nl")
        lds_wait({1: 28, 2: 0, 3: 56}[cfg.late], 4 if cfg.late == 1 else cfg.laten, 10, 11, sleep=2)
        a.label("L_w7_nl")
    if cfg.nox:
        for k in range(8):
            a("s_mov_b32 s%d, 0x%x" % (sT2, ST + (32 << cfg.stsh) * k))
            a("buffer_load_dwordx4 %s, v7, %s, s%d offen sc1" % (v(80 + 4 * k, 4), s(rWS, 4), sT2), tag="st%d" % k)
    a("s_mov_b64 exec, s[100:101]")
    for k in range(16):
        a("buffer_load_dwordx4 %s, v5, %s, s96 offen sc1" % (v(16 + 4 * k, 4), s(rWS, 4)), tag="u%d" % k)
        if k < 15:
            a("s_add_u32 s96, s96, %d" % (16 * 10240))
    a("s_mov_b64 exec, -1")
    a("s_cmp_lg_u32 s%d, 0" % sID)
    a("s_cbranch_scc1 L_noE")
    a("s_add_u32 s14, s%d, 0x%x" % (pWS, EW))
    a("s_addc_u32 s15, s%d, 0" % (pWS + 1))
    a("s_mov_b32 s7, s%d" % sTAG)
    a("s_atomic_swap s7, s[14:15], 0")
    a("s_waitcnt lgkmcnt(0)")
    a.label("L_noE")
    if cfg.nox:
        for k in range(8):
            a.wait_vm("st%d" % k)
            a("ds_write_b128 v2, %s offset:%d" % (v(80 + 4 * k, 4), RY + 1024 * k))
        if not cfg.t7:
            lds_arrive(48, 12, 13)
        if cfg.t7:
            a("v_lshlrev_b32 v12, 5, v8")
            a("v_mov_b32 v13, 0x3f80")
            SR, TB_ = 112, 240
            def srd_(k):
                a("ds_read_b128 %s, v12 offset:%d" % (v(SR + 8 * k, 4), RY + 512 * k), tag="s%d" % k)
                a("ds_read_b128 %s, v12 offset:%d" % (v(SR + 8 * k + 4, 4), RY + 512 * k + 16), tag="s%d" % k)
            for k in range(6):
                srd_(k)
            for k in range(16):
                H_, S_, T_ = 16 + 4 * k, SR + 8 * k, TB_ + 8 * (k & 1)
                a.wait_vm("u%d" % k)
                for q in range(4):
                    a("v_lshl_or_b32 v%d, v%d, 16, v13" % (T_ + 2 * q, H_ + q))
                    a("v_and_or_b32 v%d, v%d, s%d, v13" % (T_ + 2 * q + 1, H_ + q, sMASK))
                a.wait_lg("s%d" % k)
                if k + 6 < 16:
                    srd_(k + 6)
                for q in range(8):
                    a("v_dot2_f32_bf16 v%d, v%d, v%d, 0" % (S_ + q, S_ + q, T_ + q))
                if k:
                    for q in range(4):
                        a("v_cvt_pk_bf16_f32 v%d, v%d, v%d" % (H_ - 4 + q, S_ - 8 + 2 * q, S_ - 8 + 2 * q + 1))
            for q in range(4):
                a("v_cvt_pk_bf16_f32 v%d, v%d, v%d" % (76 + q, SR + 120 + 2 * q, SR + 120 + 2 * q + 1))
    if not cfg.sepu:
        a("v_mov_b32 v12, %d" % (CNT + 20))
        a("v_mov_b32 v13, s%d" % sT3)
        a("s_mov_b64 exec, 1")
        a("ds_add_u32 v12, v13")
        a("s_mov_b64 exec, -1")
        lds_wait(20, 3, 12, 13, sleep=2)
    a("s_mov_b64 exec, s[100:101]")
    for k in range(16):
        a.wait_vm("u%d" % k)
        a("ds_write_b128 v4, %s offset:%d" % (v(16 + 4 * k, 4), U_OFF + 256 * k))
    a("s_mov_b64 exec, -1")
    a.drain_lg()
    lds_arrive(24, 12, 13)
    stamp(9)
    if cfg.nox and not cfg.t7 and cfg.helper:
        a("s_and_b32 s%d, s%d, 1" % (sT3, sJ))
        a("s_sub_u32 s%d, 3, s%d" % (sT3, sT3))
        lds_wait(44, "s%d" % sT3, 10, 11, sleep=2)
    if cfg.helper:
        a("s_setprio %d" % cfg.cprio)
        assert NH <= 6
        a("s_mov_b32 s%d, 0" % sRB)
        a("v_mov_b32 v6, %d" % CNT)
        conv_addr(sRB)
        hseq = []
        for c in range(2):
            rest = list(range(NH))
            while rest:
                hseq.append((c, rest.pop(0)))
                if rest:
                    hseq.append((c, rest.pop()))
        def hregs(ch):
            b = ch & 1
            return 16 + 24 * b, 64 + 96 * b, 112 + 96 * b
        def hreads(ch):
            HA, HK, HU = hregs(ch)
            if ch:
                for r in (vUA, vKA + 2, vKA + 3):
                    a("v_add_u32 v%d, %d, v%d" % (r, S, r))
            for c in range(2):
                for tau in range(NT, 16):
                    o = 192 - 64 * (tau & 3) + 32 * (1 - c)
                    r = HK + 4 * (NH * c + tau - NT)
                    a("ds_read2_b32 %s, v%d offset0:%d offset1:%d" % (v(r, 2), vKA + (tau >> 2), o, o + 1), tag="h%d" % ch)
                    a("ds_read2_b32 %s, v%d offset0:%d offset1:%d" % (v(r + 2, 2), vKA + (tau >> 2), o + 2, o + 3), tag="h%d" % ch)
            for n, (cc, mu) in enumerate(hseq):
                a("ds_read_b128 %s, v%d offset:%d" % (v(HU + 4 * n, 4), vUA, 128 * (1 - cc) + 256 * mu), tag="h%d" % ch)
        hreads(0)
        for ch in range(3):
            HA, HK, HU = hregs(ch)
            a.drain_lg()
            if ch:
                lds_arrive(36, 8, 9)
            if ch == 2:
                a("s_bitcmp1_b32 s%d, 0" % sJ)
                a("s_cbranch_scc1 L_hdone")
            hf_ = a.capture(hreads, ch + 1) if ch < 2 else []
            cnt = 0
            for n, (c, mu) in enumerate(hseq):
                if n % 4 == 0 and cfg.pause:
                    if n:
                        a.wait_lg("pz")
                        a("v_cmp_ne_u32 vcc, v8, v9")
                        a("s_cbranch_vccnz L_pz%d" % (100 + 20 * ch + n))
                        a.label("L_np%d" % (100 + 20 * ch + n))
                        hstubs.append(100 + 20 * ch + n)
                    if n + 4 < len(hseq):
                        a("ds_read2_b32 v[8:9], v6 offset0:%d offset1:7" % (14 if cfg.psat >= 0 else 0), tag="pz")
                for tau in range(NT, 16 - mu):
                    acc = v(HA + 4 * (tau + mu - NT), 4)
                    a("v_mfma_f32_16x16x32_bf16 %s, %s, %s, %s" % (acc, v(HK + 4 * (NH * c + tau - NT), 4), v(HU + 4 * n, 4), acc if n else "0"))
                    if hf_:
                        a.play(hf_.pop(0))
            for it in hf_:
                a.play(it)
            for q in range(NH):
                a("ds_write_b128 v2, %s offset:%d" % (v(HA + 4 * q, 4), ch * S + 1024 * q))
        a.drain_lg()
        lds_arrive(36, 8, 9)
        a.label("L_hdone")
        a.drain_lg()
        a("s_setprio %d" % cfg.uprio)
        stamp(8)
    if cfg.w7dma:
        a("s_cmp_ge_u32 s%d, 30" % sJ)
        a("s_cbranch_scc1 L_no7d")
        dma_voff(4096, False)
        a("s_lshl_b32 s%d, s%d, 7" % (sOWB, sST))
        lds_wait(0, 4, 10, 11, sleep=1)
        for k in range(2, 7 if cfg.w7dma == 1 else 4):
            if k == 4:
                lds_wait(4, 4, 10, 11)
            setoff(sOW, sOWB, sORD2, k, 32 * 4096)
            for w in range(4):
                for b in range(4):
                    a("s_mov_b32 m0, %d" % (WOFF + w * WSZ + slot2(k) * 4096 + b * 1024))
                    a("s_add_u32 s%d, s%d, %d" % (sT0, sOW, w * 384 * 4096 + C2[b]))
                    a("buffer_load_dwordx4 v%d, %s, s%d offen lds" % (vDO, s(rW2, 4), sT0), tag="d%d" % k)
                a("s_waitcnt vmcnt(%d)" % cfg.w7thr)
            if k == 4:
                a.wait_vm("d3")
                lds_arrive(52, 12, 13)
        a.drain_vm()
        lds_arrive(52, 12, 13)
        a.label("L_no7d")
        a.vm = []
    if cfg.nox and not cfg.t7 and not cfg.helper:
        a("s_and_b32 s%d, s%d, 1" % (sT3, sJ))
        a("s_sub_u32 s%d, 3, s%d" % (sT3, sT3))
        lds_wait(44, "s%d" % sT3, 10, 11, sleep=2)
    if cfg.ywait:
        a("s_cmp_ge_u32 s%d, 30" % sJ)
        a("s_cbranch_scc1 L_yw")
        lds_wait(28, 4, 10, 11, sleep=8)
        a.label("L_yw")
    if cfg.ssig:
        a("s_and_b32 s%d, s%d, 63" % (sT1, sID))
        a("s_lshl_b32 s%d, s%d, 7" % (sT1, sT1))
    else:
        a("s_lshl_b32 s%d, s%d, 7" % (sT1, sID))
    a("s_add_u32 s%d, s%d, 0x%x" % (sT1, sT1, YC))
    if not cfg.noya:
        spoll(sT1, cfg.ysleep, target=32 if (cfg.ywg and cfg.ssig) else 80)
    stamp(6)
    a("v_lshrrev_b32 v8, 3, v0")
    a("v_lshlrev_b32 v8, 12, v8")
    a("v_and_b32 v9, 7, v0")
    a("v_lshl_add_u32 v8, v9, 4, v8")
    a("s_mul_i32 s%d, s%d, %d" % (sT0, sDT2, 80 * 4096))
    a("s_lshl_b32 s%d, s%d, 7" % (sT1, sST))
    a("s_add_u32 s%d, s%d, s%d" % (sT0, sT0, sT1))
    a("s_add_u32 s%d, s%d, 0x%x" % (sT0, sT0, YA))
    for k in range(10):
        a("buffer_load_dwordx4 %s, v8, %s, s%d offen sc1" % (v(16 + 4 * k, 4), s(rWS, 4), sT0), tag="y%d" % k)
        if k < 9:
            a("s_add_u32 s%d, s%d, %d" % (sT0, sT0, 8 * 4096))
    for k in range(10):
        a.wait_vm("y%d" % k)
        a("ds_write_b128 v2, %s offset:%d" % (v(16 + 4 * k, 4), RY + 1024 * k))
    stamp(7)
    finish()
    emit_stubs(hstubs)
    a.label("L_exit")
    a("s_endpgm")
    a.label("L_code_end")
    return a

HEADER = open("cdna_kernels/%s.s.ref" % NAME).read().split("; Override launch")[0]

DOC = """;
;            MFMA-fragment-blocked layout [token/8][channel][8] plus the per-token (mean, std) of the
"""

def full(cfg):
    a = gen(cfg)
    out = HEADER
    out += "; @launch grid=(256,1,1) block=(512,1,1) lds=%d\n" % LDS_BYTES
    out += DOC
    out += '.amdgcn_target "amdgcn-amd-amdhsa--gfx950"\n.text\n.globl %s_kernel\n.p2align 8\n.type %s_kernel,@function\n' % (NAME, NAME)
    out += a.text()
    out += """.section .rodata,"a"
.p2align 6
.amdhsa_kernel %s_kernel
  .amdhsa_next_free_vgpr 256
  .amdhsa_next_free_sgpr 102
  .amdhsa_accum_offset 256
  .amdhsa_group_segment_fixed_size 0
  .amdhsa_kernarg_size 136
  .amdhsa_user_sgpr_count 2
  .amdhsa_user_sgpr_kernarg_segment_ptr 1
  .amdhsa_system_sgpr_workgroup_id_x 1
  .amdhsa_float_denorm_mode_32 3
.end_amdhsa_kernel
""" % NAME
    return out, a

if __name__ == "__main__":
    cfg = Cfg()
    outp = "cdna_kernels/%s.s" % NAME
    for arg in sys.argv[1:]:
        k, val = arg.split("=")
        if k == "out":
            outp = val
        else:
            cur = getattr(cfg, k)
            setattr(cfg, k, val if isinstance(cur, str) else (bool(int(val)) if isinstance(cur, bool) else int(val)))
    txt, a = full(cfg)
    open(outp, "w").write(txt)
    print("wrote", outp, "instr", a.ninst, "pad states", a.npad)
```
